```python
import torch

def _softmax(x, axis=-1):
    return torch.softmax(x, dim=axis)
def _gelu(x):
    return torch.nn.functional.gelu(x, approximate="tanh")
def _silu(x):
    return torch.nn.functional.silu(x)
def _sigmoid(x):
    return torch.sigmoid(x)
def _layernorm(x, axis=-1, eps=1e-5):
    m = x.mean(dim=axis, keepdim=True)
    v = x.var(dim=axis, keepdim=True, unbiased=False)
    return (x - m) / torch.sqrt(v + eps)
def _scatter_add(tgt, idx, src, axis=0):
    return tgt.clone().index_add_(axis, idx, src)
def _segment_sum(src, seg, n):
    out = torch.zeros((n,) + src.shape[1:], dtype=src.dtype)
    return out.index_add_(0, seg, src)
def _pad(x, pw):
    flat = tuple(v for pair in reversed(pw) for v in pair)
    return torch.nn.functional.pad(x, flat)

kernel_name = 'standalone__mha_softmax__near_ridge'

def setup_inputs():

    _w = (lambda a: (lambda t: t.to(torch.bfloat16) if t.is_floating_point() else t)(torch.as_tensor(a)))
    B, H, Sq, Sk, D = 8, 16, 1312, 512, 256
    return {
        "q": _w((lambda *s: torch.randn(*s, dtype=torch.bfloat16) * 0.8)(B, H, Sq, D)),
        "k": _w((lambda *s: torch.randn(*s, dtype=torch.bfloat16) * 0.8)(B, H, Sk, D)),
        "v": _w((lambda *s: torch.randn(*s, dtype=torch.bfloat16) * 0.05)(B, H, Sk, D)),
    }

def reference(q, k, v):
    scale = q.shape[-1] ** -0.5
    scores = torch.einsum("bhqd,bhkd->bhqk", q, k) * scale
    p = _softmax(scores, axis=-1)
    return torch.einsum("bhqk,bhkd->bhqd", p, v)
```

```python
import re

def R(kind, n, cnt=1):
    if cnt == 1: return f"{kind}{n}"
    return f"{kind}[{n}:{n+cnt-1}]"

class Reg:
    __slots__ = ("k", "n", "c")
    def __init__(self, k, n, c=1):
        self.k, self.n, self.c = k, n, c
    def __str__(self): return R(self.k, self.n, self.c)
    def set(self): return {(self.k, self.n + i) for i in range(self.c)}
    def sub(self, i, c=1):
        assert i + c <= self.c
        return Reg(self.k, self.n + i, c)
    def __getitem__(self, i): return self.sub(i, 1)

def V(n, c=1): return Reg('v', n, c)
def AG(n, c=1): return Reg('a', n, c)
def S(n, c=1): return Reg('s', n, c)

def regs_of(x):
    if isinstance(x, Reg): return x.set()
    return set()

class Ins:
    def __init__(self, text, kind, rd=(), wr=(), cost=4, **kw):
        self.text = text; self.kind = kind
        self.rd = set(); self.wr = set()
        for r in rd: self.rd |= regs_of(r)
        for w in wr: self.wr |= regs_of(w)
        self.cost = cost
        self.srcc = set()
        self.tag = kw.get("tag")
        self.need = kw.get("need", [])
        self.states = kw.get("states", 1)
    def __repr__(self): return self.text

def mfma(d, a, b, c, **kw):
    ct = str(c) if isinstance(c, Reg) else str(c)
    op = "v_mfma_f32_16x16x32_bf16" if d.c == 4 else "v_mfma_f32_32x32x16_bf16"
    i = Ins(f"{op} {d}, {a}, {b}, {ct}", "mfma", rd=[a, b, c], wr=[d], cost=8, **kw)
    i.srcc = regs_of(c); i.ab = regs_of(a) | regs_of(b); i.passes = 4 if d.c == 4 else 8
    i.d = d; i.c = c
    return i

TRANS = ("v_exp_f32", "v_log_f32", "v_rcp_f32", "v_rsq_f32", "v_sqrt_f32")
def valu(op, d, *srcs, mods="", extra_rd=(), extra_wr=(), **kw):
    t = f"{op} {d}, " + ", ".join(str(s) for s in srcs) + (" " + mods if mods else "")
    rd = []
    for s in srcs:
        if isinstance(s, Reg): rd.append(s)
        elif isinstance(s, Neg): rd.append(s.r)
    rd += list(extra_rd)
    wr = [d] if isinstance(d, Reg) else []
    wr += list(extra_wr)
    kind = "trans" if op in TRANS else "valu"
    if op.startswith("v_fmac") or op.startswith("v_dot2c"): rd.append(d)
    i = Ins(t, kind, rd=rd, wr=wr, cost=8 if kind == "trans" else 4, **kw)
    i.op = op
    return i

class Neg:
    def __init__(self, r): self.r = r
    def __str__(self): return f"-{self.r}"

def ds_read(op, d, addr, off, tag=None):
    i = Ins(f"{op} {d}, {addr} offset:{off}", "ds", rd=[addr], wr=[d], tag=tag)
    return i
def ds_write(op, addr, src, off, tag=None):
    return Ins(f"{op} {addr}, {src} offset:{off}", "ds", rd=[addr, src], tag=tag)
def salu(text, rd=(), wr=()):
    return Ins(text, "salu", rd=rd, wr=wr)
def raw(text, kind="misc", **kw):
    return Ins(text, kind, **kw)
def nop(n):
    return Ins(f"s_nop {n}", "nop", states=n + 1, cost=4 * (n + 1))

def required_gap(p, c):
    need = 0
    pv = p.kind in ("valu", "trans")
    cv = c.kind in ("valu", "trans")
    if p.kind == "mfma":
        t = {4: (6, 8), 8: (10, 12)}[p.passes]
        if c.kind == "mfma":
            if p.wr & c.ab: need = max(need, t[1])
            if p.wr & c.srcc:
                same = isinstance(c.c, Reg) and c.c.k == p.d.k and c.c.n == p.d.n and c.c.c == p.d.c and c.passes == p.passes
                if not same: need = max(need, t[0])
            elif p.wr & c.wr:
                pass
        elif cv or c.kind in ("ds", "vmem", "acc"):
            if p.wr & (c.rd | c.wr): need = max(need, t[1])
        if (cv or c.kind == "acc") and (p.srcc & c.wr):
            need = max(need, 3 if p.passes == 4 else 7)
    if (pv or p.kind == "acc") and c.kind == "mfma" and (p.wr & c.rd): need = max(need, 2)
    if p.kind == "trans" and c.kind in ("valu", "acc") and (p.wr & c.rd): need = max(need, 1)
    if pv and cv and getattr(c, "op", "").startswith("v_permlane") and (p.wr & c.rd): need = max(need, 2)
    if pv and cv and "dpp" in c.text.split()[0] and (p.wr & c.rd): need = max(need, 2)
    if pv and cv and getattr(c, "op", "") in ("v_readfirstlane_b32", "v_readlane_b32") and (p.wr & c.rd): need = max(need, 1)
    psg = {r for r in p.wr if r[0] == 's'}
    if pv and psg:
        if cv and (psg & c.rd): need = max(need, 2)
        if c.kind == "vmem" and (psg & c.rd): need = max(need, 5)
    if p.kind == "salu" and ('m0', 0) in p.wr and c.kind == "vmem" and ('m0', 0) in c.rd: need = max(need, 1)
    if p.kind == "vmem" and getattr(p, "wide_store", False) and (p.data & c.wr):
        need = max(need, 2 if cv else 1)
    return need

def fix_hazards(seq, wrap=None, lookback=14):
    out = []
    hist = list(wrap or [])
    for ins in seq:
        if ins.kind == "label":
            out.append(ins); continue
        dist = 0; worst = 0
        for p in reversed(hist[-lookback:]):
            g = required_gap(p, ins)
            if g > dist: worst = max(worst, g - dist)
            dist += p.states
            if dist >= 14: break
        if worst > 0:
            n = nop(worst - 1); out.append(n); hist.append(n)
        out.append(ins); hist.append(ins)
    return out

def insert_lgkm(seq, pre=()):
    out = []
    q = list(pre)
    for ins in seq:
        if ins.kind == "waitl0":
            q = []
        if ins.need:
            idx = -1
            for t in ins.need:
                if t in q: idx = max(idx, len(q) - 1 - q[::-1].index(t))
            if idx >= 0:
                n = len(q) - 1 - idx
                assert n <= 15, n
                out.append(raw(f"s_waitcnt lgkmcnt({n})", "wait"))
                q = q[idx + 1:]
        if ins.kind == "ds":
            q.append(ins.tag)
        out.append(ins)
    return out, q

def interleave(mf, fill, cap=8):
    out = []
    ptr = [0] * len(fill)
    for g, m in enumerate(mf):
        out.append(m)
        used = 0
        while True:
            best = None
            for si, st in enumerate(fill):
                if ptr[si] < len(st):
                    e, d, ins = st[ptr[si]]
                    if e <= g:
                        if best is None or d < best[0]: best = (d, si, ins)
            if best is None: break
            d, si, ins = best
            if used + ins.cost <= cap or d <= g:
                out.append(ins); used += ins.cost; ptr[si] += 1
            else:
                alt = None
                for sj, st in enumerate(fill):
                    if ptr[sj] < len(st):
                        e2, d2, i2 = st[ptr[sj]]
                        if e2 <= g and used + i2.cost <= cap and (alt is None or d2 < alt[0]): alt = (d2, sj, i2)
                if alt is None: break
                out.append(alt[2]); used += alt[2].cost; ptr[alt[1]] += 1
    for si, st in enumerate(fill):
        assert ptr[si] == len(st), ("unplaced", si, st[ptr[si]:][:3])
    return out

class Node:
    def __init__(self, ins, e=0, dl=10**9, ideal=None, deps=()):
        self.ins = ins; self.e = e; self.dl = dl
        self.ideal = e if ideal is None else ideal
        self.deps = list(deps)
        self.pos = None

def spread(nodes, lo, hi, weights=None):
    tot = sum(n.ins.cost for n in nodes); acc = 0
    for n in nodes:
        n.ideal = lo + (hi - lo) * acc / max(tot, 1)
        acc += n.ins.cost

def schedule(mf, nodes, cap=8, reserve=None, ahead=6):
    reserve = reserve or {}
    out = []
    pend = list(nodes)
    over = 0
    for g, m in enumerate(mf):
        out.append(m)
        room = cap - reserve.get(g, 0)
        last = (g == len(mf) - 1)
        while True:
            ready = [n for n in pend if n.e <= g and all(d.pos is not None and d.pos + k <= g for d, k in n.deps)]
            if not ready: break
            forced = [n for n in ready if n.dl <= g or last]
            if forced:
                n = min(forced, key=lambda n: n.ideal)
            else:
                fit = [n for n in ready if n.ins.cost <= room and n.ideal <= g + ahead]
                if not fit: break
                n = min(fit, key=lambda n: n.ideal)
                if n.ins.cost == 4 and room == 8 and cap == 8:
                    others = [x for x in pend if x is not n and x.ins.cost == 4 and x.e <= g and x.ideal <= g + ahead and
                              all((d is n and k == 0) or (d.pos is not None and d.pos + k <= g) for d, k in x.deps)]
                    big = [x for x in fit if x.ins.cost == 8]
                    if not others and big: n = min(big, key=lambda n: n.ideal)
            n.pos = g; pend.remove(n); out.append(n.ins); room -= n.ins.cost
            if room < 0: over += min(-room, n.ins.cost)
    assert not pend, [(n.ins.text, n.e, n.dl) for n in pend[:5]]
    return out, over

def schedule2(mf, nodes, free_taken=(), blocked=(), ahead=6, cap=8, nomem=()):
    blocked = dict(blocked)
    n_g = len(mf)
    inset = set(id(n) for n in nodes)
    for n in nodes:
        n.dl = min(n.dl, n_g - 1); n.e = min(n.e, n_g - 1)
        for d, k in n.deps: assert id(d) in inset, ("dep not in node list", n.ins.text, d.ins.text)
    changed = True
    while changed:
        changed = False
        for n in nodes:
            for d, k in n.deps:
                nd = max(d.e, n.dl - k)
                if nd < d.dl: d.dl = nd; changed = True
                if d.e > n.e: n.e = d.e; changed = True
    for n in nodes:
        assert n.e <= n.dl, ("infeasible window", n.ins.text, n.e, n.dl)
    gaps = []
    pend = list(nodes)
    over = 0
    SC = ("salu", "wait", "nop")
    rank = lambda x: 0 if x.ins.kind in SC else (1 if x.ins.kind in ("ds", "vmem") else 2)
    def cost(n):
        return 8 if n.ins.kind == "vmem" else n.ins.cost
    for g, m in enumerate(mf):
        room = cap - blocked.get(g, 0)
        free = g not in free_taken
        sc = []; ds = []; va = []; tail = []
        def ok(n):
            if n.e > g: return False
            if g in nomem and rank(n) == 1 and n.dl > g: return False
            for d, k in n.deps:
                if d.pos is None or d.pos + k > g: return False
                if d.pos == g and (rank(d) > rank(n) or d.intail): return False
            return True
        def ok_relaxed(n):
            return n.e <= g and all(d.pos is not None for d, k in n.deps)
        if free:
            c = [n for n in pend if n.ins.kind in SC and ok(n) and n.ideal <= g + ahead]
            if c:
                n = min(c, key=lambda n: (n.dl > g, n.ideal)); n.pos = g; n.intail = False; pend.remove(n); sc.append(n.ins); free = False
        while True:
            intail = False
            forced = [n for n in pend if n.dl <= g and ok(n)]
            if forced:
                n = min(forced, key=lambda n: n.ideal)
            else:
                forced = [n for n in pend if n.dl <= g and ok_relaxed(n)]
                if forced:
                    n = min(forced, key=lambda n: n.ideal); intail = True
                else:
                    fit = [n for n in pend if cost(n) <= room and n.ideal <= g + ahead and n.ins.kind not in SC and ok(n)]
                    if not fit: break
                    n = min(fit, key=lambda n: n.ideal)
                    if cost(n) == 4 and room == 8:
                        n.pos = g; n.intail = False
                        others = [x for x in pend if x is not n and cost(x) == 4 and x.ins.kind not in SC and x.ideal <= g + ahead and ok(x)]
                        n.pos = None
                        big = [x for x in fit if cost(x) == 8]
                        if not others and big: n = min(big, key=lambda n: n.ideal)
            n.pos = g; n.intail = intail; pend.remove(n); room -= cost(n)
            if room < 0: over += min(-room, cost(n))
            if intail: tail.append(n.ins)
            elif n.ins.kind in SC: sc.append(n.ins)
            elif n.ins.kind in ("ds", "vmem"): ds.append(n.ins)
            else: va.append(n.ins)
        gaps.append((m, sc, ds + va + tail))
    assert not pend, [(n.ins.text, n.e, n.dl) for n in pend[:5]]
    return gaps, over

def flatten_with_waits(gaps, pre=()):
    out = []
    q = list(pre)
    def wait_for(need, q):
        idx = -1
        for t in need:
            if t in q: idx = max(idx, len(q) - 1 - q[::-1].index(t))
        if idx < 0: return None, q
        n = len(q) - 1 - idx
        assert n <= 15, n
        return raw(f"s_waitcnt lgkmcnt({n})", "wait"), q[idx + 1:]
    for g, (m, sc, oth) in enumerate(gaps):
        w, q = wait_for(m.need, q)
        if w: out.append(w)
        out.append(m)
        if g + 1 < len(gaps):
            w, q = wait_for(gaps[g + 1][0].need, q)
            if w: out.append(w)
        out += sc
        for i in oth:
            if i.need:
                w, q = wait_for(i.need, q)
                if w: out.append(w)
            if i.kind == "ds": q.append(i.tag)
            out.append(i)
    return out, q
```

```python
import sys, argparse
from asmlib import *

KNAME = "standalone__mha_softmax__near_ridge_kernel"
NH, SQ, SK, D = 128, 1312, 512, 256
QBYTES = NH * SQ * D * 2
KBYTES = NH * SK * D * 2
OOB = 0x7fff0000
VB = 65536
XB = 131072
LDS_BYTES = 163840
C_SCALE = 0x3db8aa3b
L_LIMIT = 0x4e800000

sQ, sK, sV, sO = S(8, 4), S(12, 4), S(16, 4), S(20, 4)
s_wave = S(24)
s_mK = S(25)
s_mX = S(26)
s_mR2 = S(27)
s_mOS = S(28)
s_kptr, s_kend, s_knext = S(29), S(30), S(31)
s_vptr, s_vptr2, s_vend = S(32), S(33), S(34)
s_c = S(35)
s_cnt = S(36)
s_pass = S(37)
s_flags = S(38)
s_qn = [S(40), S(41), S(42), S(43)]
s_ocur = S(44)
s_t0, s_t1, s_t2 = S(45), S(46), S(47)
s_tab = S(48, 16)
s_dbg = S(64, 4)
s_ts = S(68, 2)
s_nbn = S(70)
s_tsp = S(71)
kaddr, vaddr0, vaddr1, voK, voV = V(1), V(2), V(3), V(4), V(5)
lsum = lambda b: V(6 + b)
vt0, vt1 = V(10), V(11)
voQa, voQb = V(12), V(13)
vt2, vt3 = V(14), V(15)
Ct = lambda b: V(16 + 4 * b, 4)
SET = lambda i: V(32 + 16 * i, 16)
Sx = lambda i, b: SET(i).sub(4 * b, 4)
Q = lambda b, s: AG(b * 32 + s * 4, 4)
NF = 8
F = lambda i: AG(128 + 4 * (i % NF), 4)
def O(b, db):
    t = b * 16 + db
    return V(96 + 4 * t, 4) if t < 40 else AG(160 + 4 * (t - 40), 4)

M0 = ('m0', 0)
def set_m0(base, off):
    i = salu(f"s_add_u32 m0, {base}, {off}", rd=[base]); i.wr = {M0}; return i
def sop(text, rd=(), wr=()): return salu(text, rd=rd, wr=wr)

class Opt: pass
opt = Opt()

def dma(vo, srd, soff, imm, unit, mods):
    i = Ins(f"buffer_load_dwordx4 {vo}, {srd}, {soff} offen offset:{imm} {mods} lds".replace("  ", " "), "vmem", rd=[vo, srd, soff])
    i.rd.add(M0); i.dma_wr = unit; i.vm = True
    return i

def kslot_addr(slot): return slot * 8192
def vslot_addr(par, c): return VB + (par * 4 + c) * 8192

def dma_K(slot, wrap=False):
    r = []
    for dh in range(2):
        r.append(set_m0(s_mK, kslot_addr(slot) + dh * 768))
        r.append(dma(voK, sK, s_kptr, dh * 256, ("K", slot), opt.kvmod))
    r.append(sop(f"s_add_u32 {s_kptr}, {s_kptr}, 8192", rd=[s_kptr], wr=[s_kptr]))
    if wrap:
        r.append(sop(f"s_cmp_eq_u32 {s_kptr}, {s_kend}", rd=[s_kptr, s_kend]))
        r[-1].glue = True
        r.append(sop(f"s_cselect_b32 {s_kptr}, {s_knext}, {s_kptr}", rd=[s_kptr, s_knext], wr=[s_kptr]))
    return r

def dma_V(par, c, wrap=False):
    r = []
    if c == 0:
        r.append(sop(f"s_add_u32 {s_vptr}, {s_vptr}, 32768", rd=[s_vptr], wr=[s_vptr]))
        if wrap:
            r.append(sop(f"s_cmp_eq_u32 {s_vptr}, {s_vend}", rd=[s_vptr, s_vend]))
            r[-1].glue = True
            r.append(sop(f"s_cselect_b32 {s_vptr}, {s_knext}, {s_vptr}", rd=[s_vptr, s_knext], wr=[s_vptr]))
        r.append(sop(f"s_add_u32 {s_vptr2}, {s_vptr}, 4096", rd=[s_vptr], wr=[s_vptr2]))
    for e in range(2):
        r.append(set_m0(s_mK, vslot_addr(par, c) + e * 1024 - c * 128))
        r.append(dma(voV, sV, s_vptr2 if e else s_vptr, c * 128, ("V", par, c), opt.kvmod))
    return r

def dma_Q(base, soff, unit):
    r = []
    for hi in range(2):
        for dh in range(2):
            r.append(set_m0(base, hi * 4096 + dh * 768))
            for Rl in range(2):
                r.append(dma(voQb if hi else voQa, sQ, soff, Rl * 2048 + dh * 256, unit, opt.qmod))
    return r

def q_reads(b, base_sgpr, unit, tmp):
    r = [valu("v_add_u32", tmp, base_sgpr, kaddr)]
    for s in range(8):
        i = ds_read("ds_read_b128", Q(b, s), tmp, s * 256, tag=("q", b, s)); i.lds_rd = unit; i.private = True
        r.append(i)
    return r

def waitcnt(vm=None, lgkm=None):
    t = "s_waitcnt" + (f" vmcnt({vm})" if vm is not None else "") + (f" lgkmcnt({lgkm})" if lgkm is not None else "")
    i = raw(t, "wait"); i.vmw = vm; i.lgw = lgkm
    return i
def barrier():
    i = raw("s_barrier", "misc"); i.bar = True; return i

class Seg:
    def __init__(self, nb, name):
        self.nb = nb; self.name = name
        self.mf = []; self.nodes = []
        self.pairs = []
        self.blk = {}
        self.fixed = {}
        self.done = {}

    def qblock(self, name, slot, dst, czero, fbase):
        nb = self.nb; st = len(self.mf)
        for sp in range(4):
            p0 = len(self.mf)
            tags = [("f", self.name, name, 2 * sp + e) for e in range(2)]
            for b in range(nb):
                for e in range(2):
                    s = 2 * sp + e
                    d = Sx(dst, b)
                    c = d if s else (0 if czero else Ct(b))
                    self.mf.append(mfma(d, F(fbase + s), Q(b, s), c, need=tags))
                    self.done[(name, b)] = len(self.mf) - 1
            rd = []
            for e in range(2):
                s = 2 * sp + e
                i = ds_read("ds_read_b128", F(fbase + s), kaddr, kslot_addr(slot) + s * 256, tag=tags[e]); i.lds_rd = ("K", slot)
                rd.append(i)
            self.pairs.append((p0, len(self.mf) - 1, rd))
        self.blk[name] = (st, len(self.mf))

    def pblock(self, name, par, c, x0, x1, czero, fbase):
        nb = self.nb; st = len(self.mf)
        for dbl in range(4):
            db = 4 * c + dbl
            p0 = len(self.mf)
            tags = [("f", self.name, name, 2 * dbl + e) for e in range(2)]
            for b in range(nb):
                for ks in range(2):
                    o = O(b, db)
                    cc = 0 if (czero and ks == 0) else o
                    self.mf.append(mfma(o, F(fbase + 2 * dbl + ks), Sx(x1 if ks else x0, b), cc, need=tags))
            rd = []
            for ks in range(2):
                f = F(fbase + 2 * dbl + ks)
                va = vaddr1 if (dbl & 1) else vaddr0
                off = vslot_addr(par, c) - VB + ks * 4096 + (dbl >> 1) * 512
                for j4 in range(2):
                    i = ds_read("ds_read_b64_tr_b16", f.sub(2 * j4, 2), va, off + j4 * 2048, tag=tags[ks] if j4 else ("x",))
                    i.lds_rd = ("V", par, c)
                    rd.append(i)
            self.pairs.append((p0, len(self.mf) - 1, rd))
        self.blk[name] = (st, len(self.mf))

    def unit(self, src, even_set, odd, blocks, e_of, dl_crit, dl_add, lo, hi, add_lo=None, add_hi=None, pre=None, after=None):
        crit = []; adds = []; res = {}
        for b in blocks:
            x = Sx(src, b); ev = Sx(even_set, b)
            ms = []
            for i in range(4):
                deps = [(pre[b][i], 0)] if pre else []
                ms.append(Node(valu("v_mul_f32", x[i], s_c, x[i]), e=e_of(b), dl=dl_crit(b), deps=deps))
            ex = [Node(valu("v_exp_f32", x[i], x[i]), e=e_of(b), dl=dl_crit(b), deps=[(ms[i], 0)]) for i in range(4)]
            ad = []
            for i in range(4):
                deps = [(ex[i], 1)] + ([(ad[-1], 0)] if ad else [])
                ad.append(Node(valu("v_add_f32", lsum(b), lsum(b), x[i]), e=e_of(b), dl=(dl_add if odd else dl_crit(b)), deps=deps))
            aft = [(n, 0) for n in (after or {}).get(b, [])]
            if odd:
                c0 = Node(valu("v_cvt_pk_bf16_f32", ev[2], x[0], x[1]), e=e_of(b), dl=dl_crit(b), deps=[(ex[0], 1), (ex[1], 1)] + aft)
                c1 = Node(valu("v_cvt_pk_bf16_f32", ev[3], x[2], x[3]), e=e_of(b), dl=dl_crit(b), deps=[(ex[2], 1), (ex[3], 1)] + aft)
                crit += [ms[0], ms[1], ex[0], ex[1], ms[2], ms[3], ex[2], ex[3], c0, c1]
                adds += ad
            else:
                c0 = Node(valu("v_cvt_pk_bf16_f32", x[0], x[0], x[1]), e=e_of(b), dl=dl_crit(b), deps=[(ex[0], 1), (ex[1], 1), (ad[0], 0)])
                c1 = Node(valu("v_cvt_pk_bf16_f32", x[1], x[2], x[3]), e=e_of(b), dl=dl_crit(b), deps=[(ex[2], 1), (ex[3], 1), (ad[1], 0), (c0, 0)])
                crit += [ms[0], ms[1], ex[0], ex[1], ms[2], ms[3], ex[2], ex[3], ad[0], ad[1], ad[2], ad[3], c0, c1]
            res[b] = [c0, c1] + ad
        spread(crit, lo, hi)
        if adds: spread(adds, add_lo if add_lo is not None else lo, add_hi if add_hi is not None else hi)
        self.nodes += crit + adds
        return res

    def chain(self, instrs, lo, hi, e=None, dl=None, first_dep=None):
        prev = first_dep; out = []
        for i in instrs:
            gapd = 0
            if prev is not None:
                pk = prev.ins.kind
                gapd = 1
                if pk == "ds" and i.kind == "ds": gapd = 0
            n = Node(i, e=lo if e is None else e, dl=(10**9 if dl is None else dl), deps=[(prev, gapd)] if prev else [])
            out.append(n); prev = n
        k = len(out)
        for j, n in enumerate(out): n.ideal = lo + (hi - lo) * j / max(k, 1)
        self.nodes += out
        return out

    def reads(self, nxt_pairs, skip_first=3, barrier_before=()):
        pairs = self.pairs; ext = [p[2] for p in pairs] + list(nxt_pairs)
        prev = None
        plen = 2 * self.nb
        for k in range(skip_first, len(ext)):
            j = k - 4
            e = pairs[j][1] if j >= 0 else 0
            if k in barrier_before:
                g = e - 1 if j >= 0 else 0
                self.fixed[g] = barrier_before[k]
                self.bar_gap = getattr(self, "bar_gap", {}); self.bar_gap[k] = g
                e = g + 1
            dl = e + plen - 2
            if (k + 1) in barrier_before: dl = e + 1
            for i in ext[k]:
                n = Node(i, e=e, dl=min(dl, len(self.mf) - 1), ideal=e - 2, deps=[(prev, 0)] if prev else [])
                self.nodes.append(n); prev = n

    def build(self, nxt_first=None):
        n = len(self.mf)
        ft = set(); seen = set()
        for g, m in enumerate(self.mf):
            key = tuple(m.need)
            if key not in seen:
                seen.add(key)
                if g > 0: ft.add(g - 1)
        ft.add(n - 1)
        blocked = {}
        for g in self.fixed: ft.add(g); blocked[g] = 8
        gaps, over = schedule2(self.mf, self.nodes, free_taken=ft, blocked=blocked)
        for g, ins in self.fixed.items():
            gaps[g][1][0:0] = ins
        self.over = over
        return gaps

def sets_for(par):
    return (0, 1, 2, 3) if par == 0 else (3, 2, 1, 0)

def first_pairs_of_iter(nb, J, name):
    s = Seg(nb, name); par = J & 1
    X0, X1, A_, B_ = sets_for(par)
    s.qblock("t0", 4 * ((J + 1) & 1), A_, False, 0)
    return [p[2] for p in s.pairs[:3]]

SPLIT = {4: 2, 3: 1}

def make_iter(nb, J, kind, name, nxt_name):
    par = J & 1
    X0, X1, A_, B_ = sets_for(par)
    kb = 4 * ((J + 1) & 1)
    s = Seg(nb, name)
    cz = kind == "first"
    last = kind == "last"
    s.qblock("t0", kb + 0, A_, False, 0)
    if not last: s.qblock("t1", kb + 1, B_, False, 0)
    s.pblock("t2", par, 0, X0, X1, cz, 0)
    if not last: s.qblock("t3", kb + 2, A_, False, 0)
    s.pblock("t4", par, 1, X0, X1, cz, 0)
    s.pblock("t5", par, 2, X0, X1, cz, 0)
    if not last: s.qblock("t6", kb + 3, A_, False, 0)
    s.pblock("t7", par, 3, X0, X1, cz, 0)
    n = len(s.mf); B = s.blk
    LAT = 4
    rest = list(range(SPLIT[nb], nb))
    u2 = s.unit(X1, X1, False, rest, lambda b: 0, lambda b: B["t0"][1] + 2, None, 0, B["t0"][1] - 4)
    p0s = B["t2"][0]
    if not last:
        s.unit(A_, X1, True, range(nb), lambda b: s.done[("t0", b)] + LAT, lambda b: p0s + 2 * b - 1, B["t3"][0] - 2,
               B["t0"][1] - 2, p0s - 1, add_lo=p0s, add_hi=B["t3"][0] - 4, after=u2)
        u0 = s.unit(B_, B_, False, range(nb), lambda b: s.done[("t1", b)] + LAT, lambda b: B["t4"][0] + 4, None,
                    B["t2"][0] + 2, B["t4"][0] - 2)
        s.unit(A_, B_, True, range(nb), lambda b: s.done[("t3", b)] + LAT, lambda b: B["t6"][0] - 2, B["t6"][0] - 2,
               B["t4"][0], B["t6"][0] - 4, add_lo=B["t4"][0] + 4, add_hi=B["t6"][0] - 3, after=u0)
        s.unit(A_, A_, False, range(SPLIT[nb]), lambda b: s.done[("t6", b)] + LAT, lambda b: n - 1, None,
               B["t7"][0], n - 3)
    else:
        s.unit(A_, X1, True, range(nb), lambda b: min(s.done[("t0", b)] + LAT, p0s - 1), lambda b: p0s + 2 * b - 1, B["t4"][0],
               B["t0"][1] - 2, p0s - 1, add_lo=p0s, add_hi=B["t4"][0] - 2, after=u2)
    npair = len(s.pairs)
    if not last:
        nxt = first_pairs_of_iter(nb, J + 1, nxt_name)
        kB1 = 16
        s.reads(nxt, barrier_before={kB1: [waitcnt(16, 0), barrier()], npair: [waitcnt(16, 0), barrier()]})
        g1 = s.bar_gap[kB1]; g2 = s.bar_gap[npair]
        npar = (J + 1) & 1
        g0 = []
        if kind == "first":
            kb1 = 4 * ((1 + 1) & 1)
            g0 += dma_K(kb1 + 0) + dma_K(kb1 + 1) + dma_K(kb1 + 2) + dma_V(1, 0)
        g0 += dma_V(npar, 1) + dma_V(npar, 2) + dma_V(npar, 3) + dma_K(4 * ((J + 2) & 1) + 3)
        if kind == "first":
            c0 = s.chain(g0, 0, g1 - 6, dl=g1 - 1)
        else:
            c0 = s.chain(g0, 0, B["t0"][1] + 2, dl=g1 - 1)
        wrapK = (J & 1) == 1; wrapV = (J & 1) == 0
        g1l = dma_K(kb + 0, wrap=wrapK) + dma_K(kb + 1) + dma_K(kb + 2) + dma_V(par, 0, wrap=wrapV)
        s.chain(g1l, B["t5"][0] + 8, B["t7"][0], e=g1 + 1, dl=g2 - 1, first_dep=c0[-1])
    else:
        kB1 = 8
        if opt.nextq:
            s.reads([[]], barrier_before={kB1: [waitcnt(16, 0), barrier()], npair: [waitcnt(24, 0), barrier()]})
            g1 = s.bar_gap[kB1]; g2 = s.bar_gap[npair]
            c1 = s.chain(dma_Q(s_mR2, s_qn[1], ("R2",)), 0, B["t0"][1] - 6, dl=g1 - 1)
            qfree = B["t0"][1] + 1
            r0 = s.chain(q_reads(0, s_mX, ("X",), vt0), g1 + 2, g1 + 12, e=max(qfree, g1 + 1))
            w0 = mark_wait_lds(("q", 0, 7))
            c2 = s.chain([w0] + dma_Q(s_mX, s_qn[2], ("X",)), g1 + 18, g1 + 34, first_dep=r0[-1])
            c2[0].deps = [(r0[-1], 5), (c1[-1], 1)]
            t5s = B["t5"][0]
            r1 = s.chain([waitcnt(8)] + q_reads(1, s_mR2, ("R2",), vt1), t5s, t5s + 10, first_dep=c2[-1])
            w1 = mark_wait_lds(("q", 1, 7))
            c3 = s.chain([w1] + dma_Q(s_mR2, s_qn[3], ("R2",)), t5s + 16, g2 - 1, dl=g2 - 1, first_dep=r1[-1])
            c3[0].deps = [(r1[-1], 5)]
    return s

def mark_wait_lds(tag):
    i = raw("s_nop 0", "nop"); i.need = [tag]; i.is_marker = True
    return i

def make_pro(nb, name, nxt_name):
    X0, X1, A_, B_ = sets_for(1)
    s = Seg(nb, name)
    s.qblock("t1", 1, B_, True, 0)
    s.qblock("t3", 2, X0, True, 0)
    s.qblock("t6", 3, A_, False, 0)
    n = len(s.mf); B = s.blk; LAT = 4
    fix0 = {}; fix1 = {}
    allmx = []
    tmp = SET(X1)
    for b in range(nb):
        x = Sx(B_, b); ta, tb = tmp[2 * b], tmp[2 * b + 1]
        e = s.done[("t1", b)] + LAT
        seq = [valu("v_max3_f32", ta, x[0], x[1], x[2]), valu("v_max_f32", ta, ta, x[3]), valu("v_mov_b32", tb, ta),
               perm("v_permlane16_swap_b32", ta, tb), valu("v_max_f32", ta, ta, tb), valu("v_mov_b32", tb, ta),
               perm("v_permlane32_swap_b32", ta, tb), valu("v_min_f32", Ct(b)[0], Neg(ta), Neg(tb)),
               valu("v_mov_b32", Ct(b)[1], Ct(b)[0]), valu("v_mov_b32", Ct(b)[2], Ct(b)[0]), valu("v_mov_b32", Ct(b)[3], Ct(b)[0]),
               valu("v_mov_b32", lsum(b), 0)]
        prev = None; nds = []
        for i in seq:
            d = 0
            if prev is not None and i.op.startswith("v_permlane"): d = 2
            nd = Node(i, e=e, dl=B["t6"][0] - 2 + 2 * b, deps=[(prev, d)] if prev else [])
            nds.append(nd); prev = nd
        for k, nd in enumerate(nds): nd.ideal = e + k * 0.7
        allmx += nds
        fix0[b] = [Node(valu("v_add_f32", x[i], x[i], Ct(b)[0]), e=e, deps=[(nds[7], 0), (nds[11], 0)], ideal=e + 9 + i * 0.5) for i in range(4)]
        y = Sx(X0, b); e1 = s.done[("t3", b)] + LAT
        fix1[b] = [Node(valu("v_add_f32", y[i], y[i], Ct(b)[0]), e=e1, deps=[(nds[7], 0), (nds[11], 0)], ideal=e1 + i * 0.5) for i in range(4)]
        allmx += fix0[b] + fix1[b]
    s.nodes += allmx
    u0 = s.unit(B_, B_, False, range(nb), lambda b: s.done[("t1", b)] + LAT, lambda b: n - 1, None, B["t3"][0] + 10, B["t6"][0] + 8, pre=fix0)
    s.unit(X0, B_, True, range(nb), lambda b: s.done[("t3", b)] + LAT, lambda b: n - 1, n - 1, B["t6"][0] + 8, n - 1, pre=fix1, after=u0)
    s.unit(A_, A_, False, range(SPLIT[nb]), lambda b: min(s.done[("t6", b)] + LAT, n - 1), lambda b: n - 1, None, n - 1, n - 1)
    nxt = first_pairs_of_iter(nb, 0, nxt_name)
    npair = len(s.pairs)
    s.reads(nxt, barrier_before={npair: [waitcnt(16, 0), barrier()]})
    g2 = s.bar_gap[npair]
    s.chain(dma_V(0, 1) + dma_V(0, 2) + dma_V(0, 3) + dma_K(7), 0, B["t1"][1], dl=g2 - 1)
    head = [i for p in s.pairs[:3] for i in p[2]]
    return s, head

def perm(op, a, b):
    i = valu(op, a, b, extra_rd=[a], extra_wr=[b]); i.cost = 8
    return i

def acc_read(d, a):
    i = Ins(f"v_accvgpr_read_b32 {d}, {a}", "acc", rd=[a], wr=[d]); return i

def make_epi(nb):
    r = []
    T = V(32, 64)
    rl = [T[0], T[1], T[2], T[3]]
    wa = [T[4 + i] for i in range(4)]
    sa = [T[8 + i] for i in range(4)]
    ra = T[12]
    lane = T[13]; q = T[14]; g = T[15]
    for b in range(nb):
        r += [valu("v_mov_b32", rl[b], lsum(b))]
    for b in range(nb):
        r += [perm("v_permlane16_swap_b32", lsum(b), rl[b])]
    for b in range(nb):
        r += [valu("v_add_f32", lsum(b), lsum(b), rl[b])]
    for b in range(nb):
        r += [valu("v_mov_b32", rl[b], lsum(b))]
    r += [valu("v_mbcnt_lo_u32_b32", lane, -1, 0), valu("v_mbcnt_hi_u32_b32", lane, -1, lane)]
    for b in range(nb):
        r += [perm("v_permlane32_swap_b32", lsum(b), rl[b])]
    for b in range(nb):
        r += [valu("v_add_f32", lsum(b), lsum(b), rl[b])]
    for b in range(nb):
        r += [valu("v_rcp_f32", rl[b], lsum(b))]
    for b in range(nb):
        c = valu("v_cmp_ngt_f32", "vcc", hex(L_LIMIT), lsum(b)); c.wr.add(('s', 'vcc')); r.append(c)
        r += [sop(f"s_cmp_lg_u64 vcc, 0"), sop(f"s_cselect_b32 {s_t0}, {1 << b}, 0"),
              sop(f"s_lshl_b32 {s_t1}, {s_pass}, 2"), sop(f"s_lshl_b32 {s_t0}, {s_t0}, {s_t1}"),
              sop(f"s_or_b32 {s_flags}, {s_flags}, {s_t0}")]
    r += [valu("v_and_b32", q, 15, lane), valu("v_lshrrev_b32", g, 4, lane)]
    r += [valu("v_lshrrev_b32", vt0, 1, g), valu("v_and_b32", vt1, 7, q)]
    for k in range(4):
        r += [valu("v_or_b32", wa[k], 2 * k, vt0), valu("v_xor_b32", wa[k], wa[k], vt1), valu("v_lshlrev_b32", wa[k], 4, wa[k])]
    r += [valu("v_and_b32", vt0, 1, g), valu("v_lshlrev_b32", vt0, 3, vt0), valu("v_lshl_add_u32", vt0, q, 9, vt0),
          valu("v_add_u32", vt0, s_mOS, vt0)]
    for k in range(4): r += [valu("v_add_u32", wa[k], wa[k], vt0)]
    r += [valu("v_lshl_add_u32", ra, lane, 4, s_mOS)]
    r += [valu("v_lshrrev_b32", vt0, 5, lane), valu("v_and_b32", vt1, 31, lane)]
    for k in range(4):
        r += [valu("v_or_b32", q, 2 * k, vt0), valu("v_xor_b32", sa[k], vt1, q), valu("v_lshlrev_b32", sa[k], 4, sa[k]),
              valu("v_lshl_add_u32", sa[k], q, 9, sa[k])]
    nst = 0
    TMP = lambda k: T.sub(16 + 4 * (k % 4), 4)
    RD = lambda k: T.sub(32 + 4 * (k % 8), 4)
    for b in range(nb):
        for db in range(16):
            o = O(b, db); t = TMP(db)
            if o.k == 'a':
                r += [acc_read(t[i], o[i]) for i in range(4)]; src = t
            else: src = o
            if opt.pkmul:
                for h in range(2):
                    rlp = V(rl[b].n & ~1, 2)
                    sel = rl[b].n & 1
                    r.append(valu("v_pk_mul_f32", t.sub(2 * h, 2), src.sub(2 * h, 2), rlp, mods=f"op_sel:[0,{sel}] op_sel_hi:[1,{sel}]"))
            else:
                r += [valu("v_mul_f32", t[i], src[i], rl[b]) for i in range(4)]
            r += [valu("v_cvt_pk_bf16_f32", t[0], t[0], t[1]), valu("v_cvt_pk_bf16_f32", t[1], t[2], t[3])]
            w = ds_write("ds_write_b64", wa[db & 3], t.sub(0, 2), (db >> 2) * 128, tag=("w", b, db)); w.lds_pw = ("OS",)
            if db == 0 and b > 0: w.need = [("o", b - 1, 7)]
            r.append(w)
            if b > 0 and db % 2 == 1:
                k = db // 2
                r.append(store(RD(k), sa[k & 3], b - 1, k)); nst += 1
        for k in range(8):
            i = ds_read("ds_read_b128", RD(k), ra, k * 1024, tag=("o", b, k)); i.lds_rd = ("OS",); i.private = True
            if k == 0: i.need = [("w", b, 15)]
            r.append(i)
        r.append(sop(f"s_add_u32 {s_t1}, {s_ocur}, {b * 8192}", wr=[s_t1]))
        r.append(sop(f"s_add_u32 {s_t2}, {s_ocur}, {b * 8192 + 4096}", wr=[s_t2]))
        if opt.nextq and b == 0:
            r += [waitcnt(8 + nst)] + q_reads(2, s_mX, ("X",), vt0)
        if opt.nextq and b == 1:
            r += [mark_wait_lds(("q", 2, 7))] + dma_Q(s_mX, s_qn[0], ("X",))
            r += [waitcnt(8 + nst)] + q_reads(3, s_mR2, ("R2",), vt0)
    for k in range(8):
        st = store(RD(k), sa[k & 3], nb - 1, k); st.need = [("o", nb - 1, k)]
        r.append(st)
    return r

def store(data, vo, b, k):
    so = s_t2 if k >= 4 else s_t1
    i = Ins(f"buffer_store_dwordx4 {data}, {vo}, {sO}, {so} offen {opt.omod}".rstrip(), "vmem", rd=[data, vo, sO, so])
    i.wide_store = True; i.data = data.set(); i.vm = True
    return i

def lin(seq, pre=()):
    out = []; q = list(pre)
    for i in seq:
        if i.need:
            idx = -1
            for t in i.need:
                if t in q: idx = max(idx, len(q) - 1 - q[::-1].index(t))
            if idx >= 0:
                n = min(len(q) - 1 - idx, 15)
                out.append(waitcnt(None, n)); q = q[idx + 1:]
        if getattr(i, "lgw", None) is not None: q = q[len(q) - i.lgw:] if i.lgw else []
        if getattr(i, "is_marker", False): continue
        if i.kind == "ds": q.append(i.tag)
        out.append(i)
    return out, q

def flat(gaps, pre, nxt_need):
    out = []; q = list(pre)
    def wf(need):
        nonlocal q
        idx = -1
        for t in need:
            if t in q: idx = max(idx, len(q) - 1 - q[::-1].index(t))
        if idx < 0: return
        n = min(len(q) - 1 - idx, 15)
        out.append(waitcnt(None, n)); q = q[idx + 1:]
    for g, (m, sc, oth) in enumerate(gaps):
        wf(m.need)
        out.append(m)
        has_l0 = any(getattr(i, "lgw", None) == 0 for i in sc)
        if not has_l0:
            wf(gaps[g + 1][0].need if g + 1 < len(gaps) else nxt_need)
        for i in sc + oth:
            if i.need: wf(i.need)
            if getattr(i, "lgw", None) == 0: q = []
            if getattr(i, "is_marker", False): continue
            if i.kind == "ds": q.append(i.tag)
            out.append(i)
    return out, q

def label(n): return Ins(n + ":", "label", states=0, cost=0)

def stamp(k):
    if not opt.diag: return []
    return [raw(f"s_memrealtime {s_ts}"), raw("s_waitcnt lgkmcnt(0)", "wait0"), raw(f"s_mov_b32 m0, {s_tsp}"), raw("s_nop 1"),
            raw(f"v_writelane_b32 v0, {s_ts.sub(0)}, m0"), raw(f"s_add_u32 {s_tsp}, {s_tsp}, 1")]

def retag(q, old, new):
    return [tuple(new if x == old else x for x in t) if len(t) > 1 else t for t in q]

def variant(nb):
    P = {}
    pro, head = make_pro(nb, "pro", "i0")
    i0 = make_iter(nb, 0, "first", "i0", "i1")
    i1 = make_iter(nb, 1, "mid", "i1", "i2")
    i2 = make_iter(nb, 2, "mid", "i2", "i1")
    i7 = make_iter(nb, 7, "last", "i1", None)
    G = {k: s.build() for k, s in (("pro", pro), ("i0", i0), ("i1", i1), ("i2", i2), ("i7", i7))}
    print(f"nb={nb} overflow cycles:", {k: s.over for k, s in (("pro", pro), ("i0", i0), ("i1", i1), ("i2", i2), ("i7", i7))}, file=sys.stderr)
    h, q = lin(head)
    a, q = flat(G["pro"], q, G["i0"][0][0].need); P["pro"] = h + a
    P["i0"], q0 = flat(G["i0"], q, G["i1"][0][0].need)
    P["i1"], q = flat(G["i1"], q0, G["i2"][0][0].need)
    P["i2"], q2 = flat(G["i2"], q, G["i1"][0][0].need)
    assert q2 == q0, (q0, q2)
    P["i7"], q = flat(G["i7"], q2, [])
    P["epi"], q = lin(make_epi(nb), q)
    return P

def check_trace(trace):
    vm = []
    lg = []
    state = {}
    epoch = 0
    ALIAS = {("R2",): [("V", 0, 1), ("V", 0, 2), ("V", 0, 3), ("K", 7)], ("OS",): [("V", 1, c) for c in range(4)]}
    def phys(u): return ALIAS.get(u, [u])
    wr_land = {}; wr_pend = {}; rd_done = {}; rd_pend = {}; owner = {}
    errs = []
    for k, i in enumerate(trace):
        if getattr(i, "vmw", None) is not None:
            while len(vm) > i.vmw:
                o = vm.pop(0)
                u = getattr(o, "dma_wr", None)
                if u: wr_pend[u] -= 1; wr_land[u] = epoch
        if getattr(i, "lgw", None) is not None or i.kind == "wait0":
            n = 0 if i.kind == "wait0" else i.lgw
            while len(lg) > n:
                o = lg.pop(0)
                u = getattr(o, "lds_rd", None) or getattr(o, "lds_pw", None)
                if u: rd_pend[u] -= 1; rd_done[u] = epoch
        if getattr(i, "bar", False): epoch += 1
        u = getattr(i, "lds_rd", None)
        if u:
            if u != ("OS",):
                if wr_pend.get(u, 0) > 0: errs.append((k, "read of unit with pending DMA", u, i.text))
                elif not getattr(i, "private", False) and wr_land.get(u, 10**9) >= epoch: errs.append((k, "read without barrier after landing", u, i.text))
            for p in phys(u):
                if owner.get(p) != u: errs.append((k, "read of unit owned by", owner.get(p), u, i.text))
        w = getattr(i, "dma_wr", None) or getattr(i, "lds_pw", None)
        if w:
            for p in phys(w):
                o = owner.get(p)
                if o is not None:
                    priv = (o == w and w in (("X",), ("R2",), ("OS",)))
                    if rd_pend.get(o, 0) > 0 and not (getattr(i, "lds_pw", None) and o == w and not any(getattr(x, "lds_rd", None) == o for x in lg)):
                        errs.append((k, "write over unit with reads in flight", o, w, i.text))
                    if not priv and rd_done.get(o, -1) >= epoch: errs.append((k, "write without barrier after reads", o, w, i.text))
                    if o != w and wr_pend.get(o, 0) > 0: errs.append((k, "write over pending dma", o, w))
                    if o != w and wr_land.get(o, -1) >= epoch: errs.append((k, "write over unit landed w/o barrier", o, w))
                owner[p] = w
        if i.kind == "ds":
            lg.append(i)
            u = getattr(i, "lds_rd", None) or getattr(i, "lds_pw", None)
            if u: rd_pend[u] = rd_pend.get(u, 0) + 1
        if getattr(i, "vm", False):
            vm.append(i)
            u = getattr(i, "dma_wr", None)
            if u: wr_pend[u] = wr_pend.get(u, 0) + 1
            assert len(vm) <= 63, "vmcnt overflow"
    return errs

def schedule_table(mode):
    tab = {}
    if mode == "simple":
        for wg in range(256):
            x = wg & 7; idx = wg >> 3
            head = x * 16 + (idx >> 1); base = 41 * (idx & 1)
            tab[wg] = [(head, base, 12), (head, base + 12, 16), (head, base + 28, 13)]
    elif mode == "share":
        for x in range(8):
            rounds = [[], [], []]
            def add(r, h, start, sizes):
                for sz in sizes:
                    rounds[r].append((x * 16 + h, start, sz)); start += sz
                return start
            for h in range(10):
                st = add(0, h, 0, [12, 12, 12]); add(1 if h < 6 else 2, h, st, [15, 15, 16])
            st = add(0, 10, 0, [12, 12]); st = add(1, 10, st, [15, 14]); add(2, 10, st, [15, 14])
            for h in range(11, 16):
                add(1 if h < 13 else 2, h, 0, [14, 14, 14, 14, 13, 13])
            assert all(len(r) == 32 for r in rounds), [len(r) for r in rounds]
            for idx in range(32):
                tab[idx * 8 + x] = [rounds[0][idx], rounds[1][idx], rounds[2][idx]]
    cov = {}
    for wg, l in tab.items():
        for h, st, n in l:
            assert 12 <= n <= 16
            for b in range(st, st + n):
                assert (h, b) not in cov; cov[(h, b)] = wg
    assert len(cov) == 128 * 82
    return tab

def setup_code():
    L = []; A = L.append
    A("s_cmp_ge_u32 s2, 256")
    A("s_cbranch_scc1 L_exit")
    A("s_load_dwordx4 s[72:75], s[0:1], 0")
    A("s_load_dwordx4 s[76:79], s[0:1], 16")
    if opt.diag: A("s_load_dwordx2 s[64:65], s[0:1], 40")
    A("s_getpc_b64 s[4:5]")
    A("L_pc:")
    A("s_lshl_b32 s3, s2, 6")
    A("s_add_u32 s3, s3, L_table-L_pc")
    A("s_add_u32 s4, s4, s3")
    A("s_addc_u32 s5, s5, 0")
    A("s_load_dwordx16 s[80:95], s[4:5], 0")
    A(f"v_readfirstlane_b32 {s_wave}, v0")
    A("v_and_b32 v10, 63, v0")
    A(f"s_lshr_b32 {s_wave}, {s_wave}, 6")
    A("v_and_b32 v11, 15, v10")
    A("v_lshrrev_b32 v14, 4, v10")
    A("v_lshrrev_b32 v15, 2, v11\nv_lshlrev_b32 v1, 11, v15\nv_and_b32 v6, 3, v11\nv_lshl_add_u32 v1, v6, 6, v1")
    A("v_lshrrev_b32 v6, 3, v11\nv_lshlrev_b32 v6, 1, v6\nv_xor_b32 v6, v6, v14\nv_lshl_add_u32 v1, v6, 4, v1")
    A("v_lshrrev_b32 v6, 1, v14\nv_lshlrev_b32 v2, 10, v6\nv_and_b32 v7, 1, v14\nv_lshl_add_u32 v6, v7, 2, v15\nv_lshl_add_u32 v2, v6, 6, v2")
    A(f"v_and_b32 v8, 3, v10\nv_lshl_add_u32 v2, v8, 3, v2\nv_lshl_add_u32 v2, v7, 5, v2\nv_add_u32 v2, {VB}, v2\nv_xor_b32 v3, 32, v2")
    A("v_lshlrev_b32 v12, 9, v15\nv_lshl_add_u32 v12, v14, 6, v12\nv_lshl_add_u32 v12, v8, 4, v12\nv_xor_b32 v13, 32, v12\nv_add_u32 v13, 4096, v13")
    A(f"s_lshl_b32 {s_mK}, {s_wave}, 11\ns_lshr_b32 s3, {s_wave}, 1\ns_lshl_b32 s3, s3, 5")
    A(f"v_xor_b32 v4, s3, v12\nv_add_u32 v4, {s_mK}, v4")
    A("v_lshrrev_b32 v6, 2, v10\nv_and_b32 v6, 7, v6\nv_lshlrev_b32 v5, 9, v6\nv_lshrrev_b32 v6, 2, v6\nv_lshlrev_b32 v6, 1, v6\nv_xor_b32 v6, v6, v8")
    A(f"v_lshl_add_u32 v5, v6, 4, v5\nv_lshrrev_b32 v6, 5, v10\nv_lshl_add_u32 v5, v6, 6, v5\ns_lshl_b32 s3, {s_wave}, 13\nv_add_u32 v5, s3, v5")
    A(f"s_add_u32 {s_mX}, s3, {XB}")
    A(f"s_add_u32 {s_mOS}, s3, {vslot_addr(1, 0)}")
    A(f"s_add_u32 {s_mR2}, s3, {vslot_addr(0, 0)}")
    A(f"s_cmp_eq_u32 {s_wave}, 0\ns_cselect_b32 {s_mR2}, {kslot_addr(7)}, {s_mR2}")
    A(f"s_mov_b32 {s_c}, {C_SCALE:#x}\ns_mov_b32 {s_pass}, 0\ns_mov_b32 {s_flags}, 0")
    if opt.diag: A(f"s_mov_b32 {s_tsp}, 0\nv_mov_b32 v0, 0")
    A("s_waitcnt lgkmcnt(0)")
    for srd, p, n in ((sQ, 72, QBYTES), (sK, 74, KBYTES), (sV, 76, KBYTES), (sO, 78, QBYTES)):
        A(f"s_mov_b32 {srd[0]}, s{p}\ns_mov_b32 {srd[1]}, s{p+1}\ns_mov_b32 {srd[2]}, {n}\ns_mov_b32 {srd[3]}, 0x20000")
    for p in range(3):
        A(f"s_sub_u32 s3, s{80+3*p+2}, 12")
        A(f"s_min_u32 s4, s3, {s_wave}")
        A(f"s_mul_i32 s5, {s_wave}, 3\ns_add_u32 s4, s4, s5\ns_lshl_b32 s4, s4, 13")
        A(f"s_add_u32 {s_tab[3*p]}, s{80+3*p}, s4")
        A(f"s_mov_b32 {s_tab[3*p+1]}, s{80+3*p+1}")
        A(f"s_cmp_lt_u32 {s_wave}, s3\ns_cselect_b32 {s_tab[3*p+2]}, 4, 3")
    for p in (3, 4):
        A(f"s_mov_b32 {s_tab[3*p]}, {OOB:#x}\ns_mov_b32 {s_tab[3*p+1]}, {OOB:#x}\ns_mov_b32 {s_tab[3*p+2]}, 0")
    for k in range(9): A(f"s_mov_b32 s{80+k}, {s_tab[k]}")
    return L

def startup():
    r = []
    r += [sop(f"s_mov_b32 {s_kptr}, {s_tab[1]}", wr=[s_kptr]), sop(f"s_sub_u32 {s_vptr}, {s_tab[1]}, 32768", wr=[s_vptr])]
    r += [sop(f"s_add_u32 {s_t0}, {s_tab[0]}, 8192", wr=[s_t0]), sop(f"s_add_u32 {s_t1}, {s_tab[0]}, 16384", wr=[s_t1]),
          sop(f"s_add_u32 {s_t2}, {s_tab[0]}, 24576", wr=[s_t2])]
    r += dma_K(1)
    r += dma_Q(s_mX, s_tab[0], ("X",)) + dma_Q(s_mR2, s_t0, ("R2",)) + dma_Q(s_mOS, s_t1, ("OS",))
    r += dma_K(2) + dma_K(3)
    r += dma_K(4) + dma_K(5) + dma_K(6) + dma_V(0, 0)
    r += [waitcnt(28)] + q_reads(0, s_mX, ("X",), vt0)
    r += [waitcnt(20)] + q_reads(1, s_mR2, ("R2",), vt1)
    r += [waitcnt(12)] + q_reads(2, s_mOS, ("OS",), vt0)
    r += [waitcnt(None, 0)]
    r += [sop(f"s_cmp_lt_u32 {s_tab[2]}, 4"), raw("s_cbranch_scc1 L_noq3")]
    r2 = dma_Q(s_mX, s_t2, ("X",)) + [waitcnt(0)] + q_reads(3, s_mX, ("X",), vt0) + [waitcnt(None, 0)]
    r3 = dma_Q(s_mX, s_tab[3], ("X",)) + [waitcnt(16)]
    return r, r2, r3

def pass_begin():
    r = [sop(f"s_mov_b32 {s_ocur}, {s_tab[0]}"),
         sop(f"s_add_u32 {s_kend}, {s_tab[1]}, 262144"), sop(f"s_mov_b32 {s_vend}, {s_kend}"),
         sop(f"s_mov_b32 {s_knext}, {s_tab[4]}"),
         sop(f"s_add_u32 {s_qn[1]}, {s_tab[3]}, 8192"), sop(f"s_add_u32 {s_qn[2]}, {s_tab[3]}, 16384"),
         sop(f"s_add_u32 {s_qn[3]}, {s_tab[3]}, 24576"),
         sop(f"s_cmp_lt_u32 {s_tab[5]}, 4"), sop(f"s_cselect_b32 {s_qn[3]}, {OOB:#x}, {s_qn[3]}"),
         sop(f"s_mov_b32 {s_qn[0]}, {s_tab[6]}"),
         sop(f"s_mov_b32 {s_nbn}, {s_tab[2]}")]
    for k in range(12): r.append(sop(f"s_mov_b32 {s_tab[k]}, {s_tab[k+3]}"))
    r += [sop(f"s_mov_b32 {s_cnt}, 3")]
    return r

def main():
    ap = argparse.ArgumentParser()
    ap.add_argument("-o", default="standalone__mha_softmax__near_ridge.s")
    ap.add_argument("--diag", type=int, default=0)
    ap.add_argument("--kvmod", default="")
    ap.add_argument("--qmod", default="")
    ap.add_argument("--omod", default="")
    ap.add_argument("--sched", default="share")
    ap.add_argument("--pkmul", type=int, default=1)
    a = ap.parse_args()
    opt.__dict__.update(vars(a)); opt.nextq = 1
    L = []; A = L.append
    hdr = open("standalone__mha_softmax__near_ridge.s.ref").read().split("\n")
    for l in hdr:
        if l.startswith("; @launch"): break
        A(l)
    A(f"; @launch grid=(256,1,1) block=(256,1,1) lds={LDS_BYTES}")
    A('.amdgcn_target "amdgcn-amd-amdhsa--gfx950"')
    A(f".text\n.globl {KNAME}\n.p2align 8\n.type {KNAME},@function\n{KNAME}:")
    L += setup_code()
    def emit(seq):
        for i in seq: A(i.text)
    emit(stamp(0))
    s1, s2, s3 = startup()
    s1 = fix_hazards(lin(s1)[0]); s2 = fix_hazards(lin(s2)[0]); s3 = fix_hazards(lin(s3)[0])
    emit(s1); emit(s2); A("L_noq3:"); emit(s3)
    A("L_pass:")
    pb = pass_begin() + [waitcnt(None, 0), barrier()]
    emit(pb)
    emit(stamp(1))
    A(f"s_cmp_eq_u32 {s_nbn}, 3\ns_cbranch_scc1 L_v3")
    VAR = {}
    for nb in (4, 3):
        P = variant(nb)
        loopend = [sop(f"s_sub_u32 {s_cnt}, {s_cnt}, 1"), sop(f"s_cmp_lg_u32 {s_cnt}, 0"), raw(f"s_cbranch_scc1 L_loop{nb}")]
        pro = fix_hazards(P["pro"])
        i0 = fix_hazards(P["i0"], wrap=pro[-14:])
        b1 = fix_hazards(P["i1"], wrap=i0[-14:])
        b2 = fix_hazards(P["i2"], wrap=b1[-14:])
        b1b = fix_hazards(P["i1"], wrap=b2[-14:])
        assert len(b1b) == len(b1) == len(P["i1"]) or [x.text for x in b1b] == [x.text for x in b1], "loop entry hazards differ"
        i7 = fix_hazards(P["i7"], wrap=b2[-14:])
        epi = fix_hazards(P["epi"], wrap=i7[-14:])
        VAR[nb] = dict(pro=pro, i0=i0, b1=b1, b2=b2, le=loopend, i7=i7, epi=epi)
        nn = sum(1 for p in (pro, i0, b1, b2, i7, epi) for x in p if x.kind == "nop")
        print(f"nb={nb}: sizes", {k: len(v) for k, v in VAR[nb].items()}, "nops", nn, file=sys.stderr)
        A(".p2align 6"); A(f"L_v{nb}:")
        emit(pro); emit(i0)
        emit(stamp(2))
        A(".p2align 6") if False else None
        A(f"L_loop{nb}:")
        emit(b1); emit(b2); emit(loopend)
        emit(i7)
        emit(stamp(3))
        emit(epi)
        emit(stamp(4))
        A(f"s_add_u32 {s_pass}, {s_pass}, 1\ns_cmp_lt_u32 {s_pass}, 3\ns_cbranch_scc1 L_pass\ns_branch L_done")
    for seqnb in ((3, 4, 4), (4, 3, 3), (3, 4, 3)):
        tr = s1 + (s2 if seqnb[0] == 4 else []) + s3
        for nb in seqnb:
            v = VAR[nb]
            tr = tr + pb + v["pro"] + v["i0"] + (v["b1"] + v["b2"]) * 3 + v["i7"] + v["epi"]
        errs = check_trace(tr)
        if errs:
            for e in errs[:20]: print("SYNC ERR", seqnb, e, file=sys.stderr)
            raise SystemExit(1)
    A("L_done:")
    if opt.diag:
        A("s_waitcnt vmcnt(0)")
        emit(stamp(5))
        A(f"s_mov_b32 s66, 0x1000000\ns_mov_b32 s67, 0x20000")
        A(f"v_mbcnt_lo_u32_b32 v1, -1, 0\nv_mbcnt_hi_u32_b32 v1, -1, v1\nv_lshlrev_b32 v1, 2, v1")
        A(f"s_lshl_b32 s3, s2, 10\ns_lshl_b32 s4, {s_wave}, 8\ns_add_u32 s3, s3, s4")
        A("buffer_store_dword v0, v1, s[64:67], s3 offen")
    A("L_exit:")
    A("s_endpgm")
    A(".p2align 6\n.type L_table,@object\nL_table:")
    tab = schedule_table(opt.sched)
    for wg in range(256):
        w = []
        for h, st, n in tab[wg]:
            w += [(h * SQ + st * 16) * 512, h * SK * 512, n]
        w += [0] * (16 - len(w))
        A(".long " + ", ".join(str(x) for x in w))
    A(".size L_table, 16384")
    A('.section .rodata,"a"\n.p2align 6')
    A(f".amdhsa_kernel {KNAME}")
    A("  .amdhsa_next_free_vgpr 512\n  .amdhsa_next_free_sgpr 102\n  .amdhsa_accum_offset 256\n  .amdhsa_group_segment_fixed_size 0")
    A("  .amdhsa_kernarg_size 48\n  .amdhsa_user_sgpr_count 2\n  .amdhsa_user_sgpr_kernarg_segment_ptr 1\n  .amdhsa_system_sgpr_workgroup_id_x 1")
    A(".end_amdhsa_kernel")
    open(opt.o, "w").write("\n".join(x for x in L if x is not None) + "\n")

if __name__ == "__main__":
    main()
```

```python
import sys, argparse
from asmlib import *

KNAME = "standalone__mha_softmax__near_ridge_kernel"
NH, SQ, SK, D = 128, 1312, 512, 256
QBYTES = NH * SQ * D * 2
KBYTES = NH * SK * D * 2
OOB = 0x7fff0000
VB = 65536
XB = 131072
LDS_BYTES = 163840
C_SCALE = 0x3db8aa3b
L_LIMIT = 0x4e800000

sQ, sK, sV, sO = S(8, 4), S(12, 4), S(16, 4), S(20, 4)
s_wave = S(24)
s_mK = S(25)
s_mX = S(26)
s_mR2 = S(27)
s_mOS = S(28)
s_kptr, s_kend, s_knext = S(29), S(30), S(31)
s_vptr, s_vptr2, s_vend = S(32), S(33), S(34)
s_c = S(35)
s_cnt = S(36)
s_pass = S(37)
s_flags = S(38)
s_qn = [S(40), S(41), S(42), S(43)]
s_ocur = S(44)
s_t0, s_t1, s_t2 = S(45), S(46), S(47)
s_tab = S(48, 16)
s_dbg = S(64, 4)
s_ts = S(68, 2)
s_nbn = S(70)
s_tsp = S(71)
kaddr, vaddr0, vaddr1, voK, voV = V(1), V(2), V(3), V(4), V(5)
lsum = lambda b: V(6 + b)
vt0, vt1 = V(10), V(11)
voQa, voQb = V(12), V(13)
vt2, vt3 = V(14), V(15)
Ct = lambda b: V(16 + 4 * b, 4)
SET = lambda i: V(32 + 16 * i, 16)
Sx = lambda i, b: SET(i).sub(4 * b, 4)
Q = lambda b, s: AG(b * 32 + s * 4, 4)
NF = 8
F = lambda i: AG(128 + 4 * (i % NF), 4)
def O(b, db):
    t = b * 16 + db
    return V(96 + 4 * t, 4) if t < 40 else AG(160 + 4 * (t - 40), 4)

M0 = ('m0', 0)
def set_m0(base, off):
    i = salu(f"s_add_u32 m0, {base}, {off}", rd=[base]); i.wr = {M0}; return i
def sop(text, rd=(), wr=()): return salu(text, rd=rd, wr=wr)

class Opt: pass
opt = Opt()

def dma(vo, srd, soff, imm, unit, mods):
    i = Ins(f"buffer_load_dwordx4 {vo}, {srd}, {soff} offen offset:{imm} {mods} lds".replace("  ", " "), "vmem", rd=[vo, srd, soff])
    i.rd.add(M0); i.dma_wr = unit; i.vm = True
    return i

def kslot_addr(slot): return slot * 8192
def vslot_addr(par, c): return VB + (par * 4 + c) * 8192

def dma_K(slot, wrap=False):
    r = []
    for dh in range(2):
        r.append(set_m0(s_mK, kslot_addr(slot) + dh * 768))
        r.append(dma(voK, sK, s_kptr, dh * 256, ("K", slot), opt.kvmod))
    r.append(sop(f"s_add_u32 {s_kptr}, {s_kptr}, 8192", rd=[s_kptr], wr=[s_kptr]))
    if wrap:
        r.append(sop(f"s_cmp_eq_u32 {s_kptr}, {s_kend}", rd=[s_kptr, s_kend]))
        r[-1].glue = True
        r.append(sop(f"s_cselect_b32 {s_kptr}, {s_knext}, {s_kptr}", rd=[s_kptr, s_knext], wr=[s_kptr]))
    return r

def dma_V(par, c, wrap=False):
    r = []
    if c == 0:
        r.append(sop(f"s_add_u32 {s_vptr}, {s_vptr}, 32768", rd=[s_vptr], wr=[s_vptr]))
        if wrap:
            r.append(sop(f"s_cmp_eq_u32 {s_vptr}, {s_vend}", rd=[s_vptr, s_vend]))
            r[-1].glue = True
            r.append(sop(f"s_cselect_b32 {s_vptr}, {s_knext}, {s_vptr}", rd=[s_vptr, s_knext], wr=[s_vptr]))
        r.append(sop(f"s_add_u32 {s_vptr2}, {s_vptr}, 4096", rd=[s_vptr], wr=[s_vptr2]))
    for e in range(2):
        r.append(set_m0(s_mK, vslot_addr(par, c) + e * 1024 - c * 128))
        r.append(dma(voV, sV, s_vptr2 if e else s_vptr, c * 128, ("V", par, c), opt.kvmod))
    return r

def dma_Q(base, soff, unit):
    r = []
    for hi in range(2):
        for dh in range(2):
            r.append(set_m0(base, hi * 4096 + dh * 768))
            for Rl in range(2):
                r.append(dma(voQb if hi else voQa, sQ, soff, Rl * 2048 + dh * 256, unit, opt.qmod))
    return r

def q_reads(b, base_sgpr, unit, tmp):
    r = [valu("v_add_u32", tmp, base_sgpr, kaddr)]
    for s in range(8):
        i = ds_read("ds_read_b128", Q(b, s), tmp, s * 256, tag=("q", b, s)); i.lds_rd = unit; i.private = True
        r.append(i)
    return r

def waitcnt(vm=None, lgkm=None):
    t = "s_waitcnt" + (f" vmcnt({vm})" if vm is not None else "") + (f" lgkmcnt({lgkm})" if lgkm is not None else "")
    i = raw(t, "wait"); i.vmw = vm; i.lgw = lgkm
    return i
def barrier():
    i = raw("s_barrier", "misc"); i.bar = True; return i

class Seg:
    def __init__(self, nb, name):
        self.nb = nb; self.name = name
        self.mf = []; self.nodes = []
        self.pairs = []
        self.blk = {}
        self.fixed = {}
        self.done = {}

    def qblock(self, name, slot, dst, czero, fbase):
        nb = self.nb; st = len(self.mf)
        for sp in range(4):
            p0 = len(self.mf)
            tags = [("f", self.name, name, 2 * sp + e) for e in range(2)]
            for b in range(nb):
                for e in range(2):
                    s = 2 * sp + e
                    d = Sx(dst, b)
                    c = d if s else (0 if czero else Ct(b))
                    self.mf.append(mfma(d, F(fbase + s), Q(b, s), c, need=tags))
                    self.done[(name, b)] = len(self.mf) - 1
            rd = []
            for e in range(2):
                s = 2 * sp + e
                i = ds_read("ds_read_b128", F(fbase + s), kaddr, kslot_addr(slot) + s * 256, tag=tags[e]); i.lds_rd = ("K", slot)
                rd.append(i)
            self.pairs.append((p0, len(self.mf) - 1, rd))
        self.blk[name] = (st, len(self.mf))

    def pblock(self, name, par, c, x0, x1, czero, fbase):
        nb = self.nb; st = len(self.mf)
        for dbl in range(4):
            db = 4 * c + dbl
            p0 = len(self.mf)
            tags = [("f", self.name, name, 2 * dbl + e) for e in range(2)]
            for b in range(nb):
                for ks in range(2):
                    o = O(b, db)
                    cc = 0 if (czero and ks == 0) else o
                    self.mf.append(mfma(o, F(fbase + 2 * dbl + ks), Sx(x1 if ks else x0, b), cc, need=tags))
            rd = []
            for ks in range(2):
                f = F(fbase + 2 * dbl + ks)
                va = vaddr1 if (dbl & 1) else vaddr0
                off = vslot_addr(par, c) - VB + ks * 4096 + (dbl >> 1) * 512
                for j4 in range(2):
                    i = ds_read("ds_read_b64_tr_b16", f.sub(2 * j4, 2), va, off + j4 * 2048, tag=tags[ks] if j4 else ("x",))
                    i.lds_rd = ("V", par, c)
                    rd.append(i)
            self.pairs.append((p0, len(self.mf) - 1, rd))
        self.blk[name] = (st, len(self.mf))

    def unit(self, src, even_set, odd, blocks, e_of, dl_crit, dl_add, lo, hi, add_lo=None, add_hi=None, pre=None, after=None):
        crit = []; adds = []; res = {}
        for b in blocks:
            x = Sx(src, b); ev = Sx(even_set, b)
            ms = []
            for i in range(4):
                deps = [(pre[b][i], 0)] if pre else []
                ms.append(Node(valu("v_mul_f32", x[i], s_c, x[i]), e=e_of(b), dl=dl_crit(b), deps=deps))
            ex = [Node(valu("v_exp_f32", x[i], x[i]), e=e_of(b), dl=dl_crit(b), deps=[(ms[i], 0)]) for i in range(4)]
            ad = []
            for i in range(4):
                deps = [(ex[i], 1)] + ([(ad[-1], 0)] if ad else [])
                ad.append(Node(valu("v_add_f32", lsum(b), lsum(b), x[i]), e=e_of(b), dl=(dl_add if odd else dl_crit(b)), deps=deps))
            aft = [(n, 0) for n in (after or {}).get(b, [])]
            if odd:
                c0 = Node(valu("v_cvt_pk_bf16_f32", ev[2], x[0], x[1]), e=e_of(b), dl=dl_crit(b), deps=[(ex[0], 1), (ex[1], 1)] + aft)
                c1 = Node(valu("v_cvt_pk_bf16_f32", ev[3], x[2], x[3]), e=e_of(b), dl=dl_crit(b), deps=[(ex[2], 1), (ex[3], 1)] + aft)
                crit += [ms[0], ms[1], ex[0], ex[1], ms[2], ms[3], ex[2], ex[3], c0, c1]
                adds += ad
            else:
                c0 = Node(valu("v_cvt_pk_bf16_f32", x[0], x[0], x[1]), e=e_of(b), dl=dl_crit(b), deps=[(ex[0], 1), (ex[1], 1), (ad[0], 0)])
                c1 = Node(valu("v_cvt_pk_bf16_f32", x[1], x[2], x[3]), e=e_of(b), dl=dl_crit(b), deps=[(ex[2], 1), (ex[3], 1), (ad[1], 0), (c0, 0)])
                crit += [ms[0], ms[1], ex[0], ex[1], ms[2], ms[3], ex[2], ex[3], ad[0], ad[1], ad[2], ad[3], c0, c1]
            res[b] = [c0, c1] + ad
        spread(crit, lo, hi)
        if adds: spread(adds, add_lo if add_lo is not None else lo, add_hi if add_hi is not None else hi)
        self.nodes += crit + adds
        return res

    def chain(self, instrs, lo, hi, e=None, dl=None, first_dep=None):
        prev = first_dep; out = []
        for i in instrs:
            gapd = 0
            if prev is not None:
                pk = prev.ins.kind
                gapd = 1
                if pk == "ds" and i.kind == "ds": gapd = 0
            n = Node(i, e=lo if e is None else e, dl=(10**9 if dl is None else dl), deps=[(prev, gapd)] if prev else [])
            out.append(n); prev = n
        k = len(out)
        for j, n in enumerate(out): n.ideal = lo + (hi - lo) * j / max(k, 1)
        self.nodes += out
        return out

    def reads(self, nxt_pairs, skip_first=3, barrier_before=()):
        pairs = self.pairs; ext = [p[2] for p in pairs] + list(nxt_pairs)
        prev = None
        plen = 2 * self.nb
        for k in range(skip_first, len(ext)):
            j = k - 4
            e = pairs[j][1] if j >= 0 else 0
            if k in barrier_before:
                g = e - 1 if j >= 0 else 0
                self.fixed[g] = barrier_before[k]
                self.bar_gap = getattr(self, "bar_gap", {}); self.bar_gap[k] = g
                e = g + 1
            dl = e + plen - 2
            if (k + 1) in barrier_before: dl = e + 1
            for i in ext[k]:
                n = Node(i, e=e, dl=min(dl, len(self.mf) - 1), ideal=e - 2, deps=[(prev, 0)] if prev else [])
                self.nodes.append(n); prev = n

    def build(self, nxt_first=None):
        n = len(self.mf)
        ft = set(); seen = set()
        for g, m in enumerate(self.mf):
            key = tuple(m.need)
            if key not in seen:
                seen.add(key)
                if g > 0: ft.add(g - 1)
        ft.add(n - 1)
        blocked = {}
        for g in self.fixed: ft.add(g); blocked[g] = 8
        gaps, over = schedule2(self.mf, self.nodes, free_taken=ft, blocked=blocked)
        for g, ins in self.fixed.items():
            gaps[g][1][0:0] = ins
        self.over = over
        return gaps

def sets_for(par):
    return (0, 1, 2, 3) if par == 0 else (3, 2, 1, 0)

def first_pairs_of_iter(nb, J, name):
    s = Seg(nb, name); par = J & 1
    X0, X1, A_, B_ = sets_for(par)
    s.qblock("t0", 4 * ((J + 1) & 1), A_, False, 0)
    return [p[2] for p in s.pairs[:3]]

SPLIT = {4: 2, 3: 1}

def make_iter(nb, J, kind, name, nxt_name):
    par = J & 1
    X0, X1, A_, B_ = sets_for(par)
    kb = 4 * ((J + 1) & 1)
    s = Seg(nb, name)
    cz = kind == "first"
    last = kind == "last"
    s.qblock("t0", kb + 0, A_, False, 0)
    if not last: s.qblock("t1", kb + 1, B_, False, 0)
    s.pblock("t2", par, 0, X0, X1, cz, 0)
    if not last: s.qblock("t3", kb + 2, A_, False, 0)
    s.pblock("t4", par, 1, X0, X1, cz, 0)
    s.pblock("t5", par, 2, X0, X1, cz, 0)
    if not last: s.qblock("t6", kb + 3, A_, False, 0)
    s.pblock("t7", par, 3, X0, X1, cz, 0)
    n = len(s.mf); B = s.blk
    LAT = 4
    rest = list(range(SPLIT[nb], nb))
    u2 = s.unit(X1, X1, False, rest, lambda b: 0, lambda b: B["t0"][1] + 2, None, 0, B["t0"][1] - 4)
    p0s = B["t2"][0]
    if not last:
        s.unit(A_, X1, True, range(nb), lambda b: s.done[("t0", b)] + LAT, lambda b: p0s + 2 * b - 1, B["t3"][0] - 2,
               B["t0"][1] - 2, p0s - 1, add_lo=p0s, add_hi=B["t3"][0] - 4, after=u2)
        u0 = s.unit(B_, B_, False, range(nb), lambda b: s.done[("t1", b)] + LAT, lambda b: B["t4"][0] + 4, None,
                    B["t2"][0] + 2, B["t4"][0] - 2)
        s.unit(A_, B_, True, range(nb), lambda b: s.done[("t3", b)] + LAT, lambda b: B["t6"][0] - 2, B["t6"][0] - 2,
               B["t4"][0], B["t6"][0] - 4, add_lo=B["t4"][0] + 4, add_hi=B["t6"][0] - 3, after=u0)
        s.unit(A_, A_, False, range(SPLIT[nb]), lambda b: s.done[("t6", b)] + LAT, lambda b: n - 1, None,
               B["t7"][0], n - 3)
    else:
        s.unit(A_, X1, True, range(nb), lambda b: min(s.done[("t0", b)] + LAT, p0s - 1), lambda b: p0s + 2 * b - 1, B["t4"][0],
               B["t0"][1] - 2, p0s - 1, add_lo=p0s, add_hi=B["t4"][0] - 2, after=u2)
    npair = len(s.pairs)
    if not last:
        nxt = first_pairs_of_iter(nb, J + 1, nxt_name)
        kB1 = 16
        s.reads(nxt, barrier_before={kB1: [waitcnt(16, 0), barrier()], npair: [waitcnt(16, 0), barrier()]})
        g1 = s.bar_gap[kB1]; g2 = s.bar_gap[npair]
        npar = (J + 1) & 1
        g0 = []
        if kind == "first":
            kb1 = 4 * ((1 + 1) & 1)
            g0 += dma_K(kb1 + 0) + dma_K(kb1 + 1) + dma_K(kb1 + 2) + dma_V(1, 0)
        g0 += dma_V(npar, 1) + dma_V(npar, 2) + dma_V(npar, 3) + dma_K(4 * ((J + 2) & 1) + 3)
        if kind == "first":
            c0 = s.chain(g0, 0, g1 - 6, dl=g1 - 1)
        else:
            c0 = s.chain(g0, 0, B["t0"][1] + 2, dl=g1 - 1)
        wrapK = (J & 1) == 1; wrapV = (J & 1) == 0
        g1l = dma_K(kb + 0, wrap=wrapK) + dma_K(kb + 1) + dma_K(kb + 2) + dma_V(par, 0, wrap=wrapV)
        s.chain(g1l, B["t5"][0] + 8, B["t7"][0], e=g1 + 1, dl=g2 - 1, first_dep=c0[-1])
    else:
        kB1 = 8
        if opt.nextq:
            s.reads([[]], barrier_before={kB1: [waitcnt(16, 0), barrier()], npair: [waitcnt(24, 0), barrier()]})
            g1 = s.bar_gap[kB1]; g2 = s.bar_gap[npair]
            c1 = s.chain(dma_Q(s_mR2, s_qn[1], ("R2",)), 0, B["t0"][1] - 6, dl=g1 - 1)
            qfree = B["t0"][1] + 1
            r0 = s.chain(q_reads(0, s_mX, ("X",), vt0), g1 + 2, g1 + 12, e=max(qfree, g1 + 1))
            w0 = mark_wait_lds(("q", 0, 7))
            c2 = s.chain([w0] + dma_Q(s_mX, s_qn[2], ("X",)), g1 + 18, g1 + 34, first_dep=r0[-1])
            c2[0].deps = [(r0[-1], 5), (c1[-1], 1)]
            t5s = B["t5"][0]
            r1 = s.chain([waitcnt(8)] + q_reads(1, s_mR2, ("R2",), vt1), t5s, t5s + 10, first_dep=c2[-1])
            w1 = mark_wait_lds(("q", 1, 7))
            c3 = s.chain([w1] + dma_Q(s_mR2, s_qn[3], ("R2",)), t5s + 16, g2 - 1, dl=g2 - 1, first_dep=r1[-1])
            c3[0].deps = [(r1[-1], 5)]
    return s

def mark_wait_lds(tag):
    i = raw("s_nop 0", "nop"); i.need = [tag]; i.is_marker = True
    return i

def make_pro(nb, name, nxt_name):
    X0, X1, A_, B_ = sets_for(1)
    s = Seg(nb, name)
    s.qblock("t1", 1, B_, True, 0)
    s.qblock("t3", 2, X0, True, 0)
    s.qblock("t6", 3, A_, False, 0)
    n = len(s.mf); B = s.blk; LAT = 4
    fix0 = {}; fix1 = {}
    allmx = []
    tmp = SET(X1)
    for b in range(nb):
        x = Sx(B_, b); ta, tb = tmp[2 * b], tmp[2 * b + 1]
        e = s.done[("t1", b)] + LAT
        seq = [valu("v_max3_f32", ta, x[0], x[1], x[2]), valu("v_max_f32", ta, ta, x[3]), valu("v_mov_b32", tb, ta),
               perm("v_permlane16_swap_b32", ta, tb), valu("v_max_f32", ta, ta, tb), valu("v_mov_b32", tb, ta),
               perm("v_permlane32_swap_b32", ta, tb), valu("v_min_f32", Ct(b)[0], Neg(ta), Neg(tb)),
               valu("v_mov_b32", Ct(b)[1], Ct(b)[0]), valu("v_mov_b32", Ct(b)[2], Ct(b)[0]), valu("v_mov_b32", Ct(b)[3], Ct(b)[0]),
               valu("v_mov_b32", lsum(b), 0)]
        prev = None; nds = []
        for i in seq:
            d = 0
            if prev is not None and i.op.startswith("v_permlane"): d = 2
            nd = Node(i, e=e, dl=B["t6"][0] - 2 + 2 * b, deps=[(prev, d)] if prev else [])
            nds.append(nd); prev = nd
        for k, nd in enumerate(nds): nd.ideal = e + k * 0.7
        allmx += nds
        fix0[b] = [Node(valu("v_add_f32", x[i], x[i], Ct(b)[0]), e=e, deps=[(nds[7], 0), (nds[11], 0)], ideal=e + 9 + i * 0.5) for i in range(4)]
        y = Sx(X0, b); e1 = s.done[("t3", b)] + LAT
        fix1[b] = [Node(valu("v_add_f32", y[i], y[i], Ct(b)[0]), e=e1, deps=[(nds[7], 0), (nds[11], 0)], ideal=e1 + i * 0.5) for i in range(4)]
        allmx += fix0[b] + fix1[b]
    s.nodes += allmx
    u0 = s.unit(B_, B_, False, range(nb), lambda b: s.done[("t1", b)] + LAT, lambda b: n - 1, None, B["t3"][0] + 10, B["t6"][0] + 8, pre=fix0)
    s.unit(X0, B_, True, range(nb), lambda b: s.done[("t3", b)] + LAT, lambda b: n - 1, n - 1, B["t6"][0] + 8, n - 1, pre=fix1, after=u0)
    s.unit(A_, A_, False, range(SPLIT[nb]), lambda b: min(s.done[("t6", b)] + LAT, n - 1), lambda b: n - 1, None, n - 1, n - 1)
    nxt = first_pairs_of_iter(nb, 0, nxt_name)
    npair = len(s.pairs)
    s.reads(nxt, barrier_before={npair: [waitcnt(16, 0), barrier()]})
    g2 = s.bar_gap[npair]
    s.chain(dma_V(0, 1) + dma_V(0, 2) + dma_V(0, 3) + dma_K(7), 0, B["t1"][1], dl=g2 - 1)
    head = [i for p in s.pairs[:3] for i in p[2]]
    return s, head

def perm(op, a, b):
    i = valu(op, a, b, extra_rd=[a], extra_wr=[b]); i.cost = 8
    return i

def acc_read(d, a):
    i = Ins(f"v_accvgpr_read_b32 {d}, {a}", "acc", rd=[a], wr=[d]); return i

def make_epi(nb):
    r = []
    T = V(32, 64)
    rl = [T[0], T[1], T[2], T[3]]
    wa = [T[4 + i] for i in range(4)]
    sa = [T[8 + i] for i in range(4)]
    ra = T[12]
    lane = T[13]; q = T[14]; g = T[15]
    for b in range(nb):
        r += [valu("v_mov_b32", rl[b], lsum(b))]
    for b in range(nb):
        r += [perm("v_permlane16_swap_b32", lsum(b), rl[b])]
    for b in range(nb):
        r += [valu("v_add_f32", lsum(b), lsum(b), rl[b])]
    for b in range(nb):
        r += [valu("v_mov_b32", rl[b], lsum(b))]
    r += [valu("v_mbcnt_lo_u32_b32", lane, -1, 0), valu("v_mbcnt_hi_u32_b32", lane, -1, lane)]
    for b in range(nb):
        r += [perm("v_permlane32_swap_b32", lsum(b), rl[b])]
    for b in range(nb):
        r += [valu("v_add_f32", lsum(b), lsum(b), rl[b])]
    for b in range(nb):
        r += [valu("v_rcp_f32", rl[b], lsum(b))]
    for b in range(nb):
        c = valu("v_cmp_ngt_f32", "vcc", hex(L_LIMIT), lsum(b)); c.wr.add(('s', 'vcc')); r.append(c)
        r += [sop(f"s_cmp_lg_u64 vcc, 0"), sop(f"s_cselect_b32 {s_t0}, {1 << b}, 0"),
              sop(f"s_lshl_b32 {s_t1}, {s_pass}, 2"), sop(f"s_lshl_b32 {s_t0}, {s_t0}, {s_t1}"),
              sop(f"s_or_b32 {s_flags}, {s_flags}, {s_t0}")]
    r += [valu("v_and_b32", q, 15, lane), valu("v_lshrrev_b32", g, 4, lane)]
    r += [valu("v_lshrrev_b32", vt0, 1, g), valu("v_and_b32", vt1, 7, q)]
    for k in range(4):
        r += [valu("v_or_b32", wa[k], 2 * k, vt0), valu("v_xor_b32", wa[k], wa[k], vt1), valu("v_lshlrev_b32", wa[k], 4, wa[k])]
    r += [valu("v_and_b32", vt0, 1, g), valu("v_lshlrev_b32", vt0, 3, vt0), valu("v_lshl_add_u32", vt0, q, 9, vt0),
          valu("v_add_u32", vt0, s_mOS, vt0)]
    for k in range(4): r += [valu("v_add_u32", wa[k], wa[k], vt0)]
    r += [valu("v_lshl_add_u32", ra, lane, 4, s_mOS)]
    r += [valu("v_lshrrev_b32", vt0, 5, lane), valu("v_and_b32", vt1, 31, lane)]
    for k in range(4):
        r += [valu("v_or_b32", q, 2 * k, vt0), valu("v_xor_b32", sa[k], vt1, q), valu("v_lshlrev_b32", sa[k], 4, sa[k]),
              valu("v_lshl_add_u32", sa[k], q, 9, sa[k])]
    nst = 0
    TMP = lambda k: T.sub(16 + 4 * (k % 4), 4)
    RD = lambda k: T.sub(32 + 4 * (k % 8), 4)
    for b in range(nb):
        for db in range(16):
            o = O(b, db); t = TMP(db)
            if o.k == 'a':
                r += [acc_read(t[i], o[i]) for i in range(4)]; src = t
            else: src = o
            if opt.pkmul:
                for h in range(2):
                    rlp = V(rl[b].n & ~1, 2)
                    sel = rl[b].n & 1
                    r.append(valu("v_pk_mul_f32", t.sub(2 * h, 2), src.sub(2 * h, 2), rlp, mods=f"op_sel:[0,{sel}] op_sel_hi:[1,{sel}]"))
            else:
                r += [valu("v_mul_f32", t[i], src[i], rl[b]) for i in range(4)]
            r += [valu("v_cvt_pk_bf16_f32", t[0], t[0], t[1]), valu("v_cvt_pk_bf16_f32", t[1], t[2], t[3])]
            w = ds_write("ds_write_b64", wa[db & 3], t.sub(0, 2), (db >> 2) * 128, tag=("w", b, db)); w.lds_pw = ("OS",)
            if db == 0 and b > 0: w.need = [("o", b - 1, 7)]
            r.append(w)
            if b > 0 and db % 2 == 1:
                k = db // 2
                r.append(store(RD(k), sa[k & 3], b - 1, k)); nst += 1
        for k in range(8):
            i = ds_read("ds_read_b128", RD(k), ra, k * 1024, tag=("o", b, k)); i.lds_rd = ("OS",); i.private = True
            if k == 0: i.need = [("w", b, 15)]
            r.append(i)
        r.append(sop(f"s_add_u32 {s_t1}, {s_ocur}, {b * 8192}", wr=[s_t1]))
        r.append(sop(f"s_add_u32 {s_t2}, {s_ocur}, {b * 8192 + 4096}", wr=[s_t2]))
        if opt.nextq and b == 0:
            r += [waitcnt(8 + nst)] + q_reads(2, s_mX, ("X",), vt0)
        if opt.nextq and b == 1:
            r += [mark_wait_lds(("q", 2, 7))] + dma_Q(s_mX, s_qn[0], ("X",))
            r += [waitcnt(8 + nst)] + q_reads(3, s_mR2, ("R2",), vt0)
    for k in range(8):
        st = store(RD(k), sa[k & 3], nb - 1, k); st.need = [("o", nb - 1, k)]
        r.append(st)
    return r

def store(data, vo, b, k):
    so = s_t2 if k >= 4 else s_t1
    i = Ins(f"buffer_store_dwordx4 {data}, {vo}, {sO}, {so} offen {opt.omod}".rstrip(), "vmem", rd=[data, vo, sO, so])
    i.wide_store = True; i.data = data.set(); i.vm = True
    return i

def lin(seq, pre=()):
    out = []; q = list(pre)
    for i in seq:
        if i.need:
            idx = -1
            for t in i.need:
                if t in q: idx = max(idx, len(q) - 1 - q[::-1].index(t))
            if idx >= 0:
                n = min(len(q) - 1 - idx, 15)
                out.append(waitcnt(None, n)); q = q[idx + 1:]
        if getattr(i, "lgw", None) is not None: q = q[len(q) - i.lgw:] if i.lgw else []
        if getattr(i, "is_marker", False): continue
        if i.kind == "ds": q.append(i.tag)
        out.append(i)
    return out, q

def flat(gaps, pre, nxt_need):
    out = []; q = list(pre)
    def wf(need):
        nonlocal q
        idx = -1
        for t in need:
            if t in q: idx = max(idx, len(q) - 1 - q[::-1].index(t))
        if idx < 0: return
        n = min(len(q) - 1 - idx, 15)
        out.append(waitcnt(None, n)); q = q[idx + 1:]
    for g, (m, sc, oth) in enumerate(gaps):
        wf(m.need)
        out.append(m)
        has_l0 = any(getattr(i, "lgw", None) == 0 for i in sc)
        if not has_l0:
            wf(gaps[g + 1][0].need if g + 1 < len(gaps) else nxt_need)
        for i in sc + oth:
            if i.need: wf(i.need)
            if getattr(i, "lgw", None) == 0: q = []
            if getattr(i, "is_marker", False): continue
            if i.kind == "ds": q.append(i.tag)
            out.append(i)
    return out, q

def label(n): return Ins(n + ":", "label", states=0, cost=0)

def stamp(k):
    if not opt.diag: return []
    return [raw(f"s_memrealtime {s_ts}"), raw("s_memtime s[96:97]"), raw("s_waitcnt lgkmcnt(0)", "wait0"), raw(f"s_mov_b32 m0, {s_tsp}"), raw("s_nop 1"),
            raw(f"v_writelane_b32 v0, {s_ts.sub(0)}, m0"), raw(f"s_add_u32 m0, m0, 32"), raw("s_nop 1"), raw("v_writelane_b32 v0, s96, m0"),
            raw(f"s_add_u32 {s_tsp}, {s_tsp}, 1")]

def retag(q, old, new):
    return [tuple(new if x == old else x for x in t) if len(t) > 1 else t for t in q]

def variant(nb):
    P = {}
    pro, head = make_pro(nb, "pro", "i0")
    i0 = make_iter(nb, 0, "first", "i0", "i1")
    i1 = make_iter(nb, 1, "mid", "i1", "i2")
    i2 = make_iter(nb, 2, "mid", "i2", "i1")
    i7 = make_iter(nb, 7, "last", "i1", None)
    G = {k: s.build() for k, s in (("pro", pro), ("i0", i0), ("i1", i1), ("i2", i2), ("i7", i7))}
    print(f"nb={nb} overflow cycles:", {k: s.over for k, s in (("pro", pro), ("i0", i0), ("i1", i1), ("i2", i2), ("i7", i7))}, file=sys.stderr)
    h, q = lin(head)
    a, q = flat(G["pro"], q, G["i0"][0][0].need); P["pro"] = h + a
    P["i0"], q0 = flat(G["i0"], q, G["i1"][0][0].need)
    P["i1"], q = flat(G["i1"], q0, G["i2"][0][0].need)
    P["i2"], q2 = flat(G["i2"], q, G["i1"][0][0].need)
    assert q2 == q0, (q0, q2)
    P["i7"], q = flat(G["i7"], q2, [])
    P["epi"], q = lin(make_epi(nb), q)
    return P

def check_trace(trace):
    vm = []
    lg = []
    state = {}
    epoch = 0
    ALIAS = {("R2",): [("V", 0, 1), ("V", 0, 2), ("V", 0, 3), ("K", 7)], ("OS",): [("V", 1, c) for c in range(4)]}
    def phys(u): return ALIAS.get(u, [u])
    wr_land = {}; wr_pend = {}; rd_done = {}; rd_pend = {}; owner = {}
    errs = []
    for k, i in enumerate(trace):
        if getattr(i, "vmw", None) is not None:
            while len(vm) > i.vmw:
                o = vm.pop(0)
                u = getattr(o, "dma_wr", None)
                if u: wr_pend[u] -= 1; wr_land[u] = epoch
        if getattr(i, "lgw", None) is not None or i.kind == "wait0":
            n = 0 if i.kind == "wait0" else i.lgw
            while len(lg) > n:
                o = lg.pop(0)
                u = getattr(o, "lds_rd", None) or getattr(o, "lds_pw", None)
                if u: rd_pend[u] -= 1; rd_done[u] = epoch
        if getattr(i, "bar", False): epoch += 1
        u = getattr(i, "lds_rd", None)
        if u:
            if u != ("OS",):
                if wr_pend.get(u, 0) > 0: errs.append((k, "read of unit with pending DMA", u, i.text))
                elif not getattr(i, "private", False) and wr_land.get(u, 10**9) >= epoch: errs.append((k, "read without barrier after landing", u, i.text))
            for p in phys(u):
                if owner.get(p) != u: errs.append((k, "read of unit owned by", owner.get(p), u, i.text))
        w = getattr(i, "dma_wr", None) or getattr(i, "lds_pw", None)
        if w:
            for p in phys(w):
                o = owner.get(p)
                if o is not None:
                    priv = (o == w and w in (("X",), ("R2",), ("OS",)))
                    if rd_pend.get(o, 0) > 0 and not (getattr(i, "lds_pw", None) and o == w and not any(getattr(x, "lds_rd", None) == o for x in lg)):
                        errs.append((k, "write over unit with reads in flight", o, w, i.text))
                    if not priv and rd_done.get(o, -1) >= epoch: errs.append((k, "write without barrier after reads", o, w, i.text))
                    if o != w and wr_pend.get(o, 0) > 0: errs.append((k, "write over pending dma", o, w))
                    if o != w and wr_land.get(o, -1) >= epoch: errs.append((k, "write over unit landed w/o barrier", o, w))
                owner[p] = w
        if i.kind == "ds":
            lg.append(i)
            u = getattr(i, "lds_rd", None) or getattr(i, "lds_pw", None)
            if u: rd_pend[u] = rd_pend.get(u, 0) + 1
        if getattr(i, "vm", False):
            vm.append(i)
            u = getattr(i, "dma_wr", None)
            if u: wr_pend[u] = wr_pend.get(u, 0) + 1
            assert len(vm) <= 63, "vmcnt overflow"
    return errs

def schedule_table(mode):
    tab = {}
    if mode == "simple":
        for wg in range(256):
            x = wg & 7; idx = wg >> 3
            head = x * 16 + (idx >> 1); base = 41 * (idx & 1)
            tab[wg] = [(head, base, 12), (head, base + 12, 16), (head, base + 28, 13)]
    elif mode == "share":
        for x in range(8):
            rounds = [[], [], []]
            def add(r, h, start, sizes):
                for sz in sizes:
                    rounds[r].append((x * 16 + h, start, sz)); start += sz
                return start
            for h in range(10):
                st = add(0, h, 0, [12, 12, 12]); add(1 if h < 6 else 2, h, st, [15, 15, 16])
            st = add(0, 10, 0, [12, 12]); st = add(1, 10, st, [15, 14]); add(2, 10, st, [15, 14])
            for h in range(11, 16):
                add(1 if h < 13 else 2, h, 0, [14, 14, 14, 14, 13, 13])
            assert all(len(r) == 32 for r in rounds), [len(r) for r in rounds]
            for idx in range(32):
                tab[idx * 8 + x] = [rounds[0][idx], rounds[1][idx], rounds[2][idx]]
    elif mode.startswith("g6"):
        orders = {"A": (0, 1, 2), "B": (1, 0, 2), "C": (2, 1, 0), "D": (2, 0, 1)}
        pat = mode.split("_")[1]
        rot = pat.startswith("x"); pat = pat.lstrip("x")
        for x in range(8):
            for g in range(6):
                o = orders[pat[(g + (x if rot else 0)) % len(pat)]] if not pat.startswith("X") else orders["ABC"[x % 3]]
                if g < 5:
                    ha, hb, hc = [x * 16 + 3 * g + i for i in range(3)]
                    r0 = [(ha, 0, 12), (ha, 12, 12), (ha, 24, 12), (hb, 0, 12), (hb, 12, 12), (hb, 24, 12)]
                    r1 = [(ha, 36, 15), (ha, 51, 15), (ha, 66, 16), (hb, 36, 15), (hb, 51, 15), (hb, 66, 16)]
                    r2 = [(hc, 0, 14), (hc, 14, 14), (hc, 28, 13), (hc, 41, 14), (hc, 55, 14), (hc, 69, 13)]
                    n = 6
                else:
                    h = x * 16 + 15
                    r0 = [(h, 0, 12), (h, 12, 12)]; r1 = [(h, 24, 15), (h, 39, 15)]; r2 = [(h, 54, 14), (h, 68, 14)]
                    n = 2
                R = [r0, r1, r2]
                for i in range(n):
                    tab[(6 * g + i) * 8 + x] = [R[o[0]][i], R[o[1]][i], R[o[2]][i]]
    cov = {}
    for wg, l in tab.items():
        for h, st, n in l:
            assert 12 <= n <= 16
            for b in range(st, st + n):
                assert (h, b) not in cov; cov[(h, b)] = wg
    assert len(cov) == 128 * 82
    return tab

def setup_code():
    L = []; A = L.append
    A("s_cmp_ge_u32 s2, 256")
    A("s_cbranch_scc1 L_exit")
    A("s_load_dwordx4 s[72:75], s[0:1], 0")
    A("s_load_dwordx4 s[76:79], s[0:1], 16")
    if opt.diag: A("s_load_dwordx2 s[64:65], s[0:1], 40")
    A("s_getpc_b64 s[4:5]")
    A("L_pc:")
    A("s_lshl_b32 s3, s2, 6")
    A("s_add_u32 s3, s3, L_table-L_pc")
    A("s_add_u32 s4, s4, s3")
    A("s_addc_u32 s5, s5, 0")
    A("s_load_dwordx16 s[80:95], s[4:5], 0")
    A(f"v_readfirstlane_b32 {s_wave}, v0")
    A("v_and_b32 v10, 63, v0")
    A(f"s_lshr_b32 {s_wave}, {s_wave}, 6")
    A("v_and_b32 v11, 15, v10")
    A("v_lshrrev_b32 v14, 4, v10")
    A("v_lshrrev_b32 v15, 2, v11\nv_lshlrev_b32 v1, 11, v15\nv_and_b32 v6, 3, v11\nv_lshl_add_u32 v1, v6, 6, v1")
    A("v_lshrrev_b32 v6, 3, v11\nv_lshlrev_b32 v6, 1, v6\nv_xor_b32 v6, v6, v14\nv_lshl_add_u32 v1, v6, 4, v1")
    A("v_lshrrev_b32 v6, 1, v14\nv_lshlrev_b32 v2, 10, v6\nv_and_b32 v7, 1, v14\nv_lshl_add_u32 v6, v7, 2, v15\nv_lshl_add_u32 v2, v6, 6, v2")
    A(f"v_and_b32 v8, 3, v10\nv_lshl_add_u32 v2, v8, 3, v2\nv_lshl_add_u32 v2, v7, 5, v2\nv_add_u32 v2, {VB}, v2\nv_xor_b32 v3, 32, v2")
    A("v_lshlrev_b32 v12, 9, v15\nv_lshl_add_u32 v12, v14, 6, v12\nv_lshl_add_u32 v12, v8, 4, v12\nv_xor_b32 v13, 32, v12\nv_add_u32 v13, 4096, v13")
    A(f"s_lshl_b32 {s_mK}, {s_wave}, 11\ns_lshr_b32 s3, {s_wave}, 1\ns_lshl_b32 s3, s3, 5")
    A(f"v_xor_b32 v4, s3, v12\nv_add_u32 v4, {s_mK}, v4")
    A("v_lshrrev_b32 v6, 2, v10\nv_and_b32 v6, 7, v6\nv_lshlrev_b32 v5, 9, v6\nv_lshrrev_b32 v6, 2, v6\nv_lshlrev_b32 v6, 1, v6\nv_xor_b32 v6, v6, v8")
    A(f"v_lshl_add_u32 v5, v6, 4, v5\nv_lshrrev_b32 v6, 5, v10\nv_lshl_add_u32 v5, v6, 6, v5\ns_lshl_b32 s3, {s_wave}, 13\nv_add_u32 v5, s3, v5")
    A(f"s_add_u32 {s_mX}, s3, {XB}")
    A(f"s_add_u32 {s_mOS}, s3, {vslot_addr(1, 0)}")
    A(f"s_add_u32 {s_mR2}, s3, {vslot_addr(0, 0)}")
    A(f"s_cmp_eq_u32 {s_wave}, 0\ns_cselect_b32 {s_mR2}, {kslot_addr(7)}, {s_mR2}")
    A(f"s_mov_b32 {s_c}, {C_SCALE:#x}\ns_mov_b32 {s_pass}, 0\ns_mov_b32 {s_flags}, 0")
    if opt.diag: A(f"s_mov_b32 {s_tsp}, 0\nv_mov_b32 v0, 0")
    A("s_waitcnt lgkmcnt(0)")
    for srd, p, n in ((sQ, 72, QBYTES), (sK, 74, KBYTES), (sV, 76, KBYTES), (sO, 78, QBYTES)):
        A(f"s_mov_b32 {srd[0]}, s{p}\ns_mov_b32 {srd[1]}, s{p+1}\ns_mov_b32 {srd[2]}, {n}\ns_mov_b32 {srd[3]}, 0x20000")
    for p in range(3):
        A(f"s_sub_u32 s3, s{80+3*p+2}, 12")
        A(f"s_min_u32 s4, s3, {s_wave}")
        A(f"s_mul_i32 s5, {s_wave}, 3\ns_add_u32 s4, s4, s5\ns_lshl_b32 s4, s4, 13")
        A(f"s_add_u32 {s_tab[3*p]}, s{80+3*p}, s4")
        A(f"s_mov_b32 {s_tab[3*p+1]}, s{80+3*p+1}")
        A(f"s_cmp_lt_u32 {s_wave}, s3\ns_cselect_b32 {s_tab[3*p+2]}, 4, 3")
    for p in (3, 4):
        A(f"s_mov_b32 {s_tab[3*p]}, {OOB:#x}\ns_mov_b32 {s_tab[3*p+1]}, {OOB:#x}\ns_mov_b32 {s_tab[3*p+2]}, 0")
    for k in range(9): A(f"s_mov_b32 s{80+k}, {s_tab[k]}")
    return L

def startup():
    r = []
    r += [sop(f"s_mov_b32 {s_kptr}, {s_tab[1]}", wr=[s_kptr]), sop(f"s_sub_u32 {s_vptr}, {s_tab[1]}, 32768", wr=[s_vptr])]
    r += [sop(f"s_add_u32 {s_t0}, {s_tab[0]}, 8192", wr=[s_t0]), sop(f"s_add_u32 {s_t1}, {s_tab[0]}, 16384", wr=[s_t1]),
          sop(f"s_add_u32 {s_t2}, {s_tab[0]}, 24576", wr=[s_t2])]
    r += dma_K(1)
    r += dma_Q(s_mX, s_tab[0], ("X",)) + dma_Q(s_mR2, s_t0, ("R2",)) + dma_Q(s_mOS, s_t1, ("OS",))
    r += dma_K(2) + dma_K(3)
    r += dma_K(4) + dma_K(5) + dma_K(6) + dma_V(0, 0)
    r += [waitcnt(28)] + q_reads(0, s_mX, ("X",), vt0)
    r += [waitcnt(20)] + q_reads(1, s_mR2, ("R2",), vt1)
    r += [waitcnt(12)] + q_reads(2, s_mOS, ("OS",), vt0)
    r += [waitcnt(None, 0)]
    r += [sop(f"s_cmp_lt_u32 {s_tab[2]}, 4"), raw("s_cbranch_scc1 L_noq3")]
    r2 = dma_Q(s_mX, s_t2, ("X",)) + [waitcnt(0)] + q_reads(3, s_mX, ("X",), vt0) + [waitcnt(None, 0)]
    r3 = dma_Q(s_mX, s_tab[3], ("X",)) + [waitcnt(16)]
    return r, r2, r3

def pass_begin():
    r = [sop(f"s_mov_b32 {s_ocur}, {s_tab[0]}"),
         sop(f"s_add_u32 {s_kend}, {s_tab[1]}, 262144"), sop(f"s_mov_b32 {s_vend}, {s_kend}"),
         sop(f"s_mov_b32 {s_knext}, {s_tab[4]}"),
         sop(f"s_add_u32 {s_qn[1]}, {s_tab[3]}, 8192"), sop(f"s_add_u32 {s_qn[2]}, {s_tab[3]}, 16384"),
         sop(f"s_add_u32 {s_qn[3]}, {s_tab[3]}, 24576"),
         sop(f"s_cmp_lt_u32 {s_tab[5]}, 4"), sop(f"s_cselect_b32 {s_qn[3]}, {OOB:#x}, {s_qn[3]}"),
         sop(f"s_mov_b32 {s_qn[0]}, {s_tab[6]}"),
         sop(f"s_mov_b32 {s_nbn}, {s_tab[2]}")]
    for k in range(12): r.append(sop(f"s_mov_b32 {s_tab[k]}, {s_tab[k+3]}"))
    r += [sop(f"s_mov_b32 {s_cnt}, 3")]
    return r

def main():
    ap = argparse.ArgumentParser()
    ap.add_argument("-o", default="standalone__mha_softmax__near_ridge.s")
    ap.add_argument("--diag", type=int, default=0)
    ap.add_argument("--kvmod", default="")
    ap.add_argument("--qmod", default="")
    ap.add_argument("--omod", default="")
    ap.add_argument("--sched", default="share")
    ap.add_argument("--pkmul", type=int, default=1)
    ap.add_argument("--rep", type=int, default=1)
    a = ap.parse_args()
    opt.__dict__.update(vars(a)); opt.nextq = 1
    L = []; A = L.append
    hdr = open("standalone__mha_softmax__near_ridge.s.ref").read().split("\n")
    for l in hdr:
        if l.startswith("; @launch"): break
        A(l)
    A(f"; @launch grid=(256,1,1) block=(256,1,1) lds={LDS_BYTES}")
    A('.amdgcn_target "amdgcn-amd-amdhsa--gfx950"')
    A(f".text\n.globl {KNAME}\n.p2align 8\n.type {KNAME},@function\n{KNAME}:")
    L += setup_code()
    def emit(seq):
        for i in seq: A(i.text)
    if opt.rep > 1: A(f"s_mov_b32 s98, {opt.rep}\nL_again:")
    emit(stamp(0))
    s1, s2, s3 = startup()
    s1 = fix_hazards(lin(s1)[0]); s2 = fix_hazards(lin(s2)[0]); s3 = fix_hazards(lin(s3)[0])
    emit(s1); emit(s2); A("L_noq3:"); emit(s3)
    A("L_pass:")
    pb = pass_begin() + [waitcnt(None, 0), barrier()]
    emit(pb)
    emit(stamp(1))
    A(f"s_cmp_eq_u32 {s_nbn}, 3\ns_cbranch_scc1 L_v3")
    VAR = {}
    for nb in (4, 3):
        P = variant(nb)
        loopend = [sop(f"s_sub_u32 {s_cnt}, {s_cnt}, 1"), sop(f"s_cmp_lg_u32 {s_cnt}, 0"), raw(f"s_cbranch_scc1 L_loop{nb}")]
        pro = fix_hazards(P["pro"])
        i0 = fix_hazards(P["i0"], wrap=pro[-14:])
        b1 = fix_hazards(P["i1"], wrap=i0[-14:])
        b2 = fix_hazards(P["i2"], wrap=b1[-14:])
        b1b = fix_hazards(P["i1"], wrap=b2[-14:])
        assert len(b1b) == len(b1) == len(P["i1"]) or [x.text for x in b1b] == [x.text for x in b1], "loop entry hazards differ"
        i7 = fix_hazards(P["i7"], wrap=b2[-14:])
        epi = fix_hazards(P["epi"], wrap=i7[-14:])
        VAR[nb] = dict(pro=pro, i0=i0, b1=b1, b2=b2, le=loopend, i7=i7, epi=epi)
        nn = sum(1 for p in (pro, i0, b1, b2, i7, epi) for x in p if x.kind == "nop")
        print(f"nb={nb}: sizes", {k: len(v) for k, v in VAR[nb].items()}, "nops", nn, file=sys.stderr)
        A(".p2align 6"); A(f"L_v{nb}:")
        emit(pro); emit(i0)
        emit(stamp(2))
        A(".p2align 6") if False else None
        A(f"L_loop{nb}:")
        emit(b1); emit(b2); emit(loopend)
        emit(i7)
        emit(stamp(3))
        emit(epi)
        emit(stamp(4))
        A(f"s_add_u32 {s_pass}, {s_pass}, 1\ns_cmp_lt_u32 {s_pass}, 3\ns_cbranch_scc1 L_pass\ns_branch L_done")
    for seqnb in ((3, 4, 4), (4, 3, 3), (3, 4, 3)):
        tr = s1 + (s2 if seqnb[0] == 4 else []) + s3
        for nb in seqnb:
            v = VAR[nb]
            tr = tr + pb + v["pro"] + v["i0"] + (v["b1"] + v["b2"]) * 3 + v["i7"] + v["epi"]
        errs = check_trace(tr)
        if errs:
            for e in errs[:20]: print("SYNC ERR", seqnb, e, file=sys.stderr)
            raise SystemExit(1)
    A("L_done:")
    if opt.rep > 1:
        A("s_waitcnt vmcnt(0) lgkmcnt(0)\ns_barrier")
        for k in range(9): A(f"s_mov_b32 {s_tab[k]}, s{80+k}")
        A(f"s_mov_b32 {s_pass}, 0\ns_sub_u32 s98, s98, 1\ns_cmp_lg_u32 s98, 0\ns_cbranch_scc1 L_again")
    if opt.diag:
        A("s_waitcnt vmcnt(0)")
        emit(stamp(5))
        A(f"s_mov_b32 s66, 0x1000000\ns_mov_b32 s67, 0x20000")
        A(f"v_mbcnt_lo_u32_b32 v1, -1, 0\nv_mbcnt_hi_u32_b32 v1, -1, v1\nv_lshlrev_b32 v1, 2, v1")
        A(f"s_lshl_b32 s3, s2, 10\ns_lshl_b32 s4, {s_wave}, 8\ns_add_u32 s3, s3, s4")
        A("buffer_store_dword v0, v1, s[64:67], s3 offen")
        if opt.diag == 2:
            A(f"s_or_b32 s3, s2, {s_wave}\ns_cmp_lg_u32 s3, 0\ns_cbranch_scc1 L_exit")
            A("s_load_dwordx2 s[64:65], s[0:1], 32\ns_mov_b32 s66, 256\nv_readlane_b32 s4, v0, 0\nv_readlane_b32 s5, v0, 32\ns_waitcnt lgkmcnt(0)")
            idx = [1, 2, 3, 5, 7, 9, 11, 13]
            for j, k in enumerate(idx):
                A(f"v_readlane_b32 s6, v0, {k}\nv_readlane_b32 s7, v0, {k+32}\ns_sub_u32 s6, s6, s4\ns_sub_u32 s7, s7, s5\ns_nop 1\nv_writelane_b32 v2, s6, {j}\nv_writelane_b32 v2, s7, {j+8}")
            A("s_mov_b64 exec, 0xffff\nbuffer_store_dword v2, v1, s[64:67], 0 offen")
    A("L_exit:")
    A("s_endpgm")
    A(".p2align 6\n.type L_table,@object\nL_table:")
    tab = schedule_table(opt.sched)
    for wg in range(256):
        w = []
        for h, st, n in tab[wg]:
            w += [(h * SQ + st * 16) * 512, h * SK * 512, n]
        w += [0] * (16 - len(w))
        A(".long " + ", ".join(str(x) for x in w))
    A(".size L_table, 16384")
    A('.section .rodata,"a"\n.p2align 6')
    A(f".amdhsa_kernel {KNAME}")
    A("  .amdhsa_next_free_vgpr 512\n  .amdhsa_next_free_sgpr 102\n  .amdhsa_accum_offset 256\n  .amdhsa_group_segment_fixed_size 0")
    A("  .amdhsa_kernarg_size 48\n  .amdhsa_user_sgpr_count 2\n  .amdhsa_user_sgpr_kernarg_segment_ptr 1\n  .amdhsa_system_sgpr_workgroup_id_x 1")
    A(".end_amdhsa_kernel")
    open(opt.o, "w").write("\n".join(x for x in L if x is not None) + "\n")

if __name__ == "__main__":
    main()
```

```python
import sys, argparse
from asmlib import *

KNAME = "standalone__mha_softmax__near_ridge_kernel"
NH, SQ, SK, D = 128, 1312, 512, 256
QBYTES = NH * SQ * D * 2
KBYTES = NH * SK * D * 2
OOB = 0x7fff0000
VB = 65536
XB = 131072
LDS_BYTES = 163840
C_SCALE = 0x3db8aa3b
L_LIMIT = 0x4e800000

sQ, sK, sV, sO = S(8, 4), S(12, 4), S(16, 4), S(20, 4)
s_wave = S(24)
s_mK = S(25)
s_mX = S(26)
s_mR2 = S(27)
s_mOS = S(28)
s_kptr, s_kend, s_knext = S(29), S(30), S(31)
s_vptr, s_vptr2, s_vend = S(32), S(33), S(34)
s_c = S(35)
s_cnt = S(36)
s_pass = S(37)
s_flags = S(38)
s_qn = [S(40), S(41), S(42), S(43)]
s_ocur = S(44)
s_t0, s_t1, s_t2 = S(45), S(46), S(47)
s_tab = S(48, 16)
s_dbg = S(64, 4)
s_ts = S(68, 2)
s_nbn = S(70)
s_tsp = S(71)
s_mR3 = S(39)
s_ok = [S(72 + k) for k in range(8)]
kaddr, vaddr0, vaddr1, voK, voV = V(1), V(2), V(3), V(4), V(5)
lsum = lambda b: V(6 + b)
vt0, vt1 = V(10), V(11)
voQa, voQb = V(12), V(13)
vsto, wa0 = V(14), V(15)
Ct = lambda b: V(16 + 4 * b, 4)
SET = lambda i: V(32 + 16 * i, 16)
Sx = lambda i, b: SET(i).sub(4 * b, 4)
Q = lambda b, s: AG(b * 32 + s * 4, 4)
NF = 8
F = lambda i: AG(128 + 4 * (i % NF), 4)
def O(b, db):
    t = db * 4 + b
    return V(96 + 4 * t, 4) if t < 40 else AG(160 + 4 * (t - 40), 4)

M0 = ('m0', 0)
def set_m0(base, off):
    i = salu(f"s_add_u32 m0, {base}, {off}", rd=[base]); i.wr = {M0}; return i
def sop(text, rd=(), wr=()): return salu(text, rd=rd, wr=wr)

class Opt: pass
opt = Opt()

def dma(vo, srd, soff, imm, unit, mods):
    i = Ins(f"buffer_load_dwordx4 {vo}, {srd}, {soff} offen offset:{imm} {mods} lds".replace("  ", " "), "vmem", rd=[vo, srd, soff])
    i.rd.add(M0); i.dma_wr = unit; i.vm = True
    return i

def kslot_addr(slot): return slot * 8192
def vslot_addr(par, c): return VB + (par * 4 + c) * 8192

def dma_K(slot, wrap=False):
    r = []
    for dh in range(2):
        r.append(set_m0(s_mK, kslot_addr(slot) + dh * 768))
        r.append(dma(voK, sK, s_kptr, dh * 256, ("K", slot), opt.kvmod))
    r.append(sop(f"s_add_u32 {s_kptr}, {s_kptr}, 8192", rd=[s_kptr], wr=[s_kptr]))
    if wrap:
        r.append(sop(f"s_cmp_eq_u32 {s_kptr}, {s_kend}", rd=[s_kptr, s_kend]))
        r[-1].glue = True
        r.append(sop(f"s_cselect_b32 {s_kptr}, {s_knext}, {s_kptr}", rd=[s_kptr, s_knext], wr=[s_kptr]))
    return r

def dma_V(par, c, wrap=False):
    r = []
    if c == 0:
        r.append(sop(f"s_add_u32 {s_vptr}, {s_vptr}, 32768", rd=[s_vptr], wr=[s_vptr]))
        if wrap:
            r.append(sop(f"s_cmp_eq_u32 {s_vptr}, {s_vend}", rd=[s_vptr, s_vend]))
            r[-1].glue = True
            r.append(sop(f"s_cselect_b32 {s_vptr}, {s_knext}, {s_vptr}", rd=[s_vptr, s_knext], wr=[s_vptr]))
        r.append(sop(f"s_add_u32 {s_vptr2}, {s_vptr}, 4096", rd=[s_vptr], wr=[s_vptr2]))
    for e in range(2):
        r.append(set_m0(s_mK, vslot_addr(par, c) + e * 1024 - c * 128))
        r.append(dma(voV, sV, s_vptr2 if e else s_vptr, c * 128, ("V", par, c), opt.kvmod))
    return r

def dma_Q(base, soff, unit):
    r = []
    for hi in range(2):
        for dh in range(2):
            r.append(set_m0(base, hi * 4096 + dh * 768))
            for Rl in range(2):
                r.append(dma(voQb if hi else voQa, sQ, soff, Rl * 2048 + dh * 256, unit, opt.qmod))
    return r

def q_reads(b, base_sgpr, unit, tmp):
    r = [valu("v_add_u32", tmp, base_sgpr, kaddr)]
    for s in range(8):
        i = ds_read("ds_read_b128", Q(b, s), tmp, s * 256, tag=("q", b, s)); i.lds_rd = unit; i.private = True
        r.append(i)
    return r

def waitcnt(vm=None, lgkm=None):
    t = "s_waitcnt" + (f" vmcnt({vm})" if vm is not None else "") + (f" lgkmcnt({lgkm})" if lgkm is not None else "")
    i = raw(t, "wait"); i.vmw = vm; i.lgw = lgkm
    return i
def vwait(units, lgkm=None):
    i = raw("s_waitcnt ?", "wait"); i.vmneed = list(units); i.vmw = None; i.lgw = lgkm; i.vmauto = 63
    return i
def barrier():
    i = raw("s_barrier", "misc"); i.bar = True; return i

class Seg:
    def __init__(self, nb, name):
        self.nb = nb; self.name = name
        self.mf = []; self.nodes = []
        self.pairs = []
        self.blk = {}
        self.fixed = {}
        self.done = {}
        self.first = {}

    def qblock(self, name, slot, dst, czero, fbase):
        nb = self.nb; st = len(self.mf)
        for sp in range(4):
            p0 = len(self.mf)
            tags = [("f", self.name, name, 2 * sp + e) for e in range(2)]
            for b in range(nb):
                for e in range(2):
                    s = 2 * sp + e
                    d = Sx(dst, b)
                    c = d if s else (0 if czero else Ct(b))
                    self.mf.append(mfma(d, F(fbase + s), Q(b, s), c, need=tags))
                    self.done[(name, b)] = len(self.mf) - 1
            rd = []
            for e in range(2):
                s = 2 * sp + e
                i = ds_read("ds_read_b128", F(fbase + s), kaddr, kslot_addr(slot) + s * 256, tag=tags[e]); i.lds_rd = ("K", slot)
                rd.append(i)
            self.pairs.append((p0, len(self.mf) - 1, rd))
        self.blk[name] = (st, len(self.mf))

    def pblock(self, name, par, c, x0, x1, czero, fbase):
        self.pgen(name, par, [[(c, dbl, 0), (c, dbl, 1)] for dbl in range(4)], x0, x1, czero)

    def pgen(self, name, par, prs, x0, x1, czero):
        nb = self.nb; st = len(self.mf)
        for pi, pr in enumerate(prs):
            p0 = len(self.mf)
            fb = 2 * len(self.pairs)
            tags = [("f", self.name, name, 2 * pi + e) for e in range(2)]
            for b in range(nb):
                for e, (c, dbl, ks) in enumerate(pr):
                    o = O(b, 4 * c + dbl)
                    cc = 0 if (czero and ks == 0) else o
                    self.first.setdefault(("P", ks, b), len(self.mf))
                    self.first.setdefault(("O", c), len(self.mf))
                    self.mf.append(mfma(o, F(fb + e), Sx(x1 if ks else x0, b), cc, need=tags))
            rd = []
            for e, (c, dbl, ks) in enumerate(pr):
                f = F(fb + e)
                va = vaddr1 if (dbl & 1) else vaddr0
                off = vslot_addr(par, c) - VB + ks * 4096 + (dbl >> 1) * 512
                for j4 in range(2):
                    i = ds_read("ds_read_b64_tr_b16", f.sub(2 * j4, 2), va, off + j4 * 2048, tag=tags[e] if j4 else ("x",))
                    i.lds_rd = ("V", par, c)
                    rd.append(i)
            self.pairs.append((p0, len(self.mf) - 1, rd))
        self.blk[name] = (st, len(self.mf))

    def unit(self, src, even_set, odd, blocks, e_of, dl_crit, dl_add, lo, hi, add_lo=None, add_hi=None, pre=None, after=None, fma=None):
        crit = []; adds = []; res = {}
        for b in blocks:
            x = Sx(src, b); ev = Sx(even_set, b)
            ms = []
            for i in range(4):
                deps = [(n, 0) for n in pre[b]] if pre else []
                ins = valu("v_fma_f32", x[i], x[i], s_c, fma[b]) if fma else valu("v_mul_f32", x[i], s_c, x[i])
                ms.append(Node(ins, e=e_of(b), dl=dl_crit(b), deps=deps))
            ex = [Node(valu("v_exp_f32", x[i], x[i]), e=e_of(b), dl=dl_crit(b), deps=[(ms[i], 0)]) for i in range(4)]
            ad = []
            for i in range(4):
                deps = [(ex[i], 1)] + ([(ad[-1], 0)] if ad else [])
                ad.append(Node(valu("v_add_f32", lsum(b), lsum(b), x[i]), e=e_of(b), dl=(dl_add if odd else dl_crit(b)), deps=deps))
            aft = [(n, 0) for n in (after or {}).get(b, [])]
            if odd:
                c0 = Node(valu("v_cvt_pk_bf16_f32", ev[2], x[0], x[1]), e=e_of(b), dl=dl_crit(b), deps=[(ex[0], 1), (ex[1], 1)] + aft)
                c1 = Node(valu("v_cvt_pk_bf16_f32", ev[3], x[2], x[3]), e=e_of(b), dl=dl_crit(b), deps=[(ex[2], 1), (ex[3], 1)] + aft)
                crit += [ms[0], ms[1], ex[0], ex[1], ms[2], ms[3], ex[2], ex[3], c0, c1]
                adds += ad
            else:
                c0 = Node(valu("v_cvt_pk_bf16_f32", x[0], x[0], x[1]), e=e_of(b), dl=dl_crit(b), deps=[(ex[0], 1), (ex[1], 1), (ad[0], 0)])
                c1 = Node(valu("v_cvt_pk_bf16_f32", x[1], x[2], x[3]), e=e_of(b), dl=dl_crit(b), deps=[(ex[2], 1), (ex[3], 1), (ad[1], 0), (c0, 0)])
                crit += [ms[0], ms[1], ex[0], ex[1], ms[2], ms[3], ex[2], ex[3], ad[0], ad[1], ad[2], ad[3], c0, c1]
            res[b] = [c0, c1] + ad
        spread(crit, lo, hi)
        if adds: spread(adds, add_lo if add_lo is not None else lo, add_hi if add_hi is not None else hi)
        self.nodes += crit + adds
        return res

    def chain(self, instrs, lo, hi, e=None, dl=None, first_dep=None):
        prev = first_dep; out = []
        for i in instrs:
            gapd = 0
            if prev is not None:
                pk = prev.ins.kind
                gapd = 1
                if pk == "ds" and i.kind == "ds": gapd = 0
            n = Node(i, e=lo if e is None else e, dl=(10**9 if dl is None else dl), deps=[(prev, gapd)] if prev else [])
            out.append(n); prev = n
        k = len(out)
        for j, n in enumerate(out): n.ideal = lo + (hi - lo) * j / max(k, 1)
        self.nodes += out
        return out

    def reads(self, nxt_pairs, skip_first=3, barrier_before=()):
        pairs = self.pairs; ext = [p[2] for p in pairs] + list(nxt_pairs)
        prev = None
        plen = 2 * self.nb
        for k in range(skip_first, len(ext)):
            j = k - 4
            e = pairs[j][1] if j >= 0 else 0
            if k in barrier_before:
                g = e - 1 if j >= 0 else 0
                self.fixed[g] = barrier_before[k]
                self.bar_gap = getattr(self, "bar_gap", {}); self.bar_gap[k] = g
                e = g + 1
            dl = e + plen - 2
            if (k + 1) in barrier_before: dl = e + 1
            for i in ext[k]:
                n = Node(i, e=e, dl=min(dl, len(self.mf) - 1), ideal=e - 2, deps=[(prev, 0)] if prev else [])
                self.nodes.append(n); prev = n

    def build(self, nxt_first=None):
        n = len(self.mf)
        ft = set(); seen = set()
        for g, m in enumerate(self.mf):
            key = tuple(m.need)
            if key not in seen:
                seen.add(key)
                if g > 0: ft.add(g - 1)
        ft.add(n - 1)
        blocked = {}
        for g in self.fixed: ft.add(g); blocked[g] = 8
        gaps, over = schedule2(self.mf, self.nodes, free_taken=ft, blocked=blocked)
        for g, ins in self.fixed.items():
            gaps[g][1][0:0] = ins
        self.over = over
        return gaps

def sets_for(par):
    return (0, 1, 2, 3) if par == 0 else (3, 2, 1, 0)

def first_pairs_of_iter(nb, J, name):
    s = Seg(nb, name); par = J & 1
    X0, X1, A_, B_ = sets_for(par)
    s.qblock("t0", 4 * ((J + 1) & 1), A_, False, 0)
    return [p[2] for p in s.pairs[:3]]

SPLIT = {4: 2, 3: 1}

LAT = 4
def units_of(J, h):
    par = J & 1; kb = 4 * ((J + 1) & 1)
    return [("K", kb), ("K", kb + 1), ("K", kb + 2), ("V", par, 0)] if h == 0 else [("V", par, 1), ("V", par, 2), ("V", par, 3), ("K", kb + 3)]

def iter_blocks(s, J, cz):
    par = J & 1
    X0, X1, A_, B_ = sets_for(par)
    kb = 4 * ((J + 1) & 1)
    s.qblock("t0", kb + 0, A_, False, 0)
    s.qblock("t1", kb + 1, B_, False, 0)
    s.pblock("t2", par, 0, X0, X1, cz, 0)
    s.qblock("t3", kb + 2, A_, False, 0)
    s.pblock("t4", par, 1, X0, X1, cz, 0)
    s.pblock("t5", par, 2, X0, X1, cz, 0)
    s.qblock("t6", kb + 3, A_, False, 0)
    s.pblock("t7", par, 3, X0, X1, cz, 0)

def iter_units(s, J, u2):
    nb = s.nb; B = s.blk; n = len(s.mf)
    X0, X1, A_, B_ = sets_for(J & 1)
    p0s = B["t2"][0]
    s.unit(A_, X1, True, range(nb), lambda b: s.done[("t0", b)] + LAT, lambda b: p0s + 2 * b - 1, B["t3"][0] - 2,
           B["t0"][1] - 2, p0s - 1, add_lo=p0s, add_hi=B["t3"][0] - 4, after=u2)
    u0 = s.unit(B_, B_, False, range(nb), lambda b: s.done[("t1", b)] + LAT, lambda b: B["t4"][0] + 4, None,
                B["t2"][0] + 2, B["t4"][0] - 2)
    s.unit(A_, B_, True, range(nb), lambda b: s.done[("t3", b)] + LAT, lambda b: B["t6"][0] - 2, B["t6"][0] - 2,
           B["t4"][0], B["t6"][0] - 4, add_lo=B["t4"][0] + 4, add_hi=B["t6"][0] - 3, after=u0)
    s.unit(A_, A_, False, range(SPLIT[nb]), lambda b: s.done[("t6", b)] + LAT, lambda b: n - 1, None,
           B["t7"][0], n - 3)

def make_mid(nb, J, name, nxt_name, special=False):
    par = J & 1
    X0, X1, A_, B_ = sets_for(par)
    kb = 4 * ((J + 1) & 1)
    s = Seg(nb, name)
    iter_blocks(s, J, False)
    n = len(s.mf); B = s.blk
    u2 = s.unit(X1, X1, False, list(range(SPLIT[nb], nb)), lambda b: 0, lambda b: B["t0"][1] + 2, None, 0, B["t0"][1] - 4)
    iter_units(s, J, u2)
    npair = len(s.pairs)
    nxt = first_pairs_of_iter(nb, J + 1, nxt_name)
    need2 = units_of(J + 1, 0) + (units_of(J + 1, 1) if special else [])
    s.reads(nxt, barrier_before={16: [vwait(units_of(J, 1), 0), barrier()], npair: [vwait(need2, 0), barrier()]})
    g1 = s.bar_gap[16]; g2 = s.bar_gap[npair]
    npar = (J + 1) & 1
    g0 = dma_V(npar, 1) + dma_V(npar, 2) + dma_V(npar, 3) + dma_K(4 * ((J + 2) & 1) + 3)
    c0 = s.chain(g0, 0, B["t0"][1] + 2, dl=g1 - 1)
    if special:
        s.chain(dma_Q(s_mR3, s_qn[1], ("R3",)), g1 + 2, B["t5"][1], e=g1 + 1, dl=g2 - 1, first_dep=c0[-1])
    else:
        g1l = dma_K(kb + 0, wrap=(J & 1) == 1) + dma_K(kb + 1) + dma_K(kb + 2) + dma_V(par, 0)
        last = s.chain(g1l, B["t5"][0] + 8, B["t7"][0], e=g1 + 1, dl=g2 - 1, first_dep=c0[-1])[-1]
        if J & 1:
            s.chain([sop(f"s_sub_u32 {s_cnt}, {s_cnt}, 1"), sop(f"s_cmp_eq_u32 {s_cnt}, 0")], n - 6, n - 3, first_dep=last)
    return s

RL = lambda b: SET(0)[b]
WA = lambda k: wa0 if k == 0 else SET(0)[4 + k]
RA = SET(0)[8]
PK = lambda c, k: O(k >> 1, 4 * c + (k & 1))

def make_last(nb, name):
    J = 7; par = 1
    X0, X1, A_, B_ = sets_for(par)
    s = Seg(nb, name)
    s.qblock("t0", 0, A_, False, 0)
    s.pgen("t2", par, [[(c, d, 0), (c, d + 1, 0)] for c in (0, 1) for d in (0, 2)], X0, X1, False)
    s.pgen("t4", par, [[(c, d, 1), (c, d + 1, 1)] for c in (0, 1) for d in (0, 2)], X0, X1, False)
    s.pblock("t5", par, 2, X0, X1, False, 0)
    s.pblock("t7", par, 3, X0, X1, False, 0)
    n = len(s.mf); B = s.blk
    u2 = s.unit(X1, X1, False, list(range(SPLIT[nb], nb)), lambda b: 0, lambda b: B["t0"][1] + 2, None, 0, B["t0"][1] - 4)
    k1 = B["t4"][0]
    u3 = s.unit(A_, X1, True, range(nb), lambda b: s.done[("t0", b)] + LAT, lambda b: s.first[("P", 1, b)] - 2, B["t5"][0] + 6,
                B["t0"][1] - 2, k1 - 1, add_lo=k1, add_hi=B["t5"][0], after=u2)
    npair = len(s.pairs)
    kR = 12
    s.reads([[]], barrier_before={kR + 2: [waitcnt(None, 0), barrier()], npair: [waitcnt(None, 0), barrier()]})
    gR = s.bar_gap[kR + 2]; g2 = s.bar_gap[npair]
    c2 = s.chain(dma_Q(s_mR2, s_qn[2], ("R2",)), 0, B["t0"][1] - 2)
    def qchain(b, base, unit, tmp, lo, hi, pre, dl=None, first_dep=None):
        ins = pre + q_reads(b, base, unit, tmp)
        nds = s.chain(ins, lo, hi, dl=dl, first_dep=first_dep)
        for k, nd in enumerate(nds[len(pre) + 1:]):
            nd.e = max(nd.e, s.pairs[k // 2][1] + 1)
        return nds
    t0e = B["t0"][1]
    r0 = qchain(0, s_mX, ("X",), vt0, t0e - 10, t0e + 10, [vwait([("X",)])], dl=gR - 5)
    r1 = qchain(1, s_mR3, ("R3",), vt1, t0e + 10, gR - 8, [vwait([("R3",)])], dl=gR - 5, first_dep=r0[-1])
    c3 = s.chain([mark_wait_lds(("q", 0, 7))] + dma_Q(s_mX, s_qn[3], ("X",)), t0e + 16, gR + 4)
    c3[0].deps = [(r0[-1], 5), (c2[-1], 1)]
    refill = [sop(f"s_sub_u32 {s_vptr}, {s_knext}, 32768", wr=[s_vptr])] + dma_K(4) + dma_K(5) + dma_K(6) + dma_V(0, 0)
    c4 = s.chain(refill, gR + 6, n - 8, e=gR + 1, first_dep=c3[-1])
    r2 = s.chain([vwait([("R2",)])] + q_reads(2, s_mR2, ("R2",), vt0), g2 + 2, n - 3, e=g2 + 1, first_dep=r1[-1])
    red = []
    for b in range(nb):
        seq = [valu("v_mov_b32", RL(b), lsum(b)), perm("v_permlane16_swap_b32", lsum(b), RL(b)), valu("v_add_f32", lsum(b), lsum(b), RL(b)),
               valu("v_mov_b32", RL(b), lsum(b)), perm("v_permlane32_swap_b32", lsum(b), RL(b)), valu("v_add_f32", lsum(b), lsum(b), RL(b)),
               valu("v_rcp_f32", RL(b), lsum(b))]
        prev = None
        for k, i in enumerate(seq):
            deps = [(prev, 2 if i.op.startswith("v_permlane") else 0)] if prev else [(x, 0) for x in u3[b][2:]]
            nd = Node(i, deps=deps, ideal=B["t5"][0] + 4 + 3 * k + b); red.append(nd); prev = nd
    ad = [valu("v_xor_b32", WA(k), 32 * k, wa0) for k in (1, 2, 3)]
    ad += [valu("v_mbcnt_lo_u32_b32", RA, -1, 0), valu("v_mbcnt_hi_u32_b32", RA, -1, RA), valu("v_lshl_add_u32", RA, RA, 4, s_mOS)]
    prev = None
    for k, i in enumerate(ad):
        nd = Node(i, deps=[(prev, 0)] if prev else [], ideal=B["t7"][0] + k); red.append(nd); prev = nd
    s.nodes += red
    return s

def mark_wait_lds(tag):
    i = raw("s_nop 0", "nop"); i.need = [tag]; i.is_marker = True
    return i

def make_head(nb, name, nxt_name):
    X0, X1, A_, B_ = sets_for(1)
    s = Seg(nb, name)
    s.qblock("h0", 1, B_, True, 0)
    s.qblock("h1", 2, X0, True, 0)
    s.qblock("h2", 3, A_, False, 0)
    iter_blocks(s, 0, True)
    n = len(s.mf); B = s.blk
    tmp = SET(X1)
    pre = {}; nmc = {}
    for b in range(nb):
        x = Sx(B_, b); ta, tb = tmp[2 * b], tmp[2 * b + 1]
        nmc[b] = tmp[8 + b]
        e = s.done[("h0", b)] + LAT
        seq = [valu("v_max3_f32", ta, x[0], x[1], x[2]), valu("v_max_f32", ta, ta, x[3]), valu("v_mov_b32", tb, ta),
               perm("v_permlane16_swap_b32", ta, tb), valu("v_max_f32", ta, ta, tb), valu("v_mov_b32", tb, ta),
               perm("v_permlane32_swap_b32", ta, tb), valu("v_min_f32", Ct(b)[0], Neg(ta), Neg(tb)),
               valu("v_mul_f32", nmc[b], s_c, Ct(b)[0]),
               valu("v_mov_b32", Ct(b)[1], Ct(b)[0]), valu("v_mov_b32", Ct(b)[2], Ct(b)[0]), valu("v_mov_b32", Ct(b)[3], Ct(b)[0])]
        prev = None; nds = []
        for i in seq:
            d = 2 if (prev is not None and i.op.startswith("v_permlane")) else 0
            nd = Node(i, e=e, dl=B["h2"][0] - 2 + 2 * b, deps=[(prev, d)] if prev else [])
            nds.append(nd); prev = nd
        for k, nd in enumerate(nds): nd.ideal = e + k * 0.7
        z = Node(valu("v_mov_b32", lsum(b), 0), e=0, dl=B["h0"][1], ideal=2 + b)
        s.nodes += nds + [z]
        pre[b] = [nds[8], z]
    t0s = B["t0"][0]; t1s = B["t1"][0]
    u0 = s.unit(B_, B_, False, range(nb), lambda b: s.done[("h0", b)] + LAT, lambda b: t1s - 4, None, B["h1"][0] + 10, B["h2"][0] + 10, pre=pre, fma=nmc)
    u1 = s.unit(X0, B_, True, range(nb), lambda b: s.done[("h1", b)] + LAT, lambda b: t1s - 2, t1s - 2, B["h2"][0] + 10, t0s + 8, pre=pre, after=u0, fma=nmc)
    for nd in s.nodes:
        if nd.ins.text.startswith("v_fma_f32"): nd.dl = min(nd.dl, t0s - 2); nd.ideal = min(nd.ideal, t0s - 6)
    u2 = s.unit(A_, A_, False, range(nb), lambda b: s.done[("h2", b)] + LAT, lambda b: B["t2"][0] - 4, None, t0s + 8, t1s + 2)
    iter_units(s, 0, u2)
    npair = len(s.pairs)
    nxt = first_pairs_of_iter(nb, 1, nxt_name)
    def tb(k, l):
        if opt.diag != 3: return l
        return [raw(f"s_memtime s[{90+4*k}:{91+4*k}]")] + l + [raw(f"s_memtime s[{92+4*k}:{93+4*k}]")]
    s.reads(nxt, barrier_before={12: tb(0, [vwait(units_of(0, 0), 0), barrier()]), 28: tb(1, [vwait(units_of(0, 1), 0), barrier()]),
                                 npair: tb(2, [vwait(units_of(1, 0), 0), barrier()])})
    g0 = s.bar_gap[12]; g1 = s.bar_gap[28]; g2 = s.bar_gap[npair]
    ca = s.chain(dma_V(0, 1) + dma_V(0, 2) + dma_V(0, 3) + dma_K(7), 0, B["h0"][1] + 4, dl=g1 - 30)
    cb = s.chain(dma_K(0) + dma_V(1, 0), B["h1"][1], g0, first_dep=ca[-1])
    cc = s.chain(dma_K(1) + dma_K(2) + dma_V(1, 1) + dma_V(1, 2) + dma_V(1, 3) + dma_K(3), B["t2"][0], g1 + 20, e=g0 + 1, first_dep=cb[-1])
    cd = s.chain(dma_K(4) + dma_K(5) + dma_K(6) + dma_V(0, 0) + dma_Q(s_mX, s_qn[0], ("X",)), B["t5"][0], n - 4, e=g1 + 1, first_dep=cc[-1])
    prev = None
    nd_ = opt.defer
    sts = [(c, k) for c in range(4 - nd_, 4) for k in range(8)]
    lo, hi = 6, min(6 + 5 * len(sts), s.first[("O", 3)] - 4)
    for j, (c, k) in enumerate(sts):
        nd = Node(store(c, k), dl=s.first[("O", c)] - 3, ideal=lo + (hi - lo) * j / len(sts), deps=[(prev, 2)] if prev else [])
        s.nodes.append(nd); prev = nd
    head = [i for p in s.pairs[:3] for i in p[2]]
    return s, head

def perm(op, a, b):
    i = valu(op, a, b, extra_rd=[a], extra_wr=[b]); i.cost = 8
    return i

def acc_read(d, a):
    i = Ins(f"v_accvgpr_read_b32 {d}, {a}", "acc", rd=[a], wr=[d]); return i

def make_epi(nb):
    r = []
    t = SET(0)[9]
    r += [valu("v_max3_f32", t, lsum(0), lsum(1), lsum(2))]
    if nb == 4: r += [valu("v_max_f32", t, t, lsum(3))]
    c_ = valu("v_cmp_ngt_f32", "vcc", hex(L_LIMIT), t); c_.wr.add(('s', 'vcc')); r.append(c_)
    for k in range(8):
        r.append(sop(f"s_add_u32 {s_ok[k]}, {s_ocur}, {k * 4096}", wr=[s_ok[k]]) if k < 2 * nb else sop(f"s_mov_b32 {s_ok[k]}, {OOB:#x}", wr=[s_ok[k]]))
    r += [sop("s_cmp_lg_u64 vcc, 0"), sop(f"s_cselect_b32 {s_t0}, 1, 0"), sop(f"s_lshl_b32 {s_t0}, {s_t0}, {s_pass}"),
          sop(f"s_or_b32 {s_flags}, {s_flags}, {s_t0}")]
    TMP = lambda k: V(48 + 4 * (k % 12), 4)
    cnt = 0
    for c in range(4):
        tiles = [(dbl, b) for dbl in range(4) for b in range(nb)]
        pend = [(c - 1, k) for k in range(2 * nb)] if (c > 0 and c - 1 < 4 - opt.defer) else []
        for j, (dbl, b) in enumerate(tiles):
            o = O(b, 4 * c + dbl)
            if o.k == 'a':
                t4 = TMP(cnt); cnt += 1
                r += [acc_read(t4[i], o[i]) for i in range(4)]
            else: t4 = o
            rlp = V(RL(b).n & ~1, 2); sel = RL(b).n & 1
            for h in range(2):
                r.append(valu("v_pk_mul_f32", t4.sub(2 * h, 2), t4.sub(2 * h, 2), rlp, mods=f"op_sel:[0,{sel}] op_sel_hi:[1,{sel}]"))
            r += [valu("v_cvt_pk_bf16_f32", t4[0], t4[0], t4[1]), valu("v_cvt_pk_bf16_f32", t4[1], t4[2], t4[3])]
            w = ds_write("ds_write_b64", WA(dbl), t4.sub(0, 2), b * 2048, tag=("w", c, j)); w.lds_pw = ("OS",)
            r.append(w)
            if pend and j % 2 == 1:
                cc, k = pend.pop(0)
                st = store(cc, k); st.need = [("o", cc, k)]; r.append(st)
        for k in range(2 * nb):
            i = ds_read("ds_read_b128", PK(c, k), RA, k * 1024, tag=("o", c, k)); i.lds_rd = ("OS",); i.private = True
            r.append(i)
        if c == 1:
            r += [vwait([("X",)])] + q_reads(3, s_mX, ("X",), vt0)
    if opt.defer == 0:
        for k in range(2 * nb):
            st = store(3, k); st.need = [("o", 3, k)]; r.append(st)
    return r

def store(c, k):
    data = PK(c, k)
    i = Ins(f"buffer_store_dwordx4 {data}, {vsto}, {sO}, {s_ok[k]} offen offset:{c * 128} {opt.omod}".rstrip(), "vmem", rd=[data, vsto, sO, s_ok[k]])
    i.wide_store = True; i.data = data.set(); i.vm = True
    return i

def lin(seq, pre=()):
    out = []; q = list(pre)
    for i in seq:
        if i.need:
            idx = -1
            for t in i.need:
                if t in q: idx = max(idx, len(q) - 1 - q[::-1].index(t))
            if idx >= 0:
                n = min(len(q) - 1 - idx, 15)
                out.append(waitcnt(None, n)); q = q[idx + 1:]
        if getattr(i, "lgw", None) is not None: q = q[len(q) - i.lgw:] if i.lgw else []
        if getattr(i, "is_marker", False): continue
        if i.kind == "ds": q.append(i.tag)
        out.append(i)
    return out, q

def flat(gaps, pre, nxt_need):
    out = []; q = list(pre)
    def wf(need):
        nonlocal q
        idx = -1
        for t in need:
            if t in q: idx = max(idx, len(q) - 1 - q[::-1].index(t))
        if idx < 0: return
        n = min(len(q) - 1 - idx, 15)
        out.append(waitcnt(None, n)); q = q[idx + 1:]
    for g, (m, sc, oth) in enumerate(gaps):
        wf(m.need)
        out.append(m)
        has_l0 = any(getattr(i, "lgw", None) == 0 for i in sc)
        if not has_l0:
            wf(gaps[g + 1][0].need if g + 1 < len(gaps) else nxt_need)
        for i in sc + oth:
            if i.need: wf(i.need)
            if getattr(i, "lgw", None) == 0: q = []
            if getattr(i, "is_marker", False): continue
            if i.kind == "ds": q.append(i.tag)
            out.append(i)
    return out, q

def label(n): return Ins(n + ":", "label", states=0, cost=0)

def stamp(k):
    if not opt.diag: return []
    return [raw(f"s_memrealtime {s_ts}"), raw("s_memtime s[66:67]"), raw("s_waitcnt lgkmcnt(0)", "wait0"), raw(f"s_mov_b32 m0, {s_tsp}"), raw("s_nop 1"),
            raw(f"v_writelane_b32 v0, {s_ts.sub(0)}, m0"), raw(f"s_add_u32 m0, m0, 32"), raw("s_nop 1"), raw("v_writelane_b32 v0, s66, m0"),
            raw(f"s_add_u32 {s_tsp}, {s_tsp}, 1")]

def retag(q, old, new):
    return [tuple(new if x == old else x for x in t) if len(t) > 1 else t for t in q]

def variant(nb):
    P = {}
    hd, head = make_head(nb, "hd", "i1")
    i1 = make_mid(nb, 1, "i1", "i2")
    i2 = make_mid(nb, 2, "i2", "i1")
    i6 = make_mid(nb, 6, "i2", "i1", special=True)
    i7 = make_last(nb, "i1")
    SG = dict(hd=hd, i1=i1, i2=i2, i6=i6, i7=i7)
    G = {k: s.build() for k, s in SG.items()}
    print(f"nb={nb} overflow cycles:", {k: s.over for k, s in SG.items()}, file=sys.stderr)
    h, q = lin(head)
    a, q0 = flat(G["hd"], q, G["i1"][0][0].need); P["hd"] = h + a
    P["i1"], q1 = flat(G["i1"], q0, G["i2"][0][0].need)
    P["i2"], q2 = flat(G["i2"], q1, G["i1"][0][0].need)
    assert q2 == q0, (q0, q2)
    P["i6"], q = flat(G["i6"], q1, G["i7"][0][0].need)
    P["i7"], q = flat(G["i7"], q, [])
    P["epi"], q = lin(make_epi(nb), q)
    return P

def resolve_vm(traces):
    ws = set()
    for tr in traces:
        n = 0; last = {}
        for i in tr:
            if getattr(i, "vmneed", None) is not None:
                idx = max([last.get(u, -1) for u in i.vmneed])
                if idx >= 0: i.vmauto = min(i.vmauto, n - 1 - idx)
                ws.add(i)
            if getattr(i, "vm", False):
                u = getattr(i, "dma_wr", None)
                if u: last[u] = n
                n += 1
    for i in ws:
        i.vmw = i.vmauto
        i.text = f"s_waitcnt vmcnt({i.vmw})" + (f" lgkmcnt({i.lgw})" if i.lgw is not None else "")

def check_trace(trace):
    vm = []
    lg = []
    state = {}
    epoch = 0
    ALIAS = {("R2",): [("V", 0, 1), ("V", 0, 2), ("V", 0, 3), ("K", 7)], ("OS",): [("V", 1, c) for c in range(4)],
             ("R3",): [("K", 4), ("K", 5), ("K", 6), ("V", 0, 0)]}
    def phys(u): return ALIAS.get(u, [u])
    wr_land = {}; wr_pend = {}; rd_done = {}; rd_pend = {}; owner = {}
    errs = []
    for k, i in enumerate(trace):
        if getattr(i, "vmw", None) is not None:
            while len(vm) > i.vmw:
                o = vm.pop(0)
                u = getattr(o, "dma_wr", None)
                if u: wr_pend[u] -= 1; wr_land[u] = epoch
        if getattr(i, "lgw", None) is not None or i.kind == "wait0":
            n = 0 if i.kind == "wait0" else i.lgw
            while len(lg) > n:
                o = lg.pop(0)
                u = getattr(o, "lds_rd", None) or getattr(o, "lds_pw", None)
                if u: rd_pend[u] -= 1; rd_done[u] = epoch
        if getattr(i, "bar", False): epoch += 1
        u = getattr(i, "lds_rd", None)
        if u:
            if True:
                if wr_pend.get(u, 0) > 0: errs.append((k, "read of unit with pending DMA", u, i.text))
                elif not getattr(i, "private", False) and wr_land.get(u, 10**9) >= epoch: errs.append((k, "read without barrier after landing", u, i.text))
            for p in phys(u):
                if owner.get(p) != u: errs.append((k, "read of unit owned by", owner.get(p), u, i.text))
        w = getattr(i, "dma_wr", None) or getattr(i, "lds_pw", None)
        if w:
            for p in phys(w):
                o = owner.get(p)
                if o is not None:
                    priv = (o == w and w in (("X",), ("R2",), ("R3",), ("OS",)))
                    if rd_pend.get(o, 0) > 0 and not (getattr(i, "lds_pw", None) and o == w):
                        errs.append((k, "write over unit with reads in flight", o, w, i.text))
                    if not priv and rd_done.get(o, -1) >= epoch: errs.append((k, "write without barrier after reads", o, w, i.text))
                    if o != w and wr_pend.get(o, 0) > 0: errs.append((k, "write over pending dma", o, w))
                    if o != w and wr_land.get(o, -1) >= epoch: errs.append((k, "write over unit landed w/o barrier", o, w))
                owner[p] = w
        if i.kind == "ds":
            lg.append(i)
            u = getattr(i, "lds_rd", None) or getattr(i, "lds_pw", None)
            if u: rd_pend[u] = rd_pend.get(u, 0) + 1
        if getattr(i, "vm", False):
            vm.append(i)
            u = getattr(i, "dma_wr", None)
            if u: wr_pend[u] = wr_pend.get(u, 0) + 1
            assert len(vm) <= 63, "vmcnt overflow"
    return errs

def cross_check(traces):
    ALIAS = {("R2",): [("V", 0, 1), ("V", 0, 2), ("V", 0, 3), ("K", 7)], ("OS",): [("V", 1, c) for c in range(4)],
             ("R3",): [("K", 4), ("K", 5), ("K", 6), ("V", 0, 0)]}
    allg = []
    for tr in traces:
        gens = {}; epoch = 0; vm = []; lg = []
        for i in tr:
            if getattr(i, "vmw", None) is not None:
                while len(vm) > i.vmw:
                    for g in vm.pop(0): g["land"] = epoch
            if getattr(i, "lgw", None) is not None or i.kind == "wait0":
                n = 0 if i.kind == "wait0" else i.lgw
                while len(lg) > n:
                    for g in lg.pop(0): g["done"] = epoch
            if getattr(i, "bar", False): epoch += 1
            w = getattr(i, "dma_wr", None) or getattr(i, "lds_pw", None); r = getattr(i, "lds_rd", None)
            touched = []
            u = w or r
            if u and u != ("X",):
                for p in ALIAS.get(u, [u]):
                    l = gens.setdefault(p, [])
                    if w and (not l or l[-1]["own"] != u or (l[-1]["rd0"] is not None and u not in ALIAS)):
                        l.append(dict(own=u, wr0=epoch, land=10**9, rd0=None, done=-1))
                    g = l[-1]
                    if r and g["rd0"] is None: g["rd0"] = epoch
                    if r or getattr(i, "lds_pw", None): g["done"] = 10**9
                    if getattr(i, "dma_wr", None): g["land"] = 10**9
                    touched.append(g)
            if i.kind == "ds": lg.append(touched)
            if getattr(i, "vm", False): vm.append(touched)
        allg.append((gens, epoch))
    assert len(set(e for _, e in allg)) == 1, "barrier counts differ"
    for p in allg[0][0]:
        n = len(allg[0][0][p])
        assert all(len(g[p]) == n and [x["own"] for x in g[p]] == [x["own"] for x in allg[0][0][p]] for g, _ in allg), ("generations differ", p)
        for k in range(n):
            G = [g[p][k] for g, _ in allg]
            if G[0]["own"] not in ALIAS and G[0]["rd0"] is not None:
                assert max(x["land"] for x in G) < min(x["rd0"] for x in G), ("cross RAW", p, k, G)
            if k + 1 < n:
                N = [g[p][k + 1] for g, _ in allg]
                assert max(x["done"] for x in G) < min(x["wr0"] for x in N), ("cross WAR", p, k, G, N)
                if G[0]["own"] != N[0]["own"] and any(x["land"] != 10**9 or x["rd0"] is not None for x in G) and G[0]["own"] != ("OS",):
                    assert max(x["land"] for x in G) < min(x["wr0"] for x in N), ("cross WAW", p, k, G, N)

THR = {}
def schedule_table(mode):
    tab = {}
    if mode == "simple":
        for wg in range(256):
            x = wg & 7; idx = wg >> 3
            head = x * 16 + (idx >> 1); base = 41 * (idx & 1)
            tab[wg] = [(head, base, 12), (head, base + 12, 16), (head, base + 28, 13)]
    elif mode == "share":
        for x in range(8):
            rounds = [[], [], []]
            def add(r, h, start, sizes):
                for sz in sizes:
                    rounds[r].append((x * 16 + h, start, sz)); start += sz
                return start
            for h in range(10):
                st = add(0, h, 0, [12, 12, 12]); add(1 if h < 6 else 2, h, st, [15, 15, 16])
            st = add(0, 10, 0, [12, 12]); st = add(1, 10, st, [15, 14]); add(2, 10, st, [15, 14])
            for h in range(11, 16):
                add(1 if h < 13 else 2, h, 0, [14, 14, 14, 14, 13, 13])
            assert all(len(r) == 32 for r in rounds), [len(r) for r in rounds]
            for idx in range(32):
                tab[idx * 8 + x] = [rounds[0][idx], rounds[1][idx], rounds[2][idx]]
    elif mode.startswith("g6"):
        orders = {"A": (0, 1, 2), "B": (1, 0, 2), "C": (2, 1, 0), "D": (2, 0, 1)}
        pat = mode.split("_")[1]
        rot = pat.startswith("x"); pat = pat.lstrip("x")
        for x in range(8):
            for g in range(6):
                o = orders[pat[(g + (x if rot else 0)) % len(pat)]] if not pat.startswith("X") else orders["ABC"[x % 3]]
                if g < 5:
                    ha, hb, hc = [x * 16 + 3 * g + i for i in range(3)]
                    r0 = [(ha, 0, 12), (ha, 12, 12), (ha, 24, 12), (hb, 0, 12), (hb, 12, 12), (hb, 24, 12)]
                    r1 = [(ha, 36, 15), (ha, 51, 15), (ha, 66, 16), (hb, 36, 15), (hb, 51, 15), (hb, 66, 16)]
                    r2 = [(hc, 0, 14), (hc, 14, 14), (hc, 28, 13), (hc, 41, 14), (hc, 55, 14), (hc, 69, 13)]
                    n = 6
                else:
                    h = x * 16 + 15
                    r0 = [(h, 0, 12), (h, 12, 12)]; r1 = [(h, 24, 15), (h, 39, 15)]; r2 = [(h, 54, 14), (h, 68, 14)]
                    n = 2
                R = [r0, r1, r2]
                for i in range(n):
                    tab[(6 * g + i) * 8 + x] = [R[o[0]][i], R[o[1]][i], R[o[2]][i]]
    elif mode.startswith("t3"):
        _, lo, so, th = mode.split("_")
        th = [int(x, 16) for x in th.split(".")]
        for x in range(8):
            H = [x * 16 + i for i in range(16)]
            T3 = lambda h: [(h, 0, 12), (h, 12, 12), (h, 24, 12)]
            T4 = lambda h: [(h, 36, 16), (h, 52, 16), (h, 68, 14)]
            for g in range(5):
                a, b, c = H[3 * g], H[3 * g + 1], H[3 * g + 2]
                Lt = {"3": T3(a), "4": T4(a), "5": T4(b)[::-1]}
                St = {"3": T3(c), "2": T3(b), "4": T4(c)}
                lord = lo.split(".")[(g + x) % len(lo.split("."))]; sord = so.split(".")[(g + x) % len(so.split("."))]
                for i in range(3):
                    tab[(6 * g + i) * 8 + x] = [Lt[k][i] for k in lord]
                    tab[(6 * g + 3 + i) * 8 + x] = [St[k][i] for k in sord]
                    THR[(6 * g + 3 + i) * 8 + x] = th[(g + x) % len(th)]
            h = H[15]
            tab[30 * 8 + x] = [(h, 0, 12), (h, 36, 16), (h, 68, 14)]
            tab[31 * 8 + x] = [(h, 12, 12), (h, 52, 16), (h, 24, 12)]
    cov = {}
    for wg, l in tab.items():
        for h, st, n in l:
            assert 12 <= n <= 16
            for b in range(st, st + n):
                assert (h, b) not in cov; cov[(h, b)] = wg
    assert len(cov) == 128 * 82
    return tab

def setup_code():
    L = []; A = L.append
    if opt.diag: A("s_memrealtime s[98:99]")
    A("s_cmp_ge_u32 s2, 256")
    A("s_cbranch_scc1 L_exit")
    A("s_load_dwordx4 s[72:75], s[0:1], 0")
    A("s_load_dwordx4 s[76:79], s[0:1], 16")
    if opt.diag: A("s_load_dwordx2 s[64:65], s[0:1], 40")
    A("s_getpc_b64 s[4:5]")
    A("L_pc:")
    if opt.warm:
        A("s_mov_b32 s6, L_table-L_pc\ns_mov_b32 s7, 0x20000\nv_lshlrev_b32 v16, 7, v0")
        for k in range(opt.warm): A(f"s_mov_b32 s3, {k * 32768}\nbuffer_load_dword v{17 + k}, v16, s[4:7], s3 offen")
    A("s_lshl_b32 s3, s2, 6")
    A("s_add_u32 s3, s3, L_table-L_pc")
    A("s_add_u32 s46, s4, s3")
    A("s_addc_u32 s47, s5, 0")
    A("s_load_dwordx16 s[80:95], s[46:47], 0")
    A(f"v_readfirstlane_b32 {s_wave}, v0")
    A("v_and_b32 v10, 63, v0")
    A(f"s_lshr_b32 {s_wave}, {s_wave}, 6")
    A("v_and_b32 v11, 15, v10")
    A("v_lshrrev_b32 v14, 4, v10")
    A("v_lshrrev_b32 v15, 2, v11\nv_lshlrev_b32 v1, 11, v15\nv_and_b32 v6, 3, v11\nv_lshl_add_u32 v1, v6, 6, v1")
    A("v_lshrrev_b32 v6, 3, v11\nv_lshlrev_b32 v6, 1, v6\nv_xor_b32 v6, v6, v14\nv_lshl_add_u32 v1, v6, 4, v1")
    A("v_lshrrev_b32 v6, 1, v14\nv_lshlrev_b32 v2, 10, v6\nv_and_b32 v7, 1, v14\nv_lshl_add_u32 v6, v7, 2, v15\nv_lshl_add_u32 v2, v6, 6, v2")
    A(f"v_and_b32 v8, 3, v10\nv_lshl_add_u32 v2, v8, 3, v2\nv_lshl_add_u32 v2, v7, 5, v2\nv_add_u32 v2, {VB}, v2\nv_xor_b32 v3, 32, v2")
    A("v_lshlrev_b32 v12, 9, v15\nv_lshl_add_u32 v12, v14, 6, v12\nv_lshl_add_u32 v12, v8, 4, v12\nv_xor_b32 v13, 32, v12\nv_add_u32 v13, 4096, v13")
    A(f"s_lshl_b32 {s_mK}, {s_wave}, 11\ns_lshr_b32 s3, {s_wave}, 1\ns_lshl_b32 s3, s3, 5")
    A(f"v_xor_b32 v4, s3, v12\nv_add_u32 v4, {s_mK}, v4")
    A("v_lshrrev_b32 v6, 2, v10\nv_and_b32 v6, 7, v6\nv_lshlrev_b32 v5, 9, v6\nv_lshrrev_b32 v6, 2, v6\nv_lshlrev_b32 v6, 1, v6\nv_xor_b32 v6, v6, v8")
    A(f"v_lshl_add_u32 v5, v6, 4, v5\nv_lshrrev_b32 v6, 5, v10\nv_lshl_add_u32 v5, v6, 6, v5\ns_lshl_b32 s3, {s_wave}, 13\nv_add_u32 v5, s3, v5")
    A(f"s_add_u32 {s_mX}, s3, {XB}")
    A(f"s_add_u32 {s_mOS}, s3, {vslot_addr(1, 0)}")
    A(f"s_add_u32 {s_mR2}, s3, {vslot_addr(0, 0)}")
    A(f"s_cmp_eq_u32 {s_wave}, 0\ns_cselect_b32 {s_mR2}, {kslot_addr(7)}, {s_mR2}")
    A(f"s_add_u32 {s_mR3}, s3, {kslot_addr(4)}")
    A(f"s_cmp_eq_u32 {s_wave}, 3\ns_cselect_b32 {s_mR3}, {vslot_addr(0, 0)}, {s_mR3}")
    A("v_lshrrev_b32 v6, 1, v14\nv_and_b32 v9, 7, v11\nv_xor_b32 v6, v6, v9\nv_lshlrev_b32 v6, 4, v6\nv_lshl_add_u32 v6, v7, 3, v6")
    A(f"v_lshl_add_u32 v6, v11, 7, v6\nv_add_u32 v15, {s_mOS}, v6")
    A("v_lshrrev_b32 v6, 3, v10\nv_xor_b32 v9, v9, v6\nv_lshlrev_b32 v9, 4, v9\nv_lshl_add_u32 v14, v6, 9, v9")
    A(f"s_mov_b32 {s_c}, {C_SCALE:#x}\ns_mov_b32 {s_pass}, 0\ns_mov_b32 {s_flags}, 0")
    if opt.diag: A(f"s_mov_b32 {s_tsp}, 1\nv_mov_b32 v0, 0")
    A("s_waitcnt lgkmcnt(0)")
    if opt.diag: A("v_writelane_b32 v0, s98, 0")
    for srd, p, n in ((sQ, 72, QBYTES), (sK, 74, KBYTES), (sV, 76, KBYTES), (sO, 78, QBYTES)):
        A(f"s_mov_b32 {srd[0]}, s{p}\ns_mov_b32 {srd[1]}, s{p+1}\ns_mov_b32 {srd[2]}, {n}\ns_mov_b32 {srd[3]}, 0x20000")
    for k in range(8): A(f"s_mov_b32 {s_ok[k]}, {OOB:#x}")
    for p in range(3):
        A(f"s_sub_u32 s3, s{80+3*p+2}, 12")
        A(f"s_min_u32 s4, s3, {s_wave}")
        A(f"s_mul_i32 s5, {s_wave}, 3\ns_add_u32 s4, s4, s5\ns_lshl_b32 s4, s4, 13")
        A(f"s_add_u32 {s_tab[3*p]}, s{80+3*p}, s4")
        A(f"s_mov_b32 {s_tab[3*p+1]}, s{80+3*p+1}")
        A(f"s_cmp_lt_u32 {s_wave}, s3\ns_cselect_b32 {s_tab[3*p+2]}, 4, 3")
    for p in (3, 4):
        A(f"s_mov_b32 {s_tab[3*p]}, {OOB:#x}\ns_mov_b32 {s_tab[3*p+1]}, {OOB:#x}\ns_mov_b32 {s_tab[3*p+2]}, 0")
    for k in range(9): A(f"s_mov_b32 s{80+k}, {s_tab[k]}")
    return L

def startup():
    r = []
    r += [sop(f"s_mov_b32 {s_kptr}, {s_tab[1]}", wr=[s_kptr]), sop(f"s_sub_u32 {s_vptr}, {s_tab[1]}, 32768", wr=[s_vptr])]
    r += [sop(f"s_add_u32 {s_t0}, {s_tab[0]}, 8192", wr=[s_t0]), sop(f"s_add_u32 {s_t1}, {s_tab[0]}, 16384", wr=[s_t1]),
          sop(f"s_add_u32 {s_t2}, {s_tab[0]}, 24576", wr=[s_t2])]
    r += dma_K(1)
    k = 0
    for grp in (dma_Q(s_mX, s_tab[0], ("X",)), dma_Q(s_mR2, s_t0, ("R2",)), dma_Q(s_mOS, s_t1, ("OS",))):
        for hf in (grp[:6], grp[6:]):
            r += hf
            r += [sop(f"s_bitcmp1_b32 s89, {k}"), raw(f"s_cbranch_scc0 L_th{k}"), raw("s_waitcnt vmcnt(0)"), label(f"L_th{k}")]
            k += 1
    r += dma_K(2) + dma_K(3)
    r += dma_K(4) + dma_K(5) + dma_K(6) + dma_V(0, 0)
    r += [vwait([("X",)])] + q_reads(0, s_mX, ("X",), vt0)
    r += [sop(f"s_cmp_lt_u32 {s_tab[2]}, 4"), raw("s_cbranch_scc1 L_noq3")]
    r2 = [waitcnt(None, 0)] + dma_Q(s_mX, s_t2, ("X",))
    r2 += [vwait([("R2",)])] + q_reads(1, s_mR2, ("R2",), vt1) + [vwait([("OS",)])] + q_reads(2, s_mOS, ("OS",), vt0)
    r2 += [vwait([("X",)])] + q_reads(3, s_mX, ("X",), vt1) + [raw("s_branch L_pass")]
    r3 = [vwait([("R2",)])] + q_reads(1, s_mR2, ("R2",), vt1) + [vwait([("OS",)])] + q_reads(2, s_mOS, ("OS",), vt0)
    r3 += [vwait([("K", 1), ("K", 2), ("K", 3)])]
    return r, r2, r3

def pass_begin():
    r = [sop(f"s_mov_b32 {s_ocur}, {s_tab[0]}"),
         sop(f"s_add_u32 {s_kend}, {s_tab[1]}, 262144"),
         sop(f"s_mov_b32 {s_knext}, {s_tab[4]}"),
         sop(f"s_mov_b32 {s_qn[0]}, {s_tab[3]}"),
         sop(f"s_add_u32 {s_qn[1]}, {s_tab[3]}, 8192"), sop(f"s_add_u32 {s_qn[2]}, {s_tab[3]}, 16384"),
         sop(f"s_add_u32 {s_qn[3]}, {s_tab[3]}, 24576"),
         sop(f"s_cmp_lt_u32 {s_tab[5]}, 4"), sop(f"s_cselect_b32 {s_qn[3]}, {OOB:#x}, {s_qn[3]}"),
         sop(f"s_mov_b32 {s_nbn}, {s_tab[2]}")]
    for k in range(9): r.append(sop(f"s_mov_b32 {s_tab[k]}, {s_tab[k+3]}"))
    r += [sop(f"s_mov_b32 {s_cnt}, 3")]
    return r

def main():
    ap = argparse.ArgumentParser()
    ap.add_argument("-o", default="standalone__mha_softmax__near_ridge.s")
    ap.add_argument("--diag", type=int, default=0)
    ap.add_argument("--kvmod", default="")
    ap.add_argument("--qmod", default="")
    ap.add_argument("--omod", default="")
    ap.add_argument("--sched", default="g6_xABC")
    ap.add_argument("--pkmul", type=int, default=1)
    ap.add_argument("--rep", type=int, default=1)
    ap.add_argument("--defer", type=int, default=1)
    ap.add_argument("--warm", type=int, default=2)
    a = ap.parse_args()
    opt.__dict__.update(vars(a)); opt.nextq = 1
    L = []; A = L.append
    hdr = open("standalone__mha_softmax__near_ridge.s.ref").read().split("\n")
    for l in hdr:
        if l.startswith("; @launch"): break
        A(l)
    A(f"; @launch grid=(256,1,1) block=(256,1,1) lds={LDS_BYTES}")
    A('.amdgcn_target "amdgcn-amd-amdhsa--gfx950"')
    A(f".text\n.globl {KNAME}\n.p2align 8\n.type {KNAME},@function\n{KNAME}:")
    L += setup_code()
    def emit(seq):
        for i in seq: L.append(i)
    if opt.rep > 1: A(f"s_mov_b32 s98, {opt.rep}\nL_again:")
    emit(stamp(0))
    s1, s2, s3 = startup()
    s1 = fix_hazards(lin(s1)[0]); s2 = fix_hazards(lin(s2)[0]); s3 = fix_hazards(lin(s3)[0])
    emit(s1); emit(s2); A("L_noq3:"); emit(s3)
    A("L_pass:")
    pb = pass_begin() + [waitcnt(None, 0), barrier()]
    emit(pb)
    emit(stamp(1))
    A(f"s_cmp_eq_u32 {s_nbn}, 3\ns_cbranch_scc1 L_v3")
    VAR = {}
    for nb in (4, 3):
        P = variant(nb)
        hd = fix_hazards(P["hd"])
        b1 = fix_hazards(P["i1"], wrap=hd[-14:])
        b2 = fix_hazards(P["i2"], wrap=b1[-14:])
        b1b = fix_hazards(P["i1"], wrap=b2[-14:])
        assert [x.text for x in b1b] == [x.text for x in b1], "loop entry hazards differ"
        i6 = fix_hazards(P["i6"], wrap=b1[-14:])
        i7 = fix_hazards(P["i7"], wrap=i6[-14:])
        epi = fix_hazards(P["epi"], wrap=i7[-14:])
        VAR[nb] = dict(hd=hd, b1=b1, b2=b2, i6=i6, i7=i7, epi=epi)
        nn = sum(1 for p in VAR[nb].values() for x in p if x.kind == "nop")
        print(f"nb={nb}: sizes", {k: len(v) for k, v in VAR[nb].items()}, "nops", nn, file=sys.stderr)
        A(".p2align 6"); A(f"L_v{nb}:")
        emit(hd)
        emit(stamp(2))
        if opt.diag == 3:
            for k in range(3):
                A(f"s_sub_u32 s66, s{92+4*k}, s{90+4*k}\ns_mul_i32 s67, {s_pass}, 3\ns_add_u32 m0, s67, {20+k}\ns_nop 1\nv_writelane_b32 v0, s66, m0")
        A(f"L_loop{nb}:")
        emit(b1); A(f"s_cbranch_scc1 L_i6_{nb}"); emit(b2); A(f"s_branch L_loop{nb}")
        A(f"L_i6_{nb}:")
        emit(i6); emit(i7)
        emit(stamp(3))
        emit(epi)
        emit(stamp(4))
        A(f"s_add_u32 {s_pass}, {s_pass}, 1\ns_cmp_lt_u32 {s_pass}, 3\ns_cbranch_scc1 L_pass\ns_branch L_done")
    tail = [waitcnt(None, 0)] + [store(c, k) for c in range(4 - opt.defer, 4) for k in range(8)]
    traces = []
    import itertools
    for seqnb in itertools.product((3, 4), repeat=3):
        tr = s1 + (s2 if seqnb[0] == 4 else s3)
        for nb in seqnb:
            v = VAR[nb]
            tr = tr + pb + v["hd"] + (v["b1"] + v["b2"]) * 2 + v["b1"] + v["i6"] + v["i7"] + v["epi"]
        traces.append(tr + tail)
    resolve_vm(traces)
    for tr in traces:
        errs = check_trace(tr)
        if errs:
            for e in errs[:20]: print("SYNC ERR", e, file=sys.stderr)
            raise SystemExit(1)
    cross_check(traces)
    A("L_done:")
    emit(tail)
    if opt.rep > 1:
        A("s_waitcnt vmcnt(0) lgkmcnt(0)\ns_barrier")
        for k in range(9): A(f"s_mov_b32 {s_tab[k]}, s{80+k}")
        A(f"s_mov_b32 {s_pass}, 0\ns_sub_u32 s98, s98, 1\ns_cmp_lg_u32 s98, 0\ns_cbranch_scc1 L_again")
    if opt.diag:
        A("s_waitcnt vmcnt(0)")
        emit(stamp(5))
        A(f"s_mov_b32 s66, 0x1000000\ns_mov_b32 s67, 0x20000")
        A(f"v_mbcnt_lo_u32_b32 v1, -1, 0\nv_mbcnt_hi_u32_b32 v1, -1, v1\nv_lshlrev_b32 v1, 2, v1")
        A(f"s_lshl_b32 s3, s2, 10\ns_lshl_b32 s4, {s_wave}, 8\ns_add_u32 s3, s3, s4")
        A("buffer_store_dword v0, v1, s[64:67], s3 offen")
        if opt.diag == 2:
            A(f"s_or_b32 s3, s2, {s_wave}\ns_cmp_lg_u32 s3, 0\ns_cbranch_scc1 L_exit")
            A("s_load_dwordx2 s[64:65], s[0:1], 32\ns_mov_b32 s66, 256\nv_readlane_b32 s4, v0, 0\nv_readlane_b32 s5, v0, 32\ns_waitcnt lgkmcnt(0)")
            idx = [2, 3, 4, 6, 8, 10, 12, 14]
            for j, k in enumerate(idx):
                A(f"v_readlane_b32 s6, v0, {k}\nv_readlane_b32 s7, v0, {k+32}\ns_sub_u32 s6, s6, s4\ns_sub_u32 s7, s7, s5\ns_nop 1\nv_writelane_b32 v2, s6, {j}\nv_writelane_b32 v2, s7, {j+8}")
            A("s_mov_b64 exec, 0xffff\nbuffer_store_dword v2, v1, s[64:67], 0 offen")
    A("L_exit:")
    A("s_endpgm")
    A(".p2align 6\n.type L_table,@object\nL_table:")
    tab = schedule_table(opt.sched)
    for wg in range(256):
        w = []
        for h, st, n in tab[wg]:
            w += [(h * SQ + st * 16) * 512, h * SK * 512, n]
        w += [THR.get(wg, 0)]
        w += [0] * (16 - len(w))
        A(".long " + ", ".join(str(x) for x in w))
    A(".size L_table, 16384")
    A('.section .rodata,"a"\n.p2align 6')
    A(f".amdhsa_kernel {KNAME}")
    A("  .amdhsa_next_free_vgpr 512\n  .amdhsa_next_free_sgpr 102\n  .amdhsa_accum_offset 256\n  .amdhsa_group_segment_fixed_size 0")
    A("  .amdhsa_kernarg_size 48\n  .amdhsa_user_sgpr_count 2\n  .amdhsa_user_sgpr_kernarg_segment_ptr 1\n  .amdhsa_system_sgpr_workgroup_id_x 1")
    A(".end_amdhsa_kernel")
    open(opt.o, "w").write("\n".join((x if isinstance(x, str) else x.text) for x in L if x is not None) + "\n")

if __name__ == "__main__":
    main()
```

```python
import sys, argparse
from asmlib import *

KNAME = "standalone__mha_softmax__near_ridge_kernel"
NH, SQ, SK, D = 128, 1312, 512, 256
QBYTES = NH * SQ * D * 2
KBYTES = NH * SK * D * 2
OOB = 0x7fff0000
VB = 65536
XB = 131072
LDS_BYTES = 163840
C_SCALE = 0x3db8aa3b
L_LIMIT = 0x4e800000

sQ, sK, sV, sO = S(8, 4), S(12, 4), S(16, 4), S(20, 4)
s_wave = S(24)
s_mK = S(25)
s_mX = S(26)
s_mR2 = S(27)
s_mOS = S(28)
s_kptr, s_kend, s_knext = S(29), S(30), S(31)
s_vptr, s_vptr2, s_vend = S(32), S(33), S(34)
s_c = S(35)
s_cnt = S(36)
s_pass = S(37)
s_flags = S(38)
s_qn = [S(40), S(41), S(42), S(43)]
s_ocur = S(44)
s_t0, s_t1, s_t2 = S(45), S(46), S(47)
s_tab = S(48, 16)
s_dbg = S(64, 4)
s_ts = S(68, 2)
s_nbn = S(70)
s_tsp = S(71)
s_mR3 = S(39)
s_tq, s_tk, s_tv, s_xm, s_xq = S(90), S(91), S(92), S(93), S(94)
s_ok = [S(72 + k) for k in range(8)]
kaddr, vaddr0, vaddr1, voK, voV = V(1), V(2), V(3), V(4), V(5)
lsum = lambda b: V(6 + b)
vt0, vt1 = V(10), V(11)
voQa, voQb = V(12), V(13)
vsto, wa0 = V(14), V(15)
Ct = lambda b: V(16 + 4 * b, 4)
SET = lambda i: V(32 + 16 * i, 16)
Sx = lambda i, b: SET(i).sub(4 * b, 4)
Q = lambda b, s: AG(b * 32 + s * 4, 4)
NF = 8
F = lambda i: AG(128 + 4 * (i % NF), 4)
def O(b, db):
    t = db * 4 + b
    return V(96 + 4 * t, 4) if t < 40 else AG(160 + 4 * (t - 40), 4)

M0 = ('m0', 0)
def set_m0(base, off):
    i = salu(f"s_add_u32 m0, {base}, {off}", rd=[base]); i.wr = {M0}; return i
def sop(text, rd=(), wr=()): return salu(text, rd=rd, wr=wr)

class Opt: pass
opt = Opt()

def dma(vo, srd, soff, imm, unit, mods):
    i = Ins(f"buffer_load_dwordx4 {vo}, {srd}, {soff} offen offset:{imm} {mods} lds".replace("  ", " "), "vmem", rd=[vo, srd, soff])
    i.rd.add(M0); i.dma_wr = unit; i.vm = True
    return i

def kslot_addr(slot): return slot * 8192
def vslot_addr(par, c): return VB + (par * 4 + c) * 8192

def dma_K(slot, wrap=False):
    r = []
    for dh in range(2):
        r.append(set_m0(s_mK, kslot_addr(slot) + dh * 768))
        r.append(dma(voK, sK, s_kptr, dh * 256, ("K", slot), opt.kvmod))
    r.append(sop(f"s_add_u32 {s_kptr}, {s_kptr}, 8192", rd=[s_kptr], wr=[s_kptr]))
    if wrap:
        r.append(sop(f"s_cmp_eq_u32 {s_kptr}, {s_kend}", rd=[s_kptr, s_kend]))
        r[-1].glue = True
        r.append(sop(f"s_cselect_b32 {s_kptr}, {s_knext}, {s_kptr}", rd=[s_kptr, s_knext], wr=[s_kptr]))
    return r

def dma_V(par, c, wrap=False):
    r = []
    if c == 0:
        r.append(sop(f"s_add_u32 {s_vptr}, {s_vptr}, 32768", rd=[s_vptr], wr=[s_vptr]))
        if wrap:
            r.append(sop(f"s_cmp_eq_u32 {s_vptr}, {s_vend}", rd=[s_vptr, s_vend]))
            r[-1].glue = True
            r.append(sop(f"s_cselect_b32 {s_vptr}, {s_knext}, {s_vptr}", rd=[s_vptr, s_knext], wr=[s_vptr]))
        r.append(sop(f"s_add_u32 {s_vptr2}, {s_vptr}, 4096", rd=[s_vptr], wr=[s_vptr2]))
    for e in range(2):
        r.append(set_m0(s_mK, vslot_addr(par, c) + e * 1024 - c * 128))
        r.append(dma(voV, sV, s_vptr2 if e else s_vptr, c * 128, ("V", par, c), opt.kvmod))
    return r

def dma_Q(base, soff, unit):
    r = []
    for hi in range(2):
        for dh in range(2):
            r.append(set_m0(base, hi * 4096 + dh * 768))
            for Rl in range(2):
                r.append(dma(voQb if hi else voQa, sQ, soff, Rl * 2048 + dh * 256, unit, opt.qmod))
    return r

def q_reads(b, base_sgpr, unit, tmp):
    r = [valu("v_add_u32", tmp, base_sgpr, kaddr)]
    for s in range(8):
        i = ds_read("ds_read_b128", Q(b, s), tmp, s * 256, tag=("q", b, s)); i.lds_rd = unit; i.private = True
        r.append(i)
    return r

def waitcnt(vm=None, lgkm=None):
    t = "s_waitcnt" + (f" vmcnt({vm})" if vm is not None else "") + (f" lgkmcnt({lgkm})" if lgkm is not None else "")
    i = raw(t, "wait"); i.vmw = vm; i.lgw = lgkm
    return i
def vwait(units, lgkm=None):
    i = raw("s_waitcnt ?", "wait"); i.vmneed = list(units); i.vmw = None; i.lgw = lgkm; i.vmauto = 63
    return i
def barrier():
    i = raw("s_barrier", "misc"); i.bar = True; return i

class Seg:
    def __init__(self, nb, name):
        self.nb = nb; self.name = name
        self.mf = []; self.nodes = []
        self.pairs = []
        self.blk = {}
        self.fixed = {}
        self.done = {}
        self.first = {}

    def qblock(self, name, slot, dst, czero, fbase):
        nb = self.nb; st = len(self.mf)
        for sp in range(4):
            p0 = len(self.mf)
            tags = [("f", self.name, name, 2 * sp + e) for e in range(2)]
            for b in range(nb):
                for e in range(2):
                    s = 2 * sp + e
                    d = Sx(dst, b)
                    c = d if s else (0 if czero else Ct(b))
                    self.mf.append(mfma(d, F(fbase + s), Q(b, s), c, need=tags))
                    self.done[(name, b)] = len(self.mf) - 1
            rd = []
            for e in range(2):
                s = 2 * sp + e
                i = ds_read("ds_read_b128", F(fbase + s), kaddr, kslot_addr(slot) + s * 256, tag=tags[e]); i.lds_rd = ("K", slot)
                rd.append(i)
            self.pairs.append((p0, len(self.mf) - 1, rd))
        self.blk[name] = (st, len(self.mf))

    def pblock(self, name, par, c, x0, x1, czero, fbase):
        self.pgen(name, par, [[(c, dbl, 0), (c, dbl, 1)] for dbl in range(4)], x0, x1, czero)

    def pgen(self, name, par, prs, x0, x1, czero):
        nb = self.nb; st = len(self.mf)
        for pi, pr in enumerate(prs):
            p0 = len(self.mf)
            fb = 2 * len(self.pairs)
            tags = [("f", self.name, name, 2 * pi + e) for e in range(2)]
            for b in range(nb):
                for e, (c, dbl, ks) in enumerate(pr):
                    o = O(b, 4 * c + dbl)
                    cc = 0 if (czero and ks == 0) else o
                    self.first.setdefault(("P", ks, b), len(self.mf))
                    self.first.setdefault(("O", c), len(self.mf))
                    self.mf.append(mfma(o, F(fb + e), Sx(x1 if ks else x0, b), cc, need=tags))
            rd = []
            for e, (c, dbl, ks) in enumerate(pr):
                f = F(fb + e)
                va = vaddr1 if (dbl & 1) else vaddr0
                off = vslot_addr(par, c) - VB + ks * 4096 + (dbl >> 1) * 512
                for j4 in range(2):
                    i = ds_read("ds_read_b64_tr_b16", f.sub(2 * j4, 2), va, off + j4 * 2048, tag=tags[e] if j4 else ("x",))
                    i.lds_rd = ("V", par, c)
                    rd.append(i)
            self.pairs.append((p0, len(self.mf) - 1, rd))
        self.blk[name] = (st, len(self.mf))

    def unit(self, src, even_set, odd, blocks, e_of, dl_crit, dl_add, lo, hi, add_lo=None, add_hi=None, pre=None, after=None, fma=None):
        crit = []; adds = []; res = {}
        for b in blocks:
            x = Sx(src, b); ev = Sx(even_set, b)
            ms = []
            for i in range(4):
                deps = [(n, 0) for n in pre[b]] if pre else []
                ins = valu("v_fma_f32", x[i], x[i], s_c, fma[b]) if fma else valu("v_mul_f32", x[i], s_c, x[i])
                ms.append(Node(ins, e=e_of(b), dl=dl_crit(b), deps=deps))
            ex = [Node(valu("v_exp_f32", x[i], x[i]), e=e_of(b), dl=dl_crit(b), deps=[(ms[i], 0)]) for i in range(4)]
            ad = []
            for i in range(4):
                deps = [(ex[i], 1)] + ([(ad[-1], 0)] if ad else [])
                ad.append(Node(valu("v_add_f32", lsum(b), lsum(b), x[i]), e=e_of(b), dl=(dl_add if odd else dl_crit(b)), deps=deps))
            aft = [(n, 0) for n in (after or {}).get(b, [])]
            if odd:
                c0 = Node(valu("v_cvt_pk_bf16_f32", ev[2], x[0], x[1]), e=e_of(b), dl=dl_crit(b), deps=[(ex[0], 1), (ex[1], 1)] + aft)
                c1 = Node(valu("v_cvt_pk_bf16_f32", ev[3], x[2], x[3]), e=e_of(b), dl=dl_crit(b), deps=[(ex[2], 1), (ex[3], 1)] + aft)
                crit += [ms[0], ms[1], ex[0], ex[1], ms[2], ms[3], ex[2], ex[3], c0, c1]
                adds += ad
            else:
                c0 = Node(valu("v_cvt_pk_bf16_f32", x[0], x[0], x[1]), e=e_of(b), dl=dl_crit(b), deps=[(ex[0], 1), (ex[1], 1), (ad[0], 0)])
                c1 = Node(valu("v_cvt_pk_bf16_f32", x[1], x[2], x[3]), e=e_of(b), dl=dl_crit(b), deps=[(ex[2], 1), (ex[3], 1), (ad[1], 0), (c0, 0)])
                crit += [ms[0], ms[1], ex[0], ex[1], ms[2], ms[3], ex[2], ex[3], ad[0], ad[1], ad[2], ad[3], c0, c1]
            res[b] = [c0, c1] + ad
        spread(crit, lo, hi)
        if adds: spread(adds, add_lo if add_lo is not None else lo, add_hi if add_hi is not None else hi)
        self.nodes += crit + adds
        return res

    def chain(self, instrs, lo, hi, e=None, dl=None, first_dep=None):
        prev = first_dep; out = []
        for i in instrs:
            gapd = 0
            if prev is not None:
                pk = prev.ins.kind
                gapd = 1
                if pk == "ds" and i.kind == "ds": gapd = 0
            n = Node(i, e=lo if e is None else e, dl=(10**9 if dl is None else dl), deps=[(prev, gapd)] if prev else [])
            out.append(n); prev = n
        k = len(out)
        for j, n in enumerate(out): n.ideal = lo + (hi - lo) * j / max(k, 1)
        self.nodes += out
        return out

    def reads(self, nxt_pairs, skip_first=3, barrier_before=()):
        pairs = self.pairs; ext = [p[2] for p in pairs] + list(nxt_pairs)
        prev = None
        plen = 2 * self.nb
        for k in range(skip_first, len(ext)):
            j = k - 4
            e = pairs[j][1] if j >= 0 else 0
            if k in barrier_before:
                g = e - 1 if j >= 0 else 0
                self.fixed[g] = barrier_before[k]
                self.bar_gap = getattr(self, "bar_gap", {}); self.bar_gap[k] = g
                e = g + 1
            dl = e + plen - 2
            if (k + 1) in barrier_before: dl = e + 1
            for i in ext[k]:
                n = Node(i, e=e, dl=min(dl, len(self.mf) - 1), ideal=e - 2, deps=[(prev, 0)] if prev else [])
                self.nodes.append(n); prev = n

    def build(self, nxt_first=None):
        n = len(self.mf)
        ft = set(); seen = set()
        for g, m in enumerate(self.mf):
            key = tuple(m.need)
            if key not in seen:
                seen.add(key)
                if g > 0: ft.add(g - 1)
        ft.add(n - 1)
        blocked = {}
        for g in self.fixed: ft.add(g); blocked[g] = 8
        gaps, over = schedule2(self.mf, self.nodes, free_taken=ft, blocked=blocked)
        for g, ins in self.fixed.items():
            gaps[g][1][0:0] = ins
        self.over = over
        if getattr(opt, "show", 0):
            cost = lambda i: 8 if i.kind == "vmem" else i.cost
            for nme, (a, b) in self.blk.items():
                row = ""
                for g in range(a, b):
                    u = sum(cost(i) for i in gaps[g][2]) + 4 * max(0, len(gaps[g][1]) - (0 if g in ft and g not in self.fixed else 1))
                    row += "B" if g in self.fixed else (str(u // 4) if u < 40 else "#")
                print(f"  nb{self.nb} {self.name} {nme}: {row}", file=sys.stderr)
        return gaps

def sets_for(par):
    return (0, 1, 2, 3) if par == 0 else (3, 2, 1, 0)

def first_pairs_of_iter(nb, J, name):
    s = Seg(nb, name); par = J & 1
    X0, X1, A_, B_ = sets_for(par)
    s.qblock("t0", 4 * ((J + 1) & 1), A_, False, 0)
    return [p[2] for p in s.pairs[:3]]

SPLIT = {4: 3, 3: 2}

LAT = 4
def units_of(J, h):
    par = J & 1; kb = 4 * ((J + 1) & 1)
    return [("K", kb), ("K", kb + 1), ("K", kb + 2), ("V", par, 0)] if h == 0 else [("V", par, 1), ("V", par, 2), ("V", par, 3), ("K", kb + 3)]

def iter_blocks(s, J, cz, split=0):
    par = J & 1
    X0, X1, A_, B_ = sets_for(par)
    kb = 4 * ((J + 1) & 1)
    s.qblock("t0", kb + 0, A_, False, 0)
    s.qblock("t1", kb + 1, B_, False, 0)
    if split == 2:
        s.pgen("t2", par, [[(0, 0, 0), (0, 1, 0)], [(0, 2, 0), (0, 3, 0)], [(0, 0, 1), (0, 1, 1)], [(0, 2, 1), (0, 3, 1)]], X0, X1, cz)
    elif split == 1:
        s.pgen("t2", par, [[(0, 0, 0), (0, 1, 0)], [(0, 0, 1), (0, 1, 1)], [(0, 2, 0), (0, 2, 1)], [(0, 3, 0), (0, 3, 1)]], X0, X1, cz)
    else:
        s.pblock("t2", par, 0, X0, X1, cz, 0)
    s.qblock("t3", kb + 2, A_, False, 0)
    s.pblock("t4", par, 1, X0, X1, cz, 0)
    s.pblock("t5", par, 2, X0, X1, cz, 0)
    s.qblock("t6", kb + 3, A_, False, 0)
    s.pblock("t7", par, 3, X0, X1, cz, 0)

def iter_units(s, J, u2, lo3=None):
    nb = s.nb; B = s.blk; n = len(s.mf)
    X0, X1, A_, B_ = sets_for(J & 1)
    p0s = s.first[("P", 1, 0)] - 1
    s.unit(A_, X1, True, range(nb), lambda b: s.done[("t0", b)] + LAT, lambda b: s.first[("P", 1, b)] - 2, B["t3"][0] - 2,
           lo3 if lo3 is not None else B["t0"][1] - 2, p0s - 1, add_lo=p0s, add_hi=B["t3"][0] - 4, after=u2)
    u0 = s.unit(B_, B_, False, range(nb), lambda b: s.done[("t1", b)] + LAT, lambda b: B["t4"][0] + 4, None,
                p0s + 2, B["t4"][0] - 2)
    s.unit(A_, B_, True, range(nb), lambda b: s.done[("t3", b)] + LAT, lambda b: B["t6"][0] - 2, B["t6"][0] - 2,
           B["t4"][0], B["t6"][0] - 4, add_lo=B["t4"][0] + 4, add_hi=B["t6"][0] - 3, after=u0)
    s.unit(A_, A_, False, range(SPLIT[nb]), lambda b: s.done[("t6", b)] + LAT, lambda b: n - 1, None,
           B["t7"][0], n - 3)

def make_mid(nb, J, name, nxt_name, special=False):
    par = J & 1
    X0, X1, A_, B_ = sets_for(par)
    kb = 4 * ((J + 1) & 1)
    s = Seg(nb, name)
    iter_blocks(s, J, False, split=(1 if nb == 3 else 0))
    n = len(s.mf); B = s.blk
    u2 = s.unit(X1, X1, False, list(range(SPLIT[nb], nb)), lambda b: 0, lambda b: B["t0"][1] + 2, None, 0, B["t0"][1] - 4)
    iter_units(s, J, u2)
    npair = len(s.pairs)
    nxt = first_pairs_of_iter(nb, J + 1, nxt_name)
    need2 = units_of(J + 1, 0) + (units_of(J + 1, 1) if special else [])
    s.reads(nxt, barrier_before={16: [vwait(units_of(J, 1), 0), barrier()], npair: [vwait(need2, 0), barrier()]})
    g1 = s.bar_gap[16]; g2 = s.bar_gap[npair]
    npar = (J + 1) & 1
    if opt.spread:
        gg = [dma_V(npar, 1), dma_V(npar, 2), dma_V(npar, 3), dma_K(4 * ((J + 2) & 1) + 3)]
        k0 = 3
        c0 = s.chain(sum(gg[:k0], []), 2, B["t0"][1] + 2, dl=g1 - 1)
        c0 = s.chain(sum(gg[k0:], []), B["t2"][0] + 10, g1 - 2, dl=g1 - 1, first_dep=c0[-1])
        lo1, hi1 = (g1 + 14, g2 - 4) if nb == 4 else (B["t4"][0] + 14, g2 + 2)
    else:
        g0 = dma_V(npar, 1) + dma_V(npar, 2) + dma_V(npar, 3) + dma_K(4 * ((J + 2) & 1) + 3)
        c0 = s.chain(g0, 0, B["t0"][1] + 2, dl=g1 - 1)
        lo1, hi1 = B["t5"][0] + 8, B["t7"][0]
    if special:
        s.chain(dma_Q(s_mR3, s_qn[1], ("R3",)), g1 + 2, B["t6"][1], e=g1 + 1, dl=g2 - 1, first_dep=c0[-1])
    else:
        g1l = dma_K(kb + 0, wrap=(J & 1) == 1) + dma_K(kb + 1)
        if J & 1:
            if opt.touch: g1l += touch(sQ, s_tq, 8192) + touch(sK, s_tk, 32768)
        else:
            if opt.touch: g1l += touch(sV, s_tv, 32768)
            for hi in range(2):
                g1l.append(set_m0(s_xm, hi * 4096))
                g1l += [dma(voQb if hi else voQa, sQ, s_xq, Rl * 2048, ("X",), opt.qmod) for Rl in range(2)]
            g1l += [sop(f"s_add_u32 {s_xm}, {s_xm}, 1024", wr=[s_xm]), sop(f"s_add_u32 {s_xq}, {s_xq}, 256", wr=[s_xq])]
        g1l += dma_K(kb + 2) + dma_V(par, 0)
        last = s.chain(g1l, lo1, hi1, e=g1 + 1, dl=g2 - 1, first_dep=c0[-1])[-1]
        if J & 1:
            s.chain([sop(f"s_sub_u32 {s_cnt}, {s_cnt}, 1"), sop(f"s_cmp_eq_u32 {s_cnt}, 0")], n - 6, n - 3, first_dep=last)
    return s

def touch(srd, sp, step):
    i = Ins(f"buffer_load_dword {vt0}, {vt1}, {srd}, {sp} offen", "vmem", rd=[vt1, srd, sp], wr=[vt0]); i.vm = True
    return [i, sop(f"s_add_u32 {sp}, {sp}, {step}", rd=[sp], wr=[sp])]

RL = lambda b: SET(0)[b]
WA = lambda k: wa0 if k == 0 else SET(0)[4 + k]
RA = SET(0)[8]
PK = lambda c, k: O(k >> 1, 4 * c + (k & 1))

def make_last(nb, name):
    J = 7; par = 1
    X0, X1, A_, B_ = sets_for(par)
    s = Seg(nb, name)
    s.qblock("t0", 0, A_, False, 0)
    s.pgen("t2", par, [[(c, d, 0), (c, d + 1, 0)] for c in (0, 1) for d in (0, 2)], X0, X1, False)
    s.pgen("t4", par, [[(c, d, 1), (c, d + 1, 1)] for c in (0, 1) for d in (0, 2)], X0, X1, False)
    s.pblock("t5", par, 2, X0, X1, False, 0)
    s.pblock("t7", par, 3, X0, X1, False, 0)
    n = len(s.mf); B = s.blk
    u2 = s.unit(X1, X1, False, list(range(SPLIT[nb], nb)), lambda b: 0, lambda b: B["t0"][1] + 2, None, 0, B["t0"][1] - 4)
    k1 = B["t4"][0]
    u3 = s.unit(A_, X1, True, range(nb), lambda b: s.done[("t0", b)] + LAT, lambda b: s.first[("P", 1, b)] - 2, B["t5"][0] + 6,
                B["t0"][1] - 2, k1 - 1, add_lo=k1, add_hi=B["t5"][0], after=u2)
    npair = len(s.pairs)
    kR = 12
    s.reads([[]], barrier_before={kR + 2: [waitcnt(None, 0), barrier()], npair: [waitcnt(None, 0), barrier()]})
    gR = s.bar_gap[kR + 2]; g2 = s.bar_gap[npair]
    c2 = s.chain(dma_Q(s_mR2, s_qn[2], ("R2",)), 0, B["t0"][1] - 2)
    def qchain(b, base, unit, tmp, lo, hi, pre, dl=None, first_dep=None):
        ins = pre + q_reads(b, base, unit, tmp)
        nds = s.chain(ins, lo, hi, dl=dl, first_dep=first_dep)
        for k, nd in enumerate(nds[len(pre) + 1:]):
            nd.e = max(nd.e, s.pairs[k // 2][1] + 1)
        return nds
    t0e = B["t0"][1]
    r0 = qchain(0, s_mX, ("X",), vt0, t0e - 10, t0e + 10, [vwait([("X",)])], dl=gR - 5)
    r1 = qchain(1, s_mR3, ("R3",), vt1, t0e + 10, gR - 8, [vwait([("R3",)])], dl=gR - 5, first_dep=r0[-1])
    c3 = s.chain([mark_wait_lds(("q", 0, 7))] + dma_Q(s_mX, s_qn[3], ("X",)), t0e + 16, gR + 4)
    c3[0].deps = [(r0[-1], 5), (c2[-1], 1)]
    refill = [sop(f"s_sub_u32 {s_vptr}, {s_knext}, 32768", wr=[s_vptr])] + dma_K(4) + dma_K(5) + dma_K(6) + dma_V(0, 0)
    c4 = s.chain(refill, gR + 4, g2 - 2, e=gR + 1, first_dep=c3[-1])
    r2 = s.chain([vwait([("R2",)])] + q_reads(2, s_mR2, ("R2",), vt0), g2 - 16, g2 - 6, dl=g2 - 4, first_dep=r1[-1])
    nca = opt.ca7
    grp = [dma_V(0, 1), dma_V(0, 2), dma_V(0, 3), dma_K(7)]
    c5 = s.chain(sum(grp[:nca], []), g2 + 1, n - 2, e=g2 + 1, first_dep=c4[-1]) if nca else c4
    ok = [sop(f"s_add_u32 {s_ok[k]}, {s_ocur}, {k * 4096}", wr=[s_ok[k]]) if (k < 2 * nb and not opt.nostore) else sop(f"s_mov_b32 {s_ok[k]}, {OOB:#x}", wr=[s_ok[k]]) for k in range(8)]
    k0 = s.chain(ok, 4, t0e + 8)
    k1 = s.chain(pass_begin(), gR + 6, n - 4, first_dep=k0[-1])
    k1[0].deps += [(c3[-1], 1), (c4[0], 1)]
    red = []
    for b in range(nb):
        seq = [valu("v_mov_b32", RL(b), lsum(b)), perm("v_permlane16_swap_b32", lsum(b), RL(b)), valu("v_add_f32", lsum(b), lsum(b), RL(b)),
               valu("v_mov_b32", RL(b), lsum(b)), perm("v_permlane32_swap_b32", lsum(b), RL(b)), valu("v_add_f32", lsum(b), lsum(b), RL(b)),
               valu("v_rcp_f32", RL(b), lsum(b))]
        prev = None
        for k, i in enumerate(seq):
            deps = [(prev, 2 if i.op.startswith("v_permlane") else 0)] if prev else [(x, 0) for x in u3[b][2:]]
            nd = Node(i, deps=deps, ideal=B["t5"][0] + 4 + 3 * k + b); red.append(nd); prev = nd
    ad = [valu("v_xor_b32", WA(k), 32 * k, wa0) for k in (1, 2, 3)]
    ad += [valu("v_mbcnt_lo_u32_b32", RA, -1, 0), valu("v_mbcnt_hi_u32_b32", RA, -1, RA), valu("v_lshl_add_u32", RA, RA, 4, s_mOS)]
    prev = None
    for k, i in enumerate(ad):
        nd = Node(i, deps=[(prev, 0)] if prev else [], ideal=B["t7"][0] + k); red.append(nd); prev = nd
    s.nodes += red
    return s

def mark_wait_lds(tag):
    i = raw("s_nop 0", "nop"); i.need = [tag]; i.is_marker = True
    return i

def make_head(nb, name, nxt_name):
    X0, X1, A_, B_ = sets_for(1)
    s = Seg(nb, name)
    s.qblock("h0", 1, B_, True, 0)
    s.qblock("h1", 2, X0, True, 0)
    s.qblock("h2", 3, A_, False, 0)
    iter_blocks(s, 0, True, split=2)
    n = len(s.mf); B = s.blk
    tmp = SET(X1)
    pre = {}; nmc = {}
    for b in range(nb):
        x = Sx(B_, b); ta, tb = tmp[2 * b], tmp[2 * b + 1]
        nmc[b] = tmp[8 + b]
        e = s.done[("h0", b)] + LAT
        seq = [valu("v_max3_f32", ta, x[0], x[1], x[2]), valu("v_max_f32", ta, ta, x[3]), valu("v_mov_b32", tb, ta),
               perm("v_permlane16_swap_b32", ta, tb), valu("v_max_f32", ta, ta, tb), valu("v_mov_b32", tb, ta),
               perm("v_permlane32_swap_b32", ta, tb), valu("v_min_f32", Ct(b)[0], Neg(ta), Neg(tb)),
               valu("v_mul_f32", nmc[b], s_c, Ct(b)[0]),
               valu("v_mov_b32", Ct(b)[1], Ct(b)[0]), valu("v_mov_b32", Ct(b)[2], Ct(b)[0]), valu("v_mov_b32", Ct(b)[3], Ct(b)[0])]
        prev = None; nds = []
        for i in seq:
            d = 2 if (prev is not None and i.op.startswith("v_permlane")) else 0
            nd = Node(i, e=e, dl=B["h2"][0] - 2 + 2 * b, deps=[(prev, d)] if prev else [])
            nds.append(nd); prev = nd
        for k, nd in enumerate(nds): nd.ideal = e + k * 0.7
        z = Node(valu("v_mov_b32", lsum(b), 0), e=0, dl=B["h0"][1], ideal=2 + b)
        s.nodes += nds + [z]
        pre[b] = [nds[8], z]
    t0s = B["t0"][0]; t1s = B["t1"][0]
    u0 = s.unit(B_, B_, False, range(nb), lambda b: s.done[("h0", b)] + LAT, lambda b: t1s - 4, None, B["h1"][0] + 10, B["h2"][0] + 14, pre=pre, fma=nmc)
    u1 = s.unit(X0, B_, True, range(nb), lambda b: s.done[("h1", b)] + LAT, lambda b: t1s - 2, t1s - 2, B["h2"][0] + 14, t0s + 16, pre=pre, after=u0, fma=nmc)
    for nd in s.nodes:
        if nd.ins.text.startswith("v_fma_f32"): nd.dl = min(nd.dl, t0s - 2); nd.ideal = min(nd.ideal, t0s - 6)
    u2 = s.unit(A_, A_, False, range(nb), lambda b: s.done[("h2", b)] + LAT, lambda b: s.first[("P", 1, b)] - 4, None, t0s + 16, t1s + 14)
    iter_units(s, 0, u2, lo3=t1s + 14)
    prev = None
    for k, i in enumerate([valu("v_mbcnt_lo_u32_b32", vt1, -1, 0), valu("v_mbcnt_hi_u32_b32", vt1, -1, vt1), valu("v_lshlrev_b32", vt1, 7, vt1)]):
        nd = Node(i, deps=[(prev, 0)] if prev else [], ideal=8 + k); s.nodes.append(nd); prev = nd
    npair = len(s.pairs)
    nxt = first_pairs_of_iter(nb, 1, nxt_name)
    def tb(k, l):
        if opt.diag != 3: return l
        return [raw(f"s_memtime s[{90+4*k}:{91+4*k}]")] + l + [raw(f"s_memtime s[{92+4*k}:{93+4*k}]")]
    s.reads(nxt, barrier_before={12: tb(0, [vwait(units_of(0, 0), 0), barrier()]), 28: tb(1, [vwait(units_of(0, 1), 0), barrier()]),
                                 npair: tb(2, [vwait(units_of(1, 0), 0), barrier()])})
    g0 = s.bar_gap[12]; g1 = s.bar_gap[28]; g2 = s.bar_gap[npair]
    grp = [dma_V(0, 1), dma_V(0, 2), dma_V(0, 3), dma_K(7)][opt.ca7:] + [dma_K(0), dma_V(1, 0), dma_V(1, 1), dma_V(1, 2), dma_V(1, 3)]
    ca = s.chain(sum(grp[:4], []), 0, B["h0"][1] + 2, dl=g1 - 30)
    rest = grp[4:]
    nearly = max(0, len(rest) - 3 + min(3, opt.ca7)) if False else max(0, 6 - opt.ca7 - 4)
    cb = s.chain(sum(rest[:nearly], []) + dma_K(1) + dma_K(2), B["t1"][0], B["t4"][0], e=g0 + 1, first_dep=ca[-1])
    cc = s.chain(sum(rest[nearly:], []) + dma_K(3), B["t4"][0] + 8, B["t6"][0] + 4, first_dep=cb[-1])
    cd = s.chain(dma_K(4) + dma_K(5) + dma_K(6) + dma_V(0, 0), B["t6"][0] + 6, n - 4, e=g1 + 1, first_dep=cc[-1])
    prev = None
    nd_ = opt.defer
    sts = [(c, k) for c in range(4 - nd_, 4) for k in range(8)]
    lo, hi = 6, min(6 + 5 * len(sts), s.first[("O", 3)] - 4)
    for j, (c, k) in enumerate(sts):
        nd = Node(store(c, k), dl=s.first[("O", c)] - 3, ideal=lo + (hi - lo) * j / len(sts), deps=[(prev, 2)] if prev else [])
        s.nodes.append(nd); prev = nd
    head = [i for p in s.pairs[:3] for i in p[2]]
    return s, head

def perm(op, a, b):
    i = valu(op, a, b, extra_rd=[a], extra_wr=[b]); i.cost = 8
    return i

def acc_read(d, a):
    i = Ins(f"v_accvgpr_read_b32 {d}, {a}", "acc", rd=[a], wr=[d]); return i

def make_epi(nb):
    r = []
    t = SET(0)[9]
    r += [valu("v_max3_f32", t, lsum(0), lsum(1), lsum(2))]
    if nb == 4: r += [valu("v_max_f32", t, t, lsum(3))]
    c_ = valu("v_cmp_ngt_f32", "vcc", hex(L_LIMIT), t); c_.wr.add(('s', 'vcc')); r.append(c_)
    flagl = [raw(f"s_cbranch_vccz L_noflag{nb}"), sop(f"s_bitset1_b32 {s_flags}, {s_pass}"), label(f"L_noflag{nb}")]
    TMP = lambda k: V(48 + 4 * (k % 12), 4)
    order = [(c, dbl, b) for c in range(4) for dbl in range(4) for b in range(nb)]
    acct = [t_ for t_ in order if O(t_[2], 4 * t_[0] + t_[1]).k == 'a']
    slot = {t_: k for k, t_ in enumerate(acct)}
    accq = [(t_, i) for t_ in acct for i in range(4)]
    nacc = 0; done_acc = 0
    extra = []
    held = None
    for j, (c, dbl, b) in enumerate(order):
        o = O(b, 4 * c + dbl)
        want = len(accq) and min(len(acct) * 4, -(-(j + 1) * len(acct) * 4 // (len(order) - 4)))
        while nacc < len(acct) * 4 and (nacc < want or (o.k == 'a' and nacc < 4 * (slot[(c, dbl, b)] + 1))) and nacc // 4 < done_acc + 12:
            t_, i = accq[nacc]; nacc += 1
            r.append(acc_read(TMP(slot[t_])[i], O(t_[2], 4 * t_[0] + t_[1])[i]))
        t4 = TMP(slot[(c, dbl, b)]) if o.k == 'a' else o
        rlp = V(RL(b).n & ~1, 2); sel = RL(b).n & 1
        for h in range(2):
            r.append(valu("v_pk_mul_f32", t4.sub(2 * h, 2), t4.sub(2 * h, 2), rlp, mods=f"op_sel:[0,{sel}] op_sel_hi:[1,{sel}]"))
        r += [valu("v_cvt_pk_bf16_f32", t4[0], t4[0], t4[1]), valu("v_cvt_pk_bf16_f32", t4[1], t4[2], t4[3])]
        if b % 2 == 0 and b + 1 < nb:
            held = (t4, o.k == 'a')
        else:
            while extra and getattr(extra[0], "lds_rd", None) == ("OS",): r.append(extra.pop(0))
            if held is not None:
                w = Ins(f"ds_write2st64_b64 {WA(dbl)}, {held[0].sub(0, 2)}, {t4.sub(0, 2)} offset0:{(b - 1) * 4} offset1:{b * 4}", "ds",
                        rd=[WA(dbl), held[0].sub(0, 2), t4.sub(0, 2)], tag=("w", j))
                done_acc += held[1]; held = None
            else:
                w = ds_write("ds_write_b64", WA(dbl), t4.sub(0, 2), b * 2048, tag=("w", j))
            w.lds_pw = ("OS",); r.append(w)
            done_acc += (o.k == 'a')
        if j == 1: r += flagl
        k_ = 0
        while extra and k_ < (3 if extra[0].kind == "salu" else 1):
            if extra[0].kind == "vmem" and j % 2 == 0: break
            r.append(extra.pop(0)); k_ += 1
        if dbl == 3 and b == nb - 1:
            r += extra; extra = []
            for k in range(2 * nb):
                i = ds_read("ds_read_b128", PK(c, k), RA, k * 1024, tag=("o", c, k)); i.lds_rd = ("OS",); i.private = True
                extra.append(i)
            if c < 3 and c < 4 - opt.defer:
                for k in range(2 * nb):
                    st = store(c, k); st.need = [("o", c, k)]; extra.append(st)
            if c == 1: extra += [vwait([("X",)])] + q_reads(3, s_mX, ("X",), vt0)
            if c == 2: extra += head_reads()
    r += extra
    if opt.defer == 0:
        for k in range(2 * nb):
            st = store(3, k); st.need = [("o", 3, k)]; r.append(st)
    return r

def head_reads():
    s = Seg(4, "hd"); s.qblock("h0", 1, 0, True, 0)
    return [i for p in s.pairs[:3] for i in p[2]]

def store(c, k):
    data = PK(c, k)
    i = Ins(f"buffer_store_dwordx4 {data}, {vsto}, {sO}, {s_ok[k]} offen offset:{c * 128} {opt.omod}".rstrip(), "vmem", rd=[data, vsto, sO, s_ok[k]])
    i.wide_store = True; i.data = data.set(); i.vm = True
    return i

def lin(seq, pre=()):
    out = []; q = list(pre)
    for i in seq:
        if i.need:
            idx = -1
            for t in i.need:
                if t in q: idx = max(idx, len(q) - 1 - q[::-1].index(t))
            if idx >= 0:
                n = min(len(q) - 1 - idx, 15)
                out.append(waitcnt(None, n)); q = q[idx + 1:]
        if getattr(i, "lgw", None) is not None: q = q[len(q) - i.lgw:] if i.lgw else []
        if getattr(i, "is_marker", False): continue
        if i.kind == "ds": q.append(i.tag)
        out.append(i)
    return out, q

def flat(gaps, pre, nxt_need):
    out = []; q = list(pre)
    def wf(need):
        nonlocal q
        idx = -1
        for t in need:
            if t in q: idx = max(idx, len(q) - 1 - q[::-1].index(t))
        if idx < 0: return
        n = min(len(q) - 1 - idx, 15)
        out.append(waitcnt(None, n)); q = q[idx + 1:]
    for g, (m, sc, oth) in enumerate(gaps):
        wf(m.need)
        out.append(m)
        has_l0 = any(getattr(i, "lgw", None) == 0 for i in sc)
        if not has_l0:
            wf(gaps[g + 1][0].need if g + 1 < len(gaps) else nxt_need)
        for i in sc + oth:
            if i.need: wf(i.need)
            if getattr(i, "lgw", None) == 0: q = []
            if getattr(i, "is_marker", False): continue
            if i.kind == "ds": q.append(i.tag)
            out.append(i)
    return out, q

def label(n): return Ins(n + ":", "label", states=0, cost=0)

def stamp(k):
    if not opt.diag: return []
    return [raw(f"s_memrealtime {s_ts}"), raw("s_memtime s[66:67]"), raw("s_waitcnt lgkmcnt(0)", "wait0"), raw(f"s_mov_b32 m0, {s_tsp}"), raw("s_nop 1"),
            raw(f"v_writelane_b32 v0, {s_ts.sub(0)}, m0"), raw(f"s_add_u32 m0, m0, 32"), raw("s_nop 1"), raw("v_writelane_b32 v0, s66, m0"),
            raw(f"s_add_u32 {s_tsp}, {s_tsp}, 1")]

def retag(q, old, new):
    return [tuple(new if x == old else x for x in t) if len(t) > 1 else t for t in q]

def variant(nb):
    P = {}
    hd, head = make_head(nb, "hd", "i1")
    i1 = make_mid(nb, 1, "i1", "i2")
    i2 = make_mid(nb, 2, "i2", "i1")
    i6 = make_mid(nb, 6, "i2", "i1", special=True)
    i7 = make_last(nb, "i1")
    SG = dict(hd=hd, i1=i1, i2=i2, i6=i6, i7=i7)
    G = {k: s.build() for k, s in SG.items()}
    print(f"nb={nb} overflow cycles:", {k: s.over for k, s in SG.items()}, file=sys.stderr)
    P["hd"], q0 = flat(G["hd"], [], G["i1"][0][0].need)
    P["i1"], q1 = flat(G["i1"], q0, G["i2"][0][0].need)
    P["i2"], q2 = flat(G["i2"], q1, G["i1"][0][0].need)
    assert q2 == q0, (q0, q2)
    P["i6"], q = flat(G["i6"], q1, G["i7"][0][0].need)
    P["i7"], q = flat(G["i7"], q, [])
    P["epi"], q = lin(make_epi(nb), q)
    return P

def resolve_vm(traces):
    ws = set()
    for tr in traces:
        n = 0; last = {}
        for i in tr:
            if getattr(i, "vmneed", None) is not None:
                idx = max([last.get(u, -1) for u in i.vmneed])
                if idx >= 0: i.vmauto = min(i.vmauto, n - 1 - idx)
                ws.add(i)
            if getattr(i, "vm", False):
                u = getattr(i, "dma_wr", None)
                if u: last[u] = n
                n += 1
    for i in ws:
        i.vmw = i.vmauto
        i.text = f"s_waitcnt vmcnt({i.vmw})" + (f" lgkmcnt({i.lgw})" if i.lgw is not None else "")

def check_trace(trace):
    vm = []
    lg = []
    state = {}
    epoch = 0
    ALIAS = {("R2",): [("V", 0, 1), ("V", 0, 2), ("V", 0, 3), ("K", 7)], ("OS",): [("V", 1, c) for c in range(4)],
             ("R3",): [("K", 4), ("K", 5), ("K", 6), ("V", 0, 0)]}
    def phys(u): return ALIAS.get(u, [u])
    wr_land = {}; wr_pend = {}; rd_done = {}; rd_pend = {}; owner = {}
    errs = []
    for k, i in enumerate(trace):
        if getattr(i, "vmw", None) is not None:
            while len(vm) > i.vmw:
                o = vm.pop(0)
                u = getattr(o, "dma_wr", None)
                if u: wr_pend[u] -= 1; wr_land[u] = epoch
        if getattr(i, "lgw", None) is not None or i.kind == "wait0":
            n = 0 if i.kind == "wait0" else i.lgw
            while len(lg) > n:
                o = lg.pop(0)
                u = getattr(o, "lds_rd", None) or getattr(o, "lds_pw", None)
                if u: rd_pend[u] -= 1; rd_done[u] = epoch
        if getattr(i, "bar", False): epoch += 1
        u = getattr(i, "lds_rd", None)
        if u:
            if True:
                if wr_pend.get(u, 0) > 0: errs.append((k, "read of unit with pending DMA", u, i.text))
                elif not getattr(i, "private", False) and wr_land.get(u, 10**9) >= epoch: errs.append((k, "read without barrier after landing", u, i.text))
            for p in phys(u):
                if owner.get(p) != u: errs.append((k, "read of unit owned by", owner.get(p), u, i.text))
        w = getattr(i, "dma_wr", None) or getattr(i, "lds_pw", None)
        if w:
            for p in phys(w):
                o = owner.get(p)
                if o is not None:
                    priv = (o == w and w in (("X",), ("R2",), ("R3",), ("OS",)))
                    if rd_pend.get(o, 0) > 0 and not (getattr(i, "lds_pw", None) and o == w):
                        errs.append((k, "write over unit with reads in flight", o, w, i.text))
                    if not priv and rd_done.get(o, -1) >= epoch: errs.append((k, "write without barrier after reads", o, w, i.text))
                    if o != w and wr_pend.get(o, 0) > 0: errs.append((k, "write over pending dma", o, w))
                    if o != w and wr_land.get(o, -1) >= epoch: errs.append((k, "write over unit landed w/o barrier", o, w))
                owner[p] = w
        if i.kind == "ds":
            lg.append(i)
            u = getattr(i, "lds_rd", None) or getattr(i, "lds_pw", None)
            if u: rd_pend[u] = rd_pend.get(u, 0) + 1
        if getattr(i, "vm", False):
            vm.append(i)
            u = getattr(i, "dma_wr", None)
            if u: wr_pend[u] = wr_pend.get(u, 0) + 1
            assert len(vm) <= 63, "vmcnt overflow"
    return errs

def cross_check(traces):
    ALIAS = {("R2",): [("V", 0, 1), ("V", 0, 2), ("V", 0, 3), ("K", 7)], ("OS",): [("V", 1, c) for c in range(4)],
             ("R3",): [("K", 4), ("K", 5), ("K", 6), ("V", 0, 0)]}
    allg = []
    for tr in traces:
        gens = {}; epoch = 0; vm = []; lg = []
        for i in tr:
            if getattr(i, "vmw", None) is not None:
                while len(vm) > i.vmw:
                    for g in vm.pop(0): g["land"] = epoch
            if getattr(i, "lgw", None) is not None or i.kind == "wait0":
                n = 0 if i.kind == "wait0" else i.lgw
                while len(lg) > n:
                    for g in lg.pop(0): g["done"] = epoch
            if getattr(i, "bar", False): epoch += 1
            w = getattr(i, "dma_wr", None) or getattr(i, "lds_pw", None); r = getattr(i, "lds_rd", None)
            touched = []
            u = w or r
            if u and u != ("X",):
                for p in ALIAS.get(u, [u]):
                    l = gens.setdefault(p, [])
                    if w and (not l or l[-1]["own"] != u or (l[-1]["rd0"] is not None and u not in ALIAS)):
                        l.append(dict(own=u, wr0=epoch, land=10**9, rd0=None, done=-1))
                    g = l[-1]
                    if r and g["rd0"] is None: g["rd0"] = epoch
                    if r or getattr(i, "lds_pw", None): g["done"] = 10**9
                    if getattr(i, "dma_wr", None): g["land"] = 10**9
                    touched.append(g)
            if i.kind == "ds": lg.append(touched)
            if getattr(i, "vm", False): vm.append(touched)
        allg.append((gens, epoch))
    assert len(set(e for _, e in allg)) == 1, "barrier counts differ"
    for p in allg[0][0]:
        n = len(allg[0][0][p])
        assert all(len(g[p]) == n and [x["own"] for x in g[p]] == [x["own"] for x in allg[0][0][p]] for g, _ in allg), ("generations differ", p)
        for k in range(n):
            G = [g[p][k] for g, _ in allg]
            if G[0]["own"] not in ALIAS and G[0]["rd0"] is not None:
                assert max(x["land"] for x in G) < min(x["rd0"] for x in G), ("cross RAW", p, k, G)
            if k + 1 < n:
                N = [g[p][k + 1] for g, _ in allg]
                assert max(x["done"] for x in G) < min(x["wr0"] for x in N), ("cross WAR", p, k, G, N)
                if G[0]["own"] != N[0]["own"] and any(x["land"] != 10**9 or x["rd0"] is not None for x in G) and G[0]["own"] != ("OS",):
                    assert max(x["land"] for x in G) < min(x["wr0"] for x in N), ("cross WAW", p, k, G, N)

THR = {}
def schedule_table(mode):
    tab = {}
    if mode == "simple":
        for wg in range(256):
            x = wg & 7; idx = wg >> 3
            head = x * 16 + (idx >> 1); base = 41 * (idx & 1)
            tab[wg] = [(head, base, 12), (head, base + 12, 16), (head, base + 28, 13)]
    elif mode == "share":
        for x in range(8):
            rounds = [[], [], []]
            def add(r, h, start, sizes):
                for sz in sizes:
                    rounds[r].append((x * 16 + h, start, sz)); start += sz
                return start
            for h in range(10):
                st = add(0, h, 0, [12, 12, 12]); add(1 if h < 6 else 2, h, st, [15, 15, 16])
            st = add(0, 10, 0, [12, 12]); st = add(1, 10, st, [15, 14]); add(2, 10, st, [15, 14])
            for h in range(11, 16):
                add(1 if h < 13 else 2, h, 0, [14, 14, 14, 14, 13, 13])
            assert all(len(r) == 32 for r in rounds), [len(r) for r in rounds]
            for idx in range(32):
                tab[idx * 8 + x] = [rounds[0][idx], rounds[1][idx], rounds[2][idx]]
    elif mode.startswith("g6"):
        orders = {"A": (0, 1, 2), "B": (1, 0, 2), "C": (2, 1, 0), "D": (2, 0, 1)}
        pat = mode.split("_")[1]
        rot = pat.startswith("x"); pat = pat.lstrip("x")
        for x in range(8):
            for g in range(6):
                o = orders[pat[(g + (x if rot else 0)) % len(pat)]] if not pat.startswith("X") else orders["ABC"[x % 3]]
                if g < 5:
                    ha, hb, hc = [x * 16 + 3 * g + i for i in range(3)]
                    r0 = [(ha, 0, 12), (ha, 12, 12), (ha, 24, 12), (hb, 0, 12), (hb, 12, 12), (hb, 24, 12)]
                    r1 = [(ha, 36, 15), (ha, 51, 15), (ha, 66, 16), (hb, 36, 15), (hb, 51, 15), (hb, 66, 16)]
                    r2 = [(hc, 0, 14), (hc, 14, 14), (hc, 28, 13), (hc, 41, 14), (hc, 55, 14), (hc, 69, 13)]
                    n = 6
                else:
                    h = x * 16 + 15
                    r0 = [(h, 0, 12), (h, 12, 12)]; r1 = [(h, 24, 15), (h, 39, 15)]; r2 = [(h, 54, 14), (h, 68, 14)]
                    n = 2
                R = [r0, r1, r2]
                for i in range(n):
                    tab[(6 * g + i) * 8 + x] = [R[o[0]][i], R[o[1]][i], R[o[2]][i]]
    elif mode.startswith("t3"):
        _, lo, so, th = mode.split("_")
        th = [int(x, 16) for x in th.split(".")]
        for x in range(8):
            H = [x * 16 + i for i in range(16)]
            T3 = lambda h: [(h, 0, 12), (h, 12, 12), (h, 24, 12)]
            T4 = lambda h: [(h, 36, 16), (h, 52, 16), (h, 68, 14)]
            for g in range(5):
                a, b, c = H[3 * g], H[3 * g + 1], H[3 * g + 2]
                Lt = {"3": T3(a), "4": T4(a), "5": T4(b)[::-1]}
                St = {"3": T3(c), "2": T3(b), "4": T4(c)}
                lord = lo.split(".")[(g + x) % len(lo.split("."))]; sord = so.split(".")[(g + x) % len(so.split("."))]
                for i in range(3):
                    tab[(6 * g + i) * 8 + x] = [Lt[k][i] for k in lord]
                    tab[(6 * g + 3 + i) * 8 + x] = [St[k][i] for k in sord]
                    THR[(6 * g + 3 + i) * 8 + x] = th[(g + x) % len(th)]
            h = H[15]
            tab[30 * 8 + x] = [(h, 0, 12), (h, 36, 16), (h, 68, 14)]
            tab[31 * 8 + x] = [(h, 12, 12), (h, 52, 16), (h, 24, 12)]
    cov = {}
    for wg, l in tab.items():
        for h, st, n in l:
            assert 12 <= n <= 16
            for b in range(st, st + n):
                assert (h, b) not in cov; cov[(h, b)] = wg
    assert len(cov) == 128 * 82
    return tab

def setup_code():
    L = []; A = L.append
    if opt.diag or opt.padto: A("s_memrealtime s[98:99]")
    A("s_cmp_ge_u32 s2, 256")
    A("s_cbranch_scc1 L_exit")
    A("s_load_dwordx4 s[72:75], s[0:1], 0")
    A("s_load_dwordx4 s[76:79], s[0:1], 16")
    if opt.diag: A("s_load_dwordx2 s[64:65], s[0:1], 40")
    A("s_getpc_b64 s[4:5]")
    A("L_pc:")
    if opt.warm:
        A("s_mov_b32 s6, L_warm_end-L_pc\ns_mov_b32 s7, 0x20000\nv_lshlrev_b32 v16, 7, v0")
        for k in range(opt.warm): A(f"s_mov_b32 s3, {k * 32768}\nbuffer_load_dword v{17 + k}, v16, s[4:7], s3 offen")
    A("s_lshl_b32 s3, s2, 6")
    A("s_add_u32 s3, s3, L_table-L_pc")
    A("s_add_u32 s46, s4, s3")
    A("s_addc_u32 s47, s5, 0")
    A("s_load_dwordx16 s[80:95], s[46:47], 0")
    A(f"v_readfirstlane_b32 {s_wave}, v0")
    A("v_and_b32 v10, 63, v0")
    A(f"s_lshr_b32 {s_wave}, {s_wave}, 6")
    A("v_and_b32 v11, 15, v10")
    A("v_lshrrev_b32 v14, 4, v10")
    A("v_lshrrev_b32 v15, 2, v11\nv_lshlrev_b32 v1, 11, v15\nv_and_b32 v6, 3, v11\nv_lshl_add_u32 v1, v6, 6, v1")
    A("v_lshrrev_b32 v6, 3, v11\nv_lshlrev_b32 v6, 1, v6\nv_xor_b32 v6, v6, v14\nv_lshl_add_u32 v1, v6, 4, v1")
    A("v_lshrrev_b32 v6, 1, v14\nv_lshlrev_b32 v2, 10, v6\nv_and_b32 v7, 1, v14\nv_lshl_add_u32 v6, v7, 2, v15\nv_lshl_add_u32 v2, v6, 6, v2")
    A(f"v_and_b32 v8, 3, v10\nv_lshl_add_u32 v2, v8, 3, v2\nv_lshl_add_u32 v2, v7, 5, v2\nv_add_u32 v2, {VB}, v2\nv_xor_b32 v3, 32, v2")
    A("v_lshlrev_b32 v12, 9, v15\nv_lshl_add_u32 v12, v14, 6, v12\nv_lshl_add_u32 v12, v8, 4, v12\nv_xor_b32 v13, 32, v12\nv_add_u32 v13, 4096, v13")
    A(f"s_lshl_b32 {s_mK}, {s_wave}, 11\ns_lshr_b32 s3, {s_wave}, 1\ns_lshl_b32 s3, s3, 5")
    A(f"v_xor_b32 v4, s3, v12\nv_add_u32 v4, {s_mK}, v4")
    A("v_lshrrev_b32 v6, 2, v10\nv_and_b32 v6, 7, v6\nv_lshlrev_b32 v5, 9, v6\nv_lshrrev_b32 v6, 2, v6\nv_lshlrev_b32 v6, 1, v6\nv_xor_b32 v6, v6, v8")
    A(f"v_lshl_add_u32 v5, v6, 4, v5\nv_lshrrev_b32 v6, 5, v10\nv_lshl_add_u32 v5, v6, 6, v5\ns_lshl_b32 s3, {s_wave}, 13\nv_add_u32 v5, s3, v5")
    A(f"s_add_u32 {s_mX}, s3, {XB}")
    A(f"s_add_u32 {s_mOS}, s3, {vslot_addr(1, 0)}")
    A(f"s_add_u32 {s_mR2}, s3, {vslot_addr(0, 0)}")
    A(f"s_cmp_eq_u32 {s_wave}, 0\ns_cselect_b32 {s_mR2}, {kslot_addr(7)}, {s_mR2}")
    A(f"s_add_u32 {s_mR3}, s3, {kslot_addr(4)}")
    A(f"s_cmp_eq_u32 {s_wave}, 3\ns_cselect_b32 {s_mR3}, {vslot_addr(0, 0)}, {s_mR3}")
    A("v_lshrrev_b32 v6, 1, v14\nv_and_b32 v9, 7, v11\nv_xor_b32 v6, v6, v9\nv_lshlrev_b32 v6, 4, v6\nv_lshl_add_u32 v6, v7, 3, v6")
    A(f"v_lshl_add_u32 v6, v11, 7, v6\nv_add_u32 v15, {s_mOS}, v6")
    A("v_lshrrev_b32 v6, 3, v10\nv_xor_b32 v9, v9, v6\nv_lshlrev_b32 v9, 4, v9\nv_lshl_add_u32 v14, v6, 9, v9")
    A(f"s_mov_b32 {s_c}, {C_SCALE:#x}\ns_mov_b32 {s_pass}, 0\ns_mov_b32 {s_flags}, 0")
    if opt.diag: A(f"s_mov_b32 {s_tsp}, 1\nv_mov_b32 v0, 0")
    A("s_waitcnt lgkmcnt(0)")
    if opt.diag: A("v_writelane_b32 v0, s98, 0")
    for srd, p, n in ((sQ, 72, QBYTES), (sK, 74, KBYTES), (sV, 76, KBYTES), (sO, 78, QBYTES)):
        A(f"s_mov_b32 {srd[0]}, s{p}\ns_mov_b32 {srd[1]}, s{p+1}\ns_mov_b32 {srd[2]}, {n}\ns_mov_b32 {srd[3]}, 0x20000")
    for k in range(8): A(f"s_mov_b32 {s_ok[k]}, {OOB:#x}")
    for p in range(3):
        A(f"s_sub_u32 s3, s{80+3*p+2}, 12")
        A(f"s_min_u32 s4, s3, {s_wave}")
        A(f"s_mul_i32 s5, {s_wave}, 3\ns_add_u32 s4, s4, s5\ns_lshl_b32 s4, s4, 13")
        A(f"s_add_u32 {s_tab[4*p]}, s{80+3*p}, s4")
        A(f"s_mov_b32 {s_tab[4*p+1]}, s{80+3*p+1}")
        A(f"s_add_u32 {s_tab[4*p+3]}, {s_tab[4*p]}, 24576")
        A(f"s_cmp_lt_u32 {s_wave}, s3\ns_cselect_b32 {s_tab[4*p+2]}, 4, 3\ns_cselect_b32 {s_tab[4*p+3]}, {s_tab[4*p+3]}, {OOB:#x}")
    A(f"s_mov_b32 {s_tab[12]}, {OOB:#x}\ns_mov_b32 {s_tab[13]}, {OOB:#x}\ns_mov_b32 {s_tab[14]}, 0\ns_mov_b32 {s_tab[15]}, {OOB:#x}")
    for p in range(3):
        for k in range(3): A(f"s_mov_b32 s{80+3*p+k}, {s_tab[4*p+k]}")
    return L

def startup():
    r = []
    r += [sop(f"s_mov_b32 {s_kptr}, {s_tab[1]}", wr=[s_kptr]), sop(f"s_sub_u32 {s_vptr}, {s_tab[1]}, 32768", wr=[s_vptr])]
    r += [sop(f"s_add_u32 {s_t0}, {s_tab[0]}, 8192", wr=[s_t0]), sop(f"s_add_u32 {s_t1}, {s_tab[0]}, 16384", wr=[s_t1]),
          sop(f"s_add_u32 {s_t2}, {s_tab[0]}, 24576", wr=[s_t2])]
    r += dma_K(1)
    k = 0
    for grp in (dma_Q(s_mX, s_tab[0], ("X",)), dma_Q(s_mR2, s_t0, ("R2",)), dma_Q(s_mOS, s_t1, ("OS",))):
        for hf in (grp[:6], grp[6:]):
            r += hf
            r += [sop(f"s_bitcmp1_b32 s89, {k}"), raw(f"s_cbranch_scc0 L_th{k}"), raw("s_waitcnt vmcnt(0)"), label(f"L_th{k}")]
            k += 1
    r += dma_K(2) + dma_K(3)
    r += dma_K(4) + dma_K(5) + dma_K(6) + dma_V(0, 0)
    r += [vwait([("X",)])] + q_reads(0, s_mX, ("X",), vt0)
    r += [sop(f"s_cmp_lt_u32 {s_tab[2]}, 4"), raw("s_cbranch_scc1 L_noq3")]
    r2 = [waitcnt(None, 0)] + dma_Q(s_mX, s_t2, ("X",))
    r2 += [vwait([("R2",)])] + q_reads(1, s_mR2, ("R2",), vt1) + [vwait([("OS",)])] + q_reads(2, s_mOS, ("OS",), vt0)
    r2 += [vwait([("X",)])] + q_reads(3, s_mX, ("X",), vt1) + [raw("s_branch L_first")]
    r3 = [vwait([("R2",)])] + q_reads(1, s_mR2, ("R2",), vt1) + [vwait([("OS",)])] + q_reads(2, s_mOS, ("OS",), vt0)
    r3 += [vwait([("K", 1), ("K", 2), ("K", 3)])]
    return r, r2, r3

def pass_begin():
    T2 = lambda k: S(s_tab.n + k, 2)
    r = [sop(f"s_mov_b32 {s_ocur}, {s_tab[0]}"),
         sop(f"s_add_u32 {s_kend}, {s_tab[1]}, 262144"),
         sop(f"s_mov_b32 {s_nbn}, {s_tab[2]}"),
         sop(f"s_mov_b32 {s_knext}, {s_tab[5]}"),
         sop(f"s_mov_b32 {s_xq}, {s_tab[4]}"),
         sop(f"s_add_u32 {s_qn[1]}, {s_tab[4]}, 8192"), sop(f"s_add_u32 {s_qn[2]}, {s_tab[4]}, 16384"),
         sop(f"s_mov_b32 {s_qn[3]}, {s_tab[7]}")]
    for k in range(0, 12, 2): r.append(sop(f"s_mov_b64 {T2(k)}, {T2(k + 4)}"))
    r += [sop(f"s_mov_b32 {s_cnt}, 3"), sop(f"s_mov_b32 {s_tq}, {s_qn[1]}"), sop(f"s_lshl_b32 {s_tk}, {s_wave}, 13"),
          sop(f"s_add_u32 {s_tk}, {s_tk}, {s_knext}"), sop(f"s_mov_b32 {s_tv}, {s_tk}"),
          sop(f"s_mov_b32 {s_xm}, {s_mX}")]
    return r

def repair_code():
    rQ = lambda k: V(96 + 4 * k, 4); rK = lambda k: V(128 + 4 * k, 4); rS = lambda k: V(32 + 4 * k, 4)
    rO = lambda k: V(160 + 4 * k, 4); rV = lambda k: V(224 + 4 * k, 4)
    m, l, ta, tb, al, nm = V(6), V(7), V(8), V(9), V(10), V(11)
    fa, va0, va1, vop, so = V(48), V(49), V(50), V(51), V(52)
    sp, sb, sj, sq, sk, sv = S(90), S(91), S(92), S(93), S(94), S(95)
    def gload(d, srd, soff, imm):
        return Ins(f"buffer_load_dwordx4 {d}, {fa}, {srd}, {soff} offen offset:{imm}", "vmem", rd=[fa, srd, soff], wr=[d])
    W = lambda t: raw(t, "wait")
    out = []
    pre = [W("s_waitcnt vmcnt(0) lgkmcnt(0)"),
           valu("v_mbcnt_lo_u32_b32", ta, -1, 0), valu("v_mbcnt_hi_u32_b32", ta, -1, ta),
           valu("v_and_b32", tb, 15, ta), valu("v_lshrrev_b32", ta, 4, ta),
           valu("v_lshlrev_b32", fa, 9, tb), valu("v_lshl_add_u32", so, ta, 3, fa), valu("v_lshl_add_u32", fa, ta, 4, fa),
           sop(f"s_sub_u32 {s_t0}, {s_mX}, {VB}"), valu("v_add_u32", va0, s_t0, vaddr0), valu("v_add_u32", va1, s_t0, vaddr1),
           sop(f"s_lshl_b32 {s_t0}, {s_wave}, 13"), valu("v_subrev_u32", vop, s_t0, voV),
           sop(f"s_mov_b32 {sp}, 0")]
    out += fix_hazards(pre)
    out += [label("L_rp"), sop(f"s_bitcmp1_b32 {s_flags}, {sp}"), raw("s_cbranch_scc0 L_rp_next"), sop(f"s_mov_b32 {sb}, 0"), label("L_rb")]
    blk = [sop(f"s_lshl_b32 {sq}, {sb}, 13"), sop(f"s_add_u32 {sq}, {sq}, s80")]
    blk += [gload(rQ(k), sQ, sq, k * 64) for k in range(8)]
    blk += [valu("v_mov_b32", m, "0xff800000"), valu("v_mov_b32", l, 0)]
    blk += [valu("v_mov_b32", V(160 + k), 0) for k in range(64)]
    blk += [sop(f"s_mov_b32 {sk}, s81"), sop(f"s_mov_b32 {sv}, s81"), sop(f"s_mov_b32 {sj}, 0")]
    out += fix_hazards(blk) + [label("L_rj")]
    it = []
    for kvb in range(4):
        it += [gload(rK(k), sK, sk, k * 64) for k in range(8)] + [sop(f"s_add_u32 {sk}, {sk}, 8192"), W("s_waitcnt vmcnt(0)")]
        it += [mfma(rS(kvb), rK(k), rQ(k), rS(kvb) if k else 0) for k in range(8)]
    xs = [V(32 + k) for k in range(16)]
    it += [valu("v_max3_f32", ta, m, xs[0], xs[1])]
    it += [valu("v_max3_f32", ta, ta, xs[k], xs[k + 1]) for k in range(2, 16, 2)]
    it += [valu("v_mov_b32", tb, ta), perm("v_permlane16_swap_b32", ta, tb), valu("v_max_f32", ta, ta, tb),
           valu("v_mov_b32", tb, ta), perm("v_permlane32_swap_b32", ta, tb), valu("v_max_f32", ta, ta, tb),
           valu("v_sub_f32", al, m, ta), valu("v_mul_f32", al, s_c, al), valu("v_exp_f32", al, al), valu("v_mov_b32", m, ta)]
    it += [valu("v_sub_f32", x, x, m) for x in xs] + [valu("v_mul_f32", x, s_c, x) for x in xs] + [valu("v_exp_f32", x, x) for x in xs]
    it += [valu("v_mul_f32", l, l, al)] + [valu("v_add_f32", l, l, x) for x in xs]
    it += [valu("v_mul_f32", V(160 + k), V(160 + k), al) for k in range(64)]
    Pf = lambda ks: V(16 + 4 * ks, 4)
    for ks in range(2):
        for j in range(4): it.append(valu("v_cvt_pk_bf16_f32", Pf(ks)[j], xs[8 * ks + 2 * j], xs[8 * ks + 2 * j + 1]))
    for c in range(4):
        for j in range(8):
            it += [sop(f"s_add_u32 {s_t0}, {sv}, {j * 4096 + c * 128}", wr=[s_t0]), set_m0(s_mX, j * 1024), dma(vop, sV, s_t0, 0, None, "")]
        it += [W("s_waitcnt vmcnt(0)")]
        for dbl in range(4):
            for ks in range(2):
                for j4 in range(2):
                    it.append(ds_read("ds_read_b64_tr_b16", rV(2 * dbl + ks).sub(2 * j4, 2), va1 if dbl & 1 else va0, ks * 4096 + (dbl >> 1) * 512 + j4 * 2048))
        it += [W("s_waitcnt lgkmcnt(0)")]
        for dbl in range(4):
            for ks in range(2): it.append(mfma(rO(4 * c + dbl), rV(2 * dbl + ks), Pf(ks), rO(4 * c + dbl)))
    it += [nop(9), sop(f"s_add_u32 {sv}, {sv}, 32768"), sop(f"s_add_u32 {sj}, {sj}, 1"), sop(f"s_cmp_lt_u32 {sj}, 8"), raw("s_cbranch_scc1 L_rj")]
    out += fix_hazards(it)
    fin = [valu("v_mov_b32", tb, l), perm("v_permlane16_swap_b32", l, tb), valu("v_add_f32", l, l, tb),
           valu("v_mov_b32", tb, l), perm("v_permlane32_swap_b32", l, tb), valu("v_add_f32", l, l, tb), valu("v_rcp_f32", al, l)]
    for db in range(16):
        o = rO(db)
        fin += [valu("v_mul_f32", o[i], o[i], al) for i in range(4)]
        fin += [valu("v_cvt_pk_bf16_f32", o[0], o[0], o[1]), valu("v_cvt_pk_bf16_f32", o[1], o[2], o[3])]
        fin.append(Ins(f"buffer_store_dwordx2 {o.sub(0, 2)}, {so}, {sO}, {sq} offen offset:{db * 32}", "vmem", rd=[o.sub(0, 2), so, sO, sq]))
    fin += [W("s_waitcnt vmcnt(0)"), sop(f"s_add_u32 {sb}, {sb}, 1"), sop(f"s_cmp_lt_u32 {sb}, s82"), raw("s_cbranch_scc1 L_rb")]
    out += fix_hazards(fin)
    out += [label("L_rp_next")]
    out += [sop(f"s_mov_b32 s{80 + k}, s{83 + k}") for k in range(6)]
    out += [sop(f"s_add_u32 {sp}, {sp}, 1"), sop(f"s_cmp_lt_u32 {sp}, 3"), raw("s_cbranch_scc1 L_rp")]
    return out

def main():
    ap = argparse.ArgumentParser()
    ap.add_argument("-o", default="standalone__mha_softmax__near_ridge.s")
    ap.add_argument("--diag", type=int, default=0)
    ap.add_argument("--kvmod", default="")
    ap.add_argument("--qmod", default="")
    ap.add_argument("--omod", default="")
    ap.add_argument("--sched", default="t3_345_423_2a")
    ap.add_argument("--pkmul", type=int, default=1)
    ap.add_argument("--rep", type=int, default=1)
    ap.add_argument("--nostore", type=int, default=0)
    ap.add_argument("--ca7", type=int, default=3)
    ap.add_argument("--show", type=int, default=0)
    ap.add_argument("--spread", type=int, default=1)
    ap.add_argument("--touch", type=int, default=0)
    ap.add_argument("--force", type=int, default=0)
    ap.add_argument("--padto", type=int, default=0)
    ap.add_argument("--defer", type=int, default=0)
    ap.add_argument("--warm", type=int, default=2)
    a = ap.parse_args()
    opt.__dict__.update(vars(a)); opt.nextq = 1
    L = []; A = L.append
    hdr = open("standalone__mha_softmax__near_ridge.s.ref").read().split("\n")
    for l in hdr:
        if l.startswith("; @launch"): break
        A(l)
    A(f"; @launch grid=(256,1,1) block=(256,1,1) lds={LDS_BYTES}")
    A('.amdgcn_target "amdgcn-amd-amdhsa--gfx950"')
    A(f".text\n.globl {KNAME}\n.p2align 8\n.type {KNAME},@function\n{KNAME}:")
    L += setup_code()
    def emit(seq):
        for i in seq: L.append(i)
    if opt.rep > 1: A(f"s_mov_b32 s98, {opt.rep}\nL_again:")
    emit(stamp(0))
    s1, s2, s3 = startup()
    s1 = fix_hazards(lin(s1)[0]); s2 = fix_hazards(lin(s2)[0]); s3 = fix_hazards(lin(s3)[0])
    emit(s1); emit(s2); A("L_noq3:"); emit(s3)
    A("L_first:")
    s4 = pass_begin() + [waitcnt(None, 0), barrier()] + head_reads()
    s4 = fix_hazards(s4 + sum([dma_V(0, 1), dma_V(0, 2), dma_V(0, 3), dma_K(7)][:opt.ca7], []))
    emit(s4)
    A("L_pass:")
    pb = [waitcnt(None, 0), barrier()]
    emit(pb)
    emit(stamp(1))
    A(f"s_cmp_eq_u32 {s_nbn}, 3\ns_cbranch_scc1 L_v3")
    VAR = {}
    for nb in (4, 3):
        P = variant(nb)
        hd = fix_hazards(P["hd"])
        b1 = fix_hazards(P["i1"], wrap=hd[-14:])
        b2 = fix_hazards(P["i2"], wrap=b1[-14:])
        b1b = fix_hazards(P["i1"], wrap=b2[-14:])
        assert [x.text for x in b1b] == [x.text for x in b1], "loop entry hazards differ"
        i6 = fix_hazards(P["i6"], wrap=b1[-14:])
        i7 = fix_hazards(P["i7"], wrap=i6[-14:])
        epi = fix_hazards(P["epi"], wrap=i7[-14:])
        VAR[nb] = dict(hd=hd, b1=b1, b2=b2, i6=i6, i7=i7, epi=epi)
        nn = sum(1 for p in VAR[nb].values() for x in p if x.kind == "nop")
        print(f"nb={nb}: sizes", {k: len(v) for k, v in VAR[nb].items()}, "nops", nn, file=sys.stderr)
        A(".p2align 6"); A(f"L_v{nb}:")
        emit(hd)
        emit(stamp(2))
        if opt.diag == 3:
            for k in range(3):
                A(f"s_sub_u32 s66, s{92+4*k}, s{90+4*k}\ns_mul_i32 s67, {s_pass}, 3\ns_add_u32 m0, s67, {20+k}\ns_nop 1\nv_writelane_b32 v0, s66, m0")
        A(f"L_loop{nb}:")
        emit(b1); A(f"s_cbranch_scc1 L_i6_{nb}"); emit(b2); A(f"s_branch L_loop{nb}")
        A(f"L_i6_{nb}:")
        emit(i6); emit(i7)
        emit(stamp(3))
        emit(epi)
        emit(stamp(4))
        A(f"s_add_u32 {s_pass}, {s_pass}, 1\ns_cmp_lt_u32 {s_pass}, 3\ns_cbranch_scc1 L_pass\ns_branch L_done")
    tail = [waitcnt(None, 0)] + [store(c, k) for c in range(4 - opt.defer, 4) for k in range(8)]
    traces = []
    import itertools
    for seqnb in itertools.product((3, 4), repeat=3):
        tr = s1 + (s2 if seqnb[0] == 4 else s3) + s4
        for nb in seqnb:
            v = VAR[nb]
            tr = tr + pb + v["hd"] + (v["b1"] + v["b2"]) * 2 + v["b1"] + v["i6"] + v["i7"] + v["epi"]
        traces.append(tr + tail)
    resolve_vm(traces)
    for tr in traces:
        errs = check_trace(tr)
        if errs:
            for e in errs[:20]: print("SYNC ERR", e, file=sys.stderr)
            raise SystemExit(1)
    cross_check(traces)
    A("L_done:")
    emit(tail)
    if opt.force: A(f"s_mov_b32 {s_flags}, {opt.force}")
    A(f"s_cmp_lg_u32 {s_flags}, 0\ns_cbranch_scc1 L_repair\nL_fin:")
    if opt.rep > 1:
        A("s_waitcnt vmcnt(0) lgkmcnt(0)\ns_barrier")
        raise SystemExit("rep unsupported now")
        A(f"s_mov_b32 {s_pass}, 0\ns_sub_u32 s98, s98, 1\ns_cmp_lg_u32 s98, 0\ns_cbranch_scc1 L_again")
    if opt.diag:
        A("s_waitcnt vmcnt(0)")
        emit(stamp(5))
        A(f"s_mov_b32 s66, 0x1000000\ns_mov_b32 s67, 0x20000")
        A(f"v_mbcnt_lo_u32_b32 v1, -1, 0\nv_mbcnt_hi_u32_b32 v1, -1, v1\nv_lshlrev_b32 v1, 2, v1")
        A(f"s_lshl_b32 s3, s2, 10\ns_lshl_b32 s4, {s_wave}, 8\ns_add_u32 s3, s3, s4")
        A("buffer_store_dword v0, v1, s[64:67], s3 offen")
        if opt.diag == 2:
            A(f"s_or_b32 s3, s2, {s_wave}\ns_cmp_lg_u32 s3, 0\ns_cbranch_scc1 L_exit")
            A("s_load_dwordx2 s[64:65], s[0:1], 32\ns_mov_b32 s66, 256\nv_readlane_b32 s4, v0, 0\nv_readlane_b32 s5, v0, 32\ns_waitcnt lgkmcnt(0)")
            idx = [2, 3, 4, 6, 8, 10, 12, 14]
            for j, k in enumerate(idx):
                A(f"v_readlane_b32 s6, v0, {k}\nv_readlane_b32 s7, v0, {k+32}\ns_sub_u32 s6, s6, s4\ns_sub_u32 s7, s7, s5\ns_nop 1\nv_writelane_b32 v2, s6, {j}\nv_writelane_b32 v2, s7, {j+8}")
            A("s_mov_b64 exec, 0xffff\nbuffer_store_dword v2, v1, s[64:67], 0 offen")
    if opt.padto:
        A(f"s_waitcnt vmcnt(0)\nL_spin:\ns_memrealtime s[96:97]\ns_waitcnt lgkmcnt(0)\ns_sub_u32 s96, s96, s98\ns_cmp_lt_u32 s96, {opt.padto}\ns_cbranch_scc1 L_spin")
    A("L_exit:")
    A("s_endpgm")
    A("L_warm_end:")
    A("L_repair:")
    emit(repair_code())
    A("s_branch L_fin")
    A(".p2align 6\n.type L_table,@object\nL_table:")
    tab = schedule_table(opt.sched)
    for wg in range(256):
        w = []
        for h, st, n in tab[wg]:
            w += [(h * SQ + st * 16) * 512, h * SK * 512, n]
        w += [THR.get(wg, 0)]
        w += [0] * (16 - len(w))
        A(".long " + ", ".join(str(x) for x in w))
    A(".size L_table, 16384")
    A('.section .rodata,"a"\n.p2align 6')
    A(f".amdhsa_kernel {KNAME}")
    A("  .amdhsa_next_free_vgpr 512\n  .amdhsa_next_free_sgpr 102\n  .amdhsa_accum_offset 256\n  .amdhsa_group_segment_fixed_size 0")
    A("  .amdhsa_kernarg_size 48\n  .amdhsa_user_sgpr_count 2\n  .amdhsa_user_sgpr_kernarg_segment_ptr 1\n  .amdhsa_system_sgpr_workgroup_id_x 1")
    A(".end_amdhsa_kernel")
    open(opt.o, "w").write("\n".join((x if isinstance(x, str) else x.text) for x in L if x is not None) + "\n")

if __name__ == "__main__":
    main()
```

```python
import sys, argparse
from asmlib import *

KNAME = "standalone__mha_softmax__near_ridge_kernel"
NH, SQ, SK, D = 128, 1312, 512, 256
QBYTES = NH * SQ * D * 2
KBYTES = NH * SK * D * 2
OOB = 0x7fff0000
VB = 65536
XB = 131072
LDS_BYTES = 163840
C_SCALE = 0x3db8aa3b
L_LIMIT = 0x4e800000

sQ, sK, sV, sO = S(8, 4), S(12, 4), S(16, 4), S(20, 4)
s_wave = S(24)
s_mK = S(25)
s_mX = S(26)
s_mR2 = S(27)
s_mOS = S(28)
s_kptr, s_kend, s_knext = S(29), S(30), S(31)
s_vptr, s_vptr2, s_vend = S(32), S(33), S(34)
s_c = S(35)
s_cnt = S(36)
s_pass = S(37)
s_flags = S(38)
s_qn = [S(40), S(41), S(42), S(43)]
s_ocur = S(44)
s_t0, s_t1, s_t2 = S(45), S(46), S(47)
s_tab = S(48, 16)
s_dbg = S(64, 4)
s_ts = S(68, 2)
s_nbn = S(70)
s_tsp = S(71)
s_mR3 = S(39)
s_tq, s_tk, s_tv, s_xm, s_xq = S(90), S(91), S(92), S(93), S(94)
s_ok = [S(72 + k) for k in range(8)]
kaddr, vaddr0, vaddr1, voK, voV = V(1), V(2), V(3), V(4), V(5)
lsum = lambda b: V(6 + b)
vt0, vt1 = V(10), V(11)
voQa, voQb = V(12), V(13)
vsto, wa0 = V(14), V(15)
Ct = lambda b: V(16 + 4 * b, 4)
SET = lambda i: V(32 + 16 * i, 16)
Sx = lambda i, b: SET(i).sub(4 * b, 4)
Q = lambda b, s: AG(b * 32 + s * 4, 4)
NF = 8
F = lambda i: AG(128 + 4 * (i % NF), 4)
def O(b, db):
    t = db * 4 + b
    return V(96 + 4 * t, 4) if t < 40 else AG(160 + 4 * (t - 40), 4)

M0 = ('m0', 0)
def set_m0(base, off):
    i = salu(f"s_add_u32 m0, {base}, {off}", rd=[base]); i.wr = {M0}; return i
def sop(text, rd=(), wr=()): return salu(text, rd=rd, wr=wr)

class Opt: pass
opt = Opt()

def dma(vo, srd, soff, imm, unit, mods):
    i = Ins(f"buffer_load_dwordx4 {vo}, {srd}, {soff} offen offset:{imm} {mods} lds".replace("  ", " "), "vmem", rd=[vo, srd, soff])
    i.rd.add(M0); i.dma_wr = unit; i.vm = True
    return i

def kslot_addr(slot): return slot * 8192
def vslot_addr(par, c): return VB + (par * 4 + c) * 8192

def dma_K(slot, wrap=False):
    r = []
    for dh in range(2):
        r.append(set_m0(s_mK, kslot_addr(slot) + dh * 768))
        r.append(dma(voK, sK, s_kptr, dh * 256, ("K", slot), opt.kvmod))
    r.append(sop(f"s_add_u32 {s_kptr}, {s_kptr}, 8192", rd=[s_kptr], wr=[s_kptr]))
    if wrap:
        r.append(sop(f"s_cmp_eq_u32 {s_kptr}, {s_kend}", rd=[s_kptr, s_kend]))
        r[-1].glue = True
        r.append(sop(f"s_cselect_b32 {s_kptr}, {s_knext}, {s_kptr}", rd=[s_kptr, s_knext], wr=[s_kptr]))
    return r

def dma_V(par, c, wrap=False):
    r = []
    if c == 0:
        r.append(sop(f"s_add_u32 {s_vptr}, {s_vptr}, 32768", rd=[s_vptr], wr=[s_vptr]))
        if wrap:
            r.append(sop(f"s_cmp_eq_u32 {s_vptr}, {s_vend}", rd=[s_vptr, s_vend]))
            r[-1].glue = True
            r.append(sop(f"s_cselect_b32 {s_vptr}, {s_knext}, {s_vptr}", rd=[s_vptr, s_knext], wr=[s_vptr]))
        r.append(sop(f"s_add_u32 {s_vptr2}, {s_vptr}, 4096", rd=[s_vptr], wr=[s_vptr2]))
    for e in range(2):
        r.append(set_m0(s_mK, vslot_addr(par, c) + e * 1024 - c * 128))
        r.append(dma(voV, sV, s_vptr2 if e else s_vptr, c * 128, ("V", par, c), opt.kvmod))
    return r

def dma_Q(base, soff, unit):
    r = []
    for hi in range(2):
        for dh in range(2):
            r.append(set_m0(base, hi * 4096 + dh * 768))
            for Rl in range(2):
                r.append(dma(voQb if hi else voQa, sQ, soff, Rl * 2048 + dh * 256, unit, opt.qmod))
    return r

def q_reads(b, base_sgpr, unit, tmp):
    r = [valu("v_add_u32", tmp, base_sgpr, kaddr)]
    for s in range(8):
        i = ds_read("ds_read_b128", Q(b, s), tmp, s * 256, tag=("q", b, s)); i.lds_rd = unit; i.private = True
        r.append(i)
    return r

def waitcnt(vm=None, lgkm=None):
    t = "s_waitcnt" + (f" vmcnt({vm})" if vm is not None else "") + (f" lgkmcnt({lgkm})" if lgkm is not None else "")
    i = raw(t, "wait"); i.vmw = vm; i.lgw = lgkm
    return i
def vwait(units, lgkm=None):
    i = raw("s_waitcnt ?", "wait"); i.vmneed = list(units); i.vmw = None; i.lgw = lgkm; i.vmauto = 63
    return i
def barrier():
    i = raw("s_barrier", "misc"); i.bar = True; return i

class Seg:
    def __init__(self, nb, name):
        self.nb = nb; self.name = name
        self.mf = []; self.nodes = []
        self.pairs = []
        self.blk = {}
        self.fixed = {}
        self.done = {}
        self.first = {}

    def qblock(self, name, slot, dst, czero, fbase):
        nb = self.nb; st = len(self.mf)
        for sp in range(4):
            p0 = len(self.mf)
            tags = [("f", self.name, name, 2 * sp + e) for e in range(2)]
            for b in range(nb):
                for e in range(2):
                    s = 2 * sp + e
                    d = Sx(dst, b)
                    c = d if s else (0 if czero else Ct(b))
                    self.mf.append(mfma(d, F(fbase + s), Q(b, s), c, need=tags))
                    self.done[(name, b)] = len(self.mf) - 1
            rd = []
            for e in range(2):
                s = 2 * sp + e
                i = ds_read("ds_read_b128", F(fbase + s), kaddr, kslot_addr(slot) + s * 256, tag=tags[e]); i.lds_rd = ("K", slot)
                rd.append(i)
            self.pairs.append((p0, len(self.mf) - 1, rd))
        self.blk[name] = (st, len(self.mf))

    def pblock(self, name, par, c, x0, x1, czero, fbase):
        self.pgen(name, par, [[(c, dbl, 0), (c, dbl, 1)] for dbl in range(4)], x0, x1, czero)

    def pgen(self, name, par, prs, x0, x1, czero):
        nb = self.nb; st = len(self.mf)
        for pi, pr in enumerate(prs):
            p0 = len(self.mf)
            fb = 2 * len(self.pairs)
            tags = [("f", self.name, name, 2 * pi + e) for e in range(2)]
            for b in range(nb):
                for e, (c, dbl, ks) in enumerate(pr):
                    o = O(b, 4 * c + dbl)
                    cc = 0 if (czero and ks == 0) else o
                    self.first.setdefault(("P", ks, b), len(self.mf))
                    self.first.setdefault(("O", c), len(self.mf))
                    self.mf.append(mfma(o, F(fb + e), Sx(x1 if ks else x0, b), cc, need=tags))
            rd = []
            for e, (c, dbl, ks) in enumerate(pr):
                f = F(fb + e)
                va = vaddr1 if (dbl & 1) else vaddr0
                off = vslot_addr(par, c) - VB + ks * 4096 + (dbl >> 1) * 512
                for j4 in range(2):
                    i = ds_read("ds_read_b64_tr_b16", f.sub(2 * j4, 2), va, off + j4 * 2048, tag=tags[e] if j4 else ("x",))
                    i.lds_rd = ("V", par, c)
                    rd.append(i)
            self.pairs.append((p0, len(self.mf) - 1, rd))
        self.blk[name] = (st, len(self.mf))

    def unit(self, src, even_set, odd, blocks, e_of, dl_crit, dl_add, lo, hi, add_lo=None, add_hi=None, pre=None, after=None, fma=None):
        crit = []; adds = []; res = {}
        for b in blocks:
            x = Sx(src, b); ev = Sx(even_set, b)
            ms = []
            for i in range(4):
                deps = [(n, 0) for n in pre[b]] if pre else []
                ins = valu("v_fma_f32", x[i], x[i], s_c, fma[b]) if fma else valu("v_mul_f32", x[i], s_c, x[i])
                ms.append(Node(ins, e=e_of(b), dl=dl_crit(b), deps=deps))
            ex = [Node(valu("v_exp_f32", x[i], x[i]), e=e_of(b), dl=dl_crit(b), deps=[(ms[i], 0)]) for i in range(4)]
            ad = []
            for i in range(4):
                deps = [(ex[i], 1)] + ([(ad[-1], 0)] if ad else [])
                ad.append(Node(valu("v_add_f32", lsum(b), lsum(b), x[i]), e=e_of(b), dl=(dl_add if odd else dl_crit(b)), deps=deps))
            aft = [(n, 0) for n in (after or {}).get(b, [])]
            if odd:
                c0 = Node(valu("v_cvt_pk_bf16_f32", ev[2], x[0], x[1]), e=e_of(b), dl=dl_crit(b), deps=[(ex[0], 1), (ex[1], 1)] + aft)
                c1 = Node(valu("v_cvt_pk_bf16_f32", ev[3], x[2], x[3]), e=e_of(b), dl=dl_crit(b), deps=[(ex[2], 1), (ex[3], 1)] + aft)
                crit += [ms[0], ms[1], ex[0], ex[1], ms[2], ms[3], ex[2], ex[3], c0, c1]
                adds += ad
            else:
                c0 = Node(valu("v_cvt_pk_bf16_f32", x[0], x[0], x[1]), e=e_of(b), dl=dl_crit(b), deps=[(ex[0], 1), (ex[1], 1), (ad[0], 0)])
                c1 = Node(valu("v_cvt_pk_bf16_f32", x[1], x[2], x[3]), e=e_of(b), dl=dl_crit(b), deps=[(ex[2], 1), (ex[3], 1), (ad[1], 0), (c0, 0)])
                crit += [ms[0], ms[1], ex[0], ex[1], ms[2], ms[3], ex[2], ex[3], ad[0], ad[1], ad[2], ad[3], c0, c1]
            res[b] = [c0, c1] + ad
        spread(crit, lo, hi)
        if adds: spread(adds, add_lo if add_lo is not None else lo, add_hi if add_hi is not None else hi)
        self.nodes += crit + adds
        return res

    def chain(self, instrs, lo, hi, e=None, dl=None, first_dep=None):
        prev = first_dep; out = []
        for i in instrs:
            gapd = 0
            if prev is not None:
                pk = prev.ins.kind
                gapd = 1
                if pk == "ds" and i.kind == "ds": gapd = 0
            n = Node(i, e=lo if e is None else e, dl=(10**9 if dl is None else dl), deps=[(prev, gapd)] if prev else [])
            out.append(n); prev = n
        k = len(out)
        for j, n in enumerate(out): n.ideal = lo + (hi - lo) * j / max(k, 1)
        self.nodes += out
        return out

    def reads(self, nxt_pairs, skip_first=3, barrier_before=()):
        pairs = self.pairs; ext = [p[2] for p in pairs] + list(nxt_pairs)
        prev = None
        plen = 2 * self.nb
        for k in range(skip_first, len(ext)):
            j = k - 4
            e = pairs[j][1] if j >= 0 else 0
            if k in barrier_before:
                g = e - 1 if j >= 0 else 0
                self.fixed[g] = barrier_before[k]
                self.bar_gap = getattr(self, "bar_gap", {}); self.bar_gap[k] = g
                e = g + 1
            dl = e + plen - 2
            if (k + 1) in barrier_before: dl = e + 1
            for i in ext[k]:
                n = Node(i, e=e, dl=min(dl, len(self.mf) - 1), ideal=e - 2, deps=[(prev, 0)] if prev else [])
                self.nodes.append(n); prev = n

    def build(self, nxt_first=None):
        n = len(self.mf)
        ft = set(); seen = set()
        for g, m in enumerate(self.mf):
            key = tuple(m.need)
            if key not in seen:
                seen.add(key)
                if g > 0: ft.add(g - 1)
        ft.add(n - 1)
        blocked = {}
        for g in self.fixed: ft.add(g); blocked[g] = 8
        gaps, over = schedule2(self.mf, self.nodes, free_taken=ft, blocked=blocked)
        for g, ins in self.fixed.items():
            gaps[g][1][0:0] = ins
        self.over = over
        if getattr(opt, "show", 0):
            cost = lambda i: 8 if i.kind == "vmem" else i.cost
            for nme, (a, b) in self.blk.items():
                row = ""
                for g in range(a, b):
                    u = sum(cost(i) for i in gaps[g][2]) + 4 * max(0, len(gaps[g][1]) - (0 if g in ft and g not in self.fixed else 1))
                    row += "B" if g in self.fixed else (str(u // 4) if u < 40 else "#")
                print(f"  nb{self.nb} {self.name} {nme}: {row}", file=sys.stderr)
        return gaps

def sets_for(par):
    return (0, 1, 2, 3) if par == 0 else (3, 2, 1, 0)

def first_pairs_of_iter(nb, J, name):
    s = Seg(nb, name); par = J & 1
    X0, X1, A_, B_ = sets_for(par)
    s.qblock("t0", 4 * ((J + 1) & 1), A_, False, 0)
    return [p[2] for p in s.pairs[:3]]

SPLIT = {4: 3, 3: 2}

LAT = 4
def units_of(J, h):
    par = J & 1; kb = 4 * ((J + 1) & 1)
    return [("K", kb), ("K", kb + 1), ("K", kb + 2), ("V", par, 0)] if h == 0 else [("V", par, 1), ("V", par, 2), ("V", par, 3), ("K", kb + 3)]

def iter_blocks(s, J, cz, split=0):
    par = J & 1
    X0, X1, A_, B_ = sets_for(par)
    kb = 4 * ((J + 1) & 1)
    s.qblock("t0", kb + 0, A_, False, 0)
    s.qblock("t1", kb + 1, B_, False, 0)
    if split == 2:
        s.pgen("t2", par, [[(0, 0, 0), (0, 1, 0)], [(0, 2, 0), (0, 3, 0)], [(0, 0, 1), (0, 1, 1)], [(0, 2, 1), (0, 3, 1)]], X0, X1, cz)
    elif split == 1:
        s.pgen("t2", par, [[(0, 0, 0), (0, 1, 0)], [(0, 0, 1), (0, 1, 1)], [(0, 2, 0), (0, 2, 1)], [(0, 3, 0), (0, 3, 1)]], X0, X1, cz)
    else:
        s.pblock("t2", par, 0, X0, X1, cz, 0)
    s.qblock("t3", kb + 2, A_, False, 0)
    s.pblock("t4", par, 1, X0, X1, cz, 0)
    s.pblock("t5", par, 2, X0, X1, cz, 0)
    s.qblock("t6", kb + 3, A_, False, 0)
    s.pblock("t7", par, 3, X0, X1, cz, 0)

def iter_units(s, J, u2, lo3=None):
    nb = s.nb; B = s.blk; n = len(s.mf)
    X0, X1, A_, B_ = sets_for(J & 1)
    p0s = s.first[("P", 1, 0)] - 1
    s.unit(A_, X1, True, range(nb), lambda b: s.done[("t0", b)] + LAT, lambda b: s.first[("P", 1, b)] - 2, B["t3"][0] - 2,
           lo3 if lo3 is not None else B["t0"][1] - 2, p0s - 1, add_lo=p0s, add_hi=B["t3"][0] - 4, after=u2)
    u0 = s.unit(B_, B_, False, range(nb), lambda b: s.done[("t1", b)] + LAT, lambda b: B["t4"][0] + 4, None,
                p0s + 2, B["t4"][0] - 2)
    s.unit(A_, B_, True, range(nb), lambda b: s.done[("t3", b)] + LAT, lambda b: B["t6"][0] - 2, B["t6"][0] - 2,
           B["t4"][0], B["t6"][0] - 4, add_lo=B["t4"][0] + 4, add_hi=B["t6"][0] - 3, after=u0)
    s.unit(A_, A_, False, range(SPLIT[nb]), lambda b: s.done[("t6", b)] + LAT, lambda b: n - 1, None,
           B["t7"][0], n - 3)

def make_mid(nb, J, name, nxt_name, special=False):
    par = J & 1
    X0, X1, A_, B_ = sets_for(par)
    kb = 4 * ((J + 1) & 1)
    s = Seg(nb, name)
    iter_blocks(s, J, False, split=(1 if nb == 3 else 0))
    n = len(s.mf); B = s.blk
    u2 = s.unit(X1, X1, False, list(range(SPLIT[nb], nb)), lambda b: 0, lambda b: B["t0"][1] + 2, None, 0, B["t0"][1] - 4)
    iter_units(s, J, u2)
    npair = len(s.pairs)
    nxt = first_pairs_of_iter(nb, J + 1, nxt_name)
    need2 = units_of(J + 1, 0) + (units_of(J + 1, 1) if special else [])
    s.reads(nxt, barrier_before={16: [vwait(units_of(J, 1), 0), barrier()], npair: [vwait(need2, 0), barrier()]})
    g1 = s.bar_gap[16]; g2 = s.bar_gap[npair]
    npar = (J + 1) & 1
    if opt.spread:
        gg = [dma_V(npar, 1), dma_V(npar, 2), dma_V(npar, 3), dma_K(4 * ((J + 2) & 1) + 3)]
        k0 = 3
        c0 = s.chain(sum(gg[:k0], []), 2, B["t0"][1] + 2, dl=g1 - 1)
        c0 = s.chain(sum(gg[k0:], []), B["t2"][0] + 10, g1 - 2, dl=g1 - 1, first_dep=c0[-1])
        lo1, hi1 = (g1 + 14, g2 - 4) if nb == 4 else (B["t4"][0] + 14, g2 + 2)
    else:
        g0 = dma_V(npar, 1) + dma_V(npar, 2) + dma_V(npar, 3) + dma_K(4 * ((J + 2) & 1) + 3)
        c0 = s.chain(g0, 0, B["t0"][1] + 2, dl=g1 - 1)
        lo1, hi1 = B["t5"][0] + 8, B["t7"][0]
    if special:
        s.chain(dma_Q(s_mR3, s_qn[1], ("R3",)), g1 + 2, B["t6"][1], e=g1 + 1, dl=g2 - 1, first_dep=c0[-1])
    else:
        g1l = dma_K(kb + 0, wrap=(J & 1) == 1) + dma_K(kb + 1)
        if J & 1:
            if opt.touch: g1l += touch(sQ, s_tq, 8192) + touch(sK, s_tk, 32768)
        else:
            if opt.touch: g1l += touch(sV, s_tv, 32768)
            for hi in range(2):
                g1l.append(set_m0(s_xm, hi * 4096))
                g1l += [dma(voQb if hi else voQa, sQ, s_xq, Rl * 2048, ("X",), opt.qmod) for Rl in range(2)]
            g1l += [sop(f"s_add_u32 {s_xm}, {s_xm}, 1024", wr=[s_xm]), sop(f"s_add_u32 {s_xq}, {s_xq}, 256", wr=[s_xq])]
        g1l += dma_K(kb + 2) + dma_V(par, 0)
        last = s.chain(g1l, lo1, hi1, e=g1 + 1, dl=g2 - 1, first_dep=c0[-1])[-1]
        if J & 1:
            s.chain([sop(f"s_sub_u32 {s_cnt}, {s_cnt}, 1"), sop(f"s_cmp_eq_u32 {s_cnt}, 0")], n - 6, n - 3, first_dep=last)
    return s

def touch(srd, sp, step):
    i = Ins(f"buffer_load_dword {vt0}, {vt1}, {srd}, {sp} offen", "vmem", rd=[vt1, srd, sp], wr=[vt0]); i.vm = True
    return [i, sop(f"s_add_u32 {sp}, {sp}, {step}", rd=[sp], wr=[sp])]

RL = lambda b: SET(0)[b]
WA = lambda k: wa0 if k == 0 else SET(0)[4 + k]
RA = SET(0)[8]
PK = lambda c, k: O(k >> 1, 4 * c + (k & 1))

def make_last(nb, name):
    J = 7; par = 1
    X0, X1, A_, B_ = sets_for(par)
    s = Seg(nb, name)
    s.qblock("t0", 0, A_, False, 0)
    s.pgen("t2", par, [[(c, d, 0), (c, d + 1, 0)] for c in (0, 1) for d in (0, 2)], X0, X1, False)
    s.pgen("t4", par, [[(c, d, 1), (c, d + 1, 1)] for c in (0, 1) for d in (0, 2)], X0, X1, False)
    s.pblock("t5", par, 2, X0, X1, False, 0)
    s.pblock("t7", par, 3, X0, X1, False, 0)
    n = len(s.mf); B = s.blk
    u2 = s.unit(X1, X1, False, list(range(SPLIT[nb], nb)), lambda b: 0, lambda b: B["t0"][1] + 2, None, 0, B["t0"][1] - 4)
    k1 = B["t4"][0]
    u3 = s.unit(A_, X1, True, range(nb), lambda b: s.done[("t0", b)] + LAT, lambda b: s.first[("P", 1, b)] - 2, B["t5"][0] + 6,
                B["t0"][1] - 2, k1 - 1, add_lo=k1, add_hi=B["t5"][0], after=u2)
    npair = len(s.pairs)
    kR = 12
    s.reads([[]], barrier_before={kR + 2: [waitcnt(None, 0), barrier()], npair: [waitcnt(None, 0), barrier()]})
    gR = s.bar_gap[kR + 2]; g2 = s.bar_gap[npair]
    c2 = s.chain(dma_Q(s_mR2, s_qn[2], ("R2",)), 0, B["t0"][1] - 2)
    def qchain(b, base, unit, tmp, lo, hi, pre, dl=None, first_dep=None):
        ins = pre + q_reads(b, base, unit, tmp)
        nds = s.chain(ins, lo, hi, dl=dl, first_dep=first_dep)
        for k, nd in enumerate(nds[len(pre) + 1:]):
            nd.e = max(nd.e, s.pairs[k // 2][1] + 1)
        return nds
    t0e = B["t0"][1]
    r0 = qchain(0, s_mX, ("X",), vt0, t0e - 10, t0e + 10, [vwait([("X",)])], dl=gR - 5)
    r1 = qchain(1, s_mR3, ("R3",), vt1, t0e + 10, gR - 8, [vwait([("R3",)])], dl=gR - 5, first_dep=r0[-1])
    c3 = s.chain([mark_wait_lds(("q", 0, 7))] + dma_Q(s_mX, s_qn[3], ("X",)), t0e + 16, gR + 4)
    c3[0].deps = [(r0[-1], 5), (c2[-1], 1)]
    refill = [sop(f"s_sub_u32 {s_vptr}, {s_knext}, 32768", wr=[s_vptr])] + dma_K(4) + dma_K(5) + dma_K(6) + dma_V(0, 0)
    c4 = s.chain(refill, gR + 4, g2 - 2, e=gR + 1, first_dep=c3[-1])
    r2 = s.chain([vwait([("R2",)])] + q_reads(2, s_mR2, ("R2",), vt0), g2 - 16, g2 - 6, dl=g2 - 4, first_dep=r1[-1])
    nca = opt.ca7
    grp = [dma_V(0, 1), dma_V(0, 2), dma_V(0, 3), dma_K(7)]
    c5 = s.chain(sum(grp[:nca], []), g2 + 1, n - 2, e=g2 + 1, first_dep=c4[-1]) if nca else c4
    ok = [sop(f"s_add_u32 {s_ok[k]}, {s_ocur}, {k * 4096}", wr=[s_ok[k]]) if (k < 2 * nb and not opt.nostore) else sop(f"s_mov_b32 {s_ok[k]}, {OOB:#x}", wr=[s_ok[k]]) for k in range(8)]
    k0 = s.chain(ok, 4, t0e + 8)
    k1 = s.chain(pass_begin(), gR + 6, n - 4, first_dep=k0[-1])
    k1[0].deps += [(c3[-1], 1), (c4[0], 1)]
    red = []
    for b in range(nb):
        seq = [valu("v_mov_b32", RL(b), lsum(b)), perm("v_permlane16_swap_b32", lsum(b), RL(b)), valu("v_add_f32", lsum(b), lsum(b), RL(b)),
               valu("v_mov_b32", RL(b), lsum(b)), perm("v_permlane32_swap_b32", lsum(b), RL(b)), valu("v_add_f32", lsum(b), lsum(b), RL(b)),
               valu("v_rcp_f32", RL(b), lsum(b))]
        prev = None
        for k, i in enumerate(seq):
            deps = [(prev, 2 if i.op.startswith("v_permlane") else 0)] if prev else [(x, 0) for x in u3[b][2:]]
            nd = Node(i, deps=deps, ideal=B["t5"][0] + 4 + 3 * k + b); red.append(nd); prev = nd
    ad = [valu("v_xor_b32", WA(k), 32 * k, wa0) for k in (1, 2, 3)]
    ad += [valu("v_mbcnt_lo_u32_b32", RA, -1, 0), valu("v_mbcnt_hi_u32_b32", RA, -1, RA), valu("v_lshl_add_u32", RA, RA, 4, s_mOS)]
    prev = None
    for k, i in enumerate(ad):
        nd = Node(i, deps=[(prev, 0)] if prev else [], ideal=B["t7"][0] + k); red.append(nd); prev = nd
    s.nodes += red
    return s

def mark_wait_lds(tag):
    i = raw("s_nop 0", "nop"); i.need = [tag]; i.is_marker = True
    return i

def make_head(nb, name, nxt_name):
    X0, X1, A_, B_ = sets_for(1)
    s = Seg(nb, name)
    s.qblock("h0", 1, B_, True, 0)
    s.qblock("h1", 2, X0, True, 0)
    s.qblock("h2", 3, A_, False, 0)
    iter_blocks(s, 0, True, split=2)
    n = len(s.mf); B = s.blk
    tmp = SET(X1)
    pre = {}; nmc = {}
    for b in range(nb):
        x = Sx(B_, b); ta, tb = tmp[2 * b], tmp[2 * b + 1]
        nmc[b] = tmp[8 + b]
        e = s.done[("h0", b)] + LAT
        seq = [valu("v_max3_f32", ta, x[0], x[1], x[2]), valu("v_max_f32", ta, ta, x[3]), valu("v_mov_b32", tb, ta),
               perm("v_permlane16_swap_b32", ta, tb), valu("v_max_f32", ta, ta, tb), valu("v_mov_b32", tb, ta),
               perm("v_permlane32_swap_b32", ta, tb), valu("v_min_f32", Ct(b)[0], Neg(ta), Neg(tb)),
               valu("v_mul_f32", nmc[b], s_c, Ct(b)[0]),
               valu("v_mov_b32", Ct(b)[1], Ct(b)[0]), valu("v_mov_b32", Ct(b)[2], Ct(b)[0]), valu("v_mov_b32", Ct(b)[3], Ct(b)[0])]
        prev = None; nds = []
        for i in seq:
            d = 2 if (prev is not None and i.op.startswith("v_permlane")) else 0
            nd = Node(i, e=e, dl=B["h2"][0] - 2 + 2 * b, deps=[(prev, d)] if prev else [])
            nds.append(nd); prev = nd
        for k, nd in enumerate(nds): nd.ideal = e + k * 0.7
        z = Node(valu("v_mov_b32", lsum(b), 0), e=0, dl=B["h0"][1], ideal=2 + b)
        s.nodes += nds + [z]
        pre[b] = [nds[8], z]
    t0s = B["t0"][0]; t1s = B["t1"][0]
    u0 = s.unit(B_, B_, False, range(nb), lambda b: s.done[("h0", b)] + LAT, lambda b: t1s - 4, None, B["h1"][0] + 10, B["h2"][0] + 14, pre=pre, fma=nmc)
    u1 = s.unit(X0, B_, True, range(nb), lambda b: s.done[("h1", b)] + LAT, lambda b: t1s - 2, t1s - 2, B["h2"][0] + 14, t0s + 16, pre=pre, after=u0, fma=nmc)
    for nd in s.nodes:
        if nd.ins.text.startswith("v_fma_f32"): nd.dl = min(nd.dl, t0s - 2); nd.ideal = min(nd.ideal, t0s - 6)
    u2 = s.unit(A_, A_, False, range(nb), lambda b: s.done[("h2", b)] + LAT, lambda b: s.first[("P", 1, b)] - 4, None, t0s + 16, t1s + 14)
    iter_units(s, 0, u2, lo3=t1s + 14)
    prev = None
    for k, i in enumerate([valu("v_mbcnt_lo_u32_b32", vt1, -1, 0), valu("v_mbcnt_hi_u32_b32", vt1, -1, vt1), valu("v_lshlrev_b32", vt1, 7, vt1)]):
        nd = Node(i, deps=[(prev, 0)] if prev else [], ideal=8 + k); s.nodes.append(nd); prev = nd
    npair = len(s.pairs)
    nxt = first_pairs_of_iter(nb, 1, nxt_name)
    def tb(k, l):
        if opt.diag != 3: return l
        return [raw(f"s_memtime s[{90+4*k}:{91+4*k}]")] + l + [raw(f"s_memtime s[{92+4*k}:{93+4*k}]")]
    s.reads(nxt, barrier_before={12: tb(0, [vwait(units_of(0, 0), 0), barrier()]), 28: tb(1, [vwait(units_of(0, 1), 0), barrier()]),
                                 npair: tb(2, [vwait(units_of(1, 0), 0), barrier()])})
    g0 = s.bar_gap[12]; g1 = s.bar_gap[28]; g2 = s.bar_gap[npair]
    grp = [dma_V(0, 1), dma_V(0, 2), dma_V(0, 3), dma_K(7)][opt.ca7:] + [dma_K(0), dma_V(1, 0), dma_V(1, 1), dma_V(1, 2), dma_V(1, 3)]
    ca = s.chain(sum(grp[:4], []), 0, B["h0"][1] + 2, dl=g1 - 30)
    rest = grp[4:]
    nearly = max(0, len(rest) - 3 + min(3, opt.ca7)) if False else max(0, 6 - opt.ca7 - 4)
    cb = s.chain(sum(rest[:nearly], []) + dma_K(1) + dma_K(2), B["t1"][0], B["t4"][0], e=g0 + 1, first_dep=ca[-1])
    cc = s.chain(sum(rest[nearly:], []) + dma_K(3), B["t4"][0] + 8, B["t6"][0] + 4, first_dep=cb[-1])
    cd = s.chain(dma_K(4) + dma_K(5) + dma_K(6) + dma_V(0, 0), B["t6"][0] + 6, n - 4, e=g1 + 1, first_dep=cc[-1])
    prev = None
    nd_ = opt.defer
    sts = [(c, k) for c in range(4 - nd_, 4) for k in range(8)]
    lo, hi = 6, min(6 + 5 * len(sts), s.first[("O", 3)] - 4)
    for j, (c, k) in enumerate(sts):
        nd = Node(store(c, k), dl=s.first[("O", c)] - 3, ideal=lo + (hi - lo) * j / len(sts), deps=[(prev, 2)] if prev else [])
        s.nodes.append(nd); prev = nd
    head = [i for p in s.pairs[:3] for i in p[2]]
    return s, head

def perm(op, a, b):
    i = valu(op, a, b, extra_rd=[a], extra_wr=[b]); i.cost = 8
    return i

def acc_read(d, a):
    i = Ins(f"v_accvgpr_read_b32 {d}, {a}", "acc", rd=[a], wr=[d]); return i

def make_epi(nb):
    r = []
    t = SET(0)[9]
    r += [valu("v_max3_f32", t, lsum(0), lsum(1), lsum(2))]
    if nb == 4: r += [valu("v_max_f32", t, t, lsum(3))]
    c_ = valu("v_cmp_ngt_f32", "vcc", hex(L_LIMIT), t); c_.wr.add(('s', 'vcc')); r.append(c_)
    flagl = [raw(f"s_cbranch_vccz L_noflag{nb}"), sop(f"s_bitset1_b32 {s_flags}, {s_pass}"), label(f"L_noflag{nb}")]
    TMP = lambda k: V(48 + 4 * (k % 12), 4)
    order = [(c, dbl, b) for c in range(4) for dbl in range(4) for b in range(nb)]
    acct = [t_ for t_ in order if O(t_[2], 4 * t_[0] + t_[1]).k == 'a']
    slot = {t_: k for k, t_ in enumerate(acct)}
    accq = [(t_, i) for t_ in acct for i in range(4)]
    nacc = 0; done_acc = 0
    extra = []
    held = None
    for j, (c, dbl, b) in enumerate(order):
        o = O(b, 4 * c + dbl)
        want = len(accq) and min(len(acct) * 4, -(-(j + 1) * len(acct) * 4 // (len(order) - 4)))
        while nacc < len(acct) * 4 and (nacc < want or (o.k == 'a' and nacc < 4 * (slot[(c, dbl, b)] + 1))) and nacc // 4 < done_acc + 12:
            t_, i = accq[nacc]; nacc += 1
            r.append(acc_read(TMP(slot[t_])[i], O(t_[2], 4 * t_[0] + t_[1])[i]))
        t4 = TMP(slot[(c, dbl, b)]) if o.k == 'a' else o
        rlp = V(RL(b).n & ~1, 2); sel = RL(b).n & 1
        for h in range(2):
            r.append(valu("v_pk_mul_f32", t4.sub(2 * h, 2), t4.sub(2 * h, 2), rlp, mods=f"op_sel:[0,{sel}] op_sel_hi:[1,{sel}]"))
        r += [valu("v_cvt_pk_bf16_f32", t4[0], t4[0], t4[1]), valu("v_cvt_pk_bf16_f32", t4[1], t4[2], t4[3])]
        if b % 2 == 0 and b + 1 < nb:
            held = (t4, o.k == 'a')
        else:
            while extra and getattr(extra[0], "lds_rd", None) == ("OS",): r.append(extra.pop(0))
            if held is not None:
                w = Ins(f"ds_write2st64_b64 {WA(dbl)}, {held[0].sub(0, 2)}, {t4.sub(0, 2)} offset0:{(b - 1) * 4} offset1:{b * 4}", "ds",
                        rd=[WA(dbl), held[0].sub(0, 2), t4.sub(0, 2)], tag=("w", j))
                done_acc += held[1]; held = None
            else:
                w = ds_write("ds_write_b64", WA(dbl), t4.sub(0, 2), b * 2048, tag=("w", j))
            w.lds_pw = ("OS",); r.append(w)
            done_acc += (o.k == 'a')
        if j == 1: r += flagl
        k_ = 0
        while extra and k_ < (3 if extra[0].kind == "salu" else 1):
            if extra[0].kind == "vmem" and j % 2 == 0: break
            r.append(extra.pop(0)); k_ += 1
        if dbl == 3 and b == nb - 1:
            r += extra; extra = []
            for k in range(2 * nb):
                i = ds_read("ds_read_b128", PK(c, k), RA, k * 1024, tag=("o", c, k)); i.lds_rd = ("OS",); i.private = True
                extra.append(i)
            if c < 3 and c < 4 - opt.defer:
                for k in range(2 * nb):
                    st = store(c, k); st.need = [("o", c, k)]; extra.append(st)
            if c == 1: extra += [vwait([("X",)])] + q_reads(3, s_mX, ("X",), vt0)
            if c == 2: extra += head_reads()
    r += extra
    if opt.defer == 0:
        for k in range(2 * nb):
            st = store(3, k); st.need = [("o", 3, k)]; r.append(st)
    return r

def head_reads():
    s = Seg(4, "hd"); s.qblock("h0", 1, 0, True, 0)
    return [i for p in s.pairs[:3] for i in p[2]]

def store(c, k):
    data = PK(c, k)
    i = Ins(f"buffer_store_dwordx4 {data}, {vsto}, {sO}, {s_ok[k]} offen offset:{c * 128} {opt.omod}".rstrip(), "vmem", rd=[data, vsto, sO, s_ok[k]])
    i.wide_store = True; i.data = data.set(); i.vm = True
    return i

def lin(seq, pre=()):
    out = []; q = list(pre)
    for i in seq:
        if i.need:
            idx = -1
            for t in i.need:
                if t in q: idx = max(idx, len(q) - 1 - q[::-1].index(t))
            if idx >= 0:
                n = min(len(q) - 1 - idx, 15)
                out.append(waitcnt(None, n)); q = q[idx + 1:]
        if getattr(i, "lgw", None) is not None: q = q[len(q) - i.lgw:] if i.lgw else []
        if getattr(i, "is_marker", False): continue
        if i.kind == "ds": q.append(i.tag)
        out.append(i)
    return out, q

def flat(gaps, pre, nxt_need):
    out = []; q = list(pre)
    def wf(need):
        nonlocal q
        idx = -1
        for t in need:
            if t in q: idx = max(idx, len(q) - 1 - q[::-1].index(t))
        if idx < 0: return
        n = min(len(q) - 1 - idx, 15)
        out.append(waitcnt(None, n)); q = q[idx + 1:]
    for g, (m, sc, oth) in enumerate(gaps):
        wf(m.need)
        out.append(m)
        has_l0 = any(getattr(i, "lgw", None) == 0 for i in sc)
        if not has_l0:
            wf(gaps[g + 1][0].need if g + 1 < len(gaps) else nxt_need)
        for i in sc + oth:
            if i.need: wf(i.need)
            if getattr(i, "lgw", None) == 0: q = []
            if getattr(i, "is_marker", False): continue
            if i.kind == "ds": q.append(i.tag)
            out.append(i)
    return out, q

def label(n): return Ins(n + ":", "label", states=0, cost=0)

def stamp(k):
    if not opt.diag: return []
    return [raw(f"s_memrealtime {s_ts}"), raw("s_memtime s[66:67]"), raw("s_waitcnt lgkmcnt(0)", "wait0"), raw(f"s_mov_b32 m0, {s_tsp}"), raw("s_nop 1"),
            raw(f"v_writelane_b32 v0, {s_ts.sub(0)}, m0"), raw(f"s_add_u32 m0, m0, 32"), raw("s_nop 1"), raw("v_writelane_b32 v0, s66, m0"),
            raw(f"s_add_u32 {s_tsp}, {s_tsp}, 1")]

def retag(q, old, new):
    return [tuple(new if x == old else x for x in t) if len(t) > 1 else t for t in q]

def variant(nb):
    P = {}
    hd, head = make_head(nb, "hd", "i1")
    i1 = make_mid(nb, 1, "i1", "i2")
    i2 = make_mid(nb, 2, "i2", "i1")
    i6 = make_mid(nb, 6, "i2", "i1", special=True)
    i7 = make_last(nb, "i1")
    SG = dict(hd=hd, i1=i1, i2=i2, i6=i6, i7=i7)
    G = {k: s.build() for k, s in SG.items()}
    print(f"nb={nb} overflow cycles:", {k: s.over for k, s in SG.items()}, file=sys.stderr)
    P["hd"], q0 = flat(G["hd"], [], G["i1"][0][0].need)
    P["i1"], q1 = flat(G["i1"], q0, G["i2"][0][0].need)
    P["i2"], q2 = flat(G["i2"], q1, G["i1"][0][0].need)
    assert q2 == q0, (q0, q2)
    P["i6"], q = flat(G["i6"], q1, G["i7"][0][0].need)
    P["i7"], q = flat(G["i7"], q, [])
    P["epi"], q = lin(make_epi(nb), q)
    return P

def resolve_vm(traces):
    ws = set()
    for tr in traces:
        n = 0; last = {}
        for i in tr:
            if getattr(i, "vmneed", None) is not None:
                idx = max([last.get(u, -1) for u in i.vmneed])
                if idx >= 0: i.vmauto = min(i.vmauto, n - 1 - idx)
                ws.add(i)
            if getattr(i, "vm", False):
                u = getattr(i, "dma_wr", None)
                if u: last[u] = n
                n += 1
    for i in ws:
        i.vmw = i.vmauto
        i.text = f"s_waitcnt vmcnt({i.vmw})" + (f" lgkmcnt({i.lgw})" if i.lgw is not None else "")

def check_trace(trace):
    vm = []
    lg = []
    state = {}
    epoch = 0
    ALIAS = {("R2",): [("V", 0, 1), ("V", 0, 2), ("V", 0, 3), ("K", 7)], ("OS",): [("V", 1, c) for c in range(4)],
             ("R3",): [("K", 4), ("K", 5), ("K", 6), ("V", 0, 0)]}
    def phys(u): return ALIAS.get(u, [u])
    wr_land = {}; wr_pend = {}; rd_done = {}; rd_pend = {}; owner = {}
    errs = []
    for k, i in enumerate(trace):
        if getattr(i, "vmw", None) is not None:
            while len(vm) > i.vmw:
                o = vm.pop(0)
                u = getattr(o, "dma_wr", None)
                if u: wr_pend[u] -= 1; wr_land[u] = epoch
        if getattr(i, "lgw", None) is not None or i.kind == "wait0":
            n = 0 if i.kind == "wait0" else i.lgw
            while len(lg) > n:
                o = lg.pop(0)
                u = getattr(o, "lds_rd", None) or getattr(o, "lds_pw", None)
                if u: rd_pend[u] -= 1; rd_done[u] = epoch
        if getattr(i, "bar", False): epoch += 1
        u = getattr(i, "lds_rd", None)
        if u:
            if True:
                if wr_pend.get(u, 0) > 0: errs.append((k, "read of unit with pending DMA", u, i.text))
                elif not getattr(i, "private", False) and wr_land.get(u, 10**9) >= epoch: errs.append((k, "read without barrier after landing", u, i.text))
            for p in phys(u):
                if owner.get(p) != u: errs.append((k, "read of unit owned by", owner.get(p), u, i.text))
        w = getattr(i, "dma_wr", None) or getattr(i, "lds_pw", None)
        if w:
            for p in phys(w):
                o = owner.get(p)
                if o is not None:
                    priv = (o == w and w in (("X",), ("R2",), ("R3",), ("OS",)))
                    if rd_pend.get(o, 0) > 0 and not (getattr(i, "lds_pw", None) and o == w):
                        errs.append((k, "write over unit with reads in flight", o, w, i.text))
                    if not priv and rd_done.get(o, -1) >= epoch: errs.append((k, "write without barrier after reads", o, w, i.text))
                    if o != w and wr_pend.get(o, 0) > 0: errs.append((k, "write over pending dma", o, w))
                    if o != w and wr_land.get(o, -1) >= epoch: errs.append((k, "write over unit landed w/o barrier", o, w))
                owner[p] = w
        if i.kind == "ds":
            lg.append(i)
            u = getattr(i, "lds_rd", None) or getattr(i, "lds_pw", None)
            if u: rd_pend[u] = rd_pend.get(u, 0) + 1
        if getattr(i, "vm", False):
            vm.append(i)
            u = getattr(i, "dma_wr", None)
            if u: wr_pend[u] = wr_pend.get(u, 0) + 1
            assert len(vm) <= 63, "vmcnt overflow"
    return errs

def cross_check(traces):
    ALIAS = {("R2",): [("V", 0, 1), ("V", 0, 2), ("V", 0, 3), ("K", 7)], ("OS",): [("V", 1, c) for c in range(4)],
             ("R3",): [("K", 4), ("K", 5), ("K", 6), ("V", 0, 0)]}
    allg = []
    for tr in traces:
        gens = {}; epoch = 0; vm = []; lg = []
        for i in tr:
            if getattr(i, "vmw", None) is not None:
                while len(vm) > i.vmw:
                    for g in vm.pop(0): g["land"] = epoch
            if getattr(i, "lgw", None) is not None or i.kind == "wait0":
                n = 0 if i.kind == "wait0" else i.lgw
                while len(lg) > n:
                    for g in lg.pop(0): g["done"] = epoch
            if getattr(i, "bar", False): epoch += 1
            w = getattr(i, "dma_wr", None) or getattr(i, "lds_pw", None); r = getattr(i, "lds_rd", None)
            touched = []
            u = w or r
            if u and u != ("X",):
                for p in ALIAS.get(u, [u]):
                    l = gens.setdefault(p, [])
                    if w and (not l or l[-1]["own"] != u or (l[-1]["rd0"] is not None and u not in ALIAS)):
                        l.append(dict(own=u, wr0=epoch, land=10**9, rd0=None, done=-1))
                    g = l[-1]
                    if r and g["rd0"] is None: g["rd0"] = epoch
                    if r or getattr(i, "lds_pw", None): g["done"] = 10**9
                    if getattr(i, "dma_wr", None): g["land"] = 10**9
                    touched.append(g)
            if i.kind == "ds": lg.append(touched)
            if getattr(i, "vm", False): vm.append(touched)
        allg.append((gens, epoch))
    assert len(set(e for _, e in allg)) == 1, "barrier counts differ"
    for p in allg[0][0]:
        n = len(allg[0][0][p])
        assert all(len(g[p]) == n and [x["own"] for x in g[p]] == [x["own"] for x in allg[0][0][p]] for g, _ in allg), ("generations differ", p)
        for k in range(n):
            G = [g[p][k] for g, _ in allg]
            if G[0]["own"] not in ALIAS and G[0]["rd0"] is not None:
                assert max(x["land"] for x in G) < min(x["rd0"] for x in G), ("cross RAW", p, k, G)
            if k + 1 < n:
                N = [g[p][k + 1] for g, _ in allg]
                assert max(x["done"] for x in G) < min(x["wr0"] for x in N), ("cross WAR", p, k, G, N)
                if G[0]["own"] != N[0]["own"] and any(x["land"] != 10**9 or x["rd0"] is not None for x in G) and G[0]["own"] != ("OS",):
                    assert max(x["land"] for x in G) < min(x["wr0"] for x in N), ("cross WAW", p, k, G, N)

THR = {}
def schedule_table(mode):
    tab = {}
    if mode == "simple":
        for wg in range(256):
            x = wg & 7; idx = wg >> 3
            head = x * 16 + (idx >> 1); base = 41 * (idx & 1)
            tab[wg] = [(head, base, 12), (head, base + 12, 16), (head, base + 28, 13)]
    elif mode == "share":
        for x in range(8):
            rounds = [[], [], []]
            def add(r, h, start, sizes):
                for sz in sizes:
                    rounds[r].append((x * 16 + h, start, sz)); start += sz
                return start
            for h in range(10):
                st = add(0, h, 0, [12, 12, 12]); add(1 if h < 6 else 2, h, st, [15, 15, 16])
            st = add(0, 10, 0, [12, 12]); st = add(1, 10, st, [15, 14]); add(2, 10, st, [15, 14])
            for h in range(11, 16):
                add(1 if h < 13 else 2, h, 0, [14, 14, 14, 14, 13, 13])
            assert all(len(r) == 32 for r in rounds), [len(r) for r in rounds]
            for idx in range(32):
                tab[idx * 8 + x] = [rounds[0][idx], rounds[1][idx], rounds[2][idx]]
    elif mode.startswith("g6"):
        orders = {"A": (0, 1, 2), "B": (1, 0, 2), "C": (2, 1, 0), "D": (2, 0, 1)}
        pat = mode.split("_")[1]
        rot = pat.startswith("x"); pat = pat.lstrip("x")
        for x in range(8):
            for g in range(6):
                o = orders[pat[(g + (x if rot else 0)) % len(pat)]] if not pat.startswith("X") else orders["ABC"[x % 3]]
                if g < 5:
                    ha, hb, hc = [x * 16 + 3 * g + i for i in range(3)]
                    r0 = [(ha, 0, 12), (ha, 12, 12), (ha, 24, 12), (hb, 0, 12), (hb, 12, 12), (hb, 24, 12)]
                    r1 = [(ha, 36, 15), (ha, 51, 15), (ha, 66, 16), (hb, 36, 15), (hb, 51, 15), (hb, 66, 16)]
                    r2 = [(hc, 0, 14), (hc, 14, 14), (hc, 28, 13), (hc, 41, 14), (hc, 55, 14), (hc, 69, 13)]
                    n = 6
                else:
                    h = x * 16 + 15
                    r0 = [(h, 0, 12), (h, 12, 12)]; r1 = [(h, 24, 15), (h, 39, 15)]; r2 = [(h, 54, 14), (h, 68, 14)]
                    n = 2
                R = [r0, r1, r2]
                for i in range(n):
                    tab[(6 * g + i) * 8 + x] = [R[o[0]][i], R[o[1]][i], R[o[2]][i]]
    elif mode.startswith("t3"):
        _, lo, so, th = mode.split("_")
        th = [int(x, 16) for x in th.split(".")]
        for x in range(8):
            H = [x * 16 + i for i in range(16)]
            T3 = lambda h: [(h, 0, 12), (h, 12, 12), (h, 24, 12)]
            T4 = lambda h: [(h, 36, 16), (h, 52, 16), (h, 68, 14)]
            for g in range(5):
                a, b, c = H[3 * g], H[3 * g + 1], H[3 * g + 2]
                Lt = {"3": T3(a), "4": T4(a), "5": T4(b)[::-1]}
                St = {"3": T3(c), "2": T3(b), "4": T4(c)}
                lord = lo.split(".")[(g + x) % len(lo.split("."))]; sord = so.split(".")[(g + x) % len(so.split("."))]
                for i in range(3):
                    tab[(6 * g + i) * 8 + x] = [Lt[k][i] for k in lord]
                    tab[(6 * g + 3 + i) * 8 + x] = [St[k][i] for k in sord]
                    THR[(6 * g + 3 + i) * 8 + x] = th[(g + x) % len(th)]
            h = H[15]
            tab[30 * 8 + x] = [(h, 0, 12), (h, 36, 16), (h, 68, 14)]
            tab[31 * 8 + x] = [(h, 12, 12), (h, 52, 16), (h, 24, 12)]
    cov = {}
    for wg, l in tab.items():
        for h, st, n in l:
            assert 12 <= n <= 16
            for b in range(st, st + n):
                assert (h, b) not in cov; cov[(h, b)] = wg
    assert len(cov) == 128 * 82
    return tab

def setup_code():
    L = []; A = L.append
    if opt.diag or opt.padto: A("s_memrealtime s[98:99]")
    A("s_cmp_ge_u32 s2, 256")
    A("s_cbranch_scc1 L_exit")
    A("s_load_dwordx4 s[72:75], s[0:1], 0")
    A("s_load_dwordx4 s[76:79], s[0:1], 16")
    if opt.diag: A("s_load_dwordx2 s[64:65], s[0:1], 40")
    A("s_getpc_b64 s[4:5]")
    A("L_pc:")
    if opt.warm:
        A("s_mov_b32 s6, L_warm_end-L_pc\ns_mov_b32 s7, 0x20000\nv_lshlrev_b32 v16, 7, v0")
        for k in range(opt.warm): A(f"s_mov_b32 s3, {k * 32768}\nbuffer_load_dword v{17 + k}, v16, s[4:7], s3 offen")
    A("s_lshl_b32 s3, s2, 6")
    A("s_add_u32 s3, s3, L_table-L_pc")
    A("s_add_u32 s46, s4, s3")
    A("s_addc_u32 s47, s5, 0")
    A("s_load_dwordx16 s[80:95], s[46:47], 0")
    A(f"v_readfirstlane_b32 {s_wave}, v0")
    A("v_and_b32 v10, 63, v0")
    A(f"s_lshr_b32 {s_wave}, {s_wave}, 6")
    A("v_and_b32 v11, 15, v10")
    A("v_lshrrev_b32 v14, 4, v10")
    A("v_lshrrev_b32 v15, 2, v11\nv_lshlrev_b32 v1, 11, v15\nv_and_b32 v6, 3, v11\nv_lshl_add_u32 v1, v6, 6, v1")
    A("v_lshrrev_b32 v6, 3, v11\nv_lshlrev_b32 v6, 1, v6\nv_xor_b32 v6, v6, v14\nv_lshl_add_u32 v1, v6, 4, v1")
    A("v_lshrrev_b32 v6, 1, v14\nv_lshlrev_b32 v2, 10, v6\nv_and_b32 v7, 1, v14\nv_lshl_add_u32 v6, v7, 2, v15\nv_lshl_add_u32 v2, v6, 6, v2")
    A(f"v_and_b32 v8, 3, v10\nv_lshl_add_u32 v2, v8, 3, v2\nv_lshl_add_u32 v2, v7, 5, v2\nv_add_u32 v2, {VB}, v2\nv_xor_b32 v3, 32, v2")
    A("v_lshlrev_b32 v12, 9, v15\nv_lshl_add_u32 v12, v14, 6, v12\nv_lshl_add_u32 v12, v8, 4, v12\nv_xor_b32 v13, 32, v12\nv_add_u32 v13, 4096, v13")
    A(f"s_lshl_b32 {s_mK}, {s_wave}, 11\ns_lshr_b32 s3, {s_wave}, 1\ns_lshl_b32 s3, s3, 5")
    A(f"v_xor_b32 v4, s3, v12\nv_add_u32 v4, {s_mK}, v4")
    A("v_lshrrev_b32 v6, 2, v10\nv_and_b32 v6, 7, v6\nv_lshlrev_b32 v5, 9, v6\nv_lshrrev_b32 v6, 2, v6\nv_lshlrev_b32 v6, 1, v6\nv_xor_b32 v6, v6, v8")
    A(f"v_lshl_add_u32 v5, v6, 4, v5\nv_lshrrev_b32 v6, 5, v10\nv_lshl_add_u32 v5, v6, 6, v5\ns_lshl_b32 s3, {s_wave}, 13\nv_add_u32 v5, s3, v5")
    A(f"s_add_u32 {s_mX}, s3, {XB}")
    A(f"s_add_u32 {s_mOS}, s3, {vslot_addr(1, 0)}")
    A(f"s_add_u32 {s_mR2}, s3, {vslot_addr(0, 0)}")
    A(f"s_cmp_eq_u32 {s_wave}, 0\ns_cselect_b32 {s_mR2}, {kslot_addr(7)}, {s_mR2}")
    A(f"s_add_u32 {s_mR3}, s3, {kslot_addr(4)}")
    A(f"s_cmp_eq_u32 {s_wave}, 3\ns_cselect_b32 {s_mR3}, {vslot_addr(0, 0)}, {s_mR3}")
    A("v_lshrrev_b32 v6, 1, v14\nv_and_b32 v9, 7, v11\nv_xor_b32 v6, v6, v9\nv_lshlrev_b32 v6, 4, v6\nv_lshl_add_u32 v6, v7, 3, v6")
    A(f"v_lshl_add_u32 v6, v11, 7, v6\nv_add_u32 v15, {s_mOS}, v6")
    A("v_lshrrev_b32 v6, 3, v10\nv_xor_b32 v9, v9, v6\nv_lshlrev_b32 v9, 4, v9\nv_lshl_add_u32 v14, v6, 9, v9")
    A(f"s_mov_b32 {s_c}, {C_SCALE:#x}\ns_mov_b32 {s_pass}, 0\ns_mov_b32 {s_flags}, 0")
    if opt.diag: A(f"s_mov_b32 {s_tsp}, 1\nv_mov_b32 v0, 0")
    A("s_waitcnt lgkmcnt(0)")
    if opt.diag: A("v_writelane_b32 v0, s98, 0")
    for srd, p, n in ((sQ, 72, QBYTES), (sK, 74, KBYTES), (sV, 76, KBYTES), (sO, 78, QBYTES)):
        A(f"s_mov_b32 {srd[0]}, s{p}\ns_mov_b32 {srd[1]}, s{p+1}\ns_mov_b32 {srd[2]}, {n}\ns_mov_b32 {srd[3]}, 0x20000")
    for k in range(8): A(f"s_mov_b32 {s_ok[k]}, {OOB:#x}")
    for p in range(3):
        A(f"s_sub_u32 s3, s{80+3*p+2}, 12")
        A(f"s_min_u32 s4, s3, {s_wave}")
        A(f"s_mul_i32 s5, {s_wave}, 3\ns_add_u32 s4, s4, s5\ns_lshl_b32 s4, s4, 13")
        A(f"s_add_u32 {s_tab[4*p]}, s{80+3*p}, s4")
        A(f"s_mov_b32 {s_tab[4*p+1]}, s{80+3*p+1}")
        A(f"s_add_u32 {s_tab[4*p+3]}, {s_tab[4*p]}, 24576")
        A(f"s_cmp_lt_u32 {s_wave}, s3\ns_cselect_b32 {s_tab[4*p+2]}, 4, 3\ns_cselect_b32 {s_tab[4*p+3]}, {s_tab[4*p+3]}, {OOB:#x}")
    A(f"s_mov_b32 {s_tab[12]}, {OOB:#x}\ns_mov_b32 {s_tab[13]}, {OOB:#x}\ns_mov_b32 {s_tab[14]}, 0\ns_mov_b32 {s_tab[15]}, {OOB:#x}")
    for p in range(3):
        for k in range(3): A(f"s_mov_b32 s{80+3*p+k}, {s_tab[4*p+k]}")
    return L

def startup():
    r = []
    r += [sop(f"s_mov_b32 {s_kptr}, {s_tab[1]}", wr=[s_kptr]), sop(f"s_sub_u32 {s_vptr}, {s_tab[1]}, 32768", wr=[s_vptr])]
    r += [sop(f"s_add_u32 {s_t0}, {s_tab[0]}, 8192", wr=[s_t0]), sop(f"s_add_u32 {s_t1}, {s_tab[0]}, 16384", wr=[s_t1]),
          sop(f"s_add_u32 {s_t2}, {s_tab[0]}, 24576", wr=[s_t2])]
    r += dma_K(1)
    k = 0
    for grp in (dma_Q(s_mX, s_tab[0], ("X",)), dma_Q(s_mR2, s_t0, ("R2",)), dma_Q(s_mOS, s_t1, ("OS",))):
        for hf in (grp[:6], grp[6:]):
            r += hf
            r += [sop(f"s_bitcmp1_b32 s89, {k}"), raw(f"s_cbranch_scc0 L_th{k}"), raw("s_waitcnt vmcnt(0)"), label(f"L_th{k}")]
            k += 1
    r += dma_K(2) + dma_K(3)
    r += dma_K(4) + dma_K(5) + dma_K(6) + dma_V(0, 0)
    r += [vwait([("X",)])] + q_reads(0, s_mX, ("X",), vt0)
    r += [sop(f"s_cmp_lt_u32 {s_tab[2]}, 4"), raw("s_cbranch_scc1 L_noq3")]
    r2 = [waitcnt(None, 0)] + dma_Q(s_mX, s_t2, ("X",))
    r2 += [vwait([("R2",)])] + q_reads(1, s_mR2, ("R2",), vt1) + [vwait([("OS",)])] + q_reads(2, s_mOS, ("OS",), vt0)
    r2 += [vwait([("X",)])] + q_reads(3, s_mX, ("X",), vt1) + [raw("s_branch L_first")]
    r3 = [vwait([("R2",)])] + q_reads(1, s_mR2, ("R2",), vt1) + [vwait([("OS",)])] + q_reads(2, s_mOS, ("OS",), vt0)
    r3 += [vwait([("K", 1), ("K", 2), ("K", 3)])]
    return r, r2, r3

def pass_begin():
    T2 = lambda k: S(s_tab.n + k, 2)
    r = [sop(f"s_mov_b32 {s_ocur}, {s_tab[0]}"),
         sop(f"s_add_u32 {s_kend}, {s_tab[1]}, 262144"),
         sop(f"s_mov_b32 {s_nbn}, {s_tab[2]}"),
         sop(f"s_mov_b32 {s_knext}, {s_tab[5]}"),
         sop(f"s_mov_b32 {s_xq}, {s_tab[4]}"),
         sop(f"s_add_u32 {s_qn[1]}, {s_tab[4]}, 8192"), sop(f"s_add_u32 {s_qn[2]}, {s_tab[4]}, 16384"),
         sop(f"s_mov_b32 {s_qn[3]}, {s_tab[7]}")]
    for k in range(0, 12, 2): r.append(sop(f"s_mov_b64 {T2(k)}, {T2(k + 4)}"))
    r += [sop(f"s_mov_b32 {s_cnt}, 3"), sop(f"s_mov_b32 {s_tq}, {s_qn[1]}"), sop(f"s_lshl_b32 {s_tk}, {s_wave}, 13"),
          sop(f"s_add_u32 {s_tk}, {s_tk}, {s_knext}"), sop(f"s_mov_b32 {s_tv}, {s_tk}"),
          sop(f"s_mov_b32 {s_xm}, {s_mX}")]
    return r

def repair_code():
    rQ = lambda k: V(96 + 4 * k, 4); rK = lambda k: V(128 + 4 * k, 4); rS = lambda k: V(32 + 4 * k, 4)
    rO = lambda k: V(160 + 4 * k, 4); rV = lambda k: V(224 + 4 * k, 4)
    m, l, ta, tb, al, nm = V(6), V(7), V(8), V(9), V(10), V(11)
    fa, va0, va1, vop, so = V(48), V(49), V(50), V(51), V(52)
    sp, sb, sj, sq, sk, sv = S(90), S(91), S(92), S(93), S(94), S(95)
    def gload(d, srd, soff, imm):
        return Ins(f"buffer_load_dwordx4 {d}, {fa}, {srd}, {soff} offen offset:{imm}", "vmem", rd=[fa, srd, soff], wr=[d])
    W = lambda t: raw(t, "wait")
    out = []
    pre = [W("s_waitcnt vmcnt(0) lgkmcnt(0)"),
           valu("v_mbcnt_lo_u32_b32", ta, -1, 0), valu("v_mbcnt_hi_u32_b32", ta, -1, ta),
           valu("v_and_b32", tb, 15, ta), valu("v_lshrrev_b32", ta, 4, ta),
           valu("v_lshlrev_b32", fa, 9, tb), valu("v_lshl_add_u32", so, ta, 3, fa), valu("v_lshl_add_u32", fa, ta, 4, fa),
           sop(f"s_sub_u32 {s_t0}, {s_mX}, {VB}"), valu("v_add_u32", va0, s_t0, vaddr0), valu("v_add_u32", va1, s_t0, vaddr1),
           sop(f"s_lshl_b32 {s_t0}, {s_wave}, 13"), valu("v_subrev_u32", vop, s_t0, voV),
           sop(f"s_mov_b32 {sp}, 0")]
    out += fix_hazards(pre)
    out += [label("L_rp"), sop(f"s_bitcmp1_b32 {s_flags}, {sp}"), raw("s_cbranch_scc0 L_rp_next"), sop(f"s_mov_b32 {sb}, 0"), label("L_rb")]
    blk = [sop(f"s_lshl_b32 {sq}, {sb}, 13"), sop(f"s_add_u32 {sq}, {sq}, s80")]
    blk += [gload(rQ(k), sQ, sq, k * 64) for k in range(8)]
    blk += [valu("v_mov_b32", m, "0xff800000"), valu("v_mov_b32", l, 0)]
    blk += [valu("v_mov_b32", V(160 + k), 0) for k in range(64)]
    blk += [sop(f"s_mov_b32 {sk}, s81"), sop(f"s_mov_b32 {sv}, s81"), sop(f"s_mov_b32 {sj}, 0")]
    out += fix_hazards(blk) + [label("L_rj")]
    it = []
    for kvb in range(4):
        it += [gload(rK(k), sK, sk, k * 64) for k in range(8)] + [sop(f"s_add_u32 {sk}, {sk}, 8192"), W("s_waitcnt vmcnt(0)")]
        it += [mfma(rS(kvb), rK(k), rQ(k), rS(kvb) if k else 0) for k in range(8)]
    xs = [V(32 + k) for k in range(16)]
    it += [valu("v_max3_f32", ta, m, xs[0], xs[1])]
    it += [valu("v_max3_f32", ta, ta, xs[k], xs[k + 1]) for k in range(2, 16, 2)]
    it += [valu("v_mov_b32", tb, ta), perm("v_permlane16_swap_b32", ta, tb), valu("v_max_f32", ta, ta, tb),
           valu("v_mov_b32", tb, ta), perm("v_permlane32_swap_b32", ta, tb), valu("v_max_f32", ta, ta, tb),
           valu("v_sub_f32", al, m, ta), valu("v_mul_f32", al, s_c, al), valu("v_exp_f32", al, al), valu("v_mov_b32", m, ta)]
    it += [valu("v_sub_f32", x, x, m) for x in xs] + [valu("v_mul_f32", x, s_c, x) for x in xs] + [valu("v_exp_f32", x, x) for x in xs]
    it += [valu("v_mul_f32", l, l, al)] + [valu("v_add_f32", l, l, x) for x in xs]
    it += [valu("v_mul_f32", V(160 + k), V(160 + k), al) for k in range(64)]
    Pf = lambda ks: V(16 + 4 * ks, 4)
    for ks in range(2):
        for j in range(4): it.append(valu("v_cvt_pk_bf16_f32", Pf(ks)[j], xs[8 * ks + 2 * j], xs[8 * ks + 2 * j + 1]))
    for c in range(4):
        for j in range(8):
            it += [sop(f"s_add_u32 {s_t0}, {sv}, {j * 4096 + c * 128}", wr=[s_t0]), set_m0(s_mX, j * 1024), dma(vop, sV, s_t0, 0, None, "")]
        it += [W("s_waitcnt vmcnt(0)")]
        for dbl in range(4):
            for ks in range(2):
                for j4 in range(2):
                    it.append(ds_read("ds_read_b64_tr_b16", rV(2 * dbl + ks).sub(2 * j4, 2), va1 if dbl & 1 else va0, ks * 4096 + (dbl >> 1) * 512 + j4 * 2048))
        it += [W("s_waitcnt lgkmcnt(0)")]
        for dbl in range(4):
            for ks in range(2): it.append(mfma(rO(4 * c + dbl), rV(2 * dbl + ks), Pf(ks), rO(4 * c + dbl)))
    it += [nop(9), sop(f"s_add_u32 {sv}, {sv}, 32768"), sop(f"s_add_u32 {sj}, {sj}, 1"), sop(f"s_cmp_lt_u32 {sj}, 8"), raw("s_cbranch_scc1 L_rj")]
    out += fix_hazards(it)
    fin = [valu("v_mov_b32", tb, l), perm("v_permlane16_swap_b32", l, tb), valu("v_add_f32", l, l, tb),
           valu("v_mov_b32", tb, l), perm("v_permlane32_swap_b32", l, tb), valu("v_add_f32", l, l, tb), valu("v_rcp_f32", al, l)]
    for db in range(16):
        o = rO(db)
        fin += [valu("v_mul_f32", o[i], o[i], al) for i in range(4)]
        fin += [valu("v_cvt_pk_bf16_f32", o[0], o[0], o[1]), valu("v_cvt_pk_bf16_f32", o[1], o[2], o[3])]
        fin.append(Ins(f"buffer_store_dwordx2 {o.sub(0, 2)}, {so}, {sO}, {sq} offen offset:{db * 32}", "vmem", rd=[o.sub(0, 2), so, sO, sq]))
    fin += [W("s_waitcnt vmcnt(0)"), sop(f"s_add_u32 {sb}, {sb}, 1"), sop(f"s_cmp_lt_u32 {sb}, s82"), raw("s_cbranch_scc1 L_rb")]
    out += fix_hazards(fin)
    out += [label("L_rp_next")]
    out += [sop(f"s_mov_b32 s{80 + k}, s{83 + k}") for k in range(6)]
    out += [sop(f"s_add_u32 {sp}, {sp}, 1"), sop(f"s_cmp_lt_u32 {sp}, 3"), raw("s_cbranch_scc1 L_rp")]
    return out

def main():
    ap = argparse.ArgumentParser()
    ap.add_argument("-o", default="standalone__mha_softmax__near_ridge.s")
    ap.add_argument("--diag", type=int, default=0)
    ap.add_argument("--kvmod", default="")
    ap.add_argument("--qmod", default="")
    ap.add_argument("--omod", default="")
    ap.add_argument("--sched", default="t3_345_423_3f")
    ap.add_argument("--pkmul", type=int, default=1)
    ap.add_argument("--rep", type=int, default=1)
    ap.add_argument("--wb", type=int, default=0)
    ap.add_argument("--nostore", type=int, default=0)
    ap.add_argument("--ca7", type=int, default=3)
    ap.add_argument("--show", type=int, default=0)
    ap.add_argument("--spread", type=int, default=1)
    ap.add_argument("--touch", type=int, default=0)
    ap.add_argument("--force", type=int, default=0)
    ap.add_argument("--padto", type=int, default=0)
    ap.add_argument("--defer", type=int, default=0)
    ap.add_argument("--warm", type=int, default=2)
    a = ap.parse_args()
    opt.__dict__.update(vars(a)); opt.nextq = 1
    L = []; A = L.append
    hdr = open("standalone__mha_softmax__near_ridge.s.ref").read().split("\n")
    for l in hdr:
        if l.startswith("; @launch"): break
        A(l)
    A(f"; @launch grid=(256,1,1) block=(256,1,1) lds={LDS_BYTES}")
    A('.amdgcn_target "amdgcn-amd-amdhsa--gfx950"')
    A(f".text\n.globl {KNAME}\n.p2align 8\n.type {KNAME},@function\n{KNAME}:")
    L += setup_code()
    def emit(seq):
        for i in seq: L.append(i)
    if opt.rep > 1: A(f"s_mov_b32 s98, {opt.rep}\nL_again:")
    emit(stamp(0))
    s1, s2, s3 = startup()
    s1 = fix_hazards(lin(s1)[0]); s2 = fix_hazards(lin(s2)[0]); s3 = fix_hazards(lin(s3)[0])
    emit(s1); emit(s2); A("L_noq3:"); emit(s3)
    A("L_first:")
    s4 = pass_begin() + [waitcnt(None, 0), barrier()] + head_reads()
    s4 = fix_hazards(s4 + sum([dma_V(0, 1), dma_V(0, 2), dma_V(0, 3), dma_K(7)][:opt.ca7], []))
    emit(s4)
    A("L_pass:")
    pb = [waitcnt(None, 0), barrier()]
    emit(pb)
    emit(stamp(1))
    A(f"s_cmp_eq_u32 {s_nbn}, 3\ns_cbranch_scc1 L_v3")
    VAR = {}
    for nb in (4, 3):
        P = variant(nb)
        hd = fix_hazards(P["hd"])
        b1 = fix_hazards(P["i1"], wrap=hd[-14:])
        b2 = fix_hazards(P["i2"], wrap=b1[-14:])
        b1b = fix_hazards(P["i1"], wrap=b2[-14:])
        assert [x.text for x in b1b] == [x.text for x in b1], "loop entry hazards differ"
        i6 = fix_hazards(P["i6"], wrap=b1[-14:])
        i7 = fix_hazards(P["i7"], wrap=i6[-14:])
        epi = fix_hazards(P["epi"], wrap=i7[-14:])
        VAR[nb] = dict(hd=hd, b1=b1, b2=b2, i6=i6, i7=i7, epi=epi)
        nn = sum(1 for p in VAR[nb].values() for x in p if x.kind == "nop")
        print(f"nb={nb}: sizes", {k: len(v) for k, v in VAR[nb].items()}, "nops", nn, file=sys.stderr)
        A(".p2align 6"); A(f"L_v{nb}:")
        emit(hd)
        emit(stamp(2))
        if opt.diag == 3:
            for k in range(3):
                A(f"s_sub_u32 s66, s{92+4*k}, s{90+4*k}\ns_mul_i32 s67, {s_pass}, 3\ns_add_u32 m0, s67, {20+k}\ns_nop 1\nv_writelane_b32 v0, s66, m0")
        A(f"L_loop{nb}:")
        emit(b1); A(f"s_cbranch_scc1 L_i6_{nb}"); emit(b2); A(f"s_branch L_loop{nb}")
        A(f"L_i6_{nb}:")
        emit(i6); emit(i7)
        emit(stamp(3))
        emit(epi)
        emit(stamp(4))
        A(f"s_add_u32 {s_pass}, {s_pass}, 1\ns_cmp_lt_u32 {s_pass}, 3\ns_cbranch_scc1 L_pass\ns_branch L_done")
    tail = [waitcnt(None, 0)] + [store(c, k) for c in range(4 - opt.defer, 4) for k in range(8)]
    traces = []
    import itertools
    for seqnb in itertools.product((3, 4), repeat=3):
        tr = s1 + (s2 if seqnb[0] == 4 else s3) + s4
        for nb in seqnb:
            v = VAR[nb]
            tr = tr + pb + v["hd"] + (v["b1"] + v["b2"]) * 2 + v["b1"] + v["i6"] + v["i7"] + v["epi"]
        traces.append(tr + tail)
    resolve_vm(traces)
    for tr in traces:
        errs = check_trace(tr)
        if errs:
            for e in errs[:20]: print("SYNC ERR", e, file=sys.stderr)
            raise SystemExit(1)
    cross_check(traces)
    A("L_done:")
    emit(tail)
    if opt.force: A(f"s_mov_b32 {s_flags}, {opt.force}")
    A(f"s_cmp_lg_u32 {s_flags}, 0\ns_cbranch_scc1 L_repair\nL_fin:")
    if opt.rep > 1:
        A("s_waitcnt vmcnt(0) lgkmcnt(0)\ns_barrier")
        raise SystemExit("rep unsupported now")
        A(f"s_mov_b32 {s_pass}, 0\ns_sub_u32 s98, s98, 1\ns_cmp_lg_u32 s98, 0\ns_cbranch_scc1 L_again")
    if opt.diag:
        A("s_waitcnt vmcnt(0)")
        emit(stamp(5))
        A(f"s_mov_b32 s66, 0x1000000\ns_mov_b32 s67, 0x20000")
        A(f"v_mbcnt_lo_u32_b32 v1, -1, 0\nv_mbcnt_hi_u32_b32 v1, -1, v1\nv_lshlrev_b32 v1, 2, v1")
        A(f"s_lshl_b32 s3, s2, 10\ns_lshl_b32 s4, {s_wave}, 8\ns_add_u32 s3, s3, s4")
        A("buffer_store_dword v0, v1, s[64:67], s3 offen")
        if opt.diag == 2:
            A(f"s_or_b32 s3, s2, {s_wave}\ns_cmp_lg_u32 s3, 0\ns_cbranch_scc1 L_exit")
            A("s_load_dwordx2 s[64:65], s[0:1], 32\ns_mov_b32 s66, 256\nv_readlane_b32 s4, v0, 0\nv_readlane_b32 s5, v0, 32\ns_waitcnt lgkmcnt(0)")
            idx = [2, 3, 4, 6, 8, 10, 12, 14]
            for j, k in enumerate(idx):
                A(f"v_readlane_b32 s6, v0, {k}\nv_readlane_b32 s7, v0, {k+32}\ns_sub_u32 s6, s6, s4\ns_sub_u32 s7, s7, s5\ns_nop 1\nv_writelane_b32 v2, s6, {j}\nv_writelane_b32 v2, s7, {j+8}")
            A("s_mov_b64 exec, 0xffff\nbuffer_store_dword v2, v1, s[64:67], 0 offen")
    if opt.wb == 1:
        A(f"s_cmp_lg_u32 {s_wave}, 0\ns_cbranch_scc1 L_exit\ns_waitcnt vmcnt(0)\nbuffer_wbl2 sc1\ns_waitcnt vmcnt(0)")
    if opt.wb == 2:
        A(f"s_cmp_lg_u32 {s_wave}, 0\ns_cbranch_scc1 L_exit\ns_cmp_eq_u32 s89, 0\ns_cbranch_scc1 L_exit\ns_waitcnt vmcnt(0)\nbuffer_wbl2 sc1\ns_waitcnt vmcnt(0)")
    if opt.wb == 3:
        A(f"s_waitcnt vmcnt(0)\nbuffer_wbl2 sc1")
    if opt.padto:
        A(f"s_waitcnt vmcnt(0)\nL_spin:\ns_memrealtime s[96:97]\ns_waitcnt lgkmcnt(0)\ns_sub_u32 s96, s96, s98\ns_cmp_lt_u32 s96, {opt.padto}\ns_cbranch_scc1 L_spin")
    A("L_exit:")
    A("s_endpgm")
    A("L_warm_end:")
    A("L_repair:")
    emit(repair_code())
    A("s_branch L_fin")
    A(".p2align 6\n.type L_table,@object\nL_table:")
    tab = schedule_table(opt.sched)
    for wg in range(256):
        w = []
        for h, st, n in tab[wg]:
            w += [(h * SQ + st * 16) * 512, h * SK * 512, n]
        w += [THR.get(wg, 0)]
        w += [0] * (16 - len(w))
        A(".long " + ", ".join(str(x) for x in w))
    A(".size L_table, 16384")
    A('.section .rodata,"a"\n.p2align 6')
    A(f".amdhsa_kernel {KNAME}")
    A("  .amdhsa_next_free_vgpr 512\n  .amdhsa_next_free_sgpr 102\n  .amdhsa_accum_offset 256\n  .amdhsa_group_segment_fixed_size 0")
    A("  .amdhsa_kernarg_size 48\n  .amdhsa_user_sgpr_count 2\n  .amdhsa_user_sgpr_kernarg_segment_ptr 1\n  .amdhsa_system_sgpr_workgroup_id_x 1")
    A(".end_amdhsa_kernel")
    open(opt.o, "w").write("\n".join((x if isinstance(x, str) else x.text) for x in L if x is not None) + "\n")

if __name__ == "__main__":
    main()
```

```python
import sys, argparse
from asmlib import *

KNAME = "standalone__mha_softmax__near_ridge_kernel"
NH, SQ, SK, D = 128, 1312, 512, 256
QBYTES = NH * SQ * D * 2
KBYTES = NH * SK * D * 2
OOB = 0x7fff0000
VB = 65536
XB = 131072
LDS_BYTES = 163840
C_SCALE = 0x3db8aa3b
L_LIMIT = 0x4e800000

sQ, sK, sV, sO = S(8, 4), S(12, 4), S(16, 4), S(20, 4)
s_wave = S(24)
s_mK = S(25)
s_mX = S(26)
s_mR2 = S(27)
s_mOS = S(28)
s_kptr, s_kend, s_knext = S(29), S(30), S(31)
s_vptr, s_vptr2, s_vend = S(32), S(33), S(34)
s_c = S(35)
s_cnt = S(36)
s_pass = S(37)
s_flags = S(38)
s_qn = [S(40), S(41), S(42), S(43)]
s_ocur = S(44)
s_t0, s_t1, s_t2 = S(45), S(46), S(47)
s_tab = S(48, 16)
s_dbg = S(64, 4)
s_ts = S(68, 2)
s_nbn = S(70)
s_tsp = S(71)
s_mR3 = S(39)
s_tq, s_tk, s_tv, s_xm, s_xq = S(90), S(91), S(92), S(93), S(94)
s_ok = [S(72 + k) for k in range(8)]
kaddr, vaddr0, vaddr1, voK, voV = V(1), V(2), V(3), V(4), V(5)
lsum = lambda b: V(6 + b)
vt0, vt1 = V(10), V(11)
voQa, voQb = V(12), V(13)
vsto, wa0 = V(14), V(15)
Ct = lambda b: V(16 + 4 * b, 4)
SET = lambda i: V(32 + 16 * i, 16)
Sx = lambda i, b: SET(i).sub(4 * b, 4)
Q = lambda b, s: AG(b * 32 + s * 4, 4)
NF = 8
F = lambda i: AG(128 + 4 * (i % NF), 4)
def O(b, db):
    t = db * 4 + b
    return V(96 + 4 * t, 4) if t < 40 else AG(160 + 4 * (t - 40), 4)

M0 = ('m0', 0)
def set_m0(base, off):
    i = salu(f"s_add_u32 m0, {base}, {off}", rd=[base]); i.wr = {M0}; return i
def sop(text, rd=(), wr=()): return salu(text, rd=rd, wr=wr)

class Opt: pass
opt = Opt()

def dma(vo, srd, soff, imm, unit, mods):
    i = Ins(f"buffer_load_dwordx4 {vo}, {srd}, {soff} offen offset:{imm} {mods} lds".replace("  ", " "), "vmem", rd=[vo, srd, soff])
    i.rd.add(M0); i.dma_wr = unit; i.vm = True
    return i

def kslot_addr(slot): return slot * 8192
def vslot_addr(par, c): return VB + (par * 4 + c) * 8192

def dma_K(slot, wrap=False):
    r = []
    for dh in range(2):
        r.append(set_m0(s_mK, kslot_addr(slot) + dh * 768))
        r.append(dma(voK, sK, s_kptr, dh * 256, ("K", slot), opt.kvmod))
    r.append(sop(f"s_add_u32 {s_kptr}, {s_kptr}, 8192", rd=[s_kptr], wr=[s_kptr]))
    if wrap:
        r.append(sop(f"s_cmp_eq_u32 {s_kptr}, {s_kend}", rd=[s_kptr, s_kend]))
        r[-1].glue = True
        r.append(sop(f"s_cselect_b32 {s_kptr}, {s_knext}, {s_kptr}", rd=[s_kptr, s_knext], wr=[s_kptr]))
    return r

def dma_V(par, c, wrap=False):
    r = []
    if c == 0:
        r.append(sop(f"s_add_u32 {s_vptr}, {s_vptr}, 32768", rd=[s_vptr], wr=[s_vptr]))
        if wrap:
            r.append(sop(f"s_cmp_eq_u32 {s_vptr}, {s_vend}", rd=[s_vptr, s_vend]))
            r[-1].glue = True
            r.append(sop(f"s_cselect_b32 {s_vptr}, {s_knext}, {s_vptr}", rd=[s_vptr, s_knext], wr=[s_vptr]))
        r.append(sop(f"s_add_u32 {s_vptr2}, {s_vptr}, 4096", rd=[s_vptr], wr=[s_vptr2]))
    for e in range(2):
        r.append(set_m0(s_mK, vslot_addr(par, c) + e * 1024 - c * 128))
        r.append(dma(voV, sV, s_vptr2 if e else s_vptr, c * 128, ("V", par, c), opt.kvmod))
    return r

def dma_Q(base, soff, unit):
    r = []
    for hi in range(2):
        for dh in range(2):
            r.append(set_m0(base, hi * 4096 + dh * 768))
            for Rl in range(2):
                r.append(dma(voQb if hi else voQa, sQ, soff, Rl * 2048 + dh * 256, unit, opt.qmod))
    return r

def q_reads(b, base_sgpr, unit, tmp):
    r = [valu("v_add_u32", tmp, base_sgpr, kaddr)]
    for s in range(8):
        i = ds_read("ds_read_b128", Q(b, s), tmp, s * 256, tag=("q", b, s)); i.lds_rd = unit; i.private = True
        r.append(i)
    return r

def waitcnt(vm=None, lgkm=None):
    t = "s_waitcnt" + (f" vmcnt({vm})" if vm is not None else "") + (f" lgkmcnt({lgkm})" if lgkm is not None else "")
    i = raw(t, "wait"); i.vmw = vm; i.lgw = lgkm
    return i
def vwait(units, lgkm=None):
    i = raw("s_waitcnt ?", "wait"); i.vmneed = list(units); i.vmw = None; i.lgw = lgkm; i.vmauto = 63
    return i
def barrier():
    i = raw("s_barrier", "misc"); i.bar = True; return i

class Seg:
    def __init__(self, nb, name):
        self.nb = nb; self.name = name
        self.mf = []; self.nodes = []
        self.pairs = []
        self.blk = {}
        self.fixed = {}
        self.done = {}
        self.first = {}

    def qblock(self, name, slot, dst, czero, fbase):
        nb = self.nb; st = len(self.mf)
        for sp in range(4):
            p0 = len(self.mf)
            tags = [("f", self.name, name, 2 * sp + e) for e in range(2)]
            for b in range(nb):
                for e in range(2):
                    s = 2 * sp + e
                    d = Sx(dst, b)
                    c = d if s else (0 if czero else Ct(b))
                    self.mf.append(mfma(d, F(fbase + s), Q(b, s), c, need=tags))
                    self.done[(name, b)] = len(self.mf) - 1
            rd = []
            for e in range(2):
                s = 2 * sp + e
                i = ds_read("ds_read_b128", F(fbase + s), kaddr, kslot_addr(slot) + s * 256, tag=tags[e]); i.lds_rd = ("K", slot)
                rd.append(i)
            self.pairs.append((p0, len(self.mf) - 1, rd))
        self.blk[name] = (st, len(self.mf))

    def pblock(self, name, par, c, x0, x1, czero, fbase):
        self.pgen(name, par, [[(c, dbl, 0), (c, dbl, 1)] for dbl in range(4)], x0, x1, czero)

    def pgen(self, name, par, prs, x0, x1, czero):
        nb = self.nb; st = len(self.mf)
        for pi, pr in enumerate(prs):
            p0 = len(self.mf)
            fb = 2 * len(self.pairs)
            tags = [("f", self.name, name, 2 * pi + e) for e in range(2)]
            for b in range(nb):
                for e, (c, dbl, ks) in enumerate(pr):
                    o = O(b, 4 * c + dbl)
                    cc = 0 if (czero and ks == 0) else o
                    self.first.setdefault(("P", ks, b), len(self.mf))
                    self.first.setdefault(("O", c), len(self.mf))
                    self.mf.append(mfma(o, F(fb + e), Sx(x1 if ks else x0, b), cc, need=tags))
            rd = []
            for e, (c, dbl, ks) in enumerate(pr):
                f = F(fb + e)
                va = vaddr1 if (dbl & 1) else vaddr0
                off = vslot_addr(par, c) - VB + ks * 4096 + (dbl >> 1) * 512
                for j4 in range(2):
                    i = ds_read("ds_read_b64_tr_b16", f.sub(2 * j4, 2), va, off + j4 * 2048, tag=tags[e] if j4 else ("x",))
                    i.lds_rd = ("V", par, c)
                    rd.append(i)
            self.pairs.append((p0, len(self.mf) - 1, rd))
        self.blk[name] = (st, len(self.mf))

    def unit(self, src, even_set, odd, blocks, e_of, dl_crit, dl_add, lo, hi, add_lo=None, add_hi=None, pre=None, after=None, fma=None):
        crit = []; adds = []; res = {}
        for b in blocks:
            x = Sx(src, b); ev = Sx(even_set, b)
            ms = []
            for i in range(4):
                deps = [(n, 0) for n in pre[b]] if pre else []
                ins = valu("v_fma_f32", x[i], x[i], s_c, fma[b]) if fma else valu("v_mul_f32", x[i], s_c, x[i])
                ms.append(Node(ins, e=e_of(b), dl=dl_crit(b), deps=deps))
            ex = [Node(valu("v_exp_f32", x[i], x[i]), e=e_of(b), dl=dl_crit(b), deps=[(ms[i], 0)]) for i in range(4)]
            ad = []
            for i in range(4):
                deps = [(ex[i], 1)] + ([(ad[-1], 0)] if ad else [])
                ad.append(Node(valu("v_add_f32", lsum(b), lsum(b), x[i]), e=e_of(b), dl=(dl_add if odd else dl_crit(b)), deps=deps))
            aft = [(n, 0) for n in (after or {}).get(b, [])]
            if odd:
                c0 = Node(valu("v_cvt_pk_bf16_f32", ev[2], x[0], x[1]), e=e_of(b), dl=dl_crit(b), deps=[(ex[0], 1), (ex[1], 1)] + aft)
                c1 = Node(valu("v_cvt_pk_bf16_f32", ev[3], x[2], x[3]), e=e_of(b), dl=dl_crit(b), deps=[(ex[2], 1), (ex[3], 1)] + aft)
                crit += [ms[0], ms[1], ex[0], ex[1], ms[2], ms[3], ex[2], ex[3], c0, c1]
                adds += ad
            else:
                c0 = Node(valu("v_cvt_pk_bf16_f32", x[0], x[0], x[1]), e=e_of(b), dl=dl_crit(b), deps=[(ex[0], 1), (ex[1], 1), (ad[0], 0)])
                c1 = Node(valu("v_cvt_pk_bf16_f32", x[1], x[2], x[3]), e=e_of(b), dl=dl_crit(b), deps=[(ex[2], 1), (ex[3], 1), (ad[1], 0), (c0, 0)])
                crit += [ms[0], ms[1], ex[0], ex[1], ms[2], ms[3], ex[2], ex[3], ad[0], ad[1], ad[2], ad[3], c0, c1]
            res[b] = [c0, c1] + ad
        spread(crit, lo, hi)
        if adds: spread(adds, add_lo if add_lo is not None else lo, add_hi if add_hi is not None else hi)
        self.nodes += crit + adds
        return res

    def chain(self, instrs, lo, hi, e=None, dl=None, first_dep=None):
        prev = first_dep; out = []
        for i in instrs:
            gapd = 0
            if prev is not None:
                pk = prev.ins.kind
                gapd = 1
                if pk == "ds" and i.kind == "ds": gapd = 0
            n = Node(i, e=lo if e is None else e, dl=(10**9 if dl is None else dl), deps=[(prev, gapd)] if prev else [])
            out.append(n); prev = n
        k = len(out)
        for j, n in enumerate(out): n.ideal = lo + (hi - lo) * j / max(k, 1)
        self.nodes += out
        return out

    def reads(self, nxt_pairs, skip_first=3, barrier_before=()):
        pairs = self.pairs; ext = [p[2] for p in pairs] + list(nxt_pairs)
        prev = None
        plen = 2 * self.nb
        for k in range(skip_first, len(ext)):
            j = k - 4
            e = pairs[j][1] if j >= 0 else 0
            if k in barrier_before:
                g = e - 1 if j >= 0 else 0
                self.fixed[g] = barrier_before[k]
                self.bar_gap = getattr(self, "bar_gap", {}); self.bar_gap[k] = g
                e = g + 1
            dl = e + plen - 2
            if (k + 1) in barrier_before: dl = e + 1
            for i in ext[k]:
                n = Node(i, e=e, dl=min(dl, len(self.mf) - 1), ideal=e - 2, deps=[(prev, 0)] if prev else [])
                self.nodes.append(n); prev = n

    def build(self, nxt_first=None):
        n = len(self.mf)
        ft = set(); seen = set()
        for g, m in enumerate(self.mf):
            key = tuple(m.need)
            if key not in seen:
                seen.add(key)
                if g > 0: ft.add(g - 1)
        ft.add(n - 1)
        blocked = {}
        for g in self.fixed: ft.add(g); blocked[g] = 8
        gaps, over = schedule2(self.mf, self.nodes, free_taken=ft, blocked=blocked)
        for g, ins in self.fixed.items():
            gaps[g][1][0:0] = ins
        self.over = over
        if getattr(opt, "show", 0):
            cost = lambda i: 8 if i.kind == "vmem" else i.cost
            for nme, (a, b) in self.blk.items():
                row = ""
                for g in range(a, b):
                    u = sum(cost(i) for i in gaps[g][2]) + 4 * max(0, len(gaps[g][1]) - (0 if g in ft and g not in self.fixed else 1))
                    row += "B" if g in self.fixed else (str(u // 4) if u < 40 else "#")
                print(f"  nb{self.nb} {self.name} {nme}: {row}", file=sys.stderr)
        return gaps

def sets_for(par):
    return (0, 1, 2, 3) if par == 0 else (3, 2, 1, 0)

def first_pairs_of_iter(nb, J, name):
    s = Seg(nb, name); par = J & 1
    X0, X1, A_, B_ = sets_for(par)
    s.qblock("t0", 4 * ((J + 1) & 1), A_, False, 0)
    return [p[2] for p in s.pairs[:3]]

SPLIT = {4: 3, 3: 2}

LAT = 4
def units_of(J, h):
    par = J & 1; kb = 4 * ((J + 1) & 1)
    return [("K", kb), ("K", kb + 1), ("K", kb + 2), ("V", par, 0)] if h == 0 else [("V", par, 1), ("V", par, 2), ("V", par, 3), ("K", kb + 3)]

def iter_blocks(s, J, cz, split=0):
    par = J & 1
    X0, X1, A_, B_ = sets_for(par)
    kb = 4 * ((J + 1) & 1)
    s.qblock("t0", kb + 0, A_, False, 0)
    s.qblock("t1", kb + 1, B_, False, 0)
    if split == 2:
        s.pgen("t2", par, [[(0, 0, 0), (0, 1, 0)], [(0, 2, 0), (0, 3, 0)], [(0, 0, 1), (0, 1, 1)], [(0, 2, 1), (0, 3, 1)]], X0, X1, cz)
    elif split == 1:
        s.pgen("t2", par, [[(0, 0, 0), (0, 1, 0)], [(0, 0, 1), (0, 1, 1)], [(0, 2, 0), (0, 2, 1)], [(0, 3, 0), (0, 3, 1)]], X0, X1, cz)
    else:
        s.pblock("t2", par, 0, X0, X1, cz, 0)
    s.qblock("t3", kb + 2, A_, False, 0)
    s.pblock("t4", par, 1, X0, X1, cz, 0)
    s.pblock("t5", par, 2, X0, X1, cz, 0)
    s.qblock("t6", kb + 3, A_, False, 0)
    s.pblock("t7", par, 3, X0, X1, cz, 0)

def iter_units(s, J, u2, lo3=None):
    nb = s.nb; B = s.blk; n = len(s.mf)
    X0, X1, A_, B_ = sets_for(J & 1)
    p0s = s.first[("P", 1, 0)] - 1
    s.unit(A_, X1, True, range(nb), lambda b: s.done[("t0", b)] + LAT, lambda b: s.first[("P", 1, b)] - 2, B["t3"][0] - 2,
           lo3 if lo3 is not None else B["t0"][1] - 2, p0s - 1, add_lo=p0s, add_hi=B["t3"][0] - 4, after=u2)
    u0 = s.unit(B_, B_, False, range(nb), lambda b: s.done[("t1", b)] + LAT, lambda b: B["t4"][0] + 4, None,
                p0s + 2, B["t4"][0] - 2)
    s.unit(A_, B_, True, range(nb), lambda b: s.done[("t3", b)] + LAT, lambda b: B["t6"][0] - 2, B["t6"][0] - 2,
           B["t4"][0], B["t6"][0] - 4, add_lo=B["t4"][0] + 4, add_hi=B["t6"][0] - 3, after=u0)
    s.unit(A_, A_, False, range(SPLIT[nb]), lambda b: s.done[("t6", b)] + LAT, lambda b: n - 1, None,
           B["t7"][0], n - 3)

def make_mid(nb, J, name, nxt_name, special=False):
    par = J & 1
    X0, X1, A_, B_ = sets_for(par)
    kb = 4 * ((J + 1) & 1)
    s = Seg(nb, name)
    iter_blocks(s, J, False, split=(1 if nb == 3 else 0))
    n = len(s.mf); B = s.blk
    u2 = s.unit(X1, X1, False, list(range(SPLIT[nb], nb)), lambda b: 0, lambda b: B["t0"][1] + 2, None, 0, B["t0"][1] - 4)
    iter_units(s, J, u2)
    npair = len(s.pairs)
    nxt = first_pairs_of_iter(nb, J + 1, nxt_name)
    need2 = units_of(J + 1, 0) + (units_of(J + 1, 1) if special else [])
    s.reads(nxt, barrier_before={16: [vwait(units_of(J, 1), 0), barrier()], npair: [vwait(need2, 0), barrier()]})
    g1 = s.bar_gap[16]; g2 = s.bar_gap[npair]
    npar = (J + 1) & 1
    if opt.spread:
        gg = [dma_V(npar, 1), dma_V(npar, 2), dma_V(npar, 3), dma_K(4 * ((J + 2) & 1) + 3)]
        k0 = 3
        c0 = s.chain(sum(gg[:k0], []), 2, B["t0"][1] + 2, dl=g1 - 1)
        c0 = s.chain(sum(gg[k0:], []), B["t2"][0] + 10, g1 - 2, dl=g1 - 1, first_dep=c0[-1])
        lo1, hi1 = (g1 + 14, g2 - 4) if nb == 4 else (B["t4"][0] + 14, g2 + 2)
    else:
        g0 = dma_V(npar, 1) + dma_V(npar, 2) + dma_V(npar, 3) + dma_K(4 * ((J + 2) & 1) + 3)
        c0 = s.chain(g0, 0, B["t0"][1] + 2, dl=g1 - 1)
        lo1, hi1 = B["t5"][0] + 8, B["t7"][0]
    if special:
        s.chain(dma_Q(s_mR3, s_qn[1], ("R3",)), g1 + 2, B["t6"][1], e=g1 + 1, dl=g2 - 1, first_dep=c0[-1])
    else:
        g1l = dma_K(kb + 0, wrap=(J & 1) == 1) + dma_K(kb + 1)
        if J & 1:
            if opt.touch: g1l += touch(sQ, s_tq, 8192) + touch(sK, s_tk, 32768)
        else:
            if opt.touch: g1l += touch(sV, s_tv, 32768)
            for hi in range(2):
                g1l.append(set_m0(s_xm, hi * 4096))
                g1l += [dma(voQb if hi else voQa, sQ, s_xq, Rl * 2048, ("X",), opt.qmod) for Rl in range(2)]
            g1l += [sop(f"s_add_u32 {s_xm}, {s_xm}, 1024", wr=[s_xm]), sop(f"s_add_u32 {s_xq}, {s_xq}, 256", wr=[s_xq])]
        g1l += dma_K(kb + 2) + dma_V(par, 0)
        last = s.chain(g1l, lo1, hi1, e=g1 + 1, dl=g2 - 1, first_dep=c0[-1])[-1]
        if J & 1:
            s.chain([sop(f"s_sub_u32 {s_cnt}, {s_cnt}, 1"), sop(f"s_cmp_eq_u32 {s_cnt}, 0")], n - 6, n - 3, first_dep=last)
    return s

def touch(srd, sp, step):
    i = Ins(f"buffer_load_dword {vt0}, {vt1}, {srd}, {sp} offen", "vmem", rd=[vt1, srd, sp], wr=[vt0]); i.vm = True
    return [i, sop(f"s_add_u32 {sp}, {sp}, {step}", rd=[sp], wr=[sp])]

RL = lambda b: SET(0)[b]
WA = lambda k: wa0 if k == 0 else SET(0)[4 + k]
RA = SET(0)[8]
PK = lambda c, k: O(k >> 1, 4 * c + (k & 1))

def make_last(nb, name):
    J = 7; par = 1
    X0, X1, A_, B_ = sets_for(par)
    s = Seg(nb, name)
    s.qblock("t0", 0, A_, False, 0)
    s.pgen("t2", par, [[(c, d, 0), (c, d + 1, 0)] for c in (0, 1) for d in (0, 2)], X0, X1, False)
    s.pgen("t4", par, [[(c, d, 1), (c, d + 1, 1)] for c in (0, 1) for d in (0, 2)], X0, X1, False)
    s.pblock("t5", par, 2, X0, X1, False, 0)
    s.pblock("t7", par, 3, X0, X1, False, 0)
    n = len(s.mf); B = s.blk
    u2 = s.unit(X1, X1, False, list(range(SPLIT[nb], nb)), lambda b: 0, lambda b: B["t0"][1] + 2, None, 0, B["t0"][1] - 4)
    k1 = B["t4"][0]
    u3 = s.unit(A_, X1, True, range(nb), lambda b: s.done[("t0", b)] + LAT, lambda b: s.first[("P", 1, b)] - 2, B["t5"][0] + 6,
                B["t0"][1] - 2, k1 - 1, add_lo=k1, add_hi=B["t5"][0], after=u2)
    npair = len(s.pairs)
    kR = 12
    s.reads([[]], barrier_before={kR + 2: [waitcnt(None, 0), barrier()], npair: [waitcnt(None, 0), barrier()]})
    gR = s.bar_gap[kR + 2]; g2 = s.bar_gap[npair]
    c2 = s.chain(dma_Q(s_mR2, s_qn[2], ("R2",)), 0, B["t0"][1] - 2)
    def qchain(b, base, unit, tmp, lo, hi, pre, dl=None, first_dep=None):
        ins = pre + q_reads(b, base, unit, tmp)
        nds = s.chain(ins, lo, hi, dl=dl, first_dep=first_dep)
        for k, nd in enumerate(nds[len(pre) + 1:]):
            nd.e = max(nd.e, s.pairs[k // 2][1] + 1)
        return nds
    t0e = B["t0"][1]
    r0 = qchain(0, s_mX, ("X",), vt0, t0e - 10, t0e + 10, [vwait([("X",)])], dl=gR - 5)
    r1 = qchain(1, s_mR3, ("R3",), vt1, t0e + 10, gR - 8, [vwait([("R3",)])], dl=gR - 5, first_dep=r0[-1])
    c3 = s.chain([mark_wait_lds(("q", 0, 7))] + dma_Q(s_mX, s_qn[3], ("X",)), t0e + 16, gR + 4)
    c3[0].deps = [(r0[-1], 5), (c2[-1], 1)]
    refill = [sop(f"s_sub_u32 {s_vptr}, {s_knext}, 32768", wr=[s_vptr])] + dma_K(4) + dma_K(5) + dma_K(6) + dma_V(0, 0)
    c4 = s.chain(refill, gR + 4, g2 - 2, e=gR + 1, first_dep=c3[-1])
    r2 = s.chain([vwait([("R2",)])] + q_reads(2, s_mR2, ("R2",), vt0), g2 - 16, g2 - 6, dl=g2 - 4, first_dep=r1[-1])
    nca = opt.ca7
    grp = [dma_V(0, 1), dma_V(0, 2), dma_V(0, 3), dma_K(7)]
    c5 = s.chain(sum(grp[:nca], []), g2 + 1, n - 2, e=g2 + 1, first_dep=c4[-1]) if nca else c4
    ok = [sop(f"s_add_u32 {s_ok[k]}, {s_ocur}, {k * 4096}", wr=[s_ok[k]]) if (k < 2 * nb and not opt.nostore) else sop(f"s_mov_b32 {s_ok[k]}, {OOB:#x}", wr=[s_ok[k]]) for k in range(8)]
    k0 = s.chain(ok, 4, t0e + 8)
    k1 = s.chain(pass_begin(), gR + 6, n - 4, first_dep=k0[-1])
    k1[0].deps += [(c3[-1], 1), (c4[0], 1)]
    red = []
    for b in range(nb):
        seq = [valu("v_mov_b32", RL(b), lsum(b)), perm("v_permlane16_swap_b32", lsum(b), RL(b)), valu("v_add_f32", lsum(b), lsum(b), RL(b)),
               valu("v_mov_b32", RL(b), lsum(b)), perm("v_permlane32_swap_b32", lsum(b), RL(b)), valu("v_add_f32", lsum(b), lsum(b), RL(b)),
               valu("v_rcp_f32", RL(b), lsum(b))]
        prev = None
        for k, i in enumerate(seq):
            deps = [(prev, 2 if i.op.startswith("v_permlane") else 0)] if prev else [(x, 0) for x in u3[b][2:]]
            nd = Node(i, deps=deps, ideal=B["t5"][0] + 4 + 3 * k + b); red.append(nd); prev = nd
    ad = [valu("v_xor_b32", WA(k), 32 * k, wa0) for k in (1, 2, 3)]
    ad += [valu("v_mbcnt_lo_u32_b32", RA, -1, 0), valu("v_mbcnt_hi_u32_b32", RA, -1, RA), valu("v_lshl_add_u32", RA, RA, 4, s_mOS)]
    prev = None
    for k, i in enumerate(ad):
        nd = Node(i, deps=[(prev, 0)] if prev else [], ideal=B["t7"][0] + k); red.append(nd); prev = nd
    s.nodes += red
    return s

def mark_wait_lds(tag):
    i = raw("s_nop 0", "nop"); i.need = [tag]; i.is_marker = True
    return i

def make_head(nb, name, nxt_name):
    X0, X1, A_, B_ = sets_for(1)
    s = Seg(nb, name)
    s.qblock("h0", 1, B_, True, 0)
    s.qblock("h1", 2, X0, True, 0)
    s.qblock("h2", 3, A_, False, 0)
    iter_blocks(s, 0, True, split=2)
    n = len(s.mf); B = s.blk
    tmp = SET(X1)
    pre = {}; nmc = {}
    for b in range(nb):
        x = Sx(B_, b); ta, tb = tmp[2 * b], tmp[2 * b + 1]
        nmc[b] = tmp[8 + b]
        e = s.done[("h0", b)] + LAT
        seq = [valu("v_max3_f32", ta, x[0], x[1], x[2]), valu("v_max_f32", ta, ta, x[3]), valu("v_mov_b32", tb, ta),
               perm("v_permlane16_swap_b32", ta, tb), valu("v_max_f32", ta, ta, tb), valu("v_mov_b32", tb, ta),
               perm("v_permlane32_swap_b32", ta, tb), valu("v_min_f32", Ct(b)[0], Neg(ta), Neg(tb)),
               valu("v_mul_f32", nmc[b], s_c, Ct(b)[0]),
               valu("v_mov_b32", Ct(b)[1], Ct(b)[0]), valu("v_mov_b32", Ct(b)[2], Ct(b)[0]), valu("v_mov_b32", Ct(b)[3], Ct(b)[0])]
        prev = None; nds = []
        for i in seq:
            d = 2 if (prev is not None and i.op.startswith("v_permlane")) else 0
            nd = Node(i, e=e, dl=B["h2"][0] - 2 + 2 * b, deps=[(prev, d)] if prev else [])
            nds.append(nd); prev = nd
        for k, nd in enumerate(nds): nd.ideal = e + k * 0.7
        z = Node(valu("v_mov_b32", lsum(b), 0), e=0, dl=B["h0"][1], ideal=2 + b)
        s.nodes += nds + [z]
        pre[b] = [nds[8], z]
    t0s = B["t0"][0]; t1s = B["t1"][0]
    u0 = s.unit(B_, B_, False, range(nb), lambda b: s.done[("h0", b)] + LAT, lambda b: t1s - 4, None, B["h1"][0] + 10, B["h2"][0] + 14, pre=pre, fma=nmc)
    u1 = s.unit(X0, B_, True, range(nb), lambda b: s.done[("h1", b)] + LAT, lambda b: t1s - 2, t1s - 2, B["h2"][0] + 14, t0s + 16, pre=pre, after=u0, fma=nmc)
    for nd in s.nodes:
        if nd.ins.text.startswith("v_fma_f32"): nd.dl = min(nd.dl, t0s - 2); nd.ideal = min(nd.ideal, t0s - 6)
    u2 = s.unit(A_, A_, False, range(nb), lambda b: s.done[("h2", b)] + LAT, lambda b: s.first[("P", 1, b)] - 4, None, t0s + 16, t1s + 14)
    iter_units(s, 0, u2, lo3=t1s + 14)
    prev = None
    for k, i in enumerate([valu("v_mbcnt_lo_u32_b32", vt1, -1, 0), valu("v_mbcnt_hi_u32_b32", vt1, -1, vt1), valu("v_lshlrev_b32", vt1, 7, vt1)]):
        nd = Node(i, deps=[(prev, 0)] if prev else [], ideal=8 + k); s.nodes.append(nd); prev = nd
    npair = len(s.pairs)
    nxt = first_pairs_of_iter(nb, 1, nxt_name)
    def tb(k, l):
        if opt.diag != 3: return l
        return [raw(f"s_memtime s[{90+4*k}:{91+4*k}]")] + l + [raw(f"s_memtime s[{92+4*k}:{93+4*k}]")]
    s.reads(nxt, barrier_before={12: tb(0, [vwait(units_of(0, 0), 0), barrier()]), 28: tb(1, [vwait(units_of(0, 1), 0), barrier()]),
                                 npair: tb(2, [vwait(units_of(1, 0), 0), barrier()])})
    g0 = s.bar_gap[12]; g1 = s.bar_gap[28]; g2 = s.bar_gap[npair]
    grp = [dma_V(0, 1), dma_V(0, 2), dma_V(0, 3), dma_K(7)][opt.ca7:] + [dma_K(0), dma_V(1, 0), dma_V(1, 1), dma_V(1, 2), dma_V(1, 3)]
    ca = s.chain(sum(grp[:4], []), 0, B["h0"][1] + 2, dl=g1 - 30)
    rest = grp[4:]
    nearly = max(0, len(rest) - 3 + min(3, opt.ca7)) if False else max(0, 6 - opt.ca7 - 4)
    cb = s.chain(sum(rest[:nearly], []) + dma_K(1) + dma_K(2), B["t1"][0], B["t4"][0], e=g0 + 1, first_dep=ca[-1])
    cc = s.chain(sum(rest[nearly:], []) + dma_K(3), B["t4"][0] + 8, B["t6"][0] + 4, first_dep=cb[-1])
    cd = s.chain(dma_K(4) + dma_K(5) + dma_K(6) + dma_V(0, 0), B["t6"][0] + 6, n - 4, e=g1 + 1, first_dep=cc[-1])
    prev = None
    nd_ = opt.defer
    sts = [(c, k) for c in range(4 - nd_, 4) for k in range(8)]
    lo, hi = 6, min(6 + 5 * len(sts), s.first[("O", 3)] - 4)
    for j, (c, k) in enumerate(sts):
        nd = Node(store(c, k), dl=s.first[("O", c)] - 3, ideal=lo + (hi - lo) * j / len(sts), deps=[(prev, 2)] if prev else [])
        s.nodes.append(nd); prev = nd
    head = [i for p in s.pairs[:3] for i in p[2]]
    return s, head

def perm(op, a, b):
    i = valu(op, a, b, extra_rd=[a], extra_wr=[b]); i.cost = 8
    return i

def acc_read(d, a):
    i = Ins(f"v_accvgpr_read_b32 {d}, {a}", "acc", rd=[a], wr=[d]); return i

def make_epi(nb):
    r = []
    t = SET(0)[9]
    r += [valu("v_max3_f32", t, lsum(0), lsum(1), lsum(2))]
    if nb == 4: r += [valu("v_max_f32", t, t, lsum(3))]
    c_ = valu("v_cmp_ngt_f32", "vcc", hex(L_LIMIT), t); c_.wr.add(('s', 'vcc')); r.append(c_)
    flagl = [raw(f"s_cbranch_vccz L_noflag{nb}"), sop(f"s_bitset1_b32 {s_flags}, {s_pass}"), label(f"L_noflag{nb}")]
    TMP = lambda k: V(48 + 4 * (k % 12), 4)
    order = [(c, dbl, b) for c in range(4) for dbl in range(4) for b in range(nb)]
    acct = [t_ for t_ in order if O(t_[2], 4 * t_[0] + t_[1]).k == 'a']
    slot = {t_: k for k, t_ in enumerate(acct)}
    accq = [(t_, i) for t_ in acct for i in range(4)]
    nacc = 0; done_acc = 0
    extra = []
    held = None
    for j, (c, dbl, b) in enumerate(order):
        o = O(b, 4 * c + dbl)
        want = len(accq) and min(len(acct) * 4, -(-(j + 1) * len(acct) * 4 // (len(order) - 4)))
        while nacc < len(acct) * 4 and (nacc < want or (o.k == 'a' and nacc < 4 * (slot[(c, dbl, b)] + 1))) and nacc // 4 < done_acc + 12:
            t_, i = accq[nacc]; nacc += 1
            r.append(acc_read(TMP(slot[t_])[i], O(t_[2], 4 * t_[0] + t_[1])[i]))
        t4 = TMP(slot[(c, dbl, b)]) if o.k == 'a' else o
        rlp = V(RL(b).n & ~1, 2); sel = RL(b).n & 1
        for h in range(2):
            r.append(valu("v_pk_mul_f32", t4.sub(2 * h, 2), t4.sub(2 * h, 2), rlp, mods=f"op_sel:[0,{sel}] op_sel_hi:[1,{sel}]"))
        r += [valu("v_cvt_pk_bf16_f32", t4[0], t4[0], t4[1]), valu("v_cvt_pk_bf16_f32", t4[1], t4[2], t4[3])]
        if b % 2 == 0 and b + 1 < nb:
            held = (t4, o.k == 'a')
        else:
            while extra and getattr(extra[0], "lds_rd", None) == ("OS",): r.append(extra.pop(0))
            if held is not None:
                w = Ins(f"ds_write2st64_b64 {WA(dbl)}, {held[0].sub(0, 2)}, {t4.sub(0, 2)} offset0:{(b - 1) * 4} offset1:{b * 4}", "ds",
                        rd=[WA(dbl), held[0].sub(0, 2), t4.sub(0, 2)], tag=("w", j))
                done_acc += held[1]; held = None
            else:
                w = ds_write("ds_write_b64", WA(dbl), t4.sub(0, 2), b * 2048, tag=("w", j))
            w.lds_pw = ("OS",); r.append(w)
            done_acc += (o.k == 'a')
        if j == 1: r += flagl
        k_ = 0
        while extra and k_ < (3 if extra[0].kind == "salu" else 1):
            if extra[0].kind == "vmem" and j % 2 == 0: break
            r.append(extra.pop(0)); k_ += 1
        if dbl == 3 and b == nb - 1:
            r += extra; extra = []
            for k in range(2 * nb):
                i = ds_read("ds_read_b128", PK(c, k), RA, k * 1024, tag=("o", c, k)); i.lds_rd = ("OS",); i.private = True
                extra.append(i)
            if c < 3 and c < 4 - opt.defer:
                for k in range(2 * nb):
                    st = store(c, k, nb); st.need = [("o", c, k)]; extra.append(st)
            if c == 1: extra += [vwait([("X",)])] + q_reads(3, s_mX, ("X",), vt0)
            if c == 2: extra += head_reads()
    r += extra
    if opt.defer == 0:
        for k in range(2 * nb):
            st = store(3, k, nb); st.need = [("o", 3, k)]; r.append(st)
    return r

def head_reads():
    s = Seg(4, "hd"); s.qblock("h0", 1, 0, True, 0)
    return [i for p in s.pairs[:3] for i in p[2]]

def store(c, k, nb=None):
    data = PK(c, k)
    mod = {3: opt.omod3, 4: opt.omod4}.get(nb) or opt.omod
    i = Ins(f"buffer_store_dwordx4 {data}, {vsto}, {sO}, {s_ok[k]} offen offset:{c * 128} {mod}".rstrip(), "vmem", rd=[data, vsto, sO, s_ok[k]])
    i.wide_store = True; i.data = data.set(); i.vm = True
    return i

def lin(seq, pre=()):
    out = []; q = list(pre)
    for i in seq:
        if i.need:
            idx = -1
            for t in i.need:
                if t in q: idx = max(idx, len(q) - 1 - q[::-1].index(t))
            if idx >= 0:
                n = min(len(q) - 1 - idx, 15)
                out.append(waitcnt(None, n)); q = q[idx + 1:]
        if getattr(i, "lgw", None) is not None: q = q[len(q) - i.lgw:] if i.lgw else []
        if getattr(i, "is_marker", False): continue
        if i.kind == "ds": q.append(i.tag)
        out.append(i)
    return out, q

def flat(gaps, pre, nxt_need):
    out = []; q = list(pre)
    def wf(need):
        nonlocal q
        idx = -1
        for t in need:
            if t in q: idx = max(idx, len(q) - 1 - q[::-1].index(t))
        if idx < 0: return
        n = min(len(q) - 1 - idx, 15)
        out.append(waitcnt(None, n)); q = q[idx + 1:]
    for g, (m, sc, oth) in enumerate(gaps):
        wf(m.need)
        out.append(m)
        has_l0 = any(getattr(i, "lgw", None) == 0 for i in sc)
        if not has_l0:
            wf(gaps[g + 1][0].need if g + 1 < len(gaps) else nxt_need)
        for i in sc + oth:
            if i.need: wf(i.need)
            if getattr(i, "lgw", None) == 0: q = []
            if getattr(i, "is_marker", False): continue
            if i.kind == "ds": q.append(i.tag)
            out.append(i)
    return out, q

def label(n): return Ins(n + ":", "label", states=0, cost=0)

def stamp(k):
    if not opt.diag: return []
    return [raw(f"s_memrealtime {s_ts}"), raw("s_memtime s[66:67]"), raw("s_waitcnt lgkmcnt(0)", "wait0"), raw(f"s_mov_b32 m0, {s_tsp}"), raw("s_nop 1"),
            raw(f"v_writelane_b32 v0, {s_ts.sub(0)}, m0"), raw(f"s_add_u32 m0, m0, 32"), raw("s_nop 1"), raw("v_writelane_b32 v0, s66, m0"),
            raw(f"s_add_u32 {s_tsp}, {s_tsp}, 1")]

def retag(q, old, new):
    return [tuple(new if x == old else x for x in t) if len(t) > 1 else t for t in q]

def variant(nb):
    P = {}
    hd, head = make_head(nb, "hd", "i1")
    i1 = make_mid(nb, 1, "i1", "i2")
    i2 = make_mid(nb, 2, "i2", "i1")
    i6 = make_mid(nb, 6, "i2", "i1", special=True)
    i7 = make_last(nb, "i1")
    SG = dict(hd=hd, i1=i1, i2=i2, i6=i6, i7=i7)
    G = {k: s.build() for k, s in SG.items()}
    print(f"nb={nb} overflow cycles:", {k: s.over for k, s in SG.items()}, file=sys.stderr)
    P["hd"], q0 = flat(G["hd"], [], G["i1"][0][0].need)
    P["i1"], q1 = flat(G["i1"], q0, G["i2"][0][0].need)
    P["i2"], q2 = flat(G["i2"], q1, G["i1"][0][0].need)
    assert q2 == q0, (q0, q2)
    P["i6"], q = flat(G["i6"], q1, G["i7"][0][0].need)
    P["i7"], q = flat(G["i7"], q, [])
    P["epi"], q = lin(make_epi(nb), q)
    return P

def resolve_vm(traces):
    ws = set()
    for tr in traces:
        n = 0; last = {}
        for i in tr:
            if getattr(i, "vmneed", None) is not None:
                idx = max([last.get(u, -1) for u in i.vmneed])
                if idx >= 0: i.vmauto = min(i.vmauto, n - 1 - idx)
                ws.add(i)
            if getattr(i, "vm", False):
                u = getattr(i, "dma_wr", None)
                if u: last[u] = n
                n += 1
    for i in ws:
        i.vmw = i.vmauto
        i.text = f"s_waitcnt vmcnt({i.vmw})" + (f" lgkmcnt({i.lgw})" if i.lgw is not None else "")

def check_trace(trace):
    vm = []
    lg = []
    state = {}
    epoch = 0
    ALIAS = {("R2",): [("V", 0, 1), ("V", 0, 2), ("V", 0, 3), ("K", 7)], ("OS",): [("V", 1, c) for c in range(4)],
             ("R3",): [("K", 4), ("K", 5), ("K", 6), ("V", 0, 0)]}
    def phys(u): return ALIAS.get(u, [u])
    wr_land = {}; wr_pend = {}; rd_done = {}; rd_pend = {}; owner = {}
    errs = []
    for k, i in enumerate(trace):
        if getattr(i, "vmw", None) is not None:
            while len(vm) > i.vmw:
                o = vm.pop(0)
                u = getattr(o, "dma_wr", None)
                if u: wr_pend[u] -= 1; wr_land[u] = epoch
        if getattr(i, "lgw", None) is not None or i.kind == "wait0":
            n = 0 if i.kind == "wait0" else i.lgw
            while len(lg) > n:
                o = lg.pop(0)
                u = getattr(o, "lds_rd", None) or getattr(o, "lds_pw", None)
                if u: rd_pend[u] -= 1; rd_done[u] = epoch
        if getattr(i, "bar", False): epoch += 1
        u = getattr(i, "lds_rd", None)
        if u:
            if True:
                if wr_pend.get(u, 0) > 0: errs.append((k, "read of unit with pending DMA", u, i.text))
                elif not getattr(i, "private", False) and wr_land.get(u, 10**9) >= epoch: errs.append((k, "read without barrier after landing", u, i.text))
            for p in phys(u):
                if owner.get(p) != u: errs.append((k, "read of unit owned by", owner.get(p), u, i.text))
        w = getattr(i, "dma_wr", None) or getattr(i, "lds_pw", None)
        if w:
            for p in phys(w):
                o = owner.get(p)
                if o is not None:
                    priv = (o == w and w in (("X",), ("R2",), ("R3",), ("OS",)))
                    if rd_pend.get(o, 0) > 0 and not (getattr(i, "lds_pw", None) and o == w):
                        errs.append((k, "write over unit with reads in flight", o, w, i.text))
                    if not priv and rd_done.get(o, -1) >= epoch: errs.append((k, "write without barrier after reads", o, w, i.text))
                    if o != w and wr_pend.get(o, 0) > 0: errs.append((k, "write over pending dma", o, w))
                    if o != w and wr_land.get(o, -1) >= epoch: errs.append((k, "write over unit landed w/o barrier", o, w))
                owner[p] = w
        if i.kind == "ds":
            lg.append(i)
            u = getattr(i, "lds_rd", None) or getattr(i, "lds_pw", None)
            if u: rd_pend[u] = rd_pend.get(u, 0) + 1
        if getattr(i, "vm", False):
            vm.append(i)
            u = getattr(i, "dma_wr", None)
            if u: wr_pend[u] = wr_pend.get(u, 0) + 1
            assert len(vm) <= 63, "vmcnt overflow"
    return errs

def cross_check(traces):
    ALIAS = {("R2",): [("V", 0, 1), ("V", 0, 2), ("V", 0, 3), ("K", 7)], ("OS",): [("V", 1, c) for c in range(4)],
             ("R3",): [("K", 4), ("K", 5), ("K", 6), ("V", 0, 0)]}
    allg = []
    for tr in traces:
        gens = {}; epoch = 0; vm = []; lg = []
        for i in tr:
            if getattr(i, "vmw", None) is not None:
                while len(vm) > i.vmw:
                    for g in vm.pop(0): g["land"] = epoch
            if getattr(i, "lgw", None) is not None or i.kind == "wait0":
                n = 0 if i.kind == "wait0" else i.lgw
                while len(lg) > n:
                    for g in lg.pop(0): g["done"] = epoch
            if getattr(i, "bar", False): epoch += 1
            w = getattr(i, "dma_wr", None) or getattr(i, "lds_pw", None); r = getattr(i, "lds_rd", None)
            touched = []
            u = w or r
            if u and u != ("X",):
                for p in ALIAS.get(u, [u]):
                    l = gens.setdefault(p, [])
                    if w and (not l or l[-1]["own"] != u or (l[-1]["rd0"] is not None and u not in ALIAS)):
                        l.append(dict(own=u, wr0=epoch, land=10**9, rd0=None, done=-1))
                    g = l[-1]
                    if r and g["rd0"] is None: g["rd0"] = epoch
                    if r or getattr(i, "lds_pw", None): g["done"] = 10**9
                    if getattr(i, "dma_wr", None): g["land"] = 10**9
                    touched.append(g)
            if i.kind == "ds": lg.append(touched)
            if getattr(i, "vm", False): vm.append(touched)
        allg.append((gens, epoch))
    assert len(set(e for _, e in allg)) == 1, "barrier counts differ"
    for p in allg[0][0]:
        n = len(allg[0][0][p])
        assert all(len(g[p]) == n and [x["own"] for x in g[p]] == [x["own"] for x in allg[0][0][p]] for g, _ in allg), ("generations differ", p)
        for k in range(n):
            G = [g[p][k] for g, _ in allg]
            if G[0]["own"] not in ALIAS and G[0]["rd0"] is not None:
                assert max(x["land"] for x in G) < min(x["rd0"] for x in G), ("cross RAW", p, k, G)
            if k + 1 < n:
                N = [g[p][k + 1] for g, _ in allg]
                assert max(x["done"] for x in G) < min(x["wr0"] for x in N), ("cross WAR", p, k, G, N)
                if G[0]["own"] != N[0]["own"] and any(x["land"] != 10**9 or x["rd0"] is not None for x in G) and G[0]["own"] != ("OS",):
                    assert max(x["land"] for x in G) < min(x["wr0"] for x in N), ("cross WAW", p, k, G, N)

THR = {}
def schedule_table(mode):
    tab = {}
    if mode == "simple":
        for wg in range(256):
            x = wg & 7; idx = wg >> 3
            head = x * 16 + (idx >> 1); base = 41 * (idx & 1)
            tab[wg] = [(head, base, 12), (head, base + 12, 16), (head, base + 28, 13)]
    elif mode == "share":
        for x in range(8):
            rounds = [[], [], []]
            def add(r, h, start, sizes):
                for sz in sizes:
                    rounds[r].append((x * 16 + h, start, sz)); start += sz
                return start
            for h in range(10):
                st = add(0, h, 0, [12, 12, 12]); add(1 if h < 6 else 2, h, st, [15, 15, 16])
            st = add(0, 10, 0, [12, 12]); st = add(1, 10, st, [15, 14]); add(2, 10, st, [15, 14])
            for h in range(11, 16):
                add(1 if h < 13 else 2, h, 0, [14, 14, 14, 14, 13, 13])
            assert all(len(r) == 32 for r in rounds), [len(r) for r in rounds]
            for idx in range(32):
                tab[idx * 8 + x] = [rounds[0][idx], rounds[1][idx], rounds[2][idx]]
    elif mode.startswith("g6"):
        orders = {"A": (0, 1, 2), "B": (1, 0, 2), "C": (2, 1, 0), "D": (2, 0, 1)}
        pat = mode.split("_")[1]
        rot = pat.startswith("x"); pat = pat.lstrip("x")
        for x in range(8):
            for g in range(6):
                o = orders[pat[(g + (x if rot else 0)) % len(pat)]] if not pat.startswith("X") else orders["ABC"[x % 3]]
                if g < 5:
                    ha, hb, hc = [x * 16 + 3 * g + i for i in range(3)]
                    r0 = [(ha, 0, 12), (ha, 12, 12), (ha, 24, 12), (hb, 0, 12), (hb, 12, 12), (hb, 24, 12)]
                    r1 = [(ha, 36, 15), (ha, 51, 15), (ha, 66, 16), (hb, 36, 15), (hb, 51, 15), (hb, 66, 16)]
                    r2 = [(hc, 0, 14), (hc, 14, 14), (hc, 28, 13), (hc, 41, 14), (hc, 55, 14), (hc, 69, 13)]
                    n = 6
                else:
                    h = x * 16 + 15
                    r0 = [(h, 0, 12), (h, 12, 12)]; r1 = [(h, 24, 15), (h, 39, 15)]; r2 = [(h, 54, 14), (h, 68, 14)]
                    n = 2
                R = [r0, r1, r2]
                for i in range(n):
                    tab[(6 * g + i) * 8 + x] = [R[o[0]][i], R[o[1]][i], R[o[2]][i]]
    elif mode.startswith("t3"):
        _, lo, so, th = mode.split("_")
        th = [int(x, 16) for x in th.split(".")]
        for x in range(8):
            H = [x * 16 + i for i in range(16)]
            T3 = lambda h: [(h, 0, 12), (h, 12, 12), (h, 24, 12)]
            T4 = lambda h: [(h, 36, 16), (h, 52, 16), (h, 68, 14)]
            for g in range(5):
                a, b, c = H[3 * g], H[3 * g + 1], H[3 * g + 2]
                Lt = {"3": T3(a), "4": T4(a), "5": T4(b)[::-1]}
                St = {"3": T3(c), "2": T3(b), "4": T4(c)}
                lord = lo.split(".")[(g + x) % len(lo.split("."))]; sord = so.split(".")[(g + x) % len(so.split("."))]
                for i in range(3):
                    tab[(6 * g + i) * 8 + x] = [Lt[k][i] for k in lord]
                    tab[(6 * g + 3 + i) * 8 + x] = [St[k][i] for k in sord]
                    THR[(6 * g + 3 + i) * 8 + x] = th[(g + x) % len(th)]
            h = H[15]
            tab[30 * 8 + x] = [(h, 0, 12), (h, 36, 16), (h, 68, 14)]
            tab[31 * 8 + x] = [(h, 12, 12), (h, 52, 16), (h, 24, 12)]
    cov = {}
    for wg, l in tab.items():
        for h, st, n in l:
            assert 12 <= n <= 16
            for b in range(st, st + n):
                assert (h, b) not in cov; cov[(h, b)] = wg
    assert len(cov) == 128 * 82
    return tab

def setup_code():
    L = []; A = L.append
    if opt.diag or opt.padto: A("s_memrealtime s[98:99]")
    A("s_cmp_ge_u32 s2, 256")
    A("s_cbranch_scc1 L_exit")
    A("s_load_dwordx4 s[72:75], s[0:1], 0")
    A("s_load_dwordx4 s[76:79], s[0:1], 16")
    if opt.diag: A("s_load_dwordx2 s[64:65], s[0:1], 40")
    A("s_getpc_b64 s[4:5]")
    A("L_pc:")
    if opt.warm:
        A("s_mov_b32 s6, L_warm_end-L_pc\ns_mov_b32 s7, 0x20000\nv_lshlrev_b32 v16, 7, v0")
        for k in range(opt.warm): A(f"s_mov_b32 s3, {k * 32768}\nbuffer_load_dword v{17 + k}, v16, s[4:7], s3 offen")
    A("s_lshl_b32 s3, s2, 6")
    A("s_add_u32 s3, s3, L_table-L_pc")
    A("s_add_u32 s46, s4, s3")
    A("s_addc_u32 s47, s5, 0")
    A("s_load_dwordx16 s[80:95], s[46:47], 0")
    A(f"v_readfirstlane_b32 {s_wave}, v0")
    A("v_and_b32 v10, 63, v0")
    A(f"s_lshr_b32 {s_wave}, {s_wave}, 6")
    A("v_and_b32 v11, 15, v10")
    A("v_lshrrev_b32 v14, 4, v10")
    A("v_lshrrev_b32 v15, 2, v11\nv_lshlrev_b32 v1, 11, v15\nv_and_b32 v6, 3, v11\nv_lshl_add_u32 v1, v6, 6, v1")
    A("v_lshrrev_b32 v6, 3, v11\nv_lshlrev_b32 v6, 1, v6\nv_xor_b32 v6, v6, v14\nv_lshl_add_u32 v1, v6, 4, v1")
    A("v_lshrrev_b32 v6, 1, v14\nv_lshlrev_b32 v2, 10, v6\nv_and_b32 v7, 1, v14\nv_lshl_add_u32 v6, v7, 2, v15\nv_lshl_add_u32 v2, v6, 6, v2")
    A(f"v_and_b32 v8, 3, v10\nv_lshl_add_u32 v2, v8, 3, v2\nv_lshl_add_u32 v2, v7, 5, v2\nv_add_u32 v2, {VB}, v2\nv_xor_b32 v3, 32, v2")
    A("v_lshlrev_b32 v12, 9, v15\nv_lshl_add_u32 v12, v14, 6, v12\nv_lshl_add_u32 v12, v8, 4, v12\nv_xor_b32 v13, 32, v12\nv_add_u32 v13, 4096, v13")
    A(f"s_lshl_b32 {s_mK}, {s_wave}, 11\ns_lshr_b32 s3, {s_wave}, 1\ns_lshl_b32 s3, s3, 5")
    A(f"v_xor_b32 v4, s3, v12\nv_add_u32 v4, {s_mK}, v4")
    A("v_lshrrev_b32 v6, 2, v10\nv_and_b32 v6, 7, v6\nv_lshlrev_b32 v5, 9, v6\nv_lshrrev_b32 v6, 2, v6\nv_lshlrev_b32 v6, 1, v6\nv_xor_b32 v6, v6, v8")
    A(f"v_lshl_add_u32 v5, v6, 4, v5\nv_lshrrev_b32 v6, 5, v10\nv_lshl_add_u32 v5, v6, 6, v5\ns_lshl_b32 s3, {s_wave}, 13\nv_add_u32 v5, s3, v5")
    A(f"s_add_u32 {s_mX}, s3, {XB}")
    A(f"s_add_u32 {s_mOS}, s3, {vslot_addr(1, 0)}")
    A(f"s_add_u32 {s_mR2}, s3, {vslot_addr(0, 0)}")
    A(f"s_cmp_eq_u32 {s_wave}, 0\ns_cselect_b32 {s_mR2}, {kslot_addr(7)}, {s_mR2}")
    A(f"s_add_u32 {s_mR3}, s3, {kslot_addr(4)}")
    A(f"s_cmp_eq_u32 {s_wave}, 3\ns_cselect_b32 {s_mR3}, {vslot_addr(0, 0)}, {s_mR3}")
    A("v_lshrrev_b32 v6, 1, v14\nv_and_b32 v9, 7, v11\nv_xor_b32 v6, v6, v9\nv_lshlrev_b32 v6, 4, v6\nv_lshl_add_u32 v6, v7, 3, v6")
    A(f"v_lshl_add_u32 v6, v11, 7, v6\nv_add_u32 v15, {s_mOS}, v6")
    A("v_lshrrev_b32 v6, 3, v10\nv_xor_b32 v9, v9, v6\nv_lshlrev_b32 v9, 4, v9\nv_lshl_add_u32 v14, v6, 9, v9")
    A(f"s_mov_b32 {s_c}, {C_SCALE:#x}\ns_mov_b32 {s_pass}, 0\ns_mov_b32 {s_flags}, 0")
    if opt.diag: A(f"s_mov_b32 {s_tsp}, 1\nv_mov_b32 v0, 0")
    A("s_waitcnt lgkmcnt(0)")
    if opt.diag: A("v_writelane_b32 v0, s98, 0")
    for srd, p, n in ((sQ, 72, QBYTES), (sK, 74, KBYTES), (sV, 76, KBYTES), (sO, 78, QBYTES)):
        A(f"s_mov_b32 {srd[0]}, s{p}\ns_mov_b32 {srd[1]}, s{p+1}\ns_mov_b32 {srd[2]}, {n}\ns_mov_b32 {srd[3]}, 0x20000")
    for k in range(8): A(f"s_mov_b32 {s_ok[k]}, {OOB:#x}")
    for p in range(3):
        A(f"s_sub_u32 s3, s{80+3*p+2}, 12")
        A(f"s_min_u32 s4, s3, {s_wave}")
        A(f"s_mul_i32 s5, {s_wave}, 3\ns_add_u32 s4, s4, s5\ns_lshl_b32 s4, s4, 13")
        A(f"s_add_u32 {s_tab[4*p]}, s{80+3*p}, s4")
        A(f"s_mov_b32 {s_tab[4*p+1]}, s{80+3*p+1}")
        A(f"s_add_u32 {s_tab[4*p+3]}, {s_tab[4*p]}, 24576")
        A(f"s_cmp_lt_u32 {s_wave}, s3\ns_cselect_b32 {s_tab[4*p+2]}, 4, 3\ns_cselect_b32 {s_tab[4*p+3]}, {s_tab[4*p+3]}, {OOB:#x}")
    A(f"s_mov_b32 {s_tab[12]}, {OOB:#x}\ns_mov_b32 {s_tab[13]}, {OOB:#x}\ns_mov_b32 {s_tab[14]}, 0\ns_mov_b32 {s_tab[15]}, {OOB:#x}")
    for p in range(3):
        for k in range(3): A(f"s_mov_b32 s{80+3*p+k}, {s_tab[4*p+k]}")
    return L

def startup():
    r = []
    r += [sop(f"s_mov_b32 {s_kptr}, {s_tab[1]}", wr=[s_kptr]), sop(f"s_sub_u32 {s_vptr}, {s_tab[1]}, 32768", wr=[s_vptr])]
    r += [sop(f"s_add_u32 {s_t0}, {s_tab[0]}, 8192", wr=[s_t0]), sop(f"s_add_u32 {s_t1}, {s_tab[0]}, 16384", wr=[s_t1]),
          sop(f"s_add_u32 {s_t2}, {s_tab[0]}, 24576", wr=[s_t2])]
    r += dma_K(1)
    k = 0
    for grp in (dma_Q(s_mX, s_tab[0], ("X",)), dma_Q(s_mR2, s_t0, ("R2",)), dma_Q(s_mOS, s_t1, ("OS",))):
        for hf in (grp[:6], grp[6:]):
            r += hf
            r += [sop(f"s_bitcmp1_b32 s89, {k}"), raw(f"s_cbranch_scc0 L_th{k}"), raw("s_waitcnt vmcnt(0)"), label(f"L_th{k}")]
            k += 1
    r += dma_K(2) + dma_K(3)
    r += dma_K(4) + dma_K(5) + dma_K(6) + dma_V(0, 0)
    r += [vwait([("X",)])] + q_reads(0, s_mX, ("X",), vt0)
    r += [sop(f"s_cmp_lt_u32 {s_tab[2]}, 4"), raw("s_cbranch_scc1 L_noq3")]
    r2 = [waitcnt(None, 0)] + dma_Q(s_mX, s_t2, ("X",))
    r2 += [vwait([("R2",)])] + q_reads(1, s_mR2, ("R2",), vt1) + [vwait([("OS",)])] + q_reads(2, s_mOS, ("OS",), vt0)
    r2 += [vwait([("X",)])] + q_reads(3, s_mX, ("X",), vt1) + [raw("s_branch L_first")]
    r3 = [vwait([("R2",)])] + q_reads(1, s_mR2, ("R2",), vt1) + [vwait([("OS",)])] + q_reads(2, s_mOS, ("OS",), vt0)
    r3 += [vwait([("K", 1), ("K", 2), ("K", 3)])]
    return r, r2, r3

def pass_begin():
    T2 = lambda k: S(s_tab.n + k, 2)
    r = [sop(f"s_mov_b32 {s_ocur}, {s_tab[0]}"),
         sop(f"s_add_u32 {s_kend}, {s_tab[1]}, 262144"),
         sop(f"s_mov_b32 {s_nbn}, {s_tab[2]}"),
         sop(f"s_mov_b32 {s_knext}, {s_tab[5]}"),
         sop(f"s_mov_b32 {s_xq}, {s_tab[4]}"),
         sop(f"s_add_u32 {s_qn[1]}, {s_tab[4]}, 8192"), sop(f"s_add_u32 {s_qn[2]}, {s_tab[4]}, 16384"),
         sop(f"s_mov_b32 {s_qn[3]}, {s_tab[7]}")]
    for k in range(0, 12, 2): r.append(sop(f"s_mov_b64 {T2(k)}, {T2(k + 4)}"))
    r += [sop(f"s_mov_b32 {s_cnt}, 3"), sop(f"s_mov_b32 {s_tq}, {s_qn[1]}"), sop(f"s_lshl_b32 {s_tk}, {s_wave}, 13"),
          sop(f"s_add_u32 {s_tk}, {s_tk}, {s_knext}"), sop(f"s_mov_b32 {s_tv}, {s_tk}"),
          sop(f"s_mov_b32 {s_xm}, {s_mX}")]
    return r

def repair_code():
    rQ = lambda k: V(96 + 4 * k, 4); rK = lambda k: V(128 + 4 * k, 4); rS = lambda k: V(32 + 4 * k, 4)
    rO = lambda k: V(160 + 4 * k, 4); rV = lambda k: V(224 + 4 * k, 4)
    m, l, ta, tb, al, nm = V(6), V(7), V(8), V(9), V(10), V(11)
    fa, va0, va1, vop, so = V(48), V(49), V(50), V(51), V(52)
    sp, sb, sj, sq, sk, sv = S(90), S(91), S(92), S(93), S(94), S(95)
    def gload(d, srd, soff, imm):
        return Ins(f"buffer_load_dwordx4 {d}, {fa}, {srd}, {soff} offen offset:{imm}", "vmem", rd=[fa, srd, soff], wr=[d])
    W = lambda t: raw(t, "wait")
    out = []
    pre = [W("s_waitcnt vmcnt(0) lgkmcnt(0)"),
           valu("v_mbcnt_lo_u32_b32", ta, -1, 0), valu("v_mbcnt_hi_u32_b32", ta, -1, ta),
           valu("v_and_b32", tb, 15, ta), valu("v_lshrrev_b32", ta, 4, ta),
           valu("v_lshlrev_b32", fa, 9, tb), valu("v_lshl_add_u32", so, ta, 3, fa), valu("v_lshl_add_u32", fa, ta, 4, fa),
           sop(f"s_sub_u32 {s_t0}, {s_mX}, {VB}"), valu("v_add_u32", va0, s_t0, vaddr0), valu("v_add_u32", va1, s_t0, vaddr1),
           sop(f"s_lshl_b32 {s_t0}, {s_wave}, 13"), valu("v_subrev_u32", vop, s_t0, voV),
           sop(f"s_mov_b32 {sp}, 0")]
    out += fix_hazards(pre)
    out += [label("L_rp"), sop(f"s_bitcmp1_b32 {s_flags}, {sp}"), raw("s_cbranch_scc0 L_rp_next"), sop(f"s_mov_b32 {sb}, 0"), label("L_rb")]
    blk = [sop(f"s_lshl_b32 {sq}, {sb}, 13"), sop(f"s_add_u32 {sq}, {sq}, s80")]
    blk += [gload(rQ(k), sQ, sq, k * 64) for k in range(8)]
    blk += [valu("v_mov_b32", m, "0xff800000"), valu("v_mov_b32", l, 0)]
    blk += [valu("v_mov_b32", V(160 + k), 0) for k in range(64)]
    blk += [sop(f"s_mov_b32 {sk}, s81"), sop(f"s_mov_b32 {sv}, s81"), sop(f"s_mov_b32 {sj}, 0")]
    out += fix_hazards(blk) + [label("L_rj")]
    it = []
    for kvb in range(4):
        it += [gload(rK(k), sK, sk, k * 64) for k in range(8)] + [sop(f"s_add_u32 {sk}, {sk}, 8192"), W("s_waitcnt vmcnt(0)")]
        it += [mfma(rS(kvb), rK(k), rQ(k), rS(kvb) if k else 0) for k in range(8)]
    xs = [V(32 + k) for k in range(16)]
    it += [valu("v_max3_f32", ta, m, xs[0], xs[1])]
    it += [valu("v_max3_f32", ta, ta, xs[k], xs[k + 1]) for k in range(2, 16, 2)]
    it += [valu("v_mov_b32", tb, ta), perm("v_permlane16_swap_b32", ta, tb), valu("v_max_f32", ta, ta, tb),
           valu("v_mov_b32", tb, ta), perm("v_permlane32_swap_b32", ta, tb), valu("v_max_f32", ta, ta, tb),
           valu("v_sub_f32", al, m, ta), valu("v_mul_f32", al, s_c, al), valu("v_exp_f32", al, al), valu("v_mov_b32", m, ta)]
    it += [valu("v_sub_f32", x, x, m) for x in xs] + [valu("v_mul_f32", x, s_c, x) for x in xs] + [valu("v_exp_f32", x, x) for x in xs]
    it += [valu("v_mul_f32", l, l, al)] + [valu("v_add_f32", l, l, x) for x in xs]
    it += [valu("v_mul_f32", V(160 + k), V(160 + k), al) for k in range(64)]
    Pf = lambda ks: V(16 + 4 * ks, 4)
    for ks in range(2):
        for j in range(4): it.append(valu("v_cvt_pk_bf16_f32", Pf(ks)[j], xs[8 * ks + 2 * j], xs[8 * ks + 2 * j + 1]))
    for c in range(4):
        for j in range(8):
            it += [sop(f"s_add_u32 {s_t0}, {sv}, {j * 4096 + c * 128}", wr=[s_t0]), set_m0(s_mX, j * 1024), dma(vop, sV, s_t0, 0, None, "")]
        it += [W("s_waitcnt vmcnt(0)")]
        for dbl in range(4):
            for ks in range(2):
                for j4 in range(2):
                    it.append(ds_read("ds_read_b64_tr_b16", rV(2 * dbl + ks).sub(2 * j4, 2), va1 if dbl & 1 else va0, ks * 4096 + (dbl >> 1) * 512 + j4 * 2048))
        it += [W("s_waitcnt lgkmcnt(0)")]
        for dbl in range(4):
            for ks in range(2): it.append(mfma(rO(4 * c + dbl), rV(2 * dbl + ks), Pf(ks), rO(4 * c + dbl)))
    it += [nop(9), sop(f"s_add_u32 {sv}, {sv}, 32768"), sop(f"s_add_u32 {sj}, {sj}, 1"), sop(f"s_cmp_lt_u32 {sj}, 8"), raw("s_cbranch_scc1 L_rj")]
    out += fix_hazards(it)
    fin = [valu("v_mov_b32", tb, l), perm("v_permlane16_swap_b32", l, tb), valu("v_add_f32", l, l, tb),
           valu("v_mov_b32", tb, l), perm("v_permlane32_swap_b32", l, tb), valu("v_add_f32", l, l, tb), valu("v_rcp_f32", al, l)]
    for db in range(16):
        o = rO(db)
        fin += [valu("v_mul_f32", o[i], o[i], al) for i in range(4)]
        fin += [valu("v_cvt_pk_bf16_f32", o[0], o[0], o[1]), valu("v_cvt_pk_bf16_f32", o[1], o[2], o[3])]
        fin.append(Ins(f"buffer_store_dwordx2 {o.sub(0, 2)}, {so}, {sO}, {sq} offen offset:{db * 32}", "vmem", rd=[o.sub(0, 2), so, sO, sq]))
    fin += [W("s_waitcnt vmcnt(0)"), sop(f"s_add_u32 {sb}, {sb}, 1"), sop(f"s_cmp_lt_u32 {sb}, s82"), raw("s_cbranch_scc1 L_rb")]
    out += fix_hazards(fin)
    out += [label("L_rp_next")]
    out += [sop(f"s_mov_b32 s{80 + k}, s{83 + k}") for k in range(6)]
    out += [sop(f"s_add_u32 {sp}, {sp}, 1"), sop(f"s_cmp_lt_u32 {sp}, 3"), raw("s_cbranch_scc1 L_rp")]
    return out

def main():
    ap = argparse.ArgumentParser()
    ap.add_argument("-o", default="standalone__mha_softmax__near_ridge.s")
    ap.add_argument("--diag", type=int, default=0)
    ap.add_argument("--kvmod", default="")
    ap.add_argument("--qmod", default="")
    ap.add_argument("--omod", default="")
    ap.add_argument("--sched", default="t3_345_423_3f")
    ap.add_argument("--pkmul", type=int, default=1)
    ap.add_argument("--rep", type=int, default=1)
    ap.add_argument("--omod3", default="")
    ap.add_argument("--omod4", default="")
    ap.add_argument("--wb", type=int, default=0)
    ap.add_argument("--nostore", type=int, default=0)
    ap.add_argument("--ca7", type=int, default=3)
    ap.add_argument("--show", type=int, default=0)
    ap.add_argument("--spread", type=int, default=1)
    ap.add_argument("--touch", type=int, default=0)
    ap.add_argument("--force", type=int, default=0)
    ap.add_argument("--padto", type=int, default=0)
    ap.add_argument("--defer", type=int, default=0)
    ap.add_argument("--warm", type=int, default=2)
    a = ap.parse_args()
    opt.__dict__.update(vars(a)); opt.nextq = 1
    L = []; A = L.append
    hdr = open("standalone__mha_softmax__near_ridge.s.ref").read().split("\n")
    for l in hdr:
        if l.startswith("; @launch"): break
        A(l)
    A(f"; @launch grid=(256,1,1) block=(256,1,1) lds={LDS_BYTES}")
    A('.amdgcn_target "amdgcn-amd-amdhsa--gfx950"')
    A(f".text\n.globl {KNAME}\n.p2align 8\n.type {KNAME},@function\n{KNAME}:")
    L += setup_code()
    def emit(seq):
        for i in seq: L.append(i)
    if opt.rep > 1: A(f"s_mov_b32 s98, {opt.rep}\nL_again:")
    emit(stamp(0))
    s1, s2, s3 = startup()
    s1 = fix_hazards(lin(s1)[0]); s2 = fix_hazards(lin(s2)[0]); s3 = fix_hazards(lin(s3)[0])
    emit(s1); emit(s2); A("L_noq3:"); emit(s3)
    A("L_first:")
    s4 = pass_begin() + [waitcnt(None, 0), barrier()] + head_reads()
    s4 = fix_hazards(s4 + sum([dma_V(0, 1), dma_V(0, 2), dma_V(0, 3), dma_K(7)][:opt.ca7], []))
    emit(s4)
    A("L_pass:")
    pb = [waitcnt(None, 0), barrier()]
    emit(pb)
    emit(stamp(1))
    A(f"s_cmp_eq_u32 {s_nbn}, 3\ns_cbranch_scc1 L_v3")
    VAR = {}
    for nb in (4, 3):
        P = variant(nb)
        hd = fix_hazards(P["hd"])
        b1 = fix_hazards(P["i1"], wrap=hd[-14:])
        b2 = fix_hazards(P["i2"], wrap=b1[-14:])
        b1b = fix_hazards(P["i1"], wrap=b2[-14:])
        assert [x.text for x in b1b] == [x.text for x in b1], "loop entry hazards differ"
        i6 = fix_hazards(P["i6"], wrap=b1[-14:])
        i7 = fix_hazards(P["i7"], wrap=i6[-14:])
        epi = fix_hazards(P["epi"], wrap=i7[-14:])
        VAR[nb] = dict(hd=hd, b1=b1, b2=b2, i6=i6, i7=i7, epi=epi)
        nn = sum(1 for p in VAR[nb].values() for x in p if x.kind == "nop")
        print(f"nb={nb}: sizes", {k: len(v) for k, v in VAR[nb].items()}, "nops", nn, file=sys.stderr)
        A(".p2align 6"); A(f"L_v{nb}:")
        emit(hd)
        emit(stamp(2))
        if opt.diag == 3:
            for k in range(3):
                A(f"s_sub_u32 s66, s{92+4*k}, s{90+4*k}\ns_mul_i32 s67, {s_pass}, 3\ns_add_u32 m0, s67, {20+k}\ns_nop 1\nv_writelane_b32 v0, s66, m0")
        A(f"L_loop{nb}:")
        emit(b1); A(f"s_cbranch_scc1 L_i6_{nb}"); emit(b2); A(f"s_branch L_loop{nb}")
        A(f"L_i6_{nb}:")
        emit(i6); emit(i7)
        emit(stamp(3))
        emit(epi)
        emit(stamp(4))
        A(f"s_add_u32 {s_pass}, {s_pass}, 1\ns_cmp_lt_u32 {s_pass}, 3\ns_cbranch_scc1 L_pass\ns_branch L_done")
    tail = [waitcnt(None, 0)] + [store(c, k) for c in range(4 - opt.defer, 4) for k in range(8)]
    traces = []
    import itertools
    for seqnb in itertools.product((3, 4), repeat=3):
        tr = s1 + (s2 if seqnb[0] == 4 else s3) + s4
        for nb in seqnb:
            v = VAR[nb]
            tr = tr + pb + v["hd"] + (v["b1"] + v["b2"]) * 2 + v["b1"] + v["i6"] + v["i7"] + v["epi"]
        traces.append(tr + tail)
    resolve_vm(traces)
    for tr in traces:
        errs = check_trace(tr)
        if errs:
            for e in errs[:20]: print("SYNC ERR", e, file=sys.stderr)
            raise SystemExit(1)
    cross_check(traces)
    A("L_done:")
    emit(tail)
    if opt.force: A(f"s_mov_b32 {s_flags}, {opt.force}")
    A(f"s_cmp_lg_u32 {s_flags}, 0\ns_cbranch_scc1 L_repair\nL_fin:")
    if opt.rep > 1:
        A("s_waitcnt vmcnt(0) lgkmcnt(0)\ns_barrier")
        raise SystemExit("rep unsupported now")
        A(f"s_mov_b32 {s_pass}, 0\ns_sub_u32 s98, s98, 1\ns_cmp_lg_u32 s98, 0\ns_cbranch_scc1 L_again")
    if opt.diag:
        A("s_waitcnt vmcnt(0)")
        emit(stamp(5))
        A(f"s_mov_b32 s66, 0x1000000\ns_mov_b32 s67, 0x20000")
        A(f"v_mbcnt_lo_u32_b32 v1, -1, 0\nv_mbcnt_hi_u32_b32 v1, -1, v1\nv_lshlrev_b32 v1, 2, v1")
        A(f"s_lshl_b32 s3, s2, 10\ns_lshl_b32 s4, {s_wave}, 8\ns_add_u32 s3, s3, s4")
        A("buffer_store_dword v0, v1, s[64:67], s3 offen")
        if opt.diag == 2:
            A(f"s_or_b32 s3, s2, {s_wave}\ns_cmp_lg_u32 s3, 0\ns_cbranch_scc1 L_exit")
            A("s_load_dwordx2 s[64:65], s[0:1], 32\ns_mov_b32 s66, 256\nv_readlane_b32 s4, v0, 0\nv_readlane_b32 s5, v0, 32\ns_waitcnt lgkmcnt(0)")
            idx = [2, 3, 4, 6, 8, 10, 12, 14]
            for j, k in enumerate(idx):
                A(f"v_readlane_b32 s6, v0, {k}\nv_readlane_b32 s7, v0, {k+32}\ns_sub_u32 s6, s6, s4\ns_sub_u32 s7, s7, s5\ns_nop 1\nv_writelane_b32 v2, s6, {j}\nv_writelane_b32 v2, s7, {j+8}")
            A("s_mov_b64 exec, 0xffff\nbuffer_store_dword v2, v1, s[64:67], 0 offen")
    if opt.wb == 1:
        A(f"s_cmp_lg_u32 {s_wave}, 0\ns_cbranch_scc1 L_exit\ns_waitcnt vmcnt(0)\nbuffer_wbl2 sc1\ns_waitcnt vmcnt(0)")
    if opt.wb == 2:
        A(f"s_cmp_lg_u32 {s_wave}, 0\ns_cbranch_scc1 L_exit\ns_cmp_eq_u32 s89, 0\ns_cbranch_scc1 L_exit\ns_waitcnt vmcnt(0)\nbuffer_wbl2 sc1\ns_waitcnt vmcnt(0)")
    if opt.wb == 3:
        A(f"s_waitcnt vmcnt(0)\nbuffer_wbl2 sc1")
    if opt.padto:
        A(f"s_waitcnt vmcnt(0)\nL_spin:\ns_memrealtime s[96:97]\ns_waitcnt lgkmcnt(0)\ns_sub_u32 s96, s96, s98\ns_cmp_lt_u32 s96, {opt.padto}\ns_cbranch_scc1 L_spin")
    A("L_exit:")
    A("s_endpgm")
    A("L_warm_end:")
    A("L_repair:")
    emit(repair_code())
    A("s_branch L_fin")
    A(".p2align 6\n.type L_table,@object\nL_table:")
    tab = schedule_table(opt.sched)
    for wg in range(256):
        w = []
        for h, st, n in tab[wg]:
            w += [(h * SQ + st * 16) * 512, h * SK * 512, n]
        w += [THR.get(wg, 0)]
        w += [0] * (16 - len(w))
        A(".long " + ", ".join(str(x) for x in w))
    A(".size L_table, 16384")
    A('.section .rodata,"a"\n.p2align 6')
    A(f".amdhsa_kernel {KNAME}")
    A("  .amdhsa_next_free_vgpr 512\n  .amdhsa_next_free_sgpr 102\n  .amdhsa_accum_offset 256\n  .amdhsa_group_segment_fixed_size 0")
    A("  .amdhsa_kernarg_size 48\n  .amdhsa_user_sgpr_count 2\n  .amdhsa_user_sgpr_kernarg_segment_ptr 1\n  .amdhsa_system_sgpr_workgroup_id_x 1")
    A(".end_amdhsa_kernel")
    open(opt.o, "w").write("\n".join((x if isinstance(x, str) else x.text) for x in L if x is not None) + "\n")

if __name__ == "__main__":
    main()
```

```python
import sys, argparse
from asmlib import *

KNAME = "standalone__mha_softmax__near_ridge_kernel"
NH, SQ, SK, D = 128, 1312, 512, 256
QBYTES = NH * SQ * D * 2
KBYTES = NH * SK * D * 2
OOB = 0x7fff0000
VB = 65536
XB = 131072
LDS_BYTES = 163840
C_SCALE = 0x3db8aa3b
L_LIMIT = 0x4e800000

sQ, sK, sV, sO = S(8, 4), S(12, 4), S(16, 4), S(20, 4)
s_wave = S(24)
s_mK = S(25)
s_mX = S(26)
s_mR2 = S(27)
s_mOS = S(28)
s_kptr, s_kend, s_knext = S(29), S(30), S(31)
s_vptr, s_vptr2, s_vend = S(32), S(33), S(34)
s_c = S(35)
s_cnt = S(36)
s_pass = S(37)
s_flags = S(38)
s_qn = [S(40), S(41), S(42), S(43)]
s_ocur = S(44)
s_t0, s_t1, s_t2 = S(45), S(46), S(47)
s_tab = S(48, 16)
s_dbg = S(64, 4)
s_ts = S(68, 2)
s_nbn = S(70)
s_tsp = S(71)
s_mR3 = S(39)
s_tq, s_tk, s_tv, s_xm, s_xq = S(90), S(91), S(92), S(93), S(94)
s_str = S(34)
s_ok = [S(72 + k) for k in range(8)]
kaddr, vaddr0, vaddr1, voK, voV = V(1), V(2), V(3), V(4), V(5)
lsum = lambda b: V(6 + b)
vt0, vt1 = V(10), V(11)
voQa, voQb = V(12), V(13)
vsto, wa0 = V(14), V(15)
Ct = lambda b: V(16 + 4 * b, 4)
SET = lambda i: V(32 + 16 * i, 16)
Sx = lambda i, b: SET(i).sub(4 * b, 4)
Q = lambda b, s: AG(b * 32 + s * 4, 4)
NF = 8
F = lambda i: AG(128 + 4 * (i % NF), 4)
def O(b, db):
    t = db * 4 + b
    return V(96 + 4 * t, 4) if t < 40 else AG(160 + 4 * (t - 40), 4)

M0 = ('m0', 0)
def set_m0(base, off):
    i = salu(f"s_add_u32 m0, {base}, {off}", rd=[base]); i.wr = {M0}; return i
def sop(text, rd=(), wr=()): return salu(text, rd=rd, wr=wr)

class Opt: pass
opt = Opt()

def dma(vo, srd, soff, imm, unit, mods):
    i = Ins(f"buffer_load_dwordx4 {vo}, {srd}, {soff} offen offset:{imm} {mods} lds".replace("  ", " "), "vmem", rd=[vo, srd, soff])
    i.rd.add(M0); i.dma_wr = unit; i.vm = True
    return i

def kslot_addr(slot): return slot * 8192
def vslot_addr(par, c): return VB + (par * 4 + c) * 8192

def dma_K(slot, wrap=False):
    r = []
    for dh in range(2):
        r.append(set_m0(s_mK, kslot_addr(slot) + dh * 768))
        r.append(dma(voK, sK, s_kptr, dh * 256, ("K", slot), opt.kvmod))
    r.append(sop(f"s_add_u32 {s_kptr}, {s_kptr}, 8192", rd=[s_kptr], wr=[s_kptr]))
    if wrap:
        r.append(sop(f"s_cmp_eq_u32 {s_kptr}, {s_kend}", rd=[s_kptr, s_kend]))
        r[-1].glue = True
        r.append(sop(f"s_cselect_b32 {s_kptr}, {s_knext}, {s_kptr}", rd=[s_kptr, s_knext], wr=[s_kptr]))
    return r

def dma_V(par, c, wrap=False):
    r = []
    if c == 0:
        r.append(sop(f"s_add_u32 {s_vptr}, {s_vptr}, 32768", rd=[s_vptr], wr=[s_vptr]))
        if wrap:
            r.append(sop(f"s_cmp_eq_u32 {s_vptr}, {s_vend}", rd=[s_vptr, s_vend]))
            r[-1].glue = True
            r.append(sop(f"s_cselect_b32 {s_vptr}, {s_knext}, {s_vptr}", rd=[s_vptr, s_knext], wr=[s_vptr]))
        r.append(sop(f"s_add_u32 {s_vptr2}, {s_vptr}, 4096", rd=[s_vptr], wr=[s_vptr2]))
    for e in range(2):
        r.append(set_m0(s_mK, vslot_addr(par, c) + e * 1024 - c * 128))
        r.append(dma(voV, sV, s_vptr2 if e else s_vptr, c * 128, ("V", par, c), opt.kvmod))
    return r

def dma_Q(base, soff, unit):
    r = []
    for hi in range(2):
        for dh in range(2):
            r.append(set_m0(base, hi * 4096 + dh * 768))
            for Rl in range(2):
                r.append(dma(voQb if hi else voQa, sQ, soff, Rl * 2048 + dh * 256, unit, opt.qmod))
    return r

def q_reads(b, base_sgpr, unit, tmp):
    r = [valu("v_add_u32", tmp, base_sgpr, kaddr)]
    for s in range(8):
        i = ds_read("ds_read_b128", Q(b, s), tmp, s * 256, tag=("q", b, s)); i.lds_rd = unit; i.private = True
        r.append(i)
    return r

def waitcnt(vm=None, lgkm=None):
    t = "s_waitcnt" + (f" vmcnt({vm})" if vm is not None else "") + (f" lgkmcnt({lgkm})" if lgkm is not None else "")
    i = raw(t, "wait"); i.vmw = vm; i.lgw = lgkm
    return i
def vwait(units, lgkm=None):
    i = raw("s_waitcnt ?", "wait"); i.vmneed = list(units); i.vmw = None; i.lgw = lgkm; i.vmauto = 63
    return i
def barrier():
    i = raw("s_barrier", "misc"); i.bar = True; return i

class Seg:
    def __init__(self, nb, name):
        self.nb = nb; self.name = name
        self.mf = []; self.nodes = []
        self.pairs = []
        self.blk = {}
        self.fixed = {}
        self.done = {}
        self.first = {}

    def qblock(self, name, slot, dst, czero, fbase):
        nb = self.nb; st = len(self.mf)
        for sp in range(4):
            p0 = len(self.mf)
            tags = [("f", self.name, name, 2 * sp + e) for e in range(2)]
            for b in range(nb):
                for e in range(2):
                    s = 2 * sp + e
                    d = Sx(dst, b)
                    c = d if s else (0 if czero else Ct(b))
                    self.mf.append(mfma(d, F(fbase + s), Q(b, s), c, need=tags))
                    self.done[(name, b)] = len(self.mf) - 1
            rd = []
            for e in range(2):
                s = 2 * sp + e
                i = ds_read("ds_read_b128", F(fbase + s), kaddr, kslot_addr(slot) + s * 256, tag=tags[e]); i.lds_rd = ("K", slot)
                rd.append(i)
            self.pairs.append((p0, len(self.mf) - 1, rd))
        self.blk[name] = (st, len(self.mf))

    def pblock(self, name, par, c, x0, x1, czero, fbase):
        self.pgen(name, par, [[(c, dbl, 0), (c, dbl, 1)] for dbl in range(4)], x0, x1, czero)

    def pgen(self, name, par, prs, x0, x1, czero):
        nb = self.nb; st = len(self.mf)
        for pi, pr in enumerate(prs):
            p0 = len(self.mf)
            fb = 2 * len(self.pairs)
            tags = [("f", self.name, name, 2 * pi + e) for e in range(2)]
            for b in range(nb):
                for e, (c, dbl, ks) in enumerate(pr):
                    o = O(b, 4 * c + dbl)
                    cc = 0 if (czero and ks == 0) else o
                    self.first.setdefault(("P", ks, b), len(self.mf))
                    self.first.setdefault(("O", c), len(self.mf))
                    self.mf.append(mfma(o, F(fb + e), Sx(x1 if ks else x0, b), cc, need=tags))
            rd = []
            for e, (c, dbl, ks) in enumerate(pr):
                f = F(fb + e)
                va = vaddr1 if (dbl & 1) else vaddr0
                off = vslot_addr(par, c) - VB + ks * 4096 + (dbl >> 1) * 512
                for j4 in range(2):
                    i = ds_read("ds_read_b64_tr_b16", f.sub(2 * j4, 2), va, off + j4 * 2048, tag=tags[e] if j4 else ("x",))
                    i.lds_rd = ("V", par, c)
                    rd.append(i)
            self.pairs.append((p0, len(self.mf) - 1, rd))
        self.blk[name] = (st, len(self.mf))

    def unit(self, src, even_set, odd, blocks, e_of, dl_crit, dl_add, lo, hi, add_lo=None, add_hi=None, pre=None, after=None, fma=None):
        crit = []; adds = []; res = {}
        for b in blocks:
            x = Sx(src, b); ev = Sx(even_set, b)
            ms = []
            for i in range(4):
                deps = [(n, 0) for n in pre[b]] if pre else []
                ins = valu("v_fma_f32", x[i], x[i], s_c, fma[b]) if fma else valu("v_mul_f32", x[i], s_c, x[i])
                ms.append(Node(ins, e=e_of(b), dl=dl_crit(b), deps=deps))
            ex = [Node(valu("v_exp_f32", x[i], x[i]), e=e_of(b), dl=dl_crit(b), deps=[(ms[i], 0)]) for i in range(4)]
            ad = []
            for i in range(4):
                deps = [(ex[i], 1)] + ([(ad[-1], 0)] if ad else [])
                ad.append(Node(valu("v_add_f32", lsum(b), lsum(b), x[i]), e=e_of(b), dl=(dl_add if odd else dl_crit(b)), deps=deps))
            aft = [(n, 0) for n in (after or {}).get(b, [])]
            if odd:
                c0 = Node(valu("v_cvt_pk_bf16_f32", ev[2], x[0], x[1]), e=e_of(b), dl=dl_crit(b), deps=[(ex[0], 1), (ex[1], 1)] + aft)
                c1 = Node(valu("v_cvt_pk_bf16_f32", ev[3], x[2], x[3]), e=e_of(b), dl=dl_crit(b), deps=[(ex[2], 1), (ex[3], 1)] + aft)
                crit += [ms[0], ms[1], ex[0], ex[1], ms[2], ms[3], ex[2], ex[3], c0, c1]
                adds += ad
            else:
                c0 = Node(valu("v_cvt_pk_bf16_f32", x[0], x[0], x[1]), e=e_of(b), dl=dl_crit(b), deps=[(ex[0], 1), (ex[1], 1), (ad[0], 0)])
                c1 = Node(valu("v_cvt_pk_bf16_f32", x[1], x[2], x[3]), e=e_of(b), dl=dl_crit(b), deps=[(ex[2], 1), (ex[3], 1), (ad[1], 0), (c0, 0)])
                crit += [ms[0], ms[1], ex[0], ex[1], ms[2], ms[3], ex[2], ex[3], ad[0], ad[1], ad[2], ad[3], c0, c1]
            res[b] = [c0, c1] + ad
        spread(crit, lo, hi)
        if adds: spread(adds, add_lo if add_lo is not None else lo, add_hi if add_hi is not None else hi)
        self.nodes += crit + adds
        return res

    def chain(self, instrs, lo, hi, e=None, dl=None, first_dep=None):
        prev = first_dep; out = []
        for i in instrs:
            gapd = 0
            if prev is not None:
                pk = prev.ins.kind
                gapd = 1
                if pk == "ds" and i.kind == "ds": gapd = 0
            n = Node(i, e=lo if e is None else e, dl=(10**9 if dl is None else dl), deps=[(prev, gapd)] if prev else [])
            out.append(n); prev = n
        k = len(out)
        for j, n in enumerate(out): n.ideal = lo + (hi - lo) * j / max(k, 1)
        self.nodes += out
        return out

    def reads(self, nxt_pairs, skip_first=3, barrier_before=()):
        pairs = self.pairs; ext = [p[2] for p in pairs] + list(nxt_pairs)
        prev = None
        plen = 2 * self.nb
        for k in range(skip_first, len(ext)):
            j = k - 4
            e = pairs[j][1] if j >= 0 else 0
            if k in barrier_before:
                g = e - 1 + (opt.barlag if self.nb == 3 else 0) if j >= 0 else 0
                g = min(g, len(self.mf) - 2)
                self.fixed[g] = barrier_before[k]
                self.bar_gap = getattr(self, "bar_gap", {}); self.bar_gap[k] = g
                e = g + 1
            dl = e + plen - 2
            if (k + 1) in barrier_before: dl = e + 1
            for i in ext[k]:
                n = Node(i, e=e, dl=min(dl, len(self.mf) - 1), ideal=e - 2, deps=[(prev, 0)] if prev else [])
                self.nodes.append(n); prev = n

    def build(self, nxt_first=None):
        n = len(self.mf)
        ft = set(); seen = set()
        for g, m in enumerate(self.mf):
            key = tuple(m.need)
            if key not in seen:
                seen.add(key)
                if g > 0: ft.add(g - 1)
        ft.add(n - 1)
        blocked = {}
        for g in self.fixed: ft.add(g); blocked[g] = 8
        gaps, over = schedule2(self.mf, self.nodes, free_taken=ft, blocked=blocked)
        for g, ins in self.fixed.items():
            gaps[g][1][0:0] = ins
        self.over = over
        if getattr(opt, "show", 0):
            cost = lambda i: 8 if i.kind == "vmem" else i.cost
            for nme, (a, b) in self.blk.items():
                row = ""
                for g in range(a, b):
                    u = sum(cost(i) for i in gaps[g][2]) + 4 * max(0, len(gaps[g][1]) - (0 if g in ft and g not in self.fixed else 1))
                    row += "B" if g in self.fixed else (str(u // 4) if u < 40 else "#")
                print(f"  nb{self.nb} {self.name} {nme}: {row}", file=sys.stderr)
        return gaps

def sets_for(par):
    return (0, 1, 2, 3) if par == 0 else (3, 2, 1, 0)

def first_pairs_of_iter(nb, J, name):
    s = Seg(nb, name); par = J & 1
    X0, X1, A_, B_ = sets_for(par)
    s.qblock("t0", 4 * ((J + 1) & 1), A_, False, 0)
    return [p[2] for p in s.pairs[:3]]

SPLIT = {4: 3, 3: 2}

LAT = 4
def units_of(J, h):
    par = J & 1; kb = 4 * ((J + 1) & 1)
    return [("K", kb), ("K", kb + 1), ("K", kb + 2), ("V", par, 0)] if h == 0 else [("V", par, 1), ("V", par, 2), ("V", par, 3), ("K", kb + 3)]

def iter_blocks(s, J, cz, split=0):
    par = J & 1
    X0, X1, A_, B_ = sets_for(par)
    kb = 4 * ((J + 1) & 1)
    s.qblock("t0", kb + 0, A_, False, 0)
    s.qblock("t1", kb + 1, B_, False, 0)
    if split == 2:
        s.pgen("t2", par, [[(0, 0, 0), (0, 1, 0)], [(0, 2, 0), (0, 3, 0)], [(0, 0, 1), (0, 1, 1)], [(0, 2, 1), (0, 3, 1)]], X0, X1, cz)
    elif split == 1:
        s.pgen("t2", par, [[(0, 0, 0), (0, 1, 0)], [(0, 0, 1), (0, 1, 1)], [(0, 2, 0), (0, 2, 1)], [(0, 3, 0), (0, 3, 1)]], X0, X1, cz)
    else:
        s.pblock("t2", par, 0, X0, X1, cz, 0)
    s.qblock("t3", kb + 2, A_, False, 0)
    s.pblock("t4", par, 1, X0, X1, cz, 0)
    s.pblock("t5", par, 2, X0, X1, cz, 0)
    s.qblock("t6", kb + 3, A_, False, 0)
    s.pblock("t7", par, 3, X0, X1, cz, 0)

def iter_units(s, J, u2, lo3=None):
    nb = s.nb; B = s.blk; n = len(s.mf)
    X0, X1, A_, B_ = sets_for(J & 1)
    p0s = s.first[("P", 1, 0)] - 1
    s.unit(A_, X1, True, range(nb), lambda b: s.done[("t0", b)] + LAT, lambda b: s.first[("P", 1, b)] - 2, B["t3"][0] - 2,
           lo3 if lo3 is not None else B["t0"][1] - 2, p0s - 1, add_lo=p0s, add_hi=B["t3"][0] - 4, after=u2)
    u0 = s.unit(B_, B_, False, range(nb), lambda b: s.done[("t1", b)] + LAT, lambda b: B["t4"][0] + 4, None,
                p0s + 2, B["t4"][0] - 2)
    s.unit(A_, B_, True, range(nb), lambda b: s.done[("t3", b)] + LAT, lambda b: B["t6"][0] - 2, B["t6"][0] - 2,
           B["t4"][0], B["t6"][0] - 4, add_lo=B["t4"][0] + 4, add_hi=B["t6"][0] - 3, after=u0)
    s.unit(A_, A_, False, range(SPLIT[nb]), lambda b: s.done[("t6", b)] + LAT, lambda b: n - 1, None,
           B["t7"][0], n - 3)

def make_mid(nb, J, name, nxt_name, special=False):
    par = J & 1
    X0, X1, A_, B_ = sets_for(par)
    kb = 4 * ((J + 1) & 1)
    s = Seg(nb, name)
    iter_blocks(s, J, False, split=(1 if nb == 3 else 0))
    n = len(s.mf); B = s.blk
    u2 = s.unit(X1, X1, False, list(range(SPLIT[nb], nb)), lambda b: 0, lambda b: B["t0"][1] + 2, None, 0, B["t0"][1] - 4)
    iter_units(s, J, u2)
    npair = len(s.pairs)
    nxt = first_pairs_of_iter(nb, J + 1, nxt_name)
    need2 = units_of(J + 1, 0) + (units_of(J + 1, 1) if special else [])
    s.reads(nxt, barrier_before={16: [vwait(units_of(J, 1), 0), barrier()], npair: [vwait(need2, 0), barrier()]})
    g1 = s.bar_gap[16]; g2 = s.bar_gap[npair]
    npar = (J + 1) & 1
    if opt.spread:
        gg = [dma_V(npar, 1), dma_V(npar, 2), dma_V(npar, 3), dma_K(4 * ((J + 2) & 1) + 3)]
        k0 = 3
        c0 = s.chain(sum(gg[:k0], []), 2, B["t0"][1] + 2, dl=g1 - 1)
        c0 = s.chain(sum(gg[k0:], []), B["t2"][0] + 10, g1 - 2, dl=g1 - 1, first_dep=c0[-1])
        lo1, hi1 = (g1 + 14, g2 - 4) if nb == 4 else (B["t4"][0] + 14, g2 + 2)
    else:
        g0 = dma_V(npar, 1) + dma_V(npar, 2) + dma_V(npar, 3) + dma_K(4 * ((J + 2) & 1) + 3)
        c0 = s.chain(g0, 0, B["t0"][1] + 2, dl=g1 - 1)
        lo1, hi1 = B["t5"][0] + 8, B["t7"][0]
    if special:
        s.chain(dma_Q(s_mR3, s_qn[1], ("R3",)), g1 + 2, B["t6"][1], e=g1 + 1, dl=g2 - 1, first_dep=c0[-1])
    else:
        tq = (lambda: touch(sQ, s_tq, 2048)) if (opt.touch & 1 and J & 1) else (lambda: [])
        tk = (lambda: touch(sK, s_tk, 2048)) if (opt.touch & 2) else (lambda: [])
        tv = (lambda: touch(sV, s_tv, 2048)) if (opt.touch & 2) else (lambda: [])
        xq = [[], []]
        if not J & 1:
            for hi in range(2):
                xq[hi] = [set_m0(s_xm, hi * 4096)] + [dma(voQb if hi else voQa, sQ, s_xq, Rl * 2048, ("X",), opt.qmod) for Rl in range(2)]
            xq[1] += [sop(f"s_add_u32 {s_xm}, {s_xm}, 1024", wr=[s_xm]), sop(f"s_add_u32 {s_xq}, {s_xq}, 256", wr=[s_xq])]
        g1l = dma_K(kb + 0, wrap=(J & 1) == 1) + tq() + xq[0] + dma_K(kb + 1) + tq() + tk() + xq[1] + dma_K(kb + 2) + tq() + tv() + dma_V(par, 0)
        last = s.chain(g1l, lo1, hi1, e=g1 + 1, dl=g2 - 1, first_dep=c0[-1])[-1]
        if J & 1:
            s.chain([sop(f"s_sub_u32 {s_cnt}, {s_cnt}, 1"), sop(f"s_cmp_eq_u32 {s_cnt}, 0")], n - 6, n - 3, first_dep=last)
    return s

def touch(srd, sp, step):
    i = Ins(f"buffer_load_dword {vt0}, {vt1}, {srd}, {sp} offen", "vmem", rd=[vt1, srd, sp], wr=[vt0]); i.vm = True
    return [i, sop(f"s_add_u32 {sp}, {sp}, {step}", rd=[sp], wr=[sp])]

RL = lambda b: SET(0)[b]
WA = lambda k: wa0 if k == 0 else SET(0)[4 + k]
RA = SET(0)[8]
LT = SET(0)[9]
VS1 = SET(0)[10]
HOIST = {4: (4, 3), 3: (2, 0)}
PK = lambda c, k: O(k >> 1, 4 * c + (k & 1))

def butterfly(x, op, mid, out):
    q = []
    def add(i, deps): q.append((i, deps)); return len(q) - 1
    a = add(perm("v_permlane16_swap_b32", x[0], x[1]), [])
    b = add(perm("v_permlane16_swap_b32", x[2], x[3]), [])
    a = add(valu(op, x[0], x[0], x[1]), [a])
    b = add(valu(op, x[2], x[2], x[3]), [b])
    c = add(perm("v_permlane32_swap_b32", x[0], x[2]), [a, b])
    for i in mid(out[0], x[0], x[2]): c = add(i, [c])
    c = add(valu("v_mov_b32", out[2], out[0]), [c])
    c = add(perm("v_permlane32_swap_b32", out[0], out[2]), [c])
    a = add(valu("v_mov_b32", out[1], out[0]), [c])
    b = add(valu("v_mov_b32", out[3], out[2]), [c])
    a = add(perm("v_permlane16_swap_b32", out[0], out[1]), [a])
    b = add(perm("v_permlane16_swap_b32", out[2], out[3]), [b])
    return q

def nodes_of(q, first_deps, e, dl, ideal, step):
    nds = []
    for k, (i, deps) in enumerate(q):
        isp = i.op.startswith("v_permlane")
        d = [(nds[j], 2 if isp else (1 if nds[j].ins.kind == "trans" else 0)) for j in deps] if deps else [(x, 2 if isp else 0) for x in first_deps]
        nds.append(Node(i, e=e, dl=dl, deps=d, ideal=ideal + step * k))
    return nds

def make_last(nb, name):
    J = 7; par = 1
    X0, X1, A_, B_ = sets_for(par)
    s = Seg(nb, name)
    s.qblock("t0", 0, A_, False, 0)
    s.pgen("t2", par, [[(c, d, 0), (c, d + 1, 0)] for c in (0, 1) for d in (0, 2)], X0, X1, False)
    s.pgen("t4", par, [[(c, d, 1), (c, d + 1, 1)] for c in (0, 1) for d in (0, 2)], X0, X1, False)
    s.pblock("t5", par, 2, X0, X1, False, 0)
    s.pblock("t7", par, 3, X0, X1, False, 0)
    n = len(s.mf); B = s.blk
    u2 = s.unit(X1, X1, False, list(range(SPLIT[nb], nb)), lambda b: 0, lambda b: B["t0"][1] + 2, None, 0, B["t0"][1] - 4)
    k1 = B["t4"][0]
    u3 = s.unit(A_, X1, True, range(nb), lambda b: s.done[("t0", b)] + LAT, lambda b: s.first[("P", 1, b)] - 2, B["t5"][0] + 6,
                B["t0"][1] - 2, k1 - 1, add_lo=k1, add_hi=B["t5"][0], after=u2)
    npair = len(s.pairs)
    kR = 12
    s.reads([[]], barrier_before={kR + 2: [waitcnt(None, 0), barrier()], npair: [waitcnt(None, 0), barrier()]})
    gR = s.bar_gap[kR + 2]; g2 = s.bar_gap[npair]
    c2 = s.chain(dma_Q(s_mR2, s_qn[2], ("R2",)), 0, B["t0"][1] - 2)
    def qchain(b, base, unit, tmp, lo, hi, pre, dl=None, first_dep=None):
        ins = pre + q_reads(b, base, unit, tmp)
        nds = s.chain(ins, lo, hi, dl=dl, first_dep=first_dep)
        for k, nd in enumerate(nds[len(pre) + 1:]):
            nd.e = max(nd.e, s.pairs[k // 2][1] + 1)
        return nds
    t0e = B["t0"][1]
    r0 = qchain(0, s_mX, ("X",), vt0, t0e - 10, t0e + 10, [vwait([("X",)])], dl=gR - 5)
    r1 = qchain(1, s_mR3, ("R3",), vt1, t0e + 10, gR - 8, [vwait([("R3",)])], dl=gR - 5, first_dep=r0[-1])
    c3 = s.chain([mark_wait_lds(("q", 0, 7))] + dma_Q(s_mX, s_qn[3], ("X",)), t0e + 16, gR + 4)
    c3[0].deps = [(r0[-1], 5), (c2[-1], 1)]
    refill = [sop(f"s_sub_u32 {s_vptr}, {s_knext}, 32768", wr=[s_vptr])] + dma_K(4) + dma_K(5) + dma_K(6) + dma_V(0, 0)
    c4 = s.chain(refill, gR + 4, g2 - 2, e=gR + 1, first_dep=c3[-1])
    r2 = s.chain([vwait([("R2",)])] + q_reads(2, s_mR2, ("R2",), vt0), g2 - 16, g2 - 6, dl=g2 - 4, first_dep=r1[-1])
    nca = opt.ca7
    grp = [dma_V(0, 1), dma_V(0, 2), dma_V(0, 3), dma_K(7)]
    c5 = s.chain(sum(grp[:nca], []), g2 + 1, n - 2, e=g2 + 1, first_dep=c4[-1]) if nca else c4
    ok = [sop(f"s_add_u32 {s_ok[k]}, {s_ocur}, {k * 4096}", wr=[s_ok[k]]) if (k < 2 * nb and not opt.nostore) else sop(f"s_mov_b32 {s_ok[k]}, {OOB:#x}", wr=[s_ok[k]]) for k in range(8)]
    k0 = s.chain(ok, 4, t0e + 8)
    k1 = s.chain(pass_begin(), gR + 6, n - 4, first_dep=k0[-1])
    k1[0].deps += [(c3[-1], 1), (c4[0], 1)]
    q = butterfly([lsum(b) for b in range(4)], "v_add_f32", lambda d, x, y: [valu("v_add_f32", LT, x, y), valu("v_rcp_f32", d, LT)], [RL(b) for b in range(4)])
    red = nodes_of(q, [x for b in range(nb) for x in u3[b][2:]], 0, 10**9, B["t5"][0] + 2, 1.5)
    rl_done = red[-2:]
    ad = [valu("v_xor_b32", WA(k), 16 * k, wa0) for k in (1, 2, 3)] + [valu("v_xor_b32", VS1, 64, vsto)]
    ad += [valu("v_mbcnt_lo_u32_b32", RA, -1, 0), valu("v_mbcnt_hi_u32_b32", RA, -1, RA), valu("v_lshl_add_u32", RA, RA, 3, s_mOS)]
    prev = None
    for k, i in enumerate(ad):
        nd = Node(i, deps=[(prev, 0)] if prev else [], ideal=B["t0"][1] - 12 + k); red.append(nd); prev = nd
    s.nodes += red
    t7s = B["t7"][0]
    order, acct = epi_order(nb)
    na, nc = HOIST[nb]
    for k in range(na * 4):
        t_ = acct[k // 4]; i = k % 4
        s.nodes.append(Node(acc_read(TMP(k // 4)[i], O(t_[2], 4 * t_[0] + t_[1])[i]), e=t7s + LAT + 1, ideal=g2 + 1 + k * 0.6,
                            deps=[(x, 0) for b in range(nb) for x in u3[b]]))
    for k in range(nc):
        c, dbl, b = order[k]; o = O(b, 4 * c + dbl)
        ms = [Node(valu("v_mul_f32", o[i], o[i], RL(b)), e=B["t5"][0] + LAT, ideal=g2 + 1 + na * 2.4 + 3 * k + 0.5 * i, deps=[(x, 0) for x in rl_done]) for i in range(4)]
        c0 = Node(valu("v_cvt_pk_bf16_f32", o[0], o[0], o[1]), ideal=g2 + 3 + na * 2.4 + 3 * k, deps=[(ms[0], 0), (ms[1], 0)])
        c1 = Node(valu("v_cvt_pk_bf16_f32", o[1], o[2], o[3]), ideal=g2 + 3.5 + na * 2.4 + 3 * k, deps=[(ms[2], 0), (ms[3], 0), (c0, 0)])
        s.nodes += ms + [c0, c1]
    return s

TMP = lambda k: V(48 + 4 * (k % 12), 4)
def epi_order(nb):
    order = [(c, dbl, b) for c in range(4) for dbl in range(4) for b in range(nb)]
    return order, [t_ for t_ in order if O(t_[2], 4 * t_[0] + t_[1]).k == 'a']

def mark_wait_lds(tag):
    i = raw("s_nop 0", "nop"); i.need = [tag]; i.is_marker = True
    return i

def make_head(nb, name, nxt_name):
    X0, X1, A_, B_ = sets_for(1)
    s = Seg(nb, name)
    s.qblock("h0", 1, B_, True, 0)
    s.qblock("h1", 2, X0, True, 0)
    s.qblock("h2", 3, A_, False, 0)
    iter_blocks(s, 0, True, split=2)
    n = len(s.mf); B = s.blk
    tmp = SET(X1)
    pre = {}; nmc = {}
    part = []; emax = 0
    dlm = B["h2"][0] - 2
    for b in range(4):
        if b < nb:
            x = Sx(B_, b); e = s.done[("h0", b)] + LAT; emax = max(emax, e)
            n0 = Node(valu("v_max3_f32", tmp[b], x[0], x[1], x[2]), e=e, dl=dlm, ideal=e)
            n1 = Node(valu("v_max_f32", tmp[b], tmp[b], x[3]), e=e, dl=dlm, ideal=e + 0.5, deps=[(n0, 0)])
            s.nodes += [n0, n1]; part.append(n1)
        z = Node(valu("v_mov_b32", lsum(b), 0), e=0, dl=B["h0"][1], ideal=2 + b)
        s.nodes.append(z); pre[b] = [z]
    q = butterfly([tmp[b] for b in range(4)], "v_max_f32", lambda d, x, y: [valu("v_min_f32", d, Neg(x), Neg(y))], [Ct(b)[0] for b in range(4)])
    bf = nodes_of(q, part, 0, dlm, emax, 0.5)
    s.nodes += bf
    for b in range(nb):
        nmc[b] = tmp[8 + b]
        src = bf[-2] if b < 2 else bf[-1]
        n0 = Node(valu("v_mul_f32", nmc[b], s_c, Ct(b)[0]), dl=dlm, ideal=emax + 8 + b * 0.3, deps=[(src, 0)])
        s.nodes += [n0] + [Node(valu("v_mov_b32", Ct(b)[i], Ct(b)[0]), dl=dlm + 2 * b, ideal=emax + 12 + 2 * b + i * 0.5, deps=[(src, 0)]) for i in (1, 2, 3)]
        pre[b].append(n0)
    t0s = B["t0"][0]; t1s = B["t1"][0]
    u0 = s.unit(B_, B_, False, range(nb), lambda b: s.done[("h0", b)] + LAT, lambda b: t1s - 4, None, B["h1"][0] + 10, B["h2"][0] + 14, pre=pre, fma=nmc)
    u1 = s.unit(X0, B_, True, range(nb), lambda b: s.done[("h1", b)] + LAT, lambda b: t1s - 2, t1s - 2, B["h2"][0] + 14, t0s + 16, pre=pre, after=u0, fma=nmc)
    for nd in s.nodes:
        if nd.ins.text.startswith("v_fma_f32"): nd.dl = min(nd.dl, t0s - 2); nd.ideal = min(nd.ideal, t0s - 6)
    u2 = s.unit(A_, A_, False, range(nb), lambda b: s.done[("h2", b)] + LAT, lambda b: s.first[("P", 1, b)] - 4, None, t0s + 16, t1s + 14)
    iter_units(s, 0, u2, lo3=t1s + 14)
    prev = None
    for k, i in enumerate([valu("v_mbcnt_lo_u32_b32", vt1, -1, 0), valu("v_mbcnt_hi_u32_b32", vt1, -1, vt1), valu("v_lshlrev_b32", vt1, 5, vt1)]):
        nd = Node(i, deps=[(prev, 0)] if prev else [], ideal=8 + k); s.nodes.append(nd); prev = nd
    npair = len(s.pairs)
    nxt = first_pairs_of_iter(nb, 1, nxt_name)
    def tb(k, l):
        if opt.diag != 3: return l
        return [raw(f"s_memtime s[{90+4*k}:{91+4*k}]")] + l + [raw(f"s_memtime s[{92+4*k}:{93+4*k}]")]
    s.reads(nxt, barrier_before={12: tb(0, [vwait(units_of(0, 0), 0), barrier()]), 28: tb(1, [vwait(units_of(0, 1), 0), barrier()]),
                                 npair: tb(2, [vwait(units_of(1, 0), 0), barrier()])})
    g0 = s.bar_gap[12]; g1 = s.bar_gap[28]; g2 = s.bar_gap[npair]
    grp = [dma_V(0, 1), dma_V(0, 2), dma_V(0, 3), dma_K(7)][opt.ca7:] + [dma_K(0), dma_V(1, 0), dma_V(1, 1), dma_V(1, 2), dma_V(1, 3)]
    ca = s.chain(sum(grp[:4], []), 0, B["h0"][1] + 2, dl=g1 - 30)
    rest = grp[4:]
    nearly = max(0, len(rest) - 3 + min(3, opt.ca7)) if False else max(0, 6 - opt.ca7 - 4)
    cb = s.chain(sum(rest[:nearly], []) + dma_K(1) + dma_K(2), B["t1"][0], B["t4"][0], e=g0 + 1, first_dep=ca[-1])
    cc = s.chain(sum(rest[nearly:], []) + dma_K(3), B["t4"][0] + 8, B["t6"][0] + 4, first_dep=cb[-1])
    cd = s.chain(dma_K(4) + dma_K(5) + dma_K(6) + dma_V(0, 0), B["t6"][0] + 6, n - 4, e=g1 + 1, first_dep=cc[-1])
    prev = None
    nd_ = opt.defer
    sts = [(c, k) for c in range(4 - nd_, 4) for k in range(8)]
    lo, hi = 6, min(6 + 5 * len(sts), s.first[("O", 3)] - 4)
    for j, (c, k) in enumerate(sts):
        nd = Node(store(c, k), dl=s.first[("O", c)] - 3, ideal=lo + (hi - lo) * j / len(sts), deps=[(prev, 2)] if prev else [])
        s.nodes.append(nd); prev = nd
    head = [i for p in s.pairs[:3] for i in p[2]]
    return s, head

def perm(op, a, b):
    i = valu(op, a, b, extra_rd=[a], extra_wr=[b]); i.cost = 8
    return i

def acc_read(d, a):
    i = Ins(f"v_accvgpr_read_b32 {d}, {a}", "acc", rd=[a], wr=[d]); return i

def make_epi(nb):
    r = []
    c_ = valu("v_cmp_ngt_f32", "vcc", hex(L_LIMIT), LT); c_.wr.add(('s', 'vcc')); r.append(c_)
    flagl = [raw(f"s_cbranch_vccz L_noflag{nb}"), sop(f"s_bitset1_b32 {s_flags}, {s_pass}"), label(f"L_noflag{nb}")]
    order, acct = epi_order(nb)
    slot = {t_: k for k, t_ in enumerate(acct)}
    accq = [(t_, i) for t_ in acct for i in range(4)]
    nacc = 4 * HOIST[nb][0]; done_acc = 0
    rdq = []; stq = []; oth = []; wq = []
    held = None
    for j, (c, dbl, b) in enumerate(order):
        o = O(b, 4 * c + dbl)
        want = min(len(acct) * 4, -(-(j + 1) * len(acct) * 4 // (len(order) - 4)))
        while nacc < len(acct) * 4 and (nacc < want or (o.k == 'a' and nacc < 4 * (slot[(c, dbl, b)] + 1))):
            if nacc // 4 >= done_acc + 12:
                assert not (o.k == 'a' and nacc < 4 * (slot[(c, dbl, b)] + 1)), "out of temps"
                break
            t_, i = accq[nacc]; nacc += 1
            r.append(acc_read(TMP(slot[t_])[i], O(t_[2], 4 * t_[0] + t_[1])[i]))
        t4 = TMP(slot[(c, dbl, b)]) if o.k == 'a' else o
        rlp = V(RL(b).n & ~1, 2); sel = RL(b).n & 1
        if j >= HOIST[nb][1]:
            for h in range(2):
                r.append(valu("v_pk_mul_f32", t4.sub(2 * h, 2), t4.sub(2 * h, 2), rlp, mods=f"op_sel:[0,{sel}] op_sel_hi:[1,{sel}]"))
            r += [valu("v_cvt_pk_bf16_f32", t4[0], t4[0], t4[1]), valu("v_cvt_pk_bf16_f32", t4[1], t4[2], t4[3])]
        if b % 2 == 0 and b + 1 < nb:
            held = (t4, o.k == 'a')
        else:
            na = int(o.k == 'a')
            if held is not None:
                w = Ins(f"ds_write2st64_b64 {WA(dbl)}, {held[0].sub(0, 2)}, {t4.sub(0, 2)} offset0:{(b - 1) * 2} offset1:{b * 2}", "ds",
                        rd=[WA(dbl), held[0].sub(0, 2), t4.sub(0, 2)], tag=("w", j))
                na += held[1]; held = None
            else:
                w = ds_write("ds_write_b64", WA(dbl), t4.sub(0, 2), b * 1024, tag=("w", j))
            w.lds_pw = ("OS",); wq.append((w, na))
        if j == 4: r += flagl
        last = (dbl == 3 and b == nb - 1)
        for _ in range(opt.epi_rd):
            if rdq: r.append(rdq.pop(0))
        if not rdq or last:
            r += rdq; rdq = []
            k_ = 0
            while wq and (k_ < 1 or last):
                w, na = wq.pop(0); r.append(w); done_acc += na; k_ += 1
        if stq and j % 2 == 1 and stq[0][0] <= j: r.append(stq.pop(0)[1])
        elif oth and j % 2 == 0:
            r.append(oth.pop(0))
            while oth and oth[0].kind == "ds" and r[-1].kind != "ds": r.append(oth.pop(0))
        if last:
            for k in range(2 * nb):
                i = Ins(f"ds_read2st64_b64 {PK(c, k)}, {RA} offset0:{k} offset1:{8 + k}", "ds", rd=[RA], wr=[PK(c, k)], tag=("o", c, k))
                i.lds_rd = ("OS",); i.private = True
                rdq.append(i)
            if c < 3:
                for k in range(2 * nb):
                    st = store(c, k, nb); st.need = [("o", c, k if k < 3 else 2 * nb - 1)]; stq.append((j + 3 + k // opt.epi_rd, st))
            if c == 0: oth += [vwait([("X",)])] + q_reads(3, s_mX, ("X",), vt0)
            if c == 1: oth += head_reads()
    r += rdq + oth + [x[1] for x in stq]
    if opt.defer == 0:
        for k in range(2 * nb):
            st = store(3, k, nb); st.need = [("o", 3, k)]; r.append(st)
    return r

def head_reads():
    s = Seg(4, "hd"); s.qblock("h0", 1, 0, True, 0)
    return [i for p in s.pairs[:3] for i in p[2]]

def store(c, k, nb=None):
    data = PK(c, k)
    mod = {3: opt.omod3, 4: opt.omod4}.get(nb) or opt.omod
    assert opt.defer == 0
    vo = VS1 if k & 1 else vsto
    i = Ins(f"buffer_store_dwordx4 {data}, {vo}, {sO}, {s_ok[k]} offen offset:{c * 128} {mod}".rstrip(), "vmem", rd=[data, vo, sO, s_ok[k]])
    i.wide_store = True; i.data = data.set(); i.vm = True
    return i

def lin(seq, pre=()):
    out = []; q = list(pre)
    for i in seq:
        if i.need:
            idx = -1
            for t in i.need:
                if t in q: idx = max(idx, len(q) - 1 - q[::-1].index(t))
            if idx >= 0:
                n = min(len(q) - 1 - idx, 15)
                out.append(waitcnt(None, n)); q = q[idx + 1:]
        if getattr(i, "lgw", None) is not None: q = q[len(q) - i.lgw:] if i.lgw else []
        if getattr(i, "is_marker", False): continue
        if i.kind == "ds": q.append(i.tag)
        out.append(i)
    return out, q

def flat(gaps, pre, nxt_need):
    out = []; q = list(pre)
    def wf(need):
        nonlocal q
        idx = -1
        for t in need:
            if t in q: idx = max(idx, len(q) - 1 - q[::-1].index(t))
        if idx < 0: return
        n = min(len(q) - 1 - idx, 15)
        out.append(waitcnt(None, n)); q = q[idx + 1:]
    for g, (m, sc, oth) in enumerate(gaps):
        wf(m.need)
        out.append(m)
        has_l0 = any(getattr(i, "lgw", None) == 0 for i in sc)
        if not has_l0:
            wf(gaps[g + 1][0].need if g + 1 < len(gaps) else nxt_need)
        for i in sc + oth:
            if i.need: wf(i.need)
            if getattr(i, "lgw", None) == 0: q = []
            if getattr(i, "is_marker", False): continue
            if i.kind == "ds": q.append(i.tag)
            out.append(i)
    return out, q

def label(n): return Ins(n + ":", "label", states=0, cost=0)

def stamp(k):
    if not opt.diag: return []
    return [raw(f"s_memrealtime {s_ts}"), raw("s_memtime s[66:67]"), raw("s_waitcnt lgkmcnt(0)", "wait0"), raw(f"s_mov_b32 m0, {s_tsp}"), raw("s_nop 1"),
            raw(f"v_writelane_b32 v0, {s_ts.sub(0)}, m0"), raw(f"s_add_u32 m0, m0, 32"), raw("s_nop 1"), raw("v_writelane_b32 v0, s66, m0"),
            raw(f"s_add_u32 {s_tsp}, {s_tsp}, 1")]

def retag(q, old, new):
    return [tuple(new if x == old else x for x in t) if len(t) > 1 else t for t in q]

def variant(nb):
    P = {}
    hd, head = make_head(nb, "hd", "i1")
    i1 = make_mid(nb, 1, "i1", "i2")
    i2 = make_mid(nb, 2, "i2", "i1")
    i6 = make_mid(nb, 6, "i2", "i1", special=True)
    i7 = make_last(nb, "i1")
    SG = dict(hd=hd, i1=i1, i2=i2, i6=i6, i7=i7)
    G = {k: s.build() for k, s in SG.items()}
    print(f"nb={nb} overflow cycles:", {k: s.over for k, s in SG.items()}, file=sys.stderr)
    P["hd"], q0 = flat(G["hd"], [], G["i1"][0][0].need)
    P["i1"], q1 = flat(G["i1"], q0, G["i2"][0][0].need)
    P["i2"], q2 = flat(G["i2"], q1, G["i1"][0][0].need)
    assert q2 == q0, (q0, q2)
    for k in ("i1", "i2"):
        if opt.abl & 16: P[k] = [i for i in P[k] if not getattr(i, "bar", False)]
        if opt.abl & 32: P[k] = [i for i in P[k] if i.kind != "vmem"]
        if opt.abl & 64: P[k] = [i for i in P[k] if i.kind not in ("valu", "trans")]
        if opt.abl & 128: P[k] = [i for i in P[k] if i.kind != "ds"]
        if opt.abl & 256: P[k] = [i for i in P[k] if not (i.kind == "salu" and "m0" in i.text)]
    P["i6"], q = flat(G["i6"], q1, G["i7"][0][0].need)
    P["i7"], q = flat(G["i7"], q, [])
    ep = make_epi(nb)
    if opt.abl & 1: ep = [i for i in ep if not i.text.startswith("buffer_store")]
    if opt.abl & 2: ep = [i for i in ep if getattr(i, "lds_rd", None) != ("OS",)]
    if opt.abl & 4: ep = [i for i in ep if not i.text.startswith("ds_write")]
    if opt.abl & 8: ep = [i for i in ep if i.kind != "acc"]
    P["epi"], q = lin(ep, q)
    return P

def resolve_vm(traces):
    ws = set()
    for tr in traces:
        n = 0; last = {}
        for i in tr:
            if getattr(i, "vmneed", None) is not None:
                idx = max([last.get(u, -1) for u in i.vmneed])
                if idx >= 0: i.vmauto = min(i.vmauto, n - 1 - idx)
                ws.add(i)
            if getattr(i, "vm", False):
                u = getattr(i, "dma_wr", None)
                if u: last[u] = n
                n += 1
    for i in ws:
        i.vmw = i.vmauto
        i.text = f"s_waitcnt vmcnt({i.vmw})" + (f" lgkmcnt({i.lgw})" if i.lgw is not None else "")

def check_trace(trace):
    vm = []
    lg = []
    state = {}
    epoch = 0
    ALIAS = {("R2",): [("V", 0, 1), ("V", 0, 2), ("V", 0, 3), ("K", 7)], ("OS",): [("V", 1, c) for c in range(4)],
             ("R3",): [("K", 4), ("K", 5), ("K", 6), ("V", 0, 0)]}
    def phys(u): return ALIAS.get(u, [u])
    wr_land = {}; wr_pend = {}; rd_done = {}; rd_pend = {}; owner = {}
    errs = []
    for k, i in enumerate(trace):
        if getattr(i, "vmw", None) is not None:
            while len(vm) > i.vmw:
                o = vm.pop(0)
                u = getattr(o, "dma_wr", None)
                if u: wr_pend[u] -= 1; wr_land[u] = epoch
        if getattr(i, "lgw", None) is not None or i.kind == "wait0":
            n = 0 if i.kind == "wait0" else i.lgw
            while len(lg) > n:
                o = lg.pop(0)
                u = getattr(o, "lds_rd", None) or getattr(o, "lds_pw", None)
                if u: rd_pend[u] -= 1; rd_done[u] = epoch
        if getattr(i, "bar", False): epoch += 1
        u = getattr(i, "lds_rd", None)
        if u:
            if True:
                if wr_pend.get(u, 0) > 0: errs.append((k, "read of unit with pending DMA", u, i.text))
                elif not getattr(i, "private", False) and wr_land.get(u, 10**9) >= epoch: errs.append((k, "read without barrier after landing", u, i.text))
            for p in phys(u):
                if owner.get(p) != u: errs.append((k, "read of unit owned by", owner.get(p), u, i.text))
        w = getattr(i, "dma_wr", None) or getattr(i, "lds_pw", None)
        if w:
            for p in phys(w):
                o = owner.get(p)
                if o is not None:
                    priv = (o == w and w in (("X",), ("R2",), ("R3",), ("OS",)))
                    if rd_pend.get(o, 0) > 0 and not (getattr(i, "lds_pw", None) and o == w):
                        errs.append((k, "write over unit with reads in flight", o, w, i.text))
                    if not priv and rd_done.get(o, -1) >= epoch: errs.append((k, "write without barrier after reads", o, w, i.text))
                    if o != w and wr_pend.get(o, 0) > 0: errs.append((k, "write over pending dma", o, w))
                    if o != w and wr_land.get(o, -1) >= epoch: errs.append((k, "write over unit landed w/o barrier", o, w))
                owner[p] = w
        if i.kind == "ds":
            lg.append(i)
            u = getattr(i, "lds_rd", None) or getattr(i, "lds_pw", None)
            if u: rd_pend[u] = rd_pend.get(u, 0) + 1
        if getattr(i, "vm", False):
            vm.append(i)
            u = getattr(i, "dma_wr", None)
            if u: wr_pend[u] = wr_pend.get(u, 0) + 1
            assert len(vm) <= 63, "vmcnt overflow"
    return errs

def cross_check(traces):
    ALIAS = {("R2",): [("V", 0, 1), ("V", 0, 2), ("V", 0, 3), ("K", 7)], ("OS",): [("V", 1, c) for c in range(4)],
             ("R3",): [("K", 4), ("K", 5), ("K", 6), ("V", 0, 0)]}
    allg = []
    for tr in traces:
        gens = {}; epoch = 0; vm = []; lg = []
        for i in tr:
            if getattr(i, "vmw", None) is not None:
                while len(vm) > i.vmw:
                    for g in vm.pop(0): g["land"] = epoch
            if getattr(i, "lgw", None) is not None or i.kind == "wait0":
                n = 0 if i.kind == "wait0" else i.lgw
                while len(lg) > n:
                    for g in lg.pop(0): g["done"] = epoch
            if getattr(i, "bar", False): epoch += 1
            w = getattr(i, "dma_wr", None) or getattr(i, "lds_pw", None); r = getattr(i, "lds_rd", None)
            touched = []
            u = w or r
            if u and u != ("X",):
                for p in ALIAS.get(u, [u]):
                    l = gens.setdefault(p, [])
                    if w and (not l or l[-1]["own"] != u or (l[-1]["rd0"] is not None and u not in ALIAS)):
                        l.append(dict(own=u, wr0=epoch, land=10**9, rd0=None, done=-1))
                    g = l[-1]
                    if r and g["rd0"] is None: g["rd0"] = epoch
                    if r or getattr(i, "lds_pw", None): g["done"] = 10**9
                    if getattr(i, "dma_wr", None): g["land"] = 10**9
                    touched.append(g)
            if i.kind == "ds": lg.append(touched)
            if getattr(i, "vm", False): vm.append(touched)
        allg.append((gens, epoch))
    assert len(set(e for _, e in allg)) == 1, "barrier counts differ"
    for p in allg[0][0]:
        n = len(allg[0][0][p])
        assert all(len(g[p]) == n and [x["own"] for x in g[p]] == [x["own"] for x in allg[0][0][p]] for g, _ in allg), ("generations differ", p)
        for k in range(n):
            G = [g[p][k] for g, _ in allg]
            if G[0]["own"] not in ALIAS and G[0]["rd0"] is not None:
                assert max(x["land"] for x in G) < min(x["rd0"] for x in G), ("cross RAW", p, k, G)
            if k + 1 < n:
                N = [g[p][k + 1] for g, _ in allg]
                assert max(x["done"] for x in G) < min(x["wr0"] for x in N), ("cross WAR", p, k, G, N)
                if G[0]["own"] != N[0]["own"] and any(x["land"] != 10**9 or x["rd0"] is not None for x in G) and G[0]["own"] != ("OS",):
                    assert max(x["land"] for x in G) < min(x["wr0"] for x in N), ("cross WAW", p, k, G, N)

THR = {}
HELP = {}
RANK = {}
HELPN = {}
def schedule_table(mode):
    tab = {}
    if mode == "simple":
        for wg in range(256):
            x = wg & 7; idx = wg >> 3
            head = x * 16 + (idx >> 1); base = 41 * (idx & 1)
            tab[wg] = [(head, base, 12), (head, base + 12, 16), (head, base + 28, 13)]
    elif mode == "share":
        for x in range(8):
            rounds = [[], [], []]
            def add(r, h, start, sizes):
                for sz in sizes:
                    rounds[r].append((x * 16 + h, start, sz)); start += sz
                return start
            for h in range(10):
                st = add(0, h, 0, [12, 12, 12]); add(1 if h < 6 else 2, h, st, [15, 15, 16])
            st = add(0, 10, 0, [12, 12]); st = add(1, 10, st, [15, 14]); add(2, 10, st, [15, 14])
            for h in range(11, 16):
                add(1 if h < 13 else 2, h, 0, [14, 14, 14, 14, 13, 13])
            assert all(len(r) == 32 for r in rounds), [len(r) for r in rounds]
            for idx in range(32):
                tab[idx * 8 + x] = [rounds[0][idx], rounds[1][idx], rounds[2][idx]]
    elif mode.startswith("g6"):
        orders = {"A": (0, 1, 2), "B": (1, 0, 2), "C": (2, 1, 0), "D": (2, 0, 1)}
        pat = mode.split("_")[1]
        rot = pat.startswith("x"); pat = pat.lstrip("x")
        for x in range(8):
            for g in range(6):
                o = orders[pat[(g + (x if rot else 0)) % len(pat)]] if not pat.startswith("X") else orders["ABC"[x % 3]]
                if g < 5:
                    ha, hb, hc = [x * 16 + 3 * g + i for i in range(3)]
                    r0 = [(ha, 0, 12), (ha, 12, 12), (ha, 24, 12), (hb, 0, 12), (hb, 12, 12), (hb, 24, 12)]
                    r1 = [(ha, 36, 15), (ha, 51, 15), (ha, 66, 16), (hb, 36, 15), (hb, 51, 15), (hb, 66, 16)]
                    r2 = [(hc, 0, 14), (hc, 14, 14), (hc, 28, 13), (hc, 41, 14), (hc, 55, 14), (hc, 69, 13)]
                    n = 6
                else:
                    h = x * 16 + 15
                    r0 = [(h, 0, 12), (h, 12, 12)]; r1 = [(h, 24, 15), (h, 39, 15)]; r2 = [(h, 54, 14), (h, 68, 14)]
                    n = 2
                R = [r0, r1, r2]
                for i in range(n):
                    tab[(6 * g + i) * 8 + x] = [R[o[0]][i], R[o[1]][i], R[o[2]][i]]
    elif mode.startswith("t3"):
        _, lo, so, th = mode.split("_")
        th = [int(x, 16) for x in th.split(".")]
        alt = mode.startswith("t3a")
        if alt:
            LS = [i for i in range(32) if not i & 4]; SS = [i for i in range(32) if i & 4]
        else:
            LS = [6 * g + i for g in range(5) for i in range(3)] + [30]; SS = [6 * g + 3 + i for g in range(5) for i in range(3)] + [31]
        for x in range(8):
            H = [x * 16 + i for i in range(16)]
            T3 = lambda h: [(h, 0, 12), (h, 12, 12), (h, 24, 12)]
            T4 = lambda h: [(h, 36, 16), (h, 52, 16), (h, 68, 14)]
            for g in range(5):
                a, b, c = H[3 * g], H[3 * g + 1], H[3 * g + 2]
                Lt = {"3": T3(a), "4": T4(a), "5": T4(b)[::-1]}
                St = {"3": T3(c), "2": T3(b), "4": T4(c)}
                lord = lo.split(".")[(g + x) % len(lo.split("."))]; sord = so.split(".")[(g + x) % len(so.split("."))]
                for i in range(3):
                    wl = LS[3 * g + i] * 8 + x; wsn = SS[3 * g + i] * 8 + x
                    tab[wl] = [Lt[k][i] for k in lord]
                    tab[wsn] = [St[k][i] for k in sord]
                    THR[wsn] = th[(g + x) % len(th)]
                    RANK[wl] = i; RANK[wsn] = i
                    h0, st0, _n = Lt[lord[0]][i]
                    HELP[wsn] = (h0 * SQ + st0 * 16) * 512
            h = H[15]
            tab[LS[15] * 8 + x] = [(h, 0, 12), (h, 36, 16), (h, 68, 14)]
            if alt:
                tab[SS[15] * 8 + x] = [(h, 52, 16), (h, 12, 12), (h, 24, 12)]
                THR[SS[15] * 8 + x] = th[0]; HELP[SS[15] * 8 + x] = h * SQ * 512
            else:
                tab[SS[15] * 8 + x] = [(h, 12, 12), (h, 52, 16), (h, 24, 12)]
    elif mode.startswith("t6"):
        _, lo, th = mode.split("_")
        th = [int(x, 16) for x in th.split(".")]
        LS = [i for i in range(32) if not i & 4]; SS = [i for i in range(32) if i & 4]
        for x in range(8):
            T3 = lambda h: [(h, 0, 12), (h, 12, 12), (h, 24, 12)]
            T4 = lambda h, r: [[(h, 36, 16), (h, 52, 16), (h, 68, 14)][(i + r) % 3] for i in range(3)]
            for g in range(5):
                pat = lo.split(".")[(g + x) % len(lo.split("."))]
                for i in range(3):
                    wl = LS[3 * g + i] * 8 + x; wsn = SS[3 * g + i] * 8 + x
                    tab[wl] = []; tab[wsn] = []
                    for r in range(3):
                        h = x * 16 + 3 * g + r
                        a, b = T3(h)[i], T4(h, r)[i]
                        tab[wl].append(a if pat[r] == "3" else b); tab[wsn].append(b if pat[r] == "3" else a)
                    THR[wsn] = th[(g + x) % len(th)]; RANK[wl] = i; RANK[wsn] = i
                    HELP[wsn] = (tab[wl][0][0] * SQ + tab[wl][0][1] * 16) * 512; HELPN[wsn] = tab[wl][0][2]
            h = x * 16 + 15; pat = lo.split(".")[0]
            i3 = [(h, 0, 12), (h, 12, 12), (h, 24, 12)]; i4 = [(h, 36, 16), (h, 52, 16), (h, 68, 14)]
            wl = LS[15] * 8 + x; wsn = SS[15] * 8 + x
            tab[wl] = [(i3 if pat[r] == "3" else i4)[r] for r in range(3)]
            tab[wsn] = [(i4 if pat[r] == "3" else i3)[r] for r in range(3)]
            THR[wsn] = th[0]; HELP[wsn] = (h * SQ + tab[wl][0][1] * 16) * 512; HELPN[wsn] = tab[wl][0][2]
    cov = {}
    for wg, l in tab.items():
        for h, st, n in l:
            assert 12 <= n <= 16
            for b in range(st, st + n):
                assert (h, b) not in cov; cov[(h, b)] = wg
    assert len(cov) == 128 * 82
    return tab

def setup_code():
    L = []; A = L.append
    if opt.diag or opt.padto: A("s_memrealtime s[98:99]")
    A("s_cmp_ge_u32 s2, 256")
    A("s_cbranch_scc1 L_exit")
    A("s_load_dwordx4 s[72:75], s[0:1], 0")
    A("s_load_dwordx4 s[76:79], s[0:1], 16")
    if opt.diag: A("s_load_dwordx2 s[64:65], s[0:1], 40")
    A("s_getpc_b64 s[4:5]")
    A("L_pc:")
    if opt.warm:
        A("s_mov_b32 s6, L_warm_end-L_pc\ns_mov_b32 s7, 0x20000\nv_lshlrev_b32 v16, 7, v0")
        for k in range(opt.warm): A(f"s_mov_b32 s3, {k * 32768}\nbuffer_load_dword v{17 + k}, v16, s[4:7], s3 offen")
    A("s_lshl_b32 s3, s2, 6")
    A("s_add_u32 s3, s3, L_table-L_pc")
    A("s_add_u32 s46, s4, s3")
    A("s_addc_u32 s47, s5, 0")
    A("s_load_dwordx16 s[80:95], s[46:47], 0")
    A(f"v_readfirstlane_b32 {s_wave}, v0")
    A("v_and_b32 v10, 63, v0")
    A(f"s_lshr_b32 {s_wave}, {s_wave}, 6")
    A("v_and_b32 v11, 15, v10")
    A("v_lshrrev_b32 v14, 4, v10")
    A("v_lshrrev_b32 v15, 2, v11\nv_lshlrev_b32 v1, 11, v15\nv_and_b32 v6, 3, v11\nv_lshl_add_u32 v1, v6, 6, v1")
    A("v_lshrrev_b32 v6, 3, v11\nv_lshlrev_b32 v6, 1, v6\nv_xor_b32 v6, v6, v14\nv_lshl_add_u32 v1, v6, 4, v1")
    A("v_lshrrev_b32 v6, 1, v14\nv_lshlrev_b32 v2, 10, v6\nv_and_b32 v7, 1, v14\nv_lshl_add_u32 v6, v7, 2, v15\nv_lshl_add_u32 v2, v6, 6, v2")
    A(f"v_and_b32 v8, 3, v10\nv_lshl_add_u32 v2, v8, 3, v2\nv_lshl_add_u32 v2, v7, 5, v2\nv_add_u32 v2, {VB}, v2\nv_xor_b32 v3, 32, v2")
    A("v_lshlrev_b32 v12, 9, v15\nv_lshl_add_u32 v12, v14, 6, v12\nv_lshl_add_u32 v12, v8, 4, v12\nv_xor_b32 v13, 32, v12\nv_add_u32 v13, 4096, v13")
    A(f"s_lshl_b32 {s_mK}, {s_wave}, 11\ns_lshr_b32 s3, {s_wave}, 1\ns_lshl_b32 s3, s3, 5")
    A(f"v_xor_b32 v4, s3, v12\nv_add_u32 v4, {s_mK}, v4")
    A("v_lshrrev_b32 v6, 2, v10\nv_and_b32 v6, 7, v6\nv_lshlrev_b32 v5, 9, v6\nv_lshrrev_b32 v6, 2, v6\nv_lshlrev_b32 v6, 1, v6\nv_xor_b32 v6, v6, v8")
    A(f"v_lshl_add_u32 v5, v6, 4, v5\nv_lshrrev_b32 v6, 5, v10\nv_lshl_add_u32 v5, v6, 6, v5\ns_lshl_b32 s3, {s_wave}, 13\nv_add_u32 v5, s3, v5")
    A(f"s_add_u32 {s_mX}, s3, {XB}")
    A(f"s_add_u32 {s_mOS}, s3, {vslot_addr(1, 0)}")
    A(f"s_add_u32 {s_mR2}, s3, {vslot_addr(0, 0)}")
    A(f"s_cmp_eq_u32 {s_wave}, 0\ns_cselect_b32 {s_mR2}, {kslot_addr(7)}, {s_mR2}")
    A(f"s_add_u32 {s_mR3}, s3, {kslot_addr(4)}")
    A(f"s_cmp_eq_u32 {s_wave}, 3\ns_cselect_b32 {s_mR3}, {vslot_addr(0, 0)}, {s_mR3}")
    A("v_lshrrev_b32 v6, 1, v14\nv_lshrrev_b32 v9, 1, v11\nv_xor_b32 v6, v6, v9\nv_lshlrev_b32 v6, 3, v6\nv_lshl_add_u32 v6, v7, 12, v6")
    A(f"v_lshl_add_u32 v6, v11, 6, v6\nv_add_u32 v15, {s_mOS}, v6")
    A("v_lshrrev_b32 v6, 3, v10\nv_and_b32 v9, 7, v10\nv_xor_b32 v9, v9, v14\nv_lshlrev_b32 v9, 4, v9\nv_lshl_add_u32 v14, v6, 9, v9")
    A(f"s_mov_b32 {s_c}, {C_SCALE:#x}\ns_mov_b32 {s_pass}, 0\ns_mov_b32 {s_flags}, 0")
    if opt.diag: A(f"s_mov_b32 {s_tsp}, 1\nv_mov_b32 v0, 0")
    A("s_waitcnt lgkmcnt(0)")
    if opt.diag:
        A("v_writelane_b32 v0, s98, 0")
        A("s_getreg_b32 s98, hwreg(HW_REG_HW_ID)\ns_getreg_b32 s99, hwreg(HW_REG_XCC_ID)\ns_nop 1\nv_writelane_b32 v0, s98, 30\nv_writelane_b32 v0, s99, 31")
    for srd, p, n in ((sQ, 72, QBYTES), (sK, 74, KBYTES), (sV, 76, KBYTES), (sO, 78, QBYTES)):
        A(f"s_mov_b32 {srd[0]}, s{p}\ns_mov_b32 {srd[1]}, s{p+1}\ns_mov_b32 {srd[2]}, {n}\ns_mov_b32 {srd[3]}, 0x20000")
    for k in range(8): A(f"s_mov_b32 {s_ok[k]}, {OOB:#x}")
    for p in range(3):
        A(f"s_sub_u32 s3, s{80+3*p+2}, 12")
        A(f"s_min_u32 s4, s3, {s_wave}")
        A(f"s_mul_i32 s5, {s_wave}, 3\ns_add_u32 s4, s4, s5\ns_lshl_b32 s4, s4, 13")
        A(f"s_add_u32 {s_tab[4*p]}, s{80+3*p}, s4")
        A(f"s_mov_b32 {s_tab[4*p+1]}, s{80+3*p+1}")
        A(f"s_add_u32 {s_tab[4*p+3]}, {s_tab[4*p]}, 24576")
        A(f"s_cmp_lt_u32 {s_wave}, s3\ns_cselect_b32 {s_tab[4*p+2]}, 4, 3\ns_cselect_b32 {s_tab[4*p+3]}, {s_tab[4*p+3]}, {OOB:#x}")
    A(f"s_mov_b32 {s_tab[12]}, {OOB:#x}\ns_mov_b32 {s_tab[13]}, {OOB:#x}\ns_mov_b32 {s_tab[14]}, 0\ns_mov_b32 {s_tab[15]}, {OOB:#x}")
    A(f"s_lshl_b32 s3, s91, 2\ns_add_u32 s3, s3, {s_wave}\ns_mul_i32 {s_str}, s3, 10240")
    for p in range(3):
        for k in range(3): A(f"s_mov_b32 s{80+3*p+k}, {s_tab[4*p+k]}")
    return L

def startup():
    r = []
    r += [sop(f"s_mov_b32 {s_kptr}, {s_tab[1]}", wr=[s_kptr]), sop(f"s_sub_u32 {s_vptr}, {s_tab[1]}, 32768", wr=[s_vptr])]
    r += [sop(f"s_add_u32 {s_t0}, {s_tab[0]}, 8192", wr=[s_t0]), sop(f"s_add_u32 {s_t1}, {s_tab[0]}, 16384", wr=[s_t1]),
          sop(f"s_add_u32 {s_t2}, {s_tab[0]}, 24576", wr=[s_t2])]
    if opt.help_n:
        r += [sop(f"s_cmp_eq_u32 s90, {OOB:#x}"), raw("s_cbranch_scc1 L_nohelp"),
              sop("s_sub_u32 s4, s92, 12"), sop(f"s_add_u32 s5, {s_wave}, 1"), sop("s_min_u32 s4, s4, s5"), sop("s_mul_i32 s5, s5, 3"),
              sop("s_add_u32 s4, s4, s5"), sop("s_lshl_b32 s3, s4, 13"), sop(f"s_add_u32 s3, s3, s90"), sop(f"s_sub_u32 s3, s3, {1024 * opt.help_n}"),
              valu("v_lshlrev_b32", vt1, 4, vt0)]
        for k in range(opt.help_n):
            if k and k % 4 == 0: r.append(sop("s_add_u32 s3, s3, 4096"))
            r.append(Ins(f"buffer_load_dwordx4 {V(96 + 4 * k, 4)}, {vt1}, {sQ}, s3 offen offset:{(k % 4) * 1024}", "vmem", rd=[vt1]))
        r += [label("L_nohelp")]
    r += dma_K(1)
    k = 0
    for grp in (dma_Q(s_mX, s_tab[0], ("X",)), dma_Q(s_mR2, s_t0, ("R2",)), dma_Q(s_mOS, s_t1, ("OS",))):
        for hf in (grp[:6], grp[6:]):
            r += hf
            r += [sop(f"s_bitcmp1_b32 s89, {k}"), raw(f"s_cbranch_scc0 L_th{k}"), raw("s_waitcnt vmcnt(0)"), label(f"L_th{k}")]
            k += 1
    r += dma_K(2) + dma_K(3)
    r += dma_K(4) + dma_K(5) + dma_K(6) + dma_V(0, 0)
    r += [vwait([("X",)])] + q_reads(0, s_mX, ("X",), vt0)
    r += [sop(f"s_cmp_lt_u32 {s_tab[2]}, 4"), raw("s_cbranch_scc1 L_noq3")]
    r2 = [waitcnt(None, 0)] + dma_Q(s_mX, s_t2, ("X",))
    r2 += [vwait([("R2",)])] + q_reads(1, s_mR2, ("R2",), vt1) + [vwait([("OS",)])] + q_reads(2, s_mOS, ("OS",), vt0)
    r2 += [vwait([("X",)])] + q_reads(3, s_mX, ("X",), vt1) + [raw("s_branch L_first")]
    r3 = [vwait([("R2",)])] + q_reads(1, s_mR2, ("R2",), vt1) + [vwait([("OS",)])] + q_reads(2, s_mOS, ("OS",), vt0)
    r3 += [vwait([("K", 1), ("K", 2), ("K", 3)])]
    return r, r2, r3

def pass_begin():
    T2 = lambda k: S(s_tab.n + k, 2)
    r = [sop(f"s_mov_b32 {s_ocur}, {s_tab[0]}"),
         sop(f"s_add_u32 {s_kend}, {s_tab[1]}, 262144"),
         sop(f"s_mov_b32 {s_nbn}, {s_tab[2]}"),
         sop(f"s_mov_b32 {s_knext}, {s_tab[5]}"),
         sop(f"s_mov_b32 {s_xq}, {s_tab[4]}"),
         sop(f"s_add_u32 {s_qn[1]}, {s_tab[4]}, 8192"), sop(f"s_add_u32 {s_qn[2]}, {s_tab[4]}, 16384"),
         sop(f"s_mov_b32 {s_qn[3]}, {s_tab[7]}")]
    for k in range(0, 12, 2): r.append(sop(f"s_mov_b64 {T2(k)}, {T2(k + 4)}"))
    r += [sop(f"s_mov_b32 {s_cnt}, 3"), sop(f"s_mov_b32 {s_tq}, {s_qn[2]}"),
          sop(f"s_add_u32 {s_tv}, {s_str}, {s_knext}"), sop(f"s_add_u32 {s_tk}, {s_tv}, 24576"),
          sop(f"s_mov_b32 {s_xm}, {s_mX}")]
    return r

def repair_code():
    rQ = lambda k: V(96 + 4 * k, 4); rK = lambda k: V(128 + 4 * k, 4); rS = lambda k: V(32 + 4 * k, 4)
    rO = lambda k: V(160 + 4 * k, 4); rV = lambda k: V(224 + 4 * k, 4)
    m, l, ta, tb, al, nm = V(6), V(7), V(8), V(9), V(10), V(11)
    fa, va0, va1, vop, so = V(48), V(49), V(50), V(51), V(52)
    sp, sb, sj, sq, sk, sv = S(90), S(91), S(92), S(93), S(94), S(95)
    def gload(d, srd, soff, imm):
        return Ins(f"buffer_load_dwordx4 {d}, {fa}, {srd}, {soff} offen offset:{imm}", "vmem", rd=[fa, srd, soff], wr=[d])
    W = lambda t: raw(t, "wait")
    out = []
    pre = [W("s_waitcnt vmcnt(0) lgkmcnt(0)"),
           valu("v_mbcnt_lo_u32_b32", ta, -1, 0), valu("v_mbcnt_hi_u32_b32", ta, -1, ta),
           valu("v_and_b32", tb, 15, ta), valu("v_lshrrev_b32", ta, 4, ta),
           valu("v_lshlrev_b32", fa, 9, tb), valu("v_lshl_add_u32", so, ta, 3, fa), valu("v_lshl_add_u32", fa, ta, 4, fa),
           sop(f"s_sub_u32 {s_t0}, {s_mX}, {VB}"), valu("v_add_u32", va0, s_t0, vaddr0), valu("v_add_u32", va1, s_t0, vaddr1),
           sop(f"s_lshl_b32 {s_t0}, {s_wave}, 13"), valu("v_subrev_u32", vop, s_t0, voV),
           sop(f"s_mov_b32 {sp}, 0")]
    out += fix_hazards(pre)
    out += [label("L_rp"), sop(f"s_bitcmp1_b32 {s_flags}, {sp}"), raw("s_cbranch_scc0 L_rp_next"), sop(f"s_mov_b32 {sb}, 0"), label("L_rb")]
    blk = [sop(f"s_lshl_b32 {sq}, {sb}, 13"), sop(f"s_add_u32 {sq}, {sq}, s80")]
    blk += [gload(rQ(k), sQ, sq, k * 64) for k in range(8)]
    blk += [valu("v_mov_b32", m, "0xff800000"), valu("v_mov_b32", l, 0)]
    blk += [valu("v_mov_b32", V(160 + k), 0) for k in range(64)]
    blk += [sop(f"s_mov_b32 {sk}, s81"), sop(f"s_mov_b32 {sv}, s81"), sop(f"s_mov_b32 {sj}, 0")]
    out += fix_hazards(blk) + [label("L_rj")]
    it = []
    for kvb in range(4):
        it += [gload(rK(k), sK, sk, k * 64) for k in range(8)] + [sop(f"s_add_u32 {sk}, {sk}, 8192"), W("s_waitcnt vmcnt(0)")]
        it += [mfma(rS(kvb), rK(k), rQ(k), rS(kvb) if k else 0) for k in range(8)]
    xs = [V(32 + k) for k in range(16)]
    it += [valu("v_max3_f32", ta, m, xs[0], xs[1])]
    it += [valu("v_max3_f32", ta, ta, xs[k], xs[k + 1]) for k in range(2, 16, 2)]
    it += [valu("v_mov_b32", tb, ta), perm("v_permlane16_swap_b32", ta, tb), valu("v_max_f32", ta, ta, tb),
           valu("v_mov_b32", tb, ta), perm("v_permlane32_swap_b32", ta, tb), valu("v_max_f32", ta, ta, tb),
           valu("v_sub_f32", al, m, ta), valu("v_mul_f32", al, s_c, al), valu("v_exp_f32", al, al), valu("v_mov_b32", m, ta)]
    it += [valu("v_sub_f32", x, x, m) for x in xs] + [valu("v_mul_f32", x, s_c, x) for x in xs] + [valu("v_exp_f32", x, x) for x in xs]
    it += [valu("v_mul_f32", l, l, al)] + [valu("v_add_f32", l, l, x) for x in xs]
    it += [valu("v_mul_f32", V(160 + k), V(160 + k), al) for k in range(64)]
    Pf = lambda ks: V(16 + 4 * ks, 4)
    for ks in range(2):
        for j in range(4): it.append(valu("v_cvt_pk_bf16_f32", Pf(ks)[j], xs[8 * ks + 2 * j], xs[8 * ks + 2 * j + 1]))
    for c in range(4):
        for j in range(8):
            it += [sop(f"s_add_u32 {s_t0}, {sv}, {j * 4096 + c * 128}", wr=[s_t0]), set_m0(s_mX, j * 1024), dma(vop, sV, s_t0, 0, None, "")]
        it += [W("s_waitcnt vmcnt(0)")]
        for dbl in range(4):
            for ks in range(2):
                for j4 in range(2):
                    it.append(ds_read("ds_read_b64_tr_b16", rV(2 * dbl + ks).sub(2 * j4, 2), va1 if dbl & 1 else va0, ks * 4096 + (dbl >> 1) * 512 + j4 * 2048))
        it += [W("s_waitcnt lgkmcnt(0)")]
        for dbl in range(4):
            for ks in range(2): it.append(mfma(rO(4 * c + dbl), rV(2 * dbl + ks), Pf(ks), rO(4 * c + dbl)))
    it += [nop(9), sop(f"s_add_u32 {sv}, {sv}, 32768"), sop(f"s_add_u32 {sj}, {sj}, 1"), sop(f"s_cmp_lt_u32 {sj}, 8"), raw("s_cbranch_scc1 L_rj")]
    out += fix_hazards(it)
    fin = [valu("v_mov_b32", tb, l), perm("v_permlane16_swap_b32", l, tb), valu("v_add_f32", l, l, tb),
           valu("v_mov_b32", tb, l), perm("v_permlane32_swap_b32", l, tb), valu("v_add_f32", l, l, tb), valu("v_rcp_f32", al, l)]
    for db in range(16):
        o = rO(db)
        fin += [valu("v_mul_f32", o[i], o[i], al) for i in range(4)]
        fin += [valu("v_cvt_pk_bf16_f32", o[0], o[0], o[1]), valu("v_cvt_pk_bf16_f32", o[1], o[2], o[3])]
        fin.append(Ins(f"buffer_store_dwordx2 {o.sub(0, 2)}, {so}, {sO}, {sq} offen offset:{db * 32}", "vmem", rd=[o.sub(0, 2), so, sO, sq]))
    fin += [W("s_waitcnt vmcnt(0)"), sop(f"s_add_u32 {sb}, {sb}, 1"), sop(f"s_cmp_lt_u32 {sb}, s82"), raw("s_cbranch_scc1 L_rb")]
    out += fix_hazards(fin)
    out += [label("L_rp_next")]
    out += [sop(f"s_mov_b32 s{80 + k}, s{83 + k}") for k in range(6)]
    out += [sop(f"s_add_u32 {sp}, {sp}, 1"), sop(f"s_cmp_lt_u32 {sp}, 3"), raw("s_cbranch_scc1 L_rp")]
    return out

def main():
    ap = argparse.ArgumentParser()
    ap.add_argument("-o", default="standalone__mha_softmax__near_ridge.s")
    ap.add_argument("--diag", type=int, default=0)
    ap.add_argument("--kvmod", default="")
    ap.add_argument("--qmod", default="")
    ap.add_argument("--omod", default="")
    ap.add_argument("--sched", default="t3a_345_432_2a")
    ap.add_argument("--pkmul", type=int, default=1)
    ap.add_argument("--rep", type=int, default=1)
    ap.add_argument("--barlag", type=int, default=3)
    ap.add_argument("--epi_rd", type=int, default=1)
    ap.add_argument("--abl", type=int, default=0)
    ap.add_argument("--help_n", type=int, default=16)
    ap.add_argument("--omod3", default="")
    ap.add_argument("--omod4", default="")
    ap.add_argument("--wb", type=int, default=0)
    ap.add_argument("--nostore", type=int, default=0)
    ap.add_argument("--ca7", type=int, default=3)
    ap.add_argument("--show", type=int, default=0)
    ap.add_argument("--spread", type=int, default=1)
    ap.add_argument("--touch", type=int, default=0)
    ap.add_argument("--force", type=int, default=0)
    ap.add_argument("--padto", type=int, default=0)
    ap.add_argument("--defer", type=int, default=0)
    ap.add_argument("--warm", type=int, default=2)
    a = ap.parse_args()
    opt.__dict__.update(vars(a)); opt.nextq = 1
    L = []; A = L.append
    hdr = open("standalone__mha_softmax__near_ridge.s.ref").read().split("\n")
    for l in hdr:
        if l.startswith("; @launch"): break
        A(l)
    A(f"; @launch grid=(256,1,1) block=(256,1,1) lds={LDS_BYTES}")
    A('.amdgcn_target "amdgcn-amd-amdhsa--gfx950"')
    A(f".text\n.globl {KNAME}\n.p2align 8\n.type {KNAME},@function\n{KNAME}:")
    L += setup_code()
    def emit(seq):
        for i in seq: L.append(i)
    if opt.rep > 1: A(f"s_mov_b32 s98, {opt.rep}\nL_again:")
    emit(stamp(0))
    s1, s2, s3 = startup()
    s1 = fix_hazards(lin(s1)[0]); s2 = fix_hazards(lin(s2)[0]); s3 = fix_hazards(lin(s3)[0])
    emit(s1); emit(s2); A("L_noq3:"); emit(s3)
    A("L_first:")
    s4 = pass_begin() + [waitcnt(None, 0), barrier()] + head_reads()
    s4 = fix_hazards(s4 + sum([dma_V(0, 1), dma_V(0, 2), dma_V(0, 3), dma_K(7)][:opt.ca7], []))
    emit(s4)
    A("L_pass:")
    pb = [waitcnt(None, 0), barrier()]
    emit(pb)
    emit(stamp(1))
    A(f"s_cmp_eq_u32 {s_nbn}, 3\ns_cbranch_scc1 L_v3")
    VAR = {}
    for nb in (4, 3):
        P = variant(nb)
        hd = fix_hazards(P["hd"])
        b1 = fix_hazards(P["i1"], wrap=hd[-14:])
        b2 = fix_hazards(P["i2"], wrap=b1[-14:])
        b1b = fix_hazards(P["i1"], wrap=b2[-14:])
        assert [x.text for x in b1b] == [x.text for x in b1], "loop entry hazards differ"
        i6 = fix_hazards(P["i6"], wrap=b1[-14:])
        i7 = fix_hazards(P["i7"], wrap=i6[-14:])
        epi = fix_hazards(P["epi"], wrap=i7[-14:])
        VAR[nb] = dict(hd=hd, b1=b1, b2=b2, i6=i6, i7=i7, epi=epi)
        nn = sum(1 for p in VAR[nb].values() for x in p if x.kind == "nop")
        print(f"nb={nb}: sizes", {k: len(v) for k, v in VAR[nb].items()}, "nops", nn, file=sys.stderr)
        A(".p2align 6"); A(f"L_v{nb}:")
        emit(hd)
        emit(stamp(2))
        if opt.diag == 3:
            for k in range(3):
                A(f"s_sub_u32 s66, s{92+4*k}, s{90+4*k}\ns_mul_i32 s67, {s_pass}, 3\ns_add_u32 m0, s67, {20+k}\ns_nop 1\nv_writelane_b32 v0, s66, m0")
        A(f"L_loop{nb}:")
        emit(b1); A(f"s_cbranch_scc1 L_i6_{nb}"); emit(b2); A(f"s_branch L_loop{nb}")
        A(f"L_i6_{nb}:")
        if opt.diag == 4: emit(stamp(9))
        emit(i6)
        if opt.diag == 4: emit(stamp(9))
        emit(i7)
        emit(stamp(3))
        emit(epi)
        emit(stamp(4))
        A(f"s_add_u32 {s_pass}, {s_pass}, 1\ns_cmp_lt_u32 {s_pass}, 3\ns_cbranch_scc1 L_pass\ns_branch L_done")
    tail = [waitcnt(None, 0)] + [store(c, k) for c in range(4 - opt.defer, 4) for k in range(8)]
    traces = []
    import itertools
    for seqnb in itertools.product((3, 4), repeat=3):
        tr = s1 + (s2 if seqnb[0] == 4 else s3) + s4
        for nb in seqnb:
            v = VAR[nb]
            tr = tr + pb + v["hd"] + (v["b1"] + v["b2"]) * 2 + v["b1"] + v["i6"] + v["i7"] + v["epi"]
        traces.append(tr + tail)
    resolve_vm(traces)
    for tr in traces:
        errs = check_trace(tr)
        if errs and not opt.abl:
            for e in errs[:20]: print("SYNC ERR", e, file=sys.stderr)
            raise SystemExit(1)
    if not opt.abl: cross_check(traces)
    A("L_done:")
    emit(tail)
    if opt.force: A(f"s_mov_b32 {s_flags}, {opt.force}")
    A(f"s_cmp_lg_u32 {s_flags}, 0\ns_cbranch_scc1 L_repair\nL_fin:")
    if opt.rep > 1:
        A("s_waitcnt vmcnt(0) lgkmcnt(0)\ns_barrier")
        raise SystemExit("rep unsupported now")
        A(f"s_mov_b32 {s_pass}, 0\ns_sub_u32 s98, s98, 1\ns_cmp_lg_u32 s98, 0\ns_cbranch_scc1 L_again")
    if opt.diag:
        A("s_waitcnt vmcnt(0)")
        emit(stamp(5))
        A(f"s_mov_b32 s66, 0x1000000\ns_mov_b32 s67, 0x20000")
        A(f"v_mbcnt_lo_u32_b32 v1, -1, 0\nv_mbcnt_hi_u32_b32 v1, -1, v1\nv_lshlrev_b32 v1, 2, v1")
        A(f"s_lshl_b32 s3, s2, 10\ns_lshl_b32 s4, {s_wave}, 8\ns_add_u32 s3, s3, s4")
        A("buffer_store_dword v0, v1, s[64:67], s3 offen")
        if opt.diag == 2:
            A(f"s_or_b32 s3, s2, {s_wave}\ns_cmp_lg_u32 s3, 0\ns_cbranch_scc1 L_exit")
            A("s_load_dwordx2 s[64:65], s[0:1], 32\ns_mov_b32 s66, 256\nv_readlane_b32 s4, v0, 0\nv_readlane_b32 s5, v0, 32\ns_waitcnt lgkmcnt(0)")
            idx = [2, 3, 4, 6, 8, 10, 12, 14]
            for j, k in enumerate(idx):
                A(f"v_readlane_b32 s6, v0, {k}\nv_readlane_b32 s7, v0, {k+32}\ns_sub_u32 s6, s6, s4\ns_sub_u32 s7, s7, s5\ns_nop 1\nv_writelane_b32 v2, s6, {j}\nv_writelane_b32 v2, s7, {j+8}")
            A("s_mov_b64 exec, 0xffff\nbuffer_store_dword v2, v1, s[64:67], 0 offen")
    if opt.wb == 1:
        A(f"s_cmp_lg_u32 {s_wave}, 0\ns_cbranch_scc1 L_exit\ns_waitcnt vmcnt(0)\nbuffer_wbl2 sc1\ns_waitcnt vmcnt(0)")
    if opt.wb == 2:
        A(f"s_cmp_lg_u32 {s_wave}, 0\ns_cbranch_scc1 L_exit\ns_cmp_eq_u32 s89, 0\ns_cbranch_scc1 L_exit\ns_waitcnt vmcnt(0)\nbuffer_wbl2 sc1\ns_waitcnt vmcnt(0)")
    if opt.wb == 3:
        A(f"s_waitcnt vmcnt(0)\nbuffer_wbl2 sc1")
    if opt.padto:
        A(f"s_waitcnt vmcnt(0)\nL_spin:\ns_memrealtime s[96:97]\ns_waitcnt lgkmcnt(0)\ns_sub_u32 s96, s96, s98\ns_cmp_lt_u32 s96, {opt.padto}\ns_cbranch_scc1 L_spin")
    A("L_exit:")
    A("s_endpgm")
    A("L_warm_end:")
    A("L_repair:")
    emit(repair_code())
    A("s_branch L_fin")
    A(".p2align 6\n.type L_table,@object\nL_table:")
    tab = schedule_table(opt.sched)
    for wg in range(256):
        w = []
        for h, st, n in tab[wg]:
            w += [(h * SQ + st * 16) * 512, h * SK * 512, n]
        w += [THR.get(wg, 0), HELP.get(wg, OOB), RANK.get(wg, 0), HELPN.get(wg, 12)]
        w += [0] * (16 - len(w))
        A(".long " + ", ".join(str(x) for x in w))
    A(".size L_table, 16384")
    A('.section .rodata,"a"\n.p2align 6')
    A(f".amdhsa_kernel {KNAME}")
    A("  .amdhsa_next_free_vgpr 512\n  .amdhsa_next_free_sgpr 102\n  .amdhsa_accum_offset 256\n  .amdhsa_group_segment_fixed_size 0")
    A("  .amdhsa_kernarg_size 48\n  .amdhsa_user_sgpr_count 2\n  .amdhsa_user_sgpr_kernarg_segment_ptr 1\n  .amdhsa_system_sgpr_workgroup_id_x 1")
    A(".end_amdhsa_kernel")
    open(opt.o, "w").write("\n".join((x if isinstance(x, str) else x.text) for x in L if x is not None) + "\n")

if __name__ == "__main__":
    main()
```

```python
import sys, argparse
from asmlib import *

KNAME = "standalone__mha_softmax__near_ridge_kernel"
NH, SQ, SK, D = 128, 1312, 512, 256
QBYTES = NH * SQ * D * 2
KBYTES = NH * SK * D * 2
OOB = 0x7fff0000
VB = 65536
XB = 131072
LDS_BYTES = 163840
C_SCALE = 0x3db8aa3b
L_LIMIT = 0x4e800000

sQ, sK, sV, sO = S(8, 4), S(12, 4), S(16, 4), S(20, 4)
s_wave = S(24)
s_mK = S(25)
s_mX = S(26)
s_mR2 = S(27)
s_mOS = S(28)
s_kptr, s_kend, s_knext = S(29), S(30), S(31)
s_vptr, s_vptr2, s_vend = S(32), S(33), S(34)
s_c = S(35)
s_cnt = S(36)
s_pass = S(37)
s_flags = S(38)
s_qn = [S(40), S(41), S(42), S(43)]
s_ocur = S(44)
s_t0, s_t1, s_t2 = S(45), S(46), S(47)
s_tab = S(48, 16)
s_dbg = S(64, 4)
s_ts = S(68, 2)
s_nbn = S(70)
s_tsp = S(71)
s_mR3 = S(39)
s_tq, s_tk, s_tv, s_xm, s_xq = S(90), S(91), S(92), S(93), S(94)
sC = S(96, 4)
s_cs = S(95)
s_str = S(34)
s_ok = [S(72 + k) for k in range(8)]
kaddr, vaddr0, vaddr1, voK, voV = V(1), V(2), V(3), V(4), V(5)
lsum = lambda b: V(6 + b)
vt0, vt1 = V(10), V(11)
voQa, voQb = V(12), V(13)
vsto, wa0 = V(14), V(15)
Ct = lambda b: V(16 + 4 * b, 4)
SET = lambda i: V(32 + 16 * i, 16)
Sx = lambda i, b: SET(i).sub(4 * b, 4)
Q = lambda b, s: AG(b * 32 + s * 4, 4)
NF = 8
F = lambda i: AG(128 + 4 * (i % NF), 4)
def O(b, db):
    t = db * 4 + b
    return V(96 + 4 * t, 4) if t < 40 else AG(160 + 4 * (t - 40), 4)

M0 = ('m0', 0)
def set_m0(base, off):
    i = salu(f"s_add_u32 m0, {base}, {off}", rd=[base]); i.wr = {M0}; return i
def sop(text, rd=(), wr=()): return salu(text, rd=rd, wr=wr)

class Opt: pass
opt = Opt()

def dma(vo, srd, soff, imm, unit, mods):
    i = Ins(f"buffer_load_dwordx4 {vo}, {srd}, {soff} offen offset:{imm} {mods} lds".replace("  ", " "), "vmem", rd=[vo, srd, soff])
    i.rd.add(M0); i.dma_wr = unit; i.vm = True
    return i

def kslot_addr(slot): return slot * 8192
def vslot_addr(par, c): return VB + (par * 4 + c) * 8192

def dma_K(slot, wrap=False):
    r = []
    for dh in range(2):
        r.append(set_m0(s_mK, kslot_addr(slot) + dh * 768))
        r.append(dma(voK, sK, s_kptr, dh * 256, ("K", slot), opt.kvmod))
    r.append(sop(f"s_add_u32 {s_kptr}, {s_kptr}, 8192", rd=[s_kptr], wr=[s_kptr]))
    if wrap:
        r.append(sop(f"s_cmp_eq_u32 {s_kptr}, {s_kend}", rd=[s_kptr, s_kend]))
        r[-1].glue = True
        r.append(sop(f"s_cselect_b32 {s_kptr}, {s_knext}, {s_kptr}", rd=[s_kptr, s_knext], wr=[s_kptr]))
    return r

def dma_V(par, c, wrap=False):
    r = []
    if c == 0:
        r.append(sop(f"s_add_u32 {s_vptr}, {s_vptr}, 32768", rd=[s_vptr], wr=[s_vptr]))
        if wrap:
            r.append(sop(f"s_cmp_eq_u32 {s_vptr}, {s_vend}", rd=[s_vptr, s_vend]))
            r[-1].glue = True
            r.append(sop(f"s_cselect_b32 {s_vptr}, {s_knext}, {s_vptr}", rd=[s_vptr, s_knext], wr=[s_vptr]))
        r.append(sop(f"s_add_u32 {s_vptr2}, {s_vptr}, 4096", rd=[s_vptr], wr=[s_vptr2]))
    for e in range(2):
        r.append(set_m0(s_mK, vslot_addr(par, c) + e * 1024 - c * 128))
        r.append(dma(voV, sV, s_vptr2 if e else s_vptr, c * 128, ("V", par, c), opt.kvmod))
    return r

def dma_Q(base, soff, unit):
    r = []
    for hi in range(2):
        for dh in range(2):
            r.append(set_m0(base, hi * 4096 + dh * 768))
            for Rl in range(2):
                r.append(dma(voQb if hi else voQa, sQ, soff, Rl * 2048 + dh * 256, unit, opt.qmod))
    return r

def q_reads(b, base_sgpr, unit, tmp):
    r = [valu("v_add_u32", tmp, base_sgpr, kaddr)]
    for s in range(8):
        i = ds_read("ds_read_b128", Q(b, s), tmp, s * 256, tag=("q", b, s)); i.lds_rd = unit; i.private = True
        r.append(i)
    return r

def waitcnt(vm=None, lgkm=None):
    t = "s_waitcnt" + (f" vmcnt({vm})" if vm is not None else "") + (f" lgkmcnt({lgkm})" if lgkm is not None else "")
    i = raw(t, "wait"); i.vmw = vm; i.lgw = lgkm
    return i
def vwait(units, lgkm=None):
    i = raw("s_waitcnt ?", "wait"); i.vmneed = list(units); i.vmw = None; i.lgw = lgkm; i.vmauto = 63
    return i
def barrier():
    i = raw("s_barrier", "misc"); i.bar = True; return i

class Seg:
    def __init__(self, nb, name):
        self.nb = nb; self.name = name
        self.mf = []; self.nodes = []
        self.pairs = []
        self.blk = {}
        self.fixed = {}
        self.done = {}
        self.first = {}

    def qblock(self, name, slot, dst, czero, fbase):
        nb = self.nb; st = len(self.mf)
        for sp in range(4):
            p0 = len(self.mf)
            tags = [("f", self.name, name, 2 * sp + e) for e in range(2)]
            for b in range(nb):
                for e in range(2):
                    s = 2 * sp + e
                    d = Sx(dst, b)
                    c = d if s else (0 if czero else Ct(b))
                    self.mf.append(mfma(d, F(fbase + s), Q(b, s), c, need=tags))
                    self.done[(name, b)] = len(self.mf) - 1
            rd = []
            for e in range(2):
                s = 2 * sp + e
                i = ds_read("ds_read_b128", F(fbase + s), kaddr, kslot_addr(slot) + s * 256, tag=tags[e]); i.lds_rd = ("K", slot)
                rd.append(i)
            self.pairs.append((p0, len(self.mf) - 1, rd))
        self.blk[name] = (st, len(self.mf))

    def pblock(self, name, par, c, x0, x1, czero, fbase):
        self.pgen(name, par, [[(c, dbl, 0), (c, dbl, 1)] for dbl in range(4)], x0, x1, czero)

    def pgen(self, name, par, prs, x0, x1, czero):
        nb = self.nb; st = len(self.mf)
        for pi, pr in enumerate(prs):
            p0 = len(self.mf)
            fb = 2 * len(self.pairs)
            tags = [("f", self.name, name, 2 * pi + e) for e in range(2)]
            for b in range(nb):
                for e, (c, dbl, ks) in enumerate(pr):
                    o = O(b, 4 * c + dbl)
                    cc = 0 if (czero and ks == 0) else o
                    self.first.setdefault(("P", ks, b), len(self.mf))
                    self.first.setdefault(("O", c), len(self.mf))
                    self.mf.append(mfma(o, F(fb + e), Sx(x1 if ks else x0, b), cc, need=tags))
            rd = []
            for e, (c, dbl, ks) in enumerate(pr):
                f = F(fb + e)
                va = vaddr1 if (dbl & 1) else vaddr0
                off = vslot_addr(par, c) - VB + ks * 4096 + (dbl >> 1) * 512
                for j4 in range(2):
                    i = ds_read("ds_read_b64_tr_b16", f.sub(2 * j4, 2), va, off + j4 * 2048, tag=tags[e] if j4 else ("x",))
                    i.lds_rd = ("V", par, c)
                    rd.append(i)
            self.pairs.append((p0, len(self.mf) - 1, rd))
        self.blk[name] = (st, len(self.mf))

    def unit(self, src, even_set, odd, blocks, e_of, dl_crit, dl_add, lo, hi, add_lo=None, add_hi=None, pre=None, after=None, fma=None):
        crit = []; adds = []; res = {}
        for b in blocks:
            x = Sx(src, b); ev = Sx(even_set, b)
            ms = []
            for i in range(4):
                deps = [(n, 0) for n in pre[b]] if pre else []
                ins = valu("v_fma_f32", x[i], x[i], s_c, fma[b]) if fma else valu("v_mul_f32", x[i], s_c, x[i])
                ms.append(Node(ins, e=e_of(b), dl=dl_crit(b), deps=deps))
            ex = [Node(valu("v_exp_f32", x[i], x[i]), e=e_of(b), dl=dl_crit(b), deps=[(ms[i], 0)]) for i in range(4)]
            ad = []
            for i in range(4):
                deps = [(ex[i], 1)] + ([(ad[-1], 0)] if ad else [])
                ad.append(Node(valu("v_add_f32", lsum(b), lsum(b), x[i]), e=e_of(b), dl=(dl_add if odd else dl_crit(b)), deps=deps))
            aft = [(n, 0) for n in (after or {}).get(b, [])]
            if odd:
                c0 = Node(valu("v_cvt_pk_bf16_f32", ev[2], x[0], x[1]), e=e_of(b), dl=dl_crit(b), deps=[(ex[0], 1), (ex[1], 1)] + aft)
                c1 = Node(valu("v_cvt_pk_bf16_f32", ev[3], x[2], x[3]), e=e_of(b), dl=dl_crit(b), deps=[(ex[2], 1), (ex[3], 1)] + aft)
                crit += [ms[0], ms[1], ex[0], ex[1], ms[2], ms[3], ex[2], ex[3], c0, c1]
                adds += ad
            else:
                c0 = Node(valu("v_cvt_pk_bf16_f32", x[0], x[0], x[1]), e=e_of(b), dl=dl_crit(b), deps=[(ex[0], 1), (ex[1], 1), (ad[0], 0)])
                c1 = Node(valu("v_cvt_pk_bf16_f32", x[1], x[2], x[3]), e=e_of(b), dl=dl_crit(b), deps=[(ex[2], 1), (ex[3], 1), (ad[1], 0), (c0, 0)])
                crit += [ms[0], ms[1], ex[0], ex[1], ms[2], ms[3], ex[2], ex[3], ad[0], ad[1], ad[2], ad[3], c0, c1]
            res[b] = [c0, c1] + ad
        spread(crit, lo, hi)
        if adds: spread(adds, add_lo if add_lo is not None else lo, add_hi if add_hi is not None else hi)
        self.nodes += crit + adds
        return res

    def chain(self, instrs, lo, hi, e=None, dl=None, first_dep=None):
        prev = first_dep; out = []
        for i in instrs:
            gapd = 0
            if prev is not None:
                pk = prev.ins.kind
                gapd = 1
                if pk == "ds" and i.kind == "ds": gapd = 0
            n = Node(i, e=lo if e is None else e, dl=(10**9 if dl is None else dl), deps=[(prev, gapd)] if prev else [])
            out.append(n); prev = n
        k = len(out)
        for j, n in enumerate(out): n.ideal = lo + (hi - lo) * j / max(k, 1)
        self.nodes += out
        return out

    def reads(self, nxt_pairs, skip_first=3, barrier_before=()):
        pairs = self.pairs; ext = [p[2] for p in pairs] + list(nxt_pairs)
        prev = None
        plen = 2 * self.nb
        for k in range(skip_first, len(ext)):
            j = k - 4
            e = pairs[j][1] if j >= 0 else 0
            if k in barrier_before:
                g = e - 1 + (opt.barlag if self.nb == 3 else 0) if j >= 0 else 0
                g = min(g, len(self.mf) - 2)
                self.fixed[g] = barrier_before[k]
                self.bar_gap = getattr(self, "bar_gap", {}); self.bar_gap[k] = g
                e = g + 1
            dl = e + plen - 2
            if (k + 1) in barrier_before: dl = e + 1
            for i in ext[k]:
                n = Node(i, e=e, dl=min(dl, len(self.mf) - 1), ideal=e - 2, deps=[(prev, 0)] if prev else [])
                self.nodes.append(n); prev = n

    def build(self, nxt_first=None):
        n = len(self.mf)
        ft = set(); seen = set()
        for g, m in enumerate(self.mf):
            key = tuple(m.need)
            if key not in seen:
                seen.add(key)
                if g > 0: ft.add(g - 1)
        ft.add(n - 1)
        blocked = {}
        for g in self.fixed: ft.add(g); blocked[g] = 8
        gaps, over = schedule2(self.mf, self.nodes, free_taken=ft, blocked=blocked)
        for g, ins in self.fixed.items():
            gaps[g][1][0:0] = ins
        self.over = over
        if getattr(opt, "show", 0):
            cost = lambda i: 8 if i.kind == "vmem" else i.cost
            for nme, (a, b) in self.blk.items():
                row = ""
                for g in range(a, b):
                    u = sum(cost(i) for i in gaps[g][2]) + 4 * max(0, len(gaps[g][1]) - (0 if g in ft and g not in self.fixed else 1))
                    row += "B" if g in self.fixed else (str(u // 4) if u < 40 else "#")
                print(f"  nb{self.nb} {self.name} {nme}: {row}", file=sys.stderr)
        return gaps

def sets_for(par):
    return (0, 1, 2, 3) if par == 0 else (3, 2, 1, 0)

def first_pairs_of_iter(nb, J, name):
    s = Seg(nb, name); par = J & 1
    X0, X1, A_, B_ = sets_for(par)
    s.qblock("t0", 4 * ((J + 1) & 1), A_, False, 0)
    return [p[2] for p in s.pairs[:3]]

SPLIT = {4: 3, 3: 2}

LAT = 4
def units_of(J, h):
    par = J & 1; kb = 4 * ((J + 1) & 1)
    return [("K", kb), ("K", kb + 1), ("K", kb + 2), ("V", par, 0)] if h == 0 else [("V", par, 1), ("V", par, 2), ("V", par, 3), ("K", kb + 3)]

def iter_blocks(s, J, cz, split=0):
    par = J & 1
    X0, X1, A_, B_ = sets_for(par)
    kb = 4 * ((J + 1) & 1)
    s.qblock("t0", kb + 0, A_, False, 0)
    s.qblock("t1", kb + 1, B_, False, 0)
    if split == 2:
        s.pgen("t2", par, [[(0, 0, 0), (0, 1, 0)], [(0, 2, 0), (0, 3, 0)], [(0, 0, 1), (0, 1, 1)], [(0, 2, 1), (0, 3, 1)]], X0, X1, cz)
    elif split == 1:
        s.pgen("t2", par, [[(0, 0, 0), (0, 1, 0)], [(0, 0, 1), (0, 1, 1)], [(0, 2, 0), (0, 2, 1)], [(0, 3, 0), (0, 3, 1)]], X0, X1, cz)
    else:
        s.pblock("t2", par, 0, X0, X1, cz, 0)
    s.qblock("t3", kb + 2, A_, False, 0)
    s.pblock("t4", par, 1, X0, X1, cz, 0)
    s.pblock("t5", par, 2, X0, X1, cz, 0)
    s.qblock("t6", kb + 3, A_, False, 0)
    s.pblock("t7", par, 3, X0, X1, cz, 0)

def iter_units(s, J, u2, lo3=None):
    nb = s.nb; B = s.blk; n = len(s.mf)
    X0, X1, A_, B_ = sets_for(J & 1)
    p0s = s.first[("P", 1, 0)] - 1
    s.unit(A_, X1, True, range(nb), lambda b: s.done[("t0", b)] + LAT, lambda b: s.first[("P", 1, b)] - 2, B["t3"][0] - 2,
           lo3 if lo3 is not None else B["t0"][1] - 2, p0s - 1, add_lo=p0s, add_hi=B["t3"][0] - 4, after=u2)
    u0 = s.unit(B_, B_, False, range(nb), lambda b: s.done[("t1", b)] + LAT, lambda b: B["t4"][0] + 4, None,
                p0s + 2, B["t4"][0] - 2)
    s.unit(A_, B_, True, range(nb), lambda b: s.done[("t3", b)] + LAT, lambda b: B["t6"][0] - 2, B["t6"][0] - 2,
           B["t4"][0], B["t6"][0] - 4, add_lo=B["t4"][0] + 4, add_hi=B["t6"][0] - 3, after=u0)
    s.unit(A_, A_, False, range(SPLIT[nb]), lambda b: s.done[("t6", b)] + LAT, lambda b: n - 1, None,
           B["t7"][0], n - 3)

def make_mid(nb, J, name, nxt_name, special=False):
    par = J & 1
    X0, X1, A_, B_ = sets_for(par)
    kb = 4 * ((J + 1) & 1)
    s = Seg(nb, name)
    iter_blocks(s, J, False, split=(1 if nb == 3 else 0))
    n = len(s.mf); B = s.blk
    u2 = s.unit(X1, X1, False, list(range(SPLIT[nb], nb)), lambda b: 0, lambda b: B["t0"][1] + 2, None, 0, B["t0"][1] - 4)
    iter_units(s, J, u2)
    npair = len(s.pairs)
    nxt = first_pairs_of_iter(nb, J + 1, nxt_name)
    need2 = units_of(J + 1, 0) + (units_of(J + 1, 1) if special else [])
    s.reads(nxt, barrier_before={16: [vwait(units_of(J, 1), 0), barrier()], npair: [vwait(need2, 0), barrier()]})
    g1 = s.bar_gap[16]; g2 = s.bar_gap[npair]
    npar = (J + 1) & 1
    if opt.spread:
        gg = [dma_V(npar, 1), dma_V(npar, 2), dma_V(npar, 3), dma_K(4 * ((J + 2) & 1) + 3)]
        k0 = 3
        c0 = s.chain(sum(gg[:k0], []), 2, B["t0"][1] + 2, dl=g1 - 1)
        c0 = s.chain(sum(gg[k0:], []), B["t2"][0] + 10, g1 - 2, dl=g1 - 1, first_dep=c0[-1])
        lo1, hi1 = (g1 + 14, g2 - 4) if nb == 4 else (B["t4"][0] + 14, g2 + 2)
    else:
        g0 = dma_V(npar, 1) + dma_V(npar, 2) + dma_V(npar, 3) + dma_K(4 * ((J + 2) & 1) + 3)
        c0 = s.chain(g0, 0, B["t0"][1] + 2, dl=g1 - 1)
        lo1, hi1 = B["t5"][0] + 8, B["t7"][0]
    if special:
        s.chain(dma_Q(s_mR3, s_qn[1], ("R3",)), g1 + 2, B["t6"][1], e=g1 + 1, dl=g2 - 1, first_dep=c0[-1])
    else:
        tq = (lambda: touch(sQ, s_tq, 2048)) if (opt.touch & 1 and J & 1) else (lambda: [])
        tk = (lambda: touch(sK, s_tk, opt.tstep)) if (opt.touch & 2 and opt.twhen >> (J & 1) & 1) else (lambda: [])
        tv = (lambda: touch(sV, s_tv, opt.tstep)) if (opt.touch & 2 and opt.twhen >> (J & 1) & 1) else (lambda: [])
        xq = [[], []]
        if not J & 1:
            for hi in range(2):
                xq[hi] = [set_m0(s_xm, hi * 4096)] + [dma(voQb if hi else voQa, sQ, s_xq, Rl * 2048, ("X",), opt.qmod) for Rl in range(2)]
            xq[1] += [sop(f"s_add_u32 {s_xm}, {s_xm}, 1024", wr=[s_xm]), sop(f"s_add_u32 {s_xq}, {s_xq}, 256", wr=[s_xq])]
        tc = touch(sC, s_cs, 0)[:1] if (opt.cwarm and (J & 1 or opt.cwarm > 1)) else []
        g1l = tc + dma_K(kb + 0, wrap=(J & 1) == 1) + tq() + xq[0] + dma_K(kb + 1) + tq() + tk() + xq[1] + dma_K(kb + 2) + tq() + tv() + dma_V(par, 0)
        last = s.chain(g1l, lo1, hi1, e=g1 + 1, dl=g2 - 1, first_dep=c0[-1])[-1]
        if J & 1:
            s.chain([sop(f"s_sub_u32 {s_cnt}, {s_cnt}, 1"), sop(f"s_cmp_eq_u32 {s_cnt}, 0")], n - 6, n - 3, first_dep=last)
    return s

def touch(srd, sp, step):
    i = Ins(f"buffer_load_dword {vt0}, {vt1}, {srd}, {sp} offen", "vmem", rd=[vt1, srd, sp], wr=[vt0]); i.vm = True
    return [i, sop(f"s_add_u32 {sp}, {sp}, {step}", rd=[sp], wr=[sp])]

RL = lambda b: SET(0)[b]
WA = lambda k: wa0 if k == 0 else SET(0)[4 + k]
RA = SET(0)[8]
LT = SET(0)[9]
VS1 = SET(0)[10]
HOIST = {4: (4, 3), 3: (2, 0)}
PK = lambda c, k: O(k >> 1, 4 * c + (k & 1))

def butterfly(x, op, mid, out):
    q = []
    def add(i, deps): q.append((i, deps)); return len(q) - 1
    a = add(perm("v_permlane16_swap_b32", x[0], x[1]), [])
    b = add(perm("v_permlane16_swap_b32", x[2], x[3]), [])
    a = add(valu(op, x[0], x[0], x[1]), [a])
    b = add(valu(op, x[2], x[2], x[3]), [b])
    c = add(perm("v_permlane32_swap_b32", x[0], x[2]), [a, b])
    for i in mid(out[0], x[0], x[2]): c = add(i, [c])
    c = add(valu("v_mov_b32", out[2], out[0]), [c])
    c = add(perm("v_permlane32_swap_b32", out[0], out[2]), [c])
    a = add(valu("v_mov_b32", out[1], out[0]), [c])
    b = add(valu("v_mov_b32", out[3], out[2]), [c])
    a = add(perm("v_permlane16_swap_b32", out[0], out[1]), [a])
    b = add(perm("v_permlane16_swap_b32", out[2], out[3]), [b])
    return q

def nodes_of(q, first_deps, e, dl, ideal, step):
    nds = []
    for k, (i, deps) in enumerate(q):
        isp = i.op.startswith("v_permlane")
        d = [(nds[j], 2 if isp else (1 if nds[j].ins.kind == "trans" else 0)) for j in deps] if deps else [(x, 2 if isp else 0) for x in first_deps]
        nds.append(Node(i, e=e, dl=dl, deps=d, ideal=ideal + step * k))
    return nds

def make_last(nb, name):
    J = 7; par = 1
    X0, X1, A_, B_ = sets_for(par)
    s = Seg(nb, name)
    s.qblock("t0", 0, A_, False, 0)
    s.pgen("t2", par, [[(c, d, 0), (c, d + 1, 0)] for c in (0, 1) for d in (0, 2)], X0, X1, False)
    s.pgen("t4", par, [[(c, d, 1), (c, d + 1, 1)] for c in (0, 1) for d in (0, 2)], X0, X1, False)
    s.pblock("t5", par, 2, X0, X1, False, 0)
    s.pblock("t7", par, 3, X0, X1, False, 0)
    n = len(s.mf); B = s.blk
    u2 = s.unit(X1, X1, False, list(range(SPLIT[nb], nb)), lambda b: 0, lambda b: B["t0"][1] + 2, None, 0, B["t0"][1] - 4)
    k1 = B["t4"][0]
    u3 = s.unit(A_, X1, True, range(nb), lambda b: s.done[("t0", b)] + LAT, lambda b: s.first[("P", 1, b)] - 2, B["t5"][0] + 6,
                B["t0"][1] - 2, k1 - 1, add_lo=k1, add_hi=B["t5"][0], after=u2)
    npair = len(s.pairs)
    kR = 12
    s.reads([[]], barrier_before={kR + 2: [waitcnt(None, 0), barrier()], npair: [waitcnt(None, 0), barrier()]})
    gR = s.bar_gap[kR + 2]; g2 = s.bar_gap[npair]
    c2 = s.chain(dma_Q(s_mR2, s_qn[2], ("R2",)), 0, B["t0"][1] - 2)
    def qchain(b, base, unit, tmp, lo, hi, pre, dl=None, first_dep=None):
        ins = pre + q_reads(b, base, unit, tmp)
        nds = s.chain(ins, lo, hi, dl=dl, first_dep=first_dep)
        for k, nd in enumerate(nds[len(pre) + 1:]):
            nd.e = max(nd.e, s.pairs[k // 2][1] + 1)
        return nds
    t0e = B["t0"][1]
    r0 = qchain(0, s_mX, ("X",), vt0, t0e - 10, t0e + 10, [vwait([("X",)])], dl=gR - 5)
    r1 = qchain(1, s_mR3, ("R3",), vt1, t0e + 10, gR - 8, [vwait([("R3",)])], dl=gR - 5, first_dep=r0[-1])
    c3 = s.chain([mark_wait_lds(("q", 0, 7))] + dma_Q(s_mX, s_qn[3], ("X",)), t0e + 16, gR + 4)
    c3[0].deps = [(r0[-1], 5), (c2[-1], 1)]
    refill = [sop(f"s_sub_u32 {s_vptr}, {s_knext}, 32768", wr=[s_vptr])] + dma_K(4) + dma_K(5) + dma_K(6) + dma_V(0, 0)
    c4 = s.chain(refill, gR + 4, g2 - 2, e=gR + 1, first_dep=c3[-1])
    r2 = s.chain([vwait([("R2",)])] + q_reads(2, s_mR2, ("R2",), vt0), g2 - 16, g2 - 6, dl=g2 - 4, first_dep=r1[-1])
    nca = opt.ca7
    grp = [dma_V(0, 1), dma_V(0, 2), dma_V(0, 3), dma_K(7)]
    c5 = s.chain(sum(grp[:nca], []), g2 + 1, n - 2, e=g2 + 1, first_dep=c4[-1]) if nca else c4
    ok = [sop(f"s_add_u32 {s_ok[k]}, {s_ocur}, {k * 4096}", wr=[s_ok[k]]) if (k < 2 * nb and not opt.nostore) else sop(f"s_mov_b32 {s_ok[k]}, {OOB:#x}", wr=[s_ok[k]]) for k in range(8)]
    k0 = s.chain(ok, 4, t0e + 8)
    k1 = s.chain(pass_begin(), gR + 6, n - 4, first_dep=k0[-1])
    k1[0].deps += [(c3[-1], 1), (c4[0], 1)]
    q = butterfly([lsum(b) for b in range(4)], "v_add_f32", lambda d, x, y: [valu("v_add_f32", LT, x, y), valu("v_rcp_f32", d, LT)], [RL(b) for b in range(4)])
    red = nodes_of(q, [x for b in range(nb) for x in u3[b][2:]], 0, 10**9, B["t5"][0] + 2, 1.5)
    rl_done = red[-2:]
    ad = [valu("v_xor_b32", WA(k), 16 * k, wa0) for k in (1, 2, 3)] + [valu("v_xor_b32", VS1, 64, vsto)]
    ad += [valu("v_mbcnt_lo_u32_b32", RA, -1, 0), valu("v_mbcnt_hi_u32_b32", RA, -1, RA), valu("v_lshl_add_u32", RA, RA, 3, s_mOS)]
    prev = None
    for k, i in enumerate(ad):
        nd = Node(i, deps=[(prev, 0)] if prev else [], ideal=B["t0"][1] - 12 + k); red.append(nd); prev = nd
    s.nodes += red
    t7s = B["t7"][0]
    order, acct = epi_order(nb)
    na, nc = HOIST[nb]
    for k in range(na * 4):
        t_ = acct[k // 4]; i = k % 4
        s.nodes.append(Node(acc_read(TMP(k // 4)[i], O(t_[2], 4 * t_[0] + t_[1])[i]), e=t7s + LAT + 1, ideal=g2 + 1 + k * 0.6,
                            deps=[(x, 0) for b in range(nb) for x in u3[b]]))
    for k in range(nc):
        c, dbl, b = order[k]; o = O(b, 4 * c + dbl)
        ms = [Node(valu("v_mul_f32", o[i], o[i], RL(b)), e=B["t5"][0] + LAT, ideal=g2 + 1 + na * 2.4 + 3 * k + 0.5 * i, deps=[(x, 0) for x in rl_done]) for i in range(4)]
        c0 = Node(valu("v_cvt_pk_bf16_f32", o[0], o[0], o[1]), ideal=g2 + 3 + na * 2.4 + 3 * k, deps=[(ms[0], 0), (ms[1], 0)])
        c1 = Node(valu("v_cvt_pk_bf16_f32", o[1], o[2], o[3]), ideal=g2 + 3.5 + na * 2.4 + 3 * k, deps=[(ms[2], 0), (ms[3], 0), (c0, 0)])
        s.nodes += ms + [c0, c1]
    return s

TMP = lambda k: V(48 + 4 * (k % 12), 4)
def epi_order(nb):
    order = [(c, dbl, b) for c in range(4) for dbl in range(4) for b in range(nb)]
    return order, [t_ for t_ in order if O(t_[2], 4 * t_[0] + t_[1]).k == 'a']

def mark_wait_lds(tag):
    i = raw("s_nop 0", "nop"); i.need = [tag]; i.is_marker = True
    return i

def make_head(nb, name, nxt_name):
    X0, X1, A_, B_ = sets_for(1)
    s = Seg(nb, name)
    s.qblock("h0", 1, B_, True, 0)
    s.qblock("h1", 2, X0, True, 0)
    s.qblock("h2", 3, A_, False, 0)
    iter_blocks(s, 0, True, split=2)
    n = len(s.mf); B = s.blk
    tmp = SET(X1)
    pre = {}; nmc = {}
    part = []; emax = 0
    dlm = B["h2"][0] - 2
    for b in range(4):
        if b < nb:
            x = Sx(B_, b); e = s.done[("h0", b)] + LAT; emax = max(emax, e)
            n0 = Node(valu("v_max3_f32", tmp[b], x[0], x[1], x[2]), e=e, dl=dlm, ideal=e)
            n1 = Node(valu("v_max_f32", tmp[b], tmp[b], x[3]), e=e, dl=dlm, ideal=e + 0.5, deps=[(n0, 0)])
            s.nodes += [n0, n1]; part.append(n1)
        z = Node(valu("v_mov_b32", lsum(b), 0), e=0, dl=B["h0"][1], ideal=2 + b)
        s.nodes.append(z); pre[b] = [z]
    q = butterfly([tmp[b] for b in range(4)], "v_max_f32", lambda d, x, y: [valu("v_min_f32", d, Neg(x), Neg(y))], [Ct(b)[0] for b in range(4)])
    bf = nodes_of(q, part, 0, dlm, emax, 0.5)
    s.nodes += bf
    for b in range(nb):
        nmc[b] = tmp[8 + b]
        src = bf[-2] if b < 2 else bf[-1]
        n0 = Node(valu("v_mul_f32", nmc[b], s_c, Ct(b)[0]), dl=dlm, ideal=emax + 8 + b * 0.3, deps=[(src, 0)])
        s.nodes += [n0] + [Node(valu("v_mov_b32", Ct(b)[i], Ct(b)[0]), dl=dlm + 2 * b, ideal=emax + 12 + 2 * b + i * 0.5, deps=[(src, 0)]) for i in (1, 2, 3)]
        pre[b].append(n0)
    t0s = B["t0"][0]; t1s = B["t1"][0]
    u0 = s.unit(B_, B_, False, range(nb), lambda b: s.done[("h0", b)] + LAT, lambda b: t1s - 4, None, B["h1"][0] + 10, B["h2"][0] + 14, pre=pre, fma=nmc)
    u1 = s.unit(X0, B_, True, range(nb), lambda b: s.done[("h1", b)] + LAT, lambda b: t1s - 2, t1s - 2, B["h2"][0] + 14, t0s + 16, pre=pre, after=u0, fma=nmc)
    for nd in s.nodes:
        if nd.ins.text.startswith("v_fma_f32"): nd.dl = min(nd.dl, t0s - 2); nd.ideal = min(nd.ideal, t0s - 6)
    u2 = s.unit(A_, A_, False, range(nb), lambda b: s.done[("h2", b)] + LAT, lambda b: s.first[("P", 1, b)] - 4, None, t0s + 16, t1s + 14)
    iter_units(s, 0, u2, lo3=t1s + 14)
    prev = None
    for k, i in enumerate([valu("v_mbcnt_lo_u32_b32", vt1, -1, 0), valu("v_mbcnt_hi_u32_b32", vt1, -1, vt1), valu("v_lshlrev_b32", vt1, 5, vt1)]):
        nd = Node(i, deps=[(prev, 0)] if prev else [], ideal=8 + k); s.nodes.append(nd); prev = nd
    npair = len(s.pairs)
    nxt = first_pairs_of_iter(nb, 1, nxt_name)
    def tb(k, l):
        if opt.diag != 3: return l
        return [raw(f"s_memtime s[{90+4*k}:{91+4*k}]")] + l + [raw(f"s_memtime s[{92+4*k}:{93+4*k}]")]
    s.reads(nxt, barrier_before={12: tb(0, [vwait(units_of(0, 0), 0), barrier()]), 28: tb(1, [vwait(units_of(0, 1), 0), barrier()]),
                                 npair: tb(2, [vwait(units_of(1, 0), 0), barrier()])})
    g0 = s.bar_gap[12]; g1 = s.bar_gap[28]; g2 = s.bar_gap[npair]
    grp = [dma_V(0, 1), dma_V(0, 2), dma_V(0, 3), dma_K(7)][opt.ca7:] + [dma_K(0), dma_V(1, 0), dma_V(1, 1), dma_V(1, 2), dma_V(1, 3)]
    ca = s.chain(sum(grp[:4], []), 0, B["h0"][1] + 2, dl=g1 - 30)
    rest = grp[4:]
    nearly = max(0, len(rest) - 3 + min(3, opt.ca7)) if False else max(0, 6 - opt.ca7 - 4)
    cb = s.chain(sum(rest[:nearly], []) + dma_K(1) + dma_K(2), B["t1"][0], B["t4"][0], e=g0 + 1, first_dep=ca[-1])
    cc = s.chain(sum(rest[nearly:], []) + dma_K(3), B["t4"][0] + 8, B["t6"][0] + 4, first_dep=cb[-1])
    cd = s.chain(dma_K(4) + dma_K(5) + dma_K(6) + dma_V(0, 0), B["t6"][0] + 6, n - 4, e=g1 + 1, first_dep=cc[-1])
    prev = None
    nd_ = opt.defer
    sts = [(c, k) for c in range(4 - nd_, 4) for k in range(8)]
    lo, hi = 6, min(6 + 5 * len(sts), s.first[("O", 3)] - 4)
    for j, (c, k) in enumerate(sts):
        nd = Node(store(c, k), dl=s.first[("O", c)] - 3, ideal=lo + (hi - lo) * j / len(sts), deps=[(prev, 2)] if prev else [])
        s.nodes.append(nd); prev = nd
    head = [i for p in s.pairs[:3] for i in p[2]]
    return s, head

def perm(op, a, b):
    i = valu(op, a, b, extra_rd=[a], extra_wr=[b]); i.cost = 8
    return i

def acc_read(d, a):
    i = Ins(f"v_accvgpr_read_b32 {d}, {a}", "acc", rd=[a], wr=[d]); return i

def make_epi(nb):
    r = []
    c_ = valu("v_cmp_ngt_f32", "vcc", hex(L_LIMIT), LT); c_.wr.add(('s', 'vcc')); r.append(c_)
    flagl = [raw(f"s_cbranch_vccz L_noflag{nb}"), sop(f"s_bitset1_b32 {s_flags}, {s_pass}"), label(f"L_noflag{nb}")]
    order, acct = epi_order(nb)
    slot = {t_: k for k, t_ in enumerate(acct)}
    accq = [(t_, i) for t_ in acct for i in range(4)]
    nacc = 4 * HOIST[nb][0]; done_acc = 0
    rdq = []; stq = []; oth = []; wq = []
    held = None
    for j, (c, dbl, b) in enumerate(order):
        o = O(b, 4 * c + dbl)
        want = min(len(acct) * 4, -(-(j + 1) * len(acct) * 4 // (len(order) - 4)))
        while nacc < len(acct) * 4 and (nacc < want or (o.k == 'a' and nacc < 4 * (slot[(c, dbl, b)] + 1))):
            if nacc // 4 >= done_acc + 12:
                assert not (o.k == 'a' and nacc < 4 * (slot[(c, dbl, b)] + 1)), "out of temps"
                break
            t_, i = accq[nacc]; nacc += 1
            r.append(acc_read(TMP(slot[t_])[i], O(t_[2], 4 * t_[0] + t_[1])[i]))
        t4 = TMP(slot[(c, dbl, b)]) if o.k == 'a' else o
        rlp = V(RL(b).n & ~1, 2); sel = RL(b).n & 1
        if j >= HOIST[nb][1]:
            for h in range(2):
                r.append(valu("v_pk_mul_f32", t4.sub(2 * h, 2), t4.sub(2 * h, 2), rlp, mods=f"op_sel:[0,{sel}] op_sel_hi:[1,{sel}]"))
            r += [valu("v_cvt_pk_bf16_f32", t4[0], t4[0], t4[1]), valu("v_cvt_pk_bf16_f32", t4[1], t4[2], t4[3])]
        if b % 2 == 0 and b + 1 < nb:
            held = (t4, o.k == 'a')
        else:
            na = int(o.k == 'a')
            if held is not None:
                w = Ins(f"ds_write2st64_b64 {WA(dbl)}, {held[0].sub(0, 2)}, {t4.sub(0, 2)} offset0:{(b - 1) * 2} offset1:{b * 2}", "ds",
                        rd=[WA(dbl), held[0].sub(0, 2), t4.sub(0, 2)], tag=("w", j))
                na += held[1]; held = None
            else:
                w = ds_write("ds_write_b64", WA(dbl), t4.sub(0, 2), b * 1024, tag=("w", j))
            w.lds_pw = ("OS",); wq.append((w, na))
        if j == 4: r += flagl
        last = (dbl == 3 and b == nb - 1)
        for _ in range(opt.epi_rd):
            if rdq: r.append(rdq.pop(0))
        if not rdq or last:
            r += rdq; rdq = []
            k_ = 0
            while wq and (k_ < 1 or last):
                w, na = wq.pop(0); r.append(w); done_acc += na; k_ += 1
        if stq and j % 2 == 1 and stq[0][0] <= j: r.append(stq.pop(0)[1])
        elif oth and j % 2 == 0:
            r.append(oth.pop(0))
            while oth and oth[0].kind == "ds" and r[-1].kind != "ds": r.append(oth.pop(0))
        if last:
            for k in range(2 * nb):
                i = Ins(f"ds_read2st64_b64 {PK(c, k)}, {RA} offset0:{k} offset1:{8 + k}", "ds", rd=[RA], wr=[PK(c, k)], tag=("o", c, k))
                i.lds_rd = ("OS",); i.private = True
                rdq.append(i)
            if c < 3:
                for k in range(2 * nb):
                    st = store(c, k, nb); st.need = [("o", c, k if k < 3 else 2 * nb - 1)]; stq.append((j + 3 + k // opt.epi_rd, st))
            if c == 0: oth += [vwait([("X",)])] + q_reads(3, s_mX, ("X",), vt0)
            if c == 1: oth += head_reads()
    r += rdq + oth + [x[1] for x in stq]
    if opt.defer == 0:
        for k in range(2 * nb):
            st = store(3, k, nb); st.need = [("o", 3, k)]; r.append(st)
    return r

def head_reads():
    s = Seg(4, "hd"); s.qblock("h0", 1, 0, True, 0)
    return [i for p in s.pairs[:3] for i in p[2]]

def store(c, k, nb=None):
    data = PK(c, k)
    mod = {3: opt.omod3, 4: opt.omod4}.get(nb) or opt.omod
    assert opt.defer == 0
    vo = VS1 if k & 1 else vsto
    i = Ins(f"buffer_store_dwordx4 {data}, {vo}, {sO}, {s_ok[k]} offen offset:{c * 128} {mod}".rstrip(), "vmem", rd=[data, vo, sO, s_ok[k]])
    i.wide_store = True; i.data = data.set(); i.vm = True
    return i

def lin(seq, pre=()):
    out = []; q = list(pre)
    for i in seq:
        if i.need:
            idx = -1
            for t in i.need:
                if t in q: idx = max(idx, len(q) - 1 - q[::-1].index(t))
            if idx >= 0:
                n = min(len(q) - 1 - idx, 15)
                out.append(waitcnt(None, n)); q = q[idx + 1:]
        if getattr(i, "lgw", None) is not None: q = q[len(q) - i.lgw:] if i.lgw else []
        if getattr(i, "is_marker", False): continue
        if i.kind == "ds": q.append(i.tag)
        out.append(i)
    return out, q

def flat(gaps, pre, nxt_need):
    out = []; q = list(pre)
    def wf(need):
        nonlocal q
        idx = -1
        for t in need:
            if t in q: idx = max(idx, len(q) - 1 - q[::-1].index(t))
        if idx < 0: return
        n = min(len(q) - 1 - idx, 15)
        out.append(waitcnt(None, n)); q = q[idx + 1:]
    for g, (m, sc, oth) in enumerate(gaps):
        wf(m.need)
        out.append(m)
        has_l0 = any(getattr(i, "lgw", None) == 0 for i in sc)
        if not has_l0:
            wf(gaps[g + 1][0].need if g + 1 < len(gaps) else nxt_need)
        for i in sc + oth:
            if i.need: wf(i.need)
            if getattr(i, "lgw", None) == 0: q = []
            if getattr(i, "is_marker", False): continue
            if i.kind == "ds": q.append(i.tag)
            out.append(i)
    return out, q

E32 = ("v_mul_f32", "v_add_f32", "v_exp_f32", "v_mov_b32", "v_max_f32", "v_xor_b32", "v_rcp_f32")
def isize(i):
    t = i.text
    if i.kind == "label": return 0
    op = t.split()[0]
    if op.startswith("s_"):
        import re
        m = re.findall(r"[ ,](0x[0-9a-f]+|-?\d+)\s*$", t)
        if op in ("s_waitcnt", "s_barrier", "s_nop") or op.startswith("s_cbranch") or op == "s_branch": return 4
        if m and not (-16 <= int(m[0], 0) <= 64): return 8
        return 4
    if op in E32 or op in ("v_add_u32", "v_lshlrev_b32", "v_permlane16_swap_b32", "v_permlane32_swap_b32"):
        return 8 if "-v" in t else 4
    return 8

def align8(seq, start=0):
    pos = start; cand = None
    for i in seq:
        if i.kind == "mfma":
            if pos % 8 and cand is not None:
                op = cand.text.split()[0]; cand.text = cand.text.replace(op, op + "_e64", 1); pos += 4
            cand = None
        sz = isize(i)
        if sz == 4 and i.text.split()[0] in E32 and cand is None: cand = i
        pos += sz
    return pos

def label(n): return Ins(n + ":", "label", states=0, cost=0)

def stamp(k):
    if not opt.diag: return []
    return [raw(f"s_memrealtime {s_ts}"), raw("s_memtime s[66:67]"), raw("s_waitcnt lgkmcnt(0)", "wait0"), raw(f"s_mov_b32 m0, {s_tsp}"), raw("s_nop 1"),
            raw(f"v_writelane_b32 v0, {s_ts.sub(0)}, m0"), raw(f"s_add_u32 m0, m0, 32"), raw("s_nop 1"), raw("v_writelane_b32 v0, s66, m0"),
            raw(f"s_add_u32 {s_tsp}, {s_tsp}, 1")]

def retag(q, old, new):
    return [tuple(new if x == old else x for x in t) if len(t) > 1 else t for t in q]

def variant(nb):
    P = {}
    hd, head = make_head(nb, "hd", "i1")
    i1 = make_mid(nb, 1, "i1", "i2")
    i2 = make_mid(nb, 2, "i2", "i1")
    i6 = make_mid(nb, 6, "i2", "i1", special=True)
    i7 = make_last(nb, "i1")
    SG = dict(hd=hd, i1=i1, i2=i2, i6=i6, i7=i7)
    G = {k: s.build() for k, s in SG.items()}
    print(f"nb={nb} overflow cycles:", {k: s.over for k, s in SG.items()}, file=sys.stderr)
    P["hd"], q0 = flat(G["hd"], [], G["i1"][0][0].need)
    P["i1"], q1 = flat(G["i1"], q0, G["i2"][0][0].need)
    P["i2"], q2 = flat(G["i2"], q1, G["i1"][0][0].need)
    assert q2 == q0, (q0, q2)
    for k in ("i1", "i2"):
        if opt.abl & 16: P[k] = [i for i in P[k] if not getattr(i, "bar", False)]
        if opt.abl & 32: P[k] = [i for i in P[k] if i.kind != "vmem"]
        if opt.abl & 64: P[k] = [i for i in P[k] if i.kind not in ("valu", "trans")]
        if opt.abl & 128: P[k] = [i for i in P[k] if i.kind != "ds"]
        if opt.abl & 256: P[k] = [i for i in P[k] if not (i.kind == "salu" and "m0" in i.text)]
    P["i6"], q = flat(G["i6"], q1, G["i7"][0][0].need)
    P["i7"], q = flat(G["i7"], q, [])
    ep = make_epi(nb)
    if opt.abl & 1: ep = [i for i in ep if not i.text.startswith("buffer_store")]
    if opt.abl & 2: ep = [i for i in ep if getattr(i, "lds_rd", None) != ("OS",)]
    if opt.abl & 4: ep = [i for i in ep if not i.text.startswith("ds_write")]
    if opt.abl & 8: ep = [i for i in ep if i.kind != "acc"]
    P["epi"], q = lin(ep, q)
    return P

def resolve_vm(traces):
    ws = set()
    for tr in traces:
        n = 0; last = {}
        for i in tr:
            if getattr(i, "vmneed", None) is not None:
                idx = max([last.get(u, -1) for u in i.vmneed])
                if idx >= 0: i.vmauto = min(i.vmauto, n - 1 - idx)
                ws.add(i)
            if getattr(i, "vm", False):
                u = getattr(i, "dma_wr", None)
                if u: last[u] = n
                n += 1
    for i in ws:
        i.vmw = i.vmauto
        i.text = f"s_waitcnt vmcnt({i.vmw})" + (f" lgkmcnt({i.lgw})" if i.lgw is not None else "")

def check_trace(trace):
    vm = []
    lg = []
    state = {}
    epoch = 0
    ALIAS = {("R2",): [("V", 0, 1), ("V", 0, 2), ("V", 0, 3), ("K", 7)], ("OS",): [("V", 1, c) for c in range(4)],
             ("R3",): [("K", 4), ("K", 5), ("K", 6), ("V", 0, 0)]}
    def phys(u): return ALIAS.get(u, [u])
    wr_land = {}; wr_pend = {}; rd_done = {}; rd_pend = {}; owner = {}
    errs = []
    for k, i in enumerate(trace):
        if getattr(i, "vmw", None) is not None:
            while len(vm) > i.vmw:
                o = vm.pop(0)
                u = getattr(o, "dma_wr", None)
                if u: wr_pend[u] -= 1; wr_land[u] = epoch
        if getattr(i, "lgw", None) is not None or i.kind == "wait0":
            n = 0 if i.kind == "wait0" else i.lgw
            while len(lg) > n:
                o = lg.pop(0)
                u = getattr(o, "lds_rd", None) or getattr(o, "lds_pw", None)
                if u: rd_pend[u] -= 1; rd_done[u] = epoch
        if getattr(i, "bar", False): epoch += 1
        u = getattr(i, "lds_rd", None)
        if u:
            if True:
                if wr_pend.get(u, 0) > 0: errs.append((k, "read of unit with pending DMA", u, i.text))
                elif not getattr(i, "private", False) and wr_land.get(u, 10**9) >= epoch: errs.append((k, "read without barrier after landing", u, i.text))
            for p in phys(u):
                if owner.get(p) != u: errs.append((k, "read of unit owned by", owner.get(p), u, i.text))
        w = getattr(i, "dma_wr", None) or getattr(i, "lds_pw", None)
        if w:
            for p in phys(w):
                o = owner.get(p)
                if o is not None:
                    priv = (o == w and w in (("X",), ("R2",), ("R3",), ("OS",)))
                    if rd_pend.get(o, 0) > 0 and not (getattr(i, "lds_pw", None) and o == w):
                        errs.append((k, "write over unit with reads in flight", o, w, i.text))
                    if not priv and rd_done.get(o, -1) >= epoch: errs.append((k, "write without barrier after reads", o, w, i.text))
                    if o != w and wr_pend.get(o, 0) > 0: errs.append((k, "write over pending dma", o, w))
                    if o != w and wr_land.get(o, -1) >= epoch: errs.append((k, "write over unit landed w/o barrier", o, w))
                owner[p] = w
        if i.kind == "ds":
            lg.append(i)
            u = getattr(i, "lds_rd", None) or getattr(i, "lds_pw", None)
            if u: rd_pend[u] = rd_pend.get(u, 0) + 1
        if getattr(i, "vm", False):
            vm.append(i)
            u = getattr(i, "dma_wr", None)
            if u: wr_pend[u] = wr_pend.get(u, 0) + 1
            assert len(vm) <= 63, "vmcnt overflow"
    return errs

def cross_check(traces):
    ALIAS = {("R2",): [("V", 0, 1), ("V", 0, 2), ("V", 0, 3), ("K", 7)], ("OS",): [("V", 1, c) for c in range(4)],
             ("R3",): [("K", 4), ("K", 5), ("K", 6), ("V", 0, 0)]}
    allg = []
    for tr in traces:
        gens = {}; epoch = 0; vm = []; lg = []
        for i in tr:
            if getattr(i, "vmw", None) is not None:
                while len(vm) > i.vmw:
                    for g in vm.pop(0): g["land"] = epoch
            if getattr(i, "lgw", None) is not None or i.kind == "wait0":
                n = 0 if i.kind == "wait0" else i.lgw
                while len(lg) > n:
                    for g in lg.pop(0): g["done"] = epoch
            if getattr(i, "bar", False): epoch += 1
            w = getattr(i, "dma_wr", None) or getattr(i, "lds_pw", None); r = getattr(i, "lds_rd", None)
            touched = []
            u = w or r
            if u and u != ("X",):
                for p in ALIAS.get(u, [u]):
                    l = gens.setdefault(p, [])
                    if w and (not l or l[-1]["own"] != u or (l[-1]["rd0"] is not None and u not in ALIAS)):
                        l.append(dict(own=u, wr0=epoch, land=10**9, rd0=None, done=-1))
                    g = l[-1]
                    if r and g["rd0"] is None: g["rd0"] = epoch
                    if r or getattr(i, "lds_pw", None): g["done"] = 10**9
                    if getattr(i, "dma_wr", None): g["land"] = 10**9
                    touched.append(g)
            if i.kind == "ds": lg.append(touched)
            if getattr(i, "vm", False): vm.append(touched)
        allg.append((gens, epoch))
    assert len(set(e for _, e in allg)) == 1, "barrier counts differ"
    for p in allg[0][0]:
        n = len(allg[0][0][p])
        assert all(len(g[p]) == n and [x["own"] for x in g[p]] == [x["own"] for x in allg[0][0][p]] for g, _ in allg), ("generations differ", p)
        for k in range(n):
            G = [g[p][k] for g, _ in allg]
            if G[0]["own"] not in ALIAS and G[0]["rd0"] is not None:
                assert max(x["land"] for x in G) < min(x["rd0"] for x in G), ("cross RAW", p, k, G)
            if k + 1 < n:
                N = [g[p][k + 1] for g, _ in allg]
                assert max(x["done"] for x in G) < min(x["wr0"] for x in N), ("cross WAR", p, k, G, N)
                if G[0]["own"] != N[0]["own"] and any(x["land"] != 10**9 or x["rd0"] is not None for x in G) and G[0]["own"] != ("OS",):
                    assert max(x["land"] for x in G) < min(x["wr0"] for x in N), ("cross WAW", p, k, G, N)

THR = {}
HELP = {}
RANK = {}
HELPN = {}
def schedule_table(mode):
    tab = {}
    if mode == "simple":
        for wg in range(256):
            x = wg & 7; idx = wg >> 3
            head = x * 16 + (idx >> 1); base = 41 * (idx & 1)
            tab[wg] = [(head, base, 12), (head, base + 12, 16), (head, base + 28, 13)]
    elif mode == "share":
        for x in range(8):
            rounds = [[], [], []]
            def add(r, h, start, sizes):
                for sz in sizes:
                    rounds[r].append((x * 16 + h, start, sz)); start += sz
                return start
            for h in range(10):
                st = add(0, h, 0, [12, 12, 12]); add(1 if h < 6 else 2, h, st, [15, 15, 16])
            st = add(0, 10, 0, [12, 12]); st = add(1, 10, st, [15, 14]); add(2, 10, st, [15, 14])
            for h in range(11, 16):
                add(1 if h < 13 else 2, h, 0, [14, 14, 14, 14, 13, 13])
            assert all(len(r) == 32 for r in rounds), [len(r) for r in rounds]
            for idx in range(32):
                tab[idx * 8 + x] = [rounds[0][idx], rounds[1][idx], rounds[2][idx]]
    elif mode.startswith("g6"):
        orders = {"A": (0, 1, 2), "B": (1, 0, 2), "C": (2, 1, 0), "D": (2, 0, 1)}
        pat = mode.split("_")[1]
        rot = pat.startswith("x"); pat = pat.lstrip("x")
        for x in range(8):
            for g in range(6):
                o = orders[pat[(g + (x if rot else 0)) % len(pat)]] if not pat.startswith("X") else orders["ABC"[x % 3]]
                if g < 5:
                    ha, hb, hc = [x * 16 + 3 * g + i for i in range(3)]
                    r0 = [(ha, 0, 12), (ha, 12, 12), (ha, 24, 12), (hb, 0, 12), (hb, 12, 12), (hb, 24, 12)]
                    r1 = [(ha, 36, 15), (ha, 51, 15), (ha, 66, 16), (hb, 36, 15), (hb, 51, 15), (hb, 66, 16)]
                    r2 = [(hc, 0, 14), (hc, 14, 14), (hc, 28, 13), (hc, 41, 14), (hc, 55, 14), (hc, 69, 13)]
                    n = 6
                else:
                    h = x * 16 + 15
                    r0 = [(h, 0, 12), (h, 12, 12)]; r1 = [(h, 24, 15), (h, 39, 15)]; r2 = [(h, 54, 14), (h, 68, 14)]
                    n = 2
                R = [r0, r1, r2]
                for i in range(n):
                    tab[(6 * g + i) * 8 + x] = [R[o[0]][i], R[o[1]][i], R[o[2]][i]]
    elif mode.startswith("t3"):
        _, lo, so, th = mode.split("_")
        th = [int(x, 16) for x in th.split(".")]
        alt = mode.startswith("t3a")
        if alt:
            LS = [i for i in range(32) if not i & 4]; SS = [i for i in range(32) if i & 4]
        else:
            LS = [6 * g + i for g in range(5) for i in range(3)] + [30]; SS = [6 * g + 3 + i for g in range(5) for i in range(3)] + [31]
        for x in range(8):
            H = [x * 16 + i for i in range(16)]
            T3 = lambda h: [(h, 0, 12), (h, 12, 12), (h, 24, 12)]
            T4 = lambda h: [(h, 36, 16), (h, 52, 16), (h, 68, 14)]
            for g in range(5):
                a, b, c = H[3 * g], H[3 * g + 1], H[3 * g + 2]
                Lt = {"3": T3(a), "4": T4(a), "5": T4(b)[::-1]}
                St = {"3": T3(c), "2": T3(b), "4": T4(c)}
                lord = lo.split(".")[(g + x) % len(lo.split("."))]; sord = so.split(".")[(g + x) % len(so.split("."))]
                for i in range(3):
                    wl = LS[3 * g + i] * 8 + x; wsn = SS[3 * g + i] * 8 + x
                    tab[wl] = [Lt[k][i] for k in lord]
                    tab[wsn] = [St[k][i] for k in sord]
                    THR[wsn] = th[(g + x) % len(th)]
                    RANK[wl] = i; RANK[wsn] = i
                    h0, st0, _n = Lt[lord[0]][i]
                    HELP[wsn] = (h0 * SQ + st0 * 16) * 512
            h = H[15]
            tab[LS[15] * 8 + x] = [(h, 0, 12), (h, 36, 16), (h, 68, 14)]
            if alt:
                tab[SS[15] * 8 + x] = [(h, 52, 16), (h, 12, 12), (h, 24, 12)]
                THR[SS[15] * 8 + x] = th[0]; HELP[SS[15] * 8 + x] = h * SQ * 512
            else:
                tab[SS[15] * 8 + x] = [(h, 12, 12), (h, 52, 16), (h, 24, 12)]
    elif mode.startswith("t6"):
        _, lo, th = mode.split("_")
        th = [int(x, 16) for x in th.split(".")]
        LS = [i for i in range(32) if not i & 4]; SS = [i for i in range(32) if i & 4]
        for x in range(8):
            T3 = lambda h: [(h, 0, 12), (h, 12, 12), (h, 24, 12)]
            T4 = lambda h, r: [[(h, 36, 16), (h, 52, 16), (h, 68, 14)][(i + r) % 3] for i in range(3)]
            for g in range(5):
                pat = lo.split(".")[(g + x) % len(lo.split("."))]
                for i in range(3):
                    wl = LS[3 * g + i] * 8 + x; wsn = SS[3 * g + i] * 8 + x
                    tab[wl] = []; tab[wsn] = []
                    for r in range(3):
                        h = x * 16 + 3 * g + r
                        a, b = T3(h)[i], T4(h, r)[i]
                        tab[wl].append(a if pat[r] == "3" else b); tab[wsn].append(b if pat[r] == "3" else a)
                    THR[wsn] = th[(g + x) % len(th)]; RANK[wl] = i; RANK[wsn] = i
                    HELP[wsn] = (tab[wl][0][0] * SQ + tab[wl][0][1] * 16) * 512; HELPN[wsn] = tab[wl][0][2]
            h = x * 16 + 15; pat = lo.split(".")[0]
            i3 = [(h, 0, 12), (h, 12, 12), (h, 24, 12)]; i4 = [(h, 36, 16), (h, 52, 16), (h, 68, 14)]
            wl = LS[15] * 8 + x; wsn = SS[15] * 8 + x
            tab[wl] = [(i3 if pat[r] == "3" else i4)[r] for r in range(3)]
            tab[wsn] = [(i4 if pat[r] == "3" else i3)[r] for r in range(3)]
            THR[wsn] = th[0]; HELP[wsn] = (h * SQ + tab[wl][0][1] * 16) * 512; HELPN[wsn] = tab[wl][0][2]
    cov = {}
    for wg, l in tab.items():
        for h, st, n in l:
            assert 12 <= n <= 16
            for b in range(st, st + n):
                assert (h, b) not in cov; cov[(h, b)] = wg
    assert len(cov) == 128 * 82
    return tab

def setup_code():
    L = []; A = L.append
    if opt.diag or opt.padto: A("s_memrealtime s[100:101]")
    A("s_cmp_ge_u32 s2, 256")
    A("s_cbranch_scc1 L_exit")
    A("s_load_dwordx4 s[72:75], s[0:1], 0")
    A("s_load_dwordx4 s[76:79], s[0:1], 16")
    if opt.diag: A("s_load_dwordx2 s[64:65], s[0:1], 40")
    A("s_getpc_b64 s[4:5]")
    A("L_pc:")
    if opt.warm:
        A(f"s_mov_b32 {sC[0]}, s4\ns_mov_b32 {sC[1]}, s5\ns_mov_b32 {sC[2]}, L_warm_end-L_pc\ns_mov_b32 {sC[3]}, 0x20000\nv_lshlrev_b32 v16, 7, v0")
        for k in range(opt.warm): A(f"s_mov_b32 s3, {k * 32768}\nbuffer_load_dword v{17 + k}, v16, {sC}, s3 offen")
    A("s_lshl_b32 s3, s2, 6")
    A("s_add_u32 s3, s3, L_table-L_pc")
    A("s_add_u32 s46, s4, s3")
    A("s_addc_u32 s47, s5, 0")
    A("s_load_dwordx16 s[80:95], s[46:47], 0")
    A(f"v_readfirstlane_b32 {s_wave}, v0")
    A("v_and_b32 v10, 63, v0")
    A(f"s_lshr_b32 {s_wave}, {s_wave}, 6")
    A("v_and_b32 v11, 15, v10")
    A("v_lshrrev_b32 v14, 4, v10")
    A("v_lshrrev_b32 v15, 2, v11\nv_lshlrev_b32 v1, 11, v15\nv_and_b32 v6, 3, v11\nv_lshl_add_u32 v1, v6, 6, v1")
    A("v_lshrrev_b32 v6, 3, v11\nv_lshlrev_b32 v6, 1, v6\nv_xor_b32 v6, v6, v14\nv_lshl_add_u32 v1, v6, 4, v1")
    A("v_lshrrev_b32 v6, 1, v14\nv_lshlrev_b32 v2, 10, v6\nv_and_b32 v7, 1, v14\nv_lshl_add_u32 v6, v7, 2, v15\nv_lshl_add_u32 v2, v6, 6, v2")
    A(f"v_and_b32 v8, 3, v10\nv_lshl_add_u32 v2, v8, 3, v2\nv_lshl_add_u32 v2, v7, 5, v2\nv_add_u32 v2, {VB}, v2\nv_xor_b32 v3, 32, v2")
    A("v_lshlrev_b32 v12, 9, v15\nv_lshl_add_u32 v12, v14, 6, v12\nv_lshl_add_u32 v12, v8, 4, v12\nv_xor_b32 v13, 32, v12\nv_add_u32 v13, 4096, v13")
    A(f"s_lshl_b32 {s_mK}, {s_wave}, 11\ns_lshr_b32 s3, {s_wave}, 1\ns_lshl_b32 s3, s3, 5")
    A(f"v_xor_b32 v4, s3, v12\nv_add_u32 v4, {s_mK}, v4")
    A("v_lshrrev_b32 v6, 2, v10\nv_and_b32 v6, 7, v6\nv_lshlrev_b32 v5, 9, v6\nv_lshrrev_b32 v6, 2, v6\nv_lshlrev_b32 v6, 1, v6\nv_xor_b32 v6, v6, v8")
    A(f"v_lshl_add_u32 v5, v6, 4, v5\nv_lshrrev_b32 v6, 5, v10\nv_lshl_add_u32 v5, v6, 6, v5\ns_lshl_b32 s3, {s_wave}, 13\nv_add_u32 v5, s3, v5")
    A(f"s_add_u32 {s_mX}, s3, {XB}")
    A(f"s_add_u32 {s_mOS}, s3, {vslot_addr(1, 0)}")
    A(f"s_add_u32 {s_mR2}, s3, {vslot_addr(0, 0)}")
    A(f"s_cmp_eq_u32 {s_wave}, 0\ns_cselect_b32 {s_mR2}, {kslot_addr(7)}, {s_mR2}")
    A(f"s_add_u32 {s_mR3}, s3, {kslot_addr(4)}")
    A(f"s_cmp_eq_u32 {s_wave}, 3\ns_cselect_b32 {s_mR3}, {vslot_addr(0, 0)}, {s_mR3}")
    A("v_lshrrev_b32 v6, 1, v14\nv_lshrrev_b32 v9, 1, v11\nv_xor_b32 v6, v6, v9\nv_lshlrev_b32 v6, 3, v6\nv_lshl_add_u32 v6, v7, 12, v6")
    A(f"v_lshl_add_u32 v6, v11, 6, v6\nv_add_u32 v15, {s_mOS}, v6")
    A("v_lshrrev_b32 v6, 3, v10\nv_and_b32 v9, 7, v10\nv_xor_b32 v9, v9, v14\nv_lshlrev_b32 v9, 4, v9\nv_lshl_add_u32 v14, v6, 9, v9")
    A(f"s_mov_b32 {s_c}, {C_SCALE:#x}\ns_mov_b32 {s_pass}, 0\ns_mov_b32 {s_flags}, 0")
    if opt.diag: A(f"s_mov_b32 {s_tsp}, 1\nv_mov_b32 v0, 0")
    A("s_waitcnt lgkmcnt(0)")
    if opt.diag:
        A("v_writelane_b32 v0, s100, 0")
        A("s_getreg_b32 s100, hwreg(HW_REG_HW_ID)\ns_getreg_b32 s101, hwreg(HW_REG_XCC_ID)\ns_nop 1\nv_writelane_b32 v0, s100, 30\nv_writelane_b32 v0, s101, 31")
    for srd, p, n in ((sQ, 72, QBYTES), (sK, 74, KBYTES), (sV, 76, KBYTES), (sO, 78, QBYTES)):
        A(f"s_mov_b32 {srd[0]}, s{p}\ns_mov_b32 {srd[1]}, s{p+1}\ns_mov_b32 {srd[2]}, {n}\ns_mov_b32 {srd[3]}, 0x20000")
    for k in range(8): A(f"s_mov_b32 {s_ok[k]}, {OOB:#x}")
    for p in range(3):
        A(f"s_sub_u32 s3, s{80+3*p+2}, 12")
        A(f"s_min_u32 s4, s3, {s_wave}")
        A(f"s_mul_i32 s5, {s_wave}, 3\ns_add_u32 s4, s4, s5\ns_lshl_b32 s4, s4, 13")
        A(f"s_add_u32 {s_tab[4*p]}, s{80+3*p}, s4")
        A(f"s_mov_b32 {s_tab[4*p+1]}, s{80+3*p+1}")
        A(f"s_add_u32 {s_tab[4*p+3]}, {s_tab[4*p]}, 24576")
        A(f"s_cmp_lt_u32 {s_wave}, s3\ns_cselect_b32 {s_tab[4*p+2]}, 4, 3\ns_cselect_b32 {s_tab[4*p+3]}, {s_tab[4*p+3]}, {OOB:#x}")
    A(f"s_mov_b32 {s_tab[12]}, {OOB:#x}\ns_mov_b32 {s_tab[13]}, {OOB:#x}\ns_mov_b32 {s_tab[14]}, 0\ns_mov_b32 {s_tab[15]}, {OOB:#x}")
    A(f"s_lshl_b32 s3, s91, 2\ns_add_u32 s3, s3, {s_wave}\ns_mul_i32 {s_str}, s3, {opt.tstride}")
    A(f"s_cmp_eq_u32 s90, {OOB:#x}\ns_cselect_b32 {s_str}, 0x40000000, {s_str}")
    A(f"s_lshr_b32 s3, s2, 1\ns_and_b32 s3, s3, 28\ns_add_u32 s3, s3, {s_wave}\ns_lshl_b32 {s_cs}, s3, 11")
    for p in range(3):
        for k in range(3): A(f"s_mov_b32 s{80+3*p+k}, {s_tab[4*p+k]}")
    return L

def startup():
    P = {}
    r = [sop(f"s_mov_b32 {s_kptr}, {s_tab[1]}", wr=[s_kptr]), sop(f"s_sub_u32 {s_vptr}, {s_tab[1]}, 32768", wr=[s_vptr])]
    r += dma_K(1) + dma_K(2) + dma_K(3)
    r += [sop(f"s_add_u32 {s_t0}, {s_tab[0]}, 8192", wr=[s_t0]), sop(f"s_add_u32 {s_t1}, {s_tab[0]}, 16384", wr=[s_t1]),
          sop(f"s_add_u32 {s_t2}, {s_tab[0]}, 24576", wr=[s_t2])]
    r += [sop(f"s_cmp_eq_u32 s90, {OOB:#x}"), raw("s_cbranch_scc1 L_nohelp")]
    P["a"] = r
    late = lambda: dma_K(4) + dma_K(5) + dma_K(6) + dma_V(0, 0)
    r = late() if opt.late else []
    r += [sop("s_sub_u32 s4, s92, 12"), sop(f"s_add_u32 s5, {s_wave}, 1"), sop("s_min_u32 s4, s4, s5"), sop("s_mul_i32 s5, s5, 3"),
          sop("s_add_u32 s4, s4, s5"), sop("s_lshl_b32 s3, s4, 13"), sop(f"s_add_u32 s3, s3, s90"), sop(f"s_sub_u32 s3, s3, {1024 * opt.help_n}"),
          valu("v_lshlrev_b32", vt1, 4, vt0)]
    hl = []
    for k in range(opt.help_n):
        if k and k % 4 == 0: hl.append(sop("s_add_u32 s3, s3, 4096"))
        i = Ins(f"buffer_load_dwordx4 {V(96 + 4 * k, 4)}, {vt1}, {sQ}, s3 offen offset:{(k % 4) * 1024}", "vmem", rd=[vt1]); i.vm = True
        hl.append(i)
    if opt.late == 2: r = r[-9:] + hl + r[:-9]
    else: r += hl
    P["h"] = r
    r = []; k = 0
    for grp in (dma_Q(s_mX, s_tab[0], ("X",)), dma_Q(s_mR2, s_t0, ("R2",)), dma_Q(s_mOS, s_t1, ("OS",))):
        for hf in (grp[:6], grp[6:]):
            r += hf
            if not opt.sched.endswith("_0"):
                r += [sop(f"s_bitcmp1_b32 s89, {k}"), raw(f"s_cbranch_scc0 L_th{k}"), raw("s_waitcnt vmcnt(0)"), label(f"L_th{k}")]
            k += 1
    if not opt.late: r += late()
    st5 = (lambda: stamp(9)) if opt.diag == 5 else (lambda: [])
    r += st5() + [vwait([("X",)])] + st5() + q_reads(0, s_mX, ("X",), vt0)
    r += [sop(f"s_cmp_lt_u32 {s_tab[2]}, 4"), raw("s_cbranch_scc1 L_noq3")]
    P["q"] = r
    r2 = [waitcnt(None, 0)] + dma_Q(s_mX, s_t2, ("X",))
    r2 += [vwait([("R2",)])] + st5() + q_reads(1, s_mR2, ("R2",), vt1) + [vwait([("OS",)])] + st5() + q_reads(2, s_mOS, ("OS",), vt0)
    r2 += [vwait([("X",)])] + q_reads(3, s_mX, ("X",), vt1) + [raw("s_branch L_q3done")]
    P["r2"] = r2
    P["r3"] = [vwait([("R2",)])] + st5() + q_reads(1, s_mR2, ("R2",), vt1) + [vwait([("OS",)])] + st5() + q_reads(2, s_mOS, ("OS",), vt0)
    P["lc"] = [sop(f"s_cmp_lg_u32 s90, {OOB:#x}"), raw("s_cbranch_scc1 L_first")] if opt.late else []
    P["l"] = late() if opt.late else []
    return {k: fix_hazards(lin(v)[0]) for k, v in P.items()}

def pass_begin():
    T2 = lambda k: S(s_tab.n + k, 2)
    r = [sop(f"s_mov_b32 {s_ocur}, {s_tab[0]}"),
         sop(f"s_add_u32 {s_kend}, {s_tab[1]}, 262144"),
         sop(f"s_mov_b32 {s_nbn}, {s_tab[2]}"),
         sop(f"s_mov_b32 {s_knext}, {s_tab[5]}"),
         sop(f"s_mov_b32 {s_xq}, {s_tab[4]}"),
         sop(f"s_add_u32 {s_qn[1]}, {s_tab[4]}, 8192"), sop(f"s_add_u32 {s_qn[2]}, {s_tab[4]}, 16384"),
         sop(f"s_mov_b32 {s_qn[3]}, {s_tab[7]}")]
    for k in range(0, 12, 2): r.append(sop(f"s_mov_b64 {T2(k)}, {T2(k + 4)}"))
    r += [sop(f"s_mov_b32 {s_cnt}, 3"), sop(f"s_mov_b32 {s_tq}, {s_qn[2]}"),
          sop(f"s_add_u32 {s_tv}, {s_str}, {s_knext}"), sop(f"s_add_u32 {s_tk}, {s_tv}, {opt.tkoff}"),
          sop(f"s_mov_b32 {s_xm}, {s_mX}")]
    return r

def repair_code():
    rQ = lambda k: V(96 + 4 * k, 4); rK = lambda k: V(128 + 4 * k, 4); rS = lambda k: V(32 + 4 * k, 4)
    rO = lambda k: V(160 + 4 * k, 4); rV = lambda k: V(224 + 4 * k, 4)
    m, l, ta, tb, al, nm = V(6), V(7), V(8), V(9), V(10), V(11)
    fa, va0, va1, vop, so = V(48), V(49), V(50), V(51), V(52)
    sp, sb, sj, sq, sk, sv = S(90), S(91), S(92), S(93), S(94), S(95)
    def gload(d, srd, soff, imm):
        return Ins(f"buffer_load_dwordx4 {d}, {fa}, {srd}, {soff} offen offset:{imm}", "vmem", rd=[fa, srd, soff], wr=[d])
    W = lambda t: raw(t, "wait")
    out = []
    pre = [W("s_waitcnt vmcnt(0) lgkmcnt(0)"),
           valu("v_mbcnt_lo_u32_b32", ta, -1, 0), valu("v_mbcnt_hi_u32_b32", ta, -1, ta),
           valu("v_and_b32", tb, 15, ta), valu("v_lshrrev_b32", ta, 4, ta),
           valu("v_lshlrev_b32", fa, 9, tb), valu("v_lshl_add_u32", so, ta, 3, fa), valu("v_lshl_add_u32", fa, ta, 4, fa),
           sop(f"s_sub_u32 {s_t0}, {s_mX}, {VB}"), valu("v_add_u32", va0, s_t0, vaddr0), valu("v_add_u32", va1, s_t0, vaddr1),
           sop(f"s_lshl_b32 {s_t0}, {s_wave}, 13"), valu("v_subrev_u32", vop, s_t0, voV),
           sop(f"s_mov_b32 {sp}, 0")]
    out += fix_hazards(pre)
    out += [label("L_rp"), sop(f"s_bitcmp1_b32 {s_flags}, {sp}"), raw("s_cbranch_scc0 L_rp_next"), sop(f"s_mov_b32 {sb}, 0"), label("L_rb")]
    blk = [sop(f"s_lshl_b32 {sq}, {sb}, 13"), sop(f"s_add_u32 {sq}, {sq}, s80")]
    blk += [gload(rQ(k), sQ, sq, k * 64) for k in range(8)]
    blk += [valu("v_mov_b32", m, "0xff800000"), valu("v_mov_b32", l, 0)]
    blk += [valu("v_mov_b32", V(160 + k), 0) for k in range(64)]
    blk += [sop(f"s_mov_b32 {sk}, s81"), sop(f"s_mov_b32 {sv}, s81"), sop(f"s_mov_b32 {sj}, 0")]
    out += fix_hazards(blk) + [label("L_rj")]
    it = []
    for kvb in range(4):
        it += [gload(rK(k), sK, sk, k * 64) for k in range(8)] + [sop(f"s_add_u32 {sk}, {sk}, 8192"), W("s_waitcnt vmcnt(0)")]
        it += [mfma(rS(kvb), rK(k), rQ(k), rS(kvb) if k else 0) for k in range(8)]
    xs = [V(32 + k) for k in range(16)]
    it += [valu("v_max3_f32", ta, m, xs[0], xs[1])]
    it += [valu("v_max3_f32", ta, ta, xs[k], xs[k + 1]) for k in range(2, 16, 2)]
    it += [valu("v_mov_b32", tb, ta), perm("v_permlane16_swap_b32", ta, tb), valu("v_max_f32", ta, ta, tb),
           valu("v_mov_b32", tb, ta), perm("v_permlane32_swap_b32", ta, tb), valu("v_max_f32", ta, ta, tb),
           valu("v_sub_f32", al, m, ta), valu("v_mul_f32", al, s_c, al), valu("v_exp_f32", al, al), valu("v_mov_b32", m, ta)]
    it += [valu("v_sub_f32", x, x, m) for x in xs] + [valu("v_mul_f32", x, s_c, x) for x in xs] + [valu("v_exp_f32", x, x) for x in xs]
    it += [valu("v_mul_f32", l, l, al)] + [valu("v_add_f32", l, l, x) for x in xs]
    it += [valu("v_mul_f32", V(160 + k), V(160 + k), al) for k in range(64)]
    Pf = lambda ks: V(16 + 4 * ks, 4)
    for ks in range(2):
        for j in range(4): it.append(valu("v_cvt_pk_bf16_f32", Pf(ks)[j], xs[8 * ks + 2 * j], xs[8 * ks + 2 * j + 1]))
    for c in range(4):
        for j in range(8):
            it += [sop(f"s_add_u32 {s_t0}, {sv}, {j * 4096 + c * 128}", wr=[s_t0]), set_m0(s_mX, j * 1024), dma(vop, sV, s_t0, 0, None, "")]
        it += [W("s_waitcnt vmcnt(0)")]
        for dbl in range(4):
            for ks in range(2):
                for j4 in range(2):
                    it.append(ds_read("ds_read_b64_tr_b16", rV(2 * dbl + ks).sub(2 * j4, 2), va1 if dbl & 1 else va0, ks * 4096 + (dbl >> 1) * 512 + j4 * 2048))
        it += [W("s_waitcnt lgkmcnt(0)")]
        for dbl in range(4):
            for ks in range(2): it.append(mfma(rO(4 * c + dbl), rV(2 * dbl + ks), Pf(ks), rO(4 * c + dbl)))
    it += [nop(9), sop(f"s_add_u32 {sv}, {sv}, 32768"), sop(f"s_add_u32 {sj}, {sj}, 1"), sop(f"s_cmp_lt_u32 {sj}, 8"), raw("s_cbranch_scc1 L_rj")]
    out += fix_hazards(it)
    fin = [valu("v_mov_b32", tb, l), perm("v_permlane16_swap_b32", l, tb), valu("v_add_f32", l, l, tb),
           valu("v_mov_b32", tb, l), perm("v_permlane32_swap_b32", l, tb), valu("v_add_f32", l, l, tb), valu("v_rcp_f32", al, l)]
    for db in range(16):
        o = rO(db)
        fin += [valu("v_mul_f32", o[i], o[i], al) for i in range(4)]
        fin += [valu("v_cvt_pk_bf16_f32", o[0], o[0], o[1]), valu("v_cvt_pk_bf16_f32", o[1], o[2], o[3])]
        fin.append(Ins(f"buffer_store_dwordx2 {o.sub(0, 2)}, {so}, {sO}, {sq} offen offset:{db * 32}", "vmem", rd=[o.sub(0, 2), so, sO, sq]))
    fin += [W("s_waitcnt vmcnt(0)"), sop(f"s_add_u32 {sb}, {sb}, 1"), sop(f"s_cmp_lt_u32 {sb}, s82"), raw("s_cbranch_scc1 L_rb")]
    out += fix_hazards(fin)
    out += [label("L_rp_next")]
    out += [sop(f"s_mov_b32 s{80 + k}, s{83 + k}") for k in range(6)]
    out += [sop(f"s_add_u32 {sp}, {sp}, 1"), sop(f"s_cmp_lt_u32 {sp}, 3"), raw("s_cbranch_scc1 L_rp")]
    return out

def main():
    ap = argparse.ArgumentParser()
    ap.add_argument("-o", default="standalone__mha_softmax__near_ridge.s")
    ap.add_argument("--diag", type=int, default=0)
    ap.add_argument("--kvmod", default="")
    ap.add_argument("--qmod", default="nt")
    ap.add_argument("--omod", default="")
    ap.add_argument("--sched", default="t6_344_0")
    ap.add_argument("--pkmul", type=int, default=1)
    ap.add_argument("--rep", type=int, default=1)
    ap.add_argument("--twhen", type=int, default=2)
    ap.add_argument("--tkoff", type=int, default=24576)
    ap.add_argument("--cwarm", type=int, default=1)
    ap.add_argument("--late", type=int, default=1)
    ap.add_argument("--al8", type=int, default=0)
    ap.add_argument("--tstride", type=int, default=2048)
    ap.add_argument("--tstep", type=int, default=24576)
    ap.add_argument("--barlag", type=int, default=3)
    ap.add_argument("--epi_rd", type=int, default=1)
    ap.add_argument("--abl", type=int, default=0)
    ap.add_argument("--help_n", type=int, default=16)
    ap.add_argument("--omod3", default="")
    ap.add_argument("--omod4", default="")
    ap.add_argument("--wb", type=int, default=0)
    ap.add_argument("--nostore", type=int, default=0)
    ap.add_argument("--ca7", type=int, default=0)
    ap.add_argument("--show", type=int, default=0)
    ap.add_argument("--spread", type=int, default=1)
    ap.add_argument("--touch", type=int, default=2)
    ap.add_argument("--force", type=int, default=0)
    ap.add_argument("--padto", type=int, default=0)
    ap.add_argument("--defer", type=int, default=0)
    ap.add_argument("--warm", type=int, default=2)
    a = ap.parse_args()
    opt.__dict__.update(vars(a)); opt.nextq = 1
    L = []; A = L.append
    hdr = open("standalone__mha_softmax__near_ridge.s.ref").read().split("\n")
    for l in hdr:
        if l.startswith("; @launch"): break
        A(l)
    A(f"; @launch grid=(256,1,1) block=(256,1,1) lds={LDS_BYTES}")
    A('.amdgcn_target "amdgcn-amd-amdhsa--gfx950"')
    A(f".text\n.globl {KNAME}\n.p2align 8\n.type {KNAME},@function\n{KNAME}:")
    L += setup_code()
    def emit(seq):
        for i in seq: L.append(i)
    if opt.rep > 1: A(f"s_mov_b32 s98, {opt.rep}\nL_again:")
    emit(stamp(0))
    SU = startup()
    emit(SU["a"]); emit(SU["h"]); A("L_nohelp:"); emit(SU["q"]); emit(SU["r2"]); A("L_noq3:"); emit(SU["r3"]); A("L_q3done:")
    emit(SU["lc"]); emit(SU["l"])
    A("L_first:")
    s4 = pass_begin() + [waitcnt(None, 0), barrier()] + head_reads()
    s4 = fix_hazards(s4 + sum([dma_V(0, 1), dma_V(0, 2), dma_V(0, 3), dma_K(7)][:opt.ca7], []))
    emit(s4)
    A("L_pass:")
    pb = [waitcnt(None, 0), barrier()]
    emit(pb)
    emit(stamp(1))
    A(f"s_cmp_eq_u32 {s_nbn}, 3\ns_cbranch_scc1 L_v3")
    VAR = {}
    for nb in (4, 3):
        P = variant(nb)
        hd = fix_hazards(P["hd"])
        b1 = fix_hazards(P["i1"], wrap=hd[-14:])
        b2 = fix_hazards(P["i2"], wrap=b1[-14:])
        b1b = fix_hazards(P["i1"], wrap=b2[-14:])
        assert [x.text for x in b1b] == [x.text for x in b1], "loop entry hazards differ"
        i6 = fix_hazards(P["i6"], wrap=b1[-14:])
        i7 = fix_hazards(P["i7"], wrap=i6[-14:])
        epi = fix_hazards(P["epi"], wrap=i7[-14:])
        VAR[nb] = dict(hd=hd, b1=b1, b2=b2, i6=i6, i7=i7, epi=epi)
        if opt.al8:
            for k in ("hd", "b1", "b2", "i6", "i7"): align8(VAR[nb][k])
        nn = sum(1 for p in VAR[nb].values() for x in p if x.kind == "nop")
        print(f"nb={nb}: sizes", {k: len(v) for k, v in VAR[nb].items()}, "nops", nn, file=sys.stderr)
        A(".p2align 6"); A(f"L_v{nb}:")
        emit(hd)
        emit(stamp(2))
        if opt.diag == 3:
            for k in range(3):
                A(f"s_sub_u32 s66, s{92+4*k}, s{90+4*k}\ns_mul_i32 s67, {s_pass}, 3\ns_add_u32 m0, s67, {20+k}\ns_nop 1\nv_writelane_b32 v0, s66, m0")
        if opt.al8: A(f".p2align {opt.al8}")
        A(f"L_loop{nb}:")
        emit(b1); A(f"s_cbranch_scc1 L_i6_{nb}")
        if opt.al8: A(".p2align 3")
        emit(b2); A(f"s_branch L_loop{nb}")
        if opt.al8: A(f".p2align {opt.al8}")
        A(f"L_i6_{nb}:")
        if opt.diag == 4: emit(stamp(9))
        if opt.al8: A(".p2align 3")
        emit(i6)
        if opt.diag == 4: emit(stamp(9))
        if opt.al8: A(".p2align 3")
        emit(i7)
        emit(stamp(3))
        emit(epi)
        emit(stamp(4))
        A(f"s_add_u32 {s_pass}, {s_pass}, 1\ns_cmp_lt_u32 {s_pass}, 3\ns_cbranch_scc1 L_pass\ns_branch L_done")
    tail = [waitcnt(None, 0)] + [store(c, k) for c in range(4 - opt.defer, 4) for k in range(8)]
    traces = []
    import itertools
    for seqnb in itertools.product((3, 4), (3, 4), (3, 4), (0, 1)):
        hp = seqnb[3]; seqnb = seqnb[:3]
        tr = SU["a"] + (SU["h"] if hp else []) + SU["q"] + SU["r2" if seqnb[0] == 4 else "r3"] + ([] if hp else SU["l"]) + s4
        for nb in seqnb:
            v = VAR[nb]
            tr = tr + pb + v["hd"] + (v["b1"] + v["b2"]) * 2 + v["b1"] + v["i6"] + v["i7"] + v["epi"]
        traces.append(tr + tail)
    resolve_vm(traces)
    for tr in traces:
        errs = check_trace(tr)
        if errs and not opt.abl:
            for e in errs[:20]: print("SYNC ERR", e, file=sys.stderr)
            raise SystemExit(1)
    if not opt.abl: cross_check(traces)
    A("L_done:")
    emit(tail)
    if opt.force: A(f"s_mov_b32 {s_flags}, {opt.force}")
    A(f"s_cmp_lg_u32 {s_flags}, 0\ns_cbranch_scc1 L_repair\nL_fin:")
    if opt.rep > 1:
        A("s_waitcnt vmcnt(0) lgkmcnt(0)\ns_barrier")
        raise SystemExit("rep unsupported now")
        A(f"s_mov_b32 {s_pass}, 0\ns_sub_u32 s98, s98, 1\ns_cmp_lg_u32 s98, 0\ns_cbranch_scc1 L_again")
    if opt.diag:
        A("s_waitcnt vmcnt(0)")
        emit(stamp(5))
        A(f"s_mov_b32 s66, 0x1000000\ns_mov_b32 s67, 0x20000")
        A(f"v_mbcnt_lo_u32_b32 v1, -1, 0\nv_mbcnt_hi_u32_b32 v1, -1, v1\nv_lshlrev_b32 v1, 2, v1")
        A(f"s_lshl_b32 s3, s2, 10\ns_lshl_b32 s4, {s_wave}, 8\ns_add_u32 s3, s3, s4")
        A("buffer_store_dword v0, v1, s[64:67], s3 offen")
        if opt.diag == 2:
            A(f"s_or_b32 s3, s2, {s_wave}\ns_cmp_lg_u32 s3, 0\ns_cbranch_scc1 L_exit")
            A("s_load_dwordx2 s[64:65], s[0:1], 32\ns_mov_b32 s66, 256\nv_readlane_b32 s4, v0, 0\nv_readlane_b32 s5, v0, 32\ns_waitcnt lgkmcnt(0)")
            idx = [2, 3, 4, 6, 8, 10, 12, 14]
            for j, k in enumerate(idx):
                A(f"v_readlane_b32 s6, v0, {k}\nv_readlane_b32 s7, v0, {k+32}\ns_sub_u32 s6, s6, s4\ns_sub_u32 s7, s7, s5\ns_nop 1\nv_writelane_b32 v2, s6, {j}\nv_writelane_b32 v2, s7, {j+8}")
            A("s_mov_b64 exec, 0xffff\nbuffer_store_dword v2, v1, s[64:67], 0 offen")
    if opt.wb == 1:
        A(f"s_cmp_lg_u32 {s_wave}, 0\ns_cbranch_scc1 L_exit\ns_waitcnt vmcnt(0)\nbuffer_wbl2 sc1\ns_waitcnt vmcnt(0)")
    if opt.wb == 2:
        A(f"s_cmp_lg_u32 {s_wave}, 0\ns_cbranch_scc1 L_exit\ns_cmp_eq_u32 s89, 0\ns_cbranch_scc1 L_exit\ns_waitcnt vmcnt(0)\nbuffer_wbl2 sc1\ns_waitcnt vmcnt(0)")
    if opt.wb == 3:
        A(f"s_waitcnt vmcnt(0)\nbuffer_wbl2 sc1")
    if opt.padto:
        A(f"s_waitcnt vmcnt(0)\nL_spin:\ns_memrealtime s[96:97]\ns_waitcnt lgkmcnt(0)\ns_sub_u32 s96, s96, s98\ns_cmp_lt_u32 s96, {opt.padto}\ns_cbranch_scc1 L_spin")
    A("L_exit:")
    A("s_endpgm")
    A("L_warm_end:")
    A("L_repair:")
    emit(repair_code())
    A("s_branch L_fin")
    A(".p2align 6\n.type L_table,@object\nL_table:")
    tab = schedule_table(opt.sched)
    for wg in range(256):
        w = []
        for h, st, n in tab[wg]:
            w += [(h * SQ + st * 16) * 512, h * SK * 512, n]
        w += [THR.get(wg, 0), HELP.get(wg, OOB), RANK.get(wg, 0), HELPN.get(wg, 12)]
        w += [0] * (16 - len(w))
        A(".long " + ", ".join(str(x) for x in w))
    A(".size L_table, 16384")
    A('.section .rodata,"a"\n.p2align 6')
    A(f".amdhsa_kernel {KNAME}")
    A("  .amdhsa_next_free_vgpr 512\n  .amdhsa_next_free_sgpr 102\n  .amdhsa_accum_offset 256\n  .amdhsa_group_segment_fixed_size 0")
    A("  .amdhsa_kernarg_size 48\n  .amdhsa_user_sgpr_count 2\n  .amdhsa_user_sgpr_kernarg_segment_ptr 1\n  .amdhsa_system_sgpr_workgroup_id_x 1")
    A(".end_amdhsa_kernel")
    open(opt.o, "w").write("\n".join((x if isinstance(x, str) else x.text) for x in L if x is not None) + "\n")

if __name__ == "__main__":
    main()
```

```python
import sys, argparse
from asmlib import *

KNAME = "standalone__mha_softmax__near_ridge_kernel"
NH, SQ, SK, D = 128, 1312, 512, 256
QBYTES = NH * SQ * D * 2
KBYTES = NH * SK * D * 2
OOB = 0x7fff0000
VB = 65536
XB = 131072
LDS_BYTES = 163840
C_SCALE = 0x3db8aa3b
L_LIMIT = 0x4e800000

sQ, sK, sV, sO = S(8, 4), S(12, 4), S(16, 4), S(20, 4)
s_wave = S(24)
s_mK = S(25)
s_mX = S(26)
s_mR2 = S(27)
s_mOS = S(28)
s_kptr, s_kend, s_knext = S(29), S(30), S(31)
s_vptr, s_vptr2, s_vend = S(32), S(33), S(34)
s_c = S(35)
s_cnt = S(36)
s_pass = S(37)
s_flags = S(38)
s_qn = [S(40), S(41), S(42), S(43)]
s_ocur = S(44)
s_t0, s_t1, s_t2 = S(45), S(46), S(47)
s_tab = S(48, 16)
s_dbg = S(64, 4)
s_ts = S(68, 2)
s_nbn = S(70)
s_tsp = S(71)
s_mR3 = S(39)
s_tq, s_tk, s_tv, s_xm, s_xq = S(90), S(91), S(92), S(93), S(94)
sC = S(96, 4)
s_cs = S(95)
s_str = S(34)
s_ok = [S(72 + k) for k in range(8)]
kaddr, vaddr0, vaddr1, voK, voV = V(1), V(2), V(3), V(4), V(5)
lsum = lambda b: V(6 + b)
vt0, vt1 = V(10), V(11)
voQa, voQb = V(12), V(13)
vsto, wa0 = V(14), V(15)
Ct = lambda b: V(16 + 4 * b, 4)
SET = lambda i: V(32 + 16 * i, 16)
Sx = lambda i, b: SET(i).sub(4 * b, 4)
Q = lambda b, s: AG(b * 32 + s * 4, 4)
NF = 8
F = lambda i: AG(128 + 4 * (i % NF), 4)
def O(b, db):
    t = db * 4 + b
    return V(96 + 4 * t, 4) if t < 40 else AG(160 + 4 * (t - 40), 4)

M0 = ('m0', 0)
def set_m0(base, off):
    i = salu(f"s_add_u32 m0, {base}, {off}", rd=[base]); i.wr = {M0}; return i
def sop(text, rd=(), wr=()): return salu(text, rd=rd, wr=wr)

class Opt: pass
opt = Opt()

def dma(vo, srd, soff, imm, unit, mods):
    i = Ins(f"buffer_load_dwordx4 {vo}, {srd}, {soff} offen offset:{imm} {mods} lds".replace("  ", " "), "vmem", rd=[vo, srd, soff])
    i.rd.add(M0); i.dma_wr = unit; i.vm = True
    return i

def kslot_addr(slot): return slot * 8192
def vslot_addr(par, c): return VB + (par * 4 + c) * 8192

def dma_K(slot, wrap=False):
    r = []
    for dh in range(2):
        r.append(set_m0(s_mK, kslot_addr(slot) + dh * 768))
        r.append(dma(voK, sK, s_kptr, dh * 256, ("K", slot), opt.kvmod))
    r.append(sop(f"s_add_u32 {s_kptr}, {s_kptr}, 8192", rd=[s_kptr], wr=[s_kptr]))
    if wrap:
        r.append(sop(f"s_cmp_eq_u32 {s_kptr}, {s_kend}", rd=[s_kptr, s_kend]))
        r[-1].glue = True
        r.append(sop(f"s_cselect_b32 {s_kptr}, {s_knext}, {s_kptr}", rd=[s_kptr, s_knext], wr=[s_kptr]))
    return r

def dma_V(par, c, wrap=False):
    r = []
    if c == 0:
        r.append(sop(f"s_add_u32 {s_vptr}, {s_vptr}, 32768", rd=[s_vptr], wr=[s_vptr]))
        if wrap:
            r.append(sop(f"s_cmp_eq_u32 {s_vptr}, {s_vend}", rd=[s_vptr, s_vend]))
            r[-1].glue = True
            r.append(sop(f"s_cselect_b32 {s_vptr}, {s_knext}, {s_vptr}", rd=[s_vptr, s_knext], wr=[s_vptr]))
        r.append(sop(f"s_add_u32 {s_vptr2}, {s_vptr}, 4096", rd=[s_vptr], wr=[s_vptr2]))
    for e in range(2):
        r.append(set_m0(s_mK, vslot_addr(par, c) + e * 1024 - c * 128))
        r.append(dma(voV, sV, s_vptr2 if e else s_vptr, c * 128, ("V", par, c), opt.kvmod))
    return r

def dma_Q(base, soff, unit):
    r = []
    for hi in range(2):
        for dh in range(2):
            r.append(set_m0(base, hi * 4096 + dh * 768))
            for Rl in range(2):
                r.append(dma(voQb if hi else voQa, sQ, soff, Rl * 2048 + dh * 256, unit, opt.qmod))
    return r

def q_reads(b, base_sgpr, unit, tmp):
    r = [valu("v_add_u32", tmp, base_sgpr, kaddr)]
    for s in range(8):
        i = ds_read("ds_read_b128", Q(b, s), tmp, s * 256, tag=("q", b, s)); i.lds_rd = unit; i.private = True
        r.append(i)
    return r

def waitcnt(vm=None, lgkm=None):
    t = "s_waitcnt" + (f" vmcnt({vm})" if vm is not None else "") + (f" lgkmcnt({lgkm})" if lgkm is not None else "")
    i = raw(t, "wait"); i.vmw = vm; i.lgw = lgkm
    return i
def vwait(units, lgkm=None):
    i = raw("s_waitcnt ?", "wait"); i.vmneed = list(units); i.vmw = None; i.lgw = lgkm; i.vmauto = 63
    return i
def barrier():
    i = raw("s_barrier", "misc"); i.bar = True; return i

class Seg:
    def __init__(self, nb, name):
        self.nb = nb; self.name = name
        self.mf = []; self.nodes = []
        self.pairs = []
        self.blk = {}
        self.fixed = {}
        self.done = {}
        self.first = {}

    def qblock(self, name, slot, dst, czero, fbase):
        nb = self.nb; st = len(self.mf)
        for sp in range(4):
            p0 = len(self.mf)
            tags = [("f", self.name, name, 2 * sp + e) for e in range(2)]
            for b in range(nb):
                for e in range(2):
                    s = 2 * sp + e
                    d = Sx(dst, b)
                    c = d if s else (0 if czero else Ct(b))
                    self.mf.append(mfma(d, F(fbase + s), Q(b, s), c, need=tags))
                    self.done[(name, b)] = len(self.mf) - 1
            rd = []
            for e in range(2):
                s = 2 * sp + e
                i = ds_read("ds_read_b128", F(fbase + s), kaddr, kslot_addr(slot) + s * 256, tag=tags[e]); i.lds_rd = ("K", slot)
                rd.append(i)
            self.pairs.append((p0, len(self.mf) - 1, rd))
        self.blk[name] = (st, len(self.mf))

    def pblock(self, name, par, c, x0, x1, czero, fbase):
        self.pgen(name, par, [[(c, dbl, 0), (c, dbl, 1)] for dbl in range(4)], x0, x1, czero)

    def pgen(self, name, par, prs, x0, x1, czero):
        nb = self.nb; st = len(self.mf)
        for pi, pr in enumerate(prs):
            p0 = len(self.mf)
            fb = 2 * len(self.pairs)
            tags = [("f", self.name, name, 2 * pi + e) for e in range(2)]
            for b in range(nb):
                for e, (c, dbl, ks) in enumerate(pr):
                    o = O(b, 4 * c + dbl)
                    cc = 0 if (czero and ks == 0) else o
                    self.first.setdefault(("P", ks, b), len(self.mf))
                    self.first.setdefault(("O", c), len(self.mf))
                    if opt.abl & 512: self.mf.append(mfma(o, Sx(x1 if ks else x0, b), F(fb + e), cc, need=tags))
                    else: self.mf.append(mfma(o, F(fb + e), Sx(x1 if ks else x0, b), cc, need=tags))
            rd = []
            for e, (c, dbl, ks) in enumerate(pr):
                f = F(fb + e)
                va = vaddr1 if (dbl & 1) else vaddr0
                off = vslot_addr(par, c) - VB + ks * 4096 + (dbl >> 1) * 512
                for j4 in range(2):
                    i = ds_read("ds_read_b64_tr_b16", f.sub(2 * j4, 2), va, off + j4 * 2048, tag=tags[e] if j4 else ("x",))
                    i.lds_rd = ("V", par, c)
                    rd.append(i)
            self.pairs.append((p0, len(self.mf) - 1, rd))
        self.blk[name] = (st, len(self.mf))

    def unit(self, src, even_set, odd, blocks, e_of, dl_crit, dl_add, lo, hi, add_lo=None, add_hi=None, pre=None, after=None, fma=None):
        crit = []; adds = []; res = {}
        for b in blocks:
            x = Sx(src, b); ev = Sx(even_set, b)
            ms = []
            for i in range(4):
                deps = [(n, 0) for n in pre[b]] if pre else []
                ins = valu("v_fma_f32", x[i], x[i], s_c, fma[b]) if fma else valu("v_mul_f32", x[i], s_c, x[i])
                ms.append(Node(ins, e=e_of(b), dl=dl_crit(b), deps=deps))
            ex = [Node(valu("v_exp_f32", x[i], x[i]), e=e_of(b), dl=dl_crit(b), deps=[(ms[i], 0)]) for i in range(4)]
            ad = []
            for i in range(4):
                deps = [(ex[i], 1)] + ([(ad[-1], 0)] if ad else [])
                ad.append(Node(valu("v_add_f32", lsum(b), lsum(b), x[i]), e=e_of(b), dl=(dl_add if odd else dl_crit(b)), deps=deps))
            aft = [(n, 0) for n in (after or {}).get(b, [])]
            if odd:
                c0 = Node(valu("v_cvt_pk_bf16_f32", ev[2], x[0], x[1]), e=e_of(b), dl=dl_crit(b), deps=[(ex[0], 1), (ex[1], 1)] + aft)
                c1 = Node(valu("v_cvt_pk_bf16_f32", ev[3], x[2], x[3]), e=e_of(b), dl=dl_crit(b), deps=[(ex[2], 1), (ex[3], 1)] + aft)
                crit += [ms[0], ms[1], ex[0], ex[1], ms[2], ms[3], ex[2], ex[3], c0, c1]
                adds += ad
            else:
                c0 = Node(valu("v_cvt_pk_bf16_f32", x[0], x[0], x[1]), e=e_of(b), dl=dl_crit(b), deps=[(ex[0], 1), (ex[1], 1), (ad[0], 0)])
                c1 = Node(valu("v_cvt_pk_bf16_f32", x[1], x[2], x[3]), e=e_of(b), dl=dl_crit(b), deps=[(ex[2], 1), (ex[3], 1), (ad[1], 0), (c0, 0)])
                crit += [ms[0], ms[1], ex[0], ex[1], ms[2], ms[3], ex[2], ex[3], ad[0], ad[1], ad[2], ad[3], c0, c1]
            res[b] = [c0, c1] + ad
        spread(crit, lo, hi)
        if adds: spread(adds, add_lo if add_lo is not None else lo, add_hi if add_hi is not None else hi)
        self.nodes += crit + adds
        return res

    def chain(self, instrs, lo, hi, e=None, dl=None, first_dep=None):
        prev = first_dep; out = []
        for i in instrs:
            gapd = 0
            if prev is not None:
                pk = prev.ins.kind
                gapd = 1
                if pk == "ds" and i.kind == "ds": gapd = 0
            n = Node(i, e=lo if e is None else e, dl=(10**9 if dl is None else dl), deps=[(prev, gapd)] if prev else [])
            out.append(n); prev = n
        k = len(out)
        for j, n in enumerate(out): n.ideal = lo + (hi - lo) * j / max(k, 1)
        self.nodes += out
        return out

    def reads(self, nxt_pairs, skip_first=3, barrier_before=()):
        pairs = self.pairs; ext = [p[2] for p in pairs] + list(nxt_pairs)
        prev = None
        plen = 2 * self.nb
        for k in range(skip_first, len(ext)):
            j = k - 4
            e = pairs[j][1] if j >= 0 else 0
            if k in barrier_before:
                g = e - 1 + (opt.barlag if self.nb == 3 else 0) if j >= 0 else 0
                g = min(g, len(self.mf) - 2)
                self.fixed[g] = barrier_before[k]
                self.bar_gap = getattr(self, "bar_gap", {}); self.bar_gap[k] = g
                e = g + 1
            dl = e + plen - 2
            if (k + 1) in barrier_before: dl = e + 1
            for i in ext[k]:
                n = Node(i, e=e, dl=min(dl, len(self.mf) - 1), ideal=e - 2, deps=[(prev, 0)] if prev else [])
                self.nodes.append(n); prev = n

    def build(self, nxt_first=None):
        n = len(self.mf)
        ft = set(); seen = set()
        for g, m in enumerate(self.mf):
            key = tuple(m.need)
            if key not in seen:
                seen.add(key)
                if g > 0: ft.add(g - 1)
        ft.add(n - 1)
        blocked = {}
        for g in self.fixed: ft.add(g); blocked[g] = 8
        gaps, over = schedule2(self.mf, self.nodes, free_taken=ft, blocked=blocked)
        for g, ins in self.fixed.items():
            gaps[g][1][0:0] = ins
        self.over = over
        if getattr(opt, "show", 0):
            cost = lambda i: 8 if i.kind == "vmem" else i.cost
            for nme, (a, b) in self.blk.items():
                row = ""
                for g in range(a, b):
                    u = sum(cost(i) for i in gaps[g][2]) + 4 * max(0, len(gaps[g][1]) - (0 if g in ft and g not in self.fixed else 1))
                    row += "B" if g in self.fixed else (str(u // 4) if u < 40 else "#")
                print(f"  nb{self.nb} {self.name} {nme}: {row}", file=sys.stderr)
        return gaps

def sets_for(par):
    return (0, 1, 2, 3) if par == 0 else (3, 2, 1, 0)

def first_pairs_of_iter(nb, J, name):
    s = Seg(nb, name); par = J & 1
    X0, X1, A_, B_ = sets_for(par)
    s.qblock("t0", 4 * ((J + 1) & 1), A_, False, 0)
    return [p[2] for p in s.pairs[:3]]

SPLIT = {4: 3, 3: 2}

LAT = 4
def units_of(J, h):
    par = J & 1; kb = 4 * ((J + 1) & 1)
    return [("K", kb), ("K", kb + 1), ("K", kb + 2), ("V", par, 0)] if h == 0 else [("V", par, 1), ("V", par, 2), ("V", par, 3), ("K", kb + 3)]

def iter_blocks(s, J, cz, split=0):
    par = J & 1
    X0, X1, A_, B_ = sets_for(par)
    kb = 4 * ((J + 1) & 1)
    s.qblock("t0", kb + 0, A_, False, 0)
    s.qblock("t1", kb + 1, B_, False, 0)
    if split == 2:
        s.pgen("t2", par, [[(0, 0, 0), (0, 1, 0)], [(0, 2, 0), (0, 3, 0)], [(0, 0, 1), (0, 1, 1)], [(0, 2, 1), (0, 3, 1)]], X0, X1, cz)
    elif split == 1:
        s.pgen("t2", par, [[(0, 0, 0), (0, 1, 0)], [(0, 0, 1), (0, 1, 1)], [(0, 2, 0), (0, 2, 1)], [(0, 3, 0), (0, 3, 1)]], X0, X1, cz)
    else:
        s.pblock("t2", par, 0, X0, X1, cz, 0)
    s.qblock("t3", kb + 2, A_, False, 0)
    s.pblock("t4", par, 1, X0, X1, cz, 0)
    s.pblock("t5", par, 2, X0, X1, cz, 0)
    s.qblock("t6", kb + 3, A_, False, 0)
    s.pblock("t7", par, 3, X0, X1, cz, 0)

def iter_units(s, J, u2, lo3=None):
    nb = s.nb; B = s.blk; n = len(s.mf)
    X0, X1, A_, B_ = sets_for(J & 1)
    p0s = s.first[("P", 1, 0)] - 1
    s.unit(A_, X1, True, range(nb), lambda b: s.done[("t0", b)] + LAT, lambda b: s.first[("P", 1, b)] - 2, B["t3"][0] - 2,
           lo3 if lo3 is not None else B["t0"][1] - 2, p0s - 1, add_lo=p0s, add_hi=B["t3"][0] - 4, after=u2)
    u0 = s.unit(B_, B_, False, range(nb), lambda b: s.done[("t1", b)] + LAT, lambda b: B["t4"][0] + 4, None,
                p0s + 2, B["t4"][0] - 2)
    s.unit(A_, B_, True, range(nb), lambda b: s.done[("t3", b)] + LAT, lambda b: B["t6"][0] - 2, B["t6"][0] - 2,
           B["t4"][0], B["t6"][0] - 4, add_lo=B["t4"][0] + 4, add_hi=B["t6"][0] - 3, after=u0)
    s.unit(A_, A_, False, range(SPLIT[nb]), lambda b: s.done[("t6", b)] + LAT, lambda b: n - 1, None,
           B["t7"][0], n - 3)

def make_mid(nb, J, name, nxt_name, special=False):
    par = J & 1
    X0, X1, A_, B_ = sets_for(par)
    kb = 4 * ((J + 1) & 1)
    s = Seg(nb, name)
    iter_blocks(s, J, False, split=(1 if nb == 3 else 0))
    n = len(s.mf); B = s.blk
    u2 = s.unit(X1, X1, False, list(range(SPLIT[nb], nb)), lambda b: 0, lambda b: B["t0"][1] + 2, None, 0, B["t0"][1] - 4)
    iter_units(s, J, u2)
    npair = len(s.pairs)
    nxt = first_pairs_of_iter(nb, J + 1, nxt_name)
    need2 = units_of(J + 1, 0) + (units_of(J + 1, 1) if special else [])
    s.reads(nxt, barrier_before={16: [vwait(units_of(J, 1), 0), barrier()], npair: [vwait(need2, 0), barrier()]})
    g1 = s.bar_gap[16]; g2 = s.bar_gap[npair]
    npar = (J + 1) & 1
    if opt.spread:
        gg = [dma_V(npar, 1), dma_V(npar, 2), dma_V(npar, 3), dma_K(4 * ((J + 2) & 1) + 3)]
        k0 = 3
        c0 = s.chain(sum(gg[:k0], []), 2, B["t0"][1] + 2, dl=g1 - 1)
        c0 = s.chain(sum(gg[k0:], []), B["t2"][0] + 10, g1 - 2, dl=g1 - 1, first_dep=c0[-1])
        lo1, hi1 = (g1 + 14, g2 - 4) if nb == 4 else (B["t4"][0] + 14, g2 + 2)
    else:
        g0 = dma_V(npar, 1) + dma_V(npar, 2) + dma_V(npar, 3) + dma_K(4 * ((J + 2) & 1) + 3)
        c0 = s.chain(g0, 0, B["t0"][1] + 2, dl=g1 - 1)
        lo1, hi1 = B["t5"][0] + 8, B["t7"][0]
    if special:
        s.chain(dma_Q(s_mR3, s_qn[1], ("R3",)), g1 + 2, B["t6"][1], e=g1 + 1, dl=g2 - 1, first_dep=c0[-1])
    else:
        tq = (lambda: touch(sQ, s_tq, 2048)) if (opt.touch & 1 and J & 1) else (lambda: [])
        tk = (lambda: touch(sK, s_tk, opt.tstep)) if (opt.touch & 2 and opt.twhen >> (J & 1) & 1) else (lambda: [])
        tv = (lambda: touch(sV, s_tv, opt.tstep)) if (opt.touch & 2 and opt.twhen >> (J & 1) & 1) else (lambda: [])
        xq = [[], []]
        if not J & 1:
            for hi in range(2):
                xq[hi] = [set_m0(s_xm, hi * 4096)] + [dma(voQb if hi else voQa, sQ, s_xq, Rl * 2048, ("X",), opt.qmod) for Rl in range(2)]
            xq[1] += [sop(f"s_add_u32 {s_xm}, {s_xm}, 1024", wr=[s_xm]), sop(f"s_add_u32 {s_xq}, {s_xq}, 256", wr=[s_xq])]
        tc = touch(sC, s_cs, 0)[:1] if (opt.cwarm and (J & 1 or opt.cwarm > 1)) else []
        g1l = tc + dma_K(kb + 0, wrap=(J & 1) == 1) + tq() + xq[0] + dma_K(kb + 1) + tq() + tk() + xq[1] + dma_K(kb + 2) + tq() + tv() + dma_V(par, 0)
        last = s.chain(g1l, lo1, hi1, e=g1 + 1, dl=g2 - 1, first_dep=c0[-1])[-1]
        if J & 1:
            s.chain([sop(f"s_sub_u32 {s_cnt}, {s_cnt}, 1"), sop(f"s_cmp_eq_u32 {s_cnt}, 0")], n - 6, n - 3, first_dep=last)
    return s

def touch(srd, sp, step):
    i = Ins(f"buffer_load_dword {vt0}, {vt1}, {srd}, {sp} offen", "vmem", rd=[vt1, srd, sp], wr=[vt0]); i.vm = True
    return [i, sop(f"s_add_u32 {sp}, {sp}, {step}", rd=[sp], wr=[sp])]

RL = lambda b: SET(0)[b]
WA = lambda k: wa0 if k == 0 else SET(0)[4 + k]
RA = SET(0)[8]
LT = SET(0)[9]
VS1 = SET(0)[10]
HOIST = {4: (4, 10), 3: (3, 4)}
PK = lambda c, k: O(k >> 1, 4 * c + (k & 1))

def butterfly(x, op, mid, out):
    q = []
    def add(i, deps): q.append((i, deps)); return len(q) - 1
    a = add(perm("v_permlane16_swap_b32", x[0], x[1]), [])
    b = add(perm("v_permlane16_swap_b32", x[2], x[3]), [])
    a = add(valu(op, x[0], x[0], x[1]), [a])
    b = add(valu(op, x[2], x[2], x[3]), [b])
    c = add(perm("v_permlane32_swap_b32", x[0], x[2]), [a, b])
    for i in mid(out[0], x[0], x[2]): c = add(i, [c])
    c = add(valu("v_mov_b32", out[2], out[0]), [c])
    c = add(perm("v_permlane32_swap_b32", out[0], out[2]), [c])
    a = add(valu("v_mov_b32", out[1], out[0]), [c])
    b = add(valu("v_mov_b32", out[3], out[2]), [c])
    a = add(perm("v_permlane16_swap_b32", out[0], out[1]), [a])
    b = add(perm("v_permlane16_swap_b32", out[2], out[3]), [b])
    return q

def nodes_of(q, first_deps, e, dl, ideal, step):
    nds = []
    for k, (i, deps) in enumerate(q):
        isp = i.op.startswith("v_permlane")
        d = [(nds[j], 2 if isp else (1 if nds[j].ins.kind == "trans" else 0)) for j in deps] if deps else [(x, 2 if isp else 0) for x in first_deps]
        nds.append(Node(i, e=e, dl=dl, deps=d, ideal=ideal + step * k))
    return nds

def make_last(nb, name):
    J = 7; par = 1
    X0, X1, A_, B_ = sets_for(par)
    s = Seg(nb, name)
    s.qblock("t0", 0, A_, False, 0)
    s.pgen("t2", par, [[(c, d, 0), (c, d + 1, 0)] for c in (0, 1) for d in (0, 2)], X0, X1, False)
    s.pgen("t4", par, [[(c, d, 1), (c, d + 1, 1)] for c in (0, 1) for d in (0, 2)], X0, X1, False)
    s.pblock("t5", par, 2, X0, X1, False, 0)
    s.pblock("t7", par, 3, X0, X1, False, 0)
    n = len(s.mf); B = s.blk
    u2 = s.unit(X1, X1, False, list(range(SPLIT[nb], nb)), lambda b: 0, lambda b: B["t0"][1] + 2, None, 0, B["t0"][1] - 4)
    k1 = B["t4"][0]
    u3 = s.unit(A_, X1, True, range(nb), lambda b: s.done[("t0", b)] + LAT, lambda b: s.first[("P", 1, b)] - 2, B["t5"][0] + 6,
                B["t0"][1] - 2, k1 - 1, add_lo=k1, add_hi=B["t5"][0], after=u2)
    npair = len(s.pairs)
    t0e = B["t0"][1]
    def qchain(b, base, unit, tmp, lo, hi, pre, dl=None, first_dep=None):
        ins = pre + q_reads(b, base, unit, tmp)
        nds = s.chain(ins, lo, hi, dl=dl, first_dep=first_dep)
        for k, nd in enumerate(nds[len(pre) + 1:]):
            nd.e = max(nd.e, s.pairs[k // 2][1] + 1)
        return nds
    if opt.r3epi:
        s.reads([[]], barrier_before={npair: [waitcnt(None, 0), barrier()]})
        g2 = s.bar_gap[npair]; gR = B["t4"][0] + 8
        c2 = s.chain(dma_Q(s_mR2, s_qn[2], ("R2",)), 0, B["t2"][1] - 4)
        r0 = qchain(0, s_mX, ("X",), vt0, t0e - 10, t0e + 10, [vwait([("X",)])])
        r1 = qchain(1, s_mR3, ("R3",), vt1, B["t4"][0] + 6, B["t5"][0] + 6, [vwait([("R3",)])], dl=g2 - 5, first_dep=r0[-1])
        c3 = s.chain([mark_wait_lds(("q", 0, 7))] + dma_Q(s_mX, s_qn[3], ("X",)), B["t4"][0], g2)
        c3[0].deps = [(r0[-1], 5), (c2[-1], 1)]
        c4 = s.chain([sop(f"s_sub_u32 {s_vptr}, {s_knext}, 32768", wr=[s_vptr])], 2, 4)
    else:
        kR = 12
        s.reads([[]], barrier_before={kR + 2: [waitcnt(None, 0), barrier()], npair: [waitcnt(None, 0), barrier()]})
        gR = s.bar_gap[kR + 2]; g2 = s.bar_gap[npair]
        c2 = s.chain(dma_Q(s_mR2, s_qn[2], ("R2",)), 0, B["t0"][1] - 2)
        r0 = qchain(0, s_mX, ("X",), vt0, t0e - 10, t0e + 10, [vwait([("X",)])], dl=gR - 5)
        r1 = qchain(1, s_mR3, ("R3",), vt1, t0e + 10, gR - 8, [vwait([("R3",)])], dl=gR - 5, first_dep=r0[-1])
        c3 = s.chain([mark_wait_lds(("q", 0, 7))] + dma_Q(s_mX, s_qn[3], ("X",)), t0e + 16, gR + 4)
        c3[0].deps = [(r0[-1], 5), (c2[-1], 1)]
        refill = [sop(f"s_sub_u32 {s_vptr}, {s_knext}, 32768", wr=[s_vptr])] + dma_K(4) + dma_K(5) + dma_K(6) + dma_V(0, 0)
        c4 = s.chain(refill, gR + 4, g2 - 2, e=gR + 1, first_dep=c3[-1])
        r2 = s.chain([vwait([("R2",)])] + q_reads(2, s_mR2, ("R2",), vt0), g2 - 16, g2 - 6, dl=g2 - 4, first_dep=r1[-1])
        nca = opt.ca7
        grp = [dma_V(0, 1), dma_V(0, 2), dma_V(0, 3), dma_K(7)]
        c5 = s.chain(sum(grp[:nca], []), g2 + 1, n - 2, e=g2 + 1, first_dep=c4[-1]) if nca else c4
    ok = [sop(f"s_add_u32 {s_ok[k]}, {s_ocur}, {k * 4096}", wr=[s_ok[k]]) if (k < 2 * nb and not opt.nostore) else sop(f"s_mov_b32 {s_ok[k]}, {OOB:#x}", wr=[s_ok[k]]) for k in range(8)]
    k0 = s.chain(ok, 4, t0e + 8)
    pbg = pass_begin()
    q3w = [i for i in pbg if i.text.startswith(f"s_mov_b32 {s_qn[3]},")][0]
    if opt.r3epi:
        pbg.remove(q3w); pbg.append(sop(f"s_mov_b32 {s_qn[3]}, {s_tab[3]}"))
        k1 = s.chain(pbg, gR + 6, n - 3, first_dep=k0[-1])
        k1[0].deps += [(c2[-1], 1), (c4[0], 1)]; k1[-1].deps += [(c3[-1], 1)]
    else:
        k1 = s.chain(pbg, gR + 6, n - 4, first_dep=k0[-1])
        k1[0].deps += [(c3[-1], 1), (c4[0], 1)]
    q = butterfly([lsum(b) for b in range(4)], "v_add_f32", lambda d, x, y: [valu("v_add_f32", LT, x, y), valu("v_rcp_f32", d, LT)], [RL(b) for b in range(4)])
    red = nodes_of(q, [x for b in range(nb) for x in u3[b][2:]], 0, 10**9, B["t5"][0] + 2, 1.5)
    rl_done = red[-2:]
    ad = [valu("v_xor_b32", WA(k), 16 * k, wa0) for k in (1, 2, 3)]
    ad += [valu("v_mbcnt_lo_u32_b32", RA, -1, 0), valu("v_mbcnt_hi_u32_b32", RA, -1, RA), valu("v_lshl_add_u32", RA, RA, 3, s_mOS),
           valu("v_xor_b32", VS1, 32, RA)]
    prev = None
    for k, i in enumerate(ad):
        nd = Node(i, deps=[(prev, 0)] if prev else [], ideal=B["t0"][1] - 12 + k); red.append(nd); prev = nd
    s.nodes += red
    t7s = B["t7"][0]
    order, acct = epi_order(nb)
    na, nc = HOIST[nb]
    hs = g2 - opt.hback
    for k in range(na * 4):
        t_ = acct[k // 4]; i = k % 4
        s.nodes.append(Node(acc_read(TMP(k // 4)[i], O(t_[2], 4 * t_[0] + t_[1])[i]), e=t7s + LAT + 1, ideal=g2 + 1 + k * 0.6,
                            deps=[(x, 0) for b in range(nb) for x in u3[b]]))
    for k in range(nc):
        c, dbl, b = order[k]; o = O(b, 4 * c + dbl)
        ms = [Node(valu("v_mul_f32", o[i], o[i], RL(b)), e=B["t5"][0] + LAT, ideal=hs + 1 + na * 2.4 + 3 * k + 0.5 * i, deps=[(x, 0) for x in rl_done]) for i in range(4)]
        c0 = Node(valu("v_cvt_pk_bf16_f32", o[0], o[0], o[1]), ideal=hs + 3 + na * 2.4 + 3 * k, deps=[(ms[0], 0), (ms[1], 0)])
        c1 = Node(valu("v_cvt_pk_bf16_f32", o[1], o[2], o[3]), ideal=hs + 3.5 + na * 2.4 + 3 * k, deps=[(ms[2], 0), (ms[3], 0), (c0, 0)])
        s.nodes += ms + [c0, c1]
    return s

TMP = lambda k: V(48 + 4 * (k % 12), 4)
def epi_order(nb):
    order = [(c, dbl, b) for c in range(4) for dbl in range(4) for b in range(nb)]
    return order, [t_ for t_ in order if O(t_[2], 4 * t_[0] + t_[1]).k == 'a']

def mark_wait_lds(tag):
    i = raw("s_nop 0", "nop"); i.need = [tag]; i.is_marker = True
    return i

def make_head(nb, name, nxt_name):
    X0, X1, A_, B_ = sets_for(1)
    s = Seg(nb, name)
    s.qblock("h0", 1, B_, True, 0)
    s.qblock("h1", 2, X0, True, 0)
    s.qblock("h2", 3, A_, False, 0)
    iter_blocks(s, 0, True, split=2)
    n = len(s.mf); B = s.blk
    tmp = SET(X1)
    pre = {}; nmc = {}
    part = []; emax = 0
    dlm = B["h2"][0] - 2
    for b in range(4):
        if b < nb:
            x = Sx(B_, b); e = s.done[("h0", b)] + LAT; emax = max(emax, e)
            n0 = Node(valu("v_max3_f32", tmp[b], x[0], x[1], x[2]), e=e, dl=dlm, ideal=e)
            n1 = Node(valu("v_max_f32", tmp[b], tmp[b], x[3]), e=e, dl=dlm, ideal=e + 0.5, deps=[(n0, 0)])
            s.nodes += [n0, n1]; part.append(n1)
        z = Node(valu("v_mov_b32", lsum(b), 0), e=0, dl=B["h0"][1], ideal=2 + b)
        s.nodes.append(z); pre[b] = [z]
    q = butterfly([tmp[b] for b in range(4)], "v_max_f32", lambda d, x, y: [valu("v_min_f32", d, Neg(x), Neg(y))], [Ct(b)[0] for b in range(4)])
    bf = nodes_of(q, part, 0, dlm, emax, 0.5)
    s.nodes += bf
    for b in range(nb):
        nmc[b] = tmp[8 + b]
        src = bf[-2] if b < 2 else bf[-1]
        n0 = Node(valu("v_mul_f32", nmc[b], s_c, Ct(b)[0]), dl=dlm, ideal=emax + 8 + b * 0.3, deps=[(src, 0)])
        s.nodes += [n0] + [Node(valu("v_mov_b32", Ct(b)[i], Ct(b)[0]), dl=dlm + 2 * b, ideal=emax + 12 + 2 * b + i * 0.5, deps=[(src, 0)]) for i in (1, 2, 3)]
        pre[b].append(n0)
    t0s = B["t0"][0]; t1s = B["t1"][0]
    u0 = s.unit(B_, B_, False, range(nb), lambda b: s.done[("h0", b)] + LAT, lambda b: t1s - 4, None, B["h1"][0] + 10, B["h2"][0] + 14, pre=pre, fma=nmc)
    u1 = s.unit(X0, B_, True, range(nb), lambda b: s.done[("h1", b)] + LAT, lambda b: t1s - 2, t1s - 2, B["h2"][0] + 14, t0s + 16, pre=pre, after=u0, fma=nmc)
    for nd in s.nodes:
        if nd.ins.text.startswith("v_fma_f32"): nd.dl = min(nd.dl, t0s - 2); nd.ideal = min(nd.ideal, t0s - 6)
    u2 = s.unit(A_, A_, False, range(nb), lambda b: s.done[("h2", b)] + LAT, lambda b: s.first[("P", 1, b)] - 4, None, t0s + 16, t1s + 14)
    iter_units(s, 0, u2, lo3=t1s + 14)
    prev = None
    for k, i in enumerate([valu("v_mbcnt_lo_u32_b32", vt1, -1, 0), valu("v_mbcnt_hi_u32_b32", vt1, -1, vt1), valu("v_lshlrev_b32", vt1, 5, vt1)]):
        nd = Node(i, deps=[(prev, 0)] if prev else [], ideal=8 + k); s.nodes.append(nd); prev = nd
    npair = len(s.pairs)
    nxt = first_pairs_of_iter(nb, 1, nxt_name)
    def tb(k, l):
        if opt.diag != 3: return l
        return [raw(f"s_memtime s[{90+4*k}:{91+4*k}]")] + l + [raw(f"s_memtime s[{92+4*k}:{93+4*k}]")]
    s.reads(nxt, barrier_before={12: tb(0, [vwait(units_of(0, 0), 0), barrier()]), 28: tb(1, [vwait(units_of(0, 1), 0), barrier()]),
                                 npair: tb(2, [vwait(units_of(1, 0), 0), barrier()])})
    g0 = s.bar_gap[12]; g1 = s.bar_gap[28]; g2 = s.bar_gap[npair]
    grp = [dma_V(0, 1), dma_V(0, 2), dma_V(0, 3), dma_K(7)][opt.ca7:] + [dma_K(0), dma_V(1, 0), dma_V(1, 1), dma_V(1, 2), dma_V(1, 3)]
    ca = s.chain(sum(grp[:4], []), 0, B["h0"][1] + 2, dl=g1 - 30)
    rest = grp[4:]
    nearly = max(0, len(rest) - 3 + min(3, opt.ca7)) if False else max(0, 6 - opt.ca7 - 4)
    cb = s.chain(sum(rest[:nearly], []) + dma_K(1) + dma_K(2), B["t1"][0], B["t4"][0], e=g0 + 1, first_dep=ca[-1])
    cc = s.chain(sum(rest[nearly:], []) + dma_K(3), B["t4"][0] + 8, B["t6"][0] + 4, first_dep=cb[-1])
    cd = s.chain(dma_K(4) + dma_K(5) + dma_K(6) + dma_V(0, 0), B["t6"][0] + 6, n - 4, e=g1 + 1, first_dep=cc[-1])
    prev = None
    nd_ = opt.defer
    sts = [(c, k) for c in range(4 - nd_, 4) for k in range(8)]
    lo, hi = 4, s.first[("O", 3)] - 6
    for j, (c, k) in enumerate(sts):
        nd = Node(store(c, k), dl=s.first[("O", c)] - 3, ideal=min(lo + (hi - lo) * j / len(sts), s.first[("O", c)] - 6 - 4 * (7 - k)), deps=[(prev, 2)] if prev else [])
        s.nodes.append(nd); prev = nd
    head = [i for p in s.pairs[:3] for i in p[2]]
    return s, head

def perm(op, a, b):
    i = valu(op, a, b, extra_rd=[a], extra_wr=[b]); i.cost = 8
    return i

def acc_read(d, a):
    i = Ins(f"v_accvgpr_read_b32 {d}, {a}", "acc", rd=[a], wr=[d]); return i

def make_epi(nb):
    r = []
    c_ = valu("v_cmp_ngt_f32", "vcc", hex(L_LIMIT), LT); c_.wr.add(('s', 'vcc')); r.append(c_)
    flagl = [raw(f"s_cbranch_vccz L_noflag{nb}"), sop(f"s_bitset1_b32 {s_flags}, {s_pass}"), label(f"L_noflag{nb}"),
             sop(f"s_cmp_lt_u32 {s_pass}, 2"), sop("s_cselect_b64 vcc, -1, 0")]
    ncl = [0]
    def fin_only(st):
        if st.quarter < 4 - opt.defer: return [st]
        ncl[0] += 1
        w = mark_wait_lds(st.need[0]); st.need = []
        return [w, raw(f"s_cbranch_vccnz L_fo{nb}_{ncl[0]}"), st, label(f"L_fo{nb}_{ncl[0]}")]
    def cluster(ins):
        ncl[0] += 1
        for i in ins: i.optional = True
        return [raw(f"s_cbranch_vccz L_sk{nb}_{ncl[0]}")] + ins + [label(f"L_sk{nb}_{ncl[0]}")]
    order, acct = epi_order(nb)
    slot = {t_: k for k, t_ in enumerate(acct)}
    accq = [(t_, i) for t_ in acct for i in range(4)]
    nacc = 4 * HOIST[nb][0]; done_acc = 0
    rdq = []; stq = []; oth = []; wq = []
    dq = [dma_K(4), dma_K(5), dma_K(6), dma_V(0, 0)] if opt.r3epi else []
    dstep = (len(order) * 3 // 4) // 4
    held = None
    for j, (c, dbl, b) in enumerate(order):
        o = O(b, 4 * c + dbl)
        want = min(len(acct) * 4, -(-(j + 1) * len(acct) * 4 // (len(order) - 4)))
        while nacc < len(acct) * 4 and (nacc < want or (o.k == 'a' and nacc < 4 * (slot[(c, dbl, b)] + 1))):
            if nacc // 4 >= done_acc + 12:
                assert not (o.k == 'a' and nacc < 4 * (slot[(c, dbl, b)] + 1)), "out of temps"
                break
            t_, i = accq[nacc]; nacc += 1
            r.append(acc_read(TMP(slot[t_])[i], O(t_[2], 4 * t_[0] + t_[1])[i]))
        t4 = TMP(slot[(c, dbl, b)]) if o.k == 'a' else o
        rlp = V(RL(b).n & ~1, 2); sel = RL(b).n & 1
        if j >= HOIST[nb][1]:
            for h in range(2):
                r.append(valu("v_pk_mul_f32", t4.sub(2 * h, 2), t4.sub(2 * h, 2), rlp, mods=f"op_sel:[0,{sel}] op_sel_hi:[1,{sel}]"))
            r += [valu("v_cvt_pk_bf16_f32", t4[0], t4[0], t4[1]), valu("v_cvt_pk_bf16_f32", t4[1], t4[2], t4[3])]
        if b % 2 == 0 and b + 1 < nb:
            held = (t4, o.k == 'a')
        else:
            na = int(o.k == 'a')
            if held is not None:
                w = Ins(f"ds_write2st64_b64 {WA(dbl)}, {held[0].sub(0, 2)}, {t4.sub(0, 2)} offset0:{(b - 1) * 2} offset1:{b * 2}", "ds",
                        rd=[WA(dbl), held[0].sub(0, 2), t4.sub(0, 2)], tag=("w", j))
                na += held[1]; held = None
            else:
                w = ds_write("ds_write_b64", WA(dbl), t4.sub(0, 2), b * 1024, tag=("w", j))
            w.lds_pw = ("OS",); wq.append((w, na))
        if j == 4: r += flagl
        if dq and j >= 6 and (j - 6) % dstep == 0: r += cluster(dq.pop(0))
        last = (dbl == 3 and b == nb - 1)
        for _ in range(opt.epi_rd):
            if rdq: r.append(rdq.pop(0))
        if not rdq or last:
            r += rdq; rdq = []
            k_ = 0
            while wq and (k_ < 1 or last):
                w, na = wq.pop(0); r.append(w); done_acc += na; k_ += 1
        if stq and j % 2 == 1 and stq[0][0] <= j: r += fin_only(stq.pop(0)[1])
        elif oth and j % 2 == 0 and not rdq:
            r += cluster(oth.pop(0))
        if last:
            for k in range(2 * nb):
                ra = VS1 if k & 1 else RA
                i = Ins(f"ds_read2st64_b64 {PK(c, k)}, {ra} offset0:{k} offset1:{8 + k}", "ds", rd=[ra], wr=[PK(c, k)], tag=("o", c, k))
                i.lds_rd = ("OS",); i.private = True
                rdq.append(i)
            if c < 3:
                for k in range(2 * nb):
                    st = store(c, k, nb); st.need = [("o", c, k if k < 3 else 2 * nb - 1)]; stq.append((j + 3 + k // opt.epi_rd, st))
            def halves(l): return [l[:len(l) - 4], l[len(l) - 4:]]
            if opt.r3epi:
                if c == 0: oth += [head_reads()]
                if c == 1: oth += halves([vwait([("R2",)])] + q_reads(2, s_mR2, ("R2",), vt0))
                if c == 2: oth += halves([vwait([("X",)])] + q_reads(3, s_mX, ("X",), vt1))
            else:
                if c == 0: oth += halves([vwait([("X",)])] + q_reads(3, s_mX, ("X",), vt0))
                if c == 1: oth += [head_reads()]
    assert not oth and not dq
    r += rdq
    for x in stq: r += fin_only(x[1])
    if opt.defer == 0:
        for k in range(2 * nb):
            st = store(3, k, nb); st.need = [("o", 3, k)]; r.append(st)
    return r

def head_reads():
    s = Seg(4, "hd"); s.qblock("h0", 1, 0, True, 0)
    return [i for p in s.pairs[:3] for i in p[2]]

def store(c, k, nb=None):
    data = PK(c, k)
    mod = {3: opt.omod3, 4: opt.omod4}.get(nb) or opt.omod
    vo = vsto
    i = Ins(f"buffer_store_dwordx4 {data}, {vo}, {sO}, {s_ok[k]} offen offset:{c * 128} {mod}".rstrip(), "vmem", rd=[data, vo, sO, s_ok[k]])
    i.wide_store = True; i.data = data.set(); i.vm = True; i.quarter = c
    return i

def lin(seq, pre=()):
    out = []; q = list(pre)
    for i in seq:
        if i.need:
            idx = -1
            for t in i.need:
                if t in q: idx = max(idx, len(q) - 1 - q[::-1].index(t))
            if idx >= 0:
                n = min(len(q) - 1 - idx, 15)
                out.append(waitcnt(None, n)); q = q[idx + 1:]
        if getattr(i, "lgw", None) is not None: q = q[len(q) - i.lgw:] if i.lgw else []
        if getattr(i, "is_marker", False): continue
        if i.kind == "ds" and not getattr(i, "optional", False): q.append(i.tag)
        out.append(i)
    return out, q

def flat(gaps, pre, nxt_need):
    out = []; q = list(pre)
    def wf(need):
        nonlocal q
        idx = -1
        for t in need:
            if t in q: idx = max(idx, len(q) - 1 - q[::-1].index(t))
        if idx < 0: return
        n = min(len(q) - 1 - idx, 15)
        out.append(waitcnt(None, n)); q = q[idx + 1:]
    for g, (m, sc, oth) in enumerate(gaps):
        wf(m.need)
        out.append(m)
        has_l0 = any(getattr(i, "lgw", None) == 0 for i in sc)
        if not has_l0:
            wf(gaps[g + 1][0].need if g + 1 < len(gaps) else nxt_need)
        for i in sc + oth:
            if i.need: wf(i.need)
            if getattr(i, "lgw", None) == 0: q = []
            if getattr(i, "is_marker", False): continue
            if i.kind == "ds": q.append(i.tag)
            out.append(i)
    return out, q

E32 = ("v_mul_f32", "v_add_f32", "v_exp_f32", "v_mov_b32", "v_max_f32", "v_xor_b32", "v_rcp_f32")
def isize(i):
    t = i.text
    if i.kind == "label": return 0
    op = t.split()[0]
    if op.startswith("s_"):
        import re
        m = re.findall(r"[ ,](0x[0-9a-f]+|-?\d+)\s*$", t)
        if op in ("s_waitcnt", "s_barrier", "s_nop") or op.startswith("s_cbranch") or op == "s_branch": return 4
        if m and not (-16 <= int(m[0], 0) <= 64): return 8
        return 4
    if op in E32 or op in ("v_add_u32", "v_lshlrev_b32", "v_permlane16_swap_b32", "v_permlane32_swap_b32"):
        return 8 if "-v" in t else 4
    return 8

def align8(seq, start=0):
    pos = start; cand = None
    for i in seq:
        if i.kind == "mfma":
            if pos % 8 and cand is not None:
                op = cand.text.split()[0]; cand.text = cand.text.replace(op, op + "_e64", 1); pos += 4
            cand = None
        sz = isize(i)
        if sz == 4 and i.text.split()[0] in E32 and cand is None: cand = i
        pos += sz
    return pos

def strip_clusters(seq, lab="L_sk"):
    out = []; skip = False
    for i in seq:
        if i.kind == "label" and i.text.startswith(lab): skip = False
        if not skip: out.append(i)
        if i.text.startswith("s_cbranch") and i.text.split()[1].startswith(lab): skip = True
    return out

def label(n): return Ins(n + ":", "label", states=0, cost=0)

def stamp(k):
    if not opt.diag: return []
    return [raw(f"s_memrealtime {s_ts}"), raw("s_memtime s[66:67]"), raw("s_waitcnt lgkmcnt(0)", "wait0"), raw(f"s_mov_b32 m0, {s_tsp}"), raw("s_nop 1"),
            raw(f"v_writelane_b32 v0, {s_ts.sub(0)}, m0"), raw(f"s_add_u32 m0, m0, 32"), raw("s_nop 1"), raw("v_writelane_b32 v0, s66, m0"),
            raw(f"s_add_u32 {s_tsp}, {s_tsp}, 1")]

def retag(q, old, new):
    return [tuple(new if x == old else x for x in t) if len(t) > 1 else t for t in q]

def variant(nb):
    P = {}
    hd, head = make_head(nb, "hd", "i1")
    i1 = make_mid(nb, 1, "i1", "i2")
    i2 = make_mid(nb, 2, "i2", "i1")
    i6 = make_mid(nb, 6, "i2", "i1", special=True)
    i7 = make_last(nb, "i1")
    SG = dict(hd=hd, i1=i1, i2=i2, i6=i6, i7=i7)
    G = {k: s.build() for k, s in SG.items()}
    print(f"nb={nb} overflow cycles:", {k: s.over for k, s in SG.items()}, file=sys.stderr)
    P["hd"], q0 = flat(G["hd"], [], G["i1"][0][0].need)
    P["i1"], q1 = flat(G["i1"], q0, G["i2"][0][0].need)
    P["i2"], q2 = flat(G["i2"], q1, G["i1"][0][0].need)
    assert q2 == q0, (q0, q2)
    for k in ("i1", "i2"):
        if opt.abl & 1024: P[k] = [i for i in P[k] if not i.text.startswith("v_add_f32")]
        if opt.abl & 2048: P[k] = [i for i in P[k] if not (i.kind == "ds" and "b128" in i.text)]
        if opt.abl & 4096: P[k] = [i for i in P[k] if not (i.kind == "ds" and "tr_b16" in i.text)]
        if opt.abl & 16: P[k] = [i for i in P[k] if not getattr(i, "bar", False)]
        if opt.abl & 32: P[k] = [i for i in P[k] if i.kind != "vmem"]
        if opt.abl & 64: P[k] = [i for i in P[k] if i.kind not in ("valu", "trans")]
        if opt.abl & 128: P[k] = [i for i in P[k] if i.kind != "ds"]
        if opt.abl & 256: P[k] = [i for i in P[k] if not (i.kind == "salu" and "m0" in i.text)]
    P["i6"], q = flat(G["i6"], q1, G["i7"][0][0].need)
    P["i7"], q = flat(G["i7"], q, [])
    ep = make_epi(nb)
    if opt.abl & 1: ep = [i for i in ep if not i.text.startswith("buffer_store")]
    if opt.abl & 2: ep = [i for i in ep if getattr(i, "lds_rd", None) != ("OS",)]
    if opt.abl & 4: ep = [i for i in ep if not i.text.startswith("ds_write")]
    if opt.abl & 8: ep = [i for i in ep if i.kind != "acc"]
    P["epi"], q = lin(ep, q)
    return P

def resolve_vm(traces):
    ws = set()
    for tr in traces:
        n = 0; last = {}
        for i in tr:
            if getattr(i, "vmneed", None) is not None:
                idx = max([last.get(u, -1) for u in i.vmneed])
                if idx >= 0: i.vmauto = min(i.vmauto, n - 1 - idx)
                ws.add(i)
            if getattr(i, "vm", False):
                u = getattr(i, "dma_wr", None)
                if u: last[u] = n
                n += 1
    for i in ws:
        i.vmw = i.vmauto
        i.text = f"s_waitcnt vmcnt({i.vmw})" + (f" lgkmcnt({i.lgw})" if i.lgw is not None else "")

def check_trace(trace):
    vm = []
    lg = []
    state = {}
    epoch = 0
    ALIAS = {("R2",): [("V", 0, 1), ("V", 0, 2), ("V", 0, 3), ("K", 7)], ("OS",): [("V", 1, c) for c in range(4)],
             ("R3",): [("K", 4), ("K", 5), ("K", 6), ("V", 0, 0)]}
    def phys(u): return ALIAS.get(u, [u])
    wr_land = {}; wr_pend = {}; rd_done = {}; rd_pend = {}; owner = {}
    errs = []
    for k, i in enumerate(trace):
        if getattr(i, "vmw", None) is not None:
            while len(vm) > i.vmw:
                o = vm.pop(0)
                u = getattr(o, "dma_wr", None)
                if u: wr_pend[u] -= 1; wr_land[u] = epoch
        if getattr(i, "lgw", None) is not None or i.kind == "wait0":
            n = 0 if i.kind == "wait0" else i.lgw
            while len(lg) > n:
                o = lg.pop(0)
                u = getattr(o, "lds_rd", None) or getattr(o, "lds_pw", None)
                if u: rd_pend[u] -= 1; rd_done[u] = epoch
        if getattr(i, "bar", False): epoch += 1
        u = getattr(i, "lds_rd", None)
        if u:
            if True:
                if wr_pend.get(u, 0) > 0: errs.append((k, "read of unit with pending DMA", u, i.text))
                elif not getattr(i, "private", False) and wr_land.get(u, 10**9) >= epoch: errs.append((k, "read without barrier after landing", u, i.text))
            for p in phys(u):
                if owner.get(p) != u: errs.append((k, "read of unit owned by", owner.get(p), u, i.text))
        w = getattr(i, "dma_wr", None) or getattr(i, "lds_pw", None)
        if w:
            for p in phys(w):
                o = owner.get(p)
                if o is not None:
                    priv = (o == w and w in (("X",), ("R2",), ("R3",), ("OS",)))
                    if rd_pend.get(o, 0) > 0 and not (getattr(i, "lds_pw", None) and o == w):
                        errs.append((k, "write over unit with reads in flight", o, w, i.text))
                    if not priv and rd_done.get(o, -1) >= epoch: errs.append((k, "write without barrier after reads", o, w, i.text))
                    if o != w and wr_pend.get(o, 0) > 0: errs.append((k, "write over pending dma", o, w))
                    if o != w and wr_land.get(o, -1) >= epoch: errs.append((k, "write over unit landed w/o barrier", o, w))
                owner[p] = w
        if i.kind == "ds":
            lg.append(i)
            u = getattr(i, "lds_rd", None) or getattr(i, "lds_pw", None)
            if u: rd_pend[u] = rd_pend.get(u, 0) + 1
        if getattr(i, "vm", False):
            vm.append(i)
            u = getattr(i, "dma_wr", None)
            if u: wr_pend[u] = wr_pend.get(u, 0) + 1
            assert len(vm) <= 63, "vmcnt overflow"
    return errs

def cross_check(traces):
    ALIAS = {("R2",): [("V", 0, 1), ("V", 0, 2), ("V", 0, 3), ("K", 7)], ("OS",): [("V", 1, c) for c in range(4)],
             ("R3",): [("K", 4), ("K", 5), ("K", 6), ("V", 0, 0)]}
    allg = []
    for tr in traces:
        gens = {}; epoch = 0; vm = []; lg = []
        for i in tr:
            if getattr(i, "vmw", None) is not None:
                while len(vm) > i.vmw:
                    for g in vm.pop(0): g["land"] = epoch
            if getattr(i, "lgw", None) is not None or i.kind == "wait0":
                n = 0 if i.kind == "wait0" else i.lgw
                while len(lg) > n:
                    for g in lg.pop(0): g["done"] = epoch
            if getattr(i, "bar", False): epoch += 1
            w = getattr(i, "dma_wr", None) or getattr(i, "lds_pw", None); r = getattr(i, "lds_rd", None)
            touched = []
            u = w or r
            if u and u != ("X",):
                for p in ALIAS.get(u, [u]):
                    l = gens.setdefault(p, [])
                    if w and (not l or l[-1]["own"] != u or (l[-1]["rd0"] is not None and u not in ALIAS)):
                        l.append(dict(own=u, wr0=epoch, land=10**9, rd0=None, done=-1))
                    g = l[-1]
                    if r and g["rd0"] is None: g["rd0"] = epoch
                    if r or getattr(i, "lds_pw", None): g["done"] = 10**9
                    if getattr(i, "dma_wr", None): g["land"] = 10**9
                    touched.append(g)
            if i.kind == "ds": lg.append(touched)
            if getattr(i, "vm", False): vm.append(touched)
        allg.append((gens, epoch))
    assert len(set(e for _, e in allg)) == 1, "barrier counts differ"
    for p in allg[0][0]:
        n = len(allg[0][0][p])
        assert all(len(g[p]) == n and [x["own"] for x in g[p]] == [x["own"] for x in allg[0][0][p]] for g, _ in allg), ("generations differ", p)
        for k in range(n):
            G = [g[p][k] for g, _ in allg]
            if G[0]["own"] not in ALIAS and G[0]["rd0"] is not None:
                assert max(x["land"] for x in G) < min(x["rd0"] for x in G), ("cross RAW", p, k, G)
            if k + 1 < n:
                N = [g[p][k + 1] for g, _ in allg]
                assert max(x["done"] for x in G) < min(x["wr0"] for x in N), ("cross WAR", p, k, G, N)
                if G[0]["own"] != N[0]["own"] and any(x["land"] != 10**9 or x["rd0"] is not None for x in G) and G[0]["own"] != ("OS",):
                    assert max(x["land"] for x in G) < min(x["wr0"] for x in N), ("cross WAW", p, k, G, N)

THR = {}
HELP = {}
RANK = {}
HELPN = {}
def schedule_table(mode):
    tab = {}
    if mode == "simple":
        for wg in range(256):
            x = wg & 7; idx = wg >> 3
            head = x * 16 + (idx >> 1); base = 41 * (idx & 1)
            tab[wg] = [(head, base, 12), (head, base + 12, 16), (head, base + 28, 13)]
    elif mode == "share":
        for x in range(8):
            rounds = [[], [], []]
            def add(r, h, start, sizes):
                for sz in sizes:
                    rounds[r].append((x * 16 + h, start, sz)); start += sz
                return start
            for h in range(10):
                st = add(0, h, 0, [12, 12, 12]); add(1 if h < 6 else 2, h, st, [15, 15, 16])
            st = add(0, 10, 0, [12, 12]); st = add(1, 10, st, [15, 14]); add(2, 10, st, [15, 14])
            for h in range(11, 16):
                add(1 if h < 13 else 2, h, 0, [14, 14, 14, 14, 13, 13])
            assert all(len(r) == 32 for r in rounds), [len(r) for r in rounds]
            for idx in range(32):
                tab[idx * 8 + x] = [rounds[0][idx], rounds[1][idx], rounds[2][idx]]
    elif mode.startswith("g6"):
        orders = {"A": (0, 1, 2), "B": (1, 0, 2), "C": (2, 1, 0), "D": (2, 0, 1)}
        pat = mode.split("_")[1]
        rot = pat.startswith("x"); pat = pat.lstrip("x")
        for x in range(8):
            for g in range(6):
                o = orders[pat[(g + (x if rot else 0)) % len(pat)]] if not pat.startswith("X") else orders["ABC"[x % 3]]
                if g < 5:
                    ha, hb, hc = [x * 16 + 3 * g + i for i in range(3)]
                    r0 = [(ha, 0, 12), (ha, 12, 12), (ha, 24, 12), (hb, 0, 12), (hb, 12, 12), (hb, 24, 12)]
                    r1 = [(ha, 36, 15), (ha, 51, 15), (ha, 66, 16), (hb, 36, 15), (hb, 51, 15), (hb, 66, 16)]
                    r2 = [(hc, 0, 14), (hc, 14, 14), (hc, 28, 13), (hc, 41, 14), (hc, 55, 14), (hc, 69, 13)]
                    n = 6
                else:
                    h = x * 16 + 15
                    r0 = [(h, 0, 12), (h, 12, 12)]; r1 = [(h, 24, 15), (h, 39, 15)]; r2 = [(h, 54, 14), (h, 68, 14)]
                    n = 2
                R = [r0, r1, r2]
                for i in range(n):
                    tab[(6 * g + i) * 8 + x] = [R[o[0]][i], R[o[1]][i], R[o[2]][i]]
    elif mode.startswith("t3"):
        _, lo, so, th = mode.split("_")
        th = [int(x, 16) for x in th.split(".")]
        alt = mode.startswith("t3a")
        if alt:
            LS = [i for i in range(32) if not i & 4]; SS = [i for i in range(32) if i & 4]
        else:
            LS = [6 * g + i for g in range(5) for i in range(3)] + [30]; SS = [6 * g + 3 + i for g in range(5) for i in range(3)] + [31]
        for x in range(8):
            H = [x * 16 + i for i in range(16)]
            T3 = lambda h: [(h, 0, 12), (h, 12, 12), (h, 24, 12)]
            T4 = lambda h: [(h, 36, 16), (h, 52, 16), (h, 68, 14)]
            for g in range(5):
                a, b, c = H[3 * g], H[3 * g + 1], H[3 * g + 2]
                Lt = {"3": T3(a), "4": T4(a), "5": T4(b)[::-1]}
                St = {"3": T3(c), "2": T3(b), "4": T4(c)}
                lord = lo.split(".")[(g + x) % len(lo.split("."))]; sord = so.split(".")[(g + x) % len(so.split("."))]
                for i in range(3):
                    wl = LS[3 * g + i] * 8 + x; wsn = SS[3 * g + i] * 8 + x
                    tab[wl] = [Lt[k][i] for k in lord]
                    tab[wsn] = [St[k][i] for k in sord]
                    THR[wsn] = th[(g + x) % len(th)]
                    RANK[wl] = i; RANK[wsn] = i
                    h0, st0, _n = Lt[lord[0]][i]
                    HELP[wsn] = (h0 * SQ + st0 * 16) * 512
            h = H[15]
            tab[LS[15] * 8 + x] = [(h, 0, 12), (h, 36, 16), (h, 68, 14)]
            if alt:
                tab[SS[15] * 8 + x] = [(h, 52, 16), (h, 12, 12), (h, 24, 12)]
                THR[SS[15] * 8 + x] = th[0]; HELP[SS[15] * 8 + x] = h * SQ * 512
            else:
                tab[SS[15] * 8 + x] = [(h, 12, 12), (h, 52, 16), (h, 24, 12)]
    elif mode.startswith("t6"):
        _, lo, th = mode.split("_")
        th = [int(x, 16) for x in th.split(".")]
        LS = [i for i in range(32) if not i & 4]; SS = [i for i in range(32) if i & 4]
        for x in range(8):
            T3 = lambda h: [(h, 0, 12), (h, 12, 12), (h, 24, 12)]
            T4 = lambda h, r: [[(h, 36, 16), (h, 52, 16), (h, 68, 14)][(i + r) % 3] for i in range(3)]
            for g in range(5):
                pat = lo.split(".")[(g + x) % len(lo.split("."))]
                for i in range(3):
                    wl = LS[3 * g + i] * 8 + x; wsn = SS[3 * g + i] * 8 + x
                    tab[wl] = []; tab[wsn] = []
                    for r in range(3):
                        h = x * 16 + 3 * g + r
                        a, b = T3(h)[i], T4(h, r)[i]
                        tab[wl].append(a if pat[r] == "3" else b); tab[wsn].append(b if pat[r] == "3" else a)
                    THR[wsn] = th[(g + x) % len(th)]; RANK[wl] = i; RANK[wsn] = i
                    HELP[wsn] = (tab[wl][0][0] * SQ + tab[wl][0][1] * 16) * 512; HELPN[wsn] = tab[wl][0][2]
            h = x * 16 + 15; pat = lo.split(".")[0]
            i3 = [(h, 0, 12), (h, 12, 12), (h, 24, 12)]; i4 = [(h, 36, 16), (h, 52, 16), (h, 68, 14)]
            wl = LS[15] * 8 + x; wsn = SS[15] * 8 + x
            tab[wl] = [(i3 if pat[r] == "3" else i4)[r] for r in range(3)]
            tab[wsn] = [(i4 if pat[r] == "3" else i3)[r] for r in range(3)]
            THR[wsn] = th[0]; HELP[wsn] = (h * SQ + tab[wl][0][1] * 16) * 512; HELPN[wsn] = tab[wl][0][2]
    cov = {}
    for wg, l in tab.items():
        for h, st, n in l:
            assert 12 <= n <= 16
            for b in range(st, st + n):
                assert (h, b) not in cov; cov[(h, b)] = wg
    assert len(cov) == 128 * 82
    return tab

def setup_code():
    L = []; A = L.append
    if opt.diag or opt.padto: A("s_memrealtime s[100:101]")
    A("s_cmp_ge_u32 s2, 256")
    A("s_cbranch_scc1 L_exit")
    A("s_load_dwordx4 s[72:75], s[0:1], 0")
    A("s_load_dwordx4 s[76:79], s[0:1], 16")
    if opt.diag: A("s_load_dwordx2 s[64:65], s[0:1], 40")
    A("s_getpc_b64 s[4:5]")
    A("L_pc:")
    if opt.warm:
        A(f"s_mov_b32 {sC[0]}, s4\ns_mov_b32 {sC[1]}, s5\ns_mov_b32 {sC[2]}, L_warm_end-L_pc\ns_mov_b32 {sC[3]}, 0x20000\nv_lshlrev_b32 v16, 7, v0")
        for k in range(opt.warm): A(f"s_mov_b32 s3, {k * 32768}\nbuffer_load_dword v{17 + k}, v16, {sC}, s3 offen")
    A("s_lshl_b32 s3, s2, 6")
    A("s_add_u32 s3, s3, L_table-L_pc")
    A("s_add_u32 s46, s4, s3")
    A("s_addc_u32 s47, s5, 0")
    A("s_load_dwordx16 s[80:95], s[46:47], 0")
    A(f"v_readfirstlane_b32 {s_wave}, v0")
    A("v_and_b32 v10, 63, v0")
    A(f"s_lshr_b32 {s_wave}, {s_wave}, 6")
    A("v_and_b32 v11, 15, v10")
    A("v_lshrrev_b32 v14, 4, v10")
    A("v_lshrrev_b32 v15, 2, v11\nv_lshlrev_b32 v1, 11, v15\nv_and_b32 v6, 3, v11\nv_lshl_add_u32 v1, v6, 6, v1")
    A("v_lshrrev_b32 v6, 3, v11\nv_lshlrev_b32 v6, 1, v6\nv_xor_b32 v6, v6, v14\nv_lshl_add_u32 v1, v6, 4, v1")
    A("v_lshrrev_b32 v6, 1, v14\nv_lshlrev_b32 v2, 10, v6\nv_and_b32 v7, 1, v14\nv_lshl_add_u32 v6, v7, 2, v15\nv_lshl_add_u32 v2, v6, 6, v2")
    A(f"v_and_b32 v8, 3, v10\nv_lshl_add_u32 v2, v8, 3, v2\nv_lshl_add_u32 v2, v7, 5, v2\nv_add_u32 v2, {VB}, v2\nv_xor_b32 v3, 32, v2")
    A("v_lshlrev_b32 v12, 9, v15\nv_lshl_add_u32 v12, v14, 6, v12\nv_lshl_add_u32 v12, v8, 4, v12\nv_xor_b32 v13, 32, v12\nv_add_u32 v13, 4096, v13")
    A(f"s_lshl_b32 {s_mK}, {s_wave}, 11\ns_lshr_b32 s3, {s_wave}, 1\ns_lshl_b32 s3, s3, 5")
    A(f"v_xor_b32 v4, s3, v12\nv_add_u32 v4, {s_mK}, v4")
    A("v_lshrrev_b32 v6, 2, v10\nv_and_b32 v6, 7, v6\nv_lshlrev_b32 v5, 9, v6\nv_lshrrev_b32 v6, 2, v6\nv_lshlrev_b32 v6, 1, v6\nv_xor_b32 v6, v6, v8")
    A(f"v_lshl_add_u32 v5, v6, 4, v5\nv_lshrrev_b32 v6, 5, v10\nv_lshl_add_u32 v5, v6, 6, v5\ns_lshl_b32 s3, {s_wave}, 13\nv_add_u32 v5, s3, v5")
    A(f"s_add_u32 {s_mX}, s3, {XB}")
    A(f"s_add_u32 {s_mOS}, s3, {vslot_addr(1, 0)}")
    A(f"s_add_u32 {s_mR2}, s3, {vslot_addr(0, 0)}")
    A(f"s_cmp_eq_u32 {s_wave}, 0\ns_cselect_b32 {s_mR2}, {kslot_addr(7)}, {s_mR2}")
    A(f"s_add_u32 {s_mR3}, s3, {kslot_addr(4)}")
    A(f"s_cmp_eq_u32 {s_wave}, 3\ns_cselect_b32 {s_mR3}, {vslot_addr(0, 0)}, {s_mR3}")
    A("v_lshrrev_b32 v6, 1, v14\nv_lshrrev_b32 v9, 1, v11\nv_xor_b32 v6, v6, v9\nv_lshlrev_b32 v6, 3, v6\nv_lshl_add_u32 v6, v7, 12, v6")
    A(f"v_lshl_add_u32 v6, v11, 6, v6\nv_add_u32 v15, {s_mOS}, v6")
    A("v_lshrrev_b32 v6, 3, v10\nv_and_b32 v9, 7, v10\nv_xor_b32 v9, v9, v14\nv_lshlrev_b32 v9, 4, v9\nv_lshl_add_u32 v14, v6, 9, v9")
    A(f"s_mov_b32 {s_c}, {C_SCALE:#x}\ns_mov_b32 {s_pass}, 0\ns_mov_b32 {s_flags}, 0")
    if opt.diag: A(f"s_mov_b32 {s_tsp}, 1\nv_mov_b32 v0, 0")
    A("s_waitcnt lgkmcnt(0)")
    if opt.diag:
        A("v_writelane_b32 v0, s100, 0")
        A("s_getreg_b32 s100, hwreg(HW_REG_HW_ID)\ns_getreg_b32 s101, hwreg(HW_REG_XCC_ID)\ns_nop 1\nv_writelane_b32 v0, s100, 30\nv_writelane_b32 v0, s101, 31")
    for srd, p, n in ((sQ, 72, QBYTES), (sK, 74, KBYTES), (sV, 76, KBYTES), (sO, 78, QBYTES)):
        A(f"s_mov_b32 {srd[0]}, s{p}\ns_mov_b32 {srd[1]}, s{p+1}\ns_mov_b32 {srd[2]}, {n}\ns_mov_b32 {srd[3]}, 0x20000")
    for k in range(8): A(f"s_mov_b32 {s_ok[k]}, {OOB:#x}")
    for p in range(3):
        A(f"s_sub_u32 s3, s{80+3*p+2}, 12")
        A(f"s_min_u32 s4, s3, {s_wave}")
        A(f"s_mul_i32 s5, {s_wave}, 3\ns_add_u32 s4, s4, s5\ns_lshl_b32 s4, s4, 13")
        A(f"s_add_u32 {s_tab[4*p]}, s{80+3*p}, s4")
        A(f"s_mov_b32 {s_tab[4*p+1]}, s{80+3*p+1}")
        A(f"s_add_u32 {s_tab[4*p+3]}, {s_tab[4*p]}, 24576")
        A(f"s_cmp_lt_u32 {s_wave}, s3\ns_cselect_b32 {s_tab[4*p+2]}, 4, 3\ns_cselect_b32 {s_tab[4*p+3]}, {s_tab[4*p+3]}, {OOB:#x}")
    A(f"s_mov_b32 {s_tab[12]}, {OOB:#x}\ns_mov_b32 {s_tab[13]}, {OOB:#x}\ns_mov_b32 {s_tab[14]}, 0\ns_mov_b32 {s_tab[15]}, {OOB:#x}")
    A(f"s_lshl_b32 s3, s91, 2\ns_add_u32 s3, s3, {s_wave}\ns_mul_i32 {s_str}, s3, {opt.tstride}")
    A(f"s_cmp_eq_u32 s90, {OOB:#x}\ns_cselect_b32 {s_str}, 0x40000000, {s_str}")
    A(f"s_lshr_b32 s3, s2, 1\ns_and_b32 s3, s3, 28\ns_add_u32 s3, s3, {s_wave}\ns_lshl_b32 {s_cs}, s3, 11")
    for p in range(3):
        for k in range(3): A(f"s_mov_b32 s{80+3*p+k}, {s_tab[4*p+k]}")
    return L

def startup():
    P = {}
    r = [sop(f"s_mov_b32 {s_kptr}, {s_tab[1]}", wr=[s_kptr]), sop(f"s_sub_u32 {s_vptr}, {s_tab[1]}, 32768", wr=[s_vptr])]
    r += dma_K(1) + dma_K(2) + dma_K(3)
    r += [sop(f"s_add_u32 {s_t0}, {s_tab[0]}, 8192", wr=[s_t0]), sop(f"s_add_u32 {s_t1}, {s_tab[0]}, 16384", wr=[s_t1]),
          sop(f"s_add_u32 {s_t2}, {s_tab[0]}, 24576", wr=[s_t2])]
    r += [sop(f"s_cmp_eq_u32 s90, {OOB:#x}"), raw("s_cbranch_scc1 L_nohelp")]
    P["a"] = r
    late = lambda: dma_K(4) + dma_K(5) + dma_K(6) + dma_V(0, 0)
    r = late() if opt.late else []
    r += [sop("s_sub_u32 s4, s92, 12"), sop(f"s_add_u32 s5, {s_wave}, 1"), sop("s_min_u32 s4, s4, s5"), sop("s_mul_i32 s5, s5, 3"),
          sop("s_add_u32 s4, s4, s5"), sop("s_lshl_b32 s3, s4, 13"), sop(f"s_add_u32 s3, s3, s90"), sop(f"s_sub_u32 s3, s3, {1024 * opt.help_n}"),
          valu("v_lshlrev_b32", vt1, 4, vt0)]
    hl = []
    for k in range(opt.help_n):
        if k and k % 4 == 0: hl.append(sop("s_add_u32 s3, s3, 4096"))
        i = Ins(f"buffer_load_dwordx4 {V(96 + 4 * k, 4)}, {vt1}, {sQ}, s3 offen offset:{(k % 4) * 1024}", "vmem", rd=[vt1]); i.vm = True
        hl.append(i)
    if opt.late == 2: r = r[-9:] + hl + r[:-9]
    else: r += hl
    P["h"] = r
    r = []; k = 0
    for grp in (dma_Q(s_mX, s_tab[0], ("X",)), dma_Q(s_mR2, s_t0, ("R2",)), dma_Q(s_mOS, s_t1, ("OS",))):
        for hf in (grp[:6], grp[6:]):
            r += hf
            if not opt.sched.endswith("_0"):
                r += [sop(f"s_bitcmp1_b32 s89, {k}"), raw(f"s_cbranch_scc0 L_th{k}"), raw("s_waitcnt vmcnt(0)"), label(f"L_th{k}")]
            k += 1
    if not opt.late: r += late()
    st5 = (lambda: stamp(9)) if opt.diag == 5 else (lambda: [])
    r += st5() + [vwait([("X",)])] + st5() + q_reads(0, s_mX, ("X",), vt0)
    r += [sop(f"s_cmp_lt_u32 {s_tab[2]}, 4"), raw("s_cbranch_scc1 L_noq3")]
    P["q"] = r
    r2 = [waitcnt(None, 0)] + dma_Q(s_mX, s_t2, ("X",))
    r2 += [vwait([("R2",)])] + st5() + q_reads(1, s_mR2, ("R2",), vt1) + [vwait([("OS",)])] + st5() + q_reads(2, s_mOS, ("OS",), vt0)
    r2 += [vwait([("X",)])] + q_reads(3, s_mX, ("X",), vt1) + [raw("s_branch L_q3done")]
    P["r2"] = r2
    P["r3"] = [vwait([("R2",)])] + st5() + q_reads(1, s_mR2, ("R2",), vt1) + [vwait([("OS",)])] + st5() + q_reads(2, s_mOS, ("OS",), vt0)
    P["lc"] = [sop(f"s_cmp_lg_u32 s90, {OOB:#x}"), raw("s_cbranch_scc1 L_first")] if opt.late else []
    P["l"] = late() if opt.late else []
    return {k: fix_hazards(lin(v)[0]) for k, v in P.items()}

def pass_begin():
    T2 = lambda k: S(s_tab.n + k, 2)
    r = [sop(f"s_mov_b32 {s_ocur}, {s_tab[0]}"),
         sop(f"s_add_u32 {s_kend}, {s_tab[1]}, 262144"),
         sop(f"s_mov_b32 {s_nbn}, {s_tab[2]}"),
         sop(f"s_mov_b32 {s_knext}, {s_tab[5]}"),
         sop(f"s_mov_b32 {s_xq}, {s_tab[4]}"),
         sop(f"s_add_u32 {s_qn[1]}, {s_tab[4]}, 8192"), sop(f"s_add_u32 {s_qn[2]}, {s_tab[4]}, 16384"),
         sop(f"s_mov_b32 {s_qn[3]}, {s_tab[7]}")]
    for k in range(0, 12, 2): r.append(sop(f"s_mov_b64 {T2(k)}, {T2(k + 4)}"))
    r += [sop(f"s_mov_b32 {s_cnt}, 3"), sop(f"s_mov_b32 {s_tq}, {s_qn[2]}"),
          sop(f"s_add_u32 {s_tv}, {s_str}, {s_knext}"), sop(f"s_add_u32 {s_tk}, {s_tv}, {opt.tkoff}"),
          sop(f"s_mov_b32 {s_xm}, {s_mX}")]
    return r

def repair_code():
    rQ = lambda k: V(96 + 4 * k, 4); rK = lambda k: V(128 + 4 * k, 4); rS = lambda k: V(32 + 4 * k, 4)
    rO = lambda k: V(160 + 4 * k, 4); rV = lambda k: V(224 + 4 * k, 4)
    m, l, ta, tb, al, nm = V(6), V(7), V(8), V(9), V(10), V(11)
    fa, va0, va1, vop, so = V(48), V(49), V(50), V(51), V(52)
    sp, sb, sj, sq, sk, sv = S(90), S(91), S(92), S(93), S(94), S(95)
    def gload(d, srd, soff, imm):
        return Ins(f"buffer_load_dwordx4 {d}, {fa}, {srd}, {soff} offen offset:{imm}", "vmem", rd=[fa, srd, soff], wr=[d])
    W = lambda t: raw(t, "wait")
    out = []
    pre = [W("s_waitcnt vmcnt(0) lgkmcnt(0)"),
           valu("v_mbcnt_lo_u32_b32", ta, -1, 0), valu("v_mbcnt_hi_u32_b32", ta, -1, ta),
           valu("v_and_b32", tb, 15, ta), valu("v_lshrrev_b32", ta, 4, ta),
           valu("v_lshlrev_b32", fa, 9, tb), valu("v_lshl_add_u32", so, ta, 3, fa), valu("v_lshl_add_u32", fa, ta, 4, fa),
           sop(f"s_sub_u32 {s_t0}, {s_mX}, {VB}"), valu("v_add_u32", va0, s_t0, vaddr0), valu("v_add_u32", va1, s_t0, vaddr1),
           sop(f"s_lshl_b32 {s_t0}, {s_wave}, 13"), valu("v_subrev_u32", vop, s_t0, voV),
           sop(f"s_mov_b32 {sp}, 0")]
    out += fix_hazards(pre)
    out += [label("L_rp"), sop(f"s_bitcmp1_b32 {s_flags}, {sp}"), raw("s_cbranch_scc0 L_rp_next"), sop(f"s_mov_b32 {sb}, 0"), label("L_rb")]
    blk = [sop(f"s_lshl_b32 {sq}, {sb}, 13"), sop(f"s_add_u32 {sq}, {sq}, s80")]
    blk += [gload(rQ(k), sQ, sq, k * 64) for k in range(8)]
    blk += [valu("v_mov_b32", m, "0xff800000"), valu("v_mov_b32", l, 0)]
    blk += [valu("v_mov_b32", V(160 + k), 0) for k in range(64)]
    blk += [sop(f"s_mov_b32 {sk}, s81"), sop(f"s_mov_b32 {sv}, s81"), sop(f"s_mov_b32 {sj}, 0")]
    out += fix_hazards(blk) + [label("L_rj")]
    it = []
    for kvb in range(4):
        it += [gload(rK(k), sK, sk, k * 64) for k in range(8)] + [sop(f"s_add_u32 {sk}, {sk}, 8192"), W("s_waitcnt vmcnt(0)")]
        it += [mfma(rS(kvb), rK(k), rQ(k), rS(kvb) if k else 0) for k in range(8)]
    xs = [V(32 + k) for k in range(16)]
    it += [valu("v_max3_f32", ta, m, xs[0], xs[1])]
    it += [valu("v_max3_f32", ta, ta, xs[k], xs[k + 1]) for k in range(2, 16, 2)]
    it += [valu("v_mov_b32", tb, ta), perm("v_permlane16_swap_b32", ta, tb), valu("v_max_f32", ta, ta, tb),
           valu("v_mov_b32", tb, ta), perm("v_permlane32_swap_b32", ta, tb), valu("v_max_f32", ta, ta, tb),
           valu("v_sub_f32", al, m, ta), valu("v_mul_f32", al, s_c, al), valu("v_exp_f32", al, al), valu("v_mov_b32", m, ta)]
    it += [valu("v_sub_f32", x, x, m) for x in xs] + [valu("v_mul_f32", x, s_c, x) for x in xs] + [valu("v_exp_f32", x, x) for x in xs]
    it += [valu("v_mul_f32", l, l, al)] + [valu("v_add_f32", l, l, x) for x in xs]
    it += [valu("v_mul_f32", V(160 + k), V(160 + k), al) for k in range(64)]
    Pf = lambda ks: V(16 + 4 * ks, 4)
    for ks in range(2):
        for j in range(4): it.append(valu("v_cvt_pk_bf16_f32", Pf(ks)[j], xs[8 * ks + 2 * j], xs[8 * ks + 2 * j + 1]))
    for c in range(4):
        for j in range(8):
            it += [sop(f"s_add_u32 {s_t0}, {sv}, {j * 4096 + c * 128}", wr=[s_t0]), set_m0(s_mX, j * 1024), dma(vop, sV, s_t0, 0, None, "")]
        it += [W("s_waitcnt vmcnt(0)")]
        for dbl in range(4):
            for ks in range(2):
                for j4 in range(2):
                    it.append(ds_read("ds_read_b64_tr_b16", rV(2 * dbl + ks).sub(2 * j4, 2), va1 if dbl & 1 else va0, ks * 4096 + (dbl >> 1) * 512 + j4 * 2048))
        it += [W("s_waitcnt lgkmcnt(0)")]
        for dbl in range(4):
            for ks in range(2): it.append(mfma(rO(4 * c + dbl), rV(2 * dbl + ks), Pf(ks), rO(4 * c + dbl)))
    it += [nop(9), sop(f"s_add_u32 {sv}, {sv}, 32768"), sop(f"s_add_u32 {sj}, {sj}, 1"), sop(f"s_cmp_lt_u32 {sj}, 8"), raw("s_cbranch_scc1 L_rj")]
    out += fix_hazards(it)
    fin = [valu("v_mov_b32", tb, l), perm("v_permlane16_swap_b32", l, tb), valu("v_add_f32", l, l, tb),
           valu("v_mov_b32", tb, l), perm("v_permlane32_swap_b32", l, tb), valu("v_add_f32", l, l, tb), valu("v_rcp_f32", al, l)]
    for db in range(16):
        o = rO(db)
        fin += [valu("v_mul_f32", o[i], o[i], al) for i in range(4)]
        fin += [valu("v_cvt_pk_bf16_f32", o[0], o[0], o[1]), valu("v_cvt_pk_bf16_f32", o[1], o[2], o[3])]
        fin.append(Ins(f"buffer_store_dwordx2 {o.sub(0, 2)}, {so}, {sO}, {sq} offen offset:{db * 32}", "vmem", rd=[o.sub(0, 2), so, sO, sq]))
    fin += [W("s_waitcnt vmcnt(0)"), sop(f"s_add_u32 {sb}, {sb}, 1"), sop(f"s_cmp_lt_u32 {sb}, s82"), raw("s_cbranch_scc1 L_rb")]
    out += fix_hazards(fin)
    out += [label("L_rp_next")]
    out += [sop(f"s_mov_b32 s{80 + k}, s{83 + k}") for k in range(6)]
    out += [sop(f"s_add_u32 {sp}, {sp}, 1"), sop(f"s_cmp_lt_u32 {sp}, 3"), raw("s_cbranch_scc1 L_rp")]
    return out

def main():
    ap = argparse.ArgumentParser()
    ap.add_argument("-o", default="standalone__mha_softmax__near_ridge.s")
    ap.add_argument("--diag", type=int, default=0)
    ap.add_argument("--kvmod", default="")
    ap.add_argument("--qmod", default="nt")
    ap.add_argument("--omod", default="")
    ap.add_argument("--sched", default="t6_344_0")
    ap.add_argument("--pkmul", type=int, default=1)
    ap.add_argument("--rep", type=int, default=1)
    ap.add_argument("--r3epi", type=int, default=1)
    ap.add_argument("--hback", type=int, default=24)
    ap.add_argument("--hoist", default="")
    ap.add_argument("--twhen", type=int, default=2)
    ap.add_argument("--tkoff", type=int, default=24576)
    ap.add_argument("--cwarm", type=int, default=1)
    ap.add_argument("--late", type=int, default=1)
    ap.add_argument("--al8", type=int, default=0)
    ap.add_argument("--tstride", type=int, default=2048)
    ap.add_argument("--tstep", type=int, default=24576)
    ap.add_argument("--barlag", type=int, default=3)
    ap.add_argument("--epi_rd", type=int, default=1)
    ap.add_argument("--abl", type=int, default=0)
    ap.add_argument("--help_n", type=int, default=12)
    ap.add_argument("--omod3", default="")
    ap.add_argument("--omod4", default="")
    ap.add_argument("--wb", type=int, default=0)
    ap.add_argument("--nostore", type=int, default=0)
    ap.add_argument("--ca7", type=int, default=0)
    ap.add_argument("--show", type=int, default=0)
    ap.add_argument("--spread", type=int, default=1)
    ap.add_argument("--touch", type=int, default=2)
    ap.add_argument("--force", type=int, default=0)
    ap.add_argument("--padto", type=int, default=0)
    ap.add_argument("--defer", type=int, default=0)
    ap.add_argument("--warm", type=int, default=2)
    a = ap.parse_args()
    opt.__dict__.update(vars(a)); opt.nextq = 1
    if opt.hoist:
        h = [int(x) for x in opt.hoist.split(",")]; HOIST[4] = (h[0], h[1]); HOIST[3] = (h[2], h[3])
    L = []; A = L.append
    hdr = open("standalone__mha_softmax__near_ridge.s.ref").read().split("\n")
    for l in hdr:
        if l.startswith("; @launch"): break
        A(l)
    A(f"; @launch grid=(256,1,1) block=(256,1,1) lds={LDS_BYTES}")
    A('.amdgcn_target "amdgcn-amd-amdhsa--gfx950"')
    A(f".text\n.globl {KNAME}\n.p2align 8\n.type {KNAME},@function\n{KNAME}:")
    L += setup_code()
    def emit(seq):
        for i in seq: L.append(i)
    if opt.rep > 1: A(f"s_mov_b32 s98, {opt.rep}\nL_again:")
    emit(stamp(0))
    SU = startup()
    emit(SU["a"]); emit(SU["h"]); A("L_nohelp:"); emit(SU["q"]); emit(SU["r2"]); A("L_noq3:"); emit(SU["r3"]); A("L_q3done:")
    emit(SU["lc"]); emit(SU["l"])
    A("L_first:")
    s4 = pass_begin() + [waitcnt(None, 0), barrier()] + head_reads()
    s4 = fix_hazards(s4 + sum([dma_V(0, 1), dma_V(0, 2), dma_V(0, 3), dma_K(7)][:opt.ca7], []))
    emit(s4)
    A("L_pass:")
    pb = [waitcnt(None, 0), barrier()]
    emit(pb)
    emit(stamp(1))
    A(f"s_cmp_eq_u32 {s_nbn}, 3\ns_cbranch_scc1 L_v3")
    VAR = {}
    for nb in (4, 3):
        P = variant(nb)
        hd = fix_hazards(P["hd"])
        b1 = fix_hazards(P["i1"], wrap=hd[-14:])
        b2 = fix_hazards(P["i2"], wrap=b1[-14:])
        b1b = fix_hazards(P["i1"], wrap=b2[-14:])
        assert [x.text for x in b1b] == [x.text for x in b1], "loop entry hazards differ"
        i6 = fix_hazards(P["i6"], wrap=b1[-14:])
        i7 = fix_hazards(P["i7"], wrap=i6[-14:])
        epi = fix_hazards(P["epi"], wrap=i7[-14:])
        es = strip_clusters(epi)
        assert len(fix_hazards(es, wrap=i7[-14:])) == len(es), "hazard on the skip path"
        es = strip_clusters(epi, "L_fo")
        assert len(fix_hazards(es, wrap=i7[-14:])) == len(es), "hazard on the skip path"
        VAR[nb] = dict(hd=hd, b1=b1, b2=b2, i6=i6, i7=i7, epi=epi)
        if opt.al8:
            for k in ("hd", "b1", "b2", "i6", "i7"): align8(VAR[nb][k])
        nn = sum(1 for p in VAR[nb].values() for x in p if x.kind == "nop")
        print(f"nb={nb}: sizes", {k: len(v) for k, v in VAR[nb].items()}, "nops", nn, file=sys.stderr)
        A(".p2align 6"); A(f"L_v{nb}:")
        emit(hd)
        emit(stamp(2))
        if opt.diag == 3:
            for k in range(3):
                A(f"s_sub_u32 s66, s{92+4*k}, s{90+4*k}\ns_mul_i32 s67, {s_pass}, 3\ns_add_u32 m0, s67, {20+k}\ns_nop 1\nv_writelane_b32 v0, s66, m0")
        if opt.al8: A(f".p2align {opt.al8}")
        A(f"L_loop{nb}:")
        emit(b1); A(f"s_cbranch_scc1 L_i6_{nb}")
        if opt.al8: A(".p2align 3")
        emit(b2); A(f"s_branch L_loop{nb}")
        if opt.al8: A(f".p2align {opt.al8}")
        A(f"L_i6_{nb}:")
        if opt.diag == 4: emit(stamp(9))
        if opt.al8: A(".p2align 3")
        emit(i6)
        if opt.diag == 4: emit(stamp(9))
        if opt.al8: A(".p2align 3")
        emit(i7)
        emit(stamp(3))
        emit(epi)
        emit(stamp(4))
        A(f"s_add_u32 {s_pass}, {s_pass}, 1\ns_cmp_lt_u32 {s_pass}, 3\ns_cbranch_scc1 L_pass\ns_branch L_done")
    tail = ([waitcnt(None, 0)] + [store(3, k) for k in range(8)]) if opt.defer else []
    traces = []
    import itertools
    for seqnb in itertools.product((3, 4), (3, 4), (3, 4), (0, 1)):
        hp = seqnb[3]; seqnb = seqnb[:3]
        tr = SU["a"] + (SU["h"] if hp else []) + SU["q"] + SU["r2" if seqnb[0] == 4 else "r3"] + ([] if hp else SU["l"]) + s4
        for pi, nb in enumerate(seqnb):
            v = VAR[nb]
            tr = tr + pb + v["hd"] + (v["b1"] + v["b2"]) * 2 + v["b1"] + v["i6"] + v["i7"] + strip_clusters(v["epi"], "L_sk" if pi == 2 else "L_fo")
        traces.append(tr + tail)
    resolve_vm(traces)
    for tr in traces:
        errs = check_trace(tr)
        if errs and not opt.abl:
            for e in errs[:20]: print("SYNC ERR", e, file=sys.stderr)
            raise SystemExit(1)
    if not opt.abl: cross_check(traces)
    A("L_done:")
    emit(tail)
    if opt.force: A(f"s_mov_b32 {s_flags}, {opt.force}")
    A(f"s_cmp_lg_u32 {s_flags}, 0\ns_cbranch_scc1 L_repair\nL_fin:")
    if opt.rep > 1:
        A("s_waitcnt vmcnt(0) lgkmcnt(0)\ns_barrier")
        raise SystemExit("rep unsupported now")
        A(f"s_mov_b32 {s_pass}, 0\ns_sub_u32 s98, s98, 1\ns_cmp_lg_u32 s98, 0\ns_cbranch_scc1 L_again")
    if opt.diag:
        A("s_waitcnt vmcnt(0)")
        emit(stamp(5))
        A(f"s_mov_b32 s66, 0x1000000\ns_mov_b32 s67, 0x20000")
        A(f"v_mbcnt_lo_u32_b32 v1, -1, 0\nv_mbcnt_hi_u32_b32 v1, -1, v1\nv_lshlrev_b32 v1, 2, v1")
        A(f"s_lshl_b32 s3, s2, 10\ns_lshl_b32 s4, {s_wave}, 8\ns_add_u32 s3, s3, s4")
        A("buffer_store_dword v0, v1, s[64:67], s3 offen")
        if opt.diag == 2:
            A(f"s_or_b32 s3, s2, {s_wave}\ns_cmp_lg_u32 s3, 0\ns_cbranch_scc1 L_exit")
            A("s_load_dwordx2 s[64:65], s[0:1], 32\ns_mov_b32 s66, 256\nv_readlane_b32 s4, v0, 0\nv_readlane_b32 s5, v0, 32\ns_waitcnt lgkmcnt(0)")
            idx = [2, 3, 4, 6, 8, 10, 12, 14]
            for j, k in enumerate(idx):
                A(f"v_readlane_b32 s6, v0, {k}\nv_readlane_b32 s7, v0, {k+32}\ns_sub_u32 s6, s6, s4\ns_sub_u32 s7, s7, s5\ns_nop 1\nv_writelane_b32 v2, s6, {j}\nv_writelane_b32 v2, s7, {j+8}")
            A("s_mov_b64 exec, 0xffff\nbuffer_store_dword v2, v1, s[64:67], 0 offen")
    if opt.wb == 1:
        A(f"s_cmp_lg_u32 {s_wave}, 0\ns_cbranch_scc1 L_exit\ns_waitcnt vmcnt(0)\nbuffer_wbl2 sc1\ns_waitcnt vmcnt(0)")
    if opt.wb == 2:
        A(f"s_cmp_lg_u32 {s_wave}, 0\ns_cbranch_scc1 L_exit\ns_cmp_eq_u32 s89, 0\ns_cbranch_scc1 L_exit\ns_waitcnt vmcnt(0)\nbuffer_wbl2 sc1\ns_waitcnt vmcnt(0)")
    if opt.wb == 3:
        A(f"s_waitcnt vmcnt(0)\nbuffer_wbl2 sc1")
    if opt.padto:
        A(f"s_waitcnt vmcnt(0)\nL_spin:\ns_memrealtime s[96:97]\ns_waitcnt lgkmcnt(0)\ns_sub_u32 s96, s96, s98\ns_cmp_lt_u32 s96, {opt.padto}\ns_cbranch_scc1 L_spin")
    A("L_exit:")
    A("s_endpgm")
    A("L_warm_end:")
    A("L_repair:")
    emit(repair_code())
    A("s_branch L_fin")
    A(".p2align 6\n.type L_table,@object\nL_table:")
    tab = schedule_table(opt.sched)
    for wg in range(256):
        w = []
        for h, st, n in tab[wg]:
            w += [(h * SQ + st * 16) * 512, h * SK * 512, n]
        w += [THR.get(wg, 0), HELP.get(wg, OOB), RANK.get(wg, 0), HELPN.get(wg, 12)]
        w += [0] * (16 - len(w))
        A(".long " + ", ".join(str(x) for x in w))
    A(".size L_table, 16384")
    A('.section .rodata,"a"\n.p2align 6')
    A(f".amdhsa_kernel {KNAME}")
    A("  .amdhsa_next_free_vgpr 512\n  .amdhsa_next_free_sgpr 102\n  .amdhsa_accum_offset 256\n  .amdhsa_group_segment_fixed_size 0")
    A("  .amdhsa_kernarg_size 48\n  .amdhsa_user_sgpr_count 2\n  .amdhsa_user_sgpr_kernarg_segment_ptr 1\n  .amdhsa_system_sgpr_workgroup_id_x 1")
    A(".end_amdhsa_kernel")
    open(opt.o, "w").write("\n".join((x if isinstance(x, str) else x.text) for x in L if x is not None) + "\n")

if __name__ == "__main__":
    main()
```

```python
import sys, argparse
from asmlib import *

KNAME = "standalone__mha_softmax__near_ridge_kernel"
NH, SQ, SK, D = 128, 1312, 512, 256
QBYTES = NH * SQ * D * 2
KBYTES = NH * SK * D * 2
OOB = 0x7fff0000
VB = 65536
XB = 131072
LDS_BYTES = 163840
C_SCALE = 0x3db8aa3b
L_LIMIT = 0x4e800000

sQ, sK, sV, sO = S(8, 4), S(12, 4), S(16, 4), S(20, 4)
s_wave = S(24)
s_mK = S(25)
s_mX = S(26)
s_mR2 = S(27)
s_mOS = S(28)
s_kptr, s_kend, s_knext = S(29), S(30), S(31)
s_vptr, s_vptr2, s_vend = S(32), S(33), S(34)
s_c = S(35)
s_cnt = S(36)
s_pass = S(37)
s_flags = S(38)
s_qn = [S(40), S(41), S(42), S(43)]
s_ocur = S(44)
s_t0, s_t1, s_t2 = S(45), S(46), S(47)
s_tab = S(48, 16)
s_dbg = S(64, 4)
s_ts = S(68, 2)
s_nbn = S(70)
s_tsp = S(71)
s_mR3 = S(39)
s_tq, s_tk, s_tv, s_xm, s_xq = S(90), S(91), S(92), S(93), S(94)
sC = S(96, 4)
s_cs = S(95)
s_str = S(34)
s_ok = [S(72 + k) for k in range(8)]
kaddr, vaddr0, vaddr1, voK, voV = V(1), V(2), V(3), V(4), V(5)
lsum = lambda b: V(6 + b)
vt0, vt1 = V(10), V(11)
voQa, voQb = V(12), V(13)
vsto, wa0 = V(14), V(15)
Ct = lambda b: V(16 + 4 * b, 4)
SET = lambda i: V(32 + 16 * i, 16)
Sx = lambda i, b: SET(i).sub(4 * b, 4)
Q = lambda b, s: AG(b * 32 + s * 4, 4)
NF = 8
F = lambda i: AG(128 + 4 * (i % NF), 4)
def O(b, db):
    t = db * 4 + b
    return V(96 + 4 * t, 4) if t < 40 else AG(160 + 4 * (t - 40), 4)

M0 = ('m0', 0)
def set_m0(base, off):
    i = salu(f"s_add_u32 m0, {base}, {off}", rd=[base]); i.wr = {M0}; return i
def sop(text, rd=(), wr=()): return salu(text, rd=rd, wr=wr)

class Opt: pass
opt = Opt()

def dma(vo, srd, soff, imm, unit, mods):
    i = Ins(f"buffer_load_dwordx4 {vo}, {srd}, {soff} offen offset:{imm} {mods} lds".replace("  ", " "), "vmem", rd=[vo, srd, soff])
    i.rd.add(M0); i.dma_wr = unit; i.vm = True
    return i

def kslot_addr(slot): return slot * 8192
def vslot_addr(par, c): return VB + (par * 4 + c) * 8192

def dma_K(slot, wrap=False):
    r = []
    for dh in range(2):
        r.append(set_m0(s_mK, kslot_addr(slot) + dh * 768))
        r.append(dma(voK, sK, s_kptr, dh * 256, ("K", slot), opt.kvmod))
    r.append(sop(f"s_add_u32 {s_kptr}, {s_kptr}, 8192", rd=[s_kptr], wr=[s_kptr]))
    if wrap:
        r.append(sop(f"s_cmp_eq_u32 {s_kptr}, {s_kend}", rd=[s_kptr, s_kend]))
        r[-1].glue = True
        r.append(sop(f"s_cselect_b32 {s_kptr}, {s_knext}, {s_kptr}", rd=[s_kptr, s_knext], wr=[s_kptr]))
    return r

def dma_V(par, c, wrap=False):
    r = []
    if c == 0:
        r.append(sop(f"s_add_u32 {s_vptr}, {s_vptr}, 32768", rd=[s_vptr], wr=[s_vptr]))
        if wrap:
            r.append(sop(f"s_cmp_eq_u32 {s_vptr}, {s_vend}", rd=[s_vptr, s_vend]))
            r[-1].glue = True
            r.append(sop(f"s_cselect_b32 {s_vptr}, {s_knext}, {s_vptr}", rd=[s_vptr, s_knext], wr=[s_vptr]))
        r.append(sop(f"s_add_u32 {s_vptr2}, {s_vptr}, 4096", rd=[s_vptr], wr=[s_vptr2]))
    for e in range(2):
        r.append(set_m0(s_mK, vslot_addr(par, c) + e * 1024 - c * 128))
        r.append(dma(voV, sV, s_vptr2 if e else s_vptr, c * 128, ("V", par, c), opt.kvmod))
    return r

def dma_Q(base, soff, unit):
    r = []
    for hi in range(2):
        for dh in range(2):
            r.append(set_m0(base, hi * 4096 + dh * 768))
            for Rl in range(2):
                r.append(dma(voQb if hi else voQa, sQ, soff, Rl * 2048 + dh * 256, unit, opt.qmod))
    return r

def q_reads(b, base_sgpr, unit, tmp):
    r = [valu("v_add_u32", tmp, base_sgpr, kaddr)]
    for s in range(8):
        i = ds_read("ds_read_b128", Q(b, s), tmp, s * 256, tag=("q", b, s)); i.lds_rd = unit; i.private = True
        r.append(i)
    return r

def waitcnt(vm=None, lgkm=None):
    t = "s_waitcnt" + (f" vmcnt({vm})" if vm is not None else "") + (f" lgkmcnt({lgkm})" if lgkm is not None else "")
    i = raw(t, "wait"); i.vmw = vm; i.lgw = lgkm
    return i
def vwait(units, lgkm=None):
    i = raw("s_waitcnt ?", "wait"); i.vmneed = list(units); i.vmw = None; i.lgw = lgkm; i.vmauto = 63
    return i
def barrier():
    i = raw("s_barrier", "misc"); i.bar = True; return i

class Seg:
    def __init__(self, nb, name):
        self.nb = nb; self.name = name
        self.mf = []; self.nodes = []
        self.pairs = []
        self.blk = {}
        self.fixed = {}
        self.done = {}
        self.first = {}
        self.fixed2 = {}

    def qblock(self, name, slot, dst, czero, fbase):
        nb = self.nb; st = len(self.mf)
        for sp in range(4):
            p0 = len(self.mf)
            tags = [("f", self.name, name, 2 * sp + e) for e in range(2)]
            for b in range(nb):
                for e in range(2):
                    s = 2 * sp + e
                    d = Sx(dst, b)
                    c = d if s else (0 if czero else Ct(b))
                    self.mf.append(mfma(d, F(fbase + s), Q(b, s), c, need=tags))
                    self.done[(name, b)] = len(self.mf) - 1
            rd = []
            for e in range(2):
                s = 2 * sp + e
                i = ds_read("ds_read_b128", F(fbase + s), kaddr, kslot_addr(slot) + s * 256, tag=tags[e]); i.lds_rd = ("K", slot)
                rd.append(i)
            self.pairs.append((p0, len(self.mf) - 1, rd))
        self.blk[name] = (st, len(self.mf))

    def pblock(self, name, par, c, x0, x1, czero, fbase):
        self.pgen(name, par, [[(c, dbl, 0), (c, dbl, 1)] for dbl in range(4)], x0, x1, czero)

    def pgen(self, name, par, prs, x0, x1, czero):
        nb = self.nb; st = len(self.mf)
        for pi, pr in enumerate(prs):
            p0 = len(self.mf)
            fb = 2 * len(self.pairs)
            tags = [("f", self.name, name, 2 * pi + e) for e in range(2)]
            for b in range(nb):
                for e, (c, dbl, ks) in enumerate(pr):
                    o = O(b, 4 * c + dbl)
                    cc = 0 if (czero and ks == 0) else o
                    self.first.setdefault(("P", ks, b), len(self.mf))
                    self.first.setdefault(("O", c), len(self.mf))
                    if opt.abl & 512: self.mf.append(mfma(o, Sx(x1 if ks else x0, b), F(fb + e), cc, need=tags))
                    else: self.mf.append(mfma(o, F(fb + e), Sx(x1 if ks else x0, b), cc, need=tags))
            rd = []
            for e, (c, dbl, ks) in enumerate(pr):
                f = F(fb + e)
                va = vaddr1 if (dbl & 1) else vaddr0
                off = vslot_addr(par, c) - VB + ks * 4096 + (dbl >> 1) * 512
                for j4 in range(2):
                    i = ds_read("ds_read_b64_tr_b16", f.sub(2 * j4, 2), va, off + j4 * 2048, tag=tags[e] if j4 else ("x",))
                    i.lds_rd = ("V", par, c)
                    rd.append(i)
            self.pairs.append((p0, len(self.mf) - 1, rd))
        self.blk[name] = (st, len(self.mf))

    def unit(self, src, even_set, odd, blocks, e_of, dl_crit, dl_add, lo, hi, add_lo=None, add_hi=None, pre=None, after=None, fma=None):
        crit = []; adds = []; res = {}
        for b in blocks:
            x = Sx(src, b); ev = Sx(even_set, b)
            ms = []
            for i in range(4):
                deps = [(n, 0) for n in pre[b]] if pre else []
                ins = valu("v_fma_f32", x[i], x[i], s_c, fma[b]) if fma else valu("v_mul_f32", x[i], s_c, x[i])
                ms.append(Node(ins, e=e_of(b), dl=dl_crit(b), deps=deps))
            ex = [Node(valu("v_exp_f32", x[i], x[i]), e=e_of(b), dl=dl_crit(b), deps=[(ms[i], 0)]) for i in range(4)]
            ad = []
            for i in range(4):
                deps = [(ex[i], 1)] + ([(ad[-1], 0)] if ad else [])
                ad.append(Node(valu("v_add_f32", lsum(b), lsum(b), x[i]), e=e_of(b), dl=(dl_add if odd else dl_crit(b)), deps=deps))
            aft = [(n, 0) for n in (after or {}).get(b, [])]
            if odd:
                c0 = Node(valu("v_cvt_pk_bf16_f32", ev[2], x[0], x[1]), e=e_of(b), dl=dl_crit(b), deps=[(ex[0], 1), (ex[1], 1)] + aft)
                c1 = Node(valu("v_cvt_pk_bf16_f32", ev[3], x[2], x[3]), e=e_of(b), dl=dl_crit(b), deps=[(ex[2], 1), (ex[3], 1)] + aft)
                crit += [ms[0], ms[1], ex[0], ex[1], ms[2], ms[3], ex[2], ex[3], c0, c1]
                adds += ad
            else:
                c0 = Node(valu("v_cvt_pk_bf16_f32", x[0], x[0], x[1]), e=e_of(b), dl=dl_crit(b), deps=[(ex[0], 1), (ex[1], 1), (ad[0], 0)])
                c1 = Node(valu("v_cvt_pk_bf16_f32", x[1], x[2], x[3]), e=e_of(b), dl=dl_crit(b), deps=[(ex[2], 1), (ex[3], 1), (ad[1], 0), (c0, 0)])
                crit += [ms[0], ms[1], ex[0], ex[1], ms[2], ms[3], ex[2], ex[3], ad[0], ad[1], ad[2], ad[3], c0, c1]
            res[b] = [c0, c1] + ad
        spread(crit, lo, hi)
        if adds: spread(adds, add_lo if add_lo is not None else lo, add_hi if add_hi is not None else hi)
        self.nodes += crit + adds
        return res

    def chain(self, instrs, lo, hi, e=None, dl=None, first_dep=None):
        prev = first_dep; out = []
        for i in instrs:
            gapd = 0
            if prev is not None:
                pk = prev.ins.kind
                gapd = 1
                if pk == "ds" and i.kind == "ds": gapd = 0
            n = Node(i, e=lo if e is None else e, dl=(10**9 if dl is None else dl), deps=[(prev, gapd)] if prev else [])
            out.append(n); prev = n
        k = len(out)
        for j, n in enumerate(out): n.ideal = lo + (hi - lo) * j / max(k, 1)
        self.nodes += out
        return out

    def reads(self, nxt_pairs, skip_first=3, barrier_before=()):
        pairs = self.pairs; ext = [p[2] for p in pairs] + list(nxt_pairs)
        prev = None
        plen = 2 * self.nb
        for k in range(skip_first, len(ext)):
            j = k - 4
            e = pairs[j][1] if j >= 0 else 0
            if k in barrier_before:
                g = e - 1 + (opt.barlag if self.nb == 3 else opt.barlag4) if j >= 0 else 0
                g = min(g, len(self.mf) - 2)
                if opt.barsplit and g > 0 and len(barrier_before[k]) == 2:
                    self.fixed[g] = barrier_before[k][1:]
                    self.fixed2[g - 1] = barrier_before[k][:1]
                else:
                    self.fixed[g] = barrier_before[k]
                self.bar_gap = getattr(self, "bar_gap", {}); self.bar_gap[k] = g
                e = g + 1
            dl = e + plen - 2
            if (k + 1) in barrier_before: dl = e + 1
            for i in ext[k]:
                n = Node(i, e=e, dl=min(dl, len(self.mf) - 1), ideal=e - 2, deps=[(prev, 0)] if prev else [])
                self.nodes.append(n); prev = n

    def build(self, nxt_first=None):
        n = len(self.mf)
        ft = set(); seen = set()
        for g, m in enumerate(self.mf):
            key = tuple(m.need)
            if key not in seen:
                seen.add(key)
                if g > 0: ft.add(g - 1)
        ft.add(n - 1)
        blocked = {}
        for g in self.fixed: ft.add(g); blocked[g] = opt.barblk
        for g in self.fixed2: ft.add(g)
        gaps, over = schedule2(self.mf, self.nodes, free_taken=ft, blocked=blocked, nomem=set(self.fixed2) | set(self.fixed))
        for g, ins in self.fixed2.items():
            gaps[g][1][0:0] = ins
        for g, ins in self.fixed.items():
            gaps[g][1][0:0] = ins
        self.over = over
        if getattr(opt, "show", 0):
            cost = lambda i: 8 if i.kind == "vmem" else i.cost
            for nme, (a, b) in self.blk.items():
                row = ""
                for g in range(a, b):
                    u = sum(cost(i) for i in gaps[g][2]) + 4 * max(0, len(gaps[g][1]) - (0 if g in ft and g not in self.fixed else 1))
                    row += "B" if g in self.fixed else (str(u // 4) if u < 40 else "#")
                print(f"  nb{self.nb} {self.name} {nme}: {row}", file=sys.stderr)
        return gaps

def sets_for(par):
    return (0, 1, 2, 3) if par == 0 else (3, 2, 1, 0)

def first_pairs_of_iter(nb, J, name):
    s = Seg(nb, name); par = J & 1
    X0, X1, A_, B_ = sets_for(par)
    s.qblock("t0", 4 * ((J + 1) & 1), A_, False, 0)
    return [p[2] for p in s.pairs[:3]]

SPLIT = {4: 3, 3: 2}

LAT = 4
def units_of(J, h):
    par = J & 1; kb = 4 * ((J + 1) & 1)
    return [("K", kb), ("K", kb + 1), ("K", kb + 2), ("V", par, 0)] if h == 0 else [("V", par, 1), ("V", par, 2), ("V", par, 3), ("K", kb + 3)]

def iter_blocks(s, J, cz, split=0):
    par = J & 1
    X0, X1, A_, B_ = sets_for(par)
    kb = 4 * ((J + 1) & 1)
    s.qblock("t0", kb + 0, A_, False, 0)
    s.qblock("t1", kb + 1, B_, False, 0)
    if split == 2:
        s.pgen("t2", par, [[(0, 0, 0), (0, 1, 0)], [(0, 2, 0), (0, 3, 0)], [(0, 0, 1), (0, 1, 1)], [(0, 2, 1), (0, 3, 1)]], X0, X1, cz)
    elif split == 1:
        s.pgen("t2", par, [[(0, 0, 0), (0, 1, 0)], [(0, 0, 1), (0, 1, 1)], [(0, 2, 0), (0, 2, 1)], [(0, 3, 0), (0, 3, 1)]], X0, X1, cz)
    else:
        s.pblock("t2", par, 0, X0, X1, cz, 0)
    s.qblock("t3", kb + 2, A_, False, 0)
    s.pblock("t4", par, 1, X0, X1, cz, 0)
    s.pblock("t5", par, 2, X0, X1, cz, 0)
    s.qblock("t6", kb + 3, A_, False, 0)
    s.pblock("t7", par, 3, X0, X1, cz, 0)

def iter_units(s, J, u2, lo3=None):
    nb = s.nb; B = s.blk; n = len(s.mf)
    X0, X1, A_, B_ = sets_for(J & 1)
    p0s = s.first[("P", 1, 0)] - 1
    s.unit(A_, X1, True, range(nb), lambda b: s.done[("t0", b)] + LAT, lambda b: s.first[("P", 1, b)] - 2, B["t3"][0] - 2,
           lo3 if lo3 is not None else B["t0"][1] - 2, p0s - 1, add_lo=p0s, add_hi=B["t3"][0] - 4, after=u2)
    u0 = s.unit(B_, B_, False, range(nb), lambda b: s.done[("t1", b)] + LAT, lambda b: B["t4"][0] + 4, None,
                p0s + 2, B["t4"][0] - 2)
    s.unit(A_, B_, True, range(nb), lambda b: s.done[("t3", b)] + LAT, lambda b: B["t6"][0] - 2, B["t6"][0] - 2,
           B["t4"][0], B["t6"][0] - 4, add_lo=B["t4"][0] + 4, add_hi=B["t6"][0] - 3, after=u0)
    s.unit(A_, A_, False, range(SPLIT[nb]), lambda b: s.done[("t6", b)] + LAT, lambda b: n - 1, None,
           B["t7"][0], n - 3)

def make_mid(nb, J, name, nxt_name, special=False):
    par = J & 1
    X0, X1, A_, B_ = sets_for(par)
    kb = 4 * ((J + 1) & 1)
    s = Seg(nb, name)
    iter_blocks(s, J, False, split=(1 if nb == 3 else 0))
    n = len(s.mf); B = s.blk
    u2 = s.unit(X1, X1, False, list(range(SPLIT[nb], nb)), lambda b: 0, lambda b: B["t0"][1] + 2, None, 0, B["t0"][1] - 4)
    iter_units(s, J, u2)
    npair = len(s.pairs)
    nxt = first_pairs_of_iter(nb, J + 1, nxt_name)
    need2 = units_of(J + 1, 0) + (units_of(J + 1, 1) if special else [])
    s.reads(nxt, barrier_before={16: [vwait(units_of(J, 1), 0), barrier()], npair: [vwait(need2, 0), barrier()]})
    g1 = s.bar_gap[16]; g2 = s.bar_gap[npair]
    npar = (J + 1) & 1
    if opt.spread:
        gg = [dma_V(npar, 1), dma_V(npar, 2), dma_V(npar, 3), dma_K(4 * ((J + 2) & 1) + 3)]
        k0 = 3
        c0 = s.chain(sum(gg[:k0], []), 2, B["t0"][1] + 2, dl=g1 - 1)
        c0 = s.chain(sum(gg[k0:], []), B["t2"][0] + 10, g1 - 2, dl=g1 - 1, first_dep=c0[-1])
        lo1, hi1 = (g1 + 14, g2 - 4) if nb == 4 else (B["t4"][0] + 14, g2 + 2)
    else:
        g0 = dma_V(npar, 1) + dma_V(npar, 2) + dma_V(npar, 3) + dma_K(4 * ((J + 2) & 1) + 3)
        c0 = s.chain(g0, 0, B["t0"][1] + 2, dl=g1 - 1)
        lo1, hi1 = B["t5"][0] + 8, B["t7"][0]
    if special:
        s.chain(dma_Q(s_mR3, s_qn[1], ("R3",)), g1 + 2, B["t6"][1], e=g1 + 1, dl=g2 - 1, first_dep=c0[-1])
    else:
        tq = (lambda: touch(sQ, s_tq, 2048)) if (opt.touch & 1 and J & 1) else (lambda: [])
        tk = (lambda: touch(sK, s_tk, 12 << (opt.tsh + 6))) if (opt.touch & 2 and opt.twhen >> (J & 1) & 1) else (lambda: [])
        tv = (lambda: touch(sV, s_tv, 12 << (opt.tsh + 6))) if (opt.touch & 2 and opt.twhen >> (J & 1) & 1) else (lambda: [])
        xq = [[], []]
        if not J & 1:
            for hi in range(2):
                xq[hi] = [set_m0(s_xm, hi * 4096)] + [dma(voQb if hi else voQa, sQ, s_xq, Rl * 2048, ("X",), opt.qmod) for Rl in range(2)]
            xq[1] += [sop(f"s_add_u32 {s_xm}, {s_xm}, 1024", wr=[s_xm]), sop(f"s_add_u32 {s_xq}, {s_xq}, 256", wr=[s_xq])]
        tc = touch(sC, s_cs, 0)[:1] if (opt.cwarm and (J & 1 or opt.cwarm > 1)) else []
        g1l = tc + dma_K(kb + 0, wrap=(J & 1) == 1) + tq() + xq[0] + dma_K(kb + 1) + tq() + tk() + xq[1] + dma_K(kb + 2) + tq() + tv() + dma_V(par, 0)
        last = s.chain(g1l, lo1, hi1, e=g1 + 1, dl=g2 - 1, first_dep=c0[-1])[-1]
        if J & 1:
            s.chain([sop(f"s_sub_u32 {s_cnt}, {s_cnt}, 1"), sop(f"s_cmp_eq_u32 {s_cnt}, 0")], n - 6, n - 3, first_dep=last)
    return s

def touch(srd, sp, step):
    i = Ins(f"buffer_load_dword {vt0}, {vt1}, {srd}, {sp} offen", "vmem", rd=[vt1, srd, sp], wr=[vt0]); i.vm = True
    return [i, sop(f"s_add_u32 {sp}, {sp}, {step}", rd=[sp], wr=[sp])]

RL = lambda b: SET(0)[b]
WA = lambda k: wa0 if k == 0 else SET(0)[4 + k]
RA = SET(0)[8]
LT = SET(0)[9]
VS1 = SET(0)[10]
HOIST = {4: (4, 10), 3: (3, 4)}
PK = lambda c, k: O(k >> 1, 4 * c + (k & 1))

def butterfly(x, op, mid, out):
    q = []
    def add(i, deps): q.append((i, deps)); return len(q) - 1
    a = add(perm("v_permlane16_swap_b32", x[0], x[1]), [])
    b = add(perm("v_permlane16_swap_b32", x[2], x[3]), [])
    a = add(valu(op, x[0], x[0], x[1]), [a])
    b = add(valu(op, x[2], x[2], x[3]), [b])
    c = add(perm("v_permlane32_swap_b32", x[0], x[2]), [a, b])
    for i in mid(out[0], x[0], x[2]): c = add(i, [c])
    c = add(valu("v_mov_b32", out[2], out[0]), [c])
    c = add(perm("v_permlane32_swap_b32", out[0], out[2]), [c])
    a = add(valu("v_mov_b32", out[1], out[0]), [c])
    b = add(valu("v_mov_b32", out[3], out[2]), [c])
    a = add(perm("v_permlane16_swap_b32", out[0], out[1]), [a])
    b = add(perm("v_permlane16_swap_b32", out[2], out[3]), [b])
    return q

def nodes_of(q, first_deps, e, dl, ideal, step):
    nds = []
    for k, (i, deps) in enumerate(q):
        isp = i.op.startswith("v_permlane")
        d = [(nds[j], 2 if isp else (1 if nds[j].ins.kind == "trans" else 0)) for j in deps] if deps else [(x, 2 if isp else 0) for x in first_deps]
        nds.append(Node(i, e=e, dl=dl, deps=d, ideal=ideal + step * k))
    return nds

def make_last(nb, name):
    J = 7; par = 1
    X0, X1, A_, B_ = sets_for(par)
    s = Seg(nb, name)
    s.qblock("t0", 0, A_, False, 0)
    s.pgen("t2", par, [[(c, d, 0), (c, d + 1, 0)] for c in (0, 1) for d in (0, 2)], X0, X1, False)
    s.pgen("t4", par, [[(c, d, 1), (c, d + 1, 1)] for c in (0, 1) for d in (0, 2)], X0, X1, False)
    s.pblock("t5", par, 2, X0, X1, False, 0)
    s.pblock("t7", par, 3, X0, X1, False, 0)
    n = len(s.mf); B = s.blk
    u2 = s.unit(X1, X1, False, list(range(SPLIT[nb], nb)), lambda b: 0, lambda b: B["t0"][1] + 2, None, 0, B["t0"][1] - 4)
    k1 = B["t4"][0]
    u3 = s.unit(A_, X1, True, range(nb), lambda b: s.done[("t0", b)] + LAT, lambda b: s.first[("P", 1, b)] - 2, B["t5"][0] + 6,
                B["t0"][1] - 2, k1 - 1, add_lo=k1, add_hi=B["t5"][0], after=u2)
    npair = len(s.pairs)
    t0e = B["t0"][1]
    def qchain(b, base, unit, tmp, lo, hi, pre, dl=None, first_dep=None):
        ins = pre + q_reads(b, base, unit, tmp)
        nds = s.chain(ins, lo, hi, dl=dl, first_dep=first_dep)
        for k, nd in enumerate(nds[len(pre) + 1:]):
            nd.e = max(nd.e, s.pairs[k // 2][1] + 1)
        return nds
    if opt.r3epi:
        s.reads([[]], barrier_before={npair: [waitcnt(None, 0), barrier()]})
        g2 = s.bar_gap[npair]; gR = B["t4"][0] + 8
        c2 = s.chain(dma_Q(s_mR2, s_qn[2], ("R2",)), 0, B["t2"][1] - 4)
        r0 = qchain(0, s_mX, ("X",), vt0, t0e - 10, t0e + 10, [vwait([("X",)])])
        r1 = qchain(1, s_mR3, ("R3",), vt1, B["t4"][0] + 6, B["t5"][0] + 6, [vwait([("R3",)])], dl=g2 - 5, first_dep=r0[-1])
        c3 = s.chain([mark_wait_lds(("q", 0, 7))] + dma_Q(s_mX, s_qn[3], ("X",)), B["t4"][0], g2)
        c3[0].deps = [(r0[-1], 5), (c2[-1], 1)]
        c4 = s.chain([sop(f"s_sub_u32 {s_vptr}, {s_knext}, 32768", wr=[s_vptr])], 2, 4)
    else:
        kR = 12
        s.reads([[]], barrier_before={kR + 2: [waitcnt(None, 0), barrier()], npair: [waitcnt(None, 0), barrier()]})
        gR = s.bar_gap[kR + 2]; g2 = s.bar_gap[npair]
        c2 = s.chain(dma_Q(s_mR2, s_qn[2], ("R2",)), 0, B["t0"][1] - 2)
        r0 = qchain(0, s_mX, ("X",), vt0, t0e - 10, t0e + 10, [vwait([("X",)])], dl=gR - 5)
        r1 = qchain(1, s_mR3, ("R3",), vt1, t0e + 10, gR - 8, [vwait([("R3",)])], dl=gR - 5, first_dep=r0[-1])
        c3 = s.chain([mark_wait_lds(("q", 0, 7))] + dma_Q(s_mX, s_qn[3], ("X",)), t0e + 16, gR + 4)
        c3[0].deps = [(r0[-1], 5), (c2[-1], 1)]
        refill = [sop(f"s_sub_u32 {s_vptr}, {s_knext}, 32768", wr=[s_vptr])] + dma_K(4) + dma_K(5) + dma_K(6) + dma_V(0, 0)
        c4 = s.chain(refill, gR + 4, g2 - 2, e=gR + 1, first_dep=c3[-1])
        r2 = s.chain([vwait([("R2",)])] + q_reads(2, s_mR2, ("R2",), vt0), g2 - 16, g2 - 6, dl=g2 - 4, first_dep=r1[-1])
        nca = opt.ca7
        grp = [dma_V(0, 1), dma_V(0, 2), dma_V(0, 3), dma_K(7)]
        c5 = s.chain(sum(grp[:nca], []), g2 + 1, n - 2, e=g2 + 1, first_dep=c4[-1]) if nca else c4
    ok = [sop(f"s_add_u32 {s_ok[k]}, {s_ocur}, {k * 4096}", wr=[s_ok[k]]) if (k < 2 * nb and not opt.nostore) else sop(f"s_mov_b32 {s_ok[k]}, {OOB:#x}", wr=[s_ok[k]]) for k in range(8)]
    k0 = s.chain(ok, 4, t0e + 8)
    pbg = pass_begin()
    q3w = [i for i in pbg if i.text.startswith(f"s_mov_b32 {s_qn[3]},")][0]
    if opt.r3epi:
        pbg.remove(q3w); pbg.append(sop(f"s_mov_b32 {s_qn[3]}, {s_tab[3]}"))
        k1 = s.chain(pbg, gR + 6, n - 3, first_dep=k0[-1])
        k1[0].deps += [(c2[-1], 1), (c4[0], 1)]; k1[-1].deps += [(c3[-1], 1)]
    else:
        k1 = s.chain(pbg, gR + 6, n - 4, first_dep=k0[-1])
        k1[0].deps += [(c3[-1], 1), (c4[0], 1)]
    q = butterfly([lsum(b) for b in range(4)], "v_add_f32", lambda d, x, y: [valu("v_add_f32", LT, x, y), valu("v_rcp_f32", d, LT)], [RL(b) for b in range(4)])
    red = nodes_of(q, [x for b in range(nb) for x in u3[b][2:]], 0, 10**9, B["t5"][0] + 2, 1.5)
    rl_done = red[-2:]
    ad = [valu("v_xor_b32", WA(k), 16 * k, wa0) for k in (1, 2, 3)]
    ad += [valu("v_mbcnt_lo_u32_b32", RA, -1, 0), valu("v_mbcnt_hi_u32_b32", RA, -1, RA), valu("v_lshl_add_u32", RA, RA, 3, s_mOS),
           valu("v_xor_b32", VS1, 32, RA)]
    prev = None
    for k, i in enumerate(ad):
        nd = Node(i, deps=[(prev, 0)] if prev else [], ideal=B["t0"][1] - 12 + k); red.append(nd); prev = nd
    s.nodes += red
    t7s = B["t7"][0]
    order, acct = epi_order(nb)
    na, nc = HOIST[nb]
    hs = g2 - opt.hback
    for k in range(na * 4):
        t_ = acct[k // 4]; i = k % 4
        s.nodes.append(Node(acc_read(TMP(k // 4)[i], O(t_[2], 4 * t_[0] + t_[1])[i]), e=t7s + LAT + 1, ideal=g2 + 1 + k * 0.6,
                            deps=[(x, 0) for b in range(nb) for x in u3[b]]))
    for k in range(nc):
        c, dbl, b = order[k]; o = O(b, 4 * c + dbl)
        ms = [Node(valu("v_mul_f32", o[i], o[i], RL(b)), e=B["t5"][0] + LAT, ideal=hs + 1 + na * 2.4 + 3 * k + 0.5 * i, deps=[(x, 0) for x in rl_done]) for i in range(4)]
        c0 = Node(valu("v_cvt_pk_bf16_f32", o[0], o[0], o[1]), ideal=hs + 3 + na * 2.4 + 3 * k, deps=[(ms[0], 0), (ms[1], 0)])
        c1 = Node(valu("v_cvt_pk_bf16_f32", o[1], o[2], o[3]), ideal=hs + 3.5 + na * 2.4 + 3 * k, deps=[(ms[2], 0), (ms[3], 0), (c0, 0)])
        s.nodes += ms + [c0, c1]
    return s

TMP = lambda k: V(48 + 4 * (k % 12), 4)
def epi_order(nb):
    order = [(c, dbl, b) for c in range(4) for dbl in range(4) for b in range(nb)]
    return order, [t_ for t_ in order if O(t_[2], 4 * t_[0] + t_[1]).k == 'a']

def mark_wait_lds(tag):
    i = raw("s_nop 0", "nop"); i.need = [tag]; i.is_marker = True
    return i

def make_head(nb, name, nxt_name):
    X0, X1, A_, B_ = sets_for(1)
    s = Seg(nb, name)
    s.qblock("h0", 1, B_, True, 0)
    s.qblock("h1", 2, X0, True, 0)
    s.qblock("h2", 3, A_, False, 0)
    iter_blocks(s, 0, True, split=2)
    n = len(s.mf); B = s.blk
    tmp = SET(X1)
    pre = {}; nmc = {}
    part = []; emax = 0
    dlm = B["h2"][0] - 2
    for b in range(4):
        if b < nb:
            x = Sx(B_, b); e = s.done[("h0", b)] + LAT; emax = max(emax, e)
            n0 = Node(valu("v_max3_f32", tmp[b], x[0], x[1], x[2]), e=e, dl=dlm, ideal=e)
            n1 = Node(valu("v_max_f32", tmp[b], tmp[b], x[3]), e=e, dl=dlm, ideal=e + 0.5, deps=[(n0, 0)])
            s.nodes += [n0, n1]; part.append(n1)
        z = Node(valu("v_mov_b32", lsum(b), 0), e=0, dl=B["h0"][1], ideal=2 + b)
        s.nodes.append(z); pre[b] = [z]
    q = butterfly([tmp[b] for b in range(4)], "v_max_f32", lambda d, x, y: [valu("v_min_f32", d, Neg(x), Neg(y))], [Ct(b)[0] for b in range(4)])
    bf = nodes_of(q, part, 0, dlm, emax, 0.5)
    s.nodes += bf
    for b in range(nb):
        nmc[b] = tmp[8 + b]
        src = bf[-2] if b < 2 else bf[-1]
        n0 = Node(valu("v_mul_f32", nmc[b], s_c, Ct(b)[0]), dl=dlm, ideal=emax + 8 + b * 0.3, deps=[(src, 0)])
        s.nodes += [n0] + [Node(valu("v_mov_b32", Ct(b)[i], Ct(b)[0]), dl=dlm + 2 * b, ideal=emax + 12 + 2 * b + i * 0.5, deps=[(src, 0)]) for i in (1, 2, 3)]
        pre[b].append(n0)
    t0s = B["t0"][0]; t1s = B["t1"][0]
    u0 = s.unit(B_, B_, False, range(nb), lambda b: s.done[("h0", b)] + LAT, lambda b: t1s - 4, None, B["h1"][0] + 10, B["h2"][0] + 14, pre=pre, fma=nmc)
    u1 = s.unit(X0, B_, True, range(nb), lambda b: s.done[("h1", b)] + LAT, lambda b: t1s - 2, t1s - 2, B["h2"][0] + 14, t0s + 16, pre=pre, after=u0, fma=nmc)
    for nd in s.nodes:
        if nd.ins.text.startswith("v_fma_f32"): nd.dl = min(nd.dl, t0s - 2); nd.ideal = min(nd.ideal, t0s - 6)
    u2 = s.unit(A_, A_, False, range(nb), lambda b: s.done[("h2", b)] + LAT, lambda b: s.first[("P", 1, b)] - 4, None, t0s + 16, t1s + 14)
    iter_units(s, 0, u2, lo3=t1s + 14)
    prev = None
    for k, i in enumerate([valu("v_mbcnt_lo_u32_b32", vt1, -1, 0), valu("v_mbcnt_hi_u32_b32", vt1, -1, vt1), valu("v_lshlrev_b32", vt1, opt.tsh, vt1)]):
        nd = Node(i, deps=[(prev, 0)] if prev else [], ideal=8 + k); s.nodes.append(nd); prev = nd
    npair = len(s.pairs)
    nxt = first_pairs_of_iter(nb, 1, nxt_name)
    def tb(k, l):
        if opt.diag != 3: return l
        return [raw(f"s_memtime s[{90+4*k}:{91+4*k}]")] + l + [raw(f"s_memtime s[{92+4*k}:{93+4*k}]")]
    s.reads(nxt, barrier_before={12: tb(0, [vwait(units_of(0, 0), 0), barrier()]), 28: tb(1, [vwait(units_of(0, 1), 0), barrier()]),
                                 npair: tb(2, [vwait(units_of(1, 0), 0), barrier()])})
    g0 = s.bar_gap[12]; g1 = s.bar_gap[28]; g2 = s.bar_gap[npair]
    grp = [dma_V(0, 1), dma_V(0, 2), dma_V(0, 3), dma_K(7)][opt.ca7:] + [dma_K(0), dma_V(1, 0), dma_V(1, 1), dma_V(1, 2), dma_V(1, 3)]
    ca = s.chain(sum(grp[:4], []), 0, B["h0"][1] + 2, dl=g1 - 30)
    rest = grp[4:]
    nearly = max(0, len(rest) - 3 + min(3, opt.ca7)) if False else max(0, 6 - opt.ca7 - 4)
    cb = s.chain(sum(rest[:nearly], []) + dma_K(1) + dma_K(2), B["t1"][0], B["t4"][0], e=g0 + 1, first_dep=ca[-1])
    cc = s.chain(sum(rest[nearly:], []) + dma_K(3), B["t4"][0] + 8, B["t6"][0] + 4, first_dep=cb[-1])
    cd = s.chain(dma_K(4) + dma_K(5) + dma_K(6) + dma_V(0, 0), B["t6"][0] + 6, n - 4, e=g1 + 1, first_dep=cc[-1])
    prev = None
    nd_ = opt.defer
    sts = [(c, k) for c in range(4 - nd_, 4) for k in range(8)]
    lo, hi = 4, s.first[("O", 3)] - 6
    for j, (c, k) in enumerate(sts):
        nd = Node(store(c, k), dl=s.first[("O", c)] - 3, ideal=min(lo + (hi - lo) * j / len(sts), s.first[("O", c)] - 6 - 4 * (7 - k)), deps=[(prev, 2)] if prev else [])
        s.nodes.append(nd); prev = nd
    head = [i for p in s.pairs[:3] for i in p[2]]
    return s, head

def perm(op, a, b):
    i = valu(op, a, b, extra_rd=[a], extra_wr=[b]); i.cost = 8
    return i

def acc_read(d, a):
    i = Ins(f"v_accvgpr_read_b32 {d}, {a}", "acc", rd=[a], wr=[d]); return i

def make_epi(nb):
    r = []
    c_ = valu("v_cmp_ngt_f32", "vcc", hex(L_LIMIT), LT); c_.wr.add(('s', 'vcc')); r.append(c_)
    flagl = [raw(f"s_cbranch_vccz L_noflag{nb}"), sop(f"s_bitset1_b32 {s_flags}, {s_pass}"), label(f"L_noflag{nb}"),
             sop(f"s_cmp_lt_u32 {s_pass}, 2"), sop("s_cselect_b64 vcc, -1, 0")]
    ncl = [0]
    def fin_only(st):
        if st.quarter < 4 - opt.defer: return [st]
        ncl[0] += 1
        w = mark_wait_lds(st.need[0]); st.need = []
        return [w, raw(f"s_cbranch_vccnz L_fo{nb}_{ncl[0]}"), st, label(f"L_fo{nb}_{ncl[0]}")]
    def cluster(ins):
        ncl[0] += 1
        for i in ins: i.optional = True
        return [raw(f"s_cbranch_vccz L_sk{nb}_{ncl[0]}")] + ins + [label(f"L_sk{nb}_{ncl[0]}")]
    order, acct = epi_order(nb)
    slot = {t_: k for k, t_ in enumerate(acct)}
    accq = [(t_, i) for t_ in acct for i in range(4)]
    nacc = 4 * HOIST[nb][0]; done_acc = 0
    rdq = []; stq = []; oth = []; wq = []
    dq = [dma_K(4), dma_K(5), dma_K(6), dma_V(0, 0)] if opt.r3epi else []
    dstep = (len(order) * 3 // 4) // 4
    held = None
    for j, (c, dbl, b) in enumerate(order):
        o = O(b, 4 * c + dbl)
        want = min(len(acct) * 4, -(-(j + 1) * len(acct) * 4 // (len(order) - 4)))
        while nacc < len(acct) * 4 and (nacc < want or (o.k == 'a' and nacc < 4 * (slot[(c, dbl, b)] + 1))):
            if nacc // 4 >= done_acc + 12:
                assert not (o.k == 'a' and nacc < 4 * (slot[(c, dbl, b)] + 1)), "out of temps"
                break
            t_, i = accq[nacc]; nacc += 1
            r.append(acc_read(TMP(slot[t_])[i], O(t_[2], 4 * t_[0] + t_[1])[i]))
        t4 = TMP(slot[(c, dbl, b)]) if o.k == 'a' else o
        rlp = V(RL(b).n & ~1, 2); sel = RL(b).n & 1
        if j >= HOIST[nb][1]:
            for h in range(2):
                r.append(valu("v_pk_mul_f32", t4.sub(2 * h, 2), t4.sub(2 * h, 2), rlp, mods=f"op_sel:[0,{sel}] op_sel_hi:[1,{sel}]"))
            r += [valu("v_cvt_pk_bf16_f32", t4[0], t4[0], t4[1]), valu("v_cvt_pk_bf16_f32", t4[1], t4[2], t4[3])]
        if b % 2 == 0 and b + 1 < nb:
            held = (t4, o.k == 'a')
        else:
            na = int(o.k == 'a')
            if held is not None:
                w = Ins(f"ds_write2st64_b64 {WA(dbl)}, {held[0].sub(0, 2)}, {t4.sub(0, 2)} offset0:{(b - 1) * 2} offset1:{b * 2}", "ds",
                        rd=[WA(dbl), held[0].sub(0, 2), t4.sub(0, 2)], tag=("w", j))
                na += held[1]; held = None
            else:
                w = ds_write("ds_write_b64", WA(dbl), t4.sub(0, 2), b * 1024, tag=("w", j))
            w.lds_pw = ("OS",); wq.append((w, na))
        if j == 4: r += flagl
        if dq and j >= 6 and (j - 6) % dstep == 0: r += cluster(dq.pop(0))
        last = (dbl == 3 and b == nb - 1)
        for _ in range(opt.epi_rd):
            if rdq: r.append(rdq.pop(0))
        if not rdq or last:
            r += rdq; rdq = []
            k_ = 0
            while wq and (k_ < 1 or last):
                w, na = wq.pop(0); r.append(w); done_acc += na; k_ += 1
        if stq and j % 2 == 1 and stq[0][0] <= j: r += fin_only(stq.pop(0)[1])
        elif oth and j % 2 == 0 and not rdq:
            r += cluster(oth.pop(0))
        if last:
            for k in range(2 * nb):
                ra = VS1 if k & 1 else RA
                i = Ins(f"ds_read2st64_b64 {PK(c, k)}, {ra} offset0:{k} offset1:{8 + k}", "ds", rd=[ra], wr=[PK(c, k)], tag=("o", c, k))
                i.lds_rd = ("OS",); i.private = True
                rdq.append(i)
            if c < 3:
                for k in range(2 * nb):
                    st = store(c, k, nb); st.need = [("o", c, k if k < 3 else 2 * nb - 1)]; stq.append((j + 3 + k // opt.epi_rd, st))
            def halves(l): return [l[:len(l) - 4], l[len(l) - 4:]]
            if opt.r3epi:
                if c == 0: oth += [head_reads()]
                if c == 1: oth += halves([vwait([("R2",)])] + q_reads(2, s_mR2, ("R2",), vt0))
                if c == 2: oth += halves([vwait([("X",)])] + q_reads(3, s_mX, ("X",), vt1))
            else:
                if c == 0: oth += halves([vwait([("X",)])] + q_reads(3, s_mX, ("X",), vt0))
                if c == 1: oth += [head_reads()]
    assert not oth and not dq
    r += rdq
    for x in stq: r += fin_only(x[1])
    if opt.defer == 0:
        for k in range(2 * nb):
            st = store(3, k, nb); st.need = [("o", 3, k)]; r.append(st)
    return r

def head_reads():
    s = Seg(4, "hd"); s.qblock("h0", 1, 0, True, 0)
    return [i for p in s.pairs[:3] for i in p[2]]

def store(c, k, nb=None):
    data = PK(c, k)
    mod = {3: opt.omod3, 4: opt.omod4}.get(nb) or opt.omod
    vo = vsto
    i = Ins(f"buffer_store_dwordx4 {data}, {vo}, {sO}, {s_ok[k]} offen offset:{c * 128} {mod}".rstrip(), "vmem", rd=[data, vo, sO, s_ok[k]])
    i.wide_store = True; i.data = data.set(); i.vm = True; i.quarter = c
    return i

def lin(seq, pre=()):
    out = []; q = list(pre)
    for i in seq:
        if i.need:
            idx = -1
            for t in i.need:
                if t in q: idx = max(idx, len(q) - 1 - q[::-1].index(t))
            if idx >= 0:
                n = min(len(q) - 1 - idx, 15)
                out.append(waitcnt(None, n)); q = q[idx + 1:]
        if getattr(i, "lgw", None) is not None: q = q[len(q) - i.lgw:] if i.lgw else []
        if getattr(i, "is_marker", False): continue
        if i.kind == "ds" and not getattr(i, "optional", False): q.append(i.tag)
        out.append(i)
    return out, q

def flat(gaps, pre, nxt_need):
    out = []; q = list(pre)
    def wf(need):
        nonlocal q
        idx = -1
        for t in need:
            if t in q: idx = max(idx, len(q) - 1 - q[::-1].index(t))
        if idx < 0: return
        n = min(len(q) - 1 - idx, 15)
        out.append(waitcnt(None, n)); q = q[idx + 1:]
    for g, (m, sc, oth) in enumerate(gaps):
        wf(m.need)
        out.append(m)
        has_l0 = any(getattr(i, "lgw", None) == 0 for i in sc)
        if not has_l0:
            wf(gaps[g + 1][0].need if g + 1 < len(gaps) else nxt_need)
        for i in sc + oth:
            if i.need: wf(i.need)
            if getattr(i, "lgw", None) == 0: q = []
            if getattr(i, "is_marker", False): continue
            if i.kind == "ds": q.append(i.tag)
            out.append(i)
    return out, q

E32 = ("v_mul_f32", "v_add_f32", "v_exp_f32", "v_mov_b32", "v_max_f32", "v_xor_b32", "v_rcp_f32")
def isize(i):
    t = i.text
    if i.kind == "label": return 0
    op = t.split()[0]
    if op.startswith("s_"):
        import re
        m = re.findall(r"[ ,](0x[0-9a-f]+|-?\d+)\s*$", t)
        if op in ("s_waitcnt", "s_barrier", "s_nop") or op.startswith("s_cbranch") or op == "s_branch": return 4
        if m and not (-16 <= int(m[0], 0) <= 64): return 8
        return 4
    if op in E32 or op in ("v_add_u32", "v_lshlrev_b32", "v_permlane16_swap_b32", "v_permlane32_swap_b32"):
        return 8 if "-v" in t else 4
    return 8

def align8(seq, start=0):
    pos = start; cand = None
    for i in seq:
        if i.kind == "mfma":
            if pos % 8 and cand is not None:
                op = cand.text.split()[0]; cand.text = cand.text.replace(op, op + "_e64", 1); pos += 4
            cand = None
        sz = isize(i)
        if sz == 4 and i.text.split()[0] in E32 and cand is None: cand = i
        pos += sz
    return pos

def strip_clusters(seq, lab="L_sk"):
    out = []; skip = False
    for i in seq:
        if i.kind == "label" and i.text.startswith(lab): skip = False
        if not skip: out.append(i)
        if i.text.startswith("s_cbranch") and i.text.split()[1].startswith(lab): skip = True
    return out

def label(n): return Ins(n + ":", "label", states=0, cost=0)

def stamp(k):
    if not opt.diag: return []
    return [raw(f"s_memrealtime {s_ts}"), raw("s_memtime s[66:67]"), raw("s_waitcnt lgkmcnt(0)", "wait0"), raw(f"s_mov_b32 m0, {s_tsp}"), raw("s_nop 1"),
            raw(f"v_writelane_b32 v0, {s_ts.sub(0)}, m0"), raw(f"s_add_u32 m0, m0, 32"), raw("s_nop 1"), raw("v_writelane_b32 v0, s66, m0"),
            raw(f"s_add_u32 {s_tsp}, {s_tsp}, 1")]

def retag(q, old, new):
    return [tuple(new if x == old else x for x in t) if len(t) > 1 else t for t in q]

def variant(nb):
    P = {}
    hd, head = make_head(nb, "hd", "i1")
    i1 = make_mid(nb, 1, "i1", "i2")
    i2 = make_mid(nb, 2, "i2", "i1")
    i6 = make_mid(nb, 6, "i2", "i1", special=True)
    i7 = make_last(nb, "i1")
    SG = dict(hd=hd, i1=i1, i2=i2, i6=i6, i7=i7)
    G = {k: s.build() for k, s in SG.items()}
    print(f"nb={nb} overflow cycles:", {k: s.over for k, s in SG.items()}, file=sys.stderr)
    P["hd"], q0 = flat(G["hd"], [], G["i1"][0][0].need)
    P["i1"], q1 = flat(G["i1"], q0, G["i2"][0][0].need)
    P["i2"], q2 = flat(G["i2"], q1, G["i1"][0][0].need)
    assert q2 == q0, (q0, q2)
    for k in ("i1", "i2"):
        if opt.abl & 1024: P[k] = [i for i in P[k] if not i.text.startswith("v_add_f32")]
        if opt.abl & 2048: P[k] = [i for i in P[k] if not (i.kind == "ds" and "b128" in i.text)]
        if opt.abl & 4096: P[k] = [i for i in P[k] if not (i.kind == "ds" and "tr_b16" in i.text)]
        if opt.abl & 16: P[k] = [i for i in P[k] if not getattr(i, "bar", False)]
        if opt.abl & 32: P[k] = [i for i in P[k] if i.kind != "vmem"]
        if opt.abl & 64: P[k] = [i for i in P[k] if i.kind not in ("valu", "trans")]
        if opt.abl & 128: P[k] = [i for i in P[k] if i.kind != "ds"]
        if opt.abl & 256: P[k] = [i for i in P[k] if not (i.kind == "salu" and "m0" in i.text)]
    P["i6"], q = flat(G["i6"], q1, G["i7"][0][0].need)
    P["i7"], q = flat(G["i7"], q, [])
    ep = make_epi(nb)
    if opt.abl & 1: ep = [i for i in ep if not i.text.startswith("buffer_store")]
    if opt.abl & 2: ep = [i for i in ep if getattr(i, "lds_rd", None) != ("OS",)]
    if opt.abl & 4: ep = [i for i in ep if not i.text.startswith("ds_write")]
    if opt.abl & 8: ep = [i for i in ep if i.kind != "acc"]
    P["epi"], q = lin(ep, q)
    return P

def resolve_vm(traces):
    ws = set()
    for tr in traces:
        n = 0; last = {}
        for i in tr:
            if getattr(i, "vmneed", None) is not None:
                idx = max([last.get(u, -1) for u in i.vmneed])
                if idx >= 0: i.vmauto = min(i.vmauto, n - 1 - idx)
                ws.add(i)
            if getattr(i, "vm", False):
                u = getattr(i, "dma_wr", None)
                if u: last[u] = n
                n += 1
    for i in ws:
        i.vmw = i.vmauto
        i.text = f"s_waitcnt vmcnt({i.vmw})" + (f" lgkmcnt({i.lgw})" if i.lgw is not None else "")

def check_trace(trace):
    vm = []
    lg = []
    state = {}
    epoch = 0
    ALIAS = {("R2",): [("V", 0, 1), ("V", 0, 2), ("V", 0, 3), ("K", 7)], ("OS",): [("V", 1, c) for c in range(4)],
             ("R3",): [("K", 4), ("K", 5), ("K", 6), ("V", 0, 0)]}
    def phys(u): return ALIAS.get(u, [u])
    wr_land = {}; wr_pend = {}; rd_done = {}; rd_pend = {}; owner = {}
    errs = []
    for k, i in enumerate(trace):
        if getattr(i, "vmw", None) is not None:
            while len(vm) > i.vmw:
                o = vm.pop(0)
                u = getattr(o, "dma_wr", None)
                if u: wr_pend[u] -= 1; wr_land[u] = epoch
        if getattr(i, "lgw", None) is not None or i.kind == "wait0":
            n = 0 if i.kind == "wait0" else i.lgw
            while len(lg) > n:
                o = lg.pop(0)
                u = getattr(o, "lds_rd", None) or getattr(o, "lds_pw", None)
                if u: rd_pend[u] -= 1; rd_done[u] = epoch
        if getattr(i, "bar", False): epoch += 1
        u = getattr(i, "lds_rd", None)
        if u:
            if True:
                if wr_pend.get(u, 0) > 0: errs.append((k, "read of unit with pending DMA", u, i.text))
                elif not getattr(i, "private", False) and wr_land.get(u, 10**9) >= epoch: errs.append((k, "read without barrier after landing", u, i.text))
            for p in phys(u):
                if owner.get(p) != u: errs.append((k, "read of unit owned by", owner.get(p), u, i.text))
        w = getattr(i, "dma_wr", None) or getattr(i, "lds_pw", None)
        if w:
            for p in phys(w):
                o = owner.get(p)
                if o is not None:
                    priv = (o == w and w in (("X",), ("R2",), ("R3",), ("OS",)))
                    if rd_pend.get(o, 0) > 0 and not (getattr(i, "lds_pw", None) and o == w):
                        errs.append((k, "write over unit with reads in flight", o, w, i.text))
                    if not priv and rd_done.get(o, -1) >= epoch: errs.append((k, "write without barrier after reads", o, w, i.text))
                    if o != w and wr_pend.get(o, 0) > 0: errs.append((k, "write over pending dma", o, w))
                    if o != w and wr_land.get(o, -1) >= epoch: errs.append((k, "write over unit landed w/o barrier", o, w))
                owner[p] = w
        if i.kind == "ds":
            lg.append(i)
            u = getattr(i, "lds_rd", None) or getattr(i, "lds_pw", None)
            if u: rd_pend[u] = rd_pend.get(u, 0) + 1
        if getattr(i, "vm", False):
            vm.append(i)
            u = getattr(i, "dma_wr", None)
            if u: wr_pend[u] = wr_pend.get(u, 0) + 1
            assert len(vm) <= 63, "vmcnt overflow"
    return errs

def cross_check(traces):
    ALIAS = {("R2",): [("V", 0, 1), ("V", 0, 2), ("V", 0, 3), ("K", 7)], ("OS",): [("V", 1, c) for c in range(4)],
             ("R3",): [("K", 4), ("K", 5), ("K", 6), ("V", 0, 0)]}
    allg = []
    for tr in traces:
        gens = {}; epoch = 0; vm = []; lg = []
        for i in tr:
            if getattr(i, "vmw", None) is not None:
                while len(vm) > i.vmw:
                    for g in vm.pop(0): g["land"] = epoch
            if getattr(i, "lgw", None) is not None or i.kind == "wait0":
                n = 0 if i.kind == "wait0" else i.lgw
                while len(lg) > n:
                    for g in lg.pop(0): g["done"] = epoch
            if getattr(i, "bar", False): epoch += 1
            w = getattr(i, "dma_wr", None) or getattr(i, "lds_pw", None); r = getattr(i, "lds_rd", None)
            touched = []
            u = w or r
            if u and u != ("X",):
                for p in ALIAS.get(u, [u]):
                    l = gens.setdefault(p, [])
                    if w and (not l or l[-1]["own"] != u or (l[-1]["rd0"] is not None and u not in ALIAS)):
                        l.append(dict(own=u, wr0=epoch, land=10**9, rd0=None, done=-1))
                    g = l[-1]
                    if r and g["rd0"] is None: g["rd0"] = epoch
                    if r or getattr(i, "lds_pw", None): g["done"] = 10**9
                    if getattr(i, "dma_wr", None): g["land"] = 10**9
                    touched.append(g)
            if i.kind == "ds": lg.append(touched)
            if getattr(i, "vm", False): vm.append(touched)
        allg.append((gens, epoch))
    assert len(set(e for _, e in allg)) == 1, "barrier counts differ"
    for p in allg[0][0]:
        n = len(allg[0][0][p])
        assert all(len(g[p]) == n and [x["own"] for x in g[p]] == [x["own"] for x in allg[0][0][p]] for g, _ in allg), ("generations differ", p)
        for k in range(n):
            G = [g[p][k] for g, _ in allg]
            if G[0]["own"] not in ALIAS and G[0]["rd0"] is not None:
                assert max(x["land"] for x in G) < min(x["rd0"] for x in G), ("cross RAW", p, k, G)
            if k + 1 < n:
                N = [g[p][k + 1] for g, _ in allg]
                assert max(x["done"] for x in G) < min(x["wr0"] for x in N), ("cross WAR", p, k, G, N)
                if G[0]["own"] != N[0]["own"] and any(x["land"] != 10**9 or x["rd0"] is not None for x in G) and G[0]["own"] != ("OS",):
                    assert max(x["land"] for x in G) < min(x["wr0"] for x in N), ("cross WAW", p, k, G, N)

THR = {}
HELP = {}
RANK = {}
HELPN = {}
def schedule_table(mode):
    tab = {}
    if mode == "simple":
        for wg in range(256):
            x = wg & 7; idx = wg >> 3
            head = x * 16 + (idx >> 1); base = 41 * (idx & 1)
            tab[wg] = [(head, base, 12), (head, base + 12, 16), (head, base + 28, 13)]
    elif mode == "share":
        for x in range(8):
            rounds = [[], [], []]
            def add(r, h, start, sizes):
                for sz in sizes:
                    rounds[r].append((x * 16 + h, start, sz)); start += sz
                return start
            for h in range(10):
                st = add(0, h, 0, [12, 12, 12]); add(1 if h < 6 else 2, h, st, [15, 15, 16])
            st = add(0, 10, 0, [12, 12]); st = add(1, 10, st, [15, 14]); add(2, 10, st, [15, 14])
            for h in range(11, 16):
                add(1 if h < 13 else 2, h, 0, [14, 14, 14, 14, 13, 13])
            assert all(len(r) == 32 for r in rounds), [len(r) for r in rounds]
            for idx in range(32):
                tab[idx * 8 + x] = [rounds[0][idx], rounds[1][idx], rounds[2][idx]]
    elif mode.startswith("g6"):
        orders = {"A": (0, 1, 2), "B": (1, 0, 2), "C": (2, 1, 0), "D": (2, 0, 1)}
        pat = mode.split("_")[1]
        rot = pat.startswith("x"); pat = pat.lstrip("x")
        for x in range(8):
            for g in range(6):
                o = orders[pat[(g + (x if rot else 0)) % len(pat)]] if not pat.startswith("X") else orders["ABC"[x % 3]]
                if g < 5:
                    ha, hb, hc = [x * 16 + 3 * g + i for i in range(3)]
                    r0 = [(ha, 0, 12), (ha, 12, 12), (ha, 24, 12), (hb, 0, 12), (hb, 12, 12), (hb, 24, 12)]
                    r1 = [(ha, 36, 15), (ha, 51, 15), (ha, 66, 16), (hb, 36, 15), (hb, 51, 15), (hb, 66, 16)]
                    r2 = [(hc, 0, 14), (hc, 14, 14), (hc, 28, 13), (hc, 41, 14), (hc, 55, 14), (hc, 69, 13)]
                    n = 6
                else:
                    h = x * 16 + 15
                    r0 = [(h, 0, 12), (h, 12, 12)]; r1 = [(h, 24, 15), (h, 39, 15)]; r2 = [(h, 54, 14), (h, 68, 14)]
                    n = 2
                R = [r0, r1, r2]
                for i in range(n):
                    tab[(6 * g + i) * 8 + x] = [R[o[0]][i], R[o[1]][i], R[o[2]][i]]
    elif mode.startswith("t3"):
        _, lo, so, th = mode.split("_")
        th = [int(x, 16) for x in th.split(".")]
        alt = mode.startswith("t3a")
        if alt:
            LS = [i for i in range(32) if not i & 4]; SS = [i for i in range(32) if i & 4]
        else:
            LS = [6 * g + i for g in range(5) for i in range(3)] + [30]; SS = [6 * g + 3 + i for g in range(5) for i in range(3)] + [31]
        for x in range(8):
            H = [x * 16 + i for i in range(16)]
            T3 = lambda h: [(h, 0, 12), (h, 12, 12), (h, 24, 12)]
            T4 = lambda h: [(h, 36, 16), (h, 52, 16), (h, 68, 14)]
            for g in range(5):
                a, b, c = H[3 * g], H[3 * g + 1], H[3 * g + 2]
                Lt = {"3": T3(a), "4": T4(a), "5": T4(b)[::-1]}
                St = {"3": T3(c), "2": T3(b), "4": T4(c)}
                lord = lo.split(".")[(g + x) % len(lo.split("."))]; sord = so.split(".")[(g + x) % len(so.split("."))]
                for i in range(3):
                    wl = LS[3 * g + i] * 8 + x; wsn = SS[3 * g + i] * 8 + x
                    tab[wl] = [Lt[k][i] for k in lord]
                    tab[wsn] = [St[k][i] for k in sord]
                    THR[wsn] = th[(g + x) % len(th)]
                    RANK[wl] = i; RANK[wsn] = i
                    h0, st0, _n = Lt[lord[0]][i]
                    HELP[wsn] = (h0 * SQ + st0 * 16) * 512
            h = H[15]
            tab[LS[15] * 8 + x] = [(h, 0, 12), (h, 36, 16), (h, 68, 14)]
            if alt:
                tab[SS[15] * 8 + x] = [(h, 52, 16), (h, 12, 12), (h, 24, 12)]
                THR[SS[15] * 8 + x] = th[0]; HELP[SS[15] * 8 + x] = h * SQ * 512
            else:
                tab[SS[15] * 8 + x] = [(h, 12, 12), (h, 52, 16), (h, 24, 12)]
    elif mode.startswith("t6"):
        _, lo, th = mode.split("_")
        th = [int(x, 16) for x in th.split(".")]
        LS = [i for i in range(32) if not i & 4]; SS = [i for i in range(32) if i & 4]
        for x in range(8):
            T3 = lambda h: [(h, 0, 12), (h, 12, 12), (h, 24, 12)]
            T4 = lambda h, r: [[(h, 36, 16), (h, 52, 16), (h, 68, 14)][(i + r) % 3] for i in range(3)]
            for g in range(5):
                pat = lo.split(".")[(g + x) % len(lo.split("."))]
                for i in range(3):
                    wl = LS[3 * g + i] * 8 + x; wsn = SS[3 * g + i] * 8 + x
                    tab[wl] = []; tab[wsn] = []
                    for r in range(3):
                        h = x * 16 + 3 * g + r
                        a, b = T3(h)[i], T4(h, r)[i]
                        tab[wl].append(a if pat[r] == "3" else b); tab[wsn].append(b if pat[r] == "3" else a)
                    THR[wsn] = th[(g + x) % len(th)]; RANK[wl] = i; RANK[wsn] = i
                    HELP[wsn] = (tab[wl][0][0] * SQ + tab[wl][0][1] * 16) * 512; HELPN[wsn] = tab[wl][0][2]
            h = x * 16 + 15; pat = lo.split(".")[0]
            i3 = [(h, 0, 12), (h, 12, 12), (h, 24, 12)]; i4 = [(h, 36, 16), (h, 52, 16), (h, 68, 14)]
            wl = LS[15] * 8 + x; wsn = SS[15] * 8 + x
            tab[wl] = [(i3 if pat[r] == "3" else i4)[r] for r in range(3)]
            tab[wsn] = [(i4 if pat[r] == "3" else i3)[r] for r in range(3)]
            THR[wsn] = th[0]; HELP[wsn] = (h * SQ + tab[wl][0][1] * 16) * 512; HELPN[wsn] = tab[wl][0][2]
    cov = {}
    for wg, l in tab.items():
        for h, st, n in l:
            assert 12 <= n <= 16
            for b in range(st, st + n):
                assert (h, b) not in cov; cov[(h, b)] = wg
    assert len(cov) == 128 * 82
    return tab

def setup_code():
    L = []; A = L.append
    if opt.diag or opt.padto: A("s_memrealtime s[100:101]")
    A("s_cmp_ge_u32 s2, 256")
    A("s_cbranch_scc1 L_exit")
    A("s_load_dwordx4 s[72:75], s[0:1], 0")
    A("s_load_dwordx4 s[76:79], s[0:1], 16")
    if opt.diag: A("s_load_dwordx2 s[64:65], s[0:1], 40")
    A("s_getpc_b64 s[4:5]")
    A("L_pc:")
    if opt.warm:
        A(f"s_mov_b32 {sC[0]}, s4\ns_mov_b32 {sC[1]}, s5\ns_mov_b32 {sC[2]}, L_warm_end-L_pc\ns_mov_b32 {sC[3]}, 0x20000\nv_lshlrev_b32 v16, 7, v0")
        for k in range(opt.warm): A(f"s_mov_b32 s3, {k * 32768}\nbuffer_load_dword v{17 + k}, v16, {sC}, s3 offen")
    A("s_lshl_b32 s3, s2, 6")
    A("s_add_u32 s3, s3, L_table-L_pc")
    A("s_add_u32 s46, s4, s3")
    A("s_addc_u32 s47, s5, 0")
    A("s_load_dwordx16 s[80:95], s[46:47], 0")
    A(f"v_readfirstlane_b32 {s_wave}, v0")
    A("v_and_b32 v10, 63, v0")
    A(f"s_lshr_b32 {s_wave}, {s_wave}, 6")
    A("v_and_b32 v11, 15, v10")
    A("v_lshrrev_b32 v14, 4, v10")
    A("v_lshrrev_b32 v15, 2, v11\nv_lshlrev_b32 v1, 11, v15\nv_and_b32 v6, 3, v11\nv_lshl_add_u32 v1, v6, 6, v1")
    A("v_lshrrev_b32 v6, 3, v11\nv_lshlrev_b32 v6, 1, v6\nv_xor_b32 v6, v6, v14\nv_lshl_add_u32 v1, v6, 4, v1")
    A("v_lshrrev_b32 v6, 1, v14\nv_lshlrev_b32 v2, 10, v6\nv_and_b32 v7, 1, v14\nv_lshl_add_u32 v6, v7, 2, v15\nv_lshl_add_u32 v2, v6, 6, v2")
    A(f"v_and_b32 v8, 3, v10\nv_lshl_add_u32 v2, v8, 3, v2\nv_lshl_add_u32 v2, v7, 5, v2\nv_add_u32 v2, {VB}, v2\nv_xor_b32 v3, 32, v2")
    A("v_lshlrev_b32 v12, 9, v15\nv_lshl_add_u32 v12, v14, 6, v12\nv_lshl_add_u32 v12, v8, 4, v12\nv_xor_b32 v13, 32, v12\nv_add_u32 v13, 4096, v13")
    A(f"s_lshl_b32 {s_mK}, {s_wave}, 11\ns_lshr_b32 s3, {s_wave}, 1\ns_lshl_b32 s3, s3, 5")
    A(f"v_xor_b32 v4, s3, v12\nv_add_u32 v4, {s_mK}, v4")
    A("v_lshrrev_b32 v6, 2, v10\nv_and_b32 v6, 7, v6\nv_lshlrev_b32 v5, 9, v6\nv_lshrrev_b32 v6, 2, v6\nv_lshlrev_b32 v6, 1, v6\nv_xor_b32 v6, v6, v8")
    A(f"v_lshl_add_u32 v5, v6, 4, v5\nv_lshrrev_b32 v6, 5, v10\nv_lshl_add_u32 v5, v6, 6, v5\ns_lshl_b32 s3, {s_wave}, 13\nv_add_u32 v5, s3, v5")
    A(f"s_add_u32 {s_mX}, s3, {XB}")
    A(f"s_add_u32 {s_mOS}, s3, {vslot_addr(1, 0)}")
    A(f"s_add_u32 {s_mR2}, s3, {vslot_addr(0, 0)}")
    A(f"s_cmp_eq_u32 {s_wave}, 0\ns_cselect_b32 {s_mR2}, {kslot_addr(7)}, {s_mR2}")
    A(f"s_add_u32 {s_mR3}, s3, {kslot_addr(4)}")
    A(f"s_cmp_eq_u32 {s_wave}, 3\ns_cselect_b32 {s_mR3}, {vslot_addr(0, 0)}, {s_mR3}")
    A("v_lshrrev_b32 v6, 1, v14\nv_lshrrev_b32 v9, 1, v11\nv_xor_b32 v6, v6, v9\nv_lshlrev_b32 v6, 3, v6\nv_lshl_add_u32 v6, v7, 12, v6")
    A(f"v_lshl_add_u32 v6, v11, 6, v6\nv_add_u32 v15, {s_mOS}, v6")
    A("v_lshrrev_b32 v6, 3, v10\nv_and_b32 v9, 7, v10\nv_xor_b32 v9, v9, v14\nv_lshlrev_b32 v9, 4, v9\nv_lshl_add_u32 v14, v6, 9, v9")
    A(f"s_mov_b32 {s_c}, {C_SCALE:#x}\ns_mov_b32 {s_pass}, 0\ns_mov_b32 {s_flags}, 0")
    if opt.diag: A(f"s_mov_b32 {s_tsp}, 1\nv_mov_b32 v0, 0")
    A("s_waitcnt lgkmcnt(0)")
    if opt.diag:
        A("v_writelane_b32 v0, s100, 0")
        A("s_getreg_b32 s100, hwreg(HW_REG_HW_ID)\ns_getreg_b32 s101, hwreg(HW_REG_XCC_ID)\ns_nop 1\nv_writelane_b32 v0, s100, 30\nv_writelane_b32 v0, s101, 31")
    for srd, p, n in ((sQ, 72, QBYTES), (sK, 74, KBYTES), (sV, 76, KBYTES), (sO, 78, QBYTES)):
        A(f"s_mov_b32 {srd[0]}, s{p}\ns_mov_b32 {srd[1]}, s{p+1}\ns_mov_b32 {srd[2]}, {n}\ns_mov_b32 {srd[3]}, 0x20000")
    for k in range(8): A(f"s_mov_b32 {s_ok[k]}, {OOB:#x}")
    for p in range(3):
        A(f"s_sub_u32 s3, s{80+3*p+2}, 12")
        A(f"s_min_u32 s4, s3, {s_wave}")
        A(f"s_mul_i32 s5, {s_wave}, 3\ns_add_u32 s4, s4, s5\ns_lshl_b32 s4, s4, 13")
        A(f"s_add_u32 {s_tab[4*p]}, s{80+3*p}, s4")
        A(f"s_mov_b32 {s_tab[4*p+1]}, s{80+3*p+1}")
        A(f"s_add_u32 {s_tab[4*p+3]}, {s_tab[4*p]}, 24576")
        A(f"s_cmp_lt_u32 {s_wave}, s3\ns_cselect_b32 {s_tab[4*p+2]}, 4, 3\ns_cselect_b32 {s_tab[4*p+3]}, {s_tab[4*p+3]}, {OOB:#x}")
    A(f"s_mov_b32 {s_tab[12]}, {OOB:#x}\ns_mov_b32 {s_tab[13]}, {OOB:#x}\ns_mov_b32 {s_tab[14]}, 0\ns_mov_b32 {s_tab[15]}, {OOB:#x}")
    A(f"s_lshl_b32 s3, s91, 2\ns_add_u32 s3, s3, {s_wave}\ns_lshl_b32 {s_str}, s3, {opt.tsh + 6}")
    A(f"s_cmp_eq_u32 s90, {OOB:#x}\ns_cselect_b32 {s_str}, 0x40000000, {s_str}")
    A(f"s_lshr_b32 s3, s2, 1\ns_and_b32 s3, s3, 28\ns_add_u32 s3, s3, {s_wave}\ns_lshl_b32 {s_cs}, s3, {opt.tsh + 6}\ns_and_b32 {s_cs}, {s_cs}, 0xffff")
    for p in range(3):
        for k in range(3): A(f"s_mov_b32 s{80+3*p+k}, {s_tab[4*p+k]}")
    return L

def startup():
    P = {}
    r = [sop(f"s_mov_b32 {s_kptr}, {s_tab[1]}", wr=[s_kptr]), sop(f"s_sub_u32 {s_vptr}, {s_tab[1]}, 32768", wr=[s_vptr])]
    r += dma_K(1) + dma_K(2) + dma_K(3)
    r += [sop(f"s_add_u32 {s_t0}, {s_tab[0]}, 8192", wr=[s_t0]), sop(f"s_add_u32 {s_t1}, {s_tab[0]}, 16384", wr=[s_t1]),
          sop(f"s_add_u32 {s_t2}, {s_tab[0]}, 24576", wr=[s_t2])]
    r += [sop(f"s_cmp_eq_u32 s90, {OOB:#x}"), raw("s_cbranch_scc1 L_nohelp")]
    P["a"] = r
    late = lambda: dma_K(4) + dma_K(5) + dma_K(6) + dma_V(0, 0)
    r = late() if opt.late else []
    r += [sop("s_sub_u32 s4, s92, 12"), sop(f"s_add_u32 s5, {s_wave}, 1"), sop("s_min_u32 s4, s4, s5"), sop("s_mul_i32 s5, s5, 3"),
          sop("s_add_u32 s4, s4, s5"), sop("s_lshl_b32 s3, s4, 13"), sop(f"s_add_u32 s3, s3, s90"), sop(f"s_sub_u32 s3, s3, {1024 * opt.help_n}"),
          valu("v_lshlrev_b32", vt1, 4, vt0)]
    hl = []
    for k in range(opt.help_n):
        if k and k % 4 == 0: hl.append(sop("s_add_u32 s3, s3, 4096"))
        i = Ins(f"buffer_load_dwordx4 {V(96 + 4 * k, 4)}, {vt1}, {sQ}, s3 offen offset:{(k % 4) * 1024}", "vmem", rd=[vt1]); i.vm = True
        hl.append(i)
    if opt.late == 2: r = r[-9:] + hl + r[:-9]
    else: r += hl
    P["h"] = r
    r = []; k = 0
    for grp in (dma_Q(s_mX, s_tab[0], ("X",)), dma_Q(s_mR2, s_t0, ("R2",)), dma_Q(s_mOS, s_t1, ("OS",))):
        for hf in (grp[:6], grp[6:]):
            r += hf
            if not opt.sched.endswith("_0"):
                r += [sop(f"s_bitcmp1_b32 s89, {k}"), raw(f"s_cbranch_scc0 L_th{k}"), raw("s_waitcnt vmcnt(0)"), label(f"L_th{k}")]
            k += 1
    if not opt.late: r += late()
    st5 = (lambda: stamp(9)) if opt.diag == 5 else (lambda: [])
    r += st5() + [vwait([("X",)])] + st5() + q_reads(0, s_mX, ("X",), vt0)
    r += [sop(f"s_cmp_lt_u32 {s_tab[2]}, 4"), raw("s_cbranch_scc1 L_noq3")]
    P["q"] = r
    r2 = [waitcnt(None, 0)] + dma_Q(s_mX, s_t2, ("X",))
    r2 += [vwait([("R2",)])] + st5() + q_reads(1, s_mR2, ("R2",), vt1) + [vwait([("OS",)])] + st5() + q_reads(2, s_mOS, ("OS",), vt0)
    r2 += [vwait([("X",)])] + q_reads(3, s_mX, ("X",), vt1) + [raw("s_branch L_q3done")]
    P["r2"] = r2
    P["r3"] = [vwait([("R2",)])] + st5() + q_reads(1, s_mR2, ("R2",), vt1) + [vwait([("OS",)])] + st5() + q_reads(2, s_mOS, ("OS",), vt0)
    P["lc"] = [sop(f"s_cmp_lg_u32 s90, {OOB:#x}"), raw("s_cbranch_scc1 L_first")] if opt.late else []
    P["l"] = late() if opt.late else []
    return {k: fix_hazards(lin(v)[0]) for k, v in P.items()}

def pass_begin():
    T2 = lambda k: S(s_tab.n + k, 2)
    r = [sop(f"s_mov_b32 {s_ocur}, {s_tab[0]}"),
         sop(f"s_add_u32 {s_kend}, {s_tab[1]}, 262144"),
         sop(f"s_mov_b32 {s_nbn}, {s_tab[2]}"),
         sop(f"s_mov_b32 {s_knext}, {s_tab[5]}"),
         sop(f"s_mov_b32 {s_xq}, {s_tab[4]}"),
         sop(f"s_add_u32 {s_qn[1]}, {s_tab[4]}, 8192"), sop(f"s_add_u32 {s_qn[2]}, {s_tab[4]}, 16384"),
         sop(f"s_mov_b32 {s_qn[3]}, {s_tab[7]}")]
    for k in range(0, 12, 2): r.append(sop(f"s_mov_b64 {T2(k)}, {T2(k + 4)}"))
    r += [sop(f"s_mov_b32 {s_cnt}, 3"), sop(f"s_mov_b32 {s_tq}, {s_qn[2]}"),
          sop(f"s_add_u32 {s_tv}, {s_str}, {s_knext}"), sop(f"s_add_u32 {s_tk}, {s_tv}, {opt.tkoff}"),
          sop(f"s_mov_b32 {s_xm}, {s_mX}")]
    return r

def repair_code():
    rQ = lambda k: V(96 + 4 * k, 4); rK = lambda k: V(128 + 4 * k, 4); rS = lambda k: V(32 + 4 * k, 4)
    rO = lambda k: V(160 + 4 * k, 4); rV = lambda k: V(224 + 4 * k, 4)
    m, l, ta, tb, al, nm = V(6), V(7), V(8), V(9), V(10), V(11)
    fa, va0, va1, vop, so = V(48), V(49), V(50), V(51), V(52)
    sp, sb, sj, sq, sk, sv = S(90), S(91), S(92), S(93), S(94), S(95)
    def gload(d, srd, soff, imm):
        return Ins(f"buffer_load_dwordx4 {d}, {fa}, {srd}, {soff} offen offset:{imm}", "vmem", rd=[fa, srd, soff], wr=[d])
    W = lambda t: raw(t, "wait")
    out = []
    pre = [W("s_waitcnt vmcnt(0) lgkmcnt(0)"),
           valu("v_mbcnt_lo_u32_b32", ta, -1, 0), valu("v_mbcnt_hi_u32_b32", ta, -1, ta),
           valu("v_and_b32", tb, 15, ta), valu("v_lshrrev_b32", ta, 4, ta),
           valu("v_lshlrev_b32", fa, 9, tb), valu("v_lshl_add_u32", so, ta, 3, fa), valu("v_lshl_add_u32", fa, ta, 4, fa),
           sop(f"s_sub_u32 {s_t0}, {s_mX}, {VB}"), valu("v_add_u32", va0, s_t0, vaddr0), valu("v_add_u32", va1, s_t0, vaddr1),
           sop(f"s_lshl_b32 {s_t0}, {s_wave}, 13"), valu("v_subrev_u32", vop, s_t0, voV),
           sop(f"s_mov_b32 {sp}, 0")]
    out += fix_hazards(pre)
    out += [label("L_rp"), sop(f"s_bitcmp1_b32 {s_flags}, {sp}"), raw("s_cbranch_scc0 L_rp_next"), sop(f"s_mov_b32 {sb}, 0"), label("L_rb")]
    blk = [sop(f"s_lshl_b32 {sq}, {sb}, 13"), sop(f"s_add_u32 {sq}, {sq}, s80")]
    blk += [gload(rQ(k), sQ, sq, k * 64) for k in range(8)]
    blk += [valu("v_mov_b32", m, "0xff800000"), valu("v_mov_b32", l, 0)]
    blk += [valu("v_mov_b32", V(160 + k), 0) for k in range(64)]
    blk += [sop(f"s_mov_b32 {sk}, s81"), sop(f"s_mov_b32 {sv}, s81"), sop(f"s_mov_b32 {sj}, 0")]
    out += fix_hazards(blk) + [label("L_rj")]
    it = []
    for kvb in range(4):
        it += [gload(rK(k), sK, sk, k * 64) for k in range(8)] + [sop(f"s_add_u32 {sk}, {sk}, 8192"), W("s_waitcnt vmcnt(0)")]
        it += [mfma(rS(kvb), rK(k), rQ(k), rS(kvb) if k else 0) for k in range(8)]
    xs = [V(32 + k) for k in range(16)]
    it += [valu("v_max3_f32", ta, m, xs[0], xs[1])]
    it += [valu("v_max3_f32", ta, ta, xs[k], xs[k + 1]) for k in range(2, 16, 2)]
    it += [valu("v_mov_b32", tb, ta), perm("v_permlane16_swap_b32", ta, tb), valu("v_max_f32", ta, ta, tb),
           valu("v_mov_b32", tb, ta), perm("v_permlane32_swap_b32", ta, tb), valu("v_max_f32", ta, ta, tb),
           valu("v_sub_f32", al, m, ta), valu("v_mul_f32", al, s_c, al), valu("v_exp_f32", al, al), valu("v_mov_b32", m, ta)]
    it += [valu("v_sub_f32", x, x, m) for x in xs] + [valu("v_mul_f32", x, s_c, x) for x in xs] + [valu("v_exp_f32", x, x) for x in xs]
    it += [valu("v_mul_f32", l, l, al)] + [valu("v_add_f32", l, l, x) for x in xs]
    it += [valu("v_mul_f32", V(160 + k), V(160 + k), al) for k in range(64)]
    Pf = lambda ks: V(16 + 4 * ks, 4)
    for ks in range(2):
        for j in range(4): it.append(valu("v_cvt_pk_bf16_f32", Pf(ks)[j], xs[8 * ks + 2 * j], xs[8 * ks + 2 * j + 1]))
    for c in range(4):
        for j in range(8):
            it += [sop(f"s_add_u32 {s_t0}, {sv}, {j * 4096 + c * 128}", wr=[s_t0]), set_m0(s_mX, j * 1024), dma(vop, sV, s_t0, 0, None, "")]
        it += [W("s_waitcnt vmcnt(0)")]
        for dbl in range(4):
            for ks in range(2):
                for j4 in range(2):
                    it.append(ds_read("ds_read_b64_tr_b16", rV(2 * dbl + ks).sub(2 * j4, 2), va1 if dbl & 1 else va0, ks * 4096 + (dbl >> 1) * 512 + j4 * 2048))
        it += [W("s_waitcnt lgkmcnt(0)")]
        for dbl in range(4):
            for ks in range(2): it.append(mfma(rO(4 * c + dbl), rV(2 * dbl + ks), Pf(ks), rO(4 * c + dbl)))
    it += [nop(9), sop(f"s_add_u32 {sv}, {sv}, 32768"), sop(f"s_add_u32 {sj}, {sj}, 1"), sop(f"s_cmp_lt_u32 {sj}, 8"), raw("s_cbranch_scc1 L_rj")]
    out += fix_hazards(it)
    fin = [valu("v_mov_b32", tb, l), perm("v_permlane16_swap_b32", l, tb), valu("v_add_f32", l, l, tb),
           valu("v_mov_b32", tb, l), perm("v_permlane32_swap_b32", l, tb), valu("v_add_f32", l, l, tb), valu("v_rcp_f32", al, l)]
    for db in range(16):
        o = rO(db)
        fin += [valu("v_mul_f32", o[i], o[i], al) for i in range(4)]
        fin += [valu("v_cvt_pk_bf16_f32", o[0], o[0], o[1]), valu("v_cvt_pk_bf16_f32", o[1], o[2], o[3])]
        fin.append(Ins(f"buffer_store_dwordx2 {o.sub(0, 2)}, {so}, {sO}, {sq} offen offset:{db * 32}", "vmem", rd=[o.sub(0, 2), so, sO, sq]))
    fin += [W("s_waitcnt vmcnt(0)"), sop(f"s_add_u32 {sb}, {sb}, 1"), sop(f"s_cmp_lt_u32 {sb}, s82"), raw("s_cbranch_scc1 L_rb")]
    out += fix_hazards(fin)
    out += [label("L_rp_next")]
    out += [sop(f"s_mov_b32 s{80 + k}, s{83 + k}") for k in range(6)]
    out += [sop(f"s_add_u32 {sp}, {sp}, 1"), sop(f"s_cmp_lt_u32 {sp}, 3"), raw("s_cbranch_scc1 L_rp")]
    return out

def main():
    ap = argparse.ArgumentParser()
    ap.add_argument("-o", default="standalone__mha_softmax__near_ridge.s")
    ap.add_argument("--diag", type=int, default=0)
    ap.add_argument("--kvmod", default="")
    ap.add_argument("--qmod", default="nt")
    ap.add_argument("--omod", default="")
    ap.add_argument("--sched", default="t6_344_0")
    ap.add_argument("--pkmul", type=int, default=1)
    ap.add_argument("--rep", type=int, default=1)
    ap.add_argument("--tsh", type=int, default=5)
    ap.add_argument("--barsplit", type=int, default=1)
    ap.add_argument("--barblk", type=int, default=8)
    ap.add_argument("--barlag4", type=int, default=2)
    ap.add_argument("--r3epi", type=int, default=1)
    ap.add_argument("--hback", type=int, default=24)
    ap.add_argument("--hoist", default="")
    ap.add_argument("--twhen", type=int, default=2)
    ap.add_argument("--tkoff", type=int, default=24576)
    ap.add_argument("--cwarm", type=int, default=1)
    ap.add_argument("--late", type=int, default=1)
    ap.add_argument("--al8", type=int, default=0)
    ap.add_argument("--tstride", type=int, default=2048)
    ap.add_argument("--tstep", type=int, default=24576)
    ap.add_argument("--barlag", type=int, default=4)
    ap.add_argument("--epi_rd", type=int, default=1)
    ap.add_argument("--abl", type=int, default=0)
    ap.add_argument("--help_n", type=int, default=12)
    ap.add_argument("--omod3", default="")
    ap.add_argument("--omod4", default="")
    ap.add_argument("--wb", type=int, default=0)
    ap.add_argument("--nostore", type=int, default=0)
    ap.add_argument("--ca7", type=int, default=0)
    ap.add_argument("--show", type=int, default=0)
    ap.add_argument("--spread", type=int, default=1)
    ap.add_argument("--touch", type=int, default=2)
    ap.add_argument("--force", type=int, default=0)
    ap.add_argument("--padto", type=int, default=0)
    ap.add_argument("--defer", type=int, default=0)
    ap.add_argument("--warm", type=int, default=2)
    a = ap.parse_args()
    opt.__dict__.update(vars(a)); opt.nextq = 1
    if opt.hoist:
        h = [int(x) for x in opt.hoist.split(",")]; HOIST[4] = (h[0], h[1]); HOIST[3] = (h[2], h[3])
    L = []; A = L.append
    hdr = open("standalone__mha_softmax__near_ridge.s.ref").read().split("\n")
    for l in hdr:
        if l.startswith("; @launch"): break
        A(l)
    A(f"; @launch grid=(256,1,1) block=(256,1,1) lds={LDS_BYTES}")
    A('.amdgcn_target "amdgcn-amd-amdhsa--gfx950"')
    A(f".text\n.globl {KNAME}\n.p2align 8\n.type {KNAME},@function\n{KNAME}:")
    L += setup_code()
    def emit(seq):
        for i in seq: L.append(i)
    if opt.rep > 1: A(f"s_mov_b32 s98, {opt.rep}\nL_again:")
    emit(stamp(0))
    SU = startup()
    emit(SU["a"]); emit(SU["h"]); A("L_nohelp:"); emit(SU["q"]); emit(SU["r2"]); A("L_noq3:"); emit(SU["r3"]); A("L_q3done:")
    emit(SU["lc"]); emit(SU["l"])
    A("L_first:")
    s4 = pass_begin() + [waitcnt(None, 0), barrier()] + head_reads()
    s4 = fix_hazards(s4 + sum([dma_V(0, 1), dma_V(0, 2), dma_V(0, 3), dma_K(7)][:opt.ca7], []))
    emit(s4)
    A("L_pass:")
    pb = [waitcnt(None, 0), barrier()]
    emit(pb)
    emit(stamp(1))
    A(f"s_cmp_eq_u32 {s_nbn}, 3\ns_cbranch_scc1 L_v3")
    VAR = {}
    for nb in (4, 3):
        P = variant(nb)
        hd = fix_hazards(P["hd"])
        b1 = fix_hazards(P["i1"], wrap=hd[-14:])
        b2 = fix_hazards(P["i2"], wrap=b1[-14:])
        b1b = fix_hazards(P["i1"], wrap=b2[-14:])
        assert [x.text for x in b1b] == [x.text for x in b1], "loop entry hazards differ"
        i6 = fix_hazards(P["i6"], wrap=b1[-14:])
        i7 = fix_hazards(P["i7"], wrap=i6[-14:])
        epi = fix_hazards(P["epi"], wrap=i7[-14:])
        es = strip_clusters(epi)
        assert len(fix_hazards(es, wrap=i7[-14:])) == len(es), "hazard on the skip path"
        es = strip_clusters(epi, "L_fo")
        assert len(fix_hazards(es, wrap=i7[-14:])) == len(es), "hazard on the skip path"
        VAR[nb] = dict(hd=hd, b1=b1, b2=b2, i6=i6, i7=i7, epi=epi)
        if opt.al8:
            for k in ("hd", "b1", "b2", "i6", "i7"): align8(VAR[nb][k])
        nn = sum(1 for p in VAR[nb].values() for x in p if x.kind == "nop")
        print(f"nb={nb}: sizes", {k: len(v) for k, v in VAR[nb].items()}, "nops", nn, file=sys.stderr)
        A(".p2align 6"); A(f"L_v{nb}:")
        emit(hd)
        emit(stamp(2))
        if opt.diag == 3:
            for k in range(3):
                A(f"s_sub_u32 s66, s{92+4*k}, s{90+4*k}\ns_mul_i32 s67, {s_pass}, 3\ns_add_u32 m0, s67, {20+k}\ns_nop 1\nv_writelane_b32 v0, s66, m0")
        if opt.al8: A(f".p2align {opt.al8}")
        A(f"L_loop{nb}:")
        emit(b1); A(f"s_cbranch_scc1 L_i6_{nb}")
        if opt.al8: A(".p2align 3")
        emit(b2); A(f"s_branch L_loop{nb}")
        if opt.al8: A(f".p2align {opt.al8}")
        A(f"L_i6_{nb}:")
        if opt.diag == 4: emit(stamp(9))
        if opt.al8: A(".p2align 3")
        emit(i6)
        if opt.diag == 4: emit(stamp(9))
        if opt.al8: A(".p2align 3")
        emit(i7)
        emit(stamp(3))
        emit(epi)
        emit(stamp(4))
        A(f"s_add_u32 {s_pass}, {s_pass}, 1\ns_cmp_lt_u32 {s_pass}, 3\ns_cbranch_scc1 L_pass\ns_branch L_done")
    tail = ([waitcnt(None, 0)] + [store(3, k) for k in range(8)]) if opt.defer else []
    traces = []
    import itertools
    for seqnb in itertools.product((3, 4), (3, 4), (3, 4), (0, 1)):
        hp = seqnb[3]; seqnb = seqnb[:3]
        tr = SU["a"] + (SU["h"] if hp else []) + SU["q"] + SU["r2" if seqnb[0] == 4 else "r3"] + ([] if hp else SU["l"]) + s4
        for pi, nb in enumerate(seqnb):
            v = VAR[nb]
            tr = tr + pb + v["hd"] + (v["b1"] + v["b2"]) * 2 + v["b1"] + v["i6"] + v["i7"] + strip_clusters(v["epi"], "L_sk" if pi == 2 else "L_fo")
        traces.append(tr + tail)
    resolve_vm(traces)
    for tr in traces:
        errs = check_trace(tr)
        if errs and not opt.abl:
            for e in errs[:20]: print("SYNC ERR", e, file=sys.stderr)
            raise SystemExit(1)
    if not opt.abl: cross_check(traces)
    A("L_done:")
    emit(tail)
    if opt.force: A(f"s_mov_b32 {s_flags}, {opt.force}")
    A(f"s_cmp_lg_u32 {s_flags}, 0\ns_cbranch_scc1 L_repair\nL_fin:")
    if opt.rep > 1:
        A("s_waitcnt vmcnt(0) lgkmcnt(0)\ns_barrier")
        raise SystemExit("rep unsupported now")
        A(f"s_mov_b32 {s_pass}, 0\ns_sub_u32 s98, s98, 1\ns_cmp_lg_u32 s98, 0\ns_cbranch_scc1 L_again")
    if opt.diag:
        A("s_waitcnt vmcnt(0)")
        emit(stamp(5))
        A(f"s_mov_b32 s66, 0x1000000\ns_mov_b32 s67, 0x20000")
        A(f"v_mbcnt_lo_u32_b32 v1, -1, 0\nv_mbcnt_hi_u32_b32 v1, -1, v1\nv_lshlrev_b32 v1, 2, v1")
        A(f"s_lshl_b32 s3, s2, 10\ns_lshl_b32 s4, {s_wave}, 8\ns_add_u32 s3, s3, s4")
        A("buffer_store_dword v0, v1, s[64:67], s3 offen")
        if opt.diag == 2:
            A(f"s_or_b32 s3, s2, {s_wave}\ns_cmp_lg_u32 s3, 0\ns_cbranch_scc1 L_exit")
            A("s_load_dwordx2 s[64:65], s[0:1], 32\ns_mov_b32 s66, 256\nv_readlane_b32 s4, v0, 0\nv_readlane_b32 s5, v0, 32\ns_waitcnt lgkmcnt(0)")
            idx = [2, 3, 4, 6, 8, 10, 12, 14]
            for j, k in enumerate(idx):
                A(f"v_readlane_b32 s6, v0, {k}\nv_readlane_b32 s7, v0, {k+32}\ns_sub_u32 s6, s6, s4\ns_sub_u32 s7, s7, s5\ns_nop 1\nv_writelane_b32 v2, s6, {j}\nv_writelane_b32 v2, s7, {j+8}")
            A("s_mov_b64 exec, 0xffff\nbuffer_store_dword v2, v1, s[64:67], 0 offen")
    if opt.wb == 1:
        A(f"s_cmp_lg_u32 {s_wave}, 0\ns_cbranch_scc1 L_exit\ns_waitcnt vmcnt(0)\nbuffer_wbl2 sc1\ns_waitcnt vmcnt(0)")
    if opt.wb == 2:
        A(f"s_cmp_lg_u32 {s_wave}, 0\ns_cbranch_scc1 L_exit\ns_cmp_eq_u32 s89, 0\ns_cbranch_scc1 L_exit\ns_waitcnt vmcnt(0)\nbuffer_wbl2 sc1\ns_waitcnt vmcnt(0)")
    if opt.wb == 3:
        A(f"s_waitcnt vmcnt(0)\nbuffer_wbl2 sc1")
    if opt.padto:
        A(f"s_waitcnt vmcnt(0)\nL_spin:\ns_memrealtime s[96:97]\ns_waitcnt lgkmcnt(0)\ns_sub_u32 s96, s96, s98\ns_cmp_lt_u32 s96, {opt.padto}\ns_cbranch_scc1 L_spin")
    A("L_exit:")
    A("s_endpgm")
    A("L_warm_end:")
    A("L_repair:")
    emit(repair_code())
    A("s_branch L_fin")
    A(".p2align 6\n.type L_table,@object\nL_table:")
    tab = schedule_table(opt.sched)
    for wg in range(256):
        w = []
        for h, st, n in tab[wg]:
            w += [(h * SQ + st * 16) * 512, h * SK * 512, n]
        w += [THR.get(wg, 0), HELP.get(wg, OOB), RANK.get(wg, 0), HELPN.get(wg, 12)]
        w += [0] * (16 - len(w))
        A(".long " + ", ".join(str(x) for x in w))
    A(".size L_table, 16384")
    A('.section .rodata,"a"\n.p2align 6')
    A(f".amdhsa_kernel {KNAME}")
    A("  .amdhsa_next_free_vgpr 512\n  .amdhsa_next_free_sgpr 102\n  .amdhsa_accum_offset 256\n  .amdhsa_group_segment_fixed_size 0")
    A("  .amdhsa_kernarg_size 48\n  .amdhsa_user_sgpr_count 2\n  .amdhsa_user_sgpr_kernarg_segment_ptr 1\n  .amdhsa_system_sgpr_workgroup_id_x 1")
    A(".end_amdhsa_kernel")
    open(opt.o, "w").write("\n".join((x if isinstance(x, str) else x.text) for x in L if x is not None) + "\n")

if __name__ == "__main__":
    main()
```

```python
import sys, argparse
from asmlib import *

KNAME = "standalone__mha_softmax__near_ridge_kernel"
NH, SQ, SK, D = 128, 1312, 512, 256
QBYTES = NH * SQ * D * 2
KBYTES = NH * SK * D * 2
OOB = 0x7fff0000
VB = 65536
XB = 131072
LDS_BYTES = 163840
C_SCALE = 0x3db8aa3b
L_LIMIT = 0x58800000

sQ, sK, sV, sO = S(8, 4), S(12, 4), S(16, 4), S(20, 4)
s_wave = S(24)
s_mK = S(25)
s_mX = S(26)
s_mR2 = S(27)
s_mOS = S(28)
s_kptr, s_kend, s_knext = S(29), S(30), S(31)
s_vptr, s_vptr2, s_vend = S(32), S(33), S(34)
s_c = S(35)
s_cnt = S(36)
s_pass = S(37)
s_flags = S(38)
s_qn = [S(40), S(41), S(42), S(43)]
s_ocur = S(44)
s_t0, s_t1, s_t2 = S(45), S(46), S(47)
s_tab = S(48, 16)
s_dbg = S(64, 4)
s_ts = S(68, 2)
s_nbn = S(70)
s_tsp = S(71)
s_mR3 = S(39)
s_tq, s_tk, s_tv, s_xm, s_xq = S(90), S(91), S(92), S(93), S(94)
sC = S(96, 4)
s_cs = S(95)
s_str = S(34)
s_ok = [S(72 + k) for k in range(8)]
kaddr, vaddr0, vaddr1, voK, voV = V(1), V(2), V(3), V(4), V(5)
lsum = lambda b: V(6 + b)
vt0, vt1 = V(10), V(11)
voQa, voQb = V(12), V(13)
vsto, wa0 = V(14), V(15)
Ct = lambda b: V(16 + 4 * b, 4)
SET = lambda i: V(32 + 16 * i, 16)
Sx = lambda i, b: SET(i).sub(4 * b, 4)
Q = lambda b, s: AG(b * 32 + s * 4, 4)
NF = 8
F = lambda i: AG(128 + 4 * (i % NF), 4)
def O(b, db):
    t = db * 4 + b
    return V(96 + 4 * t, 4) if t < 40 else AG(160 + 4 * (t - 40), 4)

M0 = ('m0', 0)
def set_m0(base, off):
    i = salu(f"s_add_u32 m0, {base}, {off}", rd=[base]); i.wr = {M0}; return i
def sop(text, rd=(), wr=()): return salu(text, rd=rd, wr=wr)

class Opt: pass
opt = Opt()

def dma(vo, srd, soff, imm, unit, mods):
    i = Ins(f"buffer_load_dwordx4 {vo}, {srd}, {soff} offen offset:{imm} {mods} lds".replace("  ", " "), "vmem", rd=[vo, srd, soff])
    i.rd.add(M0); i.dma_wr = unit; i.vm = True
    return i

def kslot_addr(slot): return slot * 8192
def vslot_addr(par, c): return VB + (par * 4 + c) * 8192

def dma_K(slot, wrap=False):
    r = []
    for dh in range(2):
        r.append(set_m0(s_mK, kslot_addr(slot) + dh * 768))
        r.append(dma(voK, sK, s_kptr, dh * 256, ("K", slot), opt.kvmod))
    r.append(sop(f"s_add_u32 {s_kptr}, {s_kptr}, 8192", rd=[s_kptr], wr=[s_kptr]))
    if wrap:
        r.append(sop(f"s_cmp_eq_u32 {s_kptr}, {s_kend}", rd=[s_kptr, s_kend]))
        r[-1].glue = True
        r.append(sop(f"s_cselect_b32 {s_kptr}, {s_knext}, {s_kptr}", rd=[s_kptr, s_knext], wr=[s_kptr]))
    return r

def dma_V(par, c, wrap=False):
    r = []
    if c == 0:
        r.append(sop(f"s_add_u32 {s_vptr}, {s_vptr}, 32768", rd=[s_vptr], wr=[s_vptr]))
        if wrap:
            r.append(sop(f"s_cmp_eq_u32 {s_vptr}, {s_vend}", rd=[s_vptr, s_vend]))
            r[-1].glue = True
            r.append(sop(f"s_cselect_b32 {s_vptr}, {s_knext}, {s_vptr}", rd=[s_vptr, s_knext], wr=[s_vptr]))
        r.append(sop(f"s_add_u32 {s_vptr2}, {s_vptr}, 4096", rd=[s_vptr], wr=[s_vptr2]))
    for e in range(2):
        r.append(set_m0(s_mK, vslot_addr(par, c) + e * 1024 - c * 128))
        r.append(dma(voV, sV, s_vptr2 if e else s_vptr, c * 128, ("V", par, c), opt.kvmod))
    return r

def dma_Q(base, soff, unit):
    r = []
    for hi in range(2):
        for dh in range(2):
            r.append(set_m0(base, hi * 4096 + dh * 768))
            for Rl in range(2):
                r.append(dma(voQb if hi else voQa, sQ, soff, Rl * 2048 + dh * 256, unit, opt.qmod))
    return r

def q_reads(b, base_sgpr, unit, tmp):
    r = [valu("v_add_u32", tmp, base_sgpr, kaddr)]
    for s in range(8):
        i = ds_read("ds_read_b128", Q(b, s), tmp, s * 256, tag=("q", b, s)); i.lds_rd = unit; i.private = True
        r.append(i)
    return r

def waitcnt(vm=None, lgkm=None):
    t = "s_waitcnt" + (f" vmcnt({vm})" if vm is not None else "") + (f" lgkmcnt({lgkm})" if lgkm is not None else "")
    i = raw(t, "wait"); i.vmw = vm; i.lgw = lgkm
    return i
def vwait(units, lgkm=None):
    i = raw("s_waitcnt ?", "wait"); i.vmneed = list(units); i.vmw = None; i.lgw = lgkm; i.vmauto = 63
    return i
def barrier():
    i = raw("s_barrier", "misc"); i.bar = True; return i

class Seg:
    def __init__(self, nb, name):
        self.nb = nb; self.name = name
        self.mf = []; self.nodes = []
        self.pairs = []
        self.blk = {}
        self.fixed = {}
        self.done = {}
        self.first = {}
        self.fixed2 = {}

    def qblock(self, name, slot, dst, czero, fbase):
        nb = self.nb; st = len(self.mf)
        for sp in range(4):
            p0 = len(self.mf)
            tags = [("f", self.name, name, 2 * sp + e) for e in range(2)]
            for b in range(nb):
                for e in range(2):
                    s = 2 * sp + e
                    d = Sx(dst, b)
                    c = d if s else (0 if czero else Ct(b))
                    self.mf.append(mfma(d, F(fbase + s), Q(b, s), c, need=tags))
                    self.done[(name, b)] = len(self.mf) - 1
            rd = []
            for e in range(2):
                s = 2 * sp + e
                i = ds_read("ds_read_b128", F(fbase + s), kaddr, kslot_addr(slot) + s * 256, tag=tags[e]); i.lds_rd = ("K", slot)
                rd.append(i)
            self.pairs.append((p0, len(self.mf) - 1, rd))
        self.blk[name] = (st, len(self.mf))

    def pblock(self, name, par, c, x0, x1, czero, fbase):
        self.pgen(name, par, [[(c, dbl, 0), (c, dbl, 1)] for dbl in range(4)], x0, x1, czero)

    def pgen(self, name, par, prs, x0, x1, czero):
        nb = self.nb; st = len(self.mf)
        for pi, pr in enumerate(prs):
            p0 = len(self.mf)
            fb = 2 * len(self.pairs)
            tags = [("f", self.name, name, 2 * pi + e) for e in range(2)]
            for b in range(nb):
                for e, (c, dbl, ks) in enumerate(pr):
                    o = O(b, 4 * c + dbl)
                    cc = 0 if (czero and ks == 0) else o
                    self.first.setdefault(("P", ks, b), len(self.mf))
                    self.first.setdefault(("O", c), len(self.mf))
                    if opt.abl & 512: self.mf.append(mfma(o, Sx(x1 if ks else x0, b), F(fb + e), cc, need=tags))
                    else: self.mf.append(mfma(o, F(fb + e), Sx(x1 if ks else x0, b), cc, need=tags))
            rd = []
            for e, (c, dbl, ks) in enumerate(pr):
                f = F(fb + e)
                va = vaddr1 if (dbl & 1) else vaddr0
                off = vslot_addr(par, c) - VB + ks * 4096 + (dbl >> 1) * 512
                for j4 in range(2):
                    i = ds_read("ds_read_b64_tr_b16", f.sub(2 * j4, 2), va, off + j4 * 2048, tag=tags[e] if j4 else ("x",))
                    i.lds_rd = ("V", par, c)
                    rd.append(i)
            self.pairs.append((p0, len(self.mf) - 1, rd))
        self.blk[name] = (st, len(self.mf))

    def unit(self, src, even_set, odd, blocks, e_of, dl_crit, dl_add, lo, hi, add_lo=None, add_hi=None, pre=None, after=None, fma=None):
        crit = []; adds = []; res = {}
        for b in blocks:
            x = Sx(src, b); ev = Sx(even_set, b)
            ms = []
            for i in range(4):
                deps = [(n, 0) for n in pre[b]] if pre else []
                ins = valu("v_fma_f32", x[i], x[i], s_c, fma[b]) if fma else valu("v_mul_f32", x[i], s_c, x[i])
                ms.append(Node(ins, e=e_of(b), dl=dl_crit(b), deps=deps))
            ex = [Node(valu("v_exp_f32", x[i], x[i]), e=e_of(b), dl=dl_crit(b), deps=[(ms[i], 0)]) for i in range(4)]
            ad = []
            for i in range(4):
                deps = [(ex[i], 1)] + ([(ad[-1], 0)] if ad else [])
                ad.append(Node(valu("v_add_f32", lsum(b), lsum(b), x[i]), e=e_of(b), dl=(dl_add if odd else dl_crit(b)), deps=deps))
            aft = [(n, 0) for n in (after or {}).get(b, [])]
            if odd:
                c0 = Node(valu("v_cvt_pk_bf16_f32", ev[2], x[0], x[1]), e=e_of(b), dl=dl_crit(b), deps=[(ex[0], 1), (ex[1], 1)] + aft)
                c1 = Node(valu("v_cvt_pk_bf16_f32", ev[3], x[2], x[3]), e=e_of(b), dl=dl_crit(b), deps=[(ex[2], 1), (ex[3], 1)] + aft)
                crit += [ms[0], ms[1], ex[0], ex[1], ms[2], ms[3], ex[2], ex[3], c0, c1]
                adds += ad
            else:
                c0 = Node(valu("v_cvt_pk_bf16_f32", x[0], x[0], x[1]), e=e_of(b), dl=dl_crit(b), deps=[(ex[0], 1), (ex[1], 1), (ad[0], 0)])
                c1 = Node(valu("v_cvt_pk_bf16_f32", x[1], x[2], x[3]), e=e_of(b), dl=dl_crit(b), deps=[(ex[2], 1), (ex[3], 1), (ad[1], 0), (c0, 0)])
                crit += [ms[0], ms[1], ex[0], ex[1], ms[2], ms[3], ex[2], ex[3], ad[0], ad[1], ad[2], ad[3], c0, c1]
            res[b] = [c0, c1] + ad
        spread(crit, lo, hi)
        if adds: spread(adds, add_lo if add_lo is not None else lo, add_hi if add_hi is not None else hi)
        self.nodes += crit + adds
        return res

    def chain(self, instrs, lo, hi, e=None, dl=None, first_dep=None):
        prev = first_dep; out = []
        for i in instrs:
            gapd = 0
            if prev is not None:
                pk = prev.ins.kind
                gapd = 1
                if pk == "ds" and i.kind == "ds": gapd = 0
            n = Node(i, e=lo if e is None else e, dl=(10**9 if dl is None else dl), deps=[(prev, gapd)] if prev else [])
            out.append(n); prev = n
        k = len(out)
        for j, n in enumerate(out): n.ideal = lo + (hi - lo) * j / max(k, 1)
        self.nodes += out
        return out

    def reads(self, nxt_pairs, skip_first=3, barrier_before=()):
        pairs = self.pairs; ext = [p[2] for p in pairs] + list(nxt_pairs)
        prev = None
        plen = 2 * self.nb
        for k in range(skip_first, len(ext)):
            j = k - 4
            e = pairs[j][1] if j >= 0 else 0
            if k in barrier_before:
                g = e - 1 + (opt.barlag if self.nb == 3 else opt.barlag4) if j >= 0 else 0
                g = min(g, len(self.mf) - 2)
                if opt.barsplit and g > 0 and len(barrier_before[k]) == 2:
                    self.fixed[g] = barrier_before[k][1:]
                    self.fixed2[g - 1] = barrier_before[k][:1]
                else:
                    self.fixed[g] = barrier_before[k]
                self.bar_gap = getattr(self, "bar_gap", {}); self.bar_gap[k] = g
                e = g + 1
            dl = e + plen - 2
            if (k + 1) in barrier_before: dl = e + 1
            for i in ext[k]:
                n = Node(i, e=e, dl=min(dl, len(self.mf) - 1), ideal=e - 2, deps=[(prev, 0)] if prev else [])
                self.nodes.append(n); prev = n

    def build(self, nxt_first=None):
        n = len(self.mf)
        ft = set(); seen = set()
        for g, m in enumerate(self.mf):
            key = tuple(m.need)
            if key not in seen:
                seen.add(key)
                if g > 0: ft.add(g - 1)
        ft.add(n - 1)
        blocked = {}
        for g in self.fixed: ft.add(g); blocked[g] = opt.barblk
        for g in self.fixed2: ft.add(g)
        gaps, over = schedule2(self.mf, self.nodes, free_taken=ft, blocked=blocked, nomem=set(self.fixed2) | set(self.fixed))
        for g, ins in self.fixed2.items():
            gaps[g][1][0:0] = ins
        for g, ins in self.fixed.items():
            gaps[g][1][0:0] = ins
        self.over = over
        if getattr(opt, "show", 0):
            cost = lambda i: 8 if i.kind == "vmem" else i.cost
            for nme, (a, b) in self.blk.items():
                row = ""
                for g in range(a, b):
                    u = sum(cost(i) for i in gaps[g][2]) + 4 * max(0, len(gaps[g][1]) - (0 if g in ft and g not in self.fixed else 1))
                    row += "B" if g in self.fixed else (str(u // 4) if u < 40 else "#")
                print(f"  nb{self.nb} {self.name} {nme}: {row}", file=sys.stderr)
        return gaps

def sets_for(par):
    return (0, 1, 2, 3) if par == 0 else (3, 2, 1, 0)

def first_pairs_of_iter(nb, J, name):
    s = Seg(nb, name); par = J & 1
    X0, X1, A_, B_ = sets_for(par)
    s.qblock("t0", 4 * ((J + 1) & 1), A_, False, 0)
    return [p[2] for p in s.pairs[:3]]

SPLIT = {4: 3, 3: 2}

LAT = 4
def units_of(J, h):
    par = J & 1; kb = 4 * ((J + 1) & 1)
    return [("K", kb), ("K", kb + 1), ("K", kb + 2), ("V", par, 0)] if h == 0 else [("V", par, 1), ("V", par, 2), ("V", par, 3), ("K", kb + 3)]

def iter_blocks(s, J, cz, split=0):
    par = J & 1
    X0, X1, A_, B_ = sets_for(par)
    kb = 4 * ((J + 1) & 1)
    s.qblock("t0", kb + 0, A_, False, 0)
    s.qblock("t1", kb + 1, B_, False, 0)
    if split == 2:
        s.pgen("t2", par, [[(0, 0, 0), (0, 1, 0)], [(0, 2, 0), (0, 3, 0)], [(0, 0, 1), (0, 1, 1)], [(0, 2, 1), (0, 3, 1)]], X0, X1, cz)
    elif split == 1:
        s.pgen("t2", par, [[(0, 0, 0), (0, 1, 0)], [(0, 0, 1), (0, 1, 1)], [(0, 2, 0), (0, 2, 1)], [(0, 3, 0), (0, 3, 1)]], X0, X1, cz)
    else:
        s.pblock("t2", par, 0, X0, X1, cz, 0)
    s.qblock("t3", kb + 2, A_, False, 0)
    s.pblock("t4", par, 1, X0, X1, cz, 0)
    s.pblock("t5", par, 2, X0, X1, cz, 0)
    s.qblock("t6", kb + 3, A_, False, 0)
    s.pblock("t7", par, 3, X0, X1, cz, 0)

def iter_units(s, J, u2, lo3=None):
    nb = s.nb; B = s.blk; n = len(s.mf)
    X0, X1, A_, B_ = sets_for(J & 1)
    p0s = s.first[("P", 1, 0)] - 1
    s.unit(A_, X1, True, range(nb), lambda b: s.done[("t0", b)] + LAT, lambda b: s.first[("P", 1, b)] - 2, B["t3"][0] - 2,
           lo3 if lo3 is not None else B["t0"][1] - 2, p0s - 1, add_lo=p0s, add_hi=B["t3"][0] - 4, after=u2)
    u0 = s.unit(B_, B_, False, range(nb), lambda b: s.done[("t1", b)] + LAT, lambda b: B["t4"][0] + 4, None,
                p0s + 2, B["t4"][0] - 2)
    s.unit(A_, B_, True, range(nb), lambda b: s.done[("t3", b)] + LAT, lambda b: B["t6"][0] - 2, B["t6"][0] - 2,
           B["t4"][0], B["t6"][0] - 4, add_lo=B["t4"][0] + 4, add_hi=B["t6"][0] - 3, after=u0)
    s.unit(A_, A_, False, range(SPLIT[nb]), lambda b: s.done[("t6", b)] + LAT, lambda b: n - 1, None,
           B["t7"][0], n - 3)

def make_mid(nb, J, name, nxt_name, special=False):
    par = J & 1
    X0, X1, A_, B_ = sets_for(par)
    kb = 4 * ((J + 1) & 1)
    s = Seg(nb, name)
    iter_blocks(s, J, False, split=(1 if nb == 3 else 0))
    n = len(s.mf); B = s.blk
    u2 = s.unit(X1, X1, False, list(range(SPLIT[nb], nb)), lambda b: 0, lambda b: B["t0"][1] + 2, None, 0, B["t0"][1] - 4)
    iter_units(s, J, u2)
    npair = len(s.pairs)
    nxt = first_pairs_of_iter(nb, J + 1, nxt_name)
    need2 = units_of(J + 1, 0) + (units_of(J + 1, 1) if special else [])
    s.reads(nxt, barrier_before={16: [vwait(units_of(J, 1), 0), barrier()], npair: [vwait(need2, 0), barrier()]})
    g1 = s.bar_gap[16]; g2 = s.bar_gap[npair]
    npar = (J + 1) & 1
    if opt.spread:
        gg = [dma_V(npar, 1), dma_V(npar, 2), dma_V(npar, 3), dma_K(4 * ((J + 2) & 1) + 3)]
        k0 = 3
        c0 = s.chain(sum(gg[:k0], []), 2, B["t0"][1] + 2, dl=g1 - 1)
        c0 = s.chain(sum(gg[k0:], []), B["t2"][0] + 10, g1 - 2, dl=g1 - 1, first_dep=c0[-1])
        lo1, hi1 = (g1 + 14, g2 - 4) if nb == 4 else (B["t4"][0] + 14, g2 + 2)
    else:
        g0 = dma_V(npar, 1) + dma_V(npar, 2) + dma_V(npar, 3) + dma_K(4 * ((J + 2) & 1) + 3)
        c0 = s.chain(g0, 0, B["t0"][1] + 2, dl=g1 - 1)
        lo1, hi1 = B["t5"][0] + 8, B["t7"][0]
    if special:
        s.chain(dma_Q(s_mR3, s_qn[1], ("R3",)), g1 + 2, B["t6"][1], e=g1 + 1, dl=g2 - 1, first_dep=c0[-1])
    else:
        tq = (lambda: touch(sQ, s_tq, 2048)) if (opt.touch & 1 and J & 1) else (lambda: [])
        tk = (lambda: touch(sK, s_tk, 12 << (opt.tsh + 6))) if (opt.touch & 2 and opt.twhen >> (J & 1) & 1) else (lambda: [])
        tv = (lambda: touch(sV, s_tv, 12 << (opt.tsh + 6))) if (opt.touch & 2 and opt.twhen >> (J & 1) & 1) else (lambda: [])
        xq = [[], []]
        if not J & 1:
            for hi in range(2):
                xq[hi] = [set_m0(s_xm, hi * 4096)] + [dma(voQb if hi else voQa, sQ, s_xq, Rl * 2048, ("X",), opt.qmod) for Rl in range(2)]
            xq[1] += [sop(f"s_add_u32 {s_xm}, {s_xm}, 1024", wr=[s_xm]), sop(f"s_add_u32 {s_xq}, {s_xq}, 256", wr=[s_xq])]
            if opt.xlate:
                d = dma_Q(s_mX, s_xm, ("X",))
                xq = [d[:6], d[6:] + [sop(f"s_mov_b32 {s_xm}, {s_xq}", wr=[s_xm])]]
        tc = touch(sC, s_cs, 0)[:1] if (opt.cwarm and (J & 1 or opt.cwarm > 1)) else []
        g1l = tc + dma_K(kb + 0, wrap=(J & 1) == 1) + tq() + xq[0] + dma_K(kb + 1) + tq() + tk() + xq[1] + dma_K(kb + 2) + tq() + tv() + dma_V(par, 0)
        last = s.chain(g1l, lo1, hi1, e=g1 + 1, dl=g2 - 1, first_dep=c0[-1])[-1]
        if J & 1:
            s.chain([sop(f"s_sub_u32 {s_cnt}, {s_cnt}, 1"), sop(f"s_cmp_eq_u32 {s_cnt}, 0")], n - 6, n - 3, first_dep=last)
    return s

def touch(srd, sp, step):
    i = Ins(f"buffer_load_dword {vt0}, {vt1}, {srd}, {sp} offen", "vmem", rd=[vt1, srd, sp], wr=[vt0]); i.vm = True
    return [i, sop(f"s_add_u32 {sp}, {sp}, {step}", rd=[sp], wr=[sp])]

RL = lambda b: SET(0)[b]
WA = lambda k: wa0 if k == 0 else SET(0)[4 + k]
RA = SET(0)[8]
LT = SET(0)[9]
VS1 = SET(0)[10]
HOIST = {4: (4, 10), 3: (3, 4)}
PK = lambda c, k: O(k >> 1, 4 * c + (k & 1))

def butterfly(x, op, mid, out):
    q = []
    def add(i, deps): q.append((i, deps)); return len(q) - 1
    a = add(perm("v_permlane16_swap_b32", x[0], x[1]), [])
    b = add(perm("v_permlane16_swap_b32", x[2], x[3]), [])
    a = add(valu(op, x[0], x[0], x[1]), [a])
    b = add(valu(op, x[2], x[2], x[3]), [b])
    c = add(perm("v_permlane32_swap_b32", x[0], x[2]), [a, b])
    for i in mid(out[0], x[0], x[2]): c = add(i, [c])
    c = add(valu("v_mov_b32", out[2], out[0]), [c])
    c = add(perm("v_permlane32_swap_b32", out[0], out[2]), [c])
    a = add(valu("v_mov_b32", out[1], out[0]), [c])
    b = add(valu("v_mov_b32", out[3], out[2]), [c])
    a = add(perm("v_permlane16_swap_b32", out[0], out[1]), [a])
    b = add(perm("v_permlane16_swap_b32", out[2], out[3]), [b])
    return q

def nodes_of(q, first_deps, e, dl, ideal, step):
    nds = []
    for k, (i, deps) in enumerate(q):
        isp = i.op.startswith("v_permlane")
        d = [(nds[j], 2 if isp else (1 if nds[j].ins.kind == "trans" else 0)) for j in deps] if deps else [(x, 2 if isp else 0) for x in first_deps]
        nds.append(Node(i, e=e, dl=dl, deps=d, ideal=ideal + step * k))
    return nds

def make_last(nb, name):
    J = 7; par = 1
    X0, X1, A_, B_ = sets_for(par)
    s = Seg(nb, name)
    s.qblock("t0", 0, A_, False, 0)
    s.pgen("t2", par, [[(c, d, 0), (c, d + 1, 0)] for c in (0, 1) for d in (0, 2)], X0, X1, False)
    s.pgen("t4", par, [[(c, d, 1), (c, d + 1, 1)] for c in (0, 1) for d in (0, 2)], X0, X1, False)
    s.pblock("t5", par, 2, X0, X1, False, 0)
    s.pblock("t7", par, 3, X0, X1, False, 0)
    n = len(s.mf); B = s.blk
    u2 = s.unit(X1, X1, False, list(range(SPLIT[nb], nb)), lambda b: 0, lambda b: B["t0"][1] + 2, None, 0, B["t0"][1] - 4)
    k1 = B["t4"][0]
    u3 = s.unit(A_, X1, True, range(nb), lambda b: s.done[("t0", b)] + LAT, lambda b: s.first[("P", 1, b)] - 2, B["t5"][0] + 6,
                B["t0"][1] - 2, k1 - 1, add_lo=k1, add_hi=B["t5"][0], after=u2)
    npair = len(s.pairs)
    t0e = B["t0"][1]
    def qchain(b, base, unit, tmp, lo, hi, pre, dl=None, first_dep=None):
        ins = pre + q_reads(b, base, unit, tmp)
        nds = s.chain(ins, lo, hi, dl=dl, first_dep=first_dep)
        for k, nd in enumerate(nds[len(pre) + 1:]):
            nd.e = max(nd.e, s.pairs[k // 2][1] + 1)
        return nds
    if opt.r3epi:
        s.reads([[]], barrier_before={npair: [waitcnt(None, 0), barrier()]})
        g2 = s.bar_gap[npair]; gR = B["t4"][0] + 8
        c2 = s.chain(dma_Q(s_mR2, s_qn[2], ("R2",)), 0, B["t2"][1] - 4)
        r0 = qchain(0, s_mX, ("X",), vt0, t0e - 10, t0e + 10, [vwait([("X",)])])
        r1 = qchain(1, s_mR3, ("R3",), vt1, B["t4"][0] + 6, B["t5"][0] + 6, [vwait([("R3",)])], dl=g2 - 5, first_dep=r0[-1])
        c3 = s.chain([mark_wait_lds(("q", 0, 7))] + dma_Q(s_mX, s_qn[3], ("X",)), B["t4"][0], g2)
        c3[0].deps = [(r0[-1], 5), (c2[-1], 1)]
        c4 = s.chain([sop(f"s_sub_u32 {s_vptr}, {s_knext}, 32768", wr=[s_vptr])], 2, 4)
    else:
        kR = 12
        s.reads([[]], barrier_before={kR + 2: [waitcnt(None, 0), barrier()], npair: [waitcnt(None, 0), barrier()]})
        gR = s.bar_gap[kR + 2]; g2 = s.bar_gap[npair]
        c2 = s.chain(dma_Q(s_mR2, s_qn[2], ("R2",)), 0, B["t0"][1] - 2)
        r0 = qchain(0, s_mX, ("X",), vt0, t0e - 10, t0e + 10, [vwait([("X",)])], dl=gR - 5)
        r1 = qchain(1, s_mR3, ("R3",), vt1, t0e + 10, gR - 8, [vwait([("R3",)])], dl=gR - 5, first_dep=r0[-1])
        c3 = s.chain([mark_wait_lds(("q", 0, 7))] + dma_Q(s_mX, s_qn[3], ("X",)), t0e + 16, gR + 4)
        c3[0].deps = [(r0[-1], 5), (c2[-1], 1)]
        refill = [sop(f"s_sub_u32 {s_vptr}, {s_knext}, 32768", wr=[s_vptr])] + dma_K(4) + dma_K(5) + dma_K(6) + dma_V(0, 0)
        c4 = s.chain(refill, gR + 4, g2 - 2, e=gR + 1, first_dep=c3[-1])
        r2 = s.chain([vwait([("R2",)])] + q_reads(2, s_mR2, ("R2",), vt0), g2 - 16, g2 - 6, dl=g2 - 4, first_dep=r1[-1])
        nca = opt.ca7
        grp = [dma_V(0, 1), dma_V(0, 2), dma_V(0, 3), dma_K(7)]
        c5 = s.chain(sum(grp[:nca], []), g2 + 1, n - 2, e=g2 + 1, first_dep=c4[-1]) if nca else c4
    ok = [sop(f"s_add_u32 {s_ok[k]}, {s_ocur}, {k * 4096}", wr=[s_ok[k]]) if (k < 2 * nb and not opt.nostore) else sop(f"s_mov_b32 {s_ok[k]}, {OOB:#x}", wr=[s_ok[k]]) for k in range(8)]
    k0 = s.chain(ok, 4, t0e + 8)
    pbg = pass_begin()
    q3w = [i for i in pbg if i.text.startswith(f"s_mov_b32 {s_qn[3]},")][0]
    if opt.r3epi:
        pbg.remove(q3w); pbg.append(sop(f"s_mov_b32 {s_qn[3]}, {s_tab[3]}"))
        k1 = s.chain(pbg, gR + 6, n - 3, first_dep=k0[-1])
        k1[0].deps += [(c2[-1], 1), (c4[0], 1)]; k1[-1].deps += [(c3[-1], 1)]
    else:
        k1 = s.chain(pbg, gR + 6, n - 4, first_dep=k0[-1])
        k1[0].deps += [(c3[-1], 1), (c4[0], 1)]
    q = butterfly([lsum(b) for b in range(4)], "v_add_f32", lambda d, x, y: [valu("v_add_f32", LT, x, y), valu("v_rcp_f32", d, LT)], [RL(b) for b in range(4)])
    red = nodes_of(q, [x for b in range(nb) for x in u3[b][2:]], 0, 10**9, B["t5"][0] + 2, 1.5)
    rl_done = red[-2:]
    ad = [valu("v_xor_b32", WA(k), 16 * k, wa0) for k in (1, 2, 3)]
    ad += [valu("v_mbcnt_lo_u32_b32", RA, -1, 0), valu("v_mbcnt_hi_u32_b32", RA, -1, RA), valu("v_lshl_add_u32", RA, RA, 3, s_mOS),
           valu("v_xor_b32", VS1, 32, RA)]
    prev = None
    for k, i in enumerate(ad):
        nd = Node(i, deps=[(prev, 0)] if prev else [], ideal=B["t0"][1] - 12 + k); red.append(nd); prev = nd
    s.nodes += red
    t7s = B["t7"][0]
    order, acct = epi_order(nb)
    na, nc = HOIST[nb]
    hs = g2 - opt.hback
    for k in range(na * 4):
        t_ = acct[k // 4]; i = k % 4
        s.nodes.append(Node(acc_read(TMP(k // 4)[i], O(t_[2], 4 * t_[0] + t_[1])[i]), e=t7s + LAT + 1, ideal=g2 + 1 + k * 0.6,
                            deps=[(x, 0) for b in range(nb) for x in u3[b]]))
    for k in range(nc):
        c, dbl, b = order[k]; o = O(b, 4 * c + dbl)
        ms = [Node(valu("v_mul_f32", o[i], o[i], RL(b)), e=B["t5"][0] + LAT, ideal=hs + 1 + na * 2.4 + 3 * k + 0.5 * i, deps=[(x, 0) for x in rl_done]) for i in range(4)]
        c0 = Node(valu("v_cvt_pk_bf16_f32", o[0], o[0], o[1]), ideal=hs + 3 + na * 2.4 + 3 * k, deps=[(ms[0], 0), (ms[1], 0)])
        c1 = Node(valu("v_cvt_pk_bf16_f32", o[1], o[2], o[3]), ideal=hs + 3.5 + na * 2.4 + 3 * k, deps=[(ms[2], 0), (ms[3], 0), (c0, 0)])
        s.nodes += ms + [c0, c1]
    return s

TMP = lambda k: V(48 + 4 * (k % 12), 4)
def epi_order(nb):
    order = [(c, dbl, b) for c in range(4) for dbl in range(4) for b in range(nb)]
    return order, [t_ for t_ in order if O(t_[2], 4 * t_[0] + t_[1]).k == 'a']

def mark_wait_lds(tag):
    i = raw("s_nop 0", "nop"); i.need = [tag]; i.is_marker = True
    return i

def make_head(nb, name, nxt_name):
    X0, X1, A_, B_ = sets_for(1)
    s = Seg(nb, name)
    s.qblock("h0", 1, B_, True, 0)
    s.qblock("h1", 2, X0, True, 0)
    s.qblock("h2", 3, A_, False, 0)
    iter_blocks(s, 0, True, split=2)
    n = len(s.mf); B = s.blk
    tmp = SET(X1)
    pre = {}; nmc = {}
    part = []; emax = 0
    dlm = B["h2"][0] - 2
    for b in range(4):
        if b < nb:
            x = Sx(B_, b); e = s.done[("h0", b)] + LAT; emax = max(emax, e)
            n0 = Node(valu("v_max3_f32", tmp[b], x[0], x[1], x[2]), e=e, dl=dlm, ideal=e)
            n1 = Node(valu("v_max_f32", tmp[b], tmp[b], x[3]), e=e, dl=dlm, ideal=e + 0.5, deps=[(n0, 0)])
            s.nodes += [n0, n1]; part.append(n1)
        z = Node(valu("v_mov_b32", lsum(b), 0), e=0, dl=B["h0"][1], ideal=2 + b)
        s.nodes.append(z); pre[b] = [z]
    q = butterfly([tmp[b] for b in range(4)], "v_max_f32", lambda d, x, y: [valu("v_min_f32", d, Neg(x), Neg(y))], [Ct(b)[0] for b in range(4)])
    bf = nodes_of(q, part, 0, dlm, emax, 0.5)
    s.nodes += bf
    for b in range(nb):
        nmc[b] = tmp[8 + b]
        src = bf[-2] if b < 2 else bf[-1]
        n0 = Node(valu("v_mul_f32", nmc[b], s_c, Ct(b)[0]), dl=dlm, ideal=emax + 8 + b * 0.3, deps=[(src, 0)])
        s.nodes += [n0] + [Node(valu("v_mov_b32", Ct(b)[i], Ct(b)[0]), dl=dlm + 2 * b, ideal=emax + 12 + 2 * b + i * 0.5, deps=[(src, 0)]) for i in (1, 2, 3)]
        pre[b].append(n0)
    t0s = B["t0"][0]; t1s = B["t1"][0]
    u0 = s.unit(B_, B_, False, range(nb), lambda b: s.done[("h0", b)] + LAT, lambda b: t1s - 4, None, B["h1"][0] + 10, B["h2"][0] + 14, pre=pre, fma=nmc)
    u1 = s.unit(X0, B_, True, range(nb), lambda b: s.done[("h1", b)] + LAT, lambda b: t1s - 2, t1s - 2, B["h2"][0] + 14, t0s + 16, pre=pre, after=u0, fma=nmc)
    for nd in s.nodes:
        if nd.ins.text.startswith("v_fma_f32"): nd.dl = min(nd.dl, t0s - 2); nd.ideal = min(nd.ideal, t0s - 6)
    u2 = s.unit(A_, A_, False, range(nb), lambda b: s.done[("h2", b)] + LAT, lambda b: s.first[("P", 1, b)] - 4, None, t0s + 16, t1s + 14)
    iter_units(s, 0, u2, lo3=t1s + 14)
    prev = None
    for k, i in enumerate([valu("v_mbcnt_lo_u32_b32", vt1, -1, 0), valu("v_mbcnt_hi_u32_b32", vt1, -1, vt1), valu("v_lshlrev_b32", vt1, opt.tsh, vt1)]):
        nd = Node(i, deps=[(prev, 0)] if prev else [], ideal=8 + k); s.nodes.append(nd); prev = nd
    npair = len(s.pairs)
    nxt = first_pairs_of_iter(nb, 1, nxt_name)
    def tb(k, l):
        if opt.diag != 3: return l
        return [raw(f"s_memtime s[{90+4*k}:{91+4*k}]")] + l + [raw(f"s_memtime s[{92+4*k}:{93+4*k}]")]
    s.reads(nxt, barrier_before={12: tb(0, [vwait(units_of(0, 0), 0), barrier()]), 28: tb(1, [vwait(units_of(0, 1), 0), barrier()]),
                                 npair: tb(2, [vwait(units_of(1, 0), 0), barrier()])})
    g0 = s.bar_gap[12]; g1 = s.bar_gap[28]; g2 = s.bar_gap[npair]
    grp = [dma_V(0, 1), dma_V(0, 2), dma_V(0, 3), dma_K(7)][opt.ca7:] + [dma_K(0), dma_V(1, 0), dma_V(1, 1), dma_V(1, 2), dma_V(1, 3)]
    ca = s.chain(sum(grp[:4], []), 0, B["h0"][1] + 2, dl=g1 - 30)
    rest = grp[4:]
    nearly = max(0, len(rest) - 3 + min(3, opt.ca7)) if False else max(0, 6 - opt.ca7 - 4)
    cb = s.chain(sum(rest[:nearly], []) + dma_K(1) + dma_K(2), B["t1"][0], B["t4"][0], e=g0 + 1, first_dep=ca[-1])
    cc = s.chain(sum(rest[nearly:], []) + dma_K(3), B["t4"][0] + 8, B["t6"][0] + 4, first_dep=cb[-1])
    cd = s.chain(dma_K(4) + dma_K(5) + dma_K(6) + dma_V(0, 0), B["t6"][0] + 6, n - 4, e=g1 + 1, first_dep=cc[-1])
    prev = None
    nd_ = opt.defer
    sts = [(c, k) for c in range(4 - nd_, 4) for k in range(8)]
    lo, hi = 4, s.first[("O", 3)] - 6
    for j, (c, k) in enumerate(sts):
        nd = Node(store(c, k), dl=s.first[("O", c)] - 3, ideal=min(lo + (hi - lo) * j / len(sts), s.first[("O", c)] - 6 - 4 * (7 - k)), deps=[(prev, 2)] if prev else [])
        s.nodes.append(nd); prev = nd
    head = [i for p in s.pairs[:3] for i in p[2]]
    return s, head

def perm(op, a, b):
    i = valu(op, a, b, extra_rd=[a], extra_wr=[b]); i.cost = 8
    return i

def acc_read(d, a):
    i = Ins(f"v_accvgpr_read_b32 {d}, {a}", "acc", rd=[a], wr=[d]); return i

def make_epi(nb, final):
    r = []
    c_ = valu("v_cmp_ngt_f32", "vcc", hex(L_LIMIT), LT); c_.wr.add(('s', 'vcc')); r.append(c_)
    tag = f"{nb}{'f' if final else ''}"
    flagl = [raw(f"s_cbranch_vccz L_noflag{tag}"), sop(f"s_bitset1_b32 {s_flags}, {s_pass}"), label(f"L_noflag{tag}")]
    def fin_only(st):
        if final:
            st.text = st.text[:st.text.index("offset:")] + f"offset:{st.quarter * 128} {opt.fmod}"
            return [st]
        return [st] if st.quarter < 4 - opt.defer else []
    def cluster(ins): return [] if final else ins
    order, acct = epi_order(nb)
    slot = {t_: k for k, t_ in enumerate(acct)}
    accq = [(t_, i) for t_ in acct for i in range(4)]
    nacc = 4 * HOIST[nb][0]; done_acc = 0
    rdq = []; stq = []; oth = []; wq = []
    dq = [dma_K(4), dma_K(5), dma_K(6), dma_V(0, 0)] if opt.r3epi else []
    dstep = (len(order) * 3 // 4) // 4
    held = None
    for j, (c, dbl, b) in enumerate(order):
        o = O(b, 4 * c + dbl)
        want = min(len(acct) * 4, -(-(j + 1) * len(acct) * 4 // (len(order) - 4)))
        while nacc < len(acct) * 4 and (nacc < want or (o.k == 'a' and nacc < 4 * (slot[(c, dbl, b)] + 1))):
            if nacc // 4 >= done_acc + 12:
                assert not (o.k == 'a' and nacc < 4 * (slot[(c, dbl, b)] + 1)), "out of temps"
                break
            t_, i = accq[nacc]; nacc += 1
            r.append(acc_read(TMP(slot[t_])[i], O(t_[2], 4 * t_[0] + t_[1])[i]))
        t4 = TMP(slot[(c, dbl, b)]) if o.k == 'a' else o
        rlp = V(RL(b).n & ~1, 2); sel = RL(b).n & 1
        if j >= HOIST[nb][1]:
            for h in range(2):
                r.append(valu("v_pk_mul_f32", t4.sub(2 * h, 2), t4.sub(2 * h, 2), rlp, mods=f"op_sel:[0,{sel}] op_sel_hi:[1,{sel}]"))
            r += [valu("v_cvt_pk_bf16_f32", t4[0], t4[0], t4[1]), valu("v_cvt_pk_bf16_f32", t4[1], t4[2], t4[3])]
        if b % 2 == 0 and b + 1 < nb:
            held = (t4, o.k == 'a')
        else:
            na = int(o.k == 'a')
            if held is not None:
                w = Ins(f"ds_write2st64_b64 {WA(dbl)}, {held[0].sub(0, 2)}, {t4.sub(0, 2)} offset0:{(b - 1) * 2} offset1:{b * 2}", "ds",
                        rd=[WA(dbl), held[0].sub(0, 2), t4.sub(0, 2)], tag=("w", j))
                na += held[1]; held = None
            else:
                w = ds_write("ds_write_b64", WA(dbl), t4.sub(0, 2), b * 1024, tag=("w", j))
            w.lds_pw = ("OS",); wq.append((w, na))
        if j == 4: r += flagl
        if dq and j >= 6 and (j - 6) % dstep == 0: r += cluster(dq.pop(0))
        last = (dbl == 3 and b == nb - 1)
        for _ in range(opt.epi_rd):
            if rdq: r.append(rdq.pop(0))
        if not rdq or last:
            r += rdq; rdq = []
            k_ = 0
            while wq and (k_ < 1 or last):
                w, na = wq.pop(0); r.append(w); done_acc += na; k_ += 1
        if stq and j % 2 == 1 and stq[0][0] <= j: r += fin_only(stq.pop(0)[1])
        elif oth and j % 2 == 0 and not rdq:
            r += cluster(oth.pop(0))
        if last:
            for k in range(2 * nb):
                ra = VS1 if k & 1 else RA
                i = Ins(f"ds_read2st64_b64 {PK(c, k)}, {ra} offset0:{k} offset1:{8 + k}", "ds", rd=[ra], wr=[PK(c, k)], tag=("o", c, k))
                i.lds_rd = ("OS",); i.private = True
                rdq.append(i)
            if c < 3:
                for k in range(2 * nb):
                    st = store(c, k, nb); st.need = [("o", c, k if k < 3 else 2 * nb - 1)]; stq.append((j + 3 + k // opt.epi_rd, st))
            def halves(l): return [l[:len(l) - 4], l[len(l) - 4:]]
            if opt.r3epi:
                if c == 0: oth += [head_reads()]
                if c == 1: oth += halves([vwait([("R2",)])] + q_reads(2, s_mR2, ("R2",), vt0))
                if c == 2: oth += halves([vwait([("X",)])] + q_reads(3, s_mX, ("X",), vt1))
            else:
                if c == 0: oth += halves([vwait([("X",)])] + q_reads(3, s_mX, ("X",), vt0))
                if c == 1: oth += [head_reads()]
    assert not oth and not dq
    r += rdq
    for x in stq: r += fin_only(x[1])
    for k in range(2 * nb):
        st = store(3, k, nb); st.need = [("o", 3, k)]; r += fin_only(st)
    return r

def head_reads():
    s = Seg(4, "hd"); s.qblock("h0", 1, 0, True, 0)
    return [i for p in s.pairs[:3] for i in p[2]]

def store(c, k, nb=None):
    data = PK(c, k)
    mod = {3: opt.omod3, 4: opt.omod4}.get(nb) or opt.omod
    vo = vsto
    i = Ins(f"buffer_store_dwordx4 {data}, {vo}, {sO}, {s_ok[k]} offen offset:{c * 128} {mod}".rstrip(), "vmem", rd=[data, vo, sO, s_ok[k]])
    i.wide_store = True; i.data = data.set(); i.vm = True; i.quarter = c; i.k = k
    return i

def lin(seq, pre=()):
    out = []; q = list(pre)
    for i in seq:
        if i.need:
            idx = -1
            for t in i.need:
                if t in q: idx = max(idx, len(q) - 1 - q[::-1].index(t))
            if idx >= 0:
                n = min(len(q) - 1 - idx, 15)
                out.append(waitcnt(None, n)); q = q[idx + 1:]
        if getattr(i, "lgw", None) is not None: q = q[len(q) - i.lgw:] if i.lgw else []
        if getattr(i, "is_marker", False): continue
        if i.kind == "ds" and not getattr(i, "optional", False): q.append(i.tag)
        out.append(i)
    return out, q

def flat(gaps, pre, nxt_need):
    out = []; q = list(pre)
    def wf(need):
        nonlocal q
        idx = -1
        for t in need:
            if t in q: idx = max(idx, len(q) - 1 - q[::-1].index(t))
        if idx < 0: return
        n = min(len(q) - 1 - idx, 15)
        out.append(waitcnt(None, n)); q = q[idx + 1:]
    for g, (m, sc, oth) in enumerate(gaps):
        wf(m.need)
        out.append(m)
        has_l0 = any(getattr(i, "lgw", None) == 0 for i in sc)
        if not has_l0:
            wf(gaps[g + 1][0].need if g + 1 < len(gaps) else nxt_need)
        for i in sc + oth:
            if i.need: wf(i.need)
            if getattr(i, "lgw", None) == 0: q = []
            if getattr(i, "is_marker", False): continue
            if i.kind == "ds": q.append(i.tag)
            out.append(i)
    return out, q

E32 = ("v_mul_f32", "v_add_f32", "v_exp_f32", "v_mov_b32", "v_max_f32", "v_xor_b32", "v_rcp_f32")
def isize(i):
    t = i.text
    if i.kind == "label": return 0
    op = t.split()[0]
    if op.startswith("s_"):
        import re
        m = re.findall(r"[ ,](0x[0-9a-f]+|-?\d+)\s*$", t)
        if op in ("s_waitcnt", "s_barrier", "s_nop") or op.startswith("s_cbranch") or op == "s_branch": return 4
        if m and not (-16 <= int(m[0], 0) <= 64): return 8
        return 4
    if op in E32 or op in ("v_add_u32", "v_lshlrev_b32", "v_permlane16_swap_b32", "v_permlane32_swap_b32"):
        return 8 if "-v" in t else 4
    return 8

def align8(seq, start=0):
    pos = start; cand = None
    for i in seq:
        if i.kind == "mfma":
            if pos % 8 and cand is not None:
                op = cand.text.split()[0]; cand.text = cand.text.replace(op, op + "_e64", 1); pos += 4
            cand = None
        sz = isize(i)
        if sz == 4 and i.text.split()[0] in E32 and cand is None: cand = i
        pos += sz
    return pos

def strip_clusters(seq, lab="L_sk"):
    out = []; skip = False
    for i in seq:
        if i.kind == "label" and i.text.startswith(lab): skip = False
        if not skip: out.append(i)
        if i.text.startswith("s_cbranch") and i.text.split()[1].startswith(lab): skip = True
    return out

def label(n): return Ins(n + ":", "label", states=0, cost=0)

def stamp(k):
    if not opt.diag: return []
    return [raw(f"s_memrealtime {s_ts}"), raw("s_memtime s[66:67]"), raw("s_waitcnt lgkmcnt(0)", "wait0"), raw(f"s_mov_b32 m0, {s_tsp}"), raw("s_nop 1"),
            raw(f"v_writelane_b32 v0, {s_ts.sub(0)}, m0"), raw(f"s_add_u32 m0, m0, 32"), raw("s_nop 1"), raw("v_writelane_b32 v0, s66, m0"),
            raw(f"s_add_u32 {s_tsp}, {s_tsp}, 1")]

def retag(q, old, new):
    return [tuple(new if x == old else x for x in t) if len(t) > 1 else t for t in q]

def variant(nb):
    P = {}
    hd, head = make_head(nb, "hd", "i1")
    i1 = make_mid(nb, 1, "i1", "i2")
    i2 = make_mid(nb, 2, "i2", "i1")
    i6 = make_mid(nb, 6, "i2", "i1", special=True)
    i7 = make_last(nb, "i1")
    SG = dict(hd=hd, i1=i1, i2=i2, i6=i6, i7=i7)
    G = {k: s.build() for k, s in SG.items()}
    print(f"nb={nb} overflow cycles:", {k: s.over for k, s in SG.items()}, file=sys.stderr)
    P["hd"], q0 = flat(G["hd"], [], G["i1"][0][0].need)
    P["i1"], q1 = flat(G["i1"], q0, G["i2"][0][0].need)
    P["i2"], q2 = flat(G["i2"], q1, G["i1"][0][0].need)
    assert q2 == q0, (q0, q2)
    for k in ("i1", "i2"):
        if opt.abl & 1024: P[k] = [i for i in P[k] if not i.text.startswith("v_add_f32")]
        if opt.abl & 2048: P[k] = [i for i in P[k] if not (i.kind == "ds" and "b128" in i.text)]
        if opt.abl & 4096: P[k] = [i for i in P[k] if not (i.kind == "ds" and "tr_b16" in i.text)]
        if opt.abl & 16: P[k] = [i for i in P[k] if not getattr(i, "bar", False)]
        if opt.abl & 32: P[k] = [i for i in P[k] if i.kind != "vmem"]
        if opt.abl & 64: P[k] = [i for i in P[k] if i.kind not in ("valu", "trans")]
        if opt.abl & 128: P[k] = [i for i in P[k] if i.kind != "ds"]
        if opt.abl & 256: P[k] = [i for i in P[k] if not (i.kind == "salu" and "m0" in i.text)]
    P["i6"], q = flat(G["i6"], q1, G["i7"][0][0].need)
    P["i7"], q = flat(G["i7"], q, [])
    P["epf"], _ = lin(make_epi(nb, True), q)
    ep = make_epi(nb, False)
    if opt.abl & 1: ep = [i for i in ep if not i.text.startswith("buffer_store")]
    if opt.abl & 2: ep = [i for i in ep if getattr(i, "lds_rd", None) != ("OS",)]
    if opt.abl & 4: ep = [i for i in ep if not i.text.startswith("ds_write")]
    if opt.abl & 8: ep = [i for i in ep if i.kind != "acc"]
    P["epi"], q = lin(ep, q)
    return P

def resolve_vm(traces):
    ws = set()
    for tr in traces:
        n = 0; last = {}
        for i in tr:
            if getattr(i, "vmneed", None) is not None:
                idx = max([last.get(u, -1) for u in i.vmneed])
                if idx >= 0: i.vmauto = min(i.vmauto, n - 1 - idx)
                ws.add(i)
            if getattr(i, "vm", False):
                u = getattr(i, "dma_wr", None)
                if u: last[u] = n
                n += 1
    for i in ws:
        i.vmw = i.vmauto
        i.text = f"s_waitcnt vmcnt({i.vmw})" + (f" lgkmcnt({i.lgw})" if i.lgw is not None else "")

def check_trace(trace):
    vm = []
    lg = []
    state = {}
    epoch = 0
    ALIAS = {("R2",): [("V", 0, 1), ("V", 0, 2), ("V", 0, 3), ("K", 7)], ("OS",): [("V", 1, c) for c in range(4)],
             ("R3",): [("K", 4), ("K", 5), ("K", 6), ("V", 0, 0)]}
    def phys(u): return ALIAS.get(u, [u])
    wr_land = {}; wr_pend = {}; rd_done = {}; rd_pend = {}; owner = {}
    errs = []
    for k, i in enumerate(trace):
        if getattr(i, "vmw", None) is not None:
            while len(vm) > i.vmw:
                o = vm.pop(0)
                u = getattr(o, "dma_wr", None)
                if u: wr_pend[u] -= 1; wr_land[u] = epoch
        if getattr(i, "lgw", None) is not None or i.kind == "wait0":
            n = 0 if i.kind == "wait0" else i.lgw
            while len(lg) > n:
                o = lg.pop(0)
                u = getattr(o, "lds_rd", None) or getattr(o, "lds_pw", None)
                if u: rd_pend[u] -= 1; rd_done[u] = epoch
        if getattr(i, "bar", False): epoch += 1
        u = getattr(i, "lds_rd", None)
        if u:
            if True:
                if wr_pend.get(u, 0) > 0: errs.append((k, "read of unit with pending DMA", u, i.text))
                elif not getattr(i, "private", False) and wr_land.get(u, 10**9) >= epoch: errs.append((k, "read without barrier after landing", u, i.text))
            for p in phys(u):
                if owner.get(p) != u: errs.append((k, "read of unit owned by", owner.get(p), u, i.text))
        w = getattr(i, "dma_wr", None) or getattr(i, "lds_pw", None)
        if w:
            for p in phys(w):
                o = owner.get(p)
                if o is not None:
                    priv = (o == w and w in (("X",), ("R2",), ("R3",), ("OS",)))
                    if rd_pend.get(o, 0) > 0 and not (getattr(i, "lds_pw", None) and o == w):
                        errs.append((k, "write over unit with reads in flight", o, w, i.text))
                    if not priv and rd_done.get(o, -1) >= epoch: errs.append((k, "write without barrier after reads", o, w, i.text))
                    if o != w and wr_pend.get(o, 0) > 0: errs.append((k, "write over pending dma", o, w))
                    if o != w and wr_land.get(o, -1) >= epoch: errs.append((k, "write over unit landed w/o barrier", o, w))
                owner[p] = w
        if i.kind == "ds":
            lg.append(i)
            u = getattr(i, "lds_rd", None) or getattr(i, "lds_pw", None)
            if u: rd_pend[u] = rd_pend.get(u, 0) + 1
        if getattr(i, "vm", False):
            vm.append(i)
            u = getattr(i, "dma_wr", None)
            if u: wr_pend[u] = wr_pend.get(u, 0) + 1
            assert len(vm) <= 63, "vmcnt overflow"
    return errs

def cross_check(traces):
    ALIAS = {("R2",): [("V", 0, 1), ("V", 0, 2), ("V", 0, 3), ("K", 7)], ("OS",): [("V", 1, c) for c in range(4)],
             ("R3",): [("K", 4), ("K", 5), ("K", 6), ("V", 0, 0)]}
    allg = []
    for tr in traces:
        gens = {}; epoch = 0; vm = []; lg = []
        for i in tr:
            if getattr(i, "vmw", None) is not None:
                while len(vm) > i.vmw:
                    for g in vm.pop(0): g["land"] = epoch
            if getattr(i, "lgw", None) is not None or i.kind == "wait0":
                n = 0 if i.kind == "wait0" else i.lgw
                while len(lg) > n:
                    for g in lg.pop(0): g["done"] = epoch
            if getattr(i, "bar", False): epoch += 1
            w = getattr(i, "dma_wr", None) or getattr(i, "lds_pw", None); r = getattr(i, "lds_rd", None)
            touched = []
            u = w or r
            if u and u != ("X",):
                for p in ALIAS.get(u, [u]):
                    l = gens.setdefault(p, [])
                    if w and (not l or l[-1]["own"] != u or (l[-1]["rd0"] is not None and u not in ALIAS)):
                        l.append(dict(own=u, wr0=epoch, land=10**9, rd0=None, done=-1))
                    g = l[-1]
                    if r and g["rd0"] is None: g["rd0"] = epoch
                    if r or getattr(i, "lds_pw", None): g["done"] = 10**9
                    if getattr(i, "dma_wr", None): g["land"] = 10**9
                    touched.append(g)
            if i.kind == "ds": lg.append(touched)
            if getattr(i, "vm", False): vm.append(touched)
        allg.append((gens, epoch))
    assert len(set(e for _, e in allg)) == 1, "barrier counts differ"
    for p in allg[0][0]:
        n = len(allg[0][0][p])
        assert all(len(g[p]) == n and [x["own"] for x in g[p]] == [x["own"] for x in allg[0][0][p]] for g, _ in allg), ("generations differ", p)
        for k in range(n):
            G = [g[p][k] for g, _ in allg]
            if G[0]["own"] not in ALIAS and G[0]["rd0"] is not None:
                assert max(x["land"] for x in G) < min(x["rd0"] for x in G), ("cross RAW", p, k, G)
            if k + 1 < n:
                N = [g[p][k + 1] for g, _ in allg]
                assert max(x["done"] for x in G) < min(x["wr0"] for x in N), ("cross WAR", p, k, G, N)
                if G[0]["own"] != N[0]["own"] and any(x["land"] != 10**9 or x["rd0"] is not None for x in G) and G[0]["own"] != ("OS",):
                    assert max(x["land"] for x in G) < min(x["wr0"] for x in N), ("cross WAW", p, k, G, N)

THR = {}
HELP = {}
RANK = {}
HELPN = {}
def schedule_table(mode):
    tab = {}
    if mode == "simple":
        for wg in range(256):
            x = wg & 7; idx = wg >> 3
            head = x * 16 + (idx >> 1); base = 41 * (idx & 1)
            tab[wg] = [(head, base, 12), (head, base + 12, 16), (head, base + 28, 13)]
    elif mode == "share":
        for x in range(8):
            rounds = [[], [], []]
            def add(r, h, start, sizes):
                for sz in sizes:
                    rounds[r].append((x * 16 + h, start, sz)); start += sz
                return start
            for h in range(10):
                st = add(0, h, 0, [12, 12, 12]); add(1 if h < 6 else 2, h, st, [15, 15, 16])
            st = add(0, 10, 0, [12, 12]); st = add(1, 10, st, [15, 14]); add(2, 10, st, [15, 14])
            for h in range(11, 16):
                add(1 if h < 13 else 2, h, 0, [14, 14, 14, 14, 13, 13])
            assert all(len(r) == 32 for r in rounds), [len(r) for r in rounds]
            for idx in range(32):
                tab[idx * 8 + x] = [rounds[0][idx], rounds[1][idx], rounds[2][idx]]
    elif mode.startswith("g6"):
        orders = {"A": (0, 1, 2), "B": (1, 0, 2), "C": (2, 1, 0), "D": (2, 0, 1)}
        pat = mode.split("_")[1]
        rot = pat.startswith("x"); pat = pat.lstrip("x")
        for x in range(8):
            for g in range(6):
                o = orders[pat[(g + (x if rot else 0)) % len(pat)]] if not pat.startswith("X") else orders["ABC"[x % 3]]
                if g < 5:
                    ha, hb, hc = [x * 16 + 3 * g + i for i in range(3)]
                    r0 = [(ha, 0, 12), (ha, 12, 12), (ha, 24, 12), (hb, 0, 12), (hb, 12, 12), (hb, 24, 12)]
                    r1 = [(ha, 36, 15), (ha, 51, 15), (ha, 66, 16), (hb, 36, 15), (hb, 51, 15), (hb, 66, 16)]
                    r2 = [(hc, 0, 14), (hc, 14, 14), (hc, 28, 13), (hc, 41, 14), (hc, 55, 14), (hc, 69, 13)]
                    n = 6
                else:
                    h = x * 16 + 15
                    r0 = [(h, 0, 12), (h, 12, 12)]; r1 = [(h, 24, 15), (h, 39, 15)]; r2 = [(h, 54, 14), (h, 68, 14)]
                    n = 2
                R = [r0, r1, r2]
                for i in range(n):
                    tab[(6 * g + i) * 8 + x] = [R[o[0]][i], R[o[1]][i], R[o[2]][i]]
    elif mode.startswith("t3"):
        _, lo, so, th = mode.split("_")
        th = [int(x, 16) for x in th.split(".")]
        alt = mode.startswith("t3a")
        if alt:
            LS = [i for i in range(32) if not i & 4]; SS = [i for i in range(32) if i & 4]
        else:
            LS = [6 * g + i for g in range(5) for i in range(3)] + [30]; SS = [6 * g + 3 + i for g in range(5) for i in range(3)] + [31]
        for x in range(8):
            H = [x * 16 + i for i in range(16)]
            T3 = lambda h: [(h, 0, 12), (h, 12, 12), (h, 24, 12)]
            T4 = lambda h: [(h, 36, 16), (h, 52, 16), (h, 68, 14)]
            for g in range(5):
                a, b, c = H[3 * g], H[3 * g + 1], H[3 * g + 2]
                Lt = {"3": T3(a), "4": T4(a), "5": T4(b)[::-1]}
                St = {"3": T3(c), "2": T3(b), "4": T4(c)}
                lord = lo.split(".")[(g + x) % len(lo.split("."))]; sord = so.split(".")[(g + x) % len(so.split("."))]
                for i in range(3):
                    wl = LS[3 * g + i] * 8 + x; wsn = SS[3 * g + i] * 8 + x
                    tab[wl] = [Lt[k][i] for k in lord]
                    tab[wsn] = [St[k][i] for k in sord]
                    THR[wsn] = th[(g + x) % len(th)]
                    RANK[wl] = i; RANK[wsn] = i
                    h0, st0, _n = Lt[lord[0]][i]
                    HELP[wsn] = (h0 * SQ + st0 * 16) * 512
            h = H[15]
            tab[LS[15] * 8 + x] = [(h, 0, 12), (h, 36, 16), (h, 68, 14)]
            if alt:
                tab[SS[15] * 8 + x] = [(h, 52, 16), (h, 12, 12), (h, 24, 12)]
                THR[SS[15] * 8 + x] = th[0]; HELP[SS[15] * 8 + x] = h * SQ * 512
            else:
                tab[SS[15] * 8 + x] = [(h, 12, 12), (h, 52, 16), (h, 24, 12)]
    elif mode.startswith("t6"):
        _, lo, th = mode.split("_")
        th = [int(x, 16) for x in th.split(".")]
        LS = [i for i in range(32) if not i & 4]; SS = [i for i in range(32) if i & 4]
        for x in range(8):
            T3 = lambda h: [(h, 0, 12), (h, 12, 12), (h, 24, 12)]
            T4 = lambda h, r: [[(h, 36, 16), (h, 52, 16), (h, 68, 14)][(i + r) % 3] for i in range(3)]
            for g in range(5):
                pat = lo.split(".")[(g + x) % len(lo.split("."))]
                for i in range(3):
                    wl = LS[3 * g + i] * 8 + x; wsn = SS[3 * g + i] * 8 + x
                    tab[wl] = []; tab[wsn] = []
                    for r in range(3):
                        h = x * 16 + 3 * g + r
                        a, b = T3(h)[i], T4(h, r)[i]
                        tab[wl].append(a if pat[r] == "3" else b); tab[wsn].append(b if pat[r] == "3" else a)
                    THR[wsn] = th[(g + x) % len(th)]; RANK[wl] = i; RANK[wsn] = i
                    HELP[wsn] = (tab[wl][0][0] * SQ + tab[wl][0][1] * 16) * 512; HELPN[wsn] = tab[wl][0][2]
            h = x * 16 + 15; pat = lo.split(".")[0]
            i3 = [(h, 0, 12), (h, 12, 12), (h, 24, 12)]; i4 = [(h, 36, 16), (h, 52, 16), (h, 68, 14)]
            wl = LS[15] * 8 + x; wsn = SS[15] * 8 + x
            tab[wl] = [(i3 if pat[r] == "3" else i4)[r] for r in range(3)]
            tab[wsn] = [(i4 if pat[r] == "3" else i3)[r] for r in range(3)]
            THR[wsn] = th[0]; HELP[wsn] = (h * SQ + tab[wl][0][1] * 16) * 512; HELPN[wsn] = tab[wl][0][2]
    cov = {}
    for wg, l in tab.items():
        for h, st, n in l:
            assert 12 <= n <= 16
            for b in range(st, st + n):
                assert (h, b) not in cov; cov[(h, b)] = wg
    assert len(cov) == 128 * 82
    return tab

def setup_code():
    L = []; A = L.append
    if opt.diag or opt.padto: A("s_memrealtime s[100:101]")
    A("s_cmp_ge_u32 s2, 256")
    A("s_cbranch_scc1 L_exit")
    A("s_load_dwordx4 s[72:75], s[0:1], 0")
    A("s_load_dwordx4 s[76:79], s[0:1], 16")
    if opt.diag: A("s_load_dwordx2 s[64:65], s[0:1], 40")
    A("s_getpc_b64 s[4:5]")
    A("L_pc:")
    if opt.warm:
        A(f"s_mov_b32 {sC[0]}, s4\ns_mov_b32 {sC[1]}, s5\ns_mov_b32 {sC[2]}, L_warm_end-L_pc\ns_mov_b32 {sC[3]}, 0x20000\nv_lshlrev_b32 v16, 7, v0")
        for k in range(opt.warm): A(f"s_mov_b32 s3, {k * 32768}\nbuffer_load_dword v{17 + k}, v16, {sC}, s3 offen")
    A("s_lshl_b32 s3, s2, 6")
    A("s_add_u32 s3, s3, L_table-L_pc")
    A("s_add_u32 s46, s4, s3")
    A("s_addc_u32 s47, s5, 0")
    A("s_load_dwordx16 s[80:95], s[46:47], 0")
    A(f"v_readfirstlane_b32 {s_wave}, v0")
    A("v_and_b32 v10, 63, v0")
    A(f"s_lshr_b32 {s_wave}, {s_wave}, 6")
    A("v_and_b32 v11, 15, v10")
    A("v_lshrrev_b32 v14, 4, v10")
    A("v_lshrrev_b32 v15, 2, v11\nv_lshlrev_b32 v1, 11, v15\nv_and_b32 v6, 3, v11\nv_lshl_add_u32 v1, v6, 6, v1")
    A("v_lshrrev_b32 v6, 3, v11\nv_lshlrev_b32 v6, 1, v6\nv_xor_b32 v6, v6, v14\nv_lshl_add_u32 v1, v6, 4, v1")
    A("v_lshrrev_b32 v6, 1, v14\nv_lshlrev_b32 v2, 10, v6\nv_and_b32 v7, 1, v14\nv_lshl_add_u32 v6, v7, 2, v15\nv_lshl_add_u32 v2, v6, 6, v2")
    A(f"v_and_b32 v8, 3, v10\nv_lshl_add_u32 v2, v8, 3, v2\nv_lshl_add_u32 v2, v7, 5, v2\nv_add_u32 v2, {VB}, v2\nv_xor_b32 v3, 32, v2")
    A("v_lshlrev_b32 v12, 9, v15\nv_lshl_add_u32 v12, v14, 6, v12\nv_lshl_add_u32 v12, v8, 4, v12\nv_xor_b32 v13, 32, v12\nv_add_u32 v13, 4096, v13")
    A(f"s_lshl_b32 {s_mK}, {s_wave}, 11\ns_lshr_b32 s3, {s_wave}, 1\ns_lshl_b32 s3, s3, 5")
    A(f"v_xor_b32 v4, s3, v12\nv_add_u32 v4, {s_mK}, v4")
    A("v_lshrrev_b32 v6, 2, v10\nv_and_b32 v6, 7, v6\nv_lshlrev_b32 v5, 9, v6\nv_lshrrev_b32 v6, 2, v6\nv_lshlrev_b32 v6, 1, v6\nv_xor_b32 v6, v6, v8")
    A(f"v_lshl_add_u32 v5, v6, 4, v5\nv_lshrrev_b32 v6, 5, v10\nv_lshl_add_u32 v5, v6, 6, v5\ns_lshl_b32 s3, {s_wave}, 13\nv_add_u32 v5, s3, v5")
    A(f"s_add_u32 {s_mX}, s3, {XB}")
    A(f"s_add_u32 {s_mOS}, s3, {vslot_addr(1, 0)}")
    A(f"s_add_u32 {s_mR2}, s3, {vslot_addr(0, 0)}")
    A(f"s_cmp_eq_u32 {s_wave}, 0\ns_cselect_b32 {s_mR2}, {kslot_addr(7)}, {s_mR2}")
    A(f"s_add_u32 {s_mR3}, s3, {kslot_addr(4)}")
    A(f"s_cmp_eq_u32 {s_wave}, 3\ns_cselect_b32 {s_mR3}, {vslot_addr(0, 0)}, {s_mR3}")
    A("v_lshrrev_b32 v6, 1, v14\nv_lshrrev_b32 v9, 1, v11\nv_xor_b32 v6, v6, v9\nv_lshlrev_b32 v6, 3, v6\nv_lshl_add_u32 v6, v7, 12, v6")
    A(f"v_lshl_add_u32 v6, v11, 6, v6\nv_add_u32 v15, {s_mOS}, v6")
    A("v_lshrrev_b32 v6, 3, v10\nv_and_b32 v9, 7, v10\nv_xor_b32 v9, v9, v14\nv_lshlrev_b32 v9, 4, v9\nv_lshl_add_u32 v14, v6, 9, v9")
    A(f"s_mov_b32 {s_c}, {C_SCALE:#x}\ns_mov_b32 {s_pass}, 0\ns_mov_b32 {s_flags}, 0")
    if opt.diag: A(f"s_mov_b32 {s_tsp}, 1\nv_mov_b32 v0, 0")
    A("s_waitcnt lgkmcnt(0)")
    if opt.diag:
        A("v_writelane_b32 v0, s100, 0")
        A("s_getreg_b32 s100, hwreg(HW_REG_HW_ID)\ns_getreg_b32 s101, hwreg(HW_REG_XCC_ID)\ns_nop 1\nv_writelane_b32 v0, s100, 30\nv_writelane_b32 v0, s101, 31")
    for srd, p, n in ((sQ, 72, QBYTES), (sK, 74, KBYTES), (sV, 76, KBYTES), (sO, 78, QBYTES)):
        A(f"s_mov_b32 {srd[0]}, s{p}\ns_mov_b32 {srd[1]}, s{p+1}\ns_mov_b32 {srd[2]}, {n}\ns_mov_b32 {srd[3]}, 0x20000")
    for k in range(8): A(f"s_mov_b32 {s_ok[k]}, {OOB:#x}")
    for p in range(3):
        A(f"s_sub_u32 s3, s{80+3*p+2}, 12")
        A(f"s_min_u32 s4, s3, {s_wave}")
        A(f"s_mul_i32 s5, {s_wave}, 3\ns_add_u32 s4, s4, s5\ns_lshl_b32 s4, s4, 13")
        A(f"s_add_u32 {s_tab[4*p]}, s{80+3*p}, s4")
        A(f"s_mov_b32 {s_tab[4*p+1]}, s{80+3*p+1}")
        A(f"s_add_u32 {s_tab[4*p+3]}, {s_tab[4*p]}, 24576")
        A(f"s_cmp_lt_u32 {s_wave}, s3\ns_cselect_b32 {s_tab[4*p+2]}, 4, 3\ns_cselect_b32 {s_tab[4*p+3]}, {s_tab[4*p+3]}, {OOB:#x}")
    A(f"s_mov_b32 {s_tab[12]}, {OOB:#x}\ns_mov_b32 {s_tab[13]}, {OOB:#x}\ns_mov_b32 {s_tab[14]}, 0\ns_mov_b32 {s_tab[15]}, {OOB:#x}")
    A(f"s_lshl_b32 s3, s91, 2\ns_add_u32 s3, s3, {s_wave}\ns_lshl_b32 {s_str}, s3, {opt.tsh + 6}")
    A(f"s_cmp_eq_u32 s90, {OOB:#x}\ns_cselect_b32 {s_str}, 0x40000000, {s_str}")
    A(f"s_lshr_b32 s3, s2, 1\ns_and_b32 s3, s3, 28\ns_add_u32 s3, s3, {s_wave}\ns_lshl_b32 {s_cs}, s3, {opt.tsh + 6}\ns_and_b32 {s_cs}, {s_cs}, 0xffff")
    for p in range(3):
        for k in range(3): A(f"s_mov_b32 s{80+3*p+k}, {s_tab[4*p+k]}")
    return L

def startup():
    P = {}
    r = [sop(f"s_mov_b32 {s_kptr}, {s_tab[1]}", wr=[s_kptr]), sop(f"s_sub_u32 {s_vptr}, {s_tab[1]}, 32768", wr=[s_vptr])]
    r += dma_K(1) + dma_K(2) + dma_K(3)
    r += [sop(f"s_add_u32 {s_t0}, {s_tab[0]}, 8192", wr=[s_t0]), sop(f"s_add_u32 {s_t1}, {s_tab[0]}, 16384", wr=[s_t1]),
          sop(f"s_add_u32 {s_t2}, {s_tab[0]}, 24576", wr=[s_t2])]
    r += [sop(f"s_cmp_eq_u32 s90, {OOB:#x}"), raw("s_cbranch_scc1 L_nohelp")]
    P["a"] = r
    late = lambda: dma_K(4) + dma_K(5) + dma_K(6) + dma_V(0, 0)
    r = late() if opt.late else []
    r += [sop("s_sub_u32 s4, s92, 12"), sop(f"s_add_u32 s5, {s_wave}, 1"), sop("s_min_u32 s4, s4, s5"), sop("s_mul_i32 s5, s5, 3"),
          sop("s_add_u32 s4, s4, s5"), sop("s_lshl_b32 s3, s4, 13"), sop(f"s_add_u32 s3, s3, s90"), sop(f"s_sub_u32 s3, s3, {1024 * opt.help_n}"),
          valu("v_lshlrev_b32", vt1, 4, vt0)]
    hl = []
    for k in range(opt.help_n):
        if k and k % 4 == 0: hl.append(sop("s_add_u32 s3, s3, 4096"))
        i = Ins(f"buffer_load_dwordx4 {V(96 + 4 * k, 4)}, {vt1}, {sQ}, s3 offen offset:{(k % 4) * 1024} {opt.hmod}", "vmem", rd=[vt1]); i.vm = True
        hl.append(i)
    if opt.late == 2: r = r[-9:] + hl + r[:-9]
    else: r += hl
    P["h"] = r
    r = []; k = 0
    for grp in (dma_Q(s_mX, s_tab[0], ("X",)), dma_Q(s_mR2, s_t0, ("R2",)), dma_Q(s_mOS, s_t1, ("OS",))):
        for hf in (grp[:6], grp[6:]):
            r += hf
            if not opt.sched.endswith("_0"):
                r += [sop(f"s_bitcmp1_b32 s89, {k}"), raw(f"s_cbranch_scc0 L_th{k}"), raw("s_waitcnt vmcnt(0)"), label(f"L_th{k}")]
            k += 1
    if not opt.late: r += late()
    st5 = (lambda: stamp(9)) if opt.diag == 5 else (lambda: [])
    r += st5() + [vwait([("X",)])] + st5() + q_reads(0, s_mX, ("X",), vt0)
    r += [sop(f"s_cmp_lt_u32 {s_tab[2]}, 4"), raw("s_cbranch_scc1 L_noq3")]
    P["q"] = r
    P["r2"] = [waitcnt(None, 0)] + dma_Q(s_mX, s_t2, ("X",))
    P["r3"] = [vwait([("R2",)])] + st5() + q_reads(1, s_mR2, ("R2",), vt1) + [barrier()] + head_reads()
    P["lc"] = [sop(f"s_cmp_lg_u32 s90, {OOB:#x}"), raw("s_cbranch_scc1 L_nolate")] if opt.late else []
    P["l"] = (late() + [vwait([("OS",)]), raw("s_branch L_osok")]) if opt.late else []
    P["w"] = [vwait([("OS",)])]
    P["r4"] = st5() + q_reads(2, s_mOS, ("OS",), vt0) + pass_begin()
    P["r4"] += [sop(f"s_cmp_lt_u32 {s_nbn}, 4"), raw("s_cbranch_scc1 L_first")]
    P["r5"] = [vwait([("X",)])] + q_reads(3, s_mX, ("X",), vt1)
    return {k: fix_hazards(lin(v)[0]) for k, v in P.items()}

def pass_begin():
    T2 = lambda k: S(s_tab.n + k, 2)
    r = [sop(f"s_mov_b32 {s_ocur}, {s_tab[0]}"),
         sop(f"s_add_u32 {s_kend}, {s_tab[1]}, 262144"),
         sop(f"s_mov_b32 {s_nbn}, {s_tab[2]}"),
         sop(f"s_mov_b32 {s_knext}, {s_tab[5]}"),
         sop(f"s_mov_b32 {s_xq}, {s_tab[4]}"),
         sop(f"s_add_u32 {s_qn[1]}, {s_tab[4]}, 8192"), sop(f"s_add_u32 {s_qn[2]}, {s_tab[4]}, 16384"),
         sop(f"s_mov_b32 {s_qn[3]}, {s_tab[7]}")]
    for k in range(0, 12, 2): r.append(sop(f"s_mov_b64 {T2(k)}, {T2(k + 4)}"))
    r += [sop(f"s_mov_b32 {s_cnt}, 3"), sop(f"s_mov_b32 {s_tq}, {s_qn[2]}"),
          sop(f"s_add_u32 {s_tv}, {s_str}, {s_knext}"), sop(f"s_add_u32 {s_tk}, {s_tv}, {opt.tkoff}"),
          sop(f"s_mov_b32 {s_xm}, {OOB:#x}") if opt.xlate else sop(f"s_mov_b32 {s_xm}, {s_mX}")]
    return r

def repair_code():
    rQ = lambda k: V(96 + 4 * k, 4); rK = lambda k: V(128 + 4 * k, 4); rS = lambda k: V(32 + 4 * k, 4)
    rO = lambda k: V(160 + 4 * k, 4); rV = lambda k: V(224 + 4 * k, 4)
    m, l, ta, tb, al, nm = V(6), V(7), V(8), V(9), V(10), V(11)
    fa, va0, va1, vop, so = V(48), V(49), V(50), V(51), V(52)
    sp, sb, sj, sq, sk, sv = S(90), S(91), S(92), S(93), S(94), S(95)
    def gload(d, srd, soff, imm):
        return Ins(f"buffer_load_dwordx4 {d}, {fa}, {srd}, {soff} offen offset:{imm}", "vmem", rd=[fa, srd, soff], wr=[d])
    W = lambda t: raw(t, "wait")
    out = []
    pre = [W("s_waitcnt vmcnt(0) lgkmcnt(0)"),
           valu("v_mbcnt_lo_u32_b32", ta, -1, 0), valu("v_mbcnt_hi_u32_b32", ta, -1, ta),
           valu("v_and_b32", tb, 15, ta), valu("v_lshrrev_b32", ta, 4, ta),
           valu("v_lshlrev_b32", fa, 9, tb), valu("v_lshl_add_u32", so, ta, 3, fa), valu("v_lshl_add_u32", fa, ta, 4, fa),
           sop(f"s_sub_u32 {s_t0}, {s_mX}, {VB}"), valu("v_add_u32", va0, s_t0, vaddr0), valu("v_add_u32", va1, s_t0, vaddr1),
           sop(f"s_lshl_b32 {s_t0}, {s_wave}, 13"), valu("v_subrev_u32", vop, s_t0, voV),
           sop(f"s_mov_b32 {sp}, 0")]
    out += fix_hazards(pre)
    out += [label("L_rp"), sop(f"s_bitcmp1_b32 {s_flags}, {sp}"), raw("s_cbranch_scc0 L_rp_next"), sop(f"s_mov_b32 {sb}, 0"), label("L_rb")]
    blk = [sop(f"s_lshl_b32 {sq}, {sb}, 13"), sop(f"s_add_u32 {sq}, {sq}, s80")]
    blk += [gload(rQ(k), sQ, sq, k * 64) for k in range(8)]
    blk += [valu("v_mov_b32", m, "0xff800000"), valu("v_mov_b32", l, 0)]
    blk += [valu("v_mov_b32", V(160 + k), 0) for k in range(64)]
    blk += [sop(f"s_mov_b32 {sk}, s81"), sop(f"s_mov_b32 {sv}, s81"), sop(f"s_mov_b32 {sj}, 0")]
    out += fix_hazards(blk) + [label("L_rj")]
    it = []
    for kvb in range(4):
        it += [gload(rK(k), sK, sk, k * 64) for k in range(8)] + [sop(f"s_add_u32 {sk}, {sk}, 8192"), W("s_waitcnt vmcnt(0)")]
        it += [mfma(rS(kvb), rK(k), rQ(k), rS(kvb) if k else 0) for k in range(8)]
    xs = [V(32 + k) for k in range(16)]
    it += [valu("v_max3_f32", ta, m, xs[0], xs[1])]
    it += [valu("v_max3_f32", ta, ta, xs[k], xs[k + 1]) for k in range(2, 16, 2)]
    it += [valu("v_mov_b32", tb, ta), perm("v_permlane16_swap_b32", ta, tb), valu("v_max_f32", ta, ta, tb),
           valu("v_mov_b32", tb, ta), perm("v_permlane32_swap_b32", ta, tb), valu("v_max_f32", ta, ta, tb),
           valu("v_sub_f32", al, m, ta), valu("v_mul_f32", al, s_c, al), valu("v_exp_f32", al, al), valu("v_mov_b32", m, ta)]
    it += [valu("v_sub_f32", x, x, m) for x in xs] + [valu("v_mul_f32", x, s_c, x) for x in xs] + [valu("v_exp_f32", x, x) for x in xs]
    it += [valu("v_mul_f32", l, l, al)] + [valu("v_add_f32", l, l, x) for x in xs]
    it += [valu("v_mul_f32", V(160 + k), V(160 + k), al) for k in range(64)]
    Pf = lambda ks: V(16 + 4 * ks, 4)
    for ks in range(2):
        for j in range(4): it.append(valu("v_cvt_pk_bf16_f32", Pf(ks)[j], xs[8 * ks + 2 * j], xs[8 * ks + 2 * j + 1]))
    for c in range(4):
        for j in range(8):
            it += [sop(f"s_add_u32 {s_t0}, {sv}, {j * 4096 + c * 128}", wr=[s_t0]), set_m0(s_mX, j * 1024), dma(vop, sV, s_t0, 0, None, "")]
        it += [W("s_waitcnt vmcnt(0)")]
        for dbl in range(4):
            for ks in range(2):
                for j4 in range(2):
                    it.append(ds_read("ds_read_b64_tr_b16", rV(2 * dbl + ks).sub(2 * j4, 2), va1 if dbl & 1 else va0, ks * 4096 + (dbl >> 1) * 512 + j4 * 2048))
        it += [W("s_waitcnt lgkmcnt(0)")]
        for dbl in range(4):
            for ks in range(2): it.append(mfma(rO(4 * c + dbl), rV(2 * dbl + ks), Pf(ks), rO(4 * c + dbl)))
    it += [nop(9), sop(f"s_add_u32 {sv}, {sv}, 32768"), sop(f"s_add_u32 {sj}, {sj}, 1"), sop(f"s_cmp_lt_u32 {sj}, 8"), raw("s_cbranch_scc1 L_rj")]
    out += fix_hazards(it)
    fin = [valu("v_mov_b32", tb, l), perm("v_permlane16_swap_b32", l, tb), valu("v_add_f32", l, l, tb),
           valu("v_mov_b32", tb, l), perm("v_permlane32_swap_b32", l, tb), valu("v_add_f32", l, l, tb), valu("v_rcp_f32", al, l)]
    for db in range(16):
        o = rO(db)
        fin += [valu("v_mul_f32", o[i], o[i], al) for i in range(4)]
        fin += [valu("v_cvt_pk_bf16_f32", o[0], o[0], o[1]), valu("v_cvt_pk_bf16_f32", o[1], o[2], o[3])]
        fin.append(Ins(f"buffer_store_dwordx2 {o.sub(0, 2)}, {so}, {sO}, {sq} offen offset:{db * 32}", "vmem", rd=[o.sub(0, 2), so, sO, sq]))
    fin += [W("s_waitcnt vmcnt(0)"), sop(f"s_add_u32 {sb}, {sb}, 1"), sop(f"s_cmp_lt_u32 {sb}, s82"), raw("s_cbranch_scc1 L_rb")]
    out += fix_hazards(fin)
    out += [label("L_rp_next")]
    out += [sop(f"s_mov_b32 s{80 + k}, s{83 + k}") for k in range(6)]
    out += [sop(f"s_add_u32 {sp}, {sp}, 1"), sop(f"s_cmp_lt_u32 {sp}, 3"), raw("s_cbranch_scc1 L_rp")]
    return out

def main():
    ap = argparse.ArgumentParser()
    ap.add_argument("-o", default="standalone__mha_softmax__near_ridge.s")
    ap.add_argument("--diag", type=int, default=0)
    ap.add_argument("--kvmod", default="")
    ap.add_argument("--qmod", default="nt")
    ap.add_argument("--omod", default="")
    ap.add_argument("--sched", default="t6_344_0")
    ap.add_argument("--pkmul", type=int, default=1)
    ap.add_argument("--rep", type=int, default=1)
    ap.add_argument("--fmod", default="nt")
    ap.add_argument("--xlate", type=int, default=0)
    ap.add_argument("--hmod", default="")
    ap.add_argument("--tsh", type=int, default=5)
    ap.add_argument("--barsplit", type=int, default=1)
    ap.add_argument("--barblk", type=int, default=8)
    ap.add_argument("--barlag4", type=int, default=2)
    ap.add_argument("--r3epi", type=int, default=1)
    ap.add_argument("--hback", type=int, default=24)
    ap.add_argument("--hoist", default="")
    ap.add_argument("--twhen", type=int, default=2)
    ap.add_argument("--tkoff", type=int, default=24576)
    ap.add_argument("--cwarm", type=int, default=1)
    ap.add_argument("--late", type=int, default=1)
    ap.add_argument("--al8", type=int, default=0)
    ap.add_argument("--tstride", type=int, default=2048)
    ap.add_argument("--tstep", type=int, default=24576)
    ap.add_argument("--barlag", type=int, default=4)
    ap.add_argument("--epi_rd", type=int, default=1)
    ap.add_argument("--abl", type=int, default=0)
    ap.add_argument("--help_n", type=int, default=12)
    ap.add_argument("--omod3", default="")
    ap.add_argument("--omod4", default="")
    ap.add_argument("--wb", type=int, default=0)
    ap.add_argument("--nostore", type=int, default=0)
    ap.add_argument("--ca7", type=int, default=0)
    ap.add_argument("--show", type=int, default=0)
    ap.add_argument("--spread", type=int, default=1)
    ap.add_argument("--touch", type=int, default=2)
    ap.add_argument("--force", type=int, default=0)
    ap.add_argument("--padto", type=int, default=0)
    ap.add_argument("--defer", type=int, default=0)
    ap.add_argument("--warm", type=int, default=2)
    a = ap.parse_args()
    opt.__dict__.update(vars(a)); opt.nextq = 1
    if opt.hoist:
        h = [int(x) for x in opt.hoist.split(",")]; HOIST[4] = (h[0], h[1]); HOIST[3] = (h[2], h[3])
    L = []; A = L.append
    hdr = open("standalone__mha_softmax__near_ridge.s.ref").read().split("\n")
    for l in hdr:
        if l.startswith("; @launch"): break
        A(l)
    A(f"; @launch grid=(256,1,1) block=(256,1,1) lds={LDS_BYTES}")
    A('.amdgcn_target "amdgcn-amd-amdhsa--gfx950"')
    A(f".text\n.globl {KNAME}\n.p2align 8\n.type {KNAME},@function\n{KNAME}:")
    L += setup_code()
    def emit(seq):
        for i in seq: L.append(i)
    if opt.rep > 1: A(f"s_mov_b32 s98, {opt.rep}\nL_again:")
    emit(stamp(0))
    SU = startup()
    emit(SU["a"]); emit(SU["h"]); A("L_nohelp:"); emit(SU["q"]); emit(SU["r2"]); A("L_noq3:"); emit(SU["r3"])
    emit(SU["lc"]); emit(SU["l"]); A("L_nolate:"); emit(SU["w"]); A("L_osok:"); emit(SU["r4"]); emit(SU["r5"])
    A("L_first:")
    assert opt.ca7 == 0
    s4 = []
    s4 = fix_hazards(s4 + sum([dma_V(0, 1), dma_V(0, 2), dma_V(0, 3), dma_K(7)][:opt.ca7], []))
    emit(s4)
    A("L_pass:")
    pb = [waitcnt(None, 0), barrier()]
    emit(pb)
    emit(stamp(1))
    A(f"s_cmp_eq_u32 {s_nbn}, 3\ns_cbranch_scc1 L_v3")
    VAR = {}
    for nb in (4, 3):
        P = variant(nb)
        hd = fix_hazards(P["hd"])
        b1 = fix_hazards(P["i1"], wrap=hd[-14:])
        b2 = fix_hazards(P["i2"], wrap=b1[-14:])
        b1b = fix_hazards(P["i1"], wrap=b2[-14:])
        assert [x.text for x in b1b] == [x.text for x in b1], "loop entry hazards differ"
        i6 = fix_hazards(P["i6"], wrap=b1[-14:])
        i7 = fix_hazards(P["i7"], wrap=i6[-14:])
        epi = fix_hazards(P["epi"], wrap=i7[-14:])
        epf = fix_hazards(P["epf"], wrap=i7[-14:])
        VAR[nb] = dict(hd=hd, b1=b1, b2=b2, i6=i6, i7=i7, epi=epi, epf=epf)
        if opt.al8:
            for k in ("hd", "b1", "b2", "i6", "i7"): align8(VAR[nb][k])
        nn = sum(1 for p in VAR[nb].values() for x in p if x.kind == "nop")
        print(f"nb={nb}: sizes", {k: len(v) for k, v in VAR[nb].items()}, "nops", nn, file=sys.stderr)
        A(".p2align 6"); A(f"L_v{nb}:")
        emit(hd)
        emit(stamp(2))
        if opt.diag == 3:
            for k in range(3):
                A(f"s_sub_u32 s66, s{92+4*k}, s{90+4*k}\ns_mul_i32 s67, {s_pass}, 3\ns_add_u32 m0, s67, {20+k}\ns_nop 1\nv_writelane_b32 v0, s66, m0")
        if opt.al8: A(f".p2align {opt.al8}")
        A(f"L_loop{nb}:")
        emit(b1); A(f"s_cbranch_scc1 L_i6_{nb}")
        if opt.al8: A(".p2align 3")
        emit(b2); A(f"s_branch L_loop{nb}")
        if opt.al8: A(f".p2align {opt.al8}")
        A(f"L_i6_{nb}:")
        if opt.diag == 4: emit(stamp(9))
        if opt.al8: A(".p2align 3")
        emit(i6)
        if opt.diag == 4: emit(stamp(9))
        if opt.al8: A(".p2align 3")
        emit(i7)
        emit(stamp(3))
        A(f"s_cmp_lt_u32 {s_pass}, 2\ns_cbranch_scc1 L_epi{nb}")
        emit(epf)
        emit(stamp(4))
        A(f"s_branch L_done\nL_epi{nb}:")
        emit(epi)
        emit(stamp(4))
        A(f"s_add_u32 {s_pass}, {s_pass}, 1\ns_branch L_pass")
    tail = []
    traces = []
    import itertools
    for seqnb in itertools.product((3, 4), (3, 4), (3, 4), (0, 1)):
        hp = seqnb[3]; seqnb = seqnb[:3]
        n4 = seqnb[0] == 4
        tr = SU["a"] + (SU["h"] if hp else []) + SU["q"] + (SU["r2"] if n4 else []) + SU["r3"] + (SU["w"] if (hp or not opt.late) else SU["l"]) + SU["r4"] + (SU["r5"] if n4 else []) + s4
        for pi, nb in enumerate(seqnb):
            v = VAR[nb]
            tr = tr + pb + v["hd"] + (v["b1"] + v["b2"]) * 2 + v["b1"] + v["i6"] + v["i7"] + v["epf" if pi == 2 else "epi"]
        traces.append(tr + tail)
    resolve_vm(traces)
    for tr in traces:
        errs = check_trace(tr)
        if errs and not opt.abl:
            for e in errs[:20]: print("SYNC ERR", e, file=sys.stderr)
            raise SystemExit(1)
    if not opt.abl: cross_check(traces)
    A("L_done:")
    emit(tail)
    if opt.force: A(f"s_mov_b32 {s_flags}, {opt.force}")
    A(f"s_cmp_lg_u32 {s_flags}, 0\ns_cbranch_scc1 L_repair\nL_fin:")
    if opt.rep > 1:
        A("s_waitcnt vmcnt(0) lgkmcnt(0)\ns_barrier")
        raise SystemExit("rep unsupported now")
        A(f"s_mov_b32 {s_pass}, 0\ns_sub_u32 s98, s98, 1\ns_cmp_lg_u32 s98, 0\ns_cbranch_scc1 L_again")
    if opt.diag:
        A("s_waitcnt vmcnt(0)")
        emit(stamp(5))
        A(f"s_mov_b32 s66, 0x1000000\ns_mov_b32 s67, 0x20000")
        A(f"v_mbcnt_lo_u32_b32 v1, -1, 0\nv_mbcnt_hi_u32_b32 v1, -1, v1\nv_lshlrev_b32 v1, 2, v1")
        A(f"s_lshl_b32 s3, s2, 10\ns_lshl_b32 s4, {s_wave}, 8\ns_add_u32 s3, s3, s4")
        A("buffer_store_dword v0, v1, s[64:67], s3 offen")
        if opt.diag == 2:
            A(f"s_or_b32 s3, s2, {s_wave}\ns_cmp_lg_u32 s3, 0\ns_cbranch_scc1 L_exit")
            A("s_load_dwordx2 s[64:65], s[0:1], 32\ns_mov_b32 s66, 256\nv_readlane_b32 s4, v0, 0\nv_readlane_b32 s5, v0, 32\ns_waitcnt lgkmcnt(0)")
            idx = [2, 3, 4, 6, 8, 10, 12, 14]
            for j, k in enumerate(idx):
                A(f"v_readlane_b32 s6, v0, {k}\nv_readlane_b32 s7, v0, {k+32}\ns_sub_u32 s6, s6, s4\ns_sub_u32 s7, s7, s5\ns_nop 1\nv_writelane_b32 v2, s6, {j}\nv_writelane_b32 v2, s7, {j+8}")
            A("s_mov_b64 exec, 0xffff\nbuffer_store_dword v2, v1, s[64:67], 0 offen")
    if opt.wb == 1:
        A(f"s_cmp_lg_u32 {s_wave}, 0\ns_cbranch_scc1 L_exit\ns_waitcnt vmcnt(0)\nbuffer_wbl2 sc1\ns_waitcnt vmcnt(0)")
    if opt.wb == 2:
        A(f"s_cmp_lg_u32 {s_wave}, 0\ns_cbranch_scc1 L_exit\ns_cmp_eq_u32 s89, 0\ns_cbranch_scc1 L_exit\ns_waitcnt vmcnt(0)\nbuffer_wbl2 sc1\ns_waitcnt vmcnt(0)")
    if opt.wb == 3:
        A(f"s_waitcnt vmcnt(0)\nbuffer_wbl2 sc1")
    if opt.padto:
        A(f"s_waitcnt vmcnt(0)\nL_spin:\ns_memrealtime s[66:67]\ns_waitcnt lgkmcnt(0)\ns_sub_u32 s66, s66, s100\ns_cmp_lt_u32 s66, {opt.padto}\ns_cbranch_scc1 L_spin")
    A("L_exit:")
    A("s_endpgm")
    A("L_warm_end:")
    A("L_repair:")
    emit(repair_code())
    A("s_branch L_fin")
    A(".p2align 6\n.type L_table,@object\nL_table:")
    tab = schedule_table(opt.sched)
    for wg in range(256):
        w = []
        for h, st, n in tab[wg]:
            w += [(h * SQ + st * 16) * 512, h * SK * 512, n]
        w += [THR.get(wg, 0), HELP.get(wg, OOB), RANK.get(wg, 0), HELPN.get(wg, 12)]
        w += [0] * (16 - len(w))
        A(".long " + ", ".join(str(x) for x in w))
    A(".size L_table, 16384")
    A('.section .rodata,"a"\n.p2align 6')
    A(f".amdhsa_kernel {KNAME}")
    A("  .amdhsa_next_free_vgpr 512\n  .amdhsa_next_free_sgpr 102\n  .amdhsa_accum_offset 256\n  .amdhsa_group_segment_fixed_size 0")
    A("  .amdhsa_kernarg_size 48\n  .amdhsa_user_sgpr_count 2\n  .amdhsa_user_sgpr_kernarg_segment_ptr 1\n  .amdhsa_system_sgpr_workgroup_id_x 1")
    A(".end_amdhsa_kernel")
    open(opt.o, "w").write("\n".join((x if isinstance(x, str) else x.text) for x in L if x is not None) + "\n")

if __name__ == "__main__":
    main()
```

```python
import sys, argparse
from asmlib import *

KNAME = "standalone__mha_softmax__near_ridge_kernel"
NH, SQ, SK, D = 128, 1312, 512, 256
QBYTES = NH * SQ * D * 2
KBYTES = NH * SK * D * 2
OOB = 0x7fff0000
VB = 65536
XB = 131072
LDS_BYTES = 163840
C_SCALE = 0x3db8aa3b
L_LIMIT = 0x58800000

sQ, sK, sV, sO = S(8, 4), S(12, 4), S(16, 4), S(20, 4)
s_wave = S(24)
s_mK = S(25)
s_mX = S(26)
s_mR2 = S(27)
s_mOS = S(28)
s_kptr, s_kend, s_knext = S(29), S(30), S(31)
s_vptr, s_vptr2, s_vend = S(32), S(33), S(34)
s_c = S(35)
s_cnt = S(36)
s_pass = S(37)
s_flags = S(38)
s_qn = [S(40), S(41), S(42), S(43)]
s_ocur = S(44)
s_t0, s_t1, s_t2 = S(45), S(46), S(47)
s_tab = S(48, 16)
s_dbg = S(64, 4)
s_ts = S(68, 2)
s_nbn = S(70)
s_tsp = S(71)
s_mR3 = S(39)
s_tq, s_tk, s_tv, s_xm, s_xq = S(90), S(91), S(92), S(93), S(94)
sC = S(96, 4)
s_cs = S(95)
s_str = S(34)
s_ok = [S(72 + k) for k in range(8)]
kaddr, vaddr0, vaddr1, voK, voV = V(1), V(2), V(3), V(4), V(5)
lsum = lambda b: V(6 + b)
vt0, vt1 = V(10), V(11)
voQa, voQb = V(12), V(13)
vsto, wa0 = V(14), V(15)
Ct = lambda b: V(16 + 4 * b, 4)
SET = lambda i: V(32 + 16 * i, 16)
Sx = lambda i, b: SET(i).sub(4 * b, 4)
Q = lambda b, s: AG(b * 32 + s * 4, 4)
NF = 8
F = lambda i: AG(128 + 4 * (i % NF), 4)
def O(b, db):
    if 4 <= db < 10: return AG(160 + 4 * ((db - 4) * 4 + b), 4)
    return V(96 + 4 * ((db if db < 4 else db - 6) * 4 + b), 4)

M0 = ('m0', 0)
def set_m0(base, off):
    i = salu(f"s_add_u32 m0, {base}, {off}", rd=[base]); i.wr = {M0}; return i
def sop(text, rd=(), wr=()): return salu(text, rd=rd, wr=wr)

class Opt: pass
opt = Opt()

def dma(vo, srd, soff, imm, unit, mods):
    i = Ins(f"buffer_load_dwordx4 {vo}, {srd}, {soff} offen offset:{imm} {mods} lds".replace("  ", " "), "vmem", rd=[vo, srd, soff])
    i.rd.add(M0); i.dma_wr = unit; i.vm = True
    return i

def kslot_addr(slot): return slot * 8192
def vslot_addr(par, c): return VB + (par * 4 + c) * 8192

def dma_K(slot, wrap=False):
    r = []
    for dh in range(2):
        r.append(set_m0(s_mK, kslot_addr(slot) + dh * 768))
        r.append(dma(voK, sK, s_kptr, dh * 256, ("K", slot), opt.kvmod))
    r.append(sop(f"s_add_u32 {s_kptr}, {s_kptr}, 8192", rd=[s_kptr], wr=[s_kptr]))
    if wrap:
        r.append(sop(f"s_cmp_eq_u32 {s_kptr}, {s_kend}", rd=[s_kptr, s_kend]))
        r[-1].glue = True
        r.append(sop(f"s_cselect_b32 {s_kptr}, {s_knext}, {s_kptr}", rd=[s_kptr, s_knext], wr=[s_kptr]))
    return r

def dma_V(par, c, wrap=False):
    r = []
    if c == 0:
        r.append(sop(f"s_add_u32 {s_vptr}, {s_vptr}, 32768", rd=[s_vptr], wr=[s_vptr]))
        if wrap:
            r.append(sop(f"s_cmp_eq_u32 {s_vptr}, {s_vend}", rd=[s_vptr, s_vend]))
            r[-1].glue = True
            r.append(sop(f"s_cselect_b32 {s_vptr}, {s_knext}, {s_vptr}", rd=[s_vptr, s_knext], wr=[s_vptr]))
        r.append(sop(f"s_add_u32 {s_vptr2}, {s_vptr}, 4096", rd=[s_vptr], wr=[s_vptr2]))
    for e in range(2):
        r.append(set_m0(s_mK, vslot_addr(par, c) + e * 1024 - c * 128))
        r.append(dma(voV, sV, s_vptr2 if e else s_vptr, c * 128, ("V", par, c), opt.kvmod))
    return r

def dma_Q(base, soff, unit):
    r = []
    for hi in range(2):
        for dh in range(2):
            r.append(set_m0(base, hi * 4096 + dh * 768))
            for Rl in range(2):
                r.append(dma(voQb if hi else voQa, sQ, soff, Rl * 2048 + dh * 256, unit, opt.qmod))
    return r

def q_reads(b, base_sgpr, unit, tmp):
    r = [valu("v_add_u32", tmp, base_sgpr, kaddr)]
    for s in range(8):
        i = ds_read("ds_read_b128", Q(b, s), tmp, s * 256, tag=("q", b, s)); i.lds_rd = unit; i.private = True
        r.append(i)
    return r

def waitcnt(vm=None, lgkm=None):
    t = "s_waitcnt" + (f" vmcnt({vm})" if vm is not None else "") + (f" lgkmcnt({lgkm})" if lgkm is not None else "")
    i = raw(t, "wait"); i.vmw = vm; i.lgw = lgkm
    return i
def vwait(units, lgkm=None):
    i = raw("s_waitcnt ?", "wait"); i.vmneed = list(units); i.vmw = None; i.lgw = lgkm; i.vmauto = 63
    return i
def barrier():
    i = raw("s_barrier", "misc"); i.bar = True; return i

class Seg:
    def __init__(self, nb, name):
        self.nb = nb; self.name = name
        self.mf = []; self.nodes = []
        self.pairs = []
        self.blk = {}
        self.fixed = {}
        self.done = {}
        self.first = {}
        self.fixed2 = {}

    def qblock(self, name, slot, dst, czero, fbase):
        nb = self.nb; st = len(self.mf)
        for sp in range(4):
            p0 = len(self.mf)
            tags = [("f", self.name, name, 2 * sp + e) for e in range(2)]
            for b in range(nb):
                for e in range(2):
                    s = 2 * sp + e
                    d = Sx(dst, b)
                    c = d if s else (0 if czero else Ct(b))
                    self.mf.append(mfma(d, F(fbase + s), Q(b, s), c, need=tags))
                    self.done[(name, b)] = len(self.mf) - 1
            rd = []
            for e in range(2):
                s = 2 * sp + e
                i = ds_read("ds_read_b128", F(fbase + s), kaddr, kslot_addr(slot) + s * 256, tag=tags[e]); i.lds_rd = ("K", slot)
                rd.append(i)
            self.pairs.append((p0, len(self.mf) - 1, rd))
        self.blk[name] = (st, len(self.mf))

    def pblock(self, name, par, c, x0, x1, czero, fbase):
        self.pgen(name, par, [[(c, dbl, 0), (c, dbl, 1)] for dbl in range(4)], x0, x1, czero)

    def pgen(self, name, par, prs, x0, x1, czero):
        nb = self.nb; st = len(self.mf)
        for pi, pr in enumerate(prs):
            p0 = len(self.mf)
            fb = 2 * len(self.pairs)
            tags = [("f", self.name, name, 2 * pi + e) for e in range(2)]
            for b in range(nb):
                for e, (c, dbl, ks) in enumerate(pr):
                    o = O(b, 4 * c + dbl)
                    cc = 0 if (czero and ks == 0) else o
                    self.first.setdefault(("P", ks, b), len(self.mf))
                    self.first.setdefault(("O", c), len(self.mf))
                    if opt.abl & 512: self.mf.append(mfma(o, Sx(x1 if ks else x0, b), F(fb + e), cc, need=tags))
                    else: self.mf.append(mfma(o, F(fb + e), Sx(x1 if ks else x0, b), cc, need=tags))
            rd = []
            for e, (c, dbl, ks) in enumerate(pr):
                f = F(fb + e)
                va = vaddr1 if (dbl & 1) else vaddr0
                off = vslot_addr(par, c) - VB + ks * 4096 + (dbl >> 1) * 512
                for j4 in range(2):
                    i = ds_read("ds_read_b64_tr_b16", f.sub(2 * j4, 2), va, off + j4 * 2048, tag=tags[e] if j4 else ("x",))
                    i.lds_rd = ("V", par, c)
                    rd.append(i)
            self.pairs.append((p0, len(self.mf) - 1, rd))
        self.blk[name] = (st, len(self.mf))

    def unit(self, src, even_set, odd, blocks, e_of, dl_crit, dl_add, lo, hi, add_lo=None, add_hi=None, pre=None, after=None, fma=None, ext=None):
        crit = []; adds = []; res = {}
        for b in blocks:
            x = Sx(src, b); ev = Sx(even_set, b)
            ms = []
            for i in range(4):
                deps = [(n, 0) for n in pre[b]] if pre else []
                ins = valu("v_fma_f32", x[i], x[i], s_c, fma[b]) if fma else valu("v_mul_f32", x[i], s_c, x[i])
                ms.append(Node(ins, e=e_of(b), dl=dl_crit(b), deps=deps))
            y = ext(b) if ext else x
            late = odd or ext
            ex = [Node(valu("v_exp_f32", y[i], x[i]), e=e_of(b), dl=dl_crit(b), deps=[(ms[i], 0)]) for i in range(4)]
            ad = []
            for i in range(4):
                deps = [(ex[i], 1)] + ([(ad[-1], 0)] if ad else [])
                ad.append(Node(valu("v_add_f32", lsum(b), lsum(b), y[i]), e=e_of(b), dl=(dl_add if late else dl_crit(b)), deps=deps))
            aft = [(n, 0) for n in (after or {}).get(b, [])]
            if odd:
                c0 = Node(valu("v_cvt_pk_bf16_f32", ev[2], y[0], y[1]), e=e_of(b), dl=dl_crit(b), deps=[(ex[0], 1), (ex[1], 1)] + aft)
                c1 = Node(valu("v_cvt_pk_bf16_f32", ev[3], y[2], y[3]), e=e_of(b), dl=dl_crit(b), deps=[(ex[2], 1), (ex[3], 1)] + aft)
                crit += [ms[0], ms[1], ex[0], ex[1], ms[2], ms[3], ex[2], ex[3], c0, c1]
                adds += ad
            elif ext:
                c0 = Node(valu("v_cvt_pk_bf16_f32", x[0], y[0], y[1]), e=e_of(b), dl=dl_crit(b), deps=[(ex[0], 1), (ex[1], 1)])
                c1 = Node(valu("v_cvt_pk_bf16_f32", x[1], y[2], y[3]), e=e_of(b), dl=dl_crit(b), deps=[(ex[1], 0), (ex[2], 1), (ex[3], 1)])
                crit += [ms[0], ms[1], ex[0], ex[1], ms[2], ms[3], ex[2], ex[3], c0, c1]
                adds += ad
                res[b] = [c0, c1]; continue
            else:
                c0 = Node(valu("v_cvt_pk_bf16_f32", x[0], x[0], x[1]), e=e_of(b), dl=dl_crit(b), deps=[(ex[0], 1), (ex[1], 1), (ad[0], 0)])
                c1 = Node(valu("v_cvt_pk_bf16_f32", x[1], x[2], x[3]), e=e_of(b), dl=dl_crit(b), deps=[(ex[2], 1), (ex[3], 1), (ad[1], 0), (c0, 0)])
                crit += [ms[0], ms[1], ex[0], ex[1], ms[2], ms[3], ex[2], ex[3], ad[0], ad[1], ad[2], ad[3], c0, c1]
            res[b] = [c0, c1] + ad
        spread(crit, lo, hi)
        if adds: spread(adds, add_lo if add_lo is not None else lo, add_hi if add_hi is not None else hi)
        self.nodes += crit + adds
        return res

    def chain(self, instrs, lo, hi, e=None, dl=None, first_dep=None):
        prev = first_dep; out = []
        for i in instrs:
            gapd = 0
            if prev is not None:
                pk = prev.ins.kind
                gapd = 1
                if pk == "ds" and i.kind == "ds": gapd = 0
            n = Node(i, e=lo if e is None else e, dl=(10**9 if dl is None else dl), deps=[(prev, gapd)] if prev else [])
            out.append(n); prev = n
        k = len(out)
        for j, n in enumerate(out): n.ideal = lo + (hi - lo) * j / max(k, 1)
        self.nodes += out
        return out

    def reads(self, nxt_pairs, skip_first=3, barrier_before=()):
        pairs = self.pairs; ext = [p[2] for p in pairs] + list(nxt_pairs)
        prev = None
        plen = 2 * self.nb
        for k in range(skip_first, len(ext)):
            j = k - 4
            e = pairs[j][1] if j >= 0 else 0
            if k in barrier_before:
                g = e - 1 + (opt.barlag if self.nb == 3 else opt.barlag4) if j >= 0 else 0
                g = min(g, len(self.mf) - 2)
                if opt.barsplit and g > 0 and len(barrier_before[k]) == 2:
                    self.fixed[g] = barrier_before[k][1:]
                    self.fixed2[g - 1] = barrier_before[k][:1]
                else:
                    self.fixed[g] = barrier_before[k]
                self.bar_gap = getattr(self, "bar_gap", {}); self.bar_gap[k] = g
                e = g + 1
            dl = e + plen - 2
            if (k + 1) in barrier_before: dl = e + 1
            for i in ext[k]:
                n = Node(i, e=e, dl=min(dl, len(self.mf) - 1), ideal=e - 2, deps=[(prev, 0)] if prev else [])
                self.nodes.append(n); prev = n

    def build(self, nxt_first=None):
        n = len(self.mf)
        ft = set(); seen = set()
        for g, m in enumerate(self.mf):
            key = tuple(m.need)
            if key not in seen:
                seen.add(key)
                if g > 0: ft.add(g - 1)
        ft.add(n - 1)
        blocked = {}
        for g in self.fixed: ft.add(g); blocked[g] = opt.barblk
        for g in self.fixed2: ft.add(g)
        gaps, over = schedule2(self.mf, self.nodes, free_taken=ft, blocked=blocked, nomem=set(self.fixed2) | set(self.fixed))
        for g, ins in self.fixed2.items():
            gaps[g][1][0:0] = ins
        for g, ins in self.fixed.items():
            gaps[g][1][0:0] = ins
        self.over = over
        if getattr(opt, "show", 0):
            cost = lambda i: 8 if i.kind == "vmem" else i.cost
            for nme, (a, b) in self.blk.items():
                row = ""
                for g in range(a, b):
                    u = sum(cost(i) for i in gaps[g][2]) + 4 * max(0, len(gaps[g][1]) - (0 if g in ft and g not in self.fixed else 1))
                    row += "B" if g in self.fixed else (str(u // 4) if u < 40 else "#")
                print(f"  nb{self.nb} {self.name} {nme}: {row}", file=sys.stderr)
        return gaps

def sets_for(par):
    return (0, 1, 2, 3) if par == 0 else (3, 2, 1, 0)

def first_pairs_of_iter(nb, J, name):
    s = Seg(nb, name); par = J & 1
    X0, X1, A_, B_ = sets_for(par)
    s.qblock("t0", 4 * ((J + 1) & 1), A_, False, 0)
    return [p[2] for p in s.pairs[:3]]

SPLIT = {4: 3, 3: 2}

LAT = 4
def units_of(J, h):
    par = J & 1; kb = 4 * ((J + 1) & 1)
    return [("K", kb), ("K", kb + 1), ("K", kb + 2), ("V", par, 0)] if h == 0 else [("V", par, 1), ("V", par, 2), ("V", par, 3), ("K", kb + 3)]

def iter_blocks(s, J, cz, split=0):
    par = J & 1
    X0, X1, A_, B_ = sets_for(par)
    kb = 4 * ((J + 1) & 1)
    s.qblock("t0", kb + 0, A_, False, 0)
    s.qblock("t1", kb + 1, B_, False, 0)
    if split == 2:
        s.pgen("t2", par, [[(0, 0, 0), (0, 1, 0)], [(0, 2, 0), (0, 3, 0)], [(0, 0, 1), (0, 1, 1)], [(0, 2, 1), (0, 3, 1)]], X0, X1, cz)
    elif split == 1:
        s.pgen("t2", par, [[(0, 0, 0), (0, 1, 0)], [(0, 0, 1), (0, 1, 1)], [(0, 2, 0), (0, 2, 1)], [(0, 3, 0), (0, 3, 1)]], X0, X1, cz)
    else:
        s.pblock("t2", par, 0, X0, X1, cz, 0)
    s.qblock("t3", kb + 2, A_, False, 0)
    s.pblock("t4", par, 1, X0, X1, cz, 0)
    s.pblock("t5", par, 2, X0, X1, cz, 0)
    s.qblock("t6", kb + 3, A_, False, 0)
    s.pblock("t7", par, 3, X0, X1, cz, 0)

def iter_units(s, J, u2, lo3=None, x3=None, dl3=None):
    nb = s.nb; B = s.blk; n = len(s.mf)
    X0, X1, A_, B_ = sets_for(J & 1)
    p0s = s.first[("P", 1, 0)] - 1
    s.unit(A_, X1, True, range(nb), lambda b: s.done[("t0", b)] + LAT, lambda b: s.first[("P", 1, b)] - 2, dl3 or B["t3"][0] - 2,
           lo3 if lo3 is not None else B["t0"][1] - 2, p0s - 1, after=u2, **(x3 or dict(add_lo=p0s, add_hi=B["t3"][0] - 4)))
    u0 = s.unit(B_, B_, False, range(nb), lambda b: s.done[("t1", b)] + LAT, lambda b: B["t4"][0] + 4, None,
                p0s + 2, B["t4"][0] - 2)
    s.unit(A_, B_, True, range(nb), lambda b: s.done[("t3", b)] + LAT, lambda b: B["t6"][0] - 2, B["t6"][0] - 2,
           B["t4"][0], B["t6"][0] - 4, add_lo=B["t4"][0] + 4, add_hi=B["t6"][0] - 3, after=u0)
    s.unit(A_, A_, False, range(SPLIT[nb]), lambda b: s.done[("t6", b)] + LAT, lambda b: n - 1, None,
           B["t7"][0], n - 3)

def make_mid(nb, J, name, nxt_name, special=False):
    par = J & 1
    X0, X1, A_, B_ = sets_for(par)
    kb = 4 * ((J + 1) & 1)
    s = Seg(nb, name)
    iter_blocks(s, J, False, split=(1 if nb == 3 else 0))
    n = len(s.mf); B = s.blk
    u2 = s.unit(X1, X1, False, list(range(SPLIT[nb], nb)), lambda b: 0, lambda b: B["t0"][1] + 2, None, 0, B["t0"][1] - 4)
    iter_units(s, J, u2)
    npair = len(s.pairs)
    nxt = first_pairs_of_iter(nb, J + 1, nxt_name)
    need2 = units_of(J + 1, 0) + (units_of(J + 1, 1) if special else [])
    s.reads(nxt, barrier_before={16: [vwait(units_of(J, 1), 0), barrier()], npair: [vwait(need2, 0), barrier()]})
    g1 = s.bar_gap[16]; g2 = s.bar_gap[npair]
    npar = (J + 1) & 1
    if opt.spread:
        gg = [dma_V(npar, 1), dma_V(npar, 2), dma_V(npar, 3), dma_K(4 * ((J + 2) & 1) + 3)]
        k0 = 3
        c0 = s.chain(sum(gg[:k0], []), 2, B["t0"][1] + 2, dl=g1 - 1)
        c0 = s.chain(sum(gg[k0:], []), B["t2"][0] + 10, g1 - 2, dl=g1 - 1, first_dep=c0[-1])
        lo1, hi1 = (g1 + 14, g2 - 4) if nb == 4 else (B["t4"][0] + 14, g2 + 2)
    else:
        g0 = dma_V(npar, 1) + dma_V(npar, 2) + dma_V(npar, 3) + dma_K(4 * ((J + 2) & 1) + 3)
        c0 = s.chain(g0, 0, B["t0"][1] + 2, dl=g1 - 1)
        lo1, hi1 = B["t5"][0] + 8, B["t7"][0]
    if special:
        s.chain(dma_Q(s_mR3, s_qn[1], ("R3",)), g1 + 2, B["t6"][1], e=g1 + 1, dl=g2 - 1, first_dep=c0[-1])
    else:
        tq = (lambda: touch(sQ, s_tq, 2048)) if (opt.touch & 1 and J & 1) else (lambda: [])
        tk = (lambda: touch(sK, s_tk, 12 << (opt.tsh + 6))) if (opt.touch & 2 and opt.twhen >> (J & 1) & 1) else (lambda: [])
        tv = (lambda: touch(sV, s_tv, 12 << (opt.tsh + 6))) if (opt.touch & 2 and opt.twhen >> (J & 1) & 1) else (lambda: [])
        xq = [[], []]
        if not J & 1:
            for hi in range(2):
                xq[hi] = [set_m0(s_xm, hi * 4096)] + [dma(voQb if hi else voQa, sQ, s_xq, Rl * 2048, ("X",), opt.qmod) for Rl in range(2)]
            xq[1] += [sop(f"s_add_u32 {s_xm}, {s_xm}, 1024", wr=[s_xm]), sop(f"s_add_u32 {s_xq}, {s_xq}, 256", wr=[s_xq])]
            if opt.xlate:
                d = dma_Q(s_mX, s_xm, ("X",))
                xq = [d[:6], d[6:] + [sop(f"s_mov_b32 {s_xm}, {s_xq}", wr=[s_xm])]]
        tc = touch(sC, s_cs, 0)[:1] if (opt.cwarm and (J & 1 or opt.cwarm > 1)) else []
        g1l = tc + dma_K(kb + 0, wrap=(J & 1) == 1) + tq() + xq[0] + dma_K(kb + 1) + tq() + tk() + xq[1] + dma_K(kb + 2) + tq() + tv() + dma_V(par, 0)
        last = s.chain(g1l, lo1, hi1, e=g1 + 1, dl=g2 - 1, first_dep=c0[-1])[-1]
        if J & 1:
            s.chain([sop(f"s_sub_u32 {s_cnt}, {s_cnt}, 1"), sop(f"s_cmp_eq_u32 {s_cnt}, 0")], n - 6, n - 3, first_dep=last)
    return s

def touch(srd, sp, step):
    i = Ins(f"buffer_load_dword {vt0}, {vt1}, {srd}, {sp} offen", "vmem", rd=[vt1, srd, sp], wr=[vt0]); i.vm = True
    return [i, sop(f"s_add_u32 {sp}, {sp}, {step}", rd=[sp], wr=[sp])]

RL = lambda b: SET(0)[b]
WA = lambda k: wa0 if k == 0 else SET(0)[4 + k]
RA = SET(0)[8]
LT = SET(0)[9]
VS1 = SET(0)[10]
HOIST = {4: (4, 10), 3: (3, 4)}
PK = lambda c, k: O(k >> 1, 4 * c + (k & 1))

def butterfly(x, op, mid, out):
    q = []
    def add(i, deps): q.append((i, deps)); return len(q) - 1
    a = add(perm("v_permlane16_swap_b32", x[0], x[1]), [])
    b = add(perm("v_permlane16_swap_b32", x[2], x[3]), [])
    a = add(valu(op, x[0], x[0], x[1]), [a])
    b = add(valu(op, x[2], x[2], x[3]), [b])
    c = add(perm("v_permlane32_swap_b32", x[0], x[2]), [a, b])
    for i in mid(out[0], x[0], x[2]): c = add(i, [c])
    c = add(valu("v_mov_b32", out[2], out[0]), [c])
    c = add(perm("v_permlane32_swap_b32", out[0], out[2]), [c])
    a = add(valu("v_mov_b32", out[1], out[0]), [c])
    b = add(valu("v_mov_b32", out[3], out[2]), [c])
    a = add(perm("v_permlane16_swap_b32", out[0], out[1]), [a])
    b = add(perm("v_permlane16_swap_b32", out[2], out[3]), [b])
    return q

def nodes_of(q, first_deps, e, dl, ideal, step):
    nds = []
    for k, (i, deps) in enumerate(q):
        isp = i.op.startswith("v_permlane")
        d = [(nds[j], 2 if isp else (1 if nds[j].ins.kind == "trans" else 0)) for j in deps] if deps else [(x, 2 if isp else 0) for x in first_deps]
        nds.append(Node(i, e=e, dl=dl, deps=d, ideal=ideal + step * k))
    return nds

def make_last(nb, name):
    J = 7; par = 1
    X0, X1, A_, B_ = sets_for(par)
    s = Seg(nb, name)
    s.qblock("t0", 0, A_, False, 0)
    s.pgen("t2", par, [[(c, d, 0), (c, d + 1, 0)] for c in (0, 1) for d in (0, 2)], X0, X1, False)
    s.pgen("t4", par, [[(c, d, 1), (c, d + 1, 1)] for c in (0, 1) for d in (0, 2)], X0, X1, False)
    s.pblock("t5", par, 2, X0, X1, False, 0)
    s.pblock("t7", par, 3, X0, X1, False, 0)
    n = len(s.mf); B = s.blk
    u2 = s.unit(X1, X1, False, list(range(SPLIT[nb], nb)), lambda b: 0, lambda b: B["t0"][1] + 2, None, 0, B["t0"][1] - 4)
    k1 = B["t4"][0]
    u3 = s.unit(A_, X1, True, range(nb), lambda b: s.done[("t0", b)] + LAT, lambda b: s.first[("P", 1, b)] - 2, B["t5"][0] + 6,
                B["t0"][1] - 2, k1 - 1, add_lo=k1, add_hi=B["t5"][0], after=u2)
    npair = len(s.pairs)
    t0e = B["t0"][1]
    def qchain(b, base, unit, tmp, lo, hi, pre, dl=None, first_dep=None):
        ins = pre + q_reads(b, base, unit, tmp)
        nds = s.chain(ins, lo, hi, dl=dl, first_dep=first_dep)
        for k, nd in enumerate(nds[len(pre) + 1:]):
            nd.e = max(nd.e, s.pairs[k // 2][1] + 1)
        return nds
    if opt.r3epi:
        s.reads([[]], barrier_before={npair: [waitcnt(None, 0), barrier()]})
        g2 = s.bar_gap[npair]; gR = B["t4"][0] + 8
        c2 = s.chain(dma_Q(s_mR2, s_qn[2], ("R2",)), 0, B["t0"][1] + 4 if opt.q3early else B["t2"][1] - 4)
        r0 = qchain(0, s_mX, ("X",), vt0, t0e - 10, t0e + 10, [vwait([("X",)])])
        r1 = qchain(1, s_mR3, ("R3",), vt1, B["t4"][0] + 6, B["t5"][0] + 6, [vwait([("R3",)])], dl=g2 - 5, first_dep=r0[-1])
        c3 = s.chain([mark_wait_lds(("q", 0, 7))] + dma_Q(s_mX, s_qn[3], ("X",)), *((t0e + 16, B["t4"][1]) if opt.q3early else (B["t4"][0], g2)))
        c3[0].deps = [(r0[-1], 5), (c2[-1], 1)]
        c4 = s.chain([sop(f"s_sub_u32 {s_vptr}, {s_knext}, 32768", wr=[s_vptr])], 2, 4)
    else:
        kR = 12
        s.reads([[]], barrier_before={kR + 2: [waitcnt(None, 0), barrier()], npair: [waitcnt(None, 0), barrier()]})
        gR = s.bar_gap[kR + 2]; g2 = s.bar_gap[npair]
        c2 = s.chain(dma_Q(s_mR2, s_qn[2], ("R2",)), 0, B["t0"][1] - 2)
        r0 = qchain(0, s_mX, ("X",), vt0, t0e - 10, t0e + 10, [vwait([("X",)])], dl=gR - 5)
        r1 = qchain(1, s_mR3, ("R3",), vt1, t0e + 10, gR - 8, [vwait([("R3",)])], dl=gR - 5, first_dep=r0[-1])
        c3 = s.chain([mark_wait_lds(("q", 0, 7))] + dma_Q(s_mX, s_qn[3], ("X",)), t0e + 16, gR + 4)
        c3[0].deps = [(r0[-1], 5), (c2[-1], 1)]
        refill = [sop(f"s_sub_u32 {s_vptr}, {s_knext}, 32768", wr=[s_vptr])] + dma_K(4) + dma_K(5) + dma_K(6) + dma_V(0, 0)
        c4 = s.chain(refill, gR + 4, g2 - 2, e=gR + 1, first_dep=c3[-1])
        r2 = s.chain([vwait([("R2",)])] + q_reads(2, s_mR2, ("R2",), vt0), g2 - 16, g2 - 6, dl=g2 - 4, first_dep=r1[-1])
        nca = opt.ca7
        grp = [dma_V(0, 1), dma_V(0, 2), dma_V(0, 3), dma_K(7)]
        c5 = s.chain(sum(grp[:nca], []), g2 + 1, n - 2, e=g2 + 1, first_dep=c4[-1]) if nca else c4
    ok = [sop(f"s_add_u32 {s_ok[k]}, {s_ocur}, {k * 4096}", wr=[s_ok[k]]) if (k < 2 * nb and not opt.nostore) else sop(f"s_mov_b32 {s_ok[k]}, {OOB:#x}", wr=[s_ok[k]]) for k in range(8)]
    k0 = s.chain(ok, 4, t0e + 8)
    pbg = pass_begin()
    q3w = [i for i in pbg if i.text.startswith(f"s_mov_b32 {s_qn[3]},")][0]
    if opt.r3epi:
        pbg.remove(q3w); pbg.append(sop(f"s_mov_b32 {s_qn[3]}, {s_tab[3]}"))
        k1 = s.chain(pbg, gR + 6, n - 3, first_dep=k0[-1])
        k1[0].deps += [(c2[-1], 1), (c4[0], 1)]; k1[-1].deps += [(c3[-1], 1)]
    else:
        k1 = s.chain(pbg, gR + 6, n - 4, first_dep=k0[-1])
        k1[0].deps += [(c3[-1], 1), (c4[0], 1)]
    q = butterfly([lsum(b) for b in range(4)], "v_add_f32", lambda d, x, y: [valu("v_add_f32", LT, x, y), valu("v_rcp_f32", d, LT)], [RL(b) for b in range(4)])
    red = nodes_of(q, [x for b in range(nb) for x in u3[b][2:]], 0, 10**9, B["t5"][0] + 2, 1.5)
    rl_done = red[-2:]
    ad = [valu("v_xor_b32", WA(k), 16 * k, wa0) for k in (1, 2, 3)]
    ad += [valu("v_mbcnt_lo_u32_b32", RA, -1, 0), valu("v_mbcnt_hi_u32_b32", RA, -1, RA), valu("v_lshl_add_u32", RA, RA, 3, s_mOS),
           valu("v_xor_b32", VS1, 32, RA)]
    prev = None
    for k, i in enumerate(ad):
        nd = Node(i, deps=[(prev, 0)] if prev else [], ideal=B["t0"][1] - 12 + k); red.append(nd); prev = nd
    s.nodes += red
    t7s = B["t7"][0]
    order, acct = epi_order(nb)
    na, nc = HOIST[nb]
    hs = g2 - opt.hback
    for k in range(na * 4):
        t_ = acct[k // 4]; i = k % 4
        s.nodes.append(Node(acc_read(TMP(k // 4)[i], O(t_[2], 4 * t_[0] + t_[1])[i]), e=t7s + LAT + 1, ideal=g2 + 1 + k * 0.6,
                            deps=[(x, 0) for b in range(nb) for x in u3[b]]))
    for k in range(nc):
        c, dbl, b = order[k]; o = O(b, 4 * c + dbl)
        ms = [Node(valu("v_mul_f32", o[i], o[i], RL(b)), e=B["t5"][0] + LAT, ideal=hs + 1 + na * 2.4 + 3 * k + 0.5 * i, deps=[(x, 0) for x in rl_done]) for i in range(4)]
        c0 = Node(valu("v_cvt_pk_bf16_f32", o[0], o[0], o[1]), ideal=hs + 3 + na * 2.4 + 3 * k, deps=[(ms[0], 0), (ms[1], 0)])
        c1 = Node(valu("v_cvt_pk_bf16_f32", o[1], o[2], o[3]), ideal=hs + 3.5 + na * 2.4 + 3 * k, deps=[(ms[2], 0), (ms[3], 0), (c0, 0)])
        s.nodes += ms + [c0, c1]
    return s

QORD = (0, 3, 2, 1)
TMP = lambda k: V(48 + 4 * (k % 12), 4)
def epi_order(nb):
    order = [(c, dbl, b) for c in QORD for dbl in ((2, 3, 0, 1) if c == 2 else range(4)) for b in range(nb)]
    return order, [t_ for t_ in order if O(t_[2], 4 * t_[0] + t_[1]).k == 'a']

def mark_wait_lds(tag):
    i = raw("s_nop 0", "nop"); i.need = [tag]; i.is_marker = True
    return i

def make_head(nb, name, nxt_name):
    X0, X1, A_, B_ = sets_for(1)
    s = Seg(nb, name)
    s.qblock("h0", 1, B_, True, 0)
    s.qblock("h1", 2, X0, True, 0)
    s.qblock("h2", 3, A_, False, 0)
    iter_blocks(s, 0, True, split=2)
    n = len(s.mf); B = s.blk
    tmp = SET(X1)
    pre = {}; nmc = {}
    part = []; emax = 0
    dlm = B["h2"][0] - 2
    for b in range(4):
        if b < nb:
            x = Sx(B_, b); e = s.done[("h0", b)] + LAT; emax = max(emax, e)
            n0 = Node(valu("v_max3_f32", tmp[b], x[0], x[1], x[2]), e=e, dl=dlm, ideal=e)
            n1 = Node(valu("v_max_f32", tmp[b], tmp[b], x[3]), e=e, dl=dlm, ideal=e + 0.5, deps=[(n0, 0)])
            s.nodes += [n0, n1]; part.append(n1)
        z = Node(valu("v_mov_b32", lsum(b), 0), e=0, dl=B["h0"][1], ideal=2 + b)
        s.nodes.append(z); pre[b] = [z]
    q = butterfly([tmp[b] for b in range(4)], "v_max_f32", lambda d, x, y: [valu("v_min_f32", d, Neg(x), Neg(y))], [Ct(b)[0] for b in range(4)])
    bf = nodes_of(q, part, 0, dlm, emax, 0.5)
    s.nodes += bf
    for b in range(nb):
        nmc[b] = tmp[8 + b]
        src = bf[-2] if b < 2 else bf[-1]
        n0 = Node(valu("v_mul_f32", nmc[b], s_c, Ct(b)[0]), dl=dlm, ideal=emax + 8 + b * 0.3, deps=[(src, 0)])
        s.nodes += [n0] + [Node(valu("v_mov_b32", Ct(b)[i], Ct(b)[0]), dl=dlm + 2 * b, ideal=emax + 12 + 2 * b + i * 0.5, deps=[(src, 0)]) for i in (1, 2, 3)]
        pre[b].append(n0)
    t0s = B["t0"][0]; t1s = B["t1"][0]
    assert opt.defer == 0
    t7s = B["t7"][0]; a0 = B["t6"][0] - 6; aw = (t7s - 4 - a0) / 4
    X = lambda k: (dict(ext=lambda b: O(b, 12 + k), add_lo=a0 + k * aw, add_hi=a0 + (k + 1) * aw) if k < opt.hext else {})
    dla = lambda k, d: (t7s - 3) if k < opt.hext else d
    w = opt.hwin
    u0 = s.unit(B_, B_, False, range(nb), lambda b: s.done[("h0", b)] + LAT, lambda b: t1s - 4, dla(0, None), B["h1"][0] + 10, B["h2"][0] + w[0], pre=pre, fma=nmc, **X(0))
    u1 = s.unit(X0, B_, True, range(nb), lambda b: s.done[("h1", b)] + LAT, lambda b: t1s - 2, dla(1, t1s - 2), B["h2"][0] + w[0], t0s + w[1], pre=pre, after=u0, fma=nmc, **X(1))
    for nd in s.nodes:
        if nd.ins.text.startswith("v_fma_f32"): nd.dl = min(nd.dl, t0s - 2); nd.ideal = min(nd.ideal, t0s - 6)
    u2 = s.unit(A_, A_, False, range(nb), lambda b: s.done[("h2", b)] + LAT, lambda b: s.first[("P", 1, b)] - 4, dla(2, None), t0s + w[1], t1s + w[2], **X(2))
    iter_units(s, 0, u2, lo3=t1s + w[2], x3=X(3), dl3=dla(3, None))
    prev = None
    for k, i in enumerate([valu("v_mbcnt_lo_u32_b32", vt1, -1, 0), valu("v_mbcnt_hi_u32_b32", vt1, -1, vt1), valu("v_lshlrev_b32", vt1, opt.tsh, vt1)]):
        nd = Node(i, deps=[(prev, 0)] if prev else [], ideal=8 + k); s.nodes.append(nd); prev = nd
    npair = len(s.pairs)
    nxt = first_pairs_of_iter(nb, 1, nxt_name)
    def tb(k, l):
        if opt.diag != 3: return l
        return [raw(f"s_memtime s[{90+4*k}:{91+4*k}]")] + l + [raw(f"s_memtime s[{92+4*k}:{93+4*k}]")]
    s.reads(nxt, barrier_before={12: tb(0, [vwait(units_of(0, 0), 0), barrier()]), 28: tb(1, [vwait(units_of(0, 1), 0), barrier()]),
                                 npair: tb(2, [vwait(units_of(1, 0), 0), barrier()])})
    g0 = s.bar_gap[12]; g1 = s.bar_gap[28]; g2 = s.bar_gap[npair]
    grp = [dma_V(0, 1), dma_V(0, 2), dma_V(0, 3), dma_K(7)][opt.ca7:] + [dma_K(0), dma_V(1, 0), dma_V(1, 1), dma_V(1, 2), dma_V(1, 3)]
    ca = s.chain(sum(grp[:opt.hca], []), 0, B["h0"][1] + 2 + (opt.hca - 4) * 2 * nb, dl=g1 - 30)
    rest = grp[opt.hca:]
    nearly = max(0, 6 - opt.hca)
    cb = s.chain(sum(rest[:nearly], []) + dma_K(1) + dma_K(2), B["t1"][0], B["t4"][0], e=g0 + 1, first_dep=ca[-1])
    cc = s.chain(sum(rest[nearly:], []) + dma_K(3), B["t4"][0] + 8, B["t6"][0] + 4, first_dep=cb[-1])
    cd = s.chain(dma_K(4) + dma_K(5) + dma_K(6) + dma_V(0, 0), B["t6"][0] + 6, n - 4, e=g1 + 1, first_dep=cc[-1])
    prev = None
    nd_ = opt.defer
    sts = [(c, k) for c in range(4 - nd_, 4) for k in range(8)]
    lo, hi = 4, s.first[("O", 3)] - 6
    for j, (c, k) in enumerate(sts):
        nd = Node(store(c, k), dl=s.first[("O", c)] - 3, ideal=min(lo + (hi - lo) * j / len(sts), s.first[("O", c)] - 6 - 4 * (7 - k)), deps=[(prev, 2)] if prev else [])
        s.nodes.append(nd); prev = nd
    head = [i for p in s.pairs[:3] for i in p[2]]
    return s, head

def perm(op, a, b):
    i = valu(op, a, b, extra_rd=[a], extra_wr=[b]); i.cost = 8
    return i

def acc_read(d, a):
    i = Ins(f"v_accvgpr_read_b32 {d}, {a}", "acc", rd=[a], wr=[d]); return i

def make_epi(nb, final):
    r = []
    c_ = valu("v_cmp_ngt_f32", "vcc", hex(L_LIMIT), LT); c_.wr.add(('s', 'vcc')); r.append(c_)
    tag = f"{nb}{'f' if final else ''}"
    flagl = [raw(f"s_cbranch_vccz L_noflag{tag}"), sop(f"s_bitset1_b32 {s_flags}, {s_pass}"), label(f"L_noflag{tag}")]
    def fin_only(st):
        if final:
            st.text = st.text[:st.text.index("offset:")] + f"offset:{st.quarter * 128} {opt.fmod}"
            return [st]
        return [st] if st.quarter < 4 - opt.defer else []
    def cluster(ins): return [] if final else ins
    order, acct = epi_order(nb)
    slot = {t_: k for k, t_ in enumerate(acct)}
    accq = [(t_, i) for t_ in acct for i in range(4)]
    nacc = 4 * HOIST[nb][0]; done_acc = 0
    rdq = []; stq = []; oth = []; wq = []
    dq = [dma_K(4), dma_K(5), dma_K(6), dma_V(0, 0)] if opt.r3epi else []
    d0 = 6 + len(order) * opt.dq0 // 100
    dstep = (len(order) * 3 // 4) // 4
    held = None
    for j, (c, dbl, b) in enumerate(order):
        o = O(b, 4 * c + dbl)
        want = min(len(acct) * 4, -(-(j + 1) * len(acct) * 4 // (order.index(acct[-1]) - 2)))
        while nacc < len(acct) * 4 and (nacc < want or (o.k == 'a' and nacc < 4 * (slot[(c, dbl, b)] + 1))):
            if nacc // 4 >= done_acc + 12:
                assert not (o.k == 'a' and nacc < 4 * (slot[(c, dbl, b)] + 1)), "out of temps"
                break
            t_, i = accq[nacc]; nacc += 1
            r.append(acc_read(TMP(slot[t_])[i], O(t_[2], 4 * t_[0] + t_[1])[i]))
        t4 = TMP(slot[(c, dbl, b)]) if o.k == 'a' else o
        rlp = V(RL(b).n & ~1, 2); sel = RL(b).n & 1
        if j >= HOIST[nb][1]:
            for h in range(2):
                r.append(valu("v_pk_mul_f32", t4.sub(2 * h, 2), t4.sub(2 * h, 2), rlp, mods=f"op_sel:[0,{sel}] op_sel_hi:[1,{sel}]"))
            r += [valu("v_cvt_pk_bf16_f32", t4[0], t4[0], t4[1]), valu("v_cvt_pk_bf16_f32", t4[1], t4[2], t4[3])]
        if b % 2 == 0 and b + 1 < nb:
            held = (t4, o.k == 'a')
        else:
            na = int(o.k == 'a')
            if held is not None:
                w = Ins(f"ds_write2st64_b64 {WA(dbl)}, {held[0].sub(0, 2)}, {t4.sub(0, 2)} offset0:{(b - 1) * 2} offset1:{b * 2}", "ds",
                        rd=[WA(dbl), held[0].sub(0, 2), t4.sub(0, 2)], tag=("w", j))
                na += held[1]; held = None
            else:
                w = ds_write("ds_write_b64", WA(dbl), t4.sub(0, 2), b * 1024, tag=("w", j))
            w.lds_pw = ("OS",); wq.append((w, na))
        if j == 4: r += flagl
        if dq and j >= d0 and (j - d0) % dstep == 0: r += cluster(dq.pop(0))
        last = (j + 1) % (4 * nb) == 0; pos = j // (4 * nb)
        for _ in range(opt.epi_rd):
            if rdq: r.append(rdq.pop(0))
        if not rdq or last:
            r += rdq; rdq = []
            k_ = 0
            while wq and (k_ < 1 or last):
                w, na = wq.pop(0); r.append(w); done_acc += na; k_ += 1
        if stq and j % 2 == 1 and stq[0][0] <= j: r += fin_only(stq.pop(0)[1])
        elif oth and j % 2 == 0 and not rdq:
            r += cluster(oth.pop(0))
        if last:
            for k in range(2 * nb):
                ra = VS1 if k & 1 else RA
                i = Ins(f"ds_read2st64_b64 {PK(c, k)}, {ra} offset0:{k} offset1:{8 + k}", "ds", rd=[ra], wr=[PK(c, k)], tag=("o", c, k))
                i.lds_rd = ("OS",); i.private = True
                rdq.append(i)
            if pos < 3:
                for k in range(2 * nb):
                    st = store(c, k, nb); st.need = [("o", c, k if k < 3 else 2 * nb - 1)]; stq.append((j + 3 + k // opt.epi_rd, st))
            def halves(l): return [l[:len(l) - 4], l[len(l) - 4:]]
            if opt.r3epi:
                if pos == 0: oth += [head_reads()]
                if pos == 1: oth += halves([vwait([("R2",)])] + q_reads(2, s_mR2, ("R2",), vt0))
                if pos == 2: oth += halves([vwait([("X",)])] + q_reads(3, s_mX, ("X",), vt1))
            else:
                if c == 0: oth += halves([vwait([("X",)])] + q_reads(3, s_mX, ("X",), vt0))
                if c == 1: oth += [head_reads()]
    assert not oth and not dq
    r += rdq
    for x in stq: r += fin_only(x[1])
    for k in range(2 * nb):
        st = store(QORD[3], k, nb); st.need = [("o", QORD[3], k)]; r += fin_only(st)
    return r

def head_reads():
    s = Seg(4, "hd"); s.qblock("h0", 1, 0, True, 0)
    return [i for p in s.pairs[:3] for i in p[2]]

def store(c, k, nb=None):
    data = PK(c, k)
    mod = {3: opt.omod3, 4: opt.omod4}.get(nb) or opt.omod
    vo = vsto
    i = Ins(f"buffer_store_dwordx4 {data}, {vo}, {sO}, {s_ok[k]} offen offset:{c * 128} {mod}".rstrip(), "vmem", rd=[data, vo, sO, s_ok[k]])
    i.wide_store = True; i.data = data.set(); i.vm = True; i.quarter = c; i.k = k
    return i

def lin(seq, pre=()):
    out = []; q = list(pre)
    for i in seq:
        if i.need:
            idx = -1
            for t in i.need:
                if t in q: idx = max(idx, len(q) - 1 - q[::-1].index(t))
            if idx >= 0:
                n = min(len(q) - 1 - idx, 15)
                out.append(waitcnt(None, n)); q = q[idx + 1:]
        if getattr(i, "lgw", None) is not None: q = q[len(q) - i.lgw:] if i.lgw else []
        if getattr(i, "is_marker", False): continue
        if i.kind == "ds" and not getattr(i, "optional", False): q.append(i.tag)
        out.append(i)
    return out, q

def flat(gaps, pre, nxt_need):
    out = []; q = list(pre)
    def wf(need):
        nonlocal q
        idx = -1
        for t in need:
            if t in q: idx = max(idx, len(q) - 1 - q[::-1].index(t))
        if idx < 0: return
        n = min(len(q) - 1 - idx, 15)
        out.append(waitcnt(None, n)); q = q[idx + 1:]
    for g, (m, sc, oth) in enumerate(gaps):
        wf(m.need)
        out.append(m)
        has_l0 = any(getattr(i, "lgw", None) == 0 for i in sc)
        if not has_l0:
            wf(gaps[g + 1][0].need if g + 1 < len(gaps) else nxt_need)
        for i in sc + oth:
            if i.need: wf(i.need)
            if getattr(i, "lgw", None) == 0: q = []
            if getattr(i, "is_marker", False): continue
            if i.kind == "ds": q.append(i.tag)
            out.append(i)
    return out, q

E32 = ("v_mul_f32", "v_add_f32", "v_exp_f32", "v_mov_b32", "v_max_f32", "v_xor_b32", "v_rcp_f32")
def isize(i):
    t = i.text
    if i.kind == "label": return 0
    op = t.split()[0]
    if op.startswith("s_"):
        import re
        m = re.findall(r"[ ,](0x[0-9a-f]+|-?\d+)\s*$", t)
        if op in ("s_waitcnt", "s_barrier", "s_nop") or op.startswith("s_cbranch") or op == "s_branch": return 4
        if m and not (-16 <= int(m[0], 0) <= 64): return 8
        return 4
    if op in E32 or op in ("v_add_u32", "v_lshlrev_b32", "v_permlane16_swap_b32", "v_permlane32_swap_b32"):
        return 8 if "-v" in t else 4
    return 8

def align8(seq, start=0):
    pos = start; cand = None
    for i in seq:
        if i.kind == "mfma":
            if pos % 8 and cand is not None:
                op = cand.text.split()[0]; cand.text = cand.text.replace(op, op + "_e64", 1); pos += 4
            cand = None
        sz = isize(i)
        if sz == 4 and i.text.split()[0] in E32 and cand is None: cand = i
        pos += sz
    return pos

def strip_clusters(seq, lab="L_sk"):
    out = []; skip = False
    for i in seq:
        if i.kind == "label" and i.text.startswith(lab): skip = False
        if not skip: out.append(i)
        if i.text.startswith("s_cbranch") and i.text.split()[1].startswith(lab): skip = True
    return out

def label(n): return Ins(n + ":", "label", states=0, cost=0)

def stamp(k):
    if not opt.diag: return []
    return [raw(f"s_memrealtime {s_ts}"), raw("s_memtime s[66:67]"), raw("s_waitcnt lgkmcnt(0)", "wait0"), raw(f"s_mov_b32 m0, {s_tsp}"), raw("s_nop 1"),
            raw(f"v_writelane_b32 v0, {s_ts.sub(0)}, m0"), raw(f"s_add_u32 m0, m0, 32"), raw("s_nop 1"), raw("v_writelane_b32 v0, s66, m0"),
            raw(f"s_add_u32 {s_tsp}, {s_tsp}, 1")]

def retag(q, old, new):
    return [tuple(new if x == old else x for x in t) if len(t) > 1 else t for t in q]

def variant(nb):
    P = {}
    hd, head = make_head(nb, "hd", "i1")
    i1 = make_mid(nb, 1, "i1", "i2")
    i2 = make_mid(nb, 2, "i2", "i1")
    i6 = make_mid(nb, 6, "i2", "i1", special=True)
    i7 = make_last(nb, "i1")
    SG = dict(hd=hd, i1=i1, i2=i2, i6=i6, i7=i7)
    G = {k: s.build() for k, s in SG.items()}
    print(f"nb={nb} overflow cycles:", {k: s.over for k, s in SG.items()}, file=sys.stderr)
    P["hd"], q0 = flat(G["hd"], [], G["i1"][0][0].need)
    P["i1"], q1 = flat(G["i1"], q0, G["i2"][0][0].need)
    P["i2"], q2 = flat(G["i2"], q1, G["i1"][0][0].need)
    assert q2 == q0, (q0, q2)
    for k in ("i1", "i2"):
        if opt.abl & 1024: P[k] = [i for i in P[k] if not i.text.startswith("v_add_f32")]
        if opt.abl & 2048: P[k] = [i for i in P[k] if not (i.kind == "ds" and "b128" in i.text)]
        if opt.abl & 4096: P[k] = [i for i in P[k] if not (i.kind == "ds" and "tr_b16" in i.text)]
        if opt.abl & 16: P[k] = [i for i in P[k] if not getattr(i, "bar", False)]
        if opt.abl & 32: P[k] = [i for i in P[k] if i.kind != "vmem"]
        if opt.abl & 64: P[k] = [i for i in P[k] if i.kind not in ("valu", "trans")]
        if opt.abl & 128: P[k] = [i for i in P[k] if i.kind != "ds"]
        if opt.abl & 256: P[k] = [i for i in P[k] if not (i.kind == "salu" and "m0" in i.text)]
    P["i6"], q = flat(G["i6"], q1, G["i7"][0][0].need)
    P["i7"], q = flat(G["i7"], q, [])
    P["epf"], _ = lin(make_epi(nb, True), q)
    ep = make_epi(nb, False)
    if opt.abl & 8192: ep = [i for i in ep if not getattr(i, "dma_wr", None)]
    if opt.abl & 16384: ep = [i for i in ep if getattr(i, "vmneed", None) is None]
    if opt.abl & 1: ep = [i for i in ep if not i.text.startswith("buffer_store")]
    if opt.abl & 2: ep = [i for i in ep if getattr(i, "lds_rd", None) != ("OS",)]
    if opt.abl & 4: ep = [i for i in ep if not i.text.startswith("ds_write")]
    if opt.abl & 8: ep = [i for i in ep if i.kind != "acc"]
    P["epi"], q = lin(ep, q)
    return P

def resolve_vm(traces):
    ws = set()
    for tr in traces:
        n = 0; last = {}
        for i in tr:
            if getattr(i, "vmneed", None) is not None:
                idx = max([last.get(u, -1) for u in i.vmneed])
                if idx >= 0: i.vmauto = min(i.vmauto, n - 1 - idx)
                ws.add(i)
            if getattr(i, "vm", False):
                u = getattr(i, "dma_wr", None)
                if u: last[u] = n
                n += 1
    for i in ws:
        i.vmw = i.vmauto
        i.text = f"s_waitcnt vmcnt({i.vmw})" + (f" lgkmcnt({i.lgw})" if i.lgw is not None else "")

def check_trace(trace):
    vm = []
    lg = []
    state = {}
    epoch = 0
    ALIAS = {("R2",): [("V", 0, 1), ("V", 0, 2), ("V", 0, 3), ("K", 7)], ("OS",): [("V", 1, c) for c in range(4)],
             ("R3",): [("K", 4), ("K", 5), ("K", 6), ("V", 0, 0)]}
    def phys(u): return ALIAS.get(u, [u])
    wr_land = {}; wr_pend = {}; rd_done = {}; rd_pend = {}; owner = {}
    errs = []
    for k, i in enumerate(trace):
        if getattr(i, "vmw", None) is not None:
            while len(vm) > i.vmw:
                o = vm.pop(0)
                u = getattr(o, "dma_wr", None)
                if u: wr_pend[u] -= 1; wr_land[u] = epoch
        if getattr(i, "lgw", None) is not None or i.kind == "wait0":
            n = 0 if i.kind == "wait0" else i.lgw
            while len(lg) > n:
                o = lg.pop(0)
                u = getattr(o, "lds_rd", None) or getattr(o, "lds_pw", None)
                if u: rd_pend[u] -= 1; rd_done[u] = epoch
        if getattr(i, "bar", False): epoch += 1
        u = getattr(i, "lds_rd", None)
        if u:
            if True:
                if wr_pend.get(u, 0) > 0: errs.append((k, "read of unit with pending DMA", u, i.text))
                elif not getattr(i, "private", False) and wr_land.get(u, 10**9) >= epoch: errs.append((k, "read without barrier after landing", u, i.text))
            for p in phys(u):
                if owner.get(p) != u: errs.append((k, "read of unit owned by", owner.get(p), u, i.text))
        w = getattr(i, "dma_wr", None) or getattr(i, "lds_pw", None)
        if w:
            for p in phys(w):
                o = owner.get(p)
                if o is not None:
                    priv = (o == w and w in (("X",), ("R2",), ("R3",), ("OS",)))
                    if rd_pend.get(o, 0) > 0 and not (getattr(i, "lds_pw", None) and o == w):
                        errs.append((k, "write over unit with reads in flight", o, w, i.text))
                    if not priv and rd_done.get(o, -1) >= epoch: errs.append((k, "write without barrier after reads", o, w, i.text))
                    if o != w and wr_pend.get(o, 0) > 0: errs.append((k, "write over pending dma", o, w))
                    if o != w and wr_land.get(o, -1) >= epoch: errs.append((k, "write over unit landed w/o barrier", o, w))
                owner[p] = w
        if i.kind == "ds":
            lg.append(i)
            u = getattr(i, "lds_rd", None) or getattr(i, "lds_pw", None)
            if u: rd_pend[u] = rd_pend.get(u, 0) + 1
        if getattr(i, "vm", False):
            vm.append(i)
            u = getattr(i, "dma_wr", None)
            if u: wr_pend[u] = wr_pend.get(u, 0) + 1
            assert len(vm) <= 63, "vmcnt overflow"
    return errs

def cross_check(traces):
    ALIAS = {("R2",): [("V", 0, 1), ("V", 0, 2), ("V", 0, 3), ("K", 7)], ("OS",): [("V", 1, c) for c in range(4)],
             ("R3",): [("K", 4), ("K", 5), ("K", 6), ("V", 0, 0)]}
    allg = []
    for tr in traces:
        gens = {}; epoch = 0; vm = []; lg = []
        for i in tr:
            if getattr(i, "vmw", None) is not None:
                while len(vm) > i.vmw:
                    for g in vm.pop(0): g["land"] = epoch
            if getattr(i, "lgw", None) is not None or i.kind == "wait0":
                n = 0 if i.kind == "wait0" else i.lgw
                while len(lg) > n:
                    for g in lg.pop(0): g["done"] = epoch
            if getattr(i, "bar", False): epoch += 1
            w = getattr(i, "dma_wr", None) or getattr(i, "lds_pw", None); r = getattr(i, "lds_rd", None)
            touched = []
            u = w or r
            if u and u != ("X",):
                for p in ALIAS.get(u, [u]):
                    l = gens.setdefault(p, [])
                    if w and (not l or l[-1]["own"] != u or (l[-1]["rd0"] is not None and u not in ALIAS)):
                        l.append(dict(own=u, wr0=epoch, land=10**9, rd0=None, done=-1))
                    g = l[-1]
                    if r and g["rd0"] is None: g["rd0"] = epoch
                    if r or getattr(i, "lds_pw", None): g["done"] = 10**9
                    if getattr(i, "dma_wr", None): g["land"] = 10**9
                    touched.append(g)
            if i.kind == "ds": lg.append(touched)
            if getattr(i, "vm", False): vm.append(touched)
        allg.append((gens, epoch))
    assert len(set(e for _, e in allg)) == 1, "barrier counts differ"
    for p in allg[0][0]:
        n = len(allg[0][0][p])
        assert all(len(g[p]) == n and [x["own"] for x in g[p]] == [x["own"] for x in allg[0][0][p]] for g, _ in allg), ("generations differ", p)
        for k in range(n):
            G = [g[p][k] for g, _ in allg]
            if G[0]["own"] not in ALIAS and G[0]["rd0"] is not None:
                assert max(x["land"] for x in G) < min(x["rd0"] for x in G), ("cross RAW", p, k, G)
            if k + 1 < n:
                N = [g[p][k + 1] for g, _ in allg]
                assert max(x["done"] for x in G) < min(x["wr0"] for x in N), ("cross WAR", p, k, G, N)
                if G[0]["own"] != N[0]["own"] and any(x["land"] != 10**9 or x["rd0"] is not None for x in G) and G[0]["own"] != ("OS",):
                    assert max(x["land"] for x in G) < min(x["wr0"] for x in N), ("cross WAW", p, k, G, N)

THR = {}
HELP = {}
RANK = {}
HELPN = {}
def schedule_table(mode):
    tab = {}
    if mode == "simple":
        for wg in range(256):
            x = wg & 7; idx = wg >> 3
            head = x * 16 + (idx >> 1); base = 41 * (idx & 1)
            tab[wg] = [(head, base, 12), (head, base + 12, 16), (head, base + 28, 13)]
    elif mode == "share":
        for x in range(8):
            rounds = [[], [], []]
            def add(r, h, start, sizes):
                for sz in sizes:
                    rounds[r].append((x * 16 + h, start, sz)); start += sz
                return start
            for h in range(10):
                st = add(0, h, 0, [12, 12, 12]); add(1 if h < 6 else 2, h, st, [15, 15, 16])
            st = add(0, 10, 0, [12, 12]); st = add(1, 10, st, [15, 14]); add(2, 10, st, [15, 14])
            for h in range(11, 16):
                add(1 if h < 13 else 2, h, 0, [14, 14, 14, 14, 13, 13])
            assert all(len(r) == 32 for r in rounds), [len(r) for r in rounds]
            for idx in range(32):
                tab[idx * 8 + x] = [rounds[0][idx], rounds[1][idx], rounds[2][idx]]
    elif mode.startswith("g6"):
        orders = {"A": (0, 1, 2), "B": (1, 0, 2), "C": (2, 1, 0), "D": (2, 0, 1)}
        pat = mode.split("_")[1]
        rot = pat.startswith("x"); pat = pat.lstrip("x")
        for x in range(8):
            for g in range(6):
                o = orders[pat[(g + (x if rot else 0)) % len(pat)]] if not pat.startswith("X") else orders["ABC"[x % 3]]
                if g < 5:
                    ha, hb, hc = [x * 16 + 3 * g + i for i in range(3)]
                    r0 = [(ha, 0, 12), (ha, 12, 12), (ha, 24, 12), (hb, 0, 12), (hb, 12, 12), (hb, 24, 12)]
                    r1 = [(ha, 36, 15), (ha, 51, 15), (ha, 66, 16), (hb, 36, 15), (hb, 51, 15), (hb, 66, 16)]
                    r2 = [(hc, 0, 14), (hc, 14, 14), (hc, 28, 13), (hc, 41, 14), (hc, 55, 14), (hc, 69, 13)]
                    n = 6
                else:
                    h = x * 16 + 15
                    r0 = [(h, 0, 12), (h, 12, 12)]; r1 = [(h, 24, 15), (h, 39, 15)]; r2 = [(h, 54, 14), (h, 68, 14)]
                    n = 2
                R = [r0, r1, r2]
                for i in range(n):
                    tab[(6 * g + i) * 8 + x] = [R[o[0]][i], R[o[1]][i], R[o[2]][i]]
    elif mode.startswith("t3"):
        _, lo, so, th = mode.split("_")
        th = [int(x, 16) for x in th.split(".")]
        alt = mode.startswith("t3a")
        if alt:
            LS = [i for i in range(32) if not i & 4]; SS = [i for i in range(32) if i & 4]
        else:
            LS = [6 * g + i for g in range(5) for i in range(3)] + [30]; SS = [6 * g + 3 + i for g in range(5) for i in range(3)] + [31]
        for x in range(8):
            H = [x * 16 + i for i in range(16)]
            T3 = lambda h: [(h, 0, 12), (h, 12, 12), (h, 24, 12)]
            T4 = lambda h: [(h, 36, 16), (h, 52, 16), (h, 68, 14)]
            for g in range(5):
                a, b, c = H[3 * g], H[3 * g + 1], H[3 * g + 2]
                Lt = {"3": T3(a), "4": T4(a), "5": T4(b)[::-1]}
                St = {"3": T3(c), "2": T3(b), "4": T4(c)}
                lord = lo.split(".")[(g + x) % len(lo.split("."))]; sord = so.split(".")[(g + x) % len(so.split("."))]
                for i in range(3):
                    wl = LS[3 * g + i] * 8 + x; wsn = SS[3 * g + i] * 8 + x
                    tab[wl] = [Lt[k][i] for k in lord]
                    tab[wsn] = [St[k][i] for k in sord]
                    THR[wsn] = th[(g + x) % len(th)]
                    RANK[wl] = i; RANK[wsn] = i
                    h0, st0, _n = Lt[lord[0]][i]
                    HELP[wsn] = (h0 * SQ + st0 * 16) * 512
            h = H[15]
            tab[LS[15] * 8 + x] = [(h, 0, 12), (h, 36, 16), (h, 68, 14)]
            if alt:
                tab[SS[15] * 8 + x] = [(h, 52, 16), (h, 12, 12), (h, 24, 12)]
                THR[SS[15] * 8 + x] = th[0]; HELP[SS[15] * 8 + x] = h * SQ * 512
            else:
                tab[SS[15] * 8 + x] = [(h, 12, 12), (h, 52, 16), (h, 24, 12)]
    elif mode.startswith("t6"):
        _, lo, th = mode.split("_")
        th = [int(x, 16) for x in th.split(".")]
        LS = [i for i in range(32) if not i & 4]; SS = [i for i in range(32) if i & 4]
        for x in range(8):
            T3 = lambda h: [(h, 0, 12), (h, 12, 12), (h, 24, 12)]
            T4 = lambda h, r: [[(h, 36, 16), (h, 52, 16), (h, 68, 14)][(i + r) % 3] for i in range(3)]
            for g in range(5):
                pat = lo.split(".")[(g + x) % len(lo.split("."))]
                for i in range(3):
                    wl = LS[3 * g + i] * 8 + x; wsn = SS[3 * g + i] * 8 + x
                    tab[wl] = []; tab[wsn] = []
                    for r in range(3):
                        h = x * 16 + 3 * g + r
                        a, b = T3(h)[i], T4(h, r)[i]
                        tab[wl].append(a if pat[r] == "3" else b); tab[wsn].append(b if pat[r] == "3" else a)
                    THR[wsn] = th[(g + x) % len(th)]; RANK[wl] = i; RANK[wsn] = i
                    HELP[wsn] = (tab[wl][0][0] * SQ + tab[wl][0][1] * 16) * 512; HELPN[wsn] = tab[wl][0][2]
            h = x * 16 + 15; pat = lo.split(".")[0]
            i3 = [(h, 0, 12), (h, 12, 12), (h, 24, 12)]; i4 = [(h, 36, 16), (h, 52, 16), (h, 68, 14)]
            wl = LS[15] * 8 + x; wsn = SS[15] * 8 + x
            tab[wl] = [(i3 if pat[r] == "3" else i4)[r] for r in range(3)]
            tab[wsn] = [(i4 if pat[r] == "3" else i3)[r] for r in range(3)]
            THR[wsn] = th[0]; HELP[wsn] = (h * SQ + tab[wl][0][1] * 16) * 512; HELPN[wsn] = tab[wl][0][2]
    cov = {}
    for wg, l in tab.items():
        for h, st, n in l:
            assert 12 <= n <= 16
            for b in range(st, st + n):
                assert (h, b) not in cov; cov[(h, b)] = wg
    assert len(cov) == 128 * 82
    return tab

def setup_code():
    L = []; A = L.append
    if opt.diag or opt.padto: A("s_memrealtime s[100:101]")
    A("s_cmp_ge_u32 s2, 256")
    A("s_cbranch_scc1 L_exit")
    A("s_load_dwordx4 s[72:75], s[0:1], 0")
    A("s_load_dwordx4 s[76:79], s[0:1], 16")
    if opt.diag: A("s_load_dwordx2 s[64:65], s[0:1], 40")
    A("s_getpc_b64 s[4:5]")
    A("L_pc:")
    if opt.warm:
        A(f"s_mov_b32 {sC[0]}, s4\ns_mov_b32 {sC[1]}, s5\ns_mov_b32 {sC[2]}, L_warm_end-L_pc\ns_mov_b32 {sC[3]}, 0x20000\nv_lshlrev_b32 v16, 7, v0")
        for k in range(opt.warm): A(f"s_mov_b32 s3, {k * 32768}\nbuffer_load_dword v{17 + k}, v16, {sC}, s3 offen")
    A("s_lshl_b32 s3, s2, 6")
    A("s_add_u32 s3, s3, L_table-L_pc")
    A("s_add_u32 s46, s4, s3")
    A("s_addc_u32 s47, s5, 0")
    A("s_load_dwordx16 s[80:95], s[46:47], 0")
    A(f"v_readfirstlane_b32 {s_wave}, v0")
    A("v_and_b32 v10, 63, v0")
    A(f"s_lshr_b32 {s_wave}, {s_wave}, 6")
    A("v_and_b32 v11, 15, v10")
    A("v_lshrrev_b32 v14, 4, v10")
    A("v_lshrrev_b32 v15, 2, v11\nv_lshlrev_b32 v1, 11, v15\nv_and_b32 v6, 3, v11\nv_lshl_add_u32 v1, v6, 6, v1")
    A("v_lshrrev_b32 v6, 3, v11\nv_lshlrev_b32 v6, 1, v6\nv_xor_b32 v6, v6, v14\nv_lshl_add_u32 v1, v6, 4, v1")
    A("v_lshrrev_b32 v6, 1, v14\nv_lshlrev_b32 v2, 10, v6\nv_and_b32 v7, 1, v14\nv_lshl_add_u32 v6, v7, 2, v15\nv_lshl_add_u32 v2, v6, 6, v2")
    A(f"v_and_b32 v8, 3, v10\nv_lshl_add_u32 v2, v8, 3, v2\nv_lshl_add_u32 v2, v7, 5, v2\nv_add_u32 v2, {VB}, v2\nv_xor_b32 v3, 32, v2")
    A("v_lshlrev_b32 v12, 9, v15\nv_lshl_add_u32 v12, v14, 6, v12\nv_lshl_add_u32 v12, v8, 4, v12\nv_xor_b32 v13, 32, v12\nv_add_u32 v13, 4096, v13")
    A(f"s_lshl_b32 {s_mK}, {s_wave}, 11\ns_lshr_b32 s3, {s_wave}, 1\ns_lshl_b32 s3, s3, 5")
    A(f"v_xor_b32 v4, s3, v12\nv_add_u32 v4, {s_mK}, v4")
    A("v_lshrrev_b32 v6, 2, v10\nv_and_b32 v6, 7, v6\nv_lshlrev_b32 v5, 9, v6\nv_lshrrev_b32 v6, 2, v6\nv_lshlrev_b32 v6, 1, v6\nv_xor_b32 v6, v6, v8")
    A(f"v_lshl_add_u32 v5, v6, 4, v5\nv_lshrrev_b32 v6, 5, v10\nv_lshl_add_u32 v5, v6, 6, v5\ns_lshl_b32 s3, {s_wave}, 13\nv_add_u32 v5, s3, v5")
    A(f"s_add_u32 {s_mX}, s3, {XB}")
    A(f"s_add_u32 {s_mOS}, s3, {vslot_addr(1, 0)}")
    A(f"s_add_u32 {s_mR2}, s3, {vslot_addr(0, 0)}")
    A(f"s_cmp_eq_u32 {s_wave}, 0\ns_cselect_b32 {s_mR2}, {kslot_addr(7)}, {s_mR2}")
    A(f"s_add_u32 {s_mR3}, s3, {kslot_addr(4)}")
    A(f"s_cmp_eq_u32 {s_wave}, 3\ns_cselect_b32 {s_mR3}, {vslot_addr(0, 0)}, {s_mR3}")
    A("v_lshrrev_b32 v6, 1, v14\nv_lshrrev_b32 v9, 1, v11\nv_xor_b32 v6, v6, v9\nv_lshlrev_b32 v6, 3, v6\nv_lshl_add_u32 v6, v7, 12, v6")
    A(f"v_lshl_add_u32 v6, v11, 6, v6\nv_add_u32 v15, {s_mOS}, v6")
    A("v_lshrrev_b32 v6, 3, v10\nv_and_b32 v9, 7, v10\nv_xor_b32 v9, v9, v14\nv_lshlrev_b32 v9, 4, v9\nv_lshl_add_u32 v14, v6, 9, v9")
    A(f"s_mov_b32 {s_c}, {C_SCALE:#x}\ns_mov_b32 {s_pass}, 0\ns_mov_b32 {s_flags}, 0")
    if opt.diag: A(f"s_mov_b32 {s_tsp}, 1\nv_mov_b32 v0, 0")
    A("s_waitcnt lgkmcnt(0)")
    if opt.diag:
        A("v_writelane_b32 v0, s100, 0")
        A("s_getreg_b32 s100, hwreg(HW_REG_HW_ID)\ns_getreg_b32 s101, hwreg(HW_REG_XCC_ID)\ns_nop 1\nv_writelane_b32 v0, s100, 30\nv_writelane_b32 v0, s101, 31")
    for srd, p, n in ((sQ, 72, QBYTES), (sK, 74, KBYTES), (sV, 76, KBYTES), (sO, 78, QBYTES)):
        A(f"s_mov_b32 {srd[0]}, s{p}\ns_mov_b32 {srd[1]}, s{p+1}\ns_mov_b32 {srd[2]}, {n}\ns_mov_b32 {srd[3]}, 0x20000")
    for k in range(8): A(f"s_mov_b32 {s_ok[k]}, {OOB:#x}")
    for p in range(3):
        A(f"s_sub_u32 s3, s{80+3*p+2}, 12")
        A(f"s_min_u32 s4, s3, {s_wave}")
        A(f"s_mul_i32 s5, {s_wave}, 3\ns_add_u32 s4, s4, s5\ns_lshl_b32 s4, s4, 13")
        A(f"s_add_u32 {s_tab[4*p]}, s{80+3*p}, s4")
        A(f"s_mov_b32 {s_tab[4*p+1]}, s{80+3*p+1}")
        A(f"s_add_u32 {s_tab[4*p+3]}, {s_tab[4*p]}, 24576")
        A(f"s_cmp_lt_u32 {s_wave}, s3\ns_cselect_b32 {s_tab[4*p+2]}, 4, 3\ns_cselect_b32 {s_tab[4*p+3]}, {s_tab[4*p+3]}, {OOB:#x}")
    A(f"s_mov_b32 {s_tab[12]}, {OOB:#x}\ns_mov_b32 {s_tab[13]}, {OOB:#x}\ns_mov_b32 {s_tab[14]}, 0\ns_mov_b32 {s_tab[15]}, {OOB:#x}")
    A(f"s_lshl_b32 s3, s91, 2\ns_add_u32 s3, s3, {s_wave}\ns_lshl_b32 {s_str}, s3, {opt.tsh + 6}")
    A(f"s_cmp_eq_u32 s90, {OOB:#x}\ns_cselect_b32 {s_str}, 0x40000000, {s_str}")
    A(f"s_lshr_b32 s3, s2, 1\ns_and_b32 s3, s3, 28\ns_add_u32 s3, s3, {s_wave}\ns_lshl_b32 {s_cs}, s3, {opt.tsh + 6}\ns_and_b32 {s_cs}, {s_cs}, 0xffff")
    for p in range(3):
        for k in range(3): A(f"s_mov_b32 s{80+3*p+k}, {s_tab[4*p+k]}")
    return L

def startup():
    P = {}
    r = [sop(f"s_mov_b32 {s_kptr}, {s_tab[1]}", wr=[s_kptr]), sop(f"s_sub_u32 {s_vptr}, {s_tab[1]}, 32768", wr=[s_vptr])]
    r += dma_K(1) + dma_K(2) + dma_K(3)
    r += [sop(f"s_add_u32 {s_t0}, {s_tab[0]}, 8192", wr=[s_t0]), sop(f"s_add_u32 {s_t1}, {s_tab[0]}, 16384", wr=[s_t1]),
          sop(f"s_add_u32 {s_t2}, {s_tab[0]}, 24576", wr=[s_t2])]
    r += [sop(f"s_cmp_eq_u32 s90, {OOB:#x}"), raw("s_cbranch_scc1 L_nohelp")]
    P["a"] = r
    late = lambda: dma_K(4) + dma_K(5) + dma_K(6) + dma_V(0, 0)
    r = late() if opt.late else []
    r += [sop("s_sub_u32 s4, s92, 12"), sop(f"s_add_u32 s5, {s_wave}, 1"), sop("s_min_u32 s4, s4, s5"), sop("s_mul_i32 s5, s5, 3"),
          sop("s_add_u32 s4, s4, s5"), sop("s_lshl_b32 s3, s4, 13"), sop(f"s_add_u32 s3, s3, s90"), sop(f"s_sub_u32 s3, s3, {1024 * opt.help_n}"),
          valu("v_lshlrev_b32", vt1, 4, vt0)]
    hl = []
    for k in range(opt.help_n):
        if k and k % 4 == 0: hl.append(sop("s_add_u32 s3, s3, 4096"))
        i = Ins(f"buffer_load_dwordx4 {V(96 + 4 * k, 4)}, {vt1}, {sQ}, s3 offen offset:{(k % 4) * 1024} {opt.hmod}", "vmem", rd=[vt1]); i.vm = True
        hl.append(i)
    if opt.late == 2: r = r[-9:] + hl + r[:-9]
    else: r += hl
    P["h"] = r
    r = []; k = 0
    for grp in (dma_Q(s_mX, s_tab[0], ("X",)), dma_Q(s_mR2, s_t0, ("R2",)), dma_Q(s_mOS, s_t1, ("OS",))):
        for hf in (grp[:6], grp[6:]):
            r += hf
            if not opt.sched.endswith("_0"):
                r += [sop(f"s_bitcmp1_b32 s89, {k}"), raw(f"s_cbranch_scc0 L_th{k}"), raw("s_waitcnt vmcnt(0)"), label(f"L_th{k}")]
            k += 1
    if not opt.late: r += late()
    st5 = (lambda: stamp(9)) if opt.diag == 5 else (lambda: [])
    r += st5() + [vwait([("X",)])] + st5() + q_reads(0, s_mX, ("X",), vt0)
    r += [sop(f"s_cmp_lt_u32 {s_tab[2]}, 4"), raw("s_cbranch_scc1 L_noq3")]
    P["q"] = r
    P["r2"] = [waitcnt(None, 0)] + dma_Q(s_mX, s_t2, ("X",))
    P["r3"] = [vwait([("R2",)])] + st5() + q_reads(1, s_mR2, ("R2",), vt1) + [barrier()] + head_reads()
    P["lc"] = [sop(f"s_cmp_lg_u32 s90, {OOB:#x}"), raw("s_cbranch_scc1 L_nolate")] if opt.late else []
    P["l"] = (late() + [vwait([("OS",)]), raw("s_branch L_osok")]) if opt.late else []
    P["w"] = [vwait([("OS",)])]
    P["r4"] = st5() + q_reads(2, s_mOS, ("OS",), vt0) + pass_begin()
    P["r4"] += [sop(f"s_cmp_lt_u32 {s_nbn}, 4"), raw("s_cbranch_scc1 L_first")]
    P["r5"] = [vwait([("X",)])] + q_reads(3, s_mX, ("X",), vt1)
    return {k: fix_hazards(lin(v)[0]) for k, v in P.items()}

def pass_begin():
    T2 = lambda k: S(s_tab.n + k, 2)
    r = [sop(f"s_mov_b32 {s_ocur}, {s_tab[0]}"),
         sop(f"s_add_u32 {s_kend}, {s_tab[1]}, 262144"),
         sop(f"s_mov_b32 {s_nbn}, {s_tab[2]}"),
         sop(f"s_mov_b32 {s_knext}, {s_tab[5]}"),
         sop(f"s_mov_b32 {s_xq}, {s_tab[4]}"),
         sop(f"s_add_u32 {s_qn[1]}, {s_tab[4]}, 8192"), sop(f"s_add_u32 {s_qn[2]}, {s_tab[4]}, 16384"),
         sop(f"s_mov_b32 {s_qn[3]}, {s_tab[7]}")]
    for k in range(0, 12, 2): r.append(sop(f"s_mov_b64 {T2(k)}, {T2(k + 4)}"))
    r += [sop(f"s_mov_b32 {s_cnt}, 3"), sop(f"s_mov_b32 {s_tq}, {s_qn[2]}"),
          sop(f"s_add_u32 {s_tv}, {s_str}, {s_knext}"), sop(f"s_add_u32 {s_tk}, {s_tv}, {opt.tkoff}"),
          sop(f"s_mov_b32 {s_xm}, {OOB:#x}") if opt.xlate else sop(f"s_mov_b32 {s_xm}, {s_mX}")]
    return r

def repair_code():
    rQ = lambda k: V(96 + 4 * k, 4); rK = lambda k: V(128 + 4 * k, 4); rS = lambda k: V(32 + 4 * k, 4)
    rO = lambda k: V(160 + 4 * k, 4); rV = lambda k: V(224 + 4 * k, 4)
    m, l, ta, tb, al, nm = V(6), V(7), V(8), V(9), V(10), V(11)
    fa, va0, va1, vop, so = V(48), V(49), V(50), V(51), V(52)
    sp, sb, sj, sq, sk, sv = S(90), S(91), S(92), S(93), S(94), S(95)
    def gload(d, srd, soff, imm):
        return Ins(f"buffer_load_dwordx4 {d}, {fa}, {srd}, {soff} offen offset:{imm}", "vmem", rd=[fa, srd, soff], wr=[d])
    W = lambda t: raw(t, "wait")
    out = []
    pre = [W("s_waitcnt vmcnt(0) lgkmcnt(0)"),
           valu("v_mbcnt_lo_u32_b32", ta, -1, 0), valu("v_mbcnt_hi_u32_b32", ta, -1, ta),
           valu("v_and_b32", tb, 15, ta), valu("v_lshrrev_b32", ta, 4, ta),
           valu("v_lshlrev_b32", fa, 9, tb), valu("v_lshl_add_u32", so, ta, 3, fa), valu("v_lshl_add_u32", fa, ta, 4, fa),
           sop(f"s_sub_u32 {s_t0}, {s_mX}, {VB}"), valu("v_add_u32", va0, s_t0, vaddr0), valu("v_add_u32", va1, s_t0, vaddr1),
           sop(f"s_lshl_b32 {s_t0}, {s_wave}, 13"), valu("v_subrev_u32", vop, s_t0, voV),
           sop(f"s_mov_b32 {sp}, 0")]
    out += fix_hazards(pre)
    out += [label("L_rp"), sop(f"s_bitcmp1_b32 {s_flags}, {sp}"), raw("s_cbranch_scc0 L_rp_next"), sop(f"s_mov_b32 {sb}, 0"), label("L_rb")]
    blk = [sop(f"s_lshl_b32 {sq}, {sb}, 13"), sop(f"s_add_u32 {sq}, {sq}, s80")]
    blk += [gload(rQ(k), sQ, sq, k * 64) for k in range(8)]
    blk += [valu("v_mov_b32", m, "0xff800000"), valu("v_mov_b32", l, 0)]
    blk += [valu("v_mov_b32", V(160 + k), 0) for k in range(64)]
    blk += [sop(f"s_mov_b32 {sk}, s81"), sop(f"s_mov_b32 {sv}, s81"), sop(f"s_mov_b32 {sj}, 0")]
    out += fix_hazards(blk) + [label("L_rj")]
    it = []
    for kvb in range(4):
        it += [gload(rK(k), sK, sk, k * 64) for k in range(8)] + [sop(f"s_add_u32 {sk}, {sk}, 8192"), W("s_waitcnt vmcnt(0)")]
        it += [mfma(rS(kvb), rK(k), rQ(k), rS(kvb) if k else 0) for k in range(8)]
    xs = [V(32 + k) for k in range(16)]
    it += [valu("v_max3_f32", ta, m, xs[0], xs[1])]
    it += [valu("v_max3_f32", ta, ta, xs[k], xs[k + 1]) for k in range(2, 16, 2)]
    it += [valu("v_mov_b32", tb, ta), perm("v_permlane16_swap_b32", ta, tb), valu("v_max_f32", ta, ta, tb),
           valu("v_mov_b32", tb, ta), perm("v_permlane32_swap_b32", ta, tb), valu("v_max_f32", ta, ta, tb),
           valu("v_sub_f32", al, m, ta), valu("v_mul_f32", al, s_c, al), valu("v_exp_f32", al, al), valu("v_mov_b32", m, ta)]
    it += [valu("v_sub_f32", x, x, m) for x in xs] + [valu("v_mul_f32", x, s_c, x) for x in xs] + [valu("v_exp_f32", x, x) for x in xs]
    it += [valu("v_mul_f32", l, l, al)] + [valu("v_add_f32", l, l, x) for x in xs]
    it += [valu("v_mul_f32", V(160 + k), V(160 + k), al) for k in range(64)]
    Pf = lambda ks: V(16 + 4 * ks, 4)
    for ks in range(2):
        for j in range(4): it.append(valu("v_cvt_pk_bf16_f32", Pf(ks)[j], xs[8 * ks + 2 * j], xs[8 * ks + 2 * j + 1]))
    for c in range(4):
        for j in range(8):
            it += [sop(f"s_add_u32 {s_t0}, {sv}, {j * 4096 + c * 128}", wr=[s_t0]), set_m0(s_mX, j * 1024), dma(vop, sV, s_t0, 0, None, "")]
        it += [W("s_waitcnt vmcnt(0)")]
        for dbl in range(4):
            for ks in range(2):
                for j4 in range(2):
                    it.append(ds_read("ds_read_b64_tr_b16", rV(2 * dbl + ks).sub(2 * j4, 2), va1 if dbl & 1 else va0, ks * 4096 + (dbl >> 1) * 512 + j4 * 2048))
        it += [W("s_waitcnt lgkmcnt(0)")]
        for dbl in range(4):
            for ks in range(2): it.append(mfma(rO(4 * c + dbl), rV(2 * dbl + ks), Pf(ks), rO(4 * c + dbl)))
    it += [nop(9), sop(f"s_add_u32 {sv}, {sv}, 32768"), sop(f"s_add_u32 {sj}, {sj}, 1"), sop(f"s_cmp_lt_u32 {sj}, 8"), raw("s_cbranch_scc1 L_rj")]
    out += fix_hazards(it)
    fin = [valu("v_mov_b32", tb, l), perm("v_permlane16_swap_b32", l, tb), valu("v_add_f32", l, l, tb),
           valu("v_mov_b32", tb, l), perm("v_permlane32_swap_b32", l, tb), valu("v_add_f32", l, l, tb), valu("v_rcp_f32", al, l)]
    for db in range(16):
        o = rO(db)
        fin += [valu("v_mul_f32", o[i], o[i], al) for i in range(4)]
        fin += [valu("v_cvt_pk_bf16_f32", o[0], o[0], o[1]), valu("v_cvt_pk_bf16_f32", o[1], o[2], o[3])]
        fin.append(Ins(f"buffer_store_dwordx2 {o.sub(0, 2)}, {so}, {sO}, {sq} offen offset:{db * 32}", "vmem", rd=[o.sub(0, 2), so, sO, sq]))
    fin += [W("s_waitcnt vmcnt(0)"), sop(f"s_add_u32 {sb}, {sb}, 1"), sop(f"s_cmp_lt_u32 {sb}, s82"), raw("s_cbranch_scc1 L_rb")]
    out += fix_hazards(fin)
    out += [label("L_rp_next")]
    out += [sop(f"s_mov_b32 s{80 + k}, s{83 + k}") for k in range(6)]
    out += [sop(f"s_add_u32 {sp}, {sp}, 1"), sop(f"s_cmp_lt_u32 {sp}, 3"), raw("s_cbranch_scc1 L_rp")]
    return out

def main():
    ap = argparse.ArgumentParser()
    ap.add_argument("-o", default="standalone__mha_softmax__near_ridge.s")
    ap.add_argument("--diag", type=int, default=0)
    ap.add_argument("--kvmod", default="")
    ap.add_argument("--qmod", default="nt")
    ap.add_argument("--omod", default="")
    ap.add_argument("--sched", default="t6_344_0")
    ap.add_argument("--pkmul", type=int, default=1)
    ap.add_argument("--rep", type=int, default=1)
    ap.add_argument("--hca", type=int, default=6)
    ap.add_argument("--hext", type=int, default=3)
    ap.add_argument("--hw", default="10,6,4")
    ap.add_argument("--dq0", type=int, default=0)
    ap.add_argument("--q3early", type=int, default=0)
    ap.add_argument("--fmod", default="nt")
    ap.add_argument("--xlate", type=int, default=0)
    ap.add_argument("--hmod", default="")
    ap.add_argument("--tsh", type=int, default=5)
    ap.add_argument("--barsplit", type=int, default=1)
    ap.add_argument("--barblk", type=int, default=8)
    ap.add_argument("--barlag4", type=int, default=2)
    ap.add_argument("--r3epi", type=int, default=1)
    ap.add_argument("--hback", type=int, default=24)
    ap.add_argument("--hoist", default="")
    ap.add_argument("--twhen", type=int, default=2)
    ap.add_argument("--tkoff", type=int, default=24576)
    ap.add_argument("--cwarm", type=int, default=1)
    ap.add_argument("--late", type=int, default=1)
    ap.add_argument("--al8", type=int, default=0)
    ap.add_argument("--tstride", type=int, default=2048)
    ap.add_argument("--tstep", type=int, default=24576)
    ap.add_argument("--barlag", type=int, default=4)
    ap.add_argument("--epi_rd", type=int, default=1)
    ap.add_argument("--abl", type=int, default=0)
    ap.add_argument("--help_n", type=int, default=12)
    ap.add_argument("--omod3", default="")
    ap.add_argument("--omod4", default="")
    ap.add_argument("--wb", type=int, default=0)
    ap.add_argument("--nostore", type=int, default=0)
    ap.add_argument("--ca7", type=int, default=0)
    ap.add_argument("--show", type=int, default=0)
    ap.add_argument("--spread", type=int, default=1)
    ap.add_argument("--touch", type=int, default=2)
    ap.add_argument("--force", type=int, default=0)
    ap.add_argument("--padto", type=int, default=0)
    ap.add_argument("--defer", type=int, default=0)
    ap.add_argument("--warm", type=int, default=2)
    a = ap.parse_args()
    opt.__dict__.update(vars(a)); opt.nextq = 1
    opt.hwin = [int(x) for x in opt.hw.split(",")]
    if opt.hoist:
        h = [int(x) for x in opt.hoist.split(",")]; HOIST[4] = (h[0], h[1]); HOIST[3] = (h[2], h[3])
    L = []; A = L.append
    hdr = open("standalone__mha_softmax__near_ridge.s.ref").read().split("\n")
    for l in hdr:
        if l.startswith("; @launch"): break
        A(l)
    A(f"; @launch grid=(256,1,1) block=(256,1,1) lds={LDS_BYTES}")
    A('.amdgcn_target "amdgcn-amd-amdhsa--gfx950"')
    A(f".text\n.globl {KNAME}\n.p2align 8\n.type {KNAME},@function\n{KNAME}:")
    L += setup_code()
    def emit(seq):
        for i in seq: L.append(i)
    if opt.rep > 1: A(f"s_mov_b32 s98, {opt.rep}\nL_again:")
    emit(stamp(0))
    SU = startup()
    emit(SU["a"]); emit(SU["h"]); A("L_nohelp:"); emit(SU["q"]); emit(SU["r2"]); A("L_noq3:"); emit(SU["r3"])
    emit(SU["lc"]); emit(SU["l"]); A("L_nolate:"); emit(SU["w"]); A("L_osok:"); emit(SU["r4"]); emit(SU["r5"])
    A("L_first:")
    assert opt.ca7 == 0
    s4 = []
    s4 = fix_hazards(s4 + sum([dma_V(0, 1), dma_V(0, 2), dma_V(0, 3), dma_K(7)][:opt.ca7], []))
    emit(s4)
    A("L_pass:")
    pb = [waitcnt(None, 0), barrier()]
    emit(pb)
    emit(stamp(1))
    A(f"s_cmp_eq_u32 {s_nbn}, 3\ns_cbranch_scc1 L_v3")
    VAR = {}
    for nb in (4, 3):
        P = variant(nb)
        hd = fix_hazards(P["hd"])
        b1 = fix_hazards(P["i1"], wrap=hd[-14:])
        b2 = fix_hazards(P["i2"], wrap=b1[-14:])
        b1b = fix_hazards(P["i1"], wrap=b2[-14:])
        assert [x.text for x in b1b] == [x.text for x in b1], "loop entry hazards differ"
        i6 = fix_hazards(P["i6"], wrap=b1[-14:])
        i7 = fix_hazards(P["i7"], wrap=i6[-14:])
        epi = fix_hazards(P["epi"], wrap=i7[-14:])
        epf = fix_hazards(P["epf"], wrap=i7[-14:])
        VAR[nb] = dict(hd=hd, b1=b1, b2=b2, i6=i6, i7=i7, epi=epi, epf=epf)
        if opt.al8:
            for k in ("hd", "b1", "b2", "i6", "i7"): align8(VAR[nb][k])
        nn = sum(1 for p in VAR[nb].values() for x in p if x.kind == "nop")
        print(f"nb={nb}: sizes", {k: len(v) for k, v in VAR[nb].items()}, "nops", nn, file=sys.stderr)
        A(".p2align 6"); A(f"L_v{nb}:")
        emit(hd)
        emit(stamp(2))
        if opt.diag == 3:
            for k in range(3):
                A(f"s_sub_u32 s66, s{92+4*k}, s{90+4*k}\ns_mul_i32 s67, {s_pass}, 3\ns_add_u32 m0, s67, {20+k}\ns_nop 1\nv_writelane_b32 v0, s66, m0")
        if opt.al8: A(f".p2align {opt.al8}")
        A(f"L_loop{nb}:")
        emit(b1); A(f"s_cbranch_scc1 L_i6_{nb}")
        if opt.al8: A(".p2align 3")
        emit(b2); A(f"s_branch L_loop{nb}")
        if opt.al8: A(f".p2align {opt.al8}")
        A(f"L_i6_{nb}:")
        if opt.diag == 4: emit(stamp(9))
        if opt.al8: A(".p2align 3")
        emit(i6)
        if opt.diag == 4: emit(stamp(9))
        if opt.al8: A(".p2align 3")
        emit(i7)
        emit(stamp(3))
        A(f"s_cmp_lt_u32 {s_pass}, 2\ns_cbranch_scc1 L_epi{nb}")
        emit(epf)
        emit(stamp(4))
        A(f"s_branch L_done\nL_epi{nb}:")
        emit(epi)
        emit(stamp(4))
        A(f"s_add_u32 {s_pass}, {s_pass}, 1\ns_branch L_pass")
    tail = []
    traces = []
    import itertools
    for seqnb in itertools.product((3, 4), (3, 4), (3, 4), (0, 1)):
        hp = seqnb[3]; seqnb = seqnb[:3]
        n4 = seqnb[0] == 4
        tr = SU["a"] + (SU["h"] if hp else []) + SU["q"] + (SU["r2"] if n4 else []) + SU["r3"] + (SU["w"] if (hp or not opt.late) else SU["l"]) + SU["r4"] + (SU["r5"] if n4 else []) + s4
        for pi, nb in enumerate(seqnb):
            v = VAR[nb]
            tr = tr + pb + v["hd"] + (v["b1"] + v["b2"]) * 2 + v["b1"] + v["i6"] + v["i7"] + v["epf" if pi == 2 else "epi"]
        traces.append(tr + tail)
    resolve_vm(traces)
    for tr in traces:
        errs = check_trace(tr)
        if errs and not opt.abl:
            for e in errs[:20]: print("SYNC ERR", e, file=sys.stderr)
            raise SystemExit(1)
    if not opt.abl: cross_check(traces)
    A("L_done:")
    emit(tail)
    if opt.force: A(f"s_mov_b32 {s_flags}, {opt.force}")
    A(f"s_cmp_lg_u32 {s_flags}, 0\ns_cbranch_scc1 L_repair\nL_fin:")
    if opt.rep > 1:
        A("s_waitcnt vmcnt(0) lgkmcnt(0)\ns_barrier")
        raise SystemExit("rep unsupported now")
        A(f"s_mov_b32 {s_pass}, 0\ns_sub_u32 s98, s98, 1\ns_cmp_lg_u32 s98, 0\ns_cbranch_scc1 L_again")
    if opt.diag:
        A("s_waitcnt vmcnt(0)")
        emit(stamp(5))
        A(f"s_mov_b32 s66, 0x1000000\ns_mov_b32 s67, 0x20000")
        A(f"v_mbcnt_lo_u32_b32 v1, -1, 0\nv_mbcnt_hi_u32_b32 v1, -1, v1\nv_lshlrev_b32 v1, 2, v1")
        A(f"s_lshl_b32 s3, s2, 10\ns_lshl_b32 s4, {s_wave}, 8\ns_add_u32 s3, s3, s4")
        A("buffer_store_dword v0, v1, s[64:67], s3 offen")
        if opt.diag == 2:
            A(f"s_or_b32 s3, s2, {s_wave}\ns_cmp_lg_u32 s3, 0\ns_cbranch_scc1 L_exit")
            A("s_load_dwordx2 s[64:65], s[0:1], 32\ns_mov_b32 s66, 256\nv_readlane_b32 s4, v0, 0\nv_readlane_b32 s5, v0, 32\ns_waitcnt lgkmcnt(0)")
            idx = [2, 3, 4, 6, 8, 10, 12, 14]
            for j, k in enumerate(idx):
                A(f"v_readlane_b32 s6, v0, {k}\nv_readlane_b32 s7, v0, {k+32}\ns_sub_u32 s6, s6, s4\ns_sub_u32 s7, s7, s5\ns_nop 1\nv_writelane_b32 v2, s6, {j}\nv_writelane_b32 v2, s7, {j+8}")
            A("s_mov_b64 exec, 0xffff\nbuffer_store_dword v2, v1, s[64:67], 0 offen")
    if opt.wb == 1:
        A(f"s_cmp_lg_u32 {s_wave}, 0\ns_cbranch_scc1 L_exit\ns_waitcnt vmcnt(0)\nbuffer_wbl2 sc1\ns_waitcnt vmcnt(0)")
    if opt.wb == 2:
        A(f"s_cmp_lg_u32 {s_wave}, 0\ns_cbranch_scc1 L_exit\ns_cmp_eq_u32 s89, 0\ns_cbranch_scc1 L_exit\ns_waitcnt vmcnt(0)\nbuffer_wbl2 sc1\ns_waitcnt vmcnt(0)")
    if opt.wb == 3:
        A(f"s_waitcnt vmcnt(0)\nbuffer_wbl2 sc1")
    if opt.padto:
        A(f"s_waitcnt vmcnt(0)\nL_spin:\ns_memrealtime s[66:67]\ns_waitcnt lgkmcnt(0)\ns_sub_u32 s66, s66, s100\ns_cmp_lt_u32 s66, {opt.padto}\ns_cbranch_scc1 L_spin")
    A("L_exit:")
    A("s_endpgm")
    A("L_warm_end:")
    A("L_repair:")
    emit(repair_code())
    A("s_branch L_fin")
    A(".p2align 6\n.type L_table,@object\nL_table:")
    tab = schedule_table(opt.sched)
    for wg in range(256):
        w = []
        for h, st, n in tab[wg]:
            w += [(h * SQ + st * 16) * 512, h * SK * 512, n]
        w += [THR.get(wg, 0), HELP.get(wg, OOB), RANK.get(wg, 0), HELPN.get(wg, 12)]
        w += [0] * (16 - len(w))
        A(".long " + ", ".join(str(x) for x in w))
    A(".size L_table, 16384")
    A('.section .rodata,"a"\n.p2align 6')
    A(f".amdhsa_kernel {KNAME}")
    A("  .amdhsa_next_free_vgpr 512\n  .amdhsa_next_free_sgpr 102\n  .amdhsa_accum_offset 256\n  .amdhsa_group_segment_fixed_size 0")
    A("  .amdhsa_kernarg_size 48\n  .amdhsa_user_sgpr_count 2\n  .amdhsa_user_sgpr_kernarg_segment_ptr 1\n  .amdhsa_system_sgpr_workgroup_id_x 1")
    A(".end_amdhsa_kernel")
    open(opt.o, "w").write("\n".join((x if isinstance(x, str) else x.text) for x in L if x is not None) + "\n")

if __name__ == "__main__":
    main()
```

```python
import sys, argparse
from asmlib import *

KNAME = "standalone__mha_softmax__near_ridge_kernel"
NH, SQ, SK, D = 128, 1312, 512, 256
QBYTES = NH * SQ * D * 2
KBYTES = NH * SK * D * 2
OOB = 0x7fff0000
VB = 65536
XB = 131072
LDS_BYTES = 163840
C_SCALE = 0x3db8aa3b
L_LIMIT = 0x58800000

sQ, sK, sV, sO = S(8, 4), S(12, 4), S(16, 4), S(20, 4)
s_wave = S(24)
s_mK = S(25)
s_mX = S(26)
s_mR2 = S(27)
s_mOS = S(28)
s_kptr, s_kend, s_knext = S(29), S(30), S(31)
s_vptr, s_vptr2, s_vend = S(32), S(33), S(34)
s_c = S(35)
s_cnt = S(36)
s_pass = S(37)
s_flags = S(38)
s_qn = [S(40), S(41), S(42), S(43)]
s_ocur = S(44)
s_t0, s_t1, s_t2 = S(45), S(46), S(47)
s_tab = S(48, 16)
s_dbg = S(64, 4)
s_ts = S(68, 2)
s_nbn = S(70)
s_tsp = S(71)
s_mR3 = S(39)
s_tq, s_tk, s_tv, s_xm, s_xq = S(90), S(91), S(92), S(93), S(94)
sC = S(96, 4)
s_cs = S(95)
s_str = S(34)
s_ok = [S(72 + k) for k in range(8)]
kaddr, vaddr0, vaddr1, voK, voV = V(1), V(2), V(3), V(4), V(5)
lsum = lambda b: V(6 + b)
vt0, vt1 = V(10), V(11)
voQa, voQb = V(12), V(13)
vsto, wa0 = V(14), V(15)
Ct = lambda b: V(16 + 4 * b, 4)
SET = lambda i: V(32 + 16 * i, 16)
Sx = lambda i, b: SET(i).sub(4 * b, 4)
Q = lambda b, s: AG(b * 32 + s * 4, 4)
NF = 8
F = lambda i: AG(128 + 4 * (i % NF), 4)
def O(b, db):
    if 4 <= db < 10: return AG(160 + 4 * ((db - 4) * 4 + b), 4)
    return V(96 + 4 * ((db if db < 4 else db - 6) * 4 + b), 4)

M0 = ('m0', 0)
def set_m0(base, off):
    i = salu(f"s_add_u32 m0, {base}, {off}", rd=[base]); i.wr = {M0}; return i
def sop(text, rd=(), wr=()): return salu(text, rd=rd, wr=wr)

class Opt: pass
opt = Opt()

def dma(vo, srd, soff, imm, unit, mods):
    i = Ins(f"buffer_load_dwordx4 {vo}, {srd}, {soff} offen offset:{imm} {mods} lds".replace("  ", " "), "vmem", rd=[vo, srd, soff])
    i.rd.add(M0); i.dma_wr = unit; i.vm = True
    return i

def kslot_addr(slot): return slot * 8192
def vslot_addr(par, c): return VB + (par * 4 + c) * 8192

def dma_K(slot, wrap=False):
    r = []
    for dh in range(2):
        r.append(set_m0(s_mK, kslot_addr(slot) + dh * 768))
        r.append(dma(voK, sK, s_kptr, dh * 256, ("K", slot), opt.kvmod))
    r.append(sop(f"s_add_u32 {s_kptr}, {s_kptr}, 8192", rd=[s_kptr], wr=[s_kptr]))
    if wrap:
        r.append(sop(f"s_cmp_eq_u32 {s_kptr}, {s_kend}", rd=[s_kptr, s_kend]))
        r[-1].glue = True
        r.append(sop(f"s_cselect_b32 {s_kptr}, {s_knext}, {s_kptr}", rd=[s_kptr, s_knext], wr=[s_kptr]))
    return r

def dma_V(par, c, wrap=False):
    r = []
    if c == 0:
        r.append(sop(f"s_add_u32 {s_vptr}, {s_vptr}, 32768", rd=[s_vptr], wr=[s_vptr]))
        if wrap:
            r.append(sop(f"s_cmp_eq_u32 {s_vptr}, {s_vend}", rd=[s_vptr, s_vend]))
            r[-1].glue = True
            r.append(sop(f"s_cselect_b32 {s_vptr}, {s_knext}, {s_vptr}", rd=[s_vptr, s_knext], wr=[s_vptr]))
        r.append(sop(f"s_add_u32 {s_vptr2}, {s_vptr}, 4096", rd=[s_vptr], wr=[s_vptr2]))
    for e in range(2):
        r.append(set_m0(s_mK, vslot_addr(par, c) + e * 1024 - c * 128))
        r.append(dma(voV, sV, s_vptr2 if e else s_vptr, c * 128, ("V", par, c), opt.kvmod))
    return r

def dma_Q(base, soff, unit):
    r = []
    for hi in range(2):
        for dh in range(2):
            r.append(set_m0(base, hi * 4096 + dh * 768))
            for Rl in range(2):
                r.append(dma(voQb if hi else voQa, sQ, soff, Rl * 2048 + dh * 256, unit, opt.qmod))
    return r

def q_reads(b, base_sgpr, unit, tmp):
    r = [valu("v_add_u32", tmp, base_sgpr, kaddr)]
    for s in range(8):
        i = ds_read("ds_read_b128", Q(b, s), tmp, s * 256, tag=("q", b, s)); i.lds_rd = unit; i.private = True
        r.append(i)
    return r

def waitcnt(vm=None, lgkm=None):
    t = "s_waitcnt" + (f" vmcnt({vm})" if vm is not None else "") + (f" lgkmcnt({lgkm})" if lgkm is not None else "")
    i = raw(t, "wait"); i.vmw = vm; i.lgw = lgkm
    return i
def vwait(units, lgkm=None):
    i = raw("s_waitcnt ?", "wait"); i.vmneed = list(units); i.vmw = None; i.lgw = lgkm; i.vmauto = 63
    return i
def barrier():
    i = raw("s_barrier", "misc"); i.bar = True; return i

class Seg:
    def __init__(self, nb, name):
        self.nb = nb; self.name = name
        self.mf = []; self.nodes = []
        self.pairs = []
        self.blk = {}
        self.fixed = {}
        self.done = {}
        self.first = {}
        self.fixed2 = {}

    def qblock(self, name, slot, dst, czero, fbase):
        nb = self.nb; st = len(self.mf)
        for sp in range(4):
            p0 = len(self.mf)
            tags = [("f", self.name, name, 2 * sp + e) for e in range(2)]
            for b in range(nb):
                for e in range(2):
                    s = 2 * sp + e
                    d = Sx(dst, b)
                    c = d if s else (0 if czero else Ct(b))
                    self.mf.append(mfma(d, F(fbase + s), Q(b, s), c, need=tags))
                    self.done[(name, b)] = len(self.mf) - 1
            rd = []
            for e in range(2):
                s = 2 * sp + e
                i = ds_read("ds_read_b128", F(fbase + s), kaddr, kslot_addr(slot) + s * 256, tag=tags[e]); i.lds_rd = ("K", slot)
                rd.append(i)
            self.pairs.append((p0, len(self.mf) - 1, rd))
        self.blk[name] = (st, len(self.mf))

    def pblock(self, name, par, c, x0, x1, czero, fbase):
        self.pgen(name, par, [[(c, dbl, 0), (c, dbl, 1)] for dbl in range(4)], x0, x1, czero)

    def pgen(self, name, par, prs, x0, x1, czero):
        nb = self.nb; st = len(self.mf)
        for pi, pr in enumerate(prs):
            p0 = len(self.mf)
            fb = 2 * len(self.pairs)
            tags = [("f", self.name, name, 2 * pi + e) for e in range(2)]
            for b in range(nb):
                for e, (c, dbl, ks) in enumerate(pr):
                    o = O(b, 4 * c + dbl)
                    cc = 0 if (czero and ks == 0) else o
                    self.first.setdefault(("P", ks, b), len(self.mf))
                    self.first.setdefault(("O", c), len(self.mf))
                    if opt.abl & 512: self.mf.append(mfma(o, Sx(x1 if ks else x0, b), F(fb + e), cc, need=tags))
                    else: self.mf.append(mfma(o, F(fb + e), Sx(x1 if ks else x0, b), cc, need=tags))
            rd = []
            for e, (c, dbl, ks) in enumerate(pr):
                f = F(fb + e)
                va = vaddr1 if (dbl & 1) else vaddr0
                off = vslot_addr(par, c) - VB + ks * 4096 + (dbl >> 1) * 512
                for j4 in range(2):
                    i = ds_read("ds_read_b64_tr_b16", f.sub(2 * j4, 2), va, off + j4 * 2048, tag=tags[e] if j4 else ("x",))
                    i.lds_rd = ("V", par, c)
                    rd.append(i)
            self.pairs.append((p0, len(self.mf) - 1, rd))
        self.blk[name] = (st, len(self.mf))

    def unit(self, src, even_set, odd, blocks, e_of, dl_crit, dl_add, lo, hi, add_lo=None, add_hi=None, pre=None, after=None, fma=None, ext=None):
        crit = []; adds = []; res = {}
        for b in blocks:
            x = Sx(src, b); ev = Sx(even_set, b)
            ms = []
            for i in range(4):
                deps = [(n, 0) for n in pre[b]] if pre else []
                ins = valu("v_fma_f32", x[i], x[i], s_c, fma[b]) if fma else valu("v_mul_f32", x[i], s_c, x[i])
                ms.append(Node(ins, e=e_of(b), dl=dl_crit(b), deps=deps))
            y = ext(b) if ext else x
            late = odd or ext
            ex = [Node(valu("v_exp_f32", y[i], x[i]), e=e_of(b), dl=dl_crit(b), deps=[(ms[i], 0)]) for i in range(4)]
            ad = []
            for i in range(4):
                deps = [(ex[i], 1)] + ([(ad[-1], 0)] if ad else [])
                ad.append(Node(valu("v_add_f32", lsum(b), lsum(b), y[i]), e=e_of(b), dl=(dl_add if late else dl_crit(b)), deps=deps))
            aft = [(n, 0) for n in (after or {}).get(b, [])]
            if odd:
                c0 = Node(valu("v_cvt_pk_bf16_f32", ev[2], y[0], y[1]), e=e_of(b), dl=dl_crit(b), deps=[(ex[0], 1), (ex[1], 1)] + aft)
                c1 = Node(valu("v_cvt_pk_bf16_f32", ev[3], y[2], y[3]), e=e_of(b), dl=dl_crit(b), deps=[(ex[2], 1), (ex[3], 1)] + aft)
                crit += [ms[0], ms[1], ex[0], ex[1], ms[2], ms[3], ex[2], ex[3], c0, c1]
                adds += ad
            elif ext:
                c0 = Node(valu("v_cvt_pk_bf16_f32", x[0], y[0], y[1]), e=e_of(b), dl=dl_crit(b), deps=[(ex[0], 1), (ex[1], 1)])
                c1 = Node(valu("v_cvt_pk_bf16_f32", x[1], y[2], y[3]), e=e_of(b), dl=dl_crit(b), deps=[(ex[1], 0), (ex[2], 1), (ex[3], 1)])
                crit += [ms[0], ms[1], ex[0], ex[1], ms[2], ms[3], ex[2], ex[3], c0, c1]
                adds += ad
                res[b] = [c0, c1]; continue
            else:
                c0 = Node(valu("v_cvt_pk_bf16_f32", x[0], x[0], x[1]), e=e_of(b), dl=dl_crit(b), deps=[(ex[0], 1), (ex[1], 1), (ad[0], 0)])
                c1 = Node(valu("v_cvt_pk_bf16_f32", x[1], x[2], x[3]), e=e_of(b), dl=dl_crit(b), deps=[(ex[2], 1), (ex[3], 1), (ad[1], 0), (c0, 0)])
                crit += [ms[0], ms[1], ex[0], ex[1], ms[2], ms[3], ex[2], ex[3], ad[0], ad[1], ad[2], ad[3], c0, c1]
            res[b] = [c0, c1] + ad
        spread(crit, lo, hi)
        if adds: spread(adds, add_lo if add_lo is not None else lo, add_hi if add_hi is not None else hi)
        self.nodes += crit + adds
        return res

    def chain(self, instrs, lo, hi, e=None, dl=None, first_dep=None):
        prev = first_dep; out = []
        for i in instrs:
            gapd = 0
            if prev is not None:
                pk = prev.ins.kind
                gapd = 1
                if pk == "ds" and i.kind == "ds": gapd = 0
            n = Node(i, e=lo if e is None else e, dl=(10**9 if dl is None else dl), deps=[(prev, gapd)] if prev else [])
            out.append(n); prev = n
        k = len(out)
        for j, n in enumerate(out): n.ideal = lo + (hi - lo) * j / max(k, 1)
        self.nodes += out
        return out

    def reads(self, nxt_pairs, skip_first=3, barrier_before=()):
        pairs = self.pairs; ext = [p[2] for p in pairs] + list(nxt_pairs)
        prev = None
        plen = 2 * self.nb
        for k in range(skip_first, len(ext)):
            j = k - 4
            e = pairs[j][1] if j >= 0 else 0
            if k in barrier_before:
                g = e - 1 + (opt.barlag if self.nb == 3 else opt.barlag4) if j >= 0 else 0
                g = min(g, len(self.mf) - 2)
                if opt.barsplit and g > 0 and len(barrier_before[k]) == 2:
                    self.fixed[g] = barrier_before[k][1:]
                    self.fixed2[g - 1] = barrier_before[k][:1]
                else:
                    self.fixed[g] = barrier_before[k]
                self.bar_gap = getattr(self, "bar_gap", {}); self.bar_gap[k] = g
                e = g + 1
            dl = e + plen - 2
            if (k + 1) in barrier_before: dl = e + 1
            for i in ext[k]:
                n = Node(i, e=e, dl=min(dl, len(self.mf) - 1), ideal=e - 2, deps=[(prev, 0)] if prev else [])
                self.nodes.append(n); prev = n

    def build(self, nxt_first=None):
        n = len(self.mf)
        ft = set(); seen = set()
        for g, m in enumerate(self.mf):
            key = tuple(m.need)
            if key not in seen:
                seen.add(key)
                if g > 0: ft.add(g - 1)
        ft.add(n - 1)
        blocked = {}
        for g in self.fixed: ft.add(g); blocked[g] = opt.barblk
        for g in self.fixed2: ft.add(g)
        gaps, over = schedule2(self.mf, self.nodes, free_taken=ft, blocked=blocked, nomem=set(self.fixed2) | set(self.fixed))
        for g, ins in self.fixed2.items():
            gaps[g][1][0:0] = ins
        for g, ins in self.fixed.items():
            gaps[g][1][0:0] = ins
        self.over = over
        if getattr(opt, "show", 0):
            cost = lambda i: 8 if i.kind == "vmem" else i.cost
            for nme, (a, b) in self.blk.items():
                row = ""
                for g in range(a, b):
                    u = sum(cost(i) for i in gaps[g][2]) + 4 * max(0, len(gaps[g][1]) - (0 if g in ft and g not in self.fixed else 1))
                    row += "B" if g in self.fixed else (str(u // 4) if u < 40 else "#")
                print(f"  nb{self.nb} {self.name} {nme}: {row}", file=sys.stderr)
        return gaps

def sets_for(par):
    return (0, 1, 2, 3) if par == 0 else (3, 2, 1, 0)

def first_pairs_of_iter(nb, J, name):
    s = Seg(nb, name); par = J & 1
    X0, X1, A_, B_ = sets_for(par)
    s.qblock("t0", 4 * ((J + 1) & 1), A_, False, 0)
    return [p[2] for p in s.pairs[:3]]

SPLIT = {4: 3, 3: 2}

LAT = 4
def units_of(J, h):
    par = J & 1; kb = 4 * ((J + 1) & 1)
    return [("K", kb), ("K", kb + 1), ("K", kb + 2), ("V", par, 0)] if h == 0 else [("V", par, 1), ("V", par, 2), ("V", par, 3), ("K", kb + 3)]

def iter_blocks(s, J, cz, split=0):
    par = J & 1
    X0, X1, A_, B_ = sets_for(par)
    kb = 4 * ((J + 1) & 1)
    s.qblock("t0", kb + 0, A_, False, 0)
    s.qblock("t1", kb + 1, B_, False, 0)
    if split == 2:
        s.pgen("t2", par, [[(0, 0, 0), (0, 1, 0)], [(0, 2, 0), (0, 3, 0)], [(0, 0, 1), (0, 1, 1)], [(0, 2, 1), (0, 3, 1)]], X0, X1, cz)
    elif split == 1:
        s.pgen("t2", par, [[(0, 0, 0), (0, 1, 0)], [(0, 0, 1), (0, 1, 1)], [(0, 2, 0), (0, 2, 1)], [(0, 3, 0), (0, 3, 1)]], X0, X1, cz)
    else:
        s.pblock("t2", par, 0, X0, X1, cz, 0)
    s.qblock("t3", kb + 2, A_, False, 0)
    s.pblock("t4", par, 1, X0, X1, cz, 0)
    s.pblock("t5", par, 2, X0, X1, cz, 0)
    s.qblock("t6", kb + 3, A_, False, 0)
    s.pblock("t7", par, 3, X0, X1, cz, 0)

def iter_units(s, J, u2, lo3=None, x3=None, dl3=None):
    nb = s.nb; B = s.blk; n = len(s.mf)
    X0, X1, A_, B_ = sets_for(J & 1)
    p0s = s.first[("P", 1, 0)] - 1
    s.unit(A_, X1, True, range(nb), lambda b: s.done[("t0", b)] + LAT, lambda b: s.first[("P", 1, b)] - 2, dl3 or B["t3"][0] - 2,
           lo3 if lo3 is not None else B["t0"][1] - 2, p0s - 1, after=u2, **(x3 or dict(add_lo=p0s, add_hi=B["t3"][0] - 4)))
    u0 = s.unit(B_, B_, False, range(nb), lambda b: s.done[("t1", b)] + LAT, lambda b: B["t4"][0] + 4, None,
                p0s + 2, B["t4"][0] - 2)
    s.unit(A_, B_, True, range(nb), lambda b: s.done[("t3", b)] + LAT, lambda b: B["t6"][0] - 2, B["t6"][0] - 2,
           B["t4"][0], B["t6"][0] - 4, add_lo=B["t4"][0] + 4, add_hi=B["t6"][0] - 3, after=u0)
    s.unit(A_, A_, False, range(SPLIT[nb]), lambda b: s.done[("t6", b)] + LAT, lambda b: n - 1, None,
           B["t7"][0], n - 3)

def make_mid(nb, J, name, nxt_name, special=False):
    par = J & 1
    X0, X1, A_, B_ = sets_for(par)
    kb = 4 * ((J + 1) & 1)
    s = Seg(nb, name)
    iter_blocks(s, J, False, split=(1 if nb == 3 else 0))
    n = len(s.mf); B = s.blk
    u2 = s.unit(X1, X1, False, list(range(SPLIT[nb], nb)), lambda b: 0, lambda b: B["t0"][1] + 2, None, 0, B["t0"][1] - 4)
    iter_units(s, J, u2)
    npair = len(s.pairs)
    nxt = first_pairs_of_iter(nb, J + 1, nxt_name)
    need2 = units_of(J + 1, 0) + (units_of(J + 1, 1) if special else [])
    s.reads(nxt, barrier_before={16: [vwait(units_of(J, 1), 0), barrier()], npair: [vwait(need2, 0), barrier()]})
    g1 = s.bar_gap[16]; g2 = s.bar_gap[npair]
    npar = (J + 1) & 1
    if opt.spread:
        gg = [dma_V(npar, 1), dma_V(npar, 2), dma_V(npar, 3), dma_K(4 * ((J + 2) & 1) + 3)]
        k0 = 3
        c0 = s.chain(sum(gg[:k0], []), 2, B["t0"][1] + 2, dl=g1 - 1)
        c0 = s.chain(sum(gg[k0:], []), B["t2"][0] + 10, g1 - 2, dl=g1 - 1, first_dep=c0[-1])
        lo1, hi1 = (g1 + 14, g2 - 4) if nb == 4 else (B["t4"][0] + 14, g2 + 2)
    else:
        g0 = dma_V(npar, 1) + dma_V(npar, 2) + dma_V(npar, 3) + dma_K(4 * ((J + 2) & 1) + 3)
        c0 = s.chain(g0, 0, B["t0"][1] + 2, dl=g1 - 1)
        lo1, hi1 = B["t5"][0] + 8, B["t7"][0]
    if special:
        s.chain(dma_Q(s_mR3, s_qn[1], ("R3",)), g1 + 2, B["t6"][1], e=g1 + 1, dl=g2 - 1, first_dep=c0[-1])
    else:
        tq = (lambda: touch(sQ, s_tq, 2048)) if (opt.touch & 1 and J & 1) else (lambda: [])
        tk = (lambda: touch(sK, s_tk, 12 << (opt.tsh + 6))) if (opt.touch & 2 and opt.twhen >> (J & 1) & 1) else (lambda: [])
        tv = (lambda: touch(sV, s_tv, 12 << (opt.tsh + 6))) if (opt.touch & 2 and opt.twhen >> (J & 1) & 1) else (lambda: [])
        xq = [[], []]
        if not J & 1:
            for hi in range(2):
                xq[hi] = [set_m0(s_xm, hi * 4096)] + [dma(voQb if hi else voQa, sQ, s_xq, Rl * 2048, ("X",), opt.qmod) for Rl in range(2)]
            xq[1] += [sop(f"s_add_u32 {s_xm}, {s_xm}, 1024", wr=[s_xm]), sop(f"s_add_u32 {s_xq}, {s_xq}, 256", wr=[s_xq])]
            if opt.xlate:
                d = dma_Q(s_mX, s_xm, ("X",))
                xq = [d[:6], d[6:] + [sop(f"s_mov_b32 {s_xm}, {s_xq}", wr=[s_xm])]]
        tc = touch(sC, s_cs, 0)[:1] if (opt.cwarm and (J & 1 or opt.cwarm > 1)) else []
        g1l = tc + dma_K(kb + 0, wrap=(J & 1) == 1) + tq() + xq[0] + dma_K(kb + 1) + tq() + tk() + xq[1] + dma_K(kb + 2) + tq() + tv() + dma_V(par, 0)
        last = s.chain(g1l, lo1, hi1, e=g1 + 1, dl=g2 - 1, first_dep=c0[-1])[-1]
        if J & 1:
            s.chain([sop(f"s_sub_u32 {s_cnt}, {s_cnt}, 1"), sop(f"s_cmp_eq_u32 {s_cnt}, 0")], n - 6, n - 3, first_dep=last)
    return s

def touch(srd, sp, step):
    i = Ins(f"buffer_load_dword {vt0}, {vt1}, {srd}, {sp} offen", "vmem", rd=[vt1, srd, sp], wr=[vt0]); i.vm = True
    return [i, sop(f"s_add_u32 {sp}, {sp}, {step}", rd=[sp], wr=[sp])]

RL = lambda b: SET(0)[b]
WA = lambda k: wa0 if k == 0 else SET(0)[4 + k]
RA = SET(0)[8]
LT = SET(0)[9]
VS1 = SET(0)[10]
HOIST = {4: (4, 10), 3: (3, 4)}
PK = lambda c, k: O(k >> 1, 4 * c + (k & 1))

def butterfly(x, op, mid, out):
    q = []
    def add(i, deps): q.append((i, deps)); return len(q) - 1
    a = add(perm("v_permlane16_swap_b32", x[0], x[1]), [])
    b = add(perm("v_permlane16_swap_b32", x[2], x[3]), [])
    a = add(valu(op, x[0], x[0], x[1]), [a])
    b = add(valu(op, x[2], x[2], x[3]), [b])
    c = add(perm("v_permlane32_swap_b32", x[0], x[2]), [a, b])
    for i in mid(out[0], x[0], x[2]): c = add(i, [c])
    c = add(valu("v_mov_b32", out[2], out[0]), [c])
    c = add(perm("v_permlane32_swap_b32", out[0], out[2]), [c])
    a = add(valu("v_mov_b32", out[1], out[0]), [c])
    b = add(valu("v_mov_b32", out[3], out[2]), [c])
    a = add(perm("v_permlane16_swap_b32", out[0], out[1]), [a])
    b = add(perm("v_permlane16_swap_b32", out[2], out[3]), [b])
    return q

def nodes_of(q, first_deps, e, dl, ideal, step):
    nds = []
    for k, (i, deps) in enumerate(q):
        isp = i.op.startswith("v_permlane")
        d = [(nds[j], 2 if isp else (1 if nds[j].ins.kind == "trans" else 0)) for j in deps] if deps else [(x, 2 if isp else 0) for x in first_deps]
        nds.append(Node(i, e=e, dl=dl, deps=d, ideal=ideal + step * k))
    return nds

def make_last(nb, name):
    J = 7; par = 1
    X0, X1, A_, B_ = sets_for(par)
    s = Seg(nb, name)
    s.qblock("t0", 0, A_, False, 0)
    s.pgen("t2", par, [[(c, d, 0), (c, d + 1, 0)] for c in (0, 1) for d in (0, 2)], X0, X1, False)
    s.pgen("t4", par, [[(c, d, 1), (c, d + 1, 1)] for c in (0, 1) for d in (0, 2)], X0, X1, False)
    s.pblock("t5", par, 2, X0, X1, False, 0)
    s.pblock("t7", par, 3, X0, X1, False, 0)
    n = len(s.mf); B = s.blk
    u2 = s.unit(X1, X1, False, list(range(SPLIT[nb], nb)), lambda b: 0, lambda b: B["t0"][1] + 2, None, 0, B["t0"][1] - 4)
    k1 = B["t4"][0]
    u3 = s.unit(A_, X1, True, range(nb), lambda b: s.done[("t0", b)] + LAT, lambda b: s.first[("P", 1, b)] - 2, B["t5"][0] + 6,
                B["t0"][1] - 2, k1 - 1, add_lo=k1, add_hi=B["t5"][0], after=u2)
    npair = len(s.pairs)
    t0e = B["t0"][1]
    def qchain(b, base, unit, tmp, lo, hi, pre, dl=None, first_dep=None):
        ins = pre + q_reads(b, base, unit, tmp)
        nds = s.chain(ins, lo, hi, dl=dl, first_dep=first_dep)
        for k, nd in enumerate(nds[len(pre) + 1:]):
            nd.e = max(nd.e, s.pairs[k // 2][1] + 1)
        return nds
    if opt.r3epi:
        s.reads([[]], barrier_before={npair: [waitcnt(None, 0), barrier()]})
        g2 = s.bar_gap[npair]; gR = B["t4"][0] + 8
        c2 = s.chain(dma_Q(s_mR2, s_qn[2], ("R2",)), 0, B["t0"][1] + 4 if opt.q3early else B["t2"][1] - 4)
        r0 = qchain(0, s_mX, ("X",), vt0, t0e - 10, t0e + 10, [vwait([("X",)])])
        r1 = qchain(1, s_mR3, ("R3",), vt1, B["t4"][0] + 6, B["t5"][0] + 6, [vwait([("R3",)])], dl=g2 - 5, first_dep=r0[-1])
        c3 = s.chain([mark_wait_lds(("q", 0, 7))] + dma_Q(s_mX, s_qn[3], ("X",)), *((t0e + 16, B["t4"][1]) if opt.q3early else (B["t4"][0], g2)))
        c3[0].deps = [(r0[-1], 5), (c2[-1], 1)]
        c4 = s.chain([sop(f"s_sub_u32 {s_vptr}, {s_knext}, 32768", wr=[s_vptr])], 2, 4)
    else:
        kR = 12
        s.reads([[]], barrier_before={kR + 2: [waitcnt(None, 0), barrier()], npair: [waitcnt(None, 0), barrier()]})
        gR = s.bar_gap[kR + 2]; g2 = s.bar_gap[npair]
        c2 = s.chain(dma_Q(s_mR2, s_qn[2], ("R2",)), 0, B["t0"][1] - 2)
        r0 = qchain(0, s_mX, ("X",), vt0, t0e - 10, t0e + 10, [vwait([("X",)])], dl=gR - 5)
        r1 = qchain(1, s_mR3, ("R3",), vt1, t0e + 10, gR - 8, [vwait([("R3",)])], dl=gR - 5, first_dep=r0[-1])
        c3 = s.chain([mark_wait_lds(("q", 0, 7))] + dma_Q(s_mX, s_qn[3], ("X",)), t0e + 16, gR + 4)
        c3[0].deps = [(r0[-1], 5), (c2[-1], 1)]
        refill = [sop(f"s_sub_u32 {s_vptr}, {s_knext}, 32768", wr=[s_vptr])] + dma_K(4) + dma_K(5) + dma_K(6) + dma_V(0, 0)
        c4 = s.chain(refill, gR + 4, g2 - 2, e=gR + 1, first_dep=c3[-1])
        r2 = s.chain([vwait([("R2",)])] + q_reads(2, s_mR2, ("R2",), vt0), g2 - 16, g2 - 6, dl=g2 - 4, first_dep=r1[-1])
        nca = opt.ca7
        grp = [dma_V(0, 1), dma_V(0, 2), dma_V(0, 3), dma_K(7)]
        c5 = s.chain(sum(grp[:nca], []), g2 + 1, n - 2, e=g2 + 1, first_dep=c4[-1]) if nca else c4
    ok = [sop(f"s_add_u32 {s_ok[k]}, {s_ocur}, {k * 4096}", wr=[s_ok[k]]) if (k < 2 * nb and not opt.nostore) else sop(f"s_mov_b32 {s_ok[k]}, {OOB:#x}", wr=[s_ok[k]]) for k in range(8)]
    k0 = s.chain(ok, 4, t0e + 8)
    pbg = pass_begin()
    q3w = [i for i in pbg if i.text.startswith(f"s_mov_b32 {s_qn[3]},")][0]
    if opt.r3epi:
        pbg.remove(q3w); pbg.append(sop(f"s_mov_b32 {s_qn[3]}, {s_tab[3]}"))
        k1 = s.chain(pbg, gR + 6, n - 3, first_dep=k0[-1])
        k1[0].deps += [(c2[-1], 1), (c4[0], 1)]; k1[-1].deps += [(c3[-1], 1)]
    else:
        k1 = s.chain(pbg, gR + 6, n - 4, first_dep=k0[-1])
        k1[0].deps += [(c3[-1], 1), (c4[0], 1)]
    q = butterfly([lsum(b) for b in range(4)], "v_add_f32", lambda d, x, y: [valu("v_add_f32", LT, x, y), valu("v_rcp_f32", d, LT)], [RL(b) for b in range(4)])
    red = nodes_of(q, [x for b in range(nb) for x in u3[b][2:]], 0, 10**9, B["t5"][0] + 2, 1.5)
    rl_done = red[-2:]
    ad = [valu("v_xor_b32", WA(k), 16 * k, wa0) for k in (1, 2, 3)]
    ad += [valu("v_mbcnt_lo_u32_b32", RA, -1, 0), valu("v_mbcnt_hi_u32_b32", RA, -1, RA), valu("v_lshl_add_u32", RA, RA, 3, s_mOS),
           valu("v_xor_b32", VS1, 32, RA)]
    prev = None
    for k, i in enumerate(ad):
        nd = Node(i, deps=[(prev, 0)] if prev else [], ideal=B["t0"][1] - 12 + k); red.append(nd); prev = nd
    s.nodes += red
    t7s = B["t7"][0]
    order, acct = epi_order(nb)
    na, nc = HOIST[nb]
    hs = g2 - opt.hback
    for k in range(na * 4):
        t_ = acct[k // 4]; i = k % 4
        s.nodes.append(Node(acc_read(TMP(k // 4)[i], O(t_[2], 4 * t_[0] + t_[1])[i]), e=t7s + LAT + 1, ideal=g2 + 1 + k * 0.6,
                            deps=[(x, 0) for b in range(nb) for x in u3[b]]))
    for k in range(nc):
        c, dbl, b = order[k]; o = O(b, 4 * c + dbl)
        ms = [Node(valu("v_mul_f32", o[i], o[i], RL(b)), e=B["t5"][0] + LAT, ideal=hs + 1 + na * 2.4 + 3 * k + 0.5 * i, deps=[(x, 0) for x in rl_done]) for i in range(4)]
        c0 = Node(valu("v_cvt_pk_bf16_f32", o[0], o[0], o[1]), ideal=hs + 3 + na * 2.4 + 3 * k, deps=[(ms[0], 0), (ms[1], 0)])
        c1 = Node(valu("v_cvt_pk_bf16_f32", o[1], o[2], o[3]), ideal=hs + 3.5 + na * 2.4 + 3 * k, deps=[(ms[2], 0), (ms[3], 0), (c0, 0)])
        s.nodes += ms + [c0, c1]
    return s

def make_final(nb, name):
    par = 1
    X0, X1, A_, B_ = sets_for(par)
    s = Seg(nb, name)
    s.qblock("t0", 0, A_, False, 0)
    s.pgen("t2", par, [[(0, 0, 0), (0, 1, 0)], [(0, 2, 0), (0, 3, 0)], [(0, 0, 1), (0, 1, 1)], [(0, 2, 1), (0, 3, 1)]], X0, X1, False)
    s.pblock("t4", par, 1, X0, X1, False, 0)
    s.pblock("t5", par, 2, X0, X1, False, 0)
    s.pblock("t7", par, 3, X0, X1, False, 0)
    n = len(s.mf); B = s.blk
    blk = [B["t2"], B["t4"], B["t5"], B["t7"]]
    u2 = s.unit(X1, X1, False, list(range(SPLIT[nb], nb)), lambda b: 0, lambda b: B["t0"][1] + 2, None, 0, B["t0"][1] - 8)
    k1 = s.first[("P", 1, 0)]
    u3 = s.unit(A_, X1, True, range(nb), lambda b: s.done[("t0", b)] + LAT, lambda b: s.first[("P", 1, b)] - 2, blk[0][1] - 1,
                B["t0"][1] - 2, k1 - 1, add_lo=k1, add_hi=k1 + 2 * nb, after=u2)
    s.reads([])
    s.chain([sop(f"s_add_u32 {s_ok[k]}, {s_ocur}, {k * 4096}", wr=[s_ok[k]]) for k in range(2 * nb)], 2, B["t0"][1])
    q = butterfly([lsum(b) for b in range(4)], "v_add_f32", lambda d, x, y: [valu("v_add_f32", LT, x, y), valu("v_rcp_f32", d, LT)], [RL(b) for b in range(4)])
    fo = opt.finoff
    cut = [min(blk[c][1] - 1 + (fo if c == 0 else opt.finoff2), n - 1) for c in range(4)]
    red = nodes_of(q, [x for b in range(nb) for x in u3[b][2:]], 0, cut[0], k1 + 2 * nb, 0.5)
    ad = [valu("v_xor_b32", WA(k), 16 * k, wa0) for k in (1, 2, 3)]
    ad += [valu("v_mbcnt_lo_u32_b32", RA, -1, 0), valu("v_mbcnt_hi_u32_b32", RA, -1, RA), valu("v_lshl_add_u32", RA, RA, 3, s_mOS),
           valu("v_xor_b32", VS1, 32, RA)]
    prev = None
    for k, i in enumerate(ad):
        nd = Node(i, deps=[(prev, 0)] if prev else [], ideal=8 + k, dl=cut[0]); red.append(nd); prev = nd
    s.nodes += red
    XO = (XB - vslot_addr(1, 0)) // 512
    temps = [V(48 + 4 * k, 4) for k in range(4)] + [O(b, db) for db in (2, 3) for b in range(4)] + [V(16 + 4 * k, 4) for k in range(4)]
    chunks = {}
    for c in range(4):
        tiles = [(dbl, b) for dbl in range(4) for b in range(nb)]
        src = {}; ti = 0
        for t_ in tiles:
            o = O(t_[1], 4 * c + t_[0])
            if o.k == 'a': src[t_] = temps[ti]; ti += 1
            else: src[t_] = o
        lo = cut[c - 1] + 1 if c else None
        early = set()
        if c:
            pn = None
            span = cut[c] - lo
            for k in range(2 * nb):
                ra = VS1 if k & 1 else RA
                i = Ins(f"ds_read2st64_b64 {PK(c - 1, k)}, {ra} offset0:{XO + k} offset1:{XO + 8 + k}", "ds", rd=[ra], wr=[PK(c - 1, k)], tag=("o", c - 1, k))
                i.lds_rd = ("X",); i.private = True
                pn = Node(i, e=lo, dl=cut[c] - 1, ideal=lo + k, deps=[(pn, 0)] if pn else []); s.nodes.append(pn)
                st = fstore(c - 1, k, nb); st.need = [("o", c - 1, k)]
                s.nodes.append(Node(st, e=lo, dl=cut[c] - 1, ideal=lo + 6 + k * (span - 8) / (2 * nb), deps=[(pn, 5)]))
            budget = opt.finb * nb // 4
            for t_ in tiles:
                o = O(t_[1], 4 * c + t_[0]); d = src[t_]
                e = max(lo, blk[c][0] + (t_[0] * nb + t_[1]) * 2 + 1 + LAT + 1)
                if o.k == 'a':
                    if budget < 4 or e > cut[c] - 3: break
                    s.nodes += [Node(acc_read(d[i], o[i]), e=e, dl=cut[c] - 1, ideal=e + i * 0.5) for i in range(4)]
                    early.add((t_, 'a')); budget -= 4
                else:
                    if budget < 6 or e > cut[c] - 4: break
                    ms = [Node(valu("v_mul_f32", o[i], o[i], RL(t_[1])), e=e, dl=cut[c] - 1, ideal=e + i * 0.5) for i in range(4)]
                    c0 = Node(valu("v_cvt_pk_bf16_f32", o[0], o[0], o[1]), dl=cut[c] - 1, ideal=e + 2, deps=[(ms[0], 0), (ms[1], 0)])
                    c1 = Node(valu("v_cvt_pk_bf16_f32", o[1], o[2], o[3]), dl=cut[c] - 1, ideal=e + 2.5, deps=[(ms[2], 0), (ms[3], 0), (c0, 0)])
                    s.nodes += ms + [c0, c1]; early.add((t_, 'c')); budget -= 6
        r = []
        if c == 0:
            c_ = valu("v_cmp_ngt_f32", "vcc", hex(L_LIMIT), LT); c_.wr.add(('s', 'vcc')); r.append(c_)
        held = None; wq = []
        for j, t_ in enumerate(tiles):
            dbl, b = t_; o = O(b, 4 * c + dbl); t4 = src[t_]
            if o.k == 'a' and (t_, 'a') not in early: r += [acc_read(t4[i], o[i]) for i in range(4)]
            if (t_, 'c') not in early:
                rlp = V(RL(b).n & ~1, 2); sel = RL(b).n & 1
                for h in range(2):
                    r.append(valu("v_pk_mul_f32", t4.sub(2 * h, 2), t4.sub(2 * h, 2), rlp, mods=f"op_sel:[0,{sel}] op_sel_hi:[1,{sel}]"))
                r += [valu("v_cvt_pk_bf16_f32", t4[0], t4[0], t4[1]), valu("v_cvt_pk_bf16_f32", t4[1], t4[2], t4[3])]
            if wq: r.append(wq.pop(0))
            if b % 2 == 0 and b + 1 < nb: held = t4
            else:
                if held is not None:
                    w = Ins(f"ds_write2st64_b64 {WA(dbl)}, {held.sub(0, 2)}, {t4.sub(0, 2)} offset0:{XO + (b - 1) * 2} offset1:{XO + b * 2}", "ds",
                            rd=[WA(dbl), held.sub(0, 2), t4.sub(0, 2)], tag=("w", c, j)); held = None
                else:
                    w = ds_write("ds_write_b64", WA(dbl), t4.sub(0, 2), XO * 512 + b * 1024, tag=("w", c, j))
                w.lds_pw = ("X",); wq.append(w)
            if c == 0 and j == 2:
                r += [raw(f"s_cbranch_vccz L_noflag{nb}g"), sop(f"s_bitset1_b32 {s_flags}, {s_pass}"), label(f"L_noflag{nb}g")]
        r += wq
        if c == 3:
            for k in range(2 * nb):
                ra = VS1 if k & 1 else RA
                i = Ins(f"ds_read2st64_b64 {PK(3, k)}, {ra} offset0:{XO + k} offset1:{XO + 8 + k}", "ds", rd=[ra], wr=[PK(3, k)], tag=("o", 3, k))
                i.lds_rd = ("X",); i.private = True; r.append(i)
            for k in range(2 * nb):
                st = fstore(3, k, nb); st.need = [("o", 3, k)]; r.append(st)
        chunks[cut[c]] = r
    s.chunks = chunks
    return s

def fstore(c, k, nb):
    st = store(c, k, nb)
    st.text = st.text[:st.text.index("offset:")] + f"offset:{c * 128} {opt.fmod}"
    return st

QORD = (0, 3, 2, 1)
TMP = lambda k: V(48 + 4 * (k % 12), 4)
def epi_order(nb):
    order = [(c, dbl, b) for c in QORD for dbl in ((2, 3, 0, 1) if c == 2 else range(4)) for b in range(nb)]
    return order, [t_ for t_ in order if O(t_[2], 4 * t_[0] + t_[1]).k == 'a']

def mark_wait_lds(tag):
    i = raw("s_nop 0", "nop"); i.need = [tag]; i.is_marker = True
    return i

def make_head(nb, name, nxt_name):
    X0, X1, A_, B_ = sets_for(1)
    s = Seg(nb, name)
    s.qblock("h0", 1, B_, True, 0)
    s.qblock("h1", 2, X0, True, 0)
    s.qblock("h2", 3, A_, False, 0)
    iter_blocks(s, 0, True, split=2)
    n = len(s.mf); B = s.blk
    tmp = SET(X1)
    pre = {}; nmc = {}
    part = []; emax = 0
    dlm = B["h2"][0] - 2
    for b in range(4):
        if b < nb:
            x = Sx(B_, b); e = s.done[("h0", b)] + LAT; emax = max(emax, e)
            n0 = Node(valu("v_max3_f32", tmp[b], x[0], x[1], x[2]), e=e, dl=dlm, ideal=e)
            n1 = Node(valu("v_max_f32", tmp[b], tmp[b], x[3]), e=e, dl=dlm, ideal=e + 0.5, deps=[(n0, 0)])
            s.nodes += [n0, n1]; part.append(n1)
        z = Node(valu("v_mov_b32", lsum(b), 0), e=0, dl=B["h0"][1], ideal=2 + b)
        s.nodes.append(z); pre[b] = [z]
    q = butterfly([tmp[b] for b in range(4)], "v_max_f32", lambda d, x, y: [valu("v_min_f32", d, Neg(x), Neg(y))], [Ct(b)[0] for b in range(4)])
    bf = nodes_of(q, part, 0, dlm, emax, 0.5)
    s.nodes += bf
    for b in range(nb):
        nmc[b] = tmp[8 + b]
        src = bf[-2] if b < 2 else bf[-1]
        n0 = Node(valu("v_mul_f32", nmc[b], s_c, Ct(b)[0]), dl=dlm, ideal=emax + 8 + b * 0.3, deps=[(src, 0)])
        s.nodes += [n0] + [Node(valu("v_mov_b32", Ct(b)[i], Ct(b)[0]), dl=dlm + 2 * b, ideal=emax + 12 + 2 * b + i * 0.5, deps=[(src, 0)]) for i in (1, 2, 3)]
        pre[b].append(n0)
    t0s = B["t0"][0]; t1s = B["t1"][0]
    assert opt.defer == 0
    t7s = B["t7"][0]; a0 = B["t6"][0] - 6; aw = (t7s - 4 - a0) / 4
    X = lambda k: (dict(ext=lambda b: O(b, 12 + k), add_lo=a0 + k * aw, add_hi=a0 + (k + 1) * aw) if k < opt.hext else {})
    dla = lambda k, d: (t7s - 3) if k < opt.hext else d
    w = opt.hwin
    u0 = s.unit(B_, B_, False, range(nb), lambda b: s.done[("h0", b)] + LAT, lambda b: t1s - 4, dla(0, None), B["h1"][0] + 10, B["h2"][0] + w[0], pre=pre, fma=nmc, **X(0))
    u1 = s.unit(X0, B_, True, range(nb), lambda b: s.done[("h1", b)] + LAT, lambda b: t1s - 2, dla(1, t1s - 2), B["h2"][0] + w[0], t0s + w[1], pre=pre, after=u0, fma=nmc, **X(1))
    for nd in s.nodes:
        if nd.ins.text.startswith("v_fma_f32"): nd.dl = min(nd.dl, t0s - 2); nd.ideal = min(nd.ideal, t0s - 6)
    u2 = s.unit(A_, A_, False, range(nb), lambda b: s.done[("h2", b)] + LAT, lambda b: s.first[("P", 1, b)] - 4, dla(2, None), t0s + w[1], t1s + w[2], **X(2))
    iter_units(s, 0, u2, lo3=t1s + w[2], x3=X(3), dl3=dla(3, None))
    prev = None
    for k, i in enumerate([valu("v_mbcnt_lo_u32_b32", vt1, -1, 0), valu("v_mbcnt_hi_u32_b32", vt1, -1, vt1), valu("v_lshlrev_b32", vt1, opt.tsh, vt1)]):
        nd = Node(i, deps=[(prev, 0)] if prev else [], ideal=8 + k); s.nodes.append(nd); prev = nd
    npair = len(s.pairs)
    nxt = first_pairs_of_iter(nb, 1, nxt_name)
    def tb(k, l):
        if opt.diag != 3: return l
        return [raw(f"s_memtime s[{90+4*k}:{91+4*k}]")] + l + [raw(f"s_memtime s[{92+4*k}:{93+4*k}]")]
    s.reads(nxt, barrier_before={12: tb(0, [vwait(units_of(0, 0), 0), barrier()]), 28: tb(1, [vwait(units_of(0, 1), 0), barrier()]),
                                 npair: tb(2, [vwait(units_of(1, 0), 0), barrier()])})
    g0 = s.bar_gap[12]; g1 = s.bar_gap[28]; g2 = s.bar_gap[npair]
    grp = [dma_V(0, 1), dma_V(0, 2), dma_V(0, 3), dma_K(7)][opt.ca7:] + [dma_K(0), dma_V(1, 0), dma_V(1, 1), dma_V(1, 2), dma_V(1, 3)]
    ca = s.chain(sum(grp[:opt.hca], []), 0, B["h0"][1] + 2 + (opt.hca - 4) * 2 * nb, dl=g1 - 30)
    rest = grp[opt.hca:]
    nearly = max(0, 6 - opt.hca)
    cb = s.chain(sum(rest[:nearly], []) + dma_K(1) + dma_K(2), B["t1"][0], B["t4"][0], e=g0 + 1, first_dep=ca[-1])
    cc = s.chain(sum(rest[nearly:], []) + dma_K(3), B["t4"][0] + 8, B["t6"][0] + 4, first_dep=cb[-1])
    cd = s.chain(dma_K(4) + dma_K(5) + dma_K(6) + dma_V(0, 0), B["t6"][0] + 6, n - 4, e=g1 + 1, first_dep=cc[-1])
    prev = None
    nd_ = opt.defer
    sts = [(c, k) for c in range(4 - nd_, 4) for k in range(8)]
    lo, hi = 4, s.first[("O", 3)] - 6
    for j, (c, k) in enumerate(sts):
        nd = Node(store(c, k), dl=s.first[("O", c)] - 3, ideal=min(lo + (hi - lo) * j / len(sts), s.first[("O", c)] - 6 - 4 * (7 - k)), deps=[(prev, 2)] if prev else [])
        s.nodes.append(nd); prev = nd
    head = [i for p in s.pairs[:3] for i in p[2]]
    return s, head

def perm(op, a, b):
    i = valu(op, a, b, extra_rd=[a], extra_wr=[b]); i.cost = 8
    return i

def acc_read(d, a):
    i = Ins(f"v_accvgpr_read_b32 {d}, {a}", "acc", rd=[a], wr=[d]); return i

def make_epi(nb, final):
    r = []
    c_ = valu("v_cmp_ngt_f32", "vcc", hex(L_LIMIT), LT); c_.wr.add(('s', 'vcc')); r.append(c_)
    tag = f"{nb}{'f' if final else ''}"
    flagl = [raw(f"s_cbranch_vccz L_noflag{tag}"), sop(f"s_bitset1_b32 {s_flags}, {s_pass}"), label(f"L_noflag{tag}")]
    def fin_only(st):
        if final:
            st.text = st.text[:st.text.index("offset:")] + f"offset:{st.quarter * 128} {opt.fmod}"
            return [st]
        return [st] if st.quarter < 4 - opt.defer else []
    def cluster(ins): return [] if final else ins
    order, acct = epi_order(nb)
    slot = {t_: k for k, t_ in enumerate(acct)}
    accq = [(t_, i) for t_ in acct for i in range(4)]
    nacc = 4 * HOIST[nb][0]; done_acc = 0
    rdq = []; stq = []; oth = []; wq = []
    dq = [dma_K(4), dma_K(5), dma_K(6), dma_V(0, 0)] if opt.r3epi else []
    d0 = 6 + len(order) * opt.dq0 // 100
    dstep = (len(order) * 3 // 4) // 4
    held = None
    for j, (c, dbl, b) in enumerate(order):
        o = O(b, 4 * c + dbl)
        want = min(len(acct) * 4, -(-(j + 1) * len(acct) * 4 // (order.index(acct[-1]) - 2)))
        while nacc < len(acct) * 4 and (nacc < want or (o.k == 'a' and nacc < 4 * (slot[(c, dbl, b)] + 1))):
            if nacc // 4 >= done_acc + 12:
                assert not (o.k == 'a' and nacc < 4 * (slot[(c, dbl, b)] + 1)), "out of temps"
                break
            t_, i = accq[nacc]; nacc += 1
            r.append(acc_read(TMP(slot[t_])[i], O(t_[2], 4 * t_[0] + t_[1])[i]))
        t4 = TMP(slot[(c, dbl, b)]) if o.k == 'a' else o
        rlp = V(RL(b).n & ~1, 2); sel = RL(b).n & 1
        if j >= HOIST[nb][1]:
            for h in range(2):
                r.append(valu("v_pk_mul_f32", t4.sub(2 * h, 2), t4.sub(2 * h, 2), rlp, mods=f"op_sel:[0,{sel}] op_sel_hi:[1,{sel}]"))
            r += [valu("v_cvt_pk_bf16_f32", t4[0], t4[0], t4[1]), valu("v_cvt_pk_bf16_f32", t4[1], t4[2], t4[3])]
        if b % 2 == 0 and b + 1 < nb:
            held = (t4, o.k == 'a')
        else:
            na = int(o.k == 'a')
            if held is not None:
                w = Ins(f"ds_write2st64_b64 {WA(dbl)}, {held[0].sub(0, 2)}, {t4.sub(0, 2)} offset0:{(b - 1) * 2} offset1:{b * 2}", "ds",
                        rd=[WA(dbl), held[0].sub(0, 2), t4.sub(0, 2)], tag=("w", j))
                na += held[1]; held = None
            else:
                w = ds_write("ds_write_b64", WA(dbl), t4.sub(0, 2), b * 1024, tag=("w", j))
            w.lds_pw = ("OS",); wq.append((w, na))
        if j == 4: r += flagl
        if dq and j >= d0 and (j - d0) % dstep == 0: r += cluster(dq.pop(0))
        last = (j + 1) % (4 * nb) == 0; pos = j // (4 * nb)
        for _ in range(opt.epi_rd):
            if rdq: r.append(rdq.pop(0))
        if not rdq or last:
            r += rdq; rdq = []
            k_ = 0
            while wq and (k_ < 1 or last):
                w, na = wq.pop(0); r.append(w); done_acc += na; k_ += 1
        if stq and j % 2 == 1 and stq[0][0] <= j: r += fin_only(stq.pop(0)[1])
        elif oth and j % 2 == 0 and not rdq:
            r += cluster(oth.pop(0))
        if last:
            for k in range(2 * nb):
                ra = VS1 if k & 1 else RA
                i = Ins(f"ds_read2st64_b64 {PK(c, k)}, {ra} offset0:{k} offset1:{8 + k}", "ds", rd=[ra], wr=[PK(c, k)], tag=("o", c, k))
                i.lds_rd = ("OS",); i.private = True
                rdq.append(i)
            if pos < 3:
                for k in range(2 * nb):
                    st = store(c, k, nb); st.need = [("o", c, k if k < 3 else 2 * nb - 1)]; stq.append((j + 3 + k // opt.epi_rd, st))
            def halves(l): return [l[:len(l) - 4], l[len(l) - 4:]]
            if opt.r3epi:
                if pos == 0: oth += [head_reads()]
                if pos == 1: oth += halves([vwait([("R2",)])] + q_reads(2, s_mR2, ("R2",), vt0))
                if pos == 2: oth += halves([vwait([("X",)])] + q_reads(3, s_mX, ("X",), vt1))
            else:
                if c == 0: oth += halves([vwait([("X",)])] + q_reads(3, s_mX, ("X",), vt0))
                if c == 1: oth += [head_reads()]
    assert not oth and not dq
    r += rdq
    for x in stq: r += fin_only(x[1])
    for k in range(2 * nb):
        st = store(QORD[3], k, nb); st.need = [("o", QORD[3], k)]; r += fin_only(st)
    return r

def head_reads():
    s = Seg(4, "hd"); s.qblock("h0", 1, 0, True, 0)
    return [i for p in s.pairs[:3] for i in p[2]]

def store(c, k, nb=None):
    data = PK(c, k)
    mod = {3: opt.omod3, 4: opt.omod4}.get(nb) or opt.omod
    vo = vsto
    i = Ins(f"buffer_store_dwordx4 {data}, {vo}, {sO}, {s_ok[k]} offen offset:{c * 128} {mod}".rstrip(), "vmem", rd=[data, vo, sO, s_ok[k]])
    i.wide_store = True; i.data = data.set(); i.vm = True; i.quarter = c; i.k = k
    return i

def lin(seq, pre=()):
    out = []; q = list(pre)
    for i in seq:
        if i.need:
            idx = -1
            for t in i.need:
                if t in q: idx = max(idx, len(q) - 1 - q[::-1].index(t))
            if idx >= 0:
                n = min(len(q) - 1 - idx, 15)
                out.append(waitcnt(None, n)); q = q[idx + 1:]
        if getattr(i, "lgw", None) is not None: q = q[len(q) - i.lgw:] if i.lgw else []
        if getattr(i, "is_marker", False): continue
        if i.kind == "ds" and not getattr(i, "optional", False): q.append(i.tag)
        out.append(i)
    return out, q

def flat(gaps, pre, nxt_need):
    out = []; q = list(pre)
    def wf(need):
        nonlocal q
        idx = -1
        for t in need:
            if t in q: idx = max(idx, len(q) - 1 - q[::-1].index(t))
        if idx < 0: return
        n = min(len(q) - 1 - idx, 15)
        out.append(waitcnt(None, n)); q = q[idx + 1:]
    for g, (m, sc, oth) in enumerate(gaps):
        wf(m.need)
        out.append(m)
        has_l0 = any(getattr(i, "lgw", None) == 0 for i in sc)
        if not has_l0:
            wf(gaps[g + 1][0].need if g + 1 < len(gaps) else nxt_need)
        for i in sc + oth:
            if i.need: wf(i.need)
            if getattr(i, "lgw", None) == 0: q = []
            if getattr(i, "is_marker", False): continue
            if i.kind == "ds": q.append(i.tag)
            out.append(i)
    return out, q

E32 = ("v_mul_f32", "v_add_f32", "v_exp_f32", "v_mov_b32", "v_max_f32", "v_xor_b32", "v_rcp_f32")
def isize(i):
    t = i.text
    if i.kind == "label": return 0
    op = t.split()[0]
    if op.startswith("s_"):
        import re
        m = re.findall(r"[ ,](0x[0-9a-f]+|-?\d+)\s*$", t)
        if op in ("s_waitcnt", "s_barrier", "s_nop") or op.startswith("s_cbranch") or op == "s_branch": return 4
        if m and not (-16 <= int(m[0], 0) <= 64): return 8
        return 4
    if op in E32 or op in ("v_add_u32", "v_lshlrev_b32", "v_permlane16_swap_b32", "v_permlane32_swap_b32"):
        return 8 if "-v" in t else 4
    return 8

def align8(seq, start=0):
    pos = start; cand = None
    for i in seq:
        if i.kind == "mfma":
            if pos % 8 and cand is not None:
                op = cand.text.split()[0]; cand.text = cand.text.replace(op, op + "_e64", 1); pos += 4
            cand = None
        sz = isize(i)
        if sz == 4 and i.text.split()[0] in E32 and cand is None: cand = i
        pos += sz
    return pos

def strip_clusters(seq, lab="L_sk"):
    out = []; skip = False
    for i in seq:
        if i.kind == "label" and i.text.startswith(lab): skip = False
        if not skip: out.append(i)
        if i.text.startswith("s_cbranch") and i.text.split()[1].startswith(lab): skip = True
    return out

def label(n): return Ins(n + ":", "label", states=0, cost=0)

def stamp(k):
    if not opt.diag: return []
    return [raw(f"s_memrealtime {s_ts}"), raw("s_memtime s[66:67]"), raw("s_waitcnt lgkmcnt(0)", "wait0"), raw(f"s_mov_b32 m0, {s_tsp}"), raw("s_nop 1"),
            raw(f"v_writelane_b32 v0, {s_ts.sub(0)}, m0"), raw(f"s_add_u32 m0, m0, 32"), raw("s_nop 1"), raw("v_writelane_b32 v0, s66, m0"),
            raw(f"s_add_u32 {s_tsp}, {s_tsp}, 1")]

def retag(q, old, new):
    return [tuple(new if x == old else x for x in t) if len(t) > 1 else t for t in q]

def variant(nb):
    P = {}
    hd, head = make_head(nb, "hd", "i1")
    i1 = make_mid(nb, 1, "i1", "i2")
    i2 = make_mid(nb, 2, "i2", "i1")
    i6 = make_mid(nb, 6, "i2", "i1", special=True)
    i7 = make_last(nb, "i1")
    fin = make_final(nb, "i1")
    SG = dict(hd=hd, i1=i1, i2=i2, i6=i6, i7=i7, fin=fin)
    G = {k: s.build() for k, s in SG.items()}
    for g, ch in fin.chunks.items(): G["fin"][g][2].extend(ch)
    print(f"nb={nb} overflow cycles:", {k: s.over for k, s in SG.items()}, file=sys.stderr)
    P["hd"], q0 = flat(G["hd"], [], G["i1"][0][0].need)
    P["i1"], q1 = flat(G["i1"], q0, G["i2"][0][0].need)
    P["i2"], q2 = flat(G["i2"], q1, G["i1"][0][0].need)
    assert q2 == q0, (q0, q2)
    for k in ("i1", "i2"):
        if opt.abl & 1024: P[k] = [i for i in P[k] if not i.text.startswith("v_add_f32")]
        if opt.abl & 2048: P[k] = [i for i in P[k] if not (i.kind == "ds" and "b128" in i.text)]
        if opt.abl & 4096: P[k] = [i for i in P[k] if not (i.kind == "ds" and "tr_b16" in i.text)]
        if opt.abl & 16: P[k] = [i for i in P[k] if not getattr(i, "bar", False)]
        if opt.abl & 32: P[k] = [i for i in P[k] if i.kind != "vmem"]
        if opt.abl & 64: P[k] = [i for i in P[k] if i.kind not in ("valu", "trans")]
        if opt.abl & 128: P[k] = [i for i in P[k] if i.kind != "ds"]
        if opt.abl & 256: P[k] = [i for i in P[k] if not (i.kind == "salu" and "m0" in i.text)]
    P["i6"], q = flat(G["i6"], q1, G["i7"][0][0].need)
    P["fin"], _ = flat(G["fin"], q, [])
    P["i7"], q = flat(G["i7"], q, [])
    P["epf"], _ = lin(make_epi(nb, True), q)
    ep = make_epi(nb, False)
    if opt.abl & 8192: ep = [i for i in ep if not getattr(i, "dma_wr", None)]
    if opt.abl & 16384: ep = [i for i in ep if getattr(i, "vmneed", None) is None]
    if opt.abl & 1: ep = [i for i in ep if not i.text.startswith("buffer_store")]
    if opt.abl & 2: ep = [i for i in ep if getattr(i, "lds_rd", None) != ("OS",)]
    if opt.abl & 4: ep = [i for i in ep if not i.text.startswith("ds_write")]
    if opt.abl & 8: ep = [i for i in ep if i.kind != "acc"]
    P["epi"], q = lin(ep, q)
    return P

def resolve_vm(traces):
    ws = set()
    for tr in traces:
        n = 0; last = {}
        for i in tr:
            if getattr(i, "vmneed", None) is not None:
                idx = max([last.get(u, -1) for u in i.vmneed])
                if idx >= 0: i.vmauto = min(i.vmauto, n - 1 - idx)
                ws.add(i)
            if getattr(i, "vm", False):
                u = getattr(i, "dma_wr", None)
                if u: last[u] = n
                n += 1
    for i in ws:
        i.vmw = i.vmauto
        i.text = f"s_waitcnt vmcnt({i.vmw})" + (f" lgkmcnt({i.lgw})" if i.lgw is not None else "")

def check_trace(trace):
    vm = []
    lg = []
    state = {}
    epoch = 0
    ALIAS = {("R2",): [("V", 0, 1), ("V", 0, 2), ("V", 0, 3), ("K", 7)], ("OS",): [("V", 1, c) for c in range(4)],
             ("R3",): [("K", 4), ("K", 5), ("K", 6), ("V", 0, 0)]}
    def phys(u): return ALIAS.get(u, [u])
    wr_land = {}; wr_pend = {}; rd_done = {}; rd_pend = {}; owner = {}
    errs = []
    for k, i in enumerate(trace):
        if getattr(i, "vmw", None) is not None:
            while len(vm) > i.vmw:
                o = vm.pop(0)
                u = getattr(o, "dma_wr", None)
                if u: wr_pend[u] -= 1; wr_land[u] = epoch
        if getattr(i, "lgw", None) is not None or i.kind == "wait0":
            n = 0 if i.kind == "wait0" else i.lgw
            while len(lg) > n:
                o = lg.pop(0)
                u = getattr(o, "lds_rd", None) or getattr(o, "lds_pw", None)
                if u: rd_pend[u] -= 1; rd_done[u] = epoch
        if getattr(i, "bar", False): epoch += 1
        u = getattr(i, "lds_rd", None)
        if u:
            if True:
                if wr_pend.get(u, 0) > 0: errs.append((k, "read of unit with pending DMA", u, i.text))
                elif not getattr(i, "private", False) and wr_land.get(u, 10**9) >= epoch: errs.append((k, "read without barrier after landing", u, i.text))
            for p in phys(u):
                if owner.get(p) != u: errs.append((k, "read of unit owned by", owner.get(p), u, i.text))
        w = getattr(i, "dma_wr", None) or getattr(i, "lds_pw", None)
        if w:
            for p in phys(w):
                o = owner.get(p)
                if o is not None:
                    priv = (o == w and w in (("X",), ("R2",), ("R3",), ("OS",)))
                    if rd_pend.get(o, 0) > 0 and not (getattr(i, "lds_pw", None) and o == w):
                        errs.append((k, "write over unit with reads in flight", o, w, i.text))
                    if not priv and rd_done.get(o, -1) >= epoch: errs.append((k, "write without barrier after reads", o, w, i.text))
                    if o != w and wr_pend.get(o, 0) > 0: errs.append((k, "write over pending dma", o, w))
                    if o != w and wr_land.get(o, -1) >= epoch: errs.append((k, "write over unit landed w/o barrier", o, w))
                owner[p] = w
        if i.kind == "ds":
            lg.append(i)
            u = getattr(i, "lds_rd", None) or getattr(i, "lds_pw", None)
            if u: rd_pend[u] = rd_pend.get(u, 0) + 1
        if getattr(i, "vm", False):
            vm.append(i)
            u = getattr(i, "dma_wr", None)
            if u: wr_pend[u] = wr_pend.get(u, 0) + 1
            assert len(vm) <= 63, "vmcnt overflow"
    return errs

def cross_check(traces):
    ALIAS = {("R2",): [("V", 0, 1), ("V", 0, 2), ("V", 0, 3), ("K", 7)], ("OS",): [("V", 1, c) for c in range(4)],
             ("R3",): [("K", 4), ("K", 5), ("K", 6), ("V", 0, 0)]}
    allg = []
    for tr in traces:
        gens = {}; epoch = 0; vm = []; lg = []
        for i in tr:
            if getattr(i, "vmw", None) is not None:
                while len(vm) > i.vmw:
                    for g in vm.pop(0): g["land"] = epoch
            if getattr(i, "lgw", None) is not None or i.kind == "wait0":
                n = 0 if i.kind == "wait0" else i.lgw
                while len(lg) > n:
                    for g in lg.pop(0): g["done"] = epoch
            if getattr(i, "bar", False): epoch += 1
            w = getattr(i, "dma_wr", None) or getattr(i, "lds_pw", None); r = getattr(i, "lds_rd", None)
            touched = []
            u = w or r
            if u and u != ("X",):
                for p in ALIAS.get(u, [u]):
                    l = gens.setdefault(p, [])
                    if w and (not l or l[-1]["own"] != u or (l[-1]["rd0"] is not None and u not in ALIAS)):
                        l.append(dict(own=u, wr0=epoch, land=10**9, rd0=None, done=-1))
                    g = l[-1]
                    if r and g["rd0"] is None: g["rd0"] = epoch
                    if r or getattr(i, "lds_pw", None): g["done"] = 10**9
                    if getattr(i, "dma_wr", None): g["land"] = 10**9
                    touched.append(g)
            if i.kind == "ds": lg.append(touched)
            if getattr(i, "vm", False): vm.append(touched)
        allg.append((gens, epoch))
    assert len(set(e for _, e in allg)) == 1, "barrier counts differ"
    for p in allg[0][0]:
        n = len(allg[0][0][p])
        assert all(len(g[p]) == n and [x["own"] for x in g[p]] == [x["own"] for x in allg[0][0][p]] for g, _ in allg), ("generations differ", p)
        for k in range(n):
            G = [g[p][k] for g, _ in allg]
            if G[0]["own"] not in ALIAS and G[0]["rd0"] is not None:
                assert max(x["land"] for x in G) < min(x["rd0"] for x in G), ("cross RAW", p, k, G)
            if k + 1 < n:
                N = [g[p][k + 1] for g, _ in allg]
                assert max(x["done"] for x in G) < min(x["wr0"] for x in N), ("cross WAR", p, k, G, N)
                if G[0]["own"] != N[0]["own"] and any(x["land"] != 10**9 or x["rd0"] is not None for x in G) and G[0]["own"] != ("OS",):
                    assert max(x["land"] for x in G) < min(x["wr0"] for x in N), ("cross WAW", p, k, G, N)

THR = {}
HELP = {}
RANK = {}
HELPN = {}
def schedule_table(mode):
    tab = {}
    if mode == "simple":
        for wg in range(256):
            x = wg & 7; idx = wg >> 3
            head = x * 16 + (idx >> 1); base = 41 * (idx & 1)
            tab[wg] = [(head, base, 12), (head, base + 12, 16), (head, base + 28, 13)]
    elif mode == "share":
        for x in range(8):
            rounds = [[], [], []]
            def add(r, h, start, sizes):
                for sz in sizes:
                    rounds[r].append((x * 16 + h, start, sz)); start += sz
                return start
            for h in range(10):
                st = add(0, h, 0, [12, 12, 12]); add(1 if h < 6 else 2, h, st, [15, 15, 16])
            st = add(0, 10, 0, [12, 12]); st = add(1, 10, st, [15, 14]); add(2, 10, st, [15, 14])
            for h in range(11, 16):
                add(1 if h < 13 else 2, h, 0, [14, 14, 14, 14, 13, 13])
            assert all(len(r) == 32 for r in rounds), [len(r) for r in rounds]
            for idx in range(32):
                tab[idx * 8 + x] = [rounds[0][idx], rounds[1][idx], rounds[2][idx]]
    elif mode.startswith("g6"):
        orders = {"A": (0, 1, 2), "B": (1, 0, 2), "C": (2, 1, 0), "D": (2, 0, 1)}
        pat = mode.split("_")[1]
        rot = pat.startswith("x"); pat = pat.lstrip("x")
        for x in range(8):
            for g in range(6):
                o = orders[pat[(g + (x if rot else 0)) % len(pat)]] if not pat.startswith("X") else orders["ABC"[x % 3]]
                if g < 5:
                    ha, hb, hc = [x * 16 + 3 * g + i for i in range(3)]
                    r0 = [(ha, 0, 12), (ha, 12, 12), (ha, 24, 12), (hb, 0, 12), (hb, 12, 12), (hb, 24, 12)]
                    r1 = [(ha, 36, 15), (ha, 51, 15), (ha, 66, 16), (hb, 36, 15), (hb, 51, 15), (hb, 66, 16)]
                    r2 = [(hc, 0, 14), (hc, 14, 14), (hc, 28, 13), (hc, 41, 14), (hc, 55, 14), (hc, 69, 13)]
                    n = 6
                else:
                    h = x * 16 + 15
                    r0 = [(h, 0, 12), (h, 12, 12)]; r1 = [(h, 24, 15), (h, 39, 15)]; r2 = [(h, 54, 14), (h, 68, 14)]
                    n = 2
                R = [r0, r1, r2]
                for i in range(n):
                    tab[(6 * g + i) * 8 + x] = [R[o[0]][i], R[o[1]][i], R[o[2]][i]]
    elif mode.startswith("t3"):
        _, lo, so, th = mode.split("_")
        th = [int(x, 16) for x in th.split(".")]
        alt = mode.startswith("t3a")
        if alt:
            LS = [i for i in range(32) if not i & 4]; SS = [i for i in range(32) if i & 4]
        else:
            LS = [6 * g + i for g in range(5) for i in range(3)] + [30]; SS = [6 * g + 3 + i for g in range(5) for i in range(3)] + [31]
        for x in range(8):
            H = [x * 16 + i for i in range(16)]
            T3 = lambda h: [(h, 0, 12), (h, 12, 12), (h, 24, 12)]
            T4 = lambda h: [(h, 36, 16), (h, 52, 16), (h, 68, 14)]
            for g in range(5):
                a, b, c = H[3 * g], H[3 * g + 1], H[3 * g + 2]
                Lt = {"3": T3(a), "4": T4(a), "5": T4(b)[::-1]}
                St = {"3": T3(c), "2": T3(b), "4": T4(c)}
                lord = lo.split(".")[(g + x) % len(lo.split("."))]; sord = so.split(".")[(g + x) % len(so.split("."))]
                for i in range(3):
                    wl = LS[3 * g + i] * 8 + x; wsn = SS[3 * g + i] * 8 + x
                    tab[wl] = [Lt[k][i] for k in lord]
                    tab[wsn] = [St[k][i] for k in sord]
                    THR[wsn] = th[(g + x) % len(th)]
                    RANK[wl] = i; RANK[wsn] = i
                    h0, st0, _n = Lt[lord[0]][i]
                    HELP[wsn] = (h0 * SQ + st0 * 16) * 512
            h = H[15]
            tab[LS[15] * 8 + x] = [(h, 0, 12), (h, 36, 16), (h, 68, 14)]
            if alt:
                tab[SS[15] * 8 + x] = [(h, 52, 16), (h, 12, 12), (h, 24, 12)]
                THR[SS[15] * 8 + x] = th[0]; HELP[SS[15] * 8 + x] = h * SQ * 512
            else:
                tab[SS[15] * 8 + x] = [(h, 12, 12), (h, 52, 16), (h, 24, 12)]
    elif mode.startswith("t6"):
        _, lo, th = mode.split("_")
        th = [int(x, 16) for x in th.split(".")]
        LS = [i for i in range(32) if not i & 4]; SS = [i for i in range(32) if i & 4]
        for x in range(8):
            T3 = lambda h: [(h, 0, 12), (h, 12, 12), (h, 24, 12)]
            T4 = lambda h, r: [[(h, 36, 16), (h, 52, 16), (h, 68, 14)][(i + r) % 3] for i in range(3)]
            for g in range(5):
                pat = lo.split(".")[(g + x) % len(lo.split("."))]
                for i in range(3):
                    wl = LS[3 * g + i] * 8 + x; wsn = SS[3 * g + i] * 8 + x
                    tab[wl] = []; tab[wsn] = []
                    for r in range(3):
                        h = x * 16 + 3 * g + r
                        a, b = T3(h)[i], T4(h, r)[i]
                        tab[wl].append(a if pat[r] == "3" else b); tab[wsn].append(b if pat[r] == "3" else a)
                    THR[wsn] = th[(g + x) % len(th)]; RANK[wl] = i; RANK[wsn] = i
                    HELP[wsn] = (tab[wl][0][0] * SQ + tab[wl][0][1] * 16) * 512; HELPN[wsn] = tab[wl][0][2]
            h = x * 16 + 15; pat = lo.split(".")[0]
            i3 = [(h, 0, 12), (h, 12, 12), (h, 24, 12)]; i4 = [(h, 36, 16), (h, 52, 16), (h, 68, 14)]
            wl = LS[15] * 8 + x; wsn = SS[15] * 8 + x
            tab[wl] = [(i3 if pat[r] == "3" else i4)[r] for r in range(3)]
            tab[wsn] = [(i4 if pat[r] == "3" else i3)[r] for r in range(3)]
            THR[wsn] = th[0]; HELP[wsn] = (h * SQ + tab[wl][0][1] * 16) * 512; HELPN[wsn] = tab[wl][0][2]
    cov = {}
    for wg, l in tab.items():
        for h, st, n in l:
            assert 12 <= n <= 16
            for b in range(st, st + n):
                assert (h, b) not in cov; cov[(h, b)] = wg
    assert len(cov) == 128 * 82
    return tab

def setup_code():
    L = []; A = L.append
    if opt.diag or opt.padto: A("s_memrealtime s[100:101]")
    A("s_cmp_ge_u32 s2, 256")
    A("s_cbranch_scc1 L_exit")
    A("s_load_dwordx4 s[72:75], s[0:1], 0")
    A("s_load_dwordx4 s[76:79], s[0:1], 16")
    if opt.diag: A("s_load_dwordx2 s[64:65], s[0:1], 40")
    A("s_getpc_b64 s[4:5]")
    A("L_pc:")
    if opt.warm:
        A(f"s_mov_b32 {sC[0]}, s4\ns_mov_b32 {sC[1]}, s5\ns_mov_b32 {sC[2]}, L_warm_end-L_pc\ns_mov_b32 {sC[3]}, 0x20000\nv_lshlrev_b32 v16, 7, v0")
        for k in range(opt.warm): A(f"s_mov_b32 s3, {k * 32768}\nbuffer_load_dword v{17 + k}, v16, {sC}, s3 offen")
    A("s_lshl_b32 s3, s2, 6")
    A("s_add_u32 s3, s3, L_table-L_pc")
    A("s_add_u32 s46, s4, s3")
    A("s_addc_u32 s47, s5, 0")
    A("s_load_dwordx16 s[80:95], s[46:47], 0")
    A(f"v_readfirstlane_b32 {s_wave}, v0")
    A("v_and_b32 v10, 63, v0")
    A(f"s_lshr_b32 {s_wave}, {s_wave}, 6")
    A("v_and_b32 v11, 15, v10")
    A("v_lshrrev_b32 v14, 4, v10")
    A("v_lshrrev_b32 v15, 2, v11\nv_lshlrev_b32 v1, 11, v15\nv_and_b32 v6, 3, v11\nv_lshl_add_u32 v1, v6, 6, v1")
    A("v_lshrrev_b32 v6, 3, v11\nv_lshlrev_b32 v6, 1, v6\nv_xor_b32 v6, v6, v14\nv_lshl_add_u32 v1, v6, 4, v1")
    A("v_lshrrev_b32 v6, 1, v14\nv_lshlrev_b32 v2, 10, v6\nv_and_b32 v7, 1, v14\nv_lshl_add_u32 v6, v7, 2, v15\nv_lshl_add_u32 v2, v6, 6, v2")
    A(f"v_and_b32 v8, 3, v10\nv_lshl_add_u32 v2, v8, 3, v2\nv_lshl_add_u32 v2, v7, 5, v2\nv_add_u32 v2, {VB}, v2\nv_xor_b32 v3, 32, v2")
    A("v_lshlrev_b32 v12, 9, v15\nv_lshl_add_u32 v12, v14, 6, v12\nv_lshl_add_u32 v12, v8, 4, v12\nv_xor_b32 v13, 32, v12\nv_add_u32 v13, 4096, v13")
    A(f"s_lshl_b32 {s_mK}, {s_wave}, 11\ns_lshr_b32 s3, {s_wave}, 1\ns_lshl_b32 s3, s3, 5")
    A(f"v_xor_b32 v4, s3, v12\nv_add_u32 v4, {s_mK}, v4")
    A("v_lshrrev_b32 v6, 2, v10\nv_and_b32 v6, 7, v6\nv_lshlrev_b32 v5, 9, v6\nv_lshrrev_b32 v6, 2, v6\nv_lshlrev_b32 v6, 1, v6\nv_xor_b32 v6, v6, v8")
    A(f"v_lshl_add_u32 v5, v6, 4, v5\nv_lshrrev_b32 v6, 5, v10\nv_lshl_add_u32 v5, v6, 6, v5\ns_lshl_b32 s3, {s_wave}, 13\nv_add_u32 v5, s3, v5")
    A(f"s_add_u32 {s_mX}, s3, {XB}")
    A(f"s_add_u32 {s_mOS}, s3, {vslot_addr(1, 0)}")
    A(f"s_add_u32 {s_mR2}, s3, {vslot_addr(0, 0)}")
    A(f"s_cmp_eq_u32 {s_wave}, 0\ns_cselect_b32 {s_mR2}, {kslot_addr(7)}, {s_mR2}")
    A(f"s_add_u32 {s_mR3}, s3, {kslot_addr(4)}")
    A(f"s_cmp_eq_u32 {s_wave}, 3\ns_cselect_b32 {s_mR3}, {vslot_addr(0, 0)}, {s_mR3}")
    A("v_lshrrev_b32 v6, 1, v14\nv_lshrrev_b32 v9, 1, v11\nv_xor_b32 v6, v6, v9\nv_lshlrev_b32 v6, 3, v6\nv_lshl_add_u32 v6, v7, 12, v6")
    A(f"v_lshl_add_u32 v6, v11, 6, v6\nv_add_u32 v15, {s_mOS}, v6")
    A("v_lshrrev_b32 v6, 3, v10\nv_and_b32 v9, 7, v10\nv_xor_b32 v9, v9, v14\nv_lshlrev_b32 v9, 4, v9\nv_lshl_add_u32 v14, v6, 9, v9")
    A(f"s_mov_b32 {s_c}, {C_SCALE:#x}\ns_mov_b32 {s_pass}, 0\ns_mov_b32 {s_flags}, 0")
    if opt.diag: A(f"s_mov_b32 {s_tsp}, 1\nv_mov_b32 v0, 0")
    A("s_waitcnt lgkmcnt(0)")
    if opt.diag:
        A("v_writelane_b32 v0, s100, 0")
        A("s_getreg_b32 s100, hwreg(HW_REG_HW_ID)\ns_getreg_b32 s101, hwreg(HW_REG_XCC_ID)\ns_nop 1\nv_writelane_b32 v0, s100, 30\nv_writelane_b32 v0, s101, 31")
    for srd, p, n in ((sQ, 72, QBYTES), (sK, 74, KBYTES), (sV, 76, KBYTES), (sO, 78, QBYTES)):
        A(f"s_mov_b32 {srd[0]}, s{p}\ns_mov_b32 {srd[1]}, s{p+1}\ns_mov_b32 {srd[2]}, {n}\ns_mov_b32 {srd[3]}, 0x20000")
    for k in range(8): A(f"s_mov_b32 {s_ok[k]}, {OOB:#x}")
    for p in range(3):
        A(f"s_sub_u32 s3, s{80+3*p+2}, 12")
        A(f"s_min_u32 s4, s3, {s_wave}")
        A(f"s_mul_i32 s5, {s_wave}, 3\ns_add_u32 s4, s4, s5\ns_lshl_b32 s4, s4, 13")
        A(f"s_add_u32 {s_tab[4*p]}, s{80+3*p}, s4")
        A(f"s_mov_b32 {s_tab[4*p+1]}, s{80+3*p+1}")
        A(f"s_add_u32 {s_tab[4*p+3]}, {s_tab[4*p]}, 24576")
        A(f"s_cmp_lt_u32 {s_wave}, s3\ns_cselect_b32 {s_tab[4*p+2]}, 4, 3\ns_cselect_b32 {s_tab[4*p+3]}, {s_tab[4*p+3]}, {OOB:#x}")
    A(f"s_mov_b32 {s_tab[12]}, {OOB:#x}\ns_mov_b32 {s_tab[13]}, {OOB:#x}\ns_mov_b32 {s_tab[14]}, 0\ns_mov_b32 {s_tab[15]}, {OOB:#x}")
    A(f"s_lshl_b32 s3, s91, 2\ns_add_u32 s3, s3, {s_wave}\ns_lshl_b32 {s_str}, s3, {opt.tsh + 6}")
    A(f"s_cmp_eq_u32 s90, {OOB:#x}\ns_cselect_b32 {s_str}, 0x40000000, {s_str}")
    A(f"s_lshr_b32 s3, s2, 1\ns_and_b32 s3, s3, 28\ns_add_u32 s3, s3, {s_wave}\ns_lshl_b32 {s_cs}, s3, {opt.tsh + 6}\ns_and_b32 {s_cs}, {s_cs}, 0xffff")
    for p in range(3):
        for k in range(3): A(f"s_mov_b32 s{80+3*p+k}, {s_tab[4*p+k]}")
    return L

def startup():
    P = {}
    r = [sop(f"s_mov_b32 {s_kptr}, {s_tab[1]}", wr=[s_kptr]), sop(f"s_sub_u32 {s_vptr}, {s_tab[1]}, 32768", wr=[s_vptr])]
    r += dma_K(1) + dma_K(2) + dma_K(3)
    r += [sop(f"s_add_u32 {s_t0}, {s_tab[0]}, 8192", wr=[s_t0]), sop(f"s_add_u32 {s_t1}, {s_tab[0]}, 16384", wr=[s_t1]),
          sop(f"s_add_u32 {s_t2}, {s_tab[0]}, 24576", wr=[s_t2])]
    r += [sop(f"s_cmp_eq_u32 s90, {OOB:#x}"), raw("s_cbranch_scc1 L_nohelp")]
    P["a"] = r
    late = lambda: dma_K(4) + dma_K(5) + dma_K(6) + dma_V(0, 0)
    r = late() if opt.late else []
    r += [sop("s_sub_u32 s4, s92, 12"), sop(f"s_add_u32 s5, {s_wave}, 1"), sop("s_min_u32 s4, s4, s5"), sop("s_mul_i32 s5, s5, 3"),
          sop("s_add_u32 s4, s4, s5"), sop("s_lshl_b32 s3, s4, 13"), sop(f"s_add_u32 s3, s3, s90"), sop(f"s_sub_u32 s3, s3, {1024 * opt.help_n}"),
          valu("v_lshlrev_b32", vt1, 4, vt0)]
    hl = []
    for k in range(opt.help_n):
        if k and k % 4 == 0: hl.append(sop("s_add_u32 s3, s3, 4096"))
        i = Ins(f"buffer_load_dwordx4 {V(96 + 4 * k, 4)}, {vt1}, {sQ}, s3 offen offset:{(k % 4) * 1024} {opt.hmod}", "vmem", rd=[vt1]); i.vm = True
        hl.append(i)
    if opt.late == 2: r = r[-9:] + hl + r[:-9]
    else: r += hl
    P["h"] = r
    r = []; k = 0
    for grp in (dma_Q(s_mX, s_tab[0], ("X",)), dma_Q(s_mR2, s_t0, ("R2",)), dma_Q(s_mOS, s_t1, ("OS",))):
        for hf in (grp[:6], grp[6:]):
            r += hf
            if not opt.sched.endswith("_0"):
                r += [sop(f"s_bitcmp1_b32 s89, {k}"), raw(f"s_cbranch_scc0 L_th{k}"), raw("s_waitcnt vmcnt(0)"), label(f"L_th{k}")]
            k += 1
    if not opt.late: r += late()
    st5 = (lambda: stamp(9)) if opt.diag == 5 else (lambda: [])
    r += st5() + [vwait([("X",)])] + st5() + q_reads(0, s_mX, ("X",), vt0)
    r += [sop(f"s_cmp_lt_u32 {s_tab[2]}, 4"), raw("s_cbranch_scc1 L_noq3")]
    P["q"] = r
    P["r2"] = [waitcnt(None, 0)] + dma_Q(s_mX, s_t2, ("X",))
    P["r3"] = [vwait([("R2",)])] + st5() + q_reads(1, s_mR2, ("R2",), vt1) + [barrier()] + head_reads()
    P["lc"] = [sop(f"s_cmp_lg_u32 s90, {OOB:#x}"), raw("s_cbranch_scc1 L_nolate")] if opt.late else []
    P["l"] = (late() + [vwait([("OS",)]), raw("s_branch L_osok")]) if opt.late else []
    P["w"] = [vwait([("OS",)])]
    P["r4"] = st5() + q_reads(2, s_mOS, ("OS",), vt0) + pass_begin()
    P["r4"] += [sop(f"s_cmp_lt_u32 {s_nbn}, 4"), raw("s_cbranch_scc1 L_first")]
    P["r5"] = [vwait([("X",)])] + q_reads(3, s_mX, ("X",), vt1)
    return {k: fix_hazards(lin(v)[0]) for k, v in P.items()}

def pass_begin():
    T2 = lambda k: S(s_tab.n + k, 2)
    r = [sop(f"s_mov_b32 {s_ocur}, {s_tab[0]}"),
         sop(f"s_add_u32 {s_kend}, {s_tab[1]}, 262144"),
         sop(f"s_mov_b32 {s_nbn}, {s_tab[2]}"),
         sop(f"s_mov_b32 {s_knext}, {s_tab[5]}"),
         sop(f"s_mov_b32 {s_xq}, {s_tab[4]}"),
         sop(f"s_add_u32 {s_qn[1]}, {s_tab[4]}, 8192"), sop(f"s_add_u32 {s_qn[2]}, {s_tab[4]}, 16384"),
         sop(f"s_mov_b32 {s_qn[3]}, {s_tab[7]}")]
    for k in range(0, 12, 2): r.append(sop(f"s_mov_b64 {T2(k)}, {T2(k + 4)}"))
    r += [sop(f"s_mov_b32 {s_cnt}, 3"), sop(f"s_mov_b32 {s_tq}, {s_qn[2]}"),
          sop(f"s_add_u32 {s_tv}, {s_str}, {s_knext}"), sop(f"s_add_u32 {s_tk}, {s_tv}, {opt.tkoff}"),
          sop(f"s_mov_b32 {s_xm}, {OOB:#x}") if opt.xlate else sop(f"s_mov_b32 {s_xm}, {s_mX}")]
    return r

def repair_code():
    rQ = lambda k: V(96 + 4 * k, 4); rK = lambda k: V(128 + 4 * k, 4); rS = lambda k: V(32 + 4 * k, 4)
    rO = lambda k: V(160 + 4 * k, 4); rV = lambda k: V(224 + 4 * k, 4)
    m, l, ta, tb, al, nm = V(6), V(7), V(8), V(9), V(10), V(11)
    fa, va0, va1, vop, so = V(48), V(49), V(50), V(51), V(52)
    sp, sb, sj, sq, sk, sv = S(90), S(91), S(92), S(93), S(94), S(95)
    def gload(d, srd, soff, imm):
        return Ins(f"buffer_load_dwordx4 {d}, {fa}, {srd}, {soff} offen offset:{imm}", "vmem", rd=[fa, srd, soff], wr=[d])
    W = lambda t: raw(t, "wait")
    out = []
    pre = [W("s_waitcnt vmcnt(0) lgkmcnt(0)"),
           valu("v_mbcnt_lo_u32_b32", ta, -1, 0), valu("v_mbcnt_hi_u32_b32", ta, -1, ta),
           valu("v_and_b32", tb, 15, ta), valu("v_lshrrev_b32", ta, 4, ta),
           valu("v_lshlrev_b32", fa, 9, tb), valu("v_lshl_add_u32", so, ta, 3, fa), valu("v_lshl_add_u32", fa, ta, 4, fa),
           sop(f"s_sub_u32 {s_t0}, {s_mX}, {VB}"), valu("v_add_u32", va0, s_t0, vaddr0), valu("v_add_u32", va1, s_t0, vaddr1),
           sop(f"s_lshl_b32 {s_t0}, {s_wave}, 13"), valu("v_subrev_u32", vop, s_t0, voV),
           sop(f"s_mov_b32 {sp}, 0")]
    out += fix_hazards(pre)
    out += [label("L_rp"), sop(f"s_bitcmp1_b32 {s_flags}, {sp}"), raw("s_cbranch_scc0 L_rp_next"), sop(f"s_mov_b32 {sb}, 0"), label("L_rb")]
    blk = [sop(f"s_lshl_b32 {sq}, {sb}, 13"), sop(f"s_add_u32 {sq}, {sq}, s80")]
    blk += [gload(rQ(k), sQ, sq, k * 64) for k in range(8)]
    blk += [valu("v_mov_b32", m, "0xff800000"), valu("v_mov_b32", l, 0)]
    blk += [valu("v_mov_b32", V(160 + k), 0) for k in range(64)]
    blk += [sop(f"s_mov_b32 {sk}, s81"), sop(f"s_mov_b32 {sv}, s81"), sop(f"s_mov_b32 {sj}, 0")]
    out += fix_hazards(blk) + [label("L_rj")]
    it = []
    for kvb in range(4):
        it += [gload(rK(k), sK, sk, k * 64) for k in range(8)] + [sop(f"s_add_u32 {sk}, {sk}, 8192"), W("s_waitcnt vmcnt(0)")]
        it += [mfma(rS(kvb), rK(k), rQ(k), rS(kvb) if k else 0) for k in range(8)]
    xs = [V(32 + k) for k in range(16)]
    it += [valu("v_max3_f32", ta, m, xs[0], xs[1])]
    it += [valu("v_max3_f32", ta, ta, xs[k], xs[k + 1]) for k in range(2, 16, 2)]
    it += [valu("v_mov_b32", tb, ta), perm("v_permlane16_swap_b32", ta, tb), valu("v_max_f32", ta, ta, tb),
           valu("v_mov_b32", tb, ta), perm("v_permlane32_swap_b32", ta, tb), valu("v_max_f32", ta, ta, tb),
           valu("v_sub_f32", al, m, ta), valu("v_mul_f32", al, s_c, al), valu("v_exp_f32", al, al), valu("v_mov_b32", m, ta)]
    it += [valu("v_sub_f32", x, x, m) for x in xs] + [valu("v_mul_f32", x, s_c, x) for x in xs] + [valu("v_exp_f32", x, x) for x in xs]
    it += [valu("v_mul_f32", l, l, al)] + [valu("v_add_f32", l, l, x) for x in xs]
    it += [valu("v_mul_f32", V(160 + k), V(160 + k), al) for k in range(64)]
    Pf = lambda ks: V(16 + 4 * ks, 4)
    for ks in range(2):
        for j in range(4): it.append(valu("v_cvt_pk_bf16_f32", Pf(ks)[j], xs[8 * ks + 2 * j], xs[8 * ks + 2 * j + 1]))
    for c in range(4):
        for j in range(8):
            it += [sop(f"s_add_u32 {s_t0}, {sv}, {j * 4096 + c * 128}", wr=[s_t0]), set_m0(s_mX, j * 1024), dma(vop, sV, s_t0, 0, None, "")]
        it += [W("s_waitcnt vmcnt(0)")]
        for dbl in range(4):
            for ks in range(2):
                for j4 in range(2):
                    it.append(ds_read("ds_read_b64_tr_b16", rV(2 * dbl + ks).sub(2 * j4, 2), va1 if dbl & 1 else va0, ks * 4096 + (dbl >> 1) * 512 + j4 * 2048))
        it += [W("s_waitcnt lgkmcnt(0)")]
        for dbl in range(4):
            for ks in range(2): it.append(mfma(rO(4 * c + dbl), rV(2 * dbl + ks), Pf(ks), rO(4 * c + dbl)))
    it += [nop(9), sop(f"s_add_u32 {sv}, {sv}, 32768"), sop(f"s_add_u32 {sj}, {sj}, 1"), sop(f"s_cmp_lt_u32 {sj}, 8"), raw("s_cbranch_scc1 L_rj")]
    out += fix_hazards(it)
    fin = [valu("v_mov_b32", tb, l), perm("v_permlane16_swap_b32", l, tb), valu("v_add_f32", l, l, tb),
           valu("v_mov_b32", tb, l), perm("v_permlane32_swap_b32", l, tb), valu("v_add_f32", l, l, tb), valu("v_rcp_f32", al, l)]
    for db in range(16):
        o = rO(db)
        fin += [valu("v_mul_f32", o[i], o[i], al) for i in range(4)]
        fin += [valu("v_cvt_pk_bf16_f32", o[0], o[0], o[1]), valu("v_cvt_pk_bf16_f32", o[1], o[2], o[3])]
        fin.append(Ins(f"buffer_store_dwordx2 {o.sub(0, 2)}, {so}, {sO}, {sq} offen offset:{db * 32}", "vmem", rd=[o.sub(0, 2), so, sO, sq]))
    fin += [W("s_waitcnt vmcnt(0)"), sop(f"s_add_u32 {sb}, {sb}, 1"), sop(f"s_cmp_lt_u32 {sb}, s82"), raw("s_cbranch_scc1 L_rb")]
    out += fix_hazards(fin)
    out += [label("L_rp_next")]
    out += [sop(f"s_mov_b32 s{80 + k}, s{83 + k}") for k in range(6)]
    out += [sop(f"s_add_u32 {sp}, {sp}, 1"), sop(f"s_cmp_lt_u32 {sp}, 3"), raw("s_cbranch_scc1 L_rp")]
    return out

def main():
    ap = argparse.ArgumentParser()
    ap.add_argument("-o", default="standalone__mha_softmax__near_ridge.s")
    ap.add_argument("--diag", type=int, default=0)
    ap.add_argument("--kvmod", default="")
    ap.add_argument("--qmod", default="nt")
    ap.add_argument("--omod", default="")
    ap.add_argument("--sched", default="t6_344_0")
    ap.add_argument("--pkmul", type=int, default=1)
    ap.add_argument("--rep", type=int, default=1)
    ap.add_argument("--fin", type=int, default=1)
    ap.add_argument("--finoff", type=int, default=12)
    ap.add_argument("--finoff2", type=int, default=4)
    ap.add_argument("--finb", type=int, default=36)
    ap.add_argument("--hca", type=int, default=4)
    ap.add_argument("--hext", type=int, default=3)
    ap.add_argument("--hw", default="10,6,4")
    ap.add_argument("--dq0", type=int, default=0)
    ap.add_argument("--q3early", type=int, default=0)
    ap.add_argument("--fmod", default="nt")
    ap.add_argument("--xlate", type=int, default=0)
    ap.add_argument("--hmod", default="")
    ap.add_argument("--tsh", type=int, default=5)
    ap.add_argument("--barsplit", type=int, default=1)
    ap.add_argument("--barblk", type=int, default=8)
    ap.add_argument("--barlag4", type=int, default=2)
    ap.add_argument("--r3epi", type=int, default=1)
    ap.add_argument("--hback", type=int, default=24)
    ap.add_argument("--hoist", default="")
    ap.add_argument("--twhen", type=int, default=2)
    ap.add_argument("--tkoff", type=int, default=24576)
    ap.add_argument("--cwarm", type=int, default=1)
    ap.add_argument("--late", type=int, default=1)
    ap.add_argument("--al8", type=int, default=0)
    ap.add_argument("--tstride", type=int, default=2048)
    ap.add_argument("--tstep", type=int, default=24576)
    ap.add_argument("--barlag", type=int, default=4)
    ap.add_argument("--epi_rd", type=int, default=1)
    ap.add_argument("--abl", type=int, default=0)
    ap.add_argument("--help_n", type=int, default=12)
    ap.add_argument("--omod3", default="")
    ap.add_argument("--omod4", default="")
    ap.add_argument("--wb", type=int, default=0)
    ap.add_argument("--nostore", type=int, default=0)
    ap.add_argument("--ca7", type=int, default=0)
    ap.add_argument("--show", type=int, default=0)
    ap.add_argument("--spread", type=int, default=1)
    ap.add_argument("--touch", type=int, default=2)
    ap.add_argument("--force", type=int, default=0)
    ap.add_argument("--padto", type=int, default=0)
    ap.add_argument("--defer", type=int, default=0)
    ap.add_argument("--warm", type=int, default=2)
    a = ap.parse_args()
    opt.__dict__.update(vars(a)); opt.nextq = 1
    opt.hwin = [int(x) for x in opt.hw.split(",")]
    if opt.hoist:
        h = [int(x) for x in opt.hoist.split(",")]; HOIST[4] = (h[0], h[1]); HOIST[3] = (h[2], h[3])
    L = []; A = L.append
    hdr = open("standalone__mha_softmax__near_ridge.s.ref").read().split("\n")
    for l in hdr:
        if l.startswith("; @launch"): break
        A(l)
    A(f"; @launch grid=(256,1,1) block=(256,1,1) lds={LDS_BYTES}")
    A('.amdgcn_target "amdgcn-amd-amdhsa--gfx950"')
    A(f".text\n.globl {KNAME}\n.p2align 8\n.type {KNAME},@function\n{KNAME}:")
    L += setup_code()
    def emit(seq):
        for i in seq: L.append(i)
    if opt.rep > 1: A(f"s_mov_b32 s98, {opt.rep}\nL_again:")
    emit(stamp(0))
    SU = startup()
    emit(SU["a"]); emit(SU["h"]); A("L_nohelp:"); emit(SU["q"]); emit(SU["r2"]); A("L_noq3:"); emit(SU["r3"])
    emit(SU["lc"]); emit(SU["l"]); A("L_nolate:"); emit(SU["w"]); A("L_osok:"); emit(SU["r4"]); emit(SU["r5"])
    A("L_first:")
    assert opt.ca7 == 0
    s4 = []
    s4 = fix_hazards(s4 + sum([dma_V(0, 1), dma_V(0, 2), dma_V(0, 3), dma_K(7)][:opt.ca7], []))
    emit(s4)
    A("L_pass:")
    pb = [waitcnt(None, 0), barrier()]
    emit(pb)
    emit(stamp(1))
    A(f"s_cmp_eq_u32 {s_nbn}, 3\ns_cbranch_scc1 L_v3")
    VAR = {}
    for nb in (4, 3):
        P = variant(nb)
        hd = fix_hazards(P["hd"])
        b1 = fix_hazards(P["i1"], wrap=hd[-14:])
        b2 = fix_hazards(P["i2"], wrap=b1[-14:])
        b1b = fix_hazards(P["i1"], wrap=b2[-14:])
        assert [x.text for x in b1b] == [x.text for x in b1], "loop entry hazards differ"
        i6 = fix_hazards(P["i6"], wrap=b1[-14:])
        i7 = fix_hazards(P["i7"], wrap=i6[-14:])
        epi = fix_hazards(P["epi"], wrap=i7[-14:])
        epf = fix_hazards(P["epf"], wrap=i7[-14:])
        fin = fix_hazards(P["fin"], wrap=i6[-14:])
        VAR[nb] = dict(hd=hd, b1=b1, b2=b2, i6=i6, i7=i7, epi=epi, epf=epf, fin=fin)
        if opt.al8:
            for k in ("hd", "b1", "b2", "i6", "i7"): align8(VAR[nb][k])
        nn = sum(1 for p in VAR[nb].values() for x in p if x.kind == "nop")
        print(f"nb={nb}: sizes", {k: len(v) for k, v in VAR[nb].items()}, "nops", nn, file=sys.stderr)
        A(".p2align 6"); A(f"L_v{nb}:")
        emit(hd)
        emit(stamp(2))
        if opt.diag == 3:
            for k in range(3):
                A(f"s_sub_u32 s66, s{92+4*k}, s{90+4*k}\ns_mul_i32 s67, {s_pass}, 3\ns_add_u32 m0, s67, {20+k}\ns_nop 1\nv_writelane_b32 v0, s66, m0")
        if opt.al8: A(f".p2align {opt.al8}")
        A(f"L_loop{nb}:")
        emit(b1); A(f"s_cbranch_scc1 L_i6_{nb}")
        if opt.al8: A(".p2align 3")
        emit(b2); A(f"s_branch L_loop{nb}")
        if opt.al8: A(f".p2align {opt.al8}")
        A(f"L_i6_{nb}:")
        if opt.diag == 4: emit(stamp(9))
        if opt.al8: A(".p2align 3")
        emit(i6)
        if opt.diag == 4: emit(stamp(9))
        if opt.fin:
            A(f"s_cmp_lt_u32 {s_pass}, 2\ns_cbranch_scc1 L_i7_{nb}")
            emit(stamp(3))
            emit(fin)
            emit(stamp(4))
            A(f"s_branch L_done\nL_i7_{nb}:")
            emit(i7)
            emit(stamp(3))
        else:
            emit(i7)
            emit(stamp(3))
            A(f"s_cmp_lt_u32 {s_pass}, 2\ns_cbranch_scc1 L_epi{nb}")
            emit(epf)
            emit(stamp(4))
            A(f"s_branch L_done\nL_epi{nb}:")
        emit(epi)
        emit(stamp(4))
        A(f"s_add_u32 {s_pass}, {s_pass}, 1\ns_branch L_pass")
    tail = []
    traces = []
    import itertools
    for seqnb in itertools.product((3, 4), (3, 4), (3, 4), (0, 1)):
        hp = seqnb[3]; seqnb = seqnb[:3]
        n4 = seqnb[0] == 4
        tr = SU["a"] + (SU["h"] if hp else []) + SU["q"] + (SU["r2"] if n4 else []) + SU["r3"] + (SU["w"] if (hp or not opt.late) else SU["l"]) + SU["r4"] + (SU["r5"] if n4 else []) + s4
        for pi, nb in enumerate(seqnb):
            v = VAR[nb]
            tr = tr + pb + v["hd"] + (v["b1"] + v["b2"]) * 2 + v["b1"] + v["i6"] + (v["fin"] if (pi == 2 and opt.fin) else v["i7"] + v["epf" if pi == 2 else "epi"])
        traces.append(tr + tail)
    resolve_vm(traces)
    for tr in traces:
        errs = check_trace(tr)
        if errs and not opt.abl:
            for e in errs[:20]: print("SYNC ERR", e, file=sys.stderr)
            raise SystemExit(1)
    if not opt.abl: cross_check(traces)
    A("L_done:")
    emit(tail)
    if opt.force: A(f"s_mov_b32 {s_flags}, {opt.force}")
    A(f"s_cmp_lg_u32 {s_flags}, 0\ns_cbranch_scc1 L_repair\nL_fin:")
    if opt.rep > 1:
        A("s_waitcnt vmcnt(0) lgkmcnt(0)\ns_barrier")
        raise SystemExit("rep unsupported now")
        A(f"s_mov_b32 {s_pass}, 0\ns_sub_u32 s98, s98, 1\ns_cmp_lg_u32 s98, 0\ns_cbranch_scc1 L_again")
    if opt.diag:
        A("s_waitcnt vmcnt(0)")
        emit(stamp(5))
        A(f"s_mov_b32 s66, 0x1000000\ns_mov_b32 s67, 0x20000")
        A(f"v_mbcnt_lo_u32_b32 v1, -1, 0\nv_mbcnt_hi_u32_b32 v1, -1, v1\nv_lshlrev_b32 v1, 2, v1")
        A(f"s_lshl_b32 s3, s2, 10\ns_lshl_b32 s4, {s_wave}, 8\ns_add_u32 s3, s3, s4")
        A("buffer_store_dword v0, v1, s[64:67], s3 offen")
        if opt.diag == 2:
            A(f"s_or_b32 s3, s2, {s_wave}\ns_cmp_lg_u32 s3, 0\ns_cbranch_scc1 L_exit")
            A("s_load_dwordx2 s[64:65], s[0:1], 32\ns_mov_b32 s66, 256\nv_readlane_b32 s4, v0, 0\nv_readlane_b32 s5, v0, 32\ns_waitcnt lgkmcnt(0)")
            idx = [2, 3, 4, 6, 8, 10, 12, 14]
            for j, k in enumerate(idx):
                A(f"v_readlane_b32 s6, v0, {k}\nv_readlane_b32 s7, v0, {k+32}\ns_sub_u32 s6, s6, s4\ns_sub_u32 s7, s7, s5\ns_nop 1\nv_writelane_b32 v2, s6, {j}\nv_writelane_b32 v2, s7, {j+8}")
            A("s_mov_b64 exec, 0xffff\nbuffer_store_dword v2, v1, s[64:67], 0 offen")
    if opt.wb == 1:
        A(f"s_cmp_lg_u32 {s_wave}, 0\ns_cbranch_scc1 L_exit\ns_waitcnt vmcnt(0)\nbuffer_wbl2 sc1\ns_waitcnt vmcnt(0)")
    if opt.wb == 2:
        A(f"s_cmp_lg_u32 {s_wave}, 0\ns_cbranch_scc1 L_exit\ns_cmp_eq_u32 s89, 0\ns_cbranch_scc1 L_exit\ns_waitcnt vmcnt(0)\nbuffer_wbl2 sc1\ns_waitcnt vmcnt(0)")
    if opt.wb == 3:
        A(f"s_waitcnt vmcnt(0)\nbuffer_wbl2 sc1")
    if opt.padto:
        A(f"s_waitcnt vmcnt(0)\nL_spin:\ns_memrealtime s[66:67]\ns_waitcnt lgkmcnt(0)\ns_sub_u32 s66, s66, s100\ns_cmp_lt_u32 s66, {opt.padto}\ns_cbranch_scc1 L_spin")
    A("L_exit:")
    A("s_endpgm")
    A("L_warm_end:")
    A("L_repair:")
    emit(repair_code())
    A("s_branch L_fin")
    A(".p2align 6\n.type L_table,@object\nL_table:")
    tab = schedule_table(opt.sched)
    for wg in range(256):
        w = []
        for h, st, n in tab[wg]:
            w += [(h * SQ + st * 16) * 512, h * SK * 512, n]
        w += [THR.get(wg, 0), HELP.get(wg, OOB), RANK.get(wg, 0), HELPN.get(wg, 12)]
        w += [0] * (16 - len(w))
        A(".long " + ", ".join(str(x) for x in w))
    A(".size L_table, 16384")
    A('.section .rodata,"a"\n.p2align 6')
    A(f".amdhsa_kernel {KNAME}")
    A("  .amdhsa_next_free_vgpr 512\n  .amdhsa_next_free_sgpr 102\n  .amdhsa_accum_offset 256\n  .amdhsa_group_segment_fixed_size 0")
    A("  .amdhsa_kernarg_size 48\n  .amdhsa_user_sgpr_count 2\n  .amdhsa_user_sgpr_kernarg_segment_ptr 1\n  .amdhsa_system_sgpr_workgroup_id_x 1")
    A(".end_amdhsa_kernel")
    open(opt.o, "w").write("\n".join((x if isinstance(x, str) else x.text) for x in L if x is not None) + "\n")

if __name__ == "__main__":
    main()
```

```python
import sys, argparse
from asmlib import *

KNAME = "standalone__mha_softmax__near_ridge_kernel"
NH, SQ, SK, D = 128, 1312, 512, 256
QBYTES = NH * SQ * D * 2
KBYTES = NH * SK * D * 2
OOB = 0x7fff0000
VB = 65536
XB = 131072
LDS_BYTES = 163840
C_SCALE = 0x3db8aa3b
L_LIMIT = 0x58800000

sQ, sK, sV, sO = S(8, 4), S(12, 4), S(16, 4), S(20, 4)
s_wave = S(24)
s_mK = S(25)
s_mX = S(26)
s_mR2 = S(27)
s_mOS = S(28)
s_kptr, s_kend, s_knext = S(29), S(30), S(31)
s_vptr, s_vptr2, s_vend = S(32), S(33), S(34)
s_c = S(35)
s_cnt = S(36)
s_pass = S(37)
s_flags = S(38)
s_qn = [S(40), S(41), S(42), S(43)]
s_ocur = S(44)
s_t0, s_t1, s_t2 = S(45), S(46), S(47)
s_tab = S(48, 16)
s_dbg = S(64, 4)
s_ts = S(68, 2)
s_nbn = S(70)
s_tsp = S(71)
s_mR3 = S(39)
s_tq, s_tk, s_tv, s_xm, s_xq = S(90), S(91), S(92), S(93), S(94)
sC = S(96, 4)
s_cs = S(95)
s_str = S(34)
s_ok = [S(72 + k) for k in range(8)]
kaddr, vaddr0, vaddr1, voK, voV = V(1), V(2), V(3), V(4), V(5)
lsum = lambda b: V(6 + b)
vt0, vt1 = V(10), V(11)
voQa, voQb = V(12), V(13)
vsto, wa0 = V(14), V(15)
Ct = lambda b: V(16 + 4 * b, 4)
SET = lambda i: V(32 + 16 * i, 16)
Sx = lambda i, b: SET(i).sub(4 * b, 4)
Q = lambda b, s: AG(b * 32 + s * 4, 4)
NF = 8
F = lambda i: AG(128 + 4 * (i % NF), 4)
def O(b, db):
    if 4 <= db < 10: return AG(160 + 4 * ((db - 4) * 4 + b), 4)
    return V(96 + 4 * ((db if db < 4 else db - 6) * 4 + b), 4)

M0 = ('m0', 0)
_last_m0 = [None]
def set_m0(base, off):
    i = salu(f"s_add_u32 m0, {base}, {off}", rd=[base]); i.wr = {M0}; _last_m0[0] = i; return i
def sop(text, rd=(), wr=()): return salu(text, rd=rd, wr=wr)

class Opt: pass
opt = Opt()

def dma(vo, srd, soff, imm, unit, mods):
    i = Ins(f"buffer_load_dwordx4 {vo}, {srd}, {soff} offen offset:{imm} {mods} lds".replace("  ", " "), "vmem", rd=[vo, srd, soff])
    i.rd.add(M0); i.dma_wr = unit; i.vm = True; i.m0ref = _last_m0[0]
    return i

def kslot_addr(slot): return slot * 8192
def vslot_addr(par, c): return VB + (par * 4 + c) * 8192

def dma_K(slot, wrap=False):
    r = []
    for dh in range(2):
        r.append(set_m0(s_mK, kslot_addr(slot) + dh * 768))
        r.append(dma(voK, sK, s_kptr, dh * 256, ("K", slot), opt.kvmod))
    r.append(sop(f"s_add_u32 {s_kptr}, {s_kptr}, 8192", rd=[s_kptr], wr=[s_kptr]))
    if wrap:
        r.append(sop(f"s_cmp_eq_u32 {s_kptr}, {s_kend}", rd=[s_kptr, s_kend]))
        r[-1].glue = True
        r.append(sop(f"s_cselect_b32 {s_kptr}, {s_knext}, {s_kptr}", rd=[s_kptr, s_knext], wr=[s_kptr]))
    return r

def dma_V(par, c, wrap=False):
    r = []
    if c == 0:
        r.append(sop(f"s_add_u32 {s_vptr}, {s_vptr}, 32768", rd=[s_vptr], wr=[s_vptr]))
        if wrap:
            r.append(sop(f"s_cmp_eq_u32 {s_vptr}, {s_vend}", rd=[s_vptr, s_vend]))
            r[-1].glue = True
            r.append(sop(f"s_cselect_b32 {s_vptr}, {s_knext}, {s_vptr}", rd=[s_vptr, s_knext], wr=[s_vptr]))
        r.append(sop(f"s_add_u32 {s_vptr2}, {s_vptr}, 4096", rd=[s_vptr], wr=[s_vptr2]))
    for e in range(2):
        r.append(set_m0(s_mK, vslot_addr(par, c) + e * 1024 - c * 128))
        r.append(dma(voV, sV, s_vptr2 if e else s_vptr, c * 128, ("V", par, c), opt.kvmod))
    return r

def dma_Q(base, soff, unit):
    r = []
    for hi in range(2):
        for dh in range(2):
            r.append(set_m0(base, hi * 4096 + dh * 768))
            for Rl in range(2):
                r.append(dma(voQb if hi else voQa, sQ, soff, Rl * 2048 + dh * 256, unit, opt.qmod))
    return r

def q_reads(b, base_sgpr, unit, tmp):
    r = [valu("v_add_u32", tmp, base_sgpr, kaddr)]
    for s in range(8):
        i = ds_read("ds_read_b128", Q(b, s), tmp, s * 256, tag=("q", b, s)); i.lds_rd = unit; i.private = True
        r.append(i)
    return r

def waitcnt(vm=None, lgkm=None):
    t = "s_waitcnt" + (f" vmcnt({vm})" if vm is not None else "") + (f" lgkmcnt({lgkm})" if lgkm is not None else "")
    i = raw(t, "wait"); i.vmw = vm; i.lgw = lgkm
    return i
def vwait(units, lgkm=None):
    i = raw("s_waitcnt ?", "wait"); i.vmneed = list(units); i.vmw = None; i.lgw = lgkm; i.vmauto = 63
    return i
def barrier():
    i = raw("s_barrier", "misc"); i.bar = True; return i

class Seg:
    def __init__(self, nb, name):
        self.nb = nb; self.name = name
        self.mf = []; self.nodes = []
        self.pairs = []
        self.blk = {}
        self.fixed = {}
        self.done = {}
        self.first = {}
        self.fixed2 = {}

    def qblock(self, name, slot, dst, czero, fbase):
        nb = self.nb; st = len(self.mf)
        for sp in range(4):
            p0 = len(self.mf)
            tags = [("f", self.name, name, 2 * sp + e) for e in range(2)]
            for b in range(nb):
                for e in range(2):
                    s = 2 * sp + e
                    d = Sx(dst, b)
                    c = d if s else (0 if czero else Ct(b))
                    self.mf.append(mfma(d, F(fbase + s), Q(b, s), c, need=tags))
                    self.done[(name, b)] = len(self.mf) - 1
            rd = []
            for e in range(2):
                s = 2 * sp + e
                i = ds_read("ds_read_b128", F(fbase + s), kaddr, kslot_addr(slot) + s * 256, tag=tags[e]); i.lds_rd = ("K", slot)
                rd.append(i)
            self.pairs.append((p0, len(self.mf) - 1, rd))
        self.blk[name] = (st, len(self.mf))

    def pblock(self, name, par, c, x0, x1, czero, fbase):
        self.pgen(name, par, [[(c, dbl, 0), (c, dbl, 1)] for dbl in range(4)], x0, x1, czero)

    def pgen(self, name, par, prs, x0, x1, czero):
        nb = self.nb; st = len(self.mf)
        for pi, pr in enumerate(prs):
            p0 = len(self.mf)
            fb = 2 * len(self.pairs)
            tags = [("f", self.name, name, 2 * pi + e) for e in range(2)]
            for b in range(nb):
                for e, (c, dbl, ks) in enumerate(pr):
                    o = O(b, 4 * c + dbl)
                    cc = 0 if (czero and ks == 0) else o
                    self.first.setdefault(("P", ks, b), len(self.mf))
                    self.first.setdefault(("O", c), len(self.mf))
                    if opt.abl & 512: self.mf.append(mfma(o, Sx(x1 if ks else x0, b), F(fb + e), cc, need=tags))
                    else: self.mf.append(mfma(o, F(fb + e), Sx(x1 if ks else x0, b), cc, need=tags))
            rd = []
            for e, (c, dbl, ks) in enumerate(pr):
                f = F(fb + e)
                va = vaddr1 if (dbl & 1) else vaddr0
                off = vslot_addr(par, c) - VB + ks * 4096 + (dbl >> 1) * 512
                for j4 in range(2):
                    i = ds_read("ds_read_b64_tr_b16", f.sub(2 * j4, 2), va, off + j4 * 2048, tag=tags[e] if j4 else ("x",))
                    i.lds_rd = ("V", par, c)
                    rd.append(i)
            self.pairs.append((p0, len(self.mf) - 1, rd))
        self.blk[name] = (st, len(self.mf))

    def unit(self, src, even_set, odd, blocks, e_of, dl_crit, dl_add, lo, hi, add_lo=None, add_hi=None, pre=None, after=None, fma=None, ext=None):
        crit = []; adds = []; res = {}
        for b in blocks:
            x = Sx(src, b); ev = Sx(even_set, b)
            ms = []
            for i in range(4):
                deps = [(n, 0) for n in pre[b]] if pre else []
                ins = valu("v_fma_f32", x[i], x[i], s_c, fma[b]) if fma else valu("v_mul_f32", x[i], s_c, x[i])
                ms.append(Node(ins, e=e_of(b), dl=dl_crit(b), deps=deps))
            y = ext(b) if ext else x
            late = odd or ext
            ex = [Node(valu("v_exp_f32", y[i], x[i]), e=e_of(b), dl=dl_crit(b), deps=[(ms[i], 0)]) for i in range(4)]
            ad = []
            for i in range(4):
                deps = [(ex[i], 1)] + ([(ad[-1], 0)] if ad else [])
                ad.append(Node(valu("v_add_f32", lsum(b), lsum(b), y[i]), e=e_of(b), dl=(dl_add if late else dl_crit(b)), deps=deps))
            aft = [(n, 0) for n in (after or {}).get(b, [])]
            if odd:
                c0 = Node(valu("v_cvt_pk_bf16_f32", ev[2], y[0], y[1]), e=e_of(b), dl=dl_crit(b), deps=[(ex[0], 1), (ex[1], 1)] + aft)
                c1 = Node(valu("v_cvt_pk_bf16_f32", ev[3], y[2], y[3]), e=e_of(b), dl=dl_crit(b), deps=[(ex[2], 1), (ex[3], 1)] + aft)
                crit += [ms[0], ms[1], ex[0], ex[1], ms[2], ms[3], ex[2], ex[3], c0, c1]
                adds += ad
            elif ext:
                c0 = Node(valu("v_cvt_pk_bf16_f32", x[0], y[0], y[1]), e=e_of(b), dl=dl_crit(b), deps=[(ex[0], 1), (ex[1], 1)])
                c1 = Node(valu("v_cvt_pk_bf16_f32", x[1], y[2], y[3]), e=e_of(b), dl=dl_crit(b), deps=[(ex[1], 0), (ex[2], 1), (ex[3], 1)])
                crit += [ms[0], ms[1], ex[0], ex[1], ms[2], ms[3], ex[2], ex[3], c0, c1]
                adds += ad
                res[b] = [c0, c1]; continue
            else:
                c0 = Node(valu("v_cvt_pk_bf16_f32", x[0], x[0], x[1]), e=e_of(b), dl=dl_crit(b), deps=[(ex[0], 1), (ex[1], 1), (ad[0], 0)])
                c1 = Node(valu("v_cvt_pk_bf16_f32", x[1], x[2], x[3]), e=e_of(b), dl=dl_crit(b), deps=[(ex[2], 1), (ex[3], 1), (ad[1], 0), (c0, 0)])
                crit += [ms[0], ms[1], ex[0], ex[1], ms[2], ms[3], ex[2], ex[3], ad[0], ad[1], ad[2], ad[3], c0, c1]
            res[b] = [c0, c1] + ad
        spread(crit, lo, hi)
        if adds: spread(adds, add_lo if add_lo is not None else lo, add_hi if add_hi is not None else hi)
        self.nodes += crit + adds
        return res

    def chain(self, instrs, lo, hi, e=None, dl=None, first_dep=None):
        prev = first_dep; out = []
        for i in instrs:
            gapd = 0
            if prev is not None:
                pk = prev.ins.kind
                gapd = 1
                if pk == "ds" and i.kind == "ds": gapd = 0
            n = Node(i, e=lo if e is None else e, dl=(10**9 if dl is None else dl), deps=[(prev, gapd)] if prev else [])
            out.append(n); prev = n
        k = len(out)
        for j, n in enumerate(out): n.ideal = lo + (hi - lo) * j / max(k, 1)
        self.nodes += out
        return out

    def reads(self, nxt_pairs, skip_first=3, barrier_before=()):
        pairs = self.pairs; ext = [p[2] for p in pairs] + list(nxt_pairs)
        prev = None
        plen = 2 * self.nb
        for k in range(skip_first, len(ext)):
            j = k - 4
            e = pairs[j][1] if j >= 0 else 0
            if k in barrier_before:
                g = e - 1 + (opt.barlag if self.nb == 3 else opt.barlag4) if j >= 0 else 0
                g = min(g, len(self.mf) - 2)
                if opt.barsplit and g > 0 and len(barrier_before[k]) == 2:
                    self.fixed[g] = barrier_before[k][1:]
                    self.fixed2[g - 1] = barrier_before[k][:1]
                else:
                    self.fixed[g] = barrier_before[k]
                self.bar_gap = getattr(self, "bar_gap", {}); self.bar_gap[k] = g
                e = g + 1
            dl = e + plen - 2
            if (k + 1) in barrier_before: dl = e + 1
            for i in ext[k]:
                n = Node(i, e=e, dl=min(dl, len(self.mf) - 1), ideal=e - 2, deps=[(prev, 0)] if prev else [])
                self.nodes.append(n); prev = n

    def build(self, nxt_first=None):
        n = len(self.mf)
        ft = set(); seen = set()
        for g, m in enumerate(self.mf):
            key = tuple(m.need)
            if key not in seen:
                seen.add(key)
                if g > 0: ft.add(g - 1)
        ft.add(n - 1)
        blocked = {}
        for g in self.fixed: ft.add(g); blocked[g] = opt.barblk
        for g in self.fixed2: ft.add(g)
        gaps, over = schedule2(self.mf, self.nodes, free_taken=ft, blocked=blocked, nomem=set(self.fixed2) | set(self.fixed))
        for g, ins in self.fixed2.items():
            gaps[g][1][0:0] = ins
        for g, ins in self.fixed.items():
            gaps[g][1][0:0] = ins
        self.over = over
        if getattr(opt, "show", 0):
            cost = lambda i: 8 if i.kind == "vmem" else i.cost
            for nme, (a, b) in self.blk.items():
                row = ""
                for g in range(a, b):
                    u = sum(cost(i) for i in gaps[g][2]) + 4 * max(0, len(gaps[g][1]) - (0 if g in ft and g not in self.fixed else 1))
                    row += "B" if g in self.fixed else (str(u // 4) if u < 40 else "#")
                print(f"  nb{self.nb} {self.name} {nme}: {row}", file=sys.stderr)
        return gaps

def sets_for(par):
    return (0, 1, 2, 3) if par == 0 else (3, 2, 1, 0)

def first_pairs_of_iter(nb, J, name):
    s = Seg(nb, name); par = J & 1
    X0, X1, A_, B_ = sets_for(par)
    s.qblock("t0", 4 * ((J + 1) & 1), A_, False, 0)
    return [p[2] for p in s.pairs[:3]]

SPLIT = {4: 3, 3: 2}

LAT = 4
def units_of(J, h):
    par = J & 1; kb = 4 * ((J + 1) & 1)
    return [("K", kb), ("K", kb + 1), ("K", kb + 2), ("V", par, 0)] if h == 0 else [("V", par, 1), ("V", par, 2), ("V", par, 3), ("K", kb + 3)]

def iter_blocks(s, J, cz, split=0):
    par = J & 1
    X0, X1, A_, B_ = sets_for(par)
    kb = 4 * ((J + 1) & 1)
    s.qblock("t0", kb + 0, A_, False, 0)
    s.qblock("t1", kb + 1, B_, False, 0)
    if split == 2:
        s.pgen("t2", par, [[(0, 0, 0), (0, 1, 0)], [(0, 2, 0), (0, 3, 0)], [(0, 0, 1), (0, 1, 1)], [(0, 2, 1), (0, 3, 1)]], X0, X1, cz)
    elif split == 1:
        s.pgen("t2", par, [[(0, 0, 0), (0, 1, 0)], [(0, 0, 1), (0, 1, 1)], [(0, 2, 0), (0, 2, 1)], [(0, 3, 0), (0, 3, 1)]], X0, X1, cz)
    else:
        s.pblock("t2", par, 0, X0, X1, cz, 0)
    s.qblock("t3", kb + 2, A_, False, 0)
    s.pblock("t4", par, 1, X0, X1, cz, 0)
    s.pblock("t5", par, 2, X0, X1, cz, 0)
    s.qblock("t6", kb + 3, A_, False, 0)
    s.pblock("t7", par, 3, X0, X1, cz, 0)

def iter_units(s, J, u2, lo3=None, x3=None, dl3=None):
    nb = s.nb; B = s.blk; n = len(s.mf)
    X0, X1, A_, B_ = sets_for(J & 1)
    p0s = s.first[("P", 1, 0)] - 1
    s.unit(A_, X1, True, range(nb), lambda b: s.done[("t0", b)] + LAT, lambda b: s.first[("P", 1, b)] - 2, dl3 or B["t3"][0] - 2,
           lo3 if lo3 is not None else B["t0"][1] - 2, p0s - 1, after=u2, **(x3 or dict(add_lo=p0s, add_hi=B["t3"][0] - 4)))
    u0 = s.unit(B_, B_, False, range(nb), lambda b: s.done[("t1", b)] + LAT, lambda b: B["t4"][0] + 4, None,
                p0s + 2, B["t4"][0] - 2)
    s.unit(A_, B_, True, range(nb), lambda b: s.done[("t3", b)] + LAT, lambda b: B["t6"][0] - 2, B["t6"][0] - 2,
           B["t4"][0], B["t6"][0] - 4, add_lo=B["t4"][0] + 4, add_hi=B["t6"][0] - 3, after=u0)
    s.unit(A_, A_, False, range(SPLIT[nb]), lambda b: s.done[("t6", b)] + LAT, lambda b: n - 1, None,
           B["t7"][0], n - 3)

def make_mid(nb, J, name, nxt_name, special=False):
    par = J & 1
    X0, X1, A_, B_ = sets_for(par)
    kb = 4 * ((J + 1) & 1)
    s = Seg(nb, name)
    iter_blocks(s, J, False, split=(1 if nb == 3 else 0))
    n = len(s.mf); B = s.blk
    u2 = s.unit(X1, X1, False, list(range(SPLIT[nb], nb)), lambda b: 0, lambda b: B["t0"][1] + 2, None, 0, B["t0"][1] - 4)
    iter_units(s, J, u2)
    npair = len(s.pairs)
    nxt = first_pairs_of_iter(nb, J + 1, nxt_name)
    need2 = units_of(J + 1, 0) + (units_of(J + 1, 1) if special else [])
    s.reads(nxt, barrier_before={16: [vwait(units_of(J, 1), 0), barrier()], npair: [vwait(need2, 0), barrier()]})
    g1 = s.bar_gap[16]; g2 = s.bar_gap[npair]
    npar = (J + 1) & 1
    if opt.spread:
        gg = [dma_V(npar, 1), dma_V(npar, 2), dma_V(npar, 3), dma_K(4 * ((J + 2) & 1) + 3)]
        k0 = 3
        c0 = s.chain(sum(gg[:k0], []), 2, B["t0"][1] + 2, dl=g1 - 1)
        c0 = s.chain(sum(gg[k0:], []), B["t2"][0] + 10, g1 - 2, dl=g1 - 1, first_dep=c0[-1])
        lo1, hi1 = (g1 + 14, g2 - 4) if nb == 4 else (B["t4"][0] + 14, g2 + 2)
    else:
        g0 = dma_V(npar, 1) + dma_V(npar, 2) + dma_V(npar, 3) + dma_K(4 * ((J + 2) & 1) + 3)
        c0 = s.chain(g0, 0, B["t0"][1] + 2, dl=g1 - 1)
        lo1, hi1 = B["t5"][0] + 8, B["t7"][0]
    if special:
        s.chain(dma_Q(s_mR3, s_qn[1], ("R3",)), g1 + 2, B["t6"][1], e=g1 + 1, dl=g2 - 1, first_dep=c0[-1])
    else:
        tq = (lambda: touch(sQ, s_tq, 2048)) if (opt.touch & 1 and J & 1) else (lambda: [])
        tk = (lambda: touch(sK, s_tk, 12 << (opt.tsh + 6))) if (opt.touch & 2 and opt.twhen >> (J & 1) & 1) else (lambda: [])
        tv = (lambda: touch(sV, s_tv, 12 << (opt.tsh + 6))) if (opt.touch & 2 and opt.twhen >> (J & 1) & 1) else (lambda: [])
        xq = [[], []]
        if not J & 1:
            for hi in range(2):
                xq[hi] = [set_m0(s_xm, hi * 4096)] + [dma(voQb if hi else voQa, sQ, s_xq, Rl * 2048, ("X",), opt.qmod) for Rl in range(2)]
            xq[1] += [sop(f"s_add_u32 {s_xm}, {s_xm}, 1024", wr=[s_xm]), sop(f"s_add_u32 {s_xq}, {s_xq}, 256", wr=[s_xq])]
            if opt.xlate:
                d = dma_Q(s_mX, s_xm, ("X",))
                xq = [d[:6], d[6:] + [sop(f"s_mov_b32 {s_xm}, {s_xq}", wr=[s_xm])]]
        tc = touch(sC, s_cs, 0)[:1] if (opt.cwarm and (J & 1 or opt.cwarm > 1)) else []
        g1l = tc + dma_K(kb + 0, wrap=(J & 1) == 1) + tq() + xq[0] + dma_K(kb + 1) + tq() + tk() + xq[1] + dma_K(kb + 2) + tq() + tv() + dma_V(par, 0)
        last = s.chain(g1l, lo1, hi1, e=g1 + 1, dl=g2 - 1, first_dep=c0[-1])[-1]
        if J & 1:
            s.chain([sop(f"s_sub_u32 {s_cnt}, {s_cnt}, 1"), sop(f"s_cmp_eq_u32 {s_cnt}, 0")], n - 6, n - 3, first_dep=last)
    return s

def touch(srd, sp, step):
    i = Ins(f"buffer_load_dword {vt0}, {vt1}, {srd}, {sp} offen", "vmem", rd=[vt1, srd, sp], wr=[vt0]); i.vm = True
    return [i, sop(f"s_add_u32 {sp}, {sp}, {step}", rd=[sp], wr=[sp])]

RL = lambda b: SET(0)[b]
WA = lambda k: wa0 if k == 0 else SET(0)[4 + k]
RA = SET(0)[8]
LT = SET(0)[9]
VS1 = SET(0)[10]
HOIST = {4: (4, 10), 3: (3, 4)}
PK = lambda c, k: O(k >> 1, 4 * c + (k & 1))

def butterfly(x, op, mid, out):
    q = []
    def add(i, deps): q.append((i, deps)); return len(q) - 1
    a = add(perm("v_permlane16_swap_b32", x[0], x[1]), [])
    b = add(perm("v_permlane16_swap_b32", x[2], x[3]), [])
    a = add(valu(op, x[0], x[0], x[1]), [a])
    b = add(valu(op, x[2], x[2], x[3]), [b])
    c = add(perm("v_permlane32_swap_b32", x[0], x[2]), [a, b])
    for i in mid(out[0], x[0], x[2]): c = add(i, [c])
    c = add(valu("v_mov_b32", out[2], out[0]), [c])
    c = add(perm("v_permlane32_swap_b32", out[0], out[2]), [c])
    a = add(valu("v_mov_b32", out[1], out[0]), [c])
    b = add(valu("v_mov_b32", out[3], out[2]), [c])
    a = add(perm("v_permlane16_swap_b32", out[0], out[1]), [a])
    b = add(perm("v_permlane16_swap_b32", out[2], out[3]), [b])
    return q

def nodes_of(q, first_deps, e, dl, ideal, step):
    nds = []
    for k, (i, deps) in enumerate(q):
        isp = i.op.startswith("v_permlane")
        d = [(nds[j], 2 if isp else (1 if nds[j].ins.kind == "trans" else 0)) for j in deps] if deps else [(x, 2 if isp else 0) for x in first_deps]
        nds.append(Node(i, e=e, dl=dl, deps=d, ideal=ideal + step * k))
    return nds

def make_last(nb, name):
    J = 7; par = 1
    X0, X1, A_, B_ = sets_for(par)
    s = Seg(nb, name)
    s.qblock("t0", 0, A_, False, 0)
    s.pgen("t2", par, [[(c, d, 0), (c, d + 1, 0)] for c in (0, 1) for d in (0, 2)], X0, X1, False)
    s.pgen("t4", par, [[(c, d, 1), (c, d + 1, 1)] for c in (0, 1) for d in (0, 2)], X0, X1, False)
    s.pblock("t5", par, 2, X0, X1, False, 0)
    s.pblock("t7", par, 3, X0, X1, False, 0)
    n = len(s.mf); B = s.blk
    u2 = s.unit(X1, X1, False, list(range(SPLIT[nb], nb)), lambda b: 0, lambda b: B["t0"][1] + 2, None, 0, B["t0"][1] - 4)
    k1 = B["t4"][0]
    u3 = s.unit(A_, X1, True, range(nb), lambda b: s.done[("t0", b)] + LAT, lambda b: s.first[("P", 1, b)] - 2, B["t5"][0] + 6,
                B["t0"][1] - 2, k1 - 1, add_lo=k1, add_hi=B["t5"][0], after=u2)
    npair = len(s.pairs)
    t0e = B["t0"][1]
    def qchain(b, base, unit, tmp, lo, hi, pre, dl=None, first_dep=None):
        ins = pre + q_reads(b, base, unit, tmp)
        nds = s.chain(ins, lo, hi, dl=dl, first_dep=first_dep)
        for k, nd in enumerate(nds[len(pre) + 1:]):
            nd.e = max(nd.e, s.pairs[k // 2][1] + 1)
        return nds
    if opt.r3epi:
        s.reads([[]], barrier_before={npair: [waitcnt(None, 0), barrier()]})
        g2 = s.bar_gap[npair]; gR = B["t4"][0] + 8
        c2 = s.chain(dma_Q(s_mR2, s_qn[2], ("R2",)), 0, B["t0"][1] + 4 if opt.q3early else B["t2"][1] - 4)
        r0 = qchain(0, s_mX, ("X",), vt0, t0e - 10, t0e + 10, [vwait([("X",)])])
        r1 = qchain(1, s_mR3, ("R3",), vt1, B["t4"][0] + 6, B["t5"][0] + 6, [vwait([("R3",)])], dl=g2 - 5, first_dep=r0[-1])
        c3 = s.chain([mark_wait_lds(("q", 0, 7))] + dma_Q(s_mX, s_qn[3], ("X",)), *((t0e + 16, B["t4"][1]) if opt.q3early else (B["t4"][0], g2)))
        c3[0].deps = [(r0[-1], 5), (c2[-1], 1)]
        c4 = s.chain([sop(f"s_sub_u32 {s_vptr}, {s_knext}, 32768", wr=[s_vptr])], 2, 4)
    else:
        kR = 12
        s.reads([[]], barrier_before={kR + 2: [waitcnt(None, 0), barrier()], npair: [waitcnt(None, 0), barrier()]})
        gR = s.bar_gap[kR + 2]; g2 = s.bar_gap[npair]
        c2 = s.chain(dma_Q(s_mR2, s_qn[2], ("R2",)), 0, B["t0"][1] - 2)
        r0 = qchain(0, s_mX, ("X",), vt0, t0e - 10, t0e + 10, [vwait([("X",)])], dl=gR - 5)
        r1 = qchain(1, s_mR3, ("R3",), vt1, t0e + 10, gR - 8, [vwait([("R3",)])], dl=gR - 5, first_dep=r0[-1])
        c3 = s.chain([mark_wait_lds(("q", 0, 7))] + dma_Q(s_mX, s_qn[3], ("X",)), t0e + 16, gR + 4)
        c3[0].deps = [(r0[-1], 5), (c2[-1], 1)]
        refill = [sop(f"s_sub_u32 {s_vptr}, {s_knext}, 32768", wr=[s_vptr])] + dma_K(4) + dma_K(5) + dma_K(6) + dma_V(0, 0)
        c4 = s.chain(refill, gR + 4, g2 - 2, e=gR + 1, first_dep=c3[-1])
        r2 = s.chain([vwait([("R2",)])] + q_reads(2, s_mR2, ("R2",), vt0), g2 - 16, g2 - 6, dl=g2 - 4, first_dep=r1[-1])
        nca = opt.ca7
        grp = [dma_V(0, 1), dma_V(0, 2), dma_V(0, 3), dma_K(7)]
        c5 = s.chain(sum(grp[:nca], []), g2 + 1, n - 2, e=g2 + 1, first_dep=c4[-1]) if nca else c4
    ok = [sop(f"s_add_u32 {s_ok[k]}, {s_ocur}, {k * 4096}", wr=[s_ok[k]]) if (k < 2 * nb and not opt.nostore) else sop(f"s_mov_b32 {s_ok[k]}, {OOB:#x}", wr=[s_ok[k]]) for k in range(8)]
    k0 = s.chain(ok, 4, t0e + 8)
    pbg = pass_begin()
    q3w = [i for i in pbg if i.text.startswith(f"s_mov_b32 {s_qn[3]},")][0]
    if opt.r3epi:
        pbg.remove(q3w); pbg.append(sop(f"s_mov_b32 {s_qn[3]}, {s_tab[3]}"))
        k1 = s.chain(pbg, gR + 6, n - 3, first_dep=k0[-1])
        k1[0].deps += [(c2[-1], 1), (c4[0], 1)]; k1[-1].deps += [(c3[-1], 1)]
    else:
        k1 = s.chain(pbg, gR + 6, n - 4, first_dep=k0[-1])
        k1[0].deps += [(c3[-1], 1), (c4[0], 1)]
    q = butterfly([lsum(b) for b in range(4)], "v_add_f32", lambda d, x, y: [valu("v_add_f32", LT, x, y), valu("v_rcp_f32", d, LT)], [RL(b) for b in range(4)])
    red = nodes_of(q, [x for b in range(nb) for x in u3[b][2:]], 0, 10**9, B["t5"][0] + 2, 1.5)
    rl_done = red[-2:]
    ad = [valu("v_xor_b32", WA(k), 16 * k, wa0) for k in (1, 2, 3)]
    ad += [valu("v_mbcnt_lo_u32_b32", RA, -1, 0), valu("v_mbcnt_hi_u32_b32", RA, -1, RA), valu("v_lshl_add_u32", RA, RA, 3, s_mOS),
           valu("v_xor_b32", VS1, 32, RA)]
    prev = None
    for k, i in enumerate(ad):
        nd = Node(i, deps=[(prev, 0)] if prev else [], ideal=B["t0"][1] - 12 + k); red.append(nd); prev = nd
    s.nodes += red
    t7s = B["t7"][0]
    order, acct = epi_order(nb)
    na, nc = HOIST[nb]
    hs = g2 - opt.hback
    for k in range(na * 4):
        t_ = acct[k // 4]; i = k % 4
        s.nodes.append(Node(acc_read(TMP(k // 4)[i], O(t_[2], 4 * t_[0] + t_[1])[i]), e=t7s + LAT + 1, ideal=g2 + 1 + k * 0.6,
                            deps=[(x, 0) for b in range(nb) for x in u3[b]]))
    for k in range(nc):
        c, dbl, b = order[k]; o = O(b, 4 * c + dbl)
        ms = [Node(valu("v_mul_f32", o[i], o[i], RL(b)), e=B["t5"][0] + LAT, ideal=hs + 1 + na * 2.4 + 3 * k + 0.5 * i, deps=[(x, 0) for x in rl_done]) for i in range(4)]
        c0 = Node(valu("v_cvt_pk_bf16_f32", o[0], o[0], o[1]), ideal=hs + 3 + na * 2.4 + 3 * k, deps=[(ms[0], 0), (ms[1], 0)])
        c1 = Node(valu("v_cvt_pk_bf16_f32", o[1], o[2], o[3]), ideal=hs + 3.5 + na * 2.4 + 3 * k, deps=[(ms[2], 0), (ms[3], 0), (c0, 0)])
        s.nodes += ms + [c0, c1]
    return s

def make_final(nb, name, mid=False):
    par = 1
    X0, X1, A_, B_ = sets_for(par)
    s = Seg(nb, name)
    s.qblock("t0", 0, A_, False, 0)
    s.pgen("t2", par, [[(0, 0, 0), (0, 1, 0)], [(0, 2, 0), (0, 3, 0)], [(0, 0, 1), (0, 1, 1)], [(0, 2, 1), (0, 3, 1)]], X0, X1, False)
    s.pblock("t4", par, 1, X0, X1, False, 0)
    s.pblock("t5", par, 2, X0, X1, False, 0)
    s.pblock("t7", par, 3, X0, X1, False, 0)
    n = len(s.mf); B = s.blk
    blk = [B["t2"], B["t4"], B["t5"], B["t7"]]
    u2 = s.unit(X1, X1, False, list(range(SPLIT[nb], nb)), lambda b: 0, lambda b: B["t0"][1] + 2, None, 0, B["t0"][1] - 8)
    k1 = s.first[("P", 1, 0)]
    u3 = s.unit(A_, X1, True, range(nb), lambda b: s.done[("t0", b)] + LAT, lambda b: s.first[("P", 1, b)] - 2, blk[0][1] - 1,
                B["t0"][1] - 2, k1 - 1, add_lo=k1, add_hi=k1 + 2 * nb, after=u2)
    s.reads([])
    k0 = s.chain([sop(f"s_add_u32 {s_ok[k]}, {s_ocur}, {k * 4096}", wr=[s_ok[k]]) for k in range(2 * nb)], 2, B["t0"][1])
    q = butterfly([lsum(b) for b in range(4)], "v_add_f32", lambda d, x, y: [valu("v_add_f32", LT, x, y), valu("v_rcp_f32", d, LT)], [RL(b) for b in range(4)])
    fo = opt.finoff
    cut = [min(blk[c][1] - 1 + (fo if c == 0 else opt.finoff2), n - 1) for c in range(4)]
    red = nodes_of(q, [x for b in range(nb) for x in u3[b][2:]], 0, cut[0], k1 + 2 * nb, 0.5)
    if mid:
        W0 = SET(0)[4]
        WAq = lambda c, k: SET(0)[4 + k]
        ad = [sop(f"s_sub_u32 {s_t0}, {s_mR3}, {s_mOS}", wr=[s_t0]), sop(f"s_sub_u32 {s_t1}, {s_mR2}, {s_mR3}", wr=[s_t1]),
              valu("v_add_u32", W0, s_t0, wa0)] + [valu("v_xor_b32", WA(k), 16 * k, W0) for k in (1, 2, 3)]
        ad += [valu("v_mbcnt_lo_u32_b32", RA, -1, 0), valu("v_mbcnt_hi_u32_b32", RA, -1, RA), valu("v_lshl_add_u32", RA, RA, 3, s_mR3),
               valu("v_xor_b32", VS1, 32, RA), valu("v_add_u32", SET(0)[11], s_t1, RA), valu("v_add_u32", SET(0)[12], s_t1, VS1)]
        RAq = lambda c, k: (SET(0)[11 + (k & 1)] if c >= 2 else (VS1 if k & 1 else RA))
        XO = 0; UN = lambda c: ("R2",) if c >= 2 else ("R3",)
    else:
        WAq = lambda c, k: WA(k)
        ad = [valu("v_xor_b32", WA(k), 16 * k, wa0) for k in (1, 2, 3)]
        ad += [valu("v_mbcnt_lo_u32_b32", RA, -1, 0), valu("v_mbcnt_hi_u32_b32", RA, -1, RA), valu("v_lshl_add_u32", RA, RA, 3, s_mOS),
               valu("v_xor_b32", VS1, 32, RA)]
        RAq = lambda c, k: VS1 if k & 1 else RA
        XO = (XB - vslot_addr(1, 0)) // 512; UN = lambda c: ("X",)
    prev = None
    for k, i in enumerate(ad):
        nd = Node(i, deps=[(prev, 1 if prev.ins.kind == "salu" else 0)] if prev else [], ideal=8 + k, dl=cut[0]); red.append(nd); prev = nd
    s.nodes += red
    pre = {c: [] for c in range(4)}; post = {c: [] for c in range(4)}
    if mid:
        t0e = B["t0"][1]
        def qchain(b, base, unit, tmp, lo, hi, dl, first_dep=None):
            nds = s.chain([vwait([unit])] + q_reads(b, base, unit, tmp), lo, hi, dl=dl, first_dep=first_dep)
            for k, nd in enumerate(nds[2:]): nd.e = max(nd.e, s.pairs[k // 2][1] + 1)
            return nds
        c2 = s.chain(dma_Q(s_mR2, s_qn[2], ("R2",)), 0, t0e - 2)
        r0 = qchain(0, s_mX, ("X",), vt0, t0e - 12, t0e + 2, t0e + 4)
        r1 = qchain(1, s_mR3, ("R3",), vt1, cut[0] - 14, cut[0] - 2, cut[0] - 1, first_dep=r0[-1])
        c3 = s.chain([mark_wait_lds(("q", 0, 7))] + dma_Q(s_mX, s_qn[3], ("X",)), t0e + 8, cut[0] - 2, dl=cut[0])
        c3[0].deps = [(r0[-1], 5), (c2[-1], 1)]
        c4 = s.chain([sop(f"s_sub_u32 {s_vptr}, {s_knext}, 32768", wr=[s_vptr])], 2, 4)
        pbg = pass_begin()
        q3w = [i for i in pbg if i.text.startswith(f"s_mov_b32 {s_qn[3]},")][0]
        pbg.remove(q3w); pbg.append(sop(f"s_mov_b32 {s_qn[3]}, {s_tab[3]}"))
        k1_ = s.chain(pbg, cut[0], n - 3, first_dep=k0[-1])
        k1_[0].deps += [(c2[-1], 1), (c4[0], 1)]; k1_[-1].deps += [(c3[-1], 1)]
        pre[2] = [vwait([("R2",)])] + q_reads(2, s_mR2, ("R2",), vt0) + [valu("v_add_u32", WAq(2, k), s_t1, WAq(2, k)) for k in range(4)]
        pre[2] += [mark_wait_lds(("o", 1, 2 * nb - 1)), barrier()]
        refill = [dma_K(4), dma_K(5), dma_K(6), dma_V(0, 0)]
        post[2] = refill[0]
        s.chain(refill[1] + refill[2], cut[2] + 2, n - 4, e=cut[2] + 1, first_dep=c3[-1])
        pre[3] = refill[3] + head_reads()
        post[3] = [vwait([("X",)])] + q_reads(3, s_mX, ("X",), vt1)
    temps = [V(48 + 4 * k, 4) for k in range(4)] + [O(b, db) for db in (2, 3) for b in range(4)] + [V(16 + 4 * k, 4) for k in range(4)]
    chunks = {}
    fst = (lambda c, k: store(c, k, nb)) if mid else (lambda c, k: fstore(c, k, nb))
    for c in range(4):
        tiles = [(dbl, b) for dbl in range(4) for b in range(nb)]
        src = {}; ti = 0
        for t_ in tiles:
            o = O(t_[1], 4 * c + t_[0])
            if o.k == 'a': src[t_] = temps[ti]; ti += 1
            else: src[t_] = o
        lo = cut[c - 1] + 1 if c else None
        early = set()
        if c:
            pn = None
            span = cut[c] - lo
            for k in range(2 * nb):
                ra = RAq(c - 1, k)
                i = Ins(f"ds_read2st64_b64 {PK(c - 1, k)}, {ra} offset0:{XO + k} offset1:{XO + 8 + k}", "ds", rd=[ra], wr=[PK(c - 1, k)], tag=("o", c - 1, k))
                i.lds_rd = UN(c - 1); i.private = True
                pn = Node(i, e=lo, dl=cut[c] - 1, ideal=lo + k, deps=[(pn, 0)] if pn else []); s.nodes.append(pn)
                st = fst(c - 1, k); st.need = [("o", c - 1, k)]
                s.nodes.append(Node(st, e=lo, dl=cut[c] - 1, ideal=lo + 6 + k * (span - 8) / (2 * nb), deps=[(pn, 5)]))
            budget = (opt.midb if mid else opt.finb) * nb // 4
            for t_ in tiles:
                o = O(t_[1], 4 * c + t_[0]); d = src[t_]
                e = max(lo, blk[c][0] + (t_[0] * nb + t_[1]) * 2 + 1 + LAT + 1)
                if o.k == 'a':
                    if budget < 4 or e > cut[c] - 3: break
                    s.nodes += [Node(acc_read(d[i], o[i]), e=e, dl=cut[c] - 1, ideal=e + i * 0.5) for i in range(4)]
                    early.add((t_, 'a')); budget -= 4
                else:
                    if budget < 6 or e > cut[c] - 4: break
                    ms = [Node(valu("v_mul_f32", o[i], o[i], RL(t_[1])), e=e, dl=cut[c] - 1, ideal=e + i * 0.5) for i in range(4)]
                    c0 = Node(valu("v_cvt_pk_bf16_f32", o[0], o[0], o[1]), dl=cut[c] - 1, ideal=e + 2, deps=[(ms[0], 0), (ms[1], 0)])
                    c1 = Node(valu("v_cvt_pk_bf16_f32", o[1], o[2], o[3]), dl=cut[c] - 1, ideal=e + 2.5, deps=[(ms[2], 0), (ms[3], 0), (c0, 0)])
                    s.nodes += ms + [c0, c1]; early.add((t_, 'c')); budget -= 6
        r = list(pre[c])
        if c == 0:
            c_ = valu("v_cmp_ngt_f32", "vcc", hex(L_LIMIT), LT); c_.wr.add(('s', 'vcc')); r.append(c_)
        held = None; wq = []
        for j, t_ in enumerate(tiles):
            dbl, b = t_; o = O(b, 4 * c + dbl); t4 = src[t_]
            if o.k == 'a' and (t_, 'a') not in early: r += [acc_read(t4[i], o[i]) for i in range(4)]
            if (t_, 'c') not in early:
                rlp = V(RL(b).n & ~1, 2); sel = RL(b).n & 1
                for h in range(2):
                    r.append(valu("v_pk_mul_f32", t4.sub(2 * h, 2), t4.sub(2 * h, 2), rlp, mods=f"op_sel:[0,{sel}] op_sel_hi:[1,{sel}]"))
                r += [valu("v_cvt_pk_bf16_f32", t4[0], t4[0], t4[1]), valu("v_cvt_pk_bf16_f32", t4[1], t4[2], t4[3])]
            if wq: r.append(wq.pop(0))
            if b % 2 == 0 and b + 1 < nb: held = t4
            else:
                if held is not None:
                    w = Ins(f"ds_write2st64_b64 {WAq(c, dbl)}, {held.sub(0, 2)}, {t4.sub(0, 2)} offset0:{XO + (b - 1) * 2} offset1:{XO + b * 2}", "ds",
                            rd=[WAq(c, dbl), held.sub(0, 2), t4.sub(0, 2)], tag=("w", c, j)); held = None
                else:
                    w = ds_write("ds_write_b64", WAq(c, dbl), t4.sub(0, 2), XO * 512 + b * 1024, tag=("w", c, j))
                w.lds_pw = UN(c); wq.append(w)
            if c == 0 and j == 2:
                r += [raw(f"s_cbranch_vccz L_noflag{nb}{'m' if mid else 'g'}"), sop(f"s_bitset1_b32 {s_flags}, {s_pass}"), label(f"L_noflag{nb}{'m' if mid else 'g'}")]
        r += wq
        if c < 3: r += post[c]
        if c == 3:
            for k in range(2 * nb):
                ra = RAq(3, k)
                i = Ins(f"ds_read2st64_b64 {PK(3, k)}, {ra} offset0:{XO + k} offset1:{XO + 8 + k}", "ds", rd=[ra], wr=[PK(3, k)], tag=("o", 3, k))
                i.lds_rd = UN(3); i.private = True; r.append(i)
            r += post[3]
            for k in range(2 * nb):
                st = fst(3, k); st.need = [("o", 3, k)]; r.append(st)
        chunks[cut[c]] = r
    s.chunks = chunks
    return s

def fstore(c, k, nb):
    st = store(c, k, nb)
    st.text = st.text[:st.text.index("offset:")] + f"offset:{c * 128} {opt.fmod}"
    return st

QORD = (0, 3, 2, 1)
TMP = lambda k: V(48 + 4 * (k % 12), 4)
def epi_order(nb):
    order = [(c, dbl, b) for c in QORD for dbl in ((2, 3, 0, 1) if c == 2 else range(4)) for b in range(nb)]
    if opt.pairmaj: order.sort(key=lambda t: (QORD.index(t[0]), t[2] // 2))
    return order, [t_ for t_ in order if O(t_[2], 4 * t_[0] + t_[1]).k == 'a']

def mark_wait_lds(tag):
    i = raw("s_nop 0", "nop"); i.need = [tag]; i.is_marker = True
    return i

def make_head(nb, name, nxt_name):
    X0, X1, A_, B_ = sets_for(1)
    s = Seg(nb, name)
    s.qblock("h0", 1, B_, True, 0)
    s.qblock("h1", 2, X0, True, 0)
    s.qblock("h2", 3, A_, False, 0)
    iter_blocks(s, 0, True, split=2)
    n = len(s.mf); B = s.blk
    tmp = SET(X1)
    pre = {}; nmc = {}
    part = []; emax = 0
    dlm = B["h2"][0] - 2
    for b in range(4):
        if b < nb:
            x = Sx(B_, b); e = s.done[("h0", b)] + LAT; emax = max(emax, e)
            n0 = Node(valu("v_max3_f32", tmp[b], x[0], x[1], x[2]), e=e, dl=dlm, ideal=e)
            n1 = Node(valu("v_max_f32", tmp[b], tmp[b], x[3]), e=e, dl=dlm, ideal=e + 0.5, deps=[(n0, 0)])
            s.nodes += [n0, n1]; part.append(n1)
        z = Node(valu("v_mov_b32", lsum(b), 0), e=0, dl=B["h0"][1], ideal=2 + b)
        s.nodes.append(z); pre[b] = [z]
    q = butterfly([tmp[b] for b in range(4)], "v_max_f32", lambda d, x, y: [valu("v_min_f32", d, Neg(x), Neg(y))], [Ct(b)[0] for b in range(4)])
    bf = nodes_of(q, part, 0, dlm, emax, 0.5)
    s.nodes += bf
    for b in range(nb):
        nmc[b] = tmp[8 + b]
        src = bf[-2] if b < 2 else bf[-1]
        n0 = Node(valu("v_mul_f32", nmc[b], s_c, Ct(b)[0]), dl=dlm, ideal=emax + 8 + b * 0.3, deps=[(src, 0)])
        s.nodes += [n0] + [Node(valu("v_mov_b32", Ct(b)[i], Ct(b)[0]), dl=dlm + 2 * b, ideal=emax + 12 + 2 * b + i * 0.5, deps=[(src, 0)]) for i in (1, 2, 3)]
        pre[b].append(n0)
    t0s = B["t0"][0]; t1s = B["t1"][0]
    assert opt.defer == 0
    t7s = B["t7"][0]; a0 = B["t6"][0] - 6; aw = (t7s - 4 - a0) / 4
    X = lambda k: (dict(ext=lambda b: O(b, 12 + k), add_lo=a0 + k * aw, add_hi=a0 + (k + 1) * aw) if k < opt.hext else {})
    dla = lambda k, d: (t7s - 3) if k < opt.hext else d
    w = opt.hwin
    u0 = s.unit(B_, B_, False, range(nb), lambda b: s.done[("h0", b)] + LAT, lambda b: t1s - 4, dla(0, None), B["h1"][0] + 10, B["h2"][0] + w[0], pre=pre, fma=nmc, **X(0))
    u1 = s.unit(X0, B_, True, range(nb), lambda b: s.done[("h1", b)] + LAT, lambda b: t1s - 2, dla(1, t1s - 2), B["h2"][0] + w[0], t0s + w[1], pre=pre, after=u0, fma=nmc, **X(1))
    for nd in s.nodes:
        if nd.ins.text.startswith("v_fma_f32"): nd.dl = min(nd.dl, t0s - 2); nd.ideal = min(nd.ideal, t0s - 6)
    u2 = s.unit(A_, A_, False, range(nb), lambda b: s.done[("h2", b)] + LAT, lambda b: s.first[("P", 1, b)] - 4, dla(2, None), t0s + w[1], t1s + w[2], **X(2))
    iter_units(s, 0, u2, lo3=t1s + w[2], x3=X(3), dl3=dla(3, None))
    prev = None
    for k, i in enumerate([valu("v_mbcnt_lo_u32_b32", vt1, -1, 0), valu("v_mbcnt_hi_u32_b32", vt1, -1, vt1), valu("v_lshlrev_b32", vt1, opt.tsh, vt1)]):
        nd = Node(i, deps=[(prev, 0)] if prev else [], ideal=8 + k); s.nodes.append(nd); prev = nd
    npair = len(s.pairs)
    nxt = first_pairs_of_iter(nb, 1, nxt_name)
    def tb(k, l):
        if opt.diag != 3: return l
        return [raw(f"s_memtime s[{90+4*k}:{91+4*k}]")] + l + [raw(f"s_memtime s[{92+4*k}:{93+4*k}]")]
    s.reads(nxt, barrier_before={12: tb(0, [vwait(units_of(0, 0), 0), barrier()]), 28: tb(1, [vwait(units_of(0, 1), 0), barrier()]),
                                 npair: tb(2, [vwait(units_of(1, 0), 0), barrier()])})
    g0 = s.bar_gap[12]; g1 = s.bar_gap[28]; g2 = s.bar_gap[npair]
    grp = [dma_V(0, 1), dma_V(0, 2), dma_V(0, 3), dma_K(7)][opt.ca7:] + [dma_K(0), dma_V(1, 0), dma_V(1, 1), dma_V(1, 2), dma_V(1, 3)]
    ca = s.chain(sum(grp[:opt.hca], []), 0, B["h0"][1] + 2 + (opt.hca - 4) * 2 * nb, dl=g1 - 30)
    rest = grp[opt.hca:]
    nearly = max(0, 6 - opt.hca)
    cb = s.chain(sum(rest[:nearly], []) + dma_K(1) + dma_K(2), B["t1"][0], B["t4"][0], e=g0 + 1, first_dep=ca[-1])
    cc = s.chain(sum(rest[nearly:], []) + dma_K(3), B["t4"][0] + 8, B["t6"][0] + 4, first_dep=cb[-1])
    cd = s.chain(dma_K(4) + dma_K(5) + dma_K(6) + dma_V(0, 0), B["t6"][0] + 6, n - 4, e=g1 + 1, first_dep=cc[-1])
    prev = None
    nd_ = opt.defer
    sts = [(c, k) for c in range(4 - nd_, 4) for k in range(8)]
    lo, hi = 4, s.first[("O", 3)] - 6
    for j, (c, k) in enumerate(sts):
        nd = Node(store(c, k), dl=s.first[("O", c)] - 3, ideal=min(lo + (hi - lo) * j / len(sts), s.first[("O", c)] - 6 - 4 * (7 - k)), deps=[(prev, 2)] if prev else [])
        s.nodes.append(nd); prev = nd
    head = [i for p in s.pairs[:3] for i in p[2]]
    return s, head

def perm(op, a, b):
    i = valu(op, a, b, extra_rd=[a], extra_wr=[b]); i.cost = 8
    return i

def acc_read(d, a):
    i = Ins(f"v_accvgpr_read_b32 {d}, {a}", "acc", rd=[a], wr=[d]); return i

def make_epi(nb, final):
    r = []
    c_ = valu("v_cmp_ngt_f32", "vcc", hex(L_LIMIT), LT); c_.wr.add(('s', 'vcc')); r.append(c_)
    tag = f"{nb}{'f' if final else ''}"
    flagl = [raw(f"s_cbranch_vccz L_noflag{tag}"), sop(f"s_bitset1_b32 {s_flags}, {s_pass}"), label(f"L_noflag{tag}")]
    def fin_only(st):
        if final:
            st.text = st.text[:st.text.index("offset:")] + f"offset:{st.quarter * 128} {opt.fmod}"
            return [st]
        return [st] if st.quarter < 4 - opt.defer else []
    def cluster(ins): return [] if final else ins
    order, acct = epi_order(nb)
    slot = {t_: k for k, t_ in enumerate(acct)}
    accq = [(t_, i) for t_ in acct for i in range(4)]
    nacc = 4 * HOIST[nb][0]; done_acc = 0
    rdq = []; stq = []; oth = []; wq = []
    dq = [dma_K(4), dma_K(5), dma_K(6), dma_V(0, 0)] if opt.r3epi else []
    d0 = 6 + len(order) * opt.dq0 // 100
    dstep = (len(order) * 3 // 4) // 4
    held = None
    for j, (c, dbl, b) in enumerate(order):
        o = O(b, 4 * c + dbl)
        want = min(len(acct) * 4, -(-(j + 1) * len(acct) * 4 // (order.index(acct[-1]) - 2)))
        while nacc < len(acct) * 4 and (nacc < want or (o.k == 'a' and nacc < 4 * (slot[(c, dbl, b)] + 1))):
            if nacc // 4 >= done_acc + 12:
                assert not (o.k == 'a' and nacc < 4 * (slot[(c, dbl, b)] + 1)), "out of temps"
                break
            t_, i = accq[nacc]; nacc += 1
            r.append(acc_read(TMP(slot[t_])[i], O(t_[2], 4 * t_[0] + t_[1])[i]))
        t4 = TMP(slot[(c, dbl, b)]) if o.k == 'a' else o
        rlp = V(RL(b).n & ~1, 2); sel = RL(b).n & 1
        if j >= HOIST[nb][1]:
            for h in range(2):
                r.append(valu("v_pk_mul_f32", t4.sub(2 * h, 2), t4.sub(2 * h, 2), rlp, mods=f"op_sel:[0,{sel}] op_sel_hi:[1,{sel}]"))
            r += [valu("v_cvt_pk_bf16_f32", t4[0], t4[0], t4[1]), valu("v_cvt_pk_bf16_f32", t4[1], t4[2], t4[3])]
        if b % 2 == 0 and b + 1 < nb:
            held = (t4, o.k == 'a')
        else:
            na = int(o.k == 'a')
            if held is not None:
                w = Ins(f"ds_write2st64_b64 {WA(dbl)}, {held[0].sub(0, 2)}, {t4.sub(0, 2)} offset0:{(b - 1) * 2} offset1:{b * 2}", "ds",
                        rd=[WA(dbl), held[0].sub(0, 2), t4.sub(0, 2)], tag=("w", j))
                na += held[1]; held = None
            else:
                w = ds_write("ds_write_b64", WA(dbl), t4.sub(0, 2), b * 1024, tag=("w", j))
            w.lds_pw = ("OS",); wq.append((w, na))
        if j == 4: r += flagl
        if dq and j >= d0 and (j - d0) % dstep == 0: r += cluster(dq.pop(0))
        last = (j + 1) % (4 * nb) == 0; pos = j // (4 * nb)
        def back(c, ks):
            for k in ks:
                ra = VS1 if k & 1 else RA
                i = Ins(f"ds_read2st64_b64 {PK(c, k)}, {ra} offset0:{k} offset1:{8 + k}", "ds", rd=[ra], wr=[PK(c, k)], tag=("o", c, k))
                i.lds_rd = ("OS",); i.private = True; i.pr = k // 4
                rdq.append(i)
        if opt.pairmaj:
            if wq:
                while any(x.pr == b // 2 for x in rdq): r.append(rdq.pop(0))
                w, na = wq.pop(0); r.append(w); done_acc += na
            elif rdq: r.append(rdq.pop(0))
            if nb == 3 and b == 2 and rdq: r.append(rdq.pop(0))
            uend = j + 1 == len(order) or order[j + 1][0] != c or order[j + 1][2] // 2 != b // 2
            if stq and j % 2 == 0 and stq[0][0] <= j: r += fin_only(stq.pop(0)[1])
            elif oth and j % 4 == 1: r += cluster(oth.pop(0))
            if uend:
                ks = [k for k in range(2 * nb) if k // 4 == b // 2]
                back(c, ks)
                for n_, k in enumerate(ks):
                    st = store(c, k, nb); st.need = [("o", c, k)]; stq.append((j + 4 + 2 * n_, st))
        else:
            for _ in range(opt.epi_rd):
                if rdq: r.append(rdq.pop(0))
            if not rdq or last:
                r += rdq; rdq.clear()
                k_ = 0
                while wq and (k_ < 1 or last):
                    w, na = wq.pop(0); r.append(w); done_acc += na; k_ += 1
            if stq and j % 2 == 1 and stq[0][0] <= j: r += fin_only(stq.pop(0)[1])
            elif oth and j % 2 == 0 and not rdq:
                r += cluster(oth.pop(0))
            if last:
                back(c, range(2 * nb))
                for k in range(2 * nb):
                    st = store(c, k, nb); st.need = [("o", c, k if (k < 3 or pos == 3) else 2 * nb - 1)]; stq.append((j + 3 + k // opt.epi_rd, st))
        if last:
            def halves(l): return [l[:len(l) - 4], l[len(l) - 4:]]
            if opt.r3epi:
                if pos == 0: oth += [head_reads()]
                if pos == 1: oth += halves([vwait([("R2",)])] + q_reads(2, s_mR2, ("R2",), vt0))
                if pos == 2: oth += halves([vwait([("X",)])] + q_reads(3, s_mX, ("X",), vt1))
            else:
                if c == 0: oth += halves([vwait([("X",)])] + q_reads(3, s_mX, ("X",), vt0))
                if c == 1: oth += [head_reads()]
    assert not oth and not dq
    r += rdq
    for x in stq: r += fin_only(x[1])
    return r

def head_reads():
    s = Seg(4, "hd"); s.qblock("h0", 1, 0, True, 0)
    return [i for p in s.pairs[:3] for i in p[2]]

def store(c, k, nb=None):
    data = PK(c, k)
    mod = {3: opt.omod3, 4: opt.omod4}.get(nb) or opt.omod
    vo = vsto
    i = Ins(f"buffer_store_dwordx4 {data}, {vo}, {sO}, {s_ok[k]} offen offset:{c * 128} {mod}".rstrip(), "vmem", rd=[data, vo, sO, s_ok[k]])
    i.wide_store = True; i.data = data.set(); i.vm = True; i.quarter = c; i.k = k
    return i

def lin(seq, pre=()):
    out = []; q = list(pre)
    for i in seq:
        if i.need:
            idx = -1
            for t in i.need:
                if t in q: idx = max(idx, len(q) - 1 - q[::-1].index(t))
            if idx >= 0:
                n = min(len(q) - 1 - idx, 15)
                out.append(waitcnt(None, n)); q = q[idx + 1:]
        if getattr(i, "lgw", None) is not None: q = q[len(q) - i.lgw:] if i.lgw else []
        if getattr(i, "is_marker", False): continue
        if i.kind == "ds" and not getattr(i, "optional", False): q.append(i.tag)
        out.append(i)
    return out, q

def flat(gaps, pre, nxt_need):
    out = []; q = list(pre)
    def wf(need):
        nonlocal q
        idx = -1
        for t in need:
            if t in q: idx = max(idx, len(q) - 1 - q[::-1].index(t))
        if idx < 0: return
        n = min(len(q) - 1 - idx, 15)
        out.append(waitcnt(None, n)); q = q[idx + 1:]
    for g, (m, sc, oth) in enumerate(gaps):
        wf(m.need)
        out.append(m)
        has_l0 = any(getattr(i, "lgw", None) == 0 for i in sc)
        if not has_l0:
            wf(gaps[g + 1][0].need if g + 1 < len(gaps) else nxt_need)
        for i in sc + oth:
            if i.need: wf(i.need)
            if getattr(i, "lgw", None) == 0: q = []
            if getattr(i, "is_marker", False): continue
            if i.kind == "ds": q.append(i.tag)
            out.append(i)
    return out, q

E32 = ("v_mul_f32", "v_add_f32", "v_exp_f32", "v_mov_b32", "v_max_f32", "v_xor_b32", "v_rcp_f32")
def isize(i):
    t = i.text
    if i.kind == "label": return 0
    op = t.split()[0]
    if op.startswith("s_"):
        import re
        m = re.findall(r"[ ,](0x[0-9a-f]+|-?\d+)\s*$", t)
        if op in ("s_waitcnt", "s_barrier", "s_nop") or op.startswith("s_cbranch") or op == "s_branch": return 4
        if m and not (-16 <= int(m[0], 0) <= 64): return 8
        return 4
    if op in E32 or op in ("v_add_u32", "v_lshlrev_b32", "v_permlane16_swap_b32", "v_permlane32_swap_b32"):
        return 8 if "-v" in t else 4
    return 8

def align8(seq, start=0):
    pos = start; cand = None
    for i in seq:
        if i.kind == "mfma":
            if pos % 8 and cand is not None:
                op = cand.text.split()[0]; cand.text = cand.text.replace(op, op + "_e64", 1); pos += 4
            cand = None
        sz = isize(i)
        if sz == 4 and i.text.split()[0] in E32 and cand is None: cand = i
        pos += sz
    return pos

def strip_clusters(seq, lab="L_sk"):
    out = []; skip = False
    for i in seq:
        if i.kind == "label" and i.text.startswith(lab): skip = False
        if not skip: out.append(i)
        if i.text.startswith("s_cbranch") and i.text.split()[1].startswith(lab): skip = True
    return out

def label(n): return Ins(n + ":", "label", states=0, cost=0)

def stamp(k):
    if not opt.diag: return []
    return [raw(f"s_memrealtime {s_ts}"), raw("s_memtime s[66:67]"), raw("s_waitcnt lgkmcnt(0)", "wait0"), raw(f"s_mov_b32 m0, {s_tsp}"), raw("s_nop 1"),
            raw(f"v_writelane_b32 v0, {s_ts.sub(0)}, m0"), raw(f"s_add_u32 m0, m0, 32"), raw("s_nop 1"), raw("v_writelane_b32 v0, s66, m0"),
            raw(f"s_add_u32 {s_tsp}, {s_tsp}, 1")]

def retag(q, old, new):
    return [tuple(new if x == old else x for x in t) if len(t) > 1 else t for t in q]

def variant(nb):
    P = {}
    hd, head = make_head(nb, "hd", "i1")
    i1 = make_mid(nb, 1, "i1", "i2")
    i2 = make_mid(nb, 2, "i2", "i1")
    i6 = make_mid(nb, 6, "i2", "i1", special=True)
    i7 = make_last(nb, "i1")
    fin = make_final(nb, "i1")
    mid = make_final(nb, "i1", mid=True)
    SG = dict(hd=hd, i1=i1, i2=i2, i6=i6, i7=i7, fin=fin, mid=mid)
    G = {k: s.build() for k, s in SG.items()}
    for g, ch in fin.chunks.items(): G["fin"][g][2].extend(ch)
    for g, ch in mid.chunks.items(): G["mid"][g][2].extend(ch)
    print(f"nb={nb} overflow cycles:", {k: s.over for k, s in SG.items()}, file=sys.stderr)
    P["hd"], q0 = flat(G["hd"], [], G["i1"][0][0].need)
    P["i1"], q1 = flat(G["i1"], q0, G["i2"][0][0].need)
    P["i2"], q2 = flat(G["i2"], q1, G["i1"][0][0].need)
    assert q2 == q0, (q0, q2)
    for k in ("i1", "i2"):
        if opt.abl & 1024: P[k] = [i for i in P[k] if not i.text.startswith("v_add_f32")]
        if opt.abl & 2048: P[k] = [i for i in P[k] if not (i.kind == "ds" and "b128" in i.text)]
        if opt.abl & 4096: P[k] = [i for i in P[k] if not (i.kind == "ds" and "tr_b16" in i.text)]
        if opt.abl & 16: P[k] = [i for i in P[k] if not getattr(i, "bar", False)]
        if opt.abl & 32: P[k] = [i for i in P[k] if i.kind != "vmem"]
        if opt.abl & 64: P[k] = [i for i in P[k] if i.kind not in ("valu", "trans")]
        if opt.abl & 128: P[k] = [i for i in P[k] if i.kind != "ds"]
        if opt.abl & 256: P[k] = [i for i in P[k] if not (i.kind == "salu" and "m0" in i.text)]
    P["i6"], q = flat(G["i6"], q1, G["i7"][0][0].need)
    P["fin"], _ = flat(G["fin"], q, [])
    P["mid"], _ = flat(G["mid"], q, [])
    P["i7"], q = flat(G["i7"], q, [])
    P["epf"], _ = lin(make_epi(nb, True), q)
    ep = make_epi(nb, False)
    if opt.abl & 8192: ep = [i for i in ep if not getattr(i, "dma_wr", None)]
    if opt.abl & 16384: ep = [i for i in ep if getattr(i, "vmneed", None) is None]
    if opt.abl & 1: ep = [i for i in ep if not i.text.startswith("buffer_store")]
    if opt.abl & 2: ep = [i for i in ep if getattr(i, "lds_rd", None) != ("OS",)]
    if opt.abl & 4: ep = [i for i in ep if not i.text.startswith("ds_write")]
    if opt.abl & 8: ep = [i for i in ep if i.kind != "acc"]
    P["epi"], q = lin(ep, q)
    return P

def resolve_vm(traces):
    ws = set()
    for tr in traces:
        n = 0; last = {}
        for i in tr:
            if getattr(i, "vmneed", None) is not None:
                idx = max([last.get(u, -1) for u in i.vmneed])
                if idx >= 0: i.vmauto = min(i.vmauto, n - 1 - idx)
                ws.add(i)
            if getattr(i, "vm", False):
                u = getattr(i, "dma_wr", None)
                if u: last[u] = n
                n += 1
    for i in ws:
        i.vmw = i.vmauto
        i.text = f"s_waitcnt vmcnt({i.vmw})" + (f" lgkmcnt({i.lgw})" if i.lgw is not None else "")

def check_trace(trace):
    vm = []
    lg = []
    state = {}
    epoch = 0
    ALIAS = {("R2",): [("V", 0, 1), ("V", 0, 2), ("V", 0, 3), ("K", 7)], ("OS",): [("V", 1, c) for c in range(4)],
             ("R3",): [("K", 4), ("K", 5), ("K", 6), ("V", 0, 0)]}
    def phys(u): return ALIAS.get(u, [u])
    wr_land = {}; wr_pend = {}; rd_done = {}; rd_pend = {}; owner = {}
    errs = []
    cur_m0 = None
    for k, i in enumerate(trace):
        if M0 in i.wr: cur_m0 = i
        if getattr(i, "m0ref", None) is not None and cur_m0 is not i.m0ref: errs.append((k, "stale M0", i.text))
        if getattr(i, "vmw", None) is not None:
            while len(vm) > i.vmw:
                o = vm.pop(0)
                u = getattr(o, "dma_wr", None)
                if u: wr_pend[u] -= 1; wr_land[u] = epoch
        if getattr(i, "lgw", None) is not None or i.kind == "wait0":
            n = 0 if i.kind == "wait0" else i.lgw
            while len(lg) > n:
                o = lg.pop(0)
                u = getattr(o, "lds_rd", None) or getattr(o, "lds_pw", None)
                if u: rd_pend[u] -= 1; rd_done[u] = epoch
        if getattr(i, "bar", False): epoch += 1
        u = getattr(i, "lds_rd", None)
        if u:
            if True:
                if wr_pend.get(u, 0) > 0: errs.append((k, "read of unit with pending DMA", u, i.text))
                elif not getattr(i, "private", False) and wr_land.get(u, 10**9) >= epoch: errs.append((k, "read without barrier after landing", u, i.text))
            for p in phys(u):
                if owner.get(p) != u: errs.append((k, "read of unit owned by", owner.get(p), u, i.text))
        w = getattr(i, "dma_wr", None) or getattr(i, "lds_pw", None)
        if w:
            for p in phys(w):
                o = owner.get(p)
                if o is not None:
                    priv = (o == w and w in (("X",), ("R2",), ("R3",), ("OS",)))
                    if rd_pend.get(o, 0) > 0 and not (getattr(i, "lds_pw", None) and o == w):
                        errs.append((k, "write over unit with reads in flight", o, w, i.text))
                    if not priv and rd_done.get(o, -1) >= epoch: errs.append((k, "write without barrier after reads", o, w, i.text))
                    if o != w and wr_pend.get(o, 0) > 0: errs.append((k, "write over pending dma", o, w))
                    if o != w and wr_land.get(o, -1) >= epoch: errs.append((k, "write over unit landed w/o barrier", o, w))
                owner[p] = w
        if i.kind == "ds":
            lg.append(i)
            u = getattr(i, "lds_rd", None) or getattr(i, "lds_pw", None)
            if u: rd_pend[u] = rd_pend.get(u, 0) + 1
        if getattr(i, "vm", False):
            vm.append(i)
            u = getattr(i, "dma_wr", None)
            if u: wr_pend[u] = wr_pend.get(u, 0) + 1
            assert len(vm) <= 63, "vmcnt overflow"
    return errs

def cross_check(traces):
    ALIAS = {("R2",): [("V", 0, 1), ("V", 0, 2), ("V", 0, 3), ("K", 7)], ("OS",): [("V", 1, c) for c in range(4)],
             ("R3",): [("K", 4), ("K", 5), ("K", 6), ("V", 0, 0)]}
    allg = []
    for tr in traces:
        gens = {}; epoch = 0; vm = []; lg = []
        for i in tr:
            if getattr(i, "vmw", None) is not None:
                while len(vm) > i.vmw:
                    for g in vm.pop(0): g["land"] = epoch
            if getattr(i, "lgw", None) is not None or i.kind == "wait0":
                n = 0 if i.kind == "wait0" else i.lgw
                while len(lg) > n:
                    for g in lg.pop(0): g["done"] = epoch
            if getattr(i, "bar", False): epoch += 1
            w = getattr(i, "dma_wr", None) or getattr(i, "lds_pw", None); r = getattr(i, "lds_rd", None)
            touched = []
            u = w or r
            if u and u != ("X",):
                for p in ALIAS.get(u, [u]):
                    l = gens.setdefault(p, [])
                    if w and (not l or l[-1]["own"] != u or (l[-1]["rd0"] is not None and u not in ALIAS)):
                        l.append(dict(own=u, wr0=epoch, land=10**9, rd0=None, done=-1))
                    g = l[-1]
                    if r and g["rd0"] is None: g["rd0"] = epoch
                    if r or getattr(i, "lds_pw", None): g["done"] = 10**9
                    if getattr(i, "dma_wr", None): g["land"] = 10**9
                    touched.append(g)
            if i.kind == "ds": lg.append(touched)
            if getattr(i, "vm", False): vm.append(touched)
        allg.append((gens, epoch))
    assert len(set(e for _, e in allg)) == 1, "barrier counts differ"
    for p in allg[0][0]:
        n = len(allg[0][0][p])
        assert all(len(g[p]) == n and [x["own"] for x in g[p]] == [x["own"] for x in allg[0][0][p]] for g, _ in allg), ("generations differ", p)
        for k in range(n):
            G = [g[p][k] for g, _ in allg]
            if G[0]["own"] not in ALIAS and G[0]["rd0"] is not None:
                assert max(x["land"] for x in G) < min(x["rd0"] for x in G), ("cross RAW", p, k, G)
            if k + 1 < n:
                N = [g[p][k + 1] for g, _ in allg]
                assert max(x["done"] for x in G) < min(x["wr0"] for x in N), ("cross WAR", p, k, G, N)
                if G[0]["own"] != N[0]["own"] and any(x["land"] != 10**9 or x["rd0"] is not None for x in G) and G[0]["own"] != ("OS",):
                    assert max(x["land"] for x in G) < min(x["wr0"] for x in N), ("cross WAW", p, k, G, N)

THR = {}
HELP = {}
RANK = {}
HELPN = {}
def schedule_table(mode):
    tab = {}
    if mode == "simple":
        for wg in range(256):
            x = wg & 7; idx = wg >> 3
            head = x * 16 + (idx >> 1); base = 41 * (idx & 1)
            tab[wg] = [(head, base, 12), (head, base + 12, 16), (head, base + 28, 13)]
    elif mode == "share":
        for x in range(8):
            rounds = [[], [], []]
            def add(r, h, start, sizes):
                for sz in sizes:
                    rounds[r].append((x * 16 + h, start, sz)); start += sz
                return start
            for h in range(10):
                st = add(0, h, 0, [12, 12, 12]); add(1 if h < 6 else 2, h, st, [15, 15, 16])
            st = add(0, 10, 0, [12, 12]); st = add(1, 10, st, [15, 14]); add(2, 10, st, [15, 14])
            for h in range(11, 16):
                add(1 if h < 13 else 2, h, 0, [14, 14, 14, 14, 13, 13])
            assert all(len(r) == 32 for r in rounds), [len(r) for r in rounds]
            for idx in range(32):
                tab[idx * 8 + x] = [rounds[0][idx], rounds[1][idx], rounds[2][idx]]
    elif mode.startswith("g6"):
        orders = {"A": (0, 1, 2), "B": (1, 0, 2), "C": (2, 1, 0), "D": (2, 0, 1)}
        pat = mode.split("_")[1]
        rot = pat.startswith("x"); pat = pat.lstrip("x")
        for x in range(8):
            for g in range(6):
                o = orders[pat[(g + (x if rot else 0)) % len(pat)]] if not pat.startswith("X") else orders["ABC"[x % 3]]
                if g < 5:
                    ha, hb, hc = [x * 16 + 3 * g + i for i in range(3)]
                    r0 = [(ha, 0, 12), (ha, 12, 12), (ha, 24, 12), (hb, 0, 12), (hb, 12, 12), (hb, 24, 12)]
                    r1 = [(ha, 36, 15), (ha, 51, 15), (ha, 66, 16), (hb, 36, 15), (hb, 51, 15), (hb, 66, 16)]
                    r2 = [(hc, 0, 14), (hc, 14, 14), (hc, 28, 13), (hc, 41, 14), (hc, 55, 14), (hc, 69, 13)]
                    n = 6
                else:
                    h = x * 16 + 15
                    r0 = [(h, 0, 12), (h, 12, 12)]; r1 = [(h, 24, 15), (h, 39, 15)]; r2 = [(h, 54, 14), (h, 68, 14)]
                    n = 2
                R = [r0, r1, r2]
                for i in range(n):
                    tab[(6 * g + i) * 8 + x] = [R[o[0]][i], R[o[1]][i], R[o[2]][i]]
    elif mode.startswith("t3"):
        _, lo, so, th = mode.split("_")
        th = [int(x, 16) for x in th.split(".")]
        alt = mode.startswith("t3a")
        if alt:
            LS = [i for i in range(32) if not i & 4]; SS = [i for i in range(32) if i & 4]
        else:
            LS = [6 * g + i for g in range(5) for i in range(3)] + [30]; SS = [6 * g + 3 + i for g in range(5) for i in range(3)] + [31]
        for x in range(8):
            H = [x * 16 + i for i in range(16)]
            T3 = lambda h: [(h, 0, 12), (h, 12, 12), (h, 24, 12)]
            T4 = lambda h: [(h, 36, 16), (h, 52, 16), (h, 68, 14)]
            for g in range(5):
                a, b, c = H[3 * g], H[3 * g + 1], H[3 * g + 2]
                Lt = {"3": T3(a), "4": T4(a), "5": T4(b)[::-1]}
                St = {"3": T3(c), "2": T3(b), "4": T4(c)}
                lord = lo.split(".")[(g + x) % len(lo.split("."))]; sord = so.split(".")[(g + x) % len(so.split("."))]
                for i in range(3):
                    wl = LS[3 * g + i] * 8 + x; wsn = SS[3 * g + i] * 8 + x
                    tab[wl] = [Lt[k][i] for k in lord]
                    tab[wsn] = [St[k][i] for k in sord]
                    THR[wsn] = th[(g + x) % len(th)]
                    RANK[wl] = i; RANK[wsn] = i
                    h0, st0, _n = Lt[lord[0]][i]
                    HELP[wsn] = (h0 * SQ + st0 * 16) * 512
            h = H[15]
            tab[LS[15] * 8 + x] = [(h, 0, 12), (h, 36, 16), (h, 68, 14)]
            if alt:
                tab[SS[15] * 8 + x] = [(h, 52, 16), (h, 12, 12), (h, 24, 12)]
                THR[SS[15] * 8 + x] = th[0]; HELP[SS[15] * 8 + x] = h * SQ * 512
            else:
                tab[SS[15] * 8 + x] = [(h, 12, 12), (h, 52, 16), (h, 24, 12)]
    elif mode.startswith("t6"):
        _, lo, th = mode.split("_")
        th = [int(x, 16) for x in th.split(".")]
        LS = [i for i in range(32) if not i & 4]; SS = [i for i in range(32) if i & 4]
        for x in range(8):
            T3 = lambda h: [(h, 0, 12), (h, 12, 12), (h, 24, 12)]
            T4 = lambda h, r: [[(h, 36, 16), (h, 52, 16), (h, 68, 14)][(i + r) % 3] for i in range(3)]
            for g in range(5):
                pat = lo.split(".")[(g + x) % len(lo.split("."))]
                for i in range(3):
                    wl = LS[3 * g + i] * 8 + x; wsn = SS[3 * g + i] * 8 + x
                    tab[wl] = []; tab[wsn] = []
                    for r in range(3):
                        h = x * 16 + 3 * g + r
                        a, b = T3(h)[i], T4(h, r)[i]
                        tab[wl].append(a if pat[r] == "3" else b); tab[wsn].append(b if pat[r] == "3" else a)
                    THR[wsn] = th[(g + x) % len(th)]; RANK[wl] = i; RANK[wsn] = i
                    HELP[wsn] = (tab[wl][0][0] * SQ + tab[wl][0][1] * 16) * 512; HELPN[wsn] = tab[wl][0][2]
            h = x * 16 + 15; pat = lo.split(".")[0]
            i3 = [(h, 0, 12), (h, 12, 12), (h, 24, 12)]; i4 = [(h, 36, 16), (h, 52, 16), (h, 68, 14)]
            wl = LS[15] * 8 + x; wsn = SS[15] * 8 + x
            tab[wl] = [(i3 if pat[r] == "3" else i4)[r] for r in range(3)]
            tab[wsn] = [(i4 if pat[r] == "3" else i3)[r] for r in range(3)]
            THR[wsn] = th[0]; HELP[wsn] = (h * SQ + tab[wl][0][1] * 16) * 512; HELPN[wsn] = tab[wl][0][2]
    cov = {}
    for wg, l in tab.items():
        for h, st, n in l:
            assert 12 <= n <= 16
            for b in range(st, st + n):
                assert (h, b) not in cov; cov[(h, b)] = wg
    assert len(cov) == 128 * 82
    return tab

def setup_code():
    L = []; A = L.append
    if opt.diag or opt.padto: A("s_memrealtime s[100:101]")
    A("s_cmp_ge_u32 s2, 256")
    A("s_cbranch_scc1 L_exit")
    A("s_load_dwordx4 s[72:75], s[0:1], 0")
    A("s_load_dwordx4 s[76:79], s[0:1], 16")
    if opt.diag: A("s_load_dwordx2 s[64:65], s[0:1], 40")
    A("s_getpc_b64 s[4:5]")
    A("L_pc:")
    if opt.warm:
        A(f"s_mov_b32 {sC[0]}, s4\ns_mov_b32 {sC[1]}, s5\ns_mov_b32 {sC[2]}, L_warm_end-L_pc\ns_mov_b32 {sC[3]}, 0x20000\nv_lshlrev_b32 v16, 7, v0")
        for k in range(opt.warm): A(f"s_mov_b32 s3, {k * 32768}\nbuffer_load_dword v{17 + k}, v16, {sC}, s3 offen")
    A("s_lshl_b32 s3, s2, 6")
    A("s_add_u32 s3, s3, L_table-L_pc")
    A("s_add_u32 s46, s4, s3")
    A("s_addc_u32 s47, s5, 0")
    A("s_load_dwordx16 s[80:95], s[46:47], 0")
    A(f"v_readfirstlane_b32 {s_wave}, v0")
    A("v_and_b32 v10, 63, v0")
    A(f"s_lshr_b32 {s_wave}, {s_wave}, 6")
    A("v_and_b32 v11, 15, v10")
    A("v_lshrrev_b32 v14, 4, v10")
    A("v_lshrrev_b32 v15, 2, v11\nv_lshlrev_b32 v1, 11, v15\nv_and_b32 v6, 3, v11\nv_lshl_add_u32 v1, v6, 6, v1")
    A("v_lshrrev_b32 v6, 3, v11\nv_lshlrev_b32 v6, 1, v6\nv_xor_b32 v6, v6, v14\nv_lshl_add_u32 v1, v6, 4, v1")
    A("v_lshrrev_b32 v6, 1, v14\nv_lshlrev_b32 v2, 10, v6\nv_and_b32 v7, 1, v14\nv_lshl_add_u32 v6, v7, 2, v15\nv_lshl_add_u32 v2, v6, 6, v2")
    A(f"v_and_b32 v8, 3, v10\nv_lshl_add_u32 v2, v8, 3, v2\nv_lshl_add_u32 v2, v7, 5, v2\nv_add_u32 v2, {VB}, v2\nv_xor_b32 v3, 32, v2")
    A("v_lshlrev_b32 v12, 9, v15\nv_lshl_add_u32 v12, v14, 6, v12\nv_lshl_add_u32 v12, v8, 4, v12\nv_xor_b32 v13, 32, v12\nv_add_u32 v13, 4096, v13")
    A(f"s_lshl_b32 {s_mK}, {s_wave}, 11\ns_lshr_b32 s3, {s_wave}, 1\ns_lshl_b32 s3, s3, 5")
    A(f"v_xor_b32 v4, s3, v12\nv_add_u32 v4, {s_mK}, v4")
    A("v_lshrrev_b32 v6, 2, v10\nv_and_b32 v6, 7, v6\nv_lshlrev_b32 v5, 9, v6\nv_lshrrev_b32 v6, 2, v6\nv_lshlrev_b32 v6, 1, v6\nv_xor_b32 v6, v6, v8")
    A(f"v_lshl_add_u32 v5, v6, 4, v5\nv_lshrrev_b32 v6, 5, v10\nv_lshl_add_u32 v5, v6, 6, v5\ns_lshl_b32 s3, {s_wave}, 13\nv_add_u32 v5, s3, v5")
    A(f"s_add_u32 {s_mX}, s3, {XB}")
    A(f"s_add_u32 {s_mOS}, s3, {vslot_addr(1, 0)}")
    A(f"s_add_u32 {s_mR2}, s3, {vslot_addr(0, 0)}")
    A(f"s_cmp_eq_u32 {s_wave}, 0\ns_cselect_b32 {s_mR2}, {kslot_addr(7)}, {s_mR2}")
    A(f"s_add_u32 {s_mR3}, s3, {kslot_addr(4)}")
    A(f"s_cmp_eq_u32 {s_wave}, 3\ns_cselect_b32 {s_mR3}, {vslot_addr(0, 0)}, {s_mR3}")
    A("v_lshrrev_b32 v6, 1, v14\nv_lshrrev_b32 v9, 1, v11\nv_xor_b32 v6, v6, v9\nv_lshlrev_b32 v6, 3, v6\nv_lshl_add_u32 v6, v7, 12, v6")
    A(f"v_lshl_add_u32 v6, v11, 6, v6\nv_add_u32 v15, {s_mOS}, v6")
    A("v_lshrrev_b32 v6, 3, v10\nv_and_b32 v9, 7, v10\nv_xor_b32 v9, v9, v14\nv_lshlrev_b32 v9, 4, v9\nv_lshl_add_u32 v14, v6, 9, v9")
    A(f"s_mov_b32 {s_c}, {C_SCALE:#x}\ns_mov_b32 {s_pass}, 0\ns_mov_b32 {s_flags}, 0")
    if opt.diag: A(f"s_mov_b32 {s_tsp}, 1\nv_mov_b32 v0, 0")
    A("s_waitcnt lgkmcnt(0)")
    if opt.diag:
        A("v_writelane_b32 v0, s100, 0")
        A("s_getreg_b32 s100, hwreg(HW_REG_HW_ID)\ns_getreg_b32 s101, hwreg(HW_REG_XCC_ID)\ns_nop 1\nv_writelane_b32 v0, s100, 30\nv_writelane_b32 v0, s101, 31")
    for srd, p, n in ((sQ, 72, QBYTES), (sK, 74, KBYTES), (sV, 76, KBYTES), (sO, 78, QBYTES)):
        A(f"s_mov_b32 {srd[0]}, s{p}\ns_mov_b32 {srd[1]}, s{p+1}\ns_mov_b32 {srd[2]}, {n}\ns_mov_b32 {srd[3]}, 0x20000")
    for k in range(8): A(f"s_mov_b32 {s_ok[k]}, {OOB:#x}")
    for p in range(3):
        A(f"s_sub_u32 s3, s{80+3*p+2}, 12")
        A(f"s_min_u32 s4, s3, {s_wave}")
        A(f"s_mul_i32 s5, {s_wave}, 3\ns_add_u32 s4, s4, s5\ns_lshl_b32 s4, s4, 13")
        A(f"s_add_u32 {s_tab[4*p]}, s{80+3*p}, s4")
        A(f"s_mov_b32 {s_tab[4*p+1]}, s{80+3*p+1}")
        A(f"s_add_u32 {s_tab[4*p+3]}, {s_tab[4*p]}, 24576")
        A(f"s_cmp_lt_u32 {s_wave}, s3\ns_cselect_b32 {s_tab[4*p+2]}, 4, 3\ns_cselect_b32 {s_tab[4*p+3]}, {s_tab[4*p+3]}, {OOB:#x}")
    A(f"s_mov_b32 {s_tab[12]}, {OOB:#x}\ns_mov_b32 {s_tab[13]}, {OOB:#x}\ns_mov_b32 {s_tab[14]}, 0\ns_mov_b32 {s_tab[15]}, {OOB:#x}")
    A(f"s_lshl_b32 s3, s91, 2\ns_add_u32 s3, s3, {s_wave}\ns_lshl_b32 {s_str}, s3, {opt.tsh + 6}")
    A(f"s_cmp_eq_u32 s90, {OOB:#x}\ns_cselect_b32 {s_str}, 0x40000000, {s_str}")
    A(f"s_lshr_b32 s3, s2, 1\ns_and_b32 s3, s3, 28\ns_add_u32 s3, s3, {s_wave}\ns_lshl_b32 {s_cs}, s3, {opt.tsh + 6}\ns_and_b32 {s_cs}, {s_cs}, 0xffff")
    for p in range(3):
        for k in range(3): A(f"s_mov_b32 s{80+3*p+k}, {s_tab[4*p+k]}")
    return L

def startup():
    P = {}
    r = [sop(f"s_mov_b32 {s_kptr}, {s_tab[1]}", wr=[s_kptr]), sop(f"s_sub_u32 {s_vptr}, {s_tab[1]}, 32768", wr=[s_vptr])]
    r += dma_K(1) + dma_K(2) + dma_K(3)
    r += [sop(f"s_add_u32 {s_t0}, {s_tab[0]}, 8192", wr=[s_t0]), sop(f"s_add_u32 {s_t1}, {s_tab[0]}, 16384", wr=[s_t1]),
          sop(f"s_add_u32 {s_t2}, {s_tab[0]}, 24576", wr=[s_t2])]
    r += [sop(f"s_cmp_eq_u32 s90, {OOB:#x}"), raw("s_cbranch_scc1 L_nohelp")]
    P["a"] = r
    late = lambda: dma_K(4) + dma_K(5) + dma_K(6) + dma_V(0, 0)
    r = late() if opt.late else []
    r += [sop("s_sub_u32 s4, s92, 12"), sop(f"s_add_u32 s5, {s_wave}, 1"), sop("s_min_u32 s4, s4, s5"), sop("s_mul_i32 s5, s5, 3"),
          sop("s_add_u32 s4, s4, s5"), sop("s_lshl_b32 s3, s4, 13"), sop(f"s_add_u32 s3, s3, s90"), sop(f"s_sub_u32 s3, s3, {1024 * opt.help_n}"),
          valu("v_lshlrev_b32", vt1, 4, vt0)]
    hl = []
    for k in range(opt.help_n):
        if k and k % 4 == 0: hl.append(sop("s_add_u32 s3, s3, 4096"))
        i = Ins(f"buffer_load_dwordx4 {V(96 + 4 * k, 4)}, {vt1}, {sQ}, s3 offen offset:{(k % 4) * 1024} {opt.hmod}", "vmem", rd=[vt1]); i.vm = True
        hl.append(i)
    if opt.late == 2: r = r[-9:] + hl + r[:-9]
    else: r += hl
    P["h"] = r
    r = []; k = 0
    for grp in (dma_Q(s_mX, s_tab[0], ("X",)), dma_Q(s_mR2, s_t0, ("R2",)), dma_Q(s_mOS, s_t1, ("OS",))):
        for hf in (grp[:6], grp[6:]):
            r += hf
            if not opt.sched.endswith("_0"):
                r += [sop(f"s_bitcmp1_b32 s89, {k}"), raw(f"s_cbranch_scc0 L_th{k}"), raw("s_waitcnt vmcnt(0)"), label(f"L_th{k}")]
            k += 1
    if not opt.late: r += late()
    st5 = (lambda: stamp(9)) if opt.diag == 5 else (lambda: [])
    r += st5() + [vwait([("X",)])] + st5() + q_reads(0, s_mX, ("X",), vt0)
    r += [sop(f"s_cmp_lt_u32 {s_tab[2]}, 4"), raw("s_cbranch_scc1 L_noq3")]
    P["q"] = r
    P["r2"] = [waitcnt(None, 0)] + dma_Q(s_mX, s_t2, ("X",))
    P["r3"] = [vwait([("R2",)])] + st5() + q_reads(1, s_mR2, ("R2",), vt1) + [barrier()] + head_reads()
    P["lc"] = [sop(f"s_cmp_lg_u32 s90, {OOB:#x}"), raw("s_cbranch_scc1 L_nolate")] if opt.late else []
    P["l"] = (late() + [vwait([("OS",)]), raw("s_branch L_osok")]) if opt.late else []
    P["w"] = [vwait([("OS",)])]
    P["r4"] = st5() + q_reads(2, s_mOS, ("OS",), vt0) + pass_begin()
    P["r4"] += [sop(f"s_cmp_lt_u32 {s_nbn}, 4"), raw("s_cbranch_scc1 L_first")]
    P["r5"] = [vwait([("X",)])] + q_reads(3, s_mX, ("X",), vt1)
    return {k: fix_hazards(lin(v)[0]) for k, v in P.items()}

def pass_begin():
    T2 = lambda k: S(s_tab.n + k, 2)
    r = [sop(f"s_mov_b32 {s_ocur}, {s_tab[0]}"),
         sop(f"s_add_u32 {s_kend}, {s_tab[1]}, 262144"),
         sop(f"s_mov_b32 {s_nbn}, {s_tab[2]}"),
         sop(f"s_mov_b32 {s_knext}, {s_tab[5]}"),
         sop(f"s_mov_b32 {s_xq}, {s_tab[4]}"),
         sop(f"s_add_u32 {s_qn[1]}, {s_tab[4]}, 8192"), sop(f"s_add_u32 {s_qn[2]}, {s_tab[4]}, 16384"),
         sop(f"s_mov_b32 {s_qn[3]}, {s_tab[7]}")]
    for k in range(0, 12, 2): r.append(sop(f"s_mov_b64 {T2(k)}, {T2(k + 4)}"))
    r += [sop(f"s_mov_b32 {s_cnt}, 3"), sop(f"s_mov_b32 {s_tq}, {s_qn[2]}"),
          sop(f"s_add_u32 {s_tv}, {s_str}, {s_knext}"), sop(f"s_add_u32 {s_tk}, {s_tv}, {opt.tkoff}"),
          sop(f"s_mov_b32 {s_xm}, {OOB:#x}") if opt.xlate else sop(f"s_mov_b32 {s_xm}, {s_mX}")]
    return r

def repair_code():
    rQ = lambda k: V(96 + 4 * k, 4); rK = lambda k: V(128 + 4 * k, 4); rS = lambda k: V(32 + 4 * k, 4)
    rO = lambda k: V(160 + 4 * k, 4); rV = lambda k: V(224 + 4 * k, 4)
    m, l, ta, tb, al, nm = V(6), V(7), V(8), V(9), V(10), V(11)
    fa, va0, va1, vop, so = V(48), V(49), V(50), V(51), V(52)
    sp, sb, sj, sq, sk, sv = S(90), S(91), S(92), S(93), S(94), S(95)
    def gload(d, srd, soff, imm):
        return Ins(f"buffer_load_dwordx4 {d}, {fa}, {srd}, {soff} offen offset:{imm}", "vmem", rd=[fa, srd, soff], wr=[d])
    W = lambda t: raw(t, "wait")
    out = []
    pre = [W("s_waitcnt vmcnt(0) lgkmcnt(0)"),
           valu("v_mbcnt_lo_u32_b32", ta, -1, 0), valu("v_mbcnt_hi_u32_b32", ta, -1, ta),
           valu("v_and_b32", tb, 15, ta), valu("v_lshrrev_b32", ta, 4, ta),
           valu("v_lshlrev_b32", fa, 9, tb), valu("v_lshl_add_u32", so, ta, 3, fa), valu("v_lshl_add_u32", fa, ta, 4, fa),
           sop(f"s_sub_u32 {s_t0}, {s_mX}, {VB}"), valu("v_add_u32", va0, s_t0, vaddr0), valu("v_add_u32", va1, s_t0, vaddr1),
           sop(f"s_lshl_b32 {s_t0}, {s_wave}, 13"), valu("v_subrev_u32", vop, s_t0, voV),
           sop(f"s_mov_b32 {sp}, 0")]
    out += fix_hazards(pre)
    out += [label("L_rp"), sop(f"s_bitcmp1_b32 {s_flags}, {sp}"), raw("s_cbranch_scc0 L_rp_next"), sop(f"s_mov_b32 {sb}, 0"), label("L_rb")]
    blk = [sop(f"s_lshl_b32 {sq}, {sb}, 13"), sop(f"s_add_u32 {sq}, {sq}, s80")]
    blk += [gload(rQ(k), sQ, sq, k * 64) for k in range(8)]
    blk += [valu("v_mov_b32", m, "0xff800000"), valu("v_mov_b32", l, 0)]
    blk += [valu("v_mov_b32", V(160 + k), 0) for k in range(64)]
    blk += [sop(f"s_mov_b32 {sk}, s81"), sop(f"s_mov_b32 {sv}, s81"), sop(f"s_mov_b32 {sj}, 0")]
    out += fix_hazards(blk) + [label("L_rj")]
    it = []
    for kvb in range(4):
        it += [gload(rK(k), sK, sk, k * 64) for k in range(8)] + [sop(f"s_add_u32 {sk}, {sk}, 8192"), W("s_waitcnt vmcnt(0)")]
        it += [mfma(rS(kvb), rK(k), rQ(k), rS(kvb) if k else 0) for k in range(8)]
    xs = [V(32 + k) for k in range(16)]
    it += [valu("v_max3_f32", ta, m, xs[0], xs[1])]
    it += [valu("v_max3_f32", ta, ta, xs[k], xs[k + 1]) for k in range(2, 16, 2)]
    it += [valu("v_mov_b32", tb, ta), perm("v_permlane16_swap_b32", ta, tb), valu("v_max_f32", ta, ta, tb),
           valu("v_mov_b32", tb, ta), perm("v_permlane32_swap_b32", ta, tb), valu("v_max_f32", ta, ta, tb),
           valu("v_sub_f32", al, m, ta), valu("v_mul_f32", al, s_c, al), valu("v_exp_f32", al, al), valu("v_mov_b32", m, ta)]
    it += [valu("v_sub_f32", x, x, m) for x in xs] + [valu("v_mul_f32", x, s_c, x) for x in xs] + [valu("v_exp_f32", x, x) for x in xs]
    it += [valu("v_mul_f32", l, l, al)] + [valu("v_add_f32", l, l, x) for x in xs]
    it += [valu("v_mul_f32", V(160 + k), V(160 + k), al) for k in range(64)]
    Pf = lambda ks: V(16 + 4 * ks, 4)
    for ks in range(2):
        for j in range(4): it.append(valu("v_cvt_pk_bf16_f32", Pf(ks)[j], xs[8 * ks + 2 * j], xs[8 * ks + 2 * j + 1]))
    for c in range(4):
        for j in range(8):
            it += [sop(f"s_add_u32 {s_t0}, {sv}, {j * 4096 + c * 128}", wr=[s_t0]), set_m0(s_mX, j * 1024), dma(vop, sV, s_t0, 0, None, "")]
        it += [W("s_waitcnt vmcnt(0)")]
        for dbl in range(4):
            for ks in range(2):
                for j4 in range(2):
                    it.append(ds_read("ds_read_b64_tr_b16", rV(2 * dbl + ks).sub(2 * j4, 2), va1 if dbl & 1 else va0, ks * 4096 + (dbl >> 1) * 512 + j4 * 2048))
        it += [W("s_waitcnt lgkmcnt(0)")]
        for dbl in range(4):
            for ks in range(2): it.append(mfma(rO(4 * c + dbl), rV(2 * dbl + ks), Pf(ks), rO(4 * c + dbl)))
    it += [nop(9), sop(f"s_add_u32 {sv}, {sv}, 32768"), sop(f"s_add_u32 {sj}, {sj}, 1"), sop(f"s_cmp_lt_u32 {sj}, 8"), raw("s_cbranch_scc1 L_rj")]
    out += fix_hazards(it)
    fin = [valu("v_mov_b32", tb, l), perm("v_permlane16_swap_b32", l, tb), valu("v_add_f32", l, l, tb),
           valu("v_mov_b32", tb, l), perm("v_permlane32_swap_b32", l, tb), valu("v_add_f32", l, l, tb), valu("v_rcp_f32", al, l)]
    for db in range(16):
        o = rO(db)
        fin += [valu("v_mul_f32", o[i], o[i], al) for i in range(4)]
        fin += [valu("v_cvt_pk_bf16_f32", o[0], o[0], o[1]), valu("v_cvt_pk_bf16_f32", o[1], o[2], o[3])]
        fin.append(Ins(f"buffer_store_dwordx2 {o.sub(0, 2)}, {so}, {sO}, {sq} offen offset:{db * 32}", "vmem", rd=[o.sub(0, 2), so, sO, sq]))
    fin += [W("s_waitcnt vmcnt(0)"), sop(f"s_add_u32 {sb}, {sb}, 1"), sop(f"s_cmp_lt_u32 {sb}, s82"), raw("s_cbranch_scc1 L_rb")]
    out += fix_hazards(fin)
    out += [label("L_rp_next")]
    out += [sop(f"s_mov_b32 s{80 + k}, s{83 + k}") for k in range(6)]
    out += [sop(f"s_add_u32 {sp}, {sp}, 1"), sop(f"s_cmp_lt_u32 {sp}, 3"), raw("s_cbranch_scc1 L_rp")]
    return out

DOC = """
Fused attention softmax(Q K^T / 16) V, emitted by a hand-written generator / list scheduler (no compiler output).
 * 256 workgroups x 4 waves (one wave per SIMD, 512 registers).  A workgroup runs three passes; a pass covers 12..16
   blocks of 16 query rows of one head (3 or 4 blocks per wave, table L_table at the end of the code).
 * K and V stream through a 128 KB LDS ring (LDS-DMA, 8 KB units); S^T = K Q^T and O^T = V^T P^T use
   v_mfma_f32_16x16x32_bf16, the softmax VALU work is interleaved between the MFMAs.
 * Softmax reference: per row the true maximum of the first 16 scores is subtracted (it enters as the C operand of the
   QK^T MFMA chains).  It never exceeds the row maximum, so it can only overflow: every pass checks its row sums and,
   if one is not below 2^50, the rows are recomputed at L_repair with a plain online softmax (true running maximum).
 * Epilogue: normalise, round to bf16, transpose through LDS, store full 128-byte lines.
 * Plain loads whose results are unused only pull data / code towards L2 ahead of its use.
"""

def main():
    ap = argparse.ArgumentParser()
    ap.add_argument("-o", default="standalone__mha_softmax__near_ridge.s")
    ap.add_argument("--diag", type=int, default=0)
    ap.add_argument("--kvmod", default="")
    ap.add_argument("--qmod", default="nt")
    ap.add_argument("--omod", default="")
    ap.add_argument("--sched", default="t6_344_0")
    ap.add_argument("--pkmul", type=int, default=1)
    ap.add_argument("--rep", type=int, default=1)
    ap.add_argument("--iw", type=int, default=1)
    ap.add_argument("--pairmaj", type=int, default=1)
    ap.add_argument("--mid", type=int, default=0)
    ap.add_argument("--midb", type=int, default=20)
    ap.add_argument("--padat", type=int, default=0)
    ap.add_argument("--fin", type=int, default=1)
    ap.add_argument("--finoff", type=int, default=12)
    ap.add_argument("--finoff2", type=int, default=4)
    ap.add_argument("--finb", type=int, default=36)
    ap.add_argument("--hca", type=int, default=4)
    ap.add_argument("--hext", type=int, default=3)
    ap.add_argument("--hw", default="10,6,4")
    ap.add_argument("--dq0", type=int, default=0)
    ap.add_argument("--q3early", type=int, default=0)
    ap.add_argument("--fmod", default="nt")
    ap.add_argument("--xlate", type=int, default=0)
    ap.add_argument("--hmod", default="")
    ap.add_argument("--tsh", type=int, default=5)
    ap.add_argument("--barsplit", type=int, default=1)
    ap.add_argument("--barblk", type=int, default=8)
    ap.add_argument("--barlag4", type=int, default=2)
    ap.add_argument("--r3epi", type=int, default=1)
    ap.add_argument("--hback", type=int, default=24)
    ap.add_argument("--hoist", default="")
    ap.add_argument("--twhen", type=int, default=2)
    ap.add_argument("--tkoff", type=int, default=24576)
    ap.add_argument("--cwarm", type=int, default=1)
    ap.add_argument("--late", type=int, default=1)
    ap.add_argument("--al8", type=int, default=0)
    ap.add_argument("--tstride", type=int, default=2048)
    ap.add_argument("--tstep", type=int, default=24576)
    ap.add_argument("--barlag", type=int, default=4)
    ap.add_argument("--epi_rd", type=int, default=1)
    ap.add_argument("--abl", type=int, default=0)
    ap.add_argument("--help_n", type=int, default=12)
    ap.add_argument("--omod3", default="")
    ap.add_argument("--omod4", default="")
    ap.add_argument("--wb", type=int, default=0)
    ap.add_argument("--nostore", type=int, default=0)
    ap.add_argument("--ca7", type=int, default=0)
    ap.add_argument("--show", type=int, default=0)
    ap.add_argument("--spread", type=int, default=1)
    ap.add_argument("--touch", type=int, default=2)
    ap.add_argument("--force", type=int, default=0)
    ap.add_argument("--padto", type=int, default=0)
    ap.add_argument("--defer", type=int, default=0)
    ap.add_argument("--warm", type=int, default=2)
    a = ap.parse_args()
    opt.__dict__.update(vars(a)); opt.nextq = 1
    opt.hwin = [int(x) for x in opt.hw.split(",")]
    if opt.hoist:
        h = [int(x) for x in opt.hoist.split(",")]; HOIST[4] = (h[0], h[1]); HOIST[3] = (h[2], h[3])
    L = []; A = L.append
    hdr = open("standalone__mha_softmax__near_ridge.s.ref").read().split("\n")
    for l in hdr:
        if l.startswith("; @launch"): break
        A(l)
    A(f"; @launch grid=(256,1,1) block=(256,1,1) lds={LDS_BYTES}")
    for l in DOC.strip("\n").split("\n"): A((";  " + l).rstrip())
    A('.amdgcn_target "amdgcn-amd-amdhsa--gfx950"')
    A(f".text\n.globl {KNAME}\n.p2align 8\n.type {KNAME},@function\n{KNAME}:")
    L += setup_code()
    def emit(seq):
        for i in seq: L.append(i)
    if opt.rep > 1: A(f"s_mov_b32 s98, {opt.rep}\nL_again:")
    emit(stamp(0))
    SU = startup()
    emit(SU["a"]); emit(SU["h"]); A("L_nohelp:"); emit(SU["q"]); emit(SU["r2"]); A("L_noq3:")
    if opt.iw: A("s_branch L_iw0\nL_iwa:")
    emit(SU["r3"])
    emit(SU["lc"]); emit(SU["l"]); A("L_nolate:")
    if opt.iw: A("s_branch L_iw3a\nL_iwb:")
    emit(SU["w"]); A("L_osok:"); emit(SU["r4"]); emit(SU["r5"])
    A("L_first:")
    assert opt.ca7 == 0
    s4 = []
    s4 = fix_hazards(s4 + sum([dma_V(0, 1), dma_V(0, 2), dma_V(0, 3), dma_K(7)][:opt.ca7], []))
    emit(s4)
    A("L_pass:")
    pb = [waitcnt(None, 0), barrier()]
    emit(pb)
    emit(stamp(1))
    if opt.padat:
        A(f"s_cmp_lg_u32 {s_pass}, {opt.padat - 1}\ns_cbranch_scc1 L_nopad\ns_cmp_lg_u32 {s_str}, 0x40000000\ns_cbranch_scc1 L_nopad\ns_memrealtime s[100:101]\ns_waitcnt lgkmcnt(0)\nL_nopad:")
    A(f"s_cmp_eq_u32 {s_nbn}, 3\ns_cbranch_scc1 L_v3")
    VAR = {}
    for nb in (4, 3):
        P = variant(nb)
        hd = fix_hazards(P["hd"])
        b1 = fix_hazards(P["i1"], wrap=hd[-14:])
        b2 = fix_hazards(P["i2"], wrap=b1[-14:])
        b1b = fix_hazards(P["i1"], wrap=b2[-14:])
        assert [x.text for x in b1b] == [x.text for x in b1], "loop entry hazards differ"
        i6 = fix_hazards(P["i6"], wrap=b1[-14:])
        i7 = fix_hazards(P["i7"], wrap=i6[-14:])
        epi = fix_hazards(P["epi"], wrap=i7[-14:])
        epf = fix_hazards(P["epf"], wrap=i7[-14:])
        fin = fix_hazards(P["fin"], wrap=i6[-14:])
        if opt.mid: i7 = []; epi = fix_hazards(P["mid"], wrap=i6[-14:])
        VAR[nb] = dict(hd=hd, b1=b1, b2=b2, i6=i6, i7=i7, epi=epi, epf=epf, fin=fin)
        if opt.al8:
            for k in ("hd", "b1", "b2", "i6", "i7"): align8(VAR[nb][k])
        nn = sum(1 for p in VAR[nb].values() for x in p if x.kind == "nop")
        print(f"nb={nb}: sizes", {k: len(v) for k, v in VAR[nb].items()}, "nops", nn, file=sys.stderr)
        A(".p2align 6")
        if nb == 3 and opt.iw: A("L_iw0:\ns_branch L_iwa")
        A(f"L_v{nb}:")
        emit(hd)
        emit(stamp(2))
        if opt.diag == 3:
            for k in range(3):
                A(f"s_sub_u32 s66, s{92+4*k}, s{90+4*k}\ns_mul_i32 s67, {s_pass}, 3\ns_add_u32 m0, s67, {20+k}\ns_nop 1\nv_writelane_b32 v0, s66, m0")
        if opt.al8: A(f".p2align {opt.al8}")
        A(f"L_loop{nb}:")
        emit(b1); A(f"s_cbranch_scc1 L_i6_{nb}")
        if opt.al8: A(".p2align 3")
        emit(b2); A(f"s_branch L_loop{nb}")
        if opt.al8: A(f".p2align {opt.al8}")
        if opt.iw: A(f"L_iw{nb}a:\ns_branch L_iw{nb}b")
        A(f"L_i6_{nb}:")
        if opt.diag == 4: emit(stamp(9))
        if opt.al8: A(".p2align 3")
        emit(i6)
        if opt.diag == 4: emit(stamp(9))
        if opt.fin:
            A(f"s_cmp_lt_u32 {s_pass}, 2\ns_cbranch_scc1 L_i7_{nb}")
            emit(stamp(3))
            emit(fin)
            emit(stamp(4))
            A("s_branch L_done")
            if opt.iw: A(f"L_iw{nb}b:\ns_branch " + ("L_iw4a" if nb == 3 else "L_iwb"))
            A(f"L_i7_{nb}:")
            emit(i7)
            emit(stamp(3))
        else:
            emit(i7)
            emit(stamp(3))
            A(f"s_cmp_lt_u32 {s_pass}, 2\ns_cbranch_scc1 L_epi{nb}")
            emit(epf)
            emit(stamp(4))
            A(f"s_branch L_done\nL_epi{nb}:")
        emit(epi)
        emit(stamp(4))
        A(f"s_add_u32 {s_pass}, {s_pass}, 1\ns_branch L_pass")
    tail = []
    traces = []
    import itertools
    for seqnb in itertools.product((3, 4), (3, 4), (3, 4), (0, 1)):
        hp = seqnb[3]; seqnb = seqnb[:3]
        n4 = seqnb[0] == 4
        tr = SU["a"] + (SU["h"] if hp else []) + SU["q"] + (SU["r2"] if n4 else []) + SU["r3"] + (SU["w"] if (hp or not opt.late) else SU["l"]) + SU["r4"] + (SU["r5"] if n4 else []) + s4
        for pi, nb in enumerate(seqnb):
            v = VAR[nb]
            tr = tr + pb + v["hd"] + (v["b1"] + v["b2"]) * 2 + v["b1"] + v["i6"] + (v["fin"] if (pi == 2 and opt.fin) else v["i7"] + v["epf" if pi == 2 else "epi"])
        traces.append(tr + tail)
    resolve_vm(traces)
    for tr in traces:
        errs = check_trace(tr)
        if errs and not opt.abl:
            for e in errs[:20]: print("SYNC ERR", e, file=sys.stderr)
            raise SystemExit(1)
    if not opt.abl: cross_check(traces)
    A("L_done:")
    emit(tail)
    if opt.force: A(f"s_mov_b32 {s_flags}, {opt.force}")
    A(f"s_cmp_lg_u32 {s_flags}, 0\ns_cbranch_scc1 L_repair\nL_fin:")
    if opt.rep > 1:
        A("s_waitcnt vmcnt(0) lgkmcnt(0)\ns_barrier")
        raise SystemExit("rep unsupported now")
        A(f"s_mov_b32 {s_pass}, 0\ns_sub_u32 s98, s98, 1\ns_cmp_lg_u32 s98, 0\ns_cbranch_scc1 L_again")
    if opt.diag:
        A("s_waitcnt vmcnt(0)")
        emit(stamp(5))
        A(f"s_mov_b32 s66, 0x1000000\ns_mov_b32 s67, 0x20000")
        A(f"v_mbcnt_lo_u32_b32 v1, -1, 0\nv_mbcnt_hi_u32_b32 v1, -1, v1\nv_lshlrev_b32 v1, 2, v1")
        A(f"s_lshl_b32 s3, s2, 10\ns_lshl_b32 s4, {s_wave}, 8\ns_add_u32 s3, s3, s4")
        A("buffer_store_dword v0, v1, s[64:67], s3 offen")
        if opt.diag == 2:
            A(f"s_or_b32 s3, s2, {s_wave}\ns_cmp_lg_u32 s3, 0\ns_cbranch_scc1 L_exit")
            A("s_load_dwordx2 s[64:65], s[0:1], 32\ns_mov_b32 s66, 256\nv_readlane_b32 s4, v0, 0\nv_readlane_b32 s5, v0, 32\ns_waitcnt lgkmcnt(0)")
            idx = [2, 3, 4, 6, 8, 10, 12, 14]
            for j, k in enumerate(idx):
                A(f"v_readlane_b32 s6, v0, {k}\nv_readlane_b32 s7, v0, {k+32}\ns_sub_u32 s6, s6, s4\ns_sub_u32 s7, s7, s5\ns_nop 1\nv_writelane_b32 v2, s6, {j}\nv_writelane_b32 v2, s7, {j+8}")
            A("s_mov_b64 exec, 0xffff\nbuffer_store_dword v2, v1, s[64:67], 0 offen")
    if opt.wb == 1:
        A(f"s_cmp_lg_u32 {s_wave}, 0\ns_cbranch_scc1 L_exit\ns_waitcnt vmcnt(0)\nbuffer_wbl2 sc1\ns_waitcnt vmcnt(0)")
    if opt.wb == 2:
        A(f"s_cmp_lg_u32 {s_wave}, 0\ns_cbranch_scc1 L_exit\ns_cmp_eq_u32 s89, 0\ns_cbranch_scc1 L_exit\ns_waitcnt vmcnt(0)\nbuffer_wbl2 sc1\ns_waitcnt vmcnt(0)")
    if opt.wb == 3:
        A(f"s_waitcnt vmcnt(0)\nbuffer_wbl2 sc1")
    if opt.padto:
        A(f"s_waitcnt vmcnt(0)\nL_spin:\ns_memrealtime s[66:67]\ns_waitcnt lgkmcnt(0)\ns_sub_u32 s66, s66, s100\ns_cmp_lt_u32 s66, {opt.padto}\ns_cbranch_scc1 L_spin")
    A("L_exit:")
    A("s_endpgm")
    A("L_warm_end:")
    A("L_repair:")
    emit(repair_code())
    A("s_branch L_fin")
    A(".p2align 6\n.type L_table,@object\nL_table:")
    tab = schedule_table(opt.sched)
    for wg in range(256):
        w = []
        for h, st, n in tab[wg]:
            w += [(h * SQ + st * 16) * 512, h * SK * 512, n]
        w += [THR.get(wg, 0), HELP.get(wg, OOB), RANK.get(wg, 0), HELPN.get(wg, 12)]
        w += [0] * (16 - len(w))
        A(".long " + ", ".join(str(x) for x in w))
    A(".size L_table, 16384")
    A('.section .rodata,"a"\n.p2align 6')
    A(f".amdhsa_kernel {KNAME}")
    A("  .amdhsa_next_free_vgpr 512\n  .amdhsa_next_free_sgpr 102\n  .amdhsa_accum_offset 256\n  .amdhsa_group_segment_fixed_size 0")
    A("  .amdhsa_kernarg_size 48\n  .amdhsa_user_sgpr_count 2\n  .amdhsa_user_sgpr_kernarg_segment_ptr 1\n  .amdhsa_system_sgpr_workgroup_id_x 1")
    A(".end_amdhsa_kernel")
    open(opt.o, "w").write("\n".join((x if isinstance(x, str) else x.text) for x in L if x is not None) + "\n")

if __name__ == "__main__":
    main()
```

```python
import sys, argparse
from asmlib import *

KNAME = "standalone__mha_softmax__near_ridge_kernel"
NH, SQ, SK, D = 128, 1312, 512, 256
QBYTES = NH * SQ * D * 2
KBYTES = NH * SK * D * 2
OOB = 0x7fff0000
VB = 65536
XB = 131072
LDS_BYTES = 163840
C_SCALE = 0x3db8aa3b
L_LIMIT = 0x58800000

sQ, sK, sV, sO = S(8, 4), S(12, 4), S(16, 4), S(20, 4)
s_wave = S(24)
s_mK = S(25)
s_mX = S(26)
s_mR2 = S(27)
s_mOS = S(28)
s_kptr, s_kend, s_knext = S(29), S(30), S(31)
s_vptr, s_vptr2, s_vend = S(32), S(33), S(34)
s_c = S(35)
s_cnt = S(36)
s_pass = S(37)
s_flags = S(38)
s_qn = [S(40), S(41), S(42), S(43)]
s_ocur = S(44)
s_t0, s_t1, s_t2 = S(45), S(46), S(47)
s_tab = S(48, 16)
s_dbg = S(64, 4)
s_ts = S(68, 2)
s_nbn = S(70)
s_tsp = S(71)
s_mR3 = S(39)
s_tq, s_tk, s_tv, s_xm, s_xq = S(90), S(91), S(92), S(93), S(94)
sC = S(96, 4)
s_cs = S(95)
s_str = S(34)
s_ok = [S(72 + k) for k in range(8)]
kaddr, vaddr0, vaddr1, voK, voV = V(1), V(2), V(3), V(4), V(5)
lsum = lambda b: V(6 + b)
vt0, vt1 = V(10), V(11)
voQa, voQb = V(12), V(13)
vsto, wa0 = V(14), V(15)
Ct = lambda b: V(16 + 4 * b, 4)
SET = lambda i: V(32 + 16 * i, 16)
Sx = lambda i, b: SET(i).sub(4 * b, 4)
Q = lambda b, s: AG(b * 32 + s * 4, 4)
NF = 8
F = lambda i: AG(128 + 4 * (i % NF), 4)
def O(b, db):
    if 4 <= db < 10: return AG(160 + 4 * ((db - 4) * 4 + b), 4)
    return V(96 + 4 * ((db if db < 4 else db - 6) * 4 + b), 4)

M0 = ('m0', 0)
_last_m0 = [None]
def set_m0(base, off):
    i = salu(f"s_add_u32 m0, {base}, {off}", rd=[base]); i.wr = {M0}; _last_m0[0] = i; return i
def sop(text, rd=(), wr=()): return salu(text, rd=rd, wr=wr)

class Opt: pass
opt = Opt()

def dma(vo, srd, soff, imm, unit, mods):
    i = Ins(f"buffer_load_dwordx4 {vo}, {srd}, {soff} offen offset:{imm} {mods} lds".replace("  ", " "), "vmem", rd=[vo, srd, soff])
    i.rd.add(M0); i.dma_wr = unit; i.vm = True; i.m0ref = _last_m0[0]
    return i

def kslot_addr(slot): return slot * 8192
def vslot_addr(par, c): return VB + (par * 4 + c) * 8192

def dma_K(slot, wrap=False):
    r = []
    for dh in range(2):
        r.append(set_m0(s_mK, kslot_addr(slot) + dh * 768))
        r.append(dma(voK, sK, s_kptr, dh * 256, ("K", slot), opt.kvmod))
    r.append(sop(f"s_add_u32 {s_kptr}, {s_kptr}, 8192", rd=[s_kptr], wr=[s_kptr]))
    if wrap:
        r.append(sop(f"s_cmp_eq_u32 {s_kptr}, {s_kend}", rd=[s_kptr, s_kend]))
        r[-1].glue = True
        r.append(sop(f"s_cselect_b32 {s_kptr}, {s_knext}, {s_kptr}", rd=[s_kptr, s_knext], wr=[s_kptr]))
    return r

def dma_V(par, c, wrap=False):
    r = []
    if c == 0:
        r.append(sop(f"s_add_u32 {s_vptr}, {s_vptr}, 32768", rd=[s_vptr], wr=[s_vptr]))
        if wrap:
            r.append(sop(f"s_cmp_eq_u32 {s_vptr}, {s_vend}", rd=[s_vptr, s_vend]))
            r[-1].glue = True
            r.append(sop(f"s_cselect_b32 {s_vptr}, {s_knext}, {s_vptr}", rd=[s_vptr, s_knext], wr=[s_vptr]))
        r.append(sop(f"s_add_u32 {s_vptr2}, {s_vptr}, 4096", rd=[s_vptr], wr=[s_vptr2]))
    for e in range(2):
        r.append(set_m0(s_mK, vslot_addr(par, c) + e * 1024 - c * 128))
        r.append(dma(voV, sV, s_vptr2 if e else s_vptr, c * 128, ("V", par, c), opt.kvmod))
    return r

def dma_Q(base, soff, unit):
    r = []
    for hi in range(2):
        for dh in range(2):
            r.append(set_m0(base, hi * 4096 + dh * 768))
            for Rl in range(2):
                r.append(dma(voQb if hi else voQa, sQ, soff, Rl * 2048 + dh * 256, unit, opt.qmod))
    return r

def q_reads(b, base_sgpr, unit, tmp):
    r = [valu("v_add_u32", tmp, base_sgpr, kaddr)]
    for s in range(8):
        i = ds_read("ds_read_b128", Q(b, s), tmp, s * 256, tag=("q", b, s)); i.lds_rd = unit; i.private = True
        r.append(i)
    return r

def waitcnt(vm=None, lgkm=None):
    t = "s_waitcnt" + (f" vmcnt({vm})" if vm is not None else "") + (f" lgkmcnt({lgkm})" if lgkm is not None else "")
    i = raw(t, "wait"); i.vmw = vm; i.lgw = lgkm
    return i
def vwait(units, lgkm=None):
    i = raw("s_waitcnt ?", "wait"); i.vmneed = list(units); i.vmw = None; i.lgw = lgkm; i.vmauto = 63
    return i
def barrier():
    i = raw("s_barrier", "misc"); i.bar = True; return i

class Seg:
    def __init__(self, nb, name):
        self.nb = nb; self.name = name
        self.mf = []; self.nodes = []
        self.pairs = []
        self.blk = {}
        self.fixed = {}
        self.done = {}
        self.first = {}
        self.fixed2 = {}

    def qblock(self, name, slot, dst, czero, fbase):
        nb = self.nb; st = len(self.mf)
        for sp in range(4):
            p0 = len(self.mf)
            tags = [("f", self.name, name, 2 * sp + e) for e in range(2)]
            for b in range(nb):
                for e in range(2):
                    s = 2 * sp + e
                    d = Sx(dst, b)
                    c = d if s else (0 if czero else Ct(b))
                    self.mf.append(mfma(d, F(fbase + s), Q(b, s), c, need=tags))
                    self.done[(name, b)] = len(self.mf) - 1
            rd = []
            for e in range(2):
                s = 2 * sp + e
                i = ds_read("ds_read_b128", F(fbase + s), kaddr, kslot_addr(slot) + s * 256, tag=tags[e]); i.lds_rd = ("K", slot)
                rd.append(i)
            self.pairs.append((p0, len(self.mf) - 1, rd))
        self.blk[name] = (st, len(self.mf))

    def pblock(self, name, par, c, x0, x1, czero, fbase):
        self.pgen(name, par, [[(c, dbl, 0), (c, dbl, 1)] for dbl in range(4)], x0, x1, czero)

    def pgen(self, name, par, prs, x0, x1, czero):
        nb = self.nb; st = len(self.mf)
        for pi, pr in enumerate(prs):
            p0 = len(self.mf)
            fb = 2 * len(self.pairs)
            tags = [("f", self.name, name, 2 * pi + e) for e in range(2)]
            for b in range(nb):
                for e, (c, dbl, ks) in enumerate(pr):
                    o = O(b, 4 * c + dbl)
                    cc = 0 if (czero and ks == 0) else o
                    self.first.setdefault(("P", ks, b), len(self.mf))
                    self.first.setdefault(("O", c), len(self.mf))
                    if opt.abl & 512: self.mf.append(mfma(o, Sx(x1 if ks else x0, b), F(fb + e), cc, need=tags))
                    else: self.mf.append(mfma(o, F(fb + e), Sx(x1 if ks else x0, b), cc, need=tags))
            rd = []
            for e, (c, dbl, ks) in enumerate(pr):
                f = F(fb + e)
                va = vaddr1 if (dbl & 1) else vaddr0
                off = vslot_addr(par, c) - VB + ks * 4096 + (dbl >> 1) * 512
                for j4 in range(2):
                    i = ds_read("ds_read_b64_tr_b16", f.sub(2 * j4, 2), va, off + j4 * 2048, tag=tags[e] if j4 else ("x",))
                    i.lds_rd = ("V", par, c)
                    rd.append(i)
            self.pairs.append((p0, len(self.mf) - 1, rd))
        self.blk[name] = (st, len(self.mf))

    def unit(self, src, even_set, odd, blocks, e_of, dl_crit, dl_add, lo, hi, add_lo=None, add_hi=None, pre=None, after=None, fma=None, ext=None):
        crit = []; adds = []; res = {}
        for b in blocks:
            x = Sx(src, b); ev = Sx(even_set, b)
            ms = []
            for i in range(4):
                deps = [(n, 0) for n in pre[b]] if pre else []
                ins = valu("v_fma_f32", x[i], x[i], s_c, fma[b]) if fma else valu("v_mul_f32", x[i], s_c, x[i])
                ms.append(Node(ins, e=e_of(b), dl=dl_crit(b), deps=deps))
            y = ext(b) if ext else x
            late = odd or ext
            ex = [Node(valu("v_exp_f32", y[i], x[i]), e=e_of(b), dl=dl_crit(b), deps=[(ms[i], 0)]) for i in range(4)]
            ad = []
            for i in range(4):
                deps = [(ex[i], 1)] + ([(ad[-1], 0)] if ad else [])
                ad.append(Node(valu("v_add_f32", lsum(b), lsum(b), y[i]), e=e_of(b), dl=(dl_add if late else dl_crit(b)), deps=deps))
            aft = [(n, 0) for n in (after or {}).get(b, [])]
            if odd:
                c0 = Node(valu("v_cvt_pk_bf16_f32", ev[2], y[0], y[1]), e=e_of(b), dl=dl_crit(b), deps=[(ex[0], 1), (ex[1], 1)] + aft)
                c1 = Node(valu("v_cvt_pk_bf16_f32", ev[3], y[2], y[3]), e=e_of(b), dl=dl_crit(b), deps=[(ex[2], 1), (ex[3], 1)] + aft)
                crit += [ms[0], ms[1], ex[0], ex[1], ms[2], ms[3], ex[2], ex[3], c0, c1]
                adds += ad
            elif ext:
                c0 = Node(valu("v_cvt_pk_bf16_f32", x[0], y[0], y[1]), e=e_of(b), dl=dl_crit(b), deps=[(ex[0], 1), (ex[1], 1)])
                c1 = Node(valu("v_cvt_pk_bf16_f32", x[1], y[2], y[3]), e=e_of(b), dl=dl_crit(b), deps=[(ex[1], 0), (ex[2], 1), (ex[3], 1)])
                crit += [ms[0], ms[1], ex[0], ex[1], ms[2], ms[3], ex[2], ex[3], c0, c1]
                adds += ad
                res[b] = [c0, c1]; continue
            else:
                c0 = Node(valu("v_cvt_pk_bf16_f32", x[0], x[0], x[1]), e=e_of(b), dl=dl_crit(b), deps=[(ex[0], 1), (ex[1], 1), (ad[0], 0)])
                c1 = Node(valu("v_cvt_pk_bf16_f32", x[1], x[2], x[3]), e=e_of(b), dl=dl_crit(b), deps=[(ex[2], 1), (ex[3], 1), (ad[1], 0), (c0, 0)])
                crit += [ms[0], ms[1], ex[0], ex[1], ms[2], ms[3], ex[2], ex[3], ad[0], ad[1], ad[2], ad[3], c0, c1]
            res[b] = [c0, c1] + ad
        spread(crit, lo, hi)
        if adds: spread(adds, add_lo if add_lo is not None else lo, add_hi if add_hi is not None else hi)
        self.nodes += crit + adds
        return res

    def chain(self, instrs, lo, hi, e=None, dl=None, first_dep=None):
        prev = first_dep; out = []
        for i in instrs:
            gapd = 0
            if prev is not None:
                pk = prev.ins.kind
                gapd = 1
                if pk == "ds" and i.kind == "ds": gapd = 0
            n = Node(i, e=lo if e is None else e, dl=(10**9 if dl is None else dl), deps=[(prev, gapd)] if prev else [])
            out.append(n); prev = n
        k = len(out)
        for j, n in enumerate(out): n.ideal = lo + (hi - lo) * j / max(k, 1)
        self.nodes += out
        return out

    def reads(self, nxt_pairs, skip_first=3, barrier_before=()):
        pairs = self.pairs; ext = [p[2] for p in pairs] + list(nxt_pairs)
        prev = None
        plen = 2 * self.nb
        for k in range(skip_first, len(ext)):
            j = k - 4
            e = pairs[j][1] if j >= 0 else 0
            if k in barrier_before:
                g = e - 1 + (opt.barlag if self.nb == 3 else opt.barlag4) if j >= 0 else 0
                g = min(g, len(self.mf) - 2)
                if opt.barsplit and g > 0 and len(barrier_before[k]) == 2:
                    self.fixed[g] = barrier_before[k][1:]
                    self.fixed2[g - 1] = barrier_before[k][:1]
                else:
                    self.fixed[g] = barrier_before[k]
                self.bar_gap = getattr(self, "bar_gap", {}); self.bar_gap[k] = g
                e = g + 1
            dl = e + plen - 2
            if (k + 1) in barrier_before: dl = e + 1
            for i in ext[k]:
                n = Node(i, e=e, dl=min(dl, len(self.mf) - 1), ideal=e - 2, deps=[(prev, 0)] if prev else [])
                self.nodes.append(n); prev = n

    def build(self, nxt_first=None):
        n = len(self.mf)
        ft = set(); seen = set()
        for g, m in enumerate(self.mf):
            key = tuple(m.need)
            if key not in seen:
                seen.add(key)
                if g > 0: ft.add(g - 1)
        ft.add(n - 1)
        blocked = {}
        for g in self.fixed: ft.add(g); blocked[g] = opt.barblk
        for g in self.fixed2: ft.add(g)
        gaps, over = schedule2(self.mf, self.nodes, free_taken=ft, blocked=blocked, nomem=set(self.fixed2) | set(self.fixed))
        for g, ins in self.fixed2.items():
            gaps[g][1][0:0] = ins
        for g, ins in self.fixed.items():
            gaps[g][1][0:0] = ins
        self.over = over
        if getattr(opt, "show", 0):
            cost = lambda i: 8 if i.kind == "vmem" else i.cost
            for nme, (a, b) in self.blk.items():
                row = ""
                for g in range(a, b):
                    u = sum(cost(i) for i in gaps[g][2]) + 4 * max(0, len(gaps[g][1]) - (0 if g in ft and g not in self.fixed else 1))
                    row += "B" if g in self.fixed else (str(u // 4) if u < 40 else "#")
                print(f"  nb{self.nb} {self.name} {nme}: {row}", file=sys.stderr)
        return gaps

def sets_for(par):
    return (0, 1, 2, 3) if par == 0 else (3, 2, 1, 0)

def first_pairs_of_iter(nb, J, name):
    s = Seg(nb, name); par = J & 1
    X0, X1, A_, B_ = sets_for(par)
    s.qblock("t0", 4 * ((J + 1) & 1), A_, False, 0)
    return [p[2] for p in s.pairs[:3]]

SPLIT = {4: 3, 3: 2}

LAT = 4
def units_of(J, h):
    par = J & 1; kb = 4 * ((J + 1) & 1)
    return [("K", kb), ("K", kb + 1), ("K", kb + 2), ("V", par, 0)] if h == 0 else [("V", par, 1), ("V", par, 2), ("V", par, 3), ("K", kb + 3)]

def iter_blocks(s, J, cz, split=0):
    par = J & 1
    X0, X1, A_, B_ = sets_for(par)
    kb = 4 * ((J + 1) & 1)
    s.qblock("t0", kb + 0, A_, False, 0)
    s.qblock("t1", kb + 1, B_, False, 0)
    if split == 2:
        s.pgen("t2", par, [[(0, 0, 0), (0, 1, 0)], [(0, 2, 0), (0, 3, 0)], [(0, 0, 1), (0, 1, 1)], [(0, 2, 1), (0, 3, 1)]], X0, X1, cz)
    elif split == 1:
        s.pgen("t2", par, [[(0, 0, 0), (0, 1, 0)], [(0, 0, 1), (0, 1, 1)], [(0, 2, 0), (0, 2, 1)], [(0, 3, 0), (0, 3, 1)]], X0, X1, cz)
    else:
        s.pblock("t2", par, 0, X0, X1, cz, 0)
    s.qblock("t3", kb + 2, A_, False, 0)
    s.pblock("t4", par, 1, X0, X1, cz, 0)
    s.pblock("t5", par, 2, X0, X1, cz, 0)
    s.qblock("t6", kb + 3, A_, False, 0)
    s.pblock("t7", par, 3, X0, X1, cz, 0)

def iter_units(s, J, u2, lo3=None, x3=None, dl3=None):
    nb = s.nb; B = s.blk; n = len(s.mf)
    X0, X1, A_, B_ = sets_for(J & 1)
    p0s = s.first[("P", 1, 0)] - 1
    s.unit(A_, X1, True, range(nb), lambda b: s.done[("t0", b)] + LAT, lambda b: s.first[("P", 1, b)] - 2, dl3 or B["t3"][0] - 2,
           lo3 if lo3 is not None else B["t0"][1] - 2, p0s - 1, after=u2, **(x3 or dict(add_lo=p0s, add_hi=B["t3"][0] - 4)))
    u0 = s.unit(B_, B_, False, range(nb), lambda b: s.done[("t1", b)] + LAT, lambda b: B["t4"][0] + 4, None,
                p0s + 2, B["t4"][0] - 2)
    s.unit(A_, B_, True, range(nb), lambda b: s.done[("t3", b)] + LAT, lambda b: B["t6"][0] - 2, B["t6"][0] - 2,
           B["t4"][0], B["t6"][0] - 4, add_lo=B["t4"][0] + 4, add_hi=B["t6"][0] - 3, after=u0)
    s.unit(A_, A_, False, range(SPLIT[nb]), lambda b: s.done[("t6", b)] + LAT, lambda b: n - 1, None,
           B["t7"][0], n - 3)

def make_mid(nb, J, name, nxt_name, special=False):
    par = J & 1
    X0, X1, A_, B_ = sets_for(par)
    kb = 4 * ((J + 1) & 1)
    s = Seg(nb, name)
    iter_blocks(s, J, False, split=(1 if nb == 3 else 0))
    n = len(s.mf); B = s.blk
    u2 = s.unit(X1, X1, False, list(range(SPLIT[nb], nb)), lambda b: 0, lambda b: B["t0"][1] + 2, None, 0, B["t0"][1] - 4)
    iter_units(s, J, u2)
    npair = len(s.pairs)
    nxt = first_pairs_of_iter(nb, J + 1, nxt_name)
    need2 = units_of(J + 1, 0) + (units_of(J + 1, 1) if special else [])
    s.reads(nxt, barrier_before={16: [vwait(units_of(J, 1), 0), barrier()], npair: [vwait(need2, 0), barrier()]})
    g1 = s.bar_gap[16]; g2 = s.bar_gap[npair]
    npar = (J + 1) & 1
    if opt.spread:
        gg = [dma_V(npar, 1), dma_V(npar, 2), dma_V(npar, 3), dma_K(4 * ((J + 2) & 1) + 3)]
        k0 = 3
        c0 = s.chain(sum(gg[:k0], []), 2, B["t0"][1] + 2, dl=g1 - 1)
        c0 = s.chain(sum(gg[k0:], []), B["t2"][0] + 10, g1 - 2, dl=g1 - 1, first_dep=c0[-1])
        lo1, hi1 = (g1 + 14, g2 - 4) if nb == 4 else (B["t4"][0] + 14, g2 + 2)
    else:
        g0 = dma_V(npar, 1) + dma_V(npar, 2) + dma_V(npar, 3) + dma_K(4 * ((J + 2) & 1) + 3)
        c0 = s.chain(g0, 0, B["t0"][1] + 2, dl=g1 - 1)
        lo1, hi1 = B["t5"][0] + 8, B["t7"][0]
    if special:
        s.chain(dma_Q(s_mR3, s_qn[1], ("R3",)), g1 + 2, B["t6"][1], e=g1 + 1, dl=g2 - 1, first_dep=c0[-1])
    else:
        tq = (lambda: touch(sQ, s_tq, 2048)) if (opt.touch & 1 and J & 1) else (lambda: [])
        tk = (lambda: touch(sK, s_tk, 12 << (opt.tsh + 6))) if (opt.touch & 2 and opt.twhen >> (J & 1) & 1) else (lambda: [])
        tv = (lambda: touch(sV, s_tv, 12 << (opt.tsh + 6))) if (opt.touch & 2 and opt.twhen >> (J & 1) & 1) else (lambda: [])
        xq = [[], []]
        if not J & 1:
            for hi in range(2):
                xq[hi] = [set_m0(s_xm, hi * 4096)] + [dma(voQb if hi else voQa, sQ, s_xq, Rl * 2048, ("X",), opt.qmod) for Rl in range(2)]
            xq[1] += [sop(f"s_add_u32 {s_xm}, {s_xm}, 1024", wr=[s_xm]), sop(f"s_add_u32 {s_xq}, {s_xq}, 256", wr=[s_xq])]
            if opt.xlate:
                d = dma_Q(s_mX, s_xm, ("X",))
                xq = [d[:6], d[6:] + [sop(f"s_mov_b32 {s_xm}, {s_xq}", wr=[s_xm])]]
        tc = touch(sC, s_cs, 0)[:1] if (opt.cwarm and (J & 1 or opt.cwarm > 1)) else []
        g1l = tc + dma_K(kb + 0, wrap=(J & 1) == 1) + tq() + xq[0] + dma_K(kb + 1) + tq() + tk() + xq[1] + dma_K(kb + 2) + tq() + tv() + dma_V(par, 0)
        last = s.chain(g1l, lo1, hi1, e=g1 + 1, dl=g2 - 1, first_dep=c0[-1])[-1]
        if J & 1:
            s.chain([sop(f"s_sub_u32 {s_cnt}, {s_cnt}, 1"), sop(f"s_cmp_eq_u32 {s_cnt}, 0")], n - 6, n - 3, first_dep=last)
    return s

def touch(srd, sp, step):
    i = Ins(f"buffer_load_dword {vt0}, {vt1}, {srd}, {sp} offen", "vmem", rd=[vt1, srd, sp], wr=[vt0]); i.vm = True
    return [i, sop(f"s_add_u32 {sp}, {sp}, {step}", rd=[sp], wr=[sp])]

RL = lambda b: SET(0)[b]
WA = lambda k: wa0 if k == 0 else SET(0)[4 + k]
RA = SET(0)[8]
LT = SET(0)[9]
VS1 = SET(0)[10]
HOIST = {4: (4, 10), 3: (3, 4)}
PK = lambda c, k: O(k >> 1, 4 * c + (k & 1))

def butterfly(x, op, mid, out):
    q = []
    def add(i, deps): q.append((i, deps)); return len(q) - 1
    a = add(perm("v_permlane16_swap_b32", x[0], x[1]), [])
    b = add(perm("v_permlane16_swap_b32", x[2], x[3]), [])
    a = add(valu(op, x[0], x[0], x[1]), [a])
    b = add(valu(op, x[2], x[2], x[3]), [b])
    c = add(perm("v_permlane32_swap_b32", x[0], x[2]), [a, b])
    for i in mid(out[0], x[0], x[2]): c = add(i, [c])
    c = add(valu("v_mov_b32", out[2], out[0]), [c])
    c = add(perm("v_permlane32_swap_b32", out[0], out[2]), [c])
    a = add(valu("v_mov_b32", out[1], out[0]), [c])
    b = add(valu("v_mov_b32", out[3], out[2]), [c])
    a = add(perm("v_permlane16_swap_b32", out[0], out[1]), [a])
    b = add(perm("v_permlane16_swap_b32", out[2], out[3]), [b])
    return q

def nodes_of(q, first_deps, e, dl, ideal, step):
    nds = []
    for k, (i, deps) in enumerate(q):
        isp = i.op.startswith("v_permlane")
        d = [(nds[j], 2 if isp else (1 if nds[j].ins.kind == "trans" else 0)) for j in deps] if deps else [(x, 2 if isp else 0) for x in first_deps]
        nds.append(Node(i, e=e, dl=dl, deps=d, ideal=ideal + step * k))
    return nds

def make_last(nb, name):
    J = 7; par = 1
    X0, X1, A_, B_ = sets_for(par)
    s = Seg(nb, name)
    s.qblock("t0", 0, A_, False, 0)
    s.pgen("t2", par, [[(c, d, 0), (c, d + 1, 0)] for c in (0, 1) for d in (0, 2)], X0, X1, False)
    s.pgen("t4", par, [[(c, d, 1), (c, d + 1, 1)] for c in (0, 1) for d in (0, 2)], X0, X1, False)
    s.pblock("t5", par, 2, X0, X1, False, 0)
    s.pblock("t7", par, 3, X0, X1, False, 0)
    n = len(s.mf); B = s.blk
    u2 = s.unit(X1, X1, False, list(range(SPLIT[nb], nb)), lambda b: 0, lambda b: B["t0"][1] + 2, None, 0, B["t0"][1] - 4)
    k1 = B["t4"][0]
    u3 = s.unit(A_, X1, True, range(nb), lambda b: s.done[("t0", b)] + LAT, lambda b: s.first[("P", 1, b)] - 2, B["t5"][0] + 6,
                B["t0"][1] - 2, k1 - 1, add_lo=k1, add_hi=B["t5"][0], after=u2)
    npair = len(s.pairs)
    t0e = B["t0"][1]
    def qchain(b, base, unit, tmp, lo, hi, pre, dl=None, first_dep=None):
        ins = pre + q_reads(b, base, unit, tmp)
        nds = s.chain(ins, lo, hi, dl=dl, first_dep=first_dep)
        for k, nd in enumerate(nds[len(pre) + 1:]):
            nd.e = max(nd.e, s.pairs[k // 2][1] + 1)
        return nds
    if opt.r3epi:
        s.reads([[]], barrier_before={npair: [waitcnt(None, 0), barrier()]})
        g2 = s.bar_gap[npair]; gR = B["t4"][0] + 8
        c2 = s.chain(dma_Q(s_mR2, s_qn[2], ("R2",)), 0, B["t0"][1] + 4 if opt.q3early else B["t2"][1] - 4)
        r0 = qchain(0, s_mX, ("X",), vt0, t0e - 10, t0e + 10, [vwait([("X",)])])
        r1 = qchain(1, s_mR3, ("R3",), vt1, B["t4"][0] + 6, B["t5"][0] + 6, [vwait([("R3",)])], dl=g2 - 5, first_dep=r0[-1])
        c3 = s.chain([mark_wait_lds(("q", 0, 7))] + dma_Q(s_mX, s_qn[3], ("X",)), *((t0e + 16, B["t4"][1]) if opt.q3early else (B["t4"][0], g2)))
        c3[0].deps = [(r0[-1], 5), (c2[-1], 1)]
        c4 = s.chain([sop(f"s_sub_u32 {s_vptr}, {s_knext}, 32768", wr=[s_vptr])], 2, 4)
    else:
        kR = 12
        s.reads([[]], barrier_before={kR + 2: [waitcnt(None, 0), barrier()], npair: [waitcnt(None, 0), barrier()]})
        gR = s.bar_gap[kR + 2]; g2 = s.bar_gap[npair]
        c2 = s.chain(dma_Q(s_mR2, s_qn[2], ("R2",)), 0, B["t0"][1] - 2)
        r0 = qchain(0, s_mX, ("X",), vt0, t0e - 10, t0e + 10, [vwait([("X",)])], dl=gR - 5)
        r1 = qchain(1, s_mR3, ("R3",), vt1, t0e + 10, gR - 8, [vwait([("R3",)])], dl=gR - 5, first_dep=r0[-1])
        c3 = s.chain([mark_wait_lds(("q", 0, 7))] + dma_Q(s_mX, s_qn[3], ("X",)), t0e + 16, gR + 4)
        c3[0].deps = [(r0[-1], 5), (c2[-1], 1)]
        refill = [sop(f"s_sub_u32 {s_vptr}, {s_knext}, 32768", wr=[s_vptr])] + dma_K(4) + dma_K(5) + dma_K(6) + dma_V(0, 0)
        c4 = s.chain(refill, gR + 4, g2 - 2, e=gR + 1, first_dep=c3[-1])
        r2 = s.chain([vwait([("R2",)])] + q_reads(2, s_mR2, ("R2",), vt0), g2 - 16, g2 - 6, dl=g2 - 4, first_dep=r1[-1])
        nca = opt.ca7
        grp = [dma_V(0, 1), dma_V(0, 2), dma_V(0, 3), dma_K(7)]
        c5 = s.chain(sum(grp[:nca], []), g2 + 1, n - 2, e=g2 + 1, first_dep=c4[-1]) if nca else c4
    ok = [sop(f"s_add_u32 {s_ok[k]}, {s_ocur}, {k * 4096}", wr=[s_ok[k]]) if (k < 2 * nb and not opt.nostore) else sop(f"s_mov_b32 {s_ok[k]}, {OOB:#x}", wr=[s_ok[k]]) for k in range(8)]
    k0 = s.chain(ok, 4, t0e + 8)
    pbg = pass_begin()
    q3w = [i for i in pbg if i.text.startswith(f"s_mov_b32 {s_qn[3]},")][0]
    if opt.r3epi:
        pbg.remove(q3w); pbg.append(sop(f"s_mov_b32 {s_qn[3]}, {s_tab[3]}"))
        k1 = s.chain(pbg, gR + 6, n - 3, first_dep=k0[-1])
        k1[0].deps += [(c2[-1], 1), (c4[0], 1)]; k1[-1].deps += [(c3[-1], 1)]
    else:
        k1 = s.chain(pbg, gR + 6, n - 4, first_dep=k0[-1])
        k1[0].deps += [(c3[-1], 1), (c4[0], 1)]
    q = butterfly([lsum(b) for b in range(4)], "v_add_f32", lambda d, x, y: [valu("v_add_f32", LT, x, y), valu("v_rcp_f32", d, LT)], [RL(b) for b in range(4)])
    red = nodes_of(q, [x for b in range(nb) for x in u3[b][2:]], 0, 10**9, B["t5"][0] + 2, 1.5)
    rl_done = red[-2:]
    ad = [valu("v_xor_b32", WA(k), 16 * k, wa0) for k in (1, 2, 3)]
    ad += [valu("v_mbcnt_lo_u32_b32", RA, -1, 0), valu("v_mbcnt_hi_u32_b32", RA, -1, RA), valu("v_lshl_add_u32", RA, RA, 3, s_mOS),
           valu("v_xor_b32", VS1, 32, RA)]
    prev = None
    for k, i in enumerate(ad):
        nd = Node(i, deps=[(prev, 0)] if prev else [], ideal=B["t0"][1] - 12 + k); red.append(nd); prev = nd
    s.nodes += red
    t7s = B["t7"][0]
    order, acct = epi_order(nb)
    na, nc = HOIST[nb]
    hs = g2 - opt.hback
    for k in range(na * 4):
        t_ = acct[k // 4]; i = k % 4
        s.nodes.append(Node(acc_read(TMP(k // 4)[i], O(t_[2], 4 * t_[0] + t_[1])[i]), e=t7s + LAT + 1, ideal=g2 + 1 + k * 0.6,
                            deps=[(x, 0) for b in range(nb) for x in u3[b]]))
    for k in range(nc):
        c, dbl, b = order[k]; o = O(b, 4 * c + dbl)
        ms = [Node(valu("v_mul_f32", o[i], o[i], RL(b)), e=B["t5"][0] + LAT, ideal=hs + 1 + na * 2.4 + 3 * k + 0.5 * i, deps=[(x, 0) for x in rl_done]) for i in range(4)]
        c0 = Node(valu("v_cvt_pk_bf16_f32", o[0], o[0], o[1]), ideal=hs + 3 + na * 2.4 + 3 * k, deps=[(ms[0], 0), (ms[1], 0)])
        c1 = Node(valu("v_cvt_pk_bf16_f32", o[1], o[2], o[3]), ideal=hs + 3.5 + na * 2.4 + 3 * k, deps=[(ms[2], 0), (ms[3], 0), (c0, 0)])
        s.nodes += ms + [c0, c1]
    return s

def make_final(nb, name, mid=False):
    par = 1
    X0, X1, A_, B_ = sets_for(par)
    s = Seg(nb, name)
    s.qblock("t0", 0, A_, False, 0)
    s.pgen("t2", par, [[(0, 0, 0), (0, 1, 0)], [(0, 2, 0), (0, 3, 0)], [(0, 0, 1), (0, 1, 1)], [(0, 2, 1), (0, 3, 1)]], X0, X1, False)
    s.pblock("t4", par, 1, X0, X1, False, 0)
    s.pblock("t5", par, 2, X0, X1, False, 0)
    s.pblock("t7", par, 3, X0, X1, False, 0)
    n = len(s.mf); B = s.blk
    blk = [B["t2"], B["t4"], B["t5"], B["t7"]]
    u2 = s.unit(X1, X1, False, list(range(SPLIT[nb], nb)), lambda b: 0, lambda b: B["t0"][1] + 2, None, 0, B["t0"][1] - 8)
    k1 = s.first[("P", 1, 0)]
    u3 = s.unit(A_, X1, True, range(nb), lambda b: s.done[("t0", b)] + LAT, lambda b: s.first[("P", 1, b)] - 2, blk[0][1] - 1,
                B["t0"][1] - 2, k1 - 1, add_lo=k1, add_hi=k1 + 2 * nb, after=u2)
    s.reads([])
    k0 = s.chain([sop(f"s_add_u32 {s_ok[k]}, {s_ocur}, {k * 4096}", wr=[s_ok[k]]) for k in range(2 * nb)], 2, B["t0"][1])
    q = butterfly([lsum(b) for b in range(4)], "v_add_f32", lambda d, x, y: [valu("v_add_f32", LT, x, y), valu("v_rcp_f32", d, LT)], [RL(b) for b in range(4)])
    fo = opt.finoff
    cut = [min(blk[c][1] - 1 + (fo if c == 0 else opt.finoff2), n - 1) for c in range(4)]
    red = nodes_of(q, [x for b in range(nb) for x in u3[b][2:]], 0, cut[0], k1 + 2 * nb, 0.5)
    if mid:
        W0 = SET(0)[4]
        WAq = lambda c, k: SET(0)[4 + k]
        ad = [sop(f"s_sub_u32 {s_t0}, {s_mR3}, {s_mOS}", wr=[s_t0]), sop(f"s_sub_u32 {s_t1}, {s_mR2}, {s_mR3}", wr=[s_t1]),
              valu("v_add_u32", W0, s_t0, wa0)] + [valu("v_xor_b32", WA(k), 16 * k, W0) for k in (1, 2, 3)]
        ad += [valu("v_mbcnt_lo_u32_b32", RA, -1, 0), valu("v_mbcnt_hi_u32_b32", RA, -1, RA), valu("v_lshl_add_u32", RA, RA, 3, s_mR3),
               valu("v_xor_b32", VS1, 32, RA), valu("v_add_u32", SET(0)[11], s_t1, RA), valu("v_add_u32", SET(0)[12], s_t1, VS1)]
        RAq = lambda c, k: (SET(0)[11 + (k & 1)] if c >= 2 else (VS1 if k & 1 else RA))
        XO = 0; UN = lambda c: ("R2",) if c >= 2 else ("R3",)
    else:
        WAq = lambda c, k: WA(k)
        ad = [valu("v_xor_b32", WA(k), 16 * k, wa0) for k in (1, 2, 3)]
        ad += [valu("v_mbcnt_lo_u32_b32", RA, -1, 0), valu("v_mbcnt_hi_u32_b32", RA, -1, RA), valu("v_lshl_add_u32", RA, RA, 3, s_mOS),
               valu("v_xor_b32", VS1, 32, RA)]
        RAq = lambda c, k: VS1 if k & 1 else RA
        XO = (XB - vslot_addr(1, 0)) // 512; UN = lambda c: ("X",)
    prev = None
    for k, i in enumerate(ad):
        nd = Node(i, deps=[(prev, 1 if prev.ins.kind == "salu" else 0)] if prev else [], ideal=8 + k, dl=cut[0]); red.append(nd); prev = nd
    s.nodes += red
    pre = {c: [] for c in range(4)}; post = {c: [] for c in range(4)}
    if mid:
        t0e = B["t0"][1]
        def qchain(b, base, unit, tmp, lo, hi, dl, first_dep=None):
            nds = s.chain([vwait([unit])] + q_reads(b, base, unit, tmp), lo, hi, dl=dl, first_dep=first_dep)
            for k, nd in enumerate(nds[2:]): nd.e = max(nd.e, s.pairs[k // 2][1] + 1)
            return nds
        c2 = s.chain(dma_Q(s_mR2, s_qn[2], ("R2",)), 0, t0e - 2)
        r0 = qchain(0, s_mX, ("X",), vt0, t0e - 12, t0e + 2, t0e + 4)
        r1 = qchain(1, s_mR3, ("R3",), vt1, cut[0] - 14, cut[0] - 2, cut[0] - 1, first_dep=r0[-1])
        c3 = s.chain([mark_wait_lds(("q", 0, 7))] + dma_Q(s_mX, s_qn[3], ("X",)), t0e + 8, cut[0] - 2, dl=cut[0])
        c3[0].deps = [(r0[-1], 5), (c2[-1], 1)]
        c4 = s.chain([sop(f"s_sub_u32 {s_vptr}, {s_knext}, 32768", wr=[s_vptr])], 2, 4)
        pbg = pass_begin()
        q3w = [i for i in pbg if i.text.startswith(f"s_mov_b32 {s_qn[3]},")][0]
        pbg.remove(q3w); pbg.append(sop(f"s_mov_b32 {s_qn[3]}, {s_tab[3]}"))
        k1_ = s.chain(pbg, cut[0], n - 3, first_dep=k0[-1])
        k1_[0].deps += [(c2[-1], 1), (c4[0], 1)]; k1_[-1].deps += [(c3[-1], 1)]
        pre[2] = [vwait([("R2",)])] + q_reads(2, s_mR2, ("R2",), vt0) + [valu("v_add_u32", WAq(2, k), s_t1, WAq(2, k)) for k in range(4)]
        pre[2] += [mark_wait_lds(("o", 1, 2 * nb - 1)), barrier()]
        refill = [dma_K(4), dma_K(5), dma_K(6), dma_V(0, 0)]
        post[2] = refill[0]
        s.chain(refill[1] + refill[2], cut[2] + 2, n - 4, e=cut[2] + 1, first_dep=c3[-1])
        pre[3] = refill[3] + head_reads()
        post[3] = [vwait([("X",)])] + q_reads(3, s_mX, ("X",), vt1)
    temps = [V(48 + 4 * k, 4) for k in range(4)] + [O(b, db) for db in (2, 3) for b in range(4)] + [V(16 + 4 * k, 4) for k in range(4)]
    chunks = {}
    fst = (lambda c, k: store(c, k, nb)) if mid else (lambda c, k: fstore(c, k, nb))
    for c in range(4):
        tiles = [(dbl, b) for dbl in range(4) for b in range(nb)]
        src = {}; ti = 0
        for t_ in tiles:
            o = O(t_[1], 4 * c + t_[0])
            if o.k == 'a': src[t_] = temps[ti]; ti += 1
            else: src[t_] = o
        lo = cut[c - 1] + 1 if c else None
        early = set()
        if c:
            pn = None
            span = cut[c] - lo
            for k in range(2 * nb):
                ra = RAq(c - 1, k)
                i = Ins(f"ds_read2st64_b64 {PK(c - 1, k)}, {ra} offset0:{XO + k} offset1:{XO + 8 + k}", "ds", rd=[ra], wr=[PK(c - 1, k)], tag=("o", c - 1, k))
                i.lds_rd = UN(c - 1); i.private = True
                pn = Node(i, e=lo, dl=cut[c] - 1, ideal=lo + k, deps=[(pn, 0)] if pn else []); s.nodes.append(pn)
                st = fst(c - 1, k); st.need = [("o", c - 1, k)]
                s.nodes.append(Node(st, e=lo, dl=cut[c] - 1, ideal=lo + 6 + k * (span - 8) / (2 * nb), deps=[(pn, 5)]))
            budget = (opt.midb if mid else opt.finb) * nb // 4
            for t_ in tiles:
                o = O(t_[1], 4 * c + t_[0]); d = src[t_]
                e = max(lo, blk[c][0] + (t_[0] * nb + t_[1]) * 2 + 1 + LAT + 1)
                if o.k == 'a':
                    if budget < 4 or e > cut[c] - 3: break
                    s.nodes += [Node(acc_read(d[i], o[i]), e=e, dl=cut[c] - 1, ideal=e + i * 0.5) for i in range(4)]
                    early.add((t_, 'a')); budget -= 4
                else:
                    if budget < 6 or e > cut[c] - 4: break
                    ms = [Node(valu("v_mul_f32", o[i], o[i], RL(t_[1])), e=e, dl=cut[c] - 1, ideal=e + i * 0.5) for i in range(4)]
                    c0 = Node(valu("v_cvt_pk_bf16_f32", o[0], o[0], o[1]), dl=cut[c] - 1, ideal=e + 2, deps=[(ms[0], 0), (ms[1], 0)])
                    c1 = Node(valu("v_cvt_pk_bf16_f32", o[1], o[2], o[3]), dl=cut[c] - 1, ideal=e + 2.5, deps=[(ms[2], 0), (ms[3], 0), (c0, 0)])
                    s.nodes += ms + [c0, c1]; early.add((t_, 'c')); budget -= 6
        r = list(pre[c])
        if c == 0:
            c_ = valu("v_cmp_ngt_f32", "vcc", hex(L_LIMIT), LT); c_.wr.add(('s', 'vcc')); r.append(c_)
        held = None; wq = []
        for j, t_ in enumerate(tiles):
            dbl, b = t_; o = O(b, 4 * c + dbl); t4 = src[t_]
            if o.k == 'a' and (t_, 'a') not in early: r += [acc_read(t4[i], o[i]) for i in range(4)]
            if (t_, 'c') not in early:
                rlp = V(RL(b).n & ~1, 2); sel = RL(b).n & 1
                for h in range(2):
                    r.append(valu("v_pk_mul_f32", t4.sub(2 * h, 2), t4.sub(2 * h, 2), rlp, mods=f"op_sel:[0,{sel}] op_sel_hi:[1,{sel}]"))
                r += [valu("v_cvt_pk_bf16_f32", t4[0], t4[0], t4[1]), valu("v_cvt_pk_bf16_f32", t4[1], t4[2], t4[3])]
            if wq: r.append(wq.pop(0))
            if b % 2 == 0 and b + 1 < nb: held = t4
            else:
                if held is not None:
                    w = Ins(f"ds_write2st64_b64 {WAq(c, dbl)}, {held.sub(0, 2)}, {t4.sub(0, 2)} offset0:{XO + (b - 1) * 2} offset1:{XO + b * 2}", "ds",
                            rd=[WAq(c, dbl), held.sub(0, 2), t4.sub(0, 2)], tag=("w", c, j)); held = None
                else:
                    w = ds_write("ds_write_b64", WAq(c, dbl), t4.sub(0, 2), XO * 512 + b * 1024, tag=("w", c, j))
                w.lds_pw = UN(c); wq.append(w)
            if c == 0 and j == 2:
                r += [raw(f"s_cbranch_vccz L_noflag{nb}{'m' if mid else 'g'}"), sop(f"s_bitset1_b32 {s_flags}, {s_pass}"), label(f"L_noflag{nb}{'m' if mid else 'g'}")]
        r += wq
        if c < 3: r += post[c]
        if c == 3:
            for k in range(2 * nb):
                ra = RAq(3, k)
                i = Ins(f"ds_read2st64_b64 {PK(3, k)}, {ra} offset0:{XO + k} offset1:{XO + 8 + k}", "ds", rd=[ra], wr=[PK(3, k)], tag=("o", 3, k))
                i.lds_rd = UN(3); i.private = True; r.append(i)
            r += post[3]
            for k in range(2 * nb):
                st = fst(3, k); st.need = [("o", 3, k)]; r.append(st)
        chunks[cut[c]] = r
    s.chunks = chunks
    return s

def fstore(c, k, nb):
    st = store(c, k, nb)
    st.text = st.text[:st.text.index("offset:")] + f"offset:{c * 128} {opt.fmod}"
    return st

QORD = (0, 3, 2, 1)
TMP = lambda k: V(48 + 4 * (k % 12), 4)
def epi_order(nb):
    order = [(c, dbl, b) for c in QORD for dbl in ((2, 3, 0, 1) if c == 2 else range(4)) for b in range(nb)]
    if opt.pairmaj: order.sort(key=lambda t: (QORD.index(t[0]), t[2] // 2))
    return order, [t_ for t_ in order if O(t_[2], 4 * t_[0] + t_[1]).k == 'a']

def mark_wait_lds(tag):
    i = raw("s_nop 0", "nop"); i.need = [tag]; i.is_marker = True
    return i

def make_head(nb, name, nxt_name):
    X0, X1, A_, B_ = sets_for(1)
    s = Seg(nb, name)
    s.qblock("h0", 1, B_, True, 0)
    s.qblock("h1", 2, X0, True, 0)
    s.qblock("h2", 3, A_, False, 0)
    iter_blocks(s, 0, True, split=2)
    n = len(s.mf); B = s.blk
    tmp = SET(X1)
    pre = {}; nmc = {}
    part = []; emax = 0
    dlm = B["h2"][0] - 2
    for b in range(4):
        if b < nb:
            x = Sx(B_, b); e = s.done[("h0", b)] + LAT; emax = max(emax, e)
            n0 = Node(valu("v_max3_f32", tmp[b], x[0], x[1], x[2]), e=e, dl=dlm, ideal=e)
            n1 = Node(valu("v_max_f32", tmp[b], tmp[b], x[3]), e=e, dl=dlm, ideal=e + 0.5, deps=[(n0, 0)])
            s.nodes += [n0, n1]; part.append(n1)
        z = Node(valu("v_mov_b32", lsum(b), 0), e=0, dl=B["h0"][1], ideal=2 + b)
        s.nodes.append(z); pre[b] = [z]
    q = butterfly([tmp[b] for b in range(4)], "v_max_f32", lambda d, x, y: [valu("v_min_f32", d, Neg(x), Neg(y))], [Ct(b)[0] for b in range(4)])
    bf = nodes_of(q, part, 0, dlm, emax, 0.5)
    s.nodes += bf
    for b in range(nb):
        nmc[b] = tmp[8 + b]
        src = bf[-2] if b < 2 else bf[-1]
        n0 = Node(valu("v_mul_f32", nmc[b], s_c, Ct(b)[0]), dl=dlm, ideal=emax + 8 + b * 0.3, deps=[(src, 0)])
        s.nodes += [n0] + [Node(valu("v_mov_b32", Ct(b)[i], Ct(b)[0]), dl=dlm + 2 * b, ideal=emax + 12 + 2 * b + i * 0.5, deps=[(src, 0)]) for i in (1, 2, 3)]
        pre[b].append(n0)
    t0s = B["t0"][0]; t1s = B["t1"][0]
    assert opt.defer == 0
    t7s = B["t7"][0]; a0 = B["t6"][0] - 6; aw = (t7s - 4 - a0) / 4
    X = lambda k: (dict(ext=lambda b: O(b, 12 + k), add_lo=a0 + k * aw, add_hi=a0 + (k + 1) * aw) if k < opt.hext else {})
    dla = lambda k, d: (t7s - 3) if k < opt.hext else d
    w = opt.hwin
    u0 = s.unit(B_, B_, False, range(nb), lambda b: s.done[("h0", b)] + LAT, lambda b: t1s - 4, dla(0, None), B["h1"][0] + 10, B["h2"][0] + w[0], pre=pre, fma=nmc, **X(0))
    u1 = s.unit(X0, B_, True, range(nb), lambda b: s.done[("h1", b)] + LAT, lambda b: t1s - 2, dla(1, t1s - 2), B["h2"][0] + w[0], t0s + w[1], pre=pre, after=u0, fma=nmc, **X(1))
    for nd in s.nodes:
        if nd.ins.text.startswith("v_fma_f32"): nd.dl = min(nd.dl, t0s - 2); nd.ideal = min(nd.ideal, t0s - 6)
    u2 = s.unit(A_, A_, False, range(nb), lambda b: s.done[("h2", b)] + LAT, lambda b: s.first[("P", 1, b)] - 4, dla(2, None), t0s + w[1], t1s + w[2], **X(2))
    iter_units(s, 0, u2, lo3=t1s + w[2], x3=X(3), dl3=dla(3, None))
    prev = None
    for k, i in enumerate([valu("v_mbcnt_lo_u32_b32", vt1, -1, 0), valu("v_mbcnt_hi_u32_b32", vt1, -1, vt1), valu("v_lshlrev_b32", vt1, opt.tsh, vt1)]):
        nd = Node(i, deps=[(prev, 0)] if prev else [], ideal=8 + k); s.nodes.append(nd); prev = nd
    npair = len(s.pairs)
    nxt = first_pairs_of_iter(nb, 1, nxt_name)
    def tb(k, l):
        if opt.diag != 3: return l
        return [raw(f"s_memtime s[{90+4*k}:{91+4*k}]")] + l + [raw(f"s_memtime s[{92+4*k}:{93+4*k}]")]
    s.reads(nxt, barrier_before={12: tb(0, [vwait(units_of(0, 0), 0), barrier()]), 28: tb(1, [vwait(units_of(0, 1), 0), barrier()]),
                                 npair: tb(2, [vwait(units_of(1, 0), 0), barrier()])})
    g0 = s.bar_gap[12]; g1 = s.bar_gap[28]; g2 = s.bar_gap[npair]
    grp = [dma_V(0, 1), dma_V(0, 2), dma_V(0, 3), dma_K(7)][opt.ca7:] + [dma_K(0), dma_V(1, 0), dma_V(1, 1), dma_V(1, 2), dma_V(1, 3)]
    ca = s.chain(sum(grp[:opt.hca], []), 0, B["h0"][1] + 2 + (opt.hca - 4) * 2 * nb, dl=g1 - 30)
    rest = grp[opt.hca:]
    nearly = max(0, 6 - opt.hca)
    cb = s.chain(sum(rest[:nearly], []) + dma_K(1) + dma_K(2), B["t1"][0], B["t4"][0], e=g0 + 1, first_dep=ca[-1])
    cc = s.chain(sum(rest[nearly:], []) + dma_K(3), B["t4"][0] + 8, B["t6"][0] + 4, first_dep=cb[-1])
    cd = s.chain(dma_K(4) + dma_K(5) + dma_K(6) + dma_V(0, 0), B["t6"][0] + 6, n - 4, e=g1 + 1, first_dep=cc[-1])
    prev = None
    nd_ = opt.defer
    sts = [(c, k) for c in range(4 - nd_, 4) for k in range(8)]
    lo, hi = 4, s.first[("O", 3)] - 6
    for j, (c, k) in enumerate(sts):
        nd = Node(store(c, k), dl=s.first[("O", c)] - 3, ideal=min(lo + (hi - lo) * j / len(sts), s.first[("O", c)] - 6 - 4 * (7 - k)), deps=[(prev, 2)] if prev else [])
        s.nodes.append(nd); prev = nd
    head = [i for p in s.pairs[:3] for i in p[2]]
    return s, head

KF = lambda u, k: V(96 + 32 * u + 4 * k, 4)

def quick_kreads():
    r = []
    for u in range(3):
        for k in range(8):
            i = ds_read("ds_read_b128", KF(u, k), kaddr, kslot_addr(1 + u) + k * 256, tag=("kf", u, k)); i.lds_rd = ("K", 1 + u)
            r.append(i)
    return r

def quick_pro(b, nb):
    X0, X1, A_, B_ = sets_for(1)
    s = Seg(1, f"qp{b}")
    for u, dst in enumerate((B_, X0, A_)):
        st = len(s.mf)
        for k in range(8):
            d = Sx(dst, b)
            s.mf.append(mfma(d, KF(u, k), Q(b, k), d if k else 0, need=[("kf", u, 7), ("q", b, k | 1)]))
        s.blk[f"h{u}"] = (st, len(s.mf))
    n = len(s.mf)
    x = Sx(B_, b); ta, tb, nm = SET(X1)[0], SET(X1)[1], SET(X1)[2]
    seq = [valu("v_max3_f32", ta, x[0], x[1], x[2]), valu("v_max_f32", ta, ta, x[3]), valu("v_mov_b32", tb, ta),
           perm("v_permlane16_swap_b32", ta, tb), valu("v_max_f32", ta, ta, tb), valu("v_mov_b32", tb, ta),
           perm("v_permlane32_swap_b32", ta, tb), valu("v_min_f32", Ct(b)[0], Neg(ta), Neg(tb)), valu("v_mul_f32", nm, s_c, Ct(b)[0])]
    prev = None; nds = []
    for k, i in enumerate(seq):
        nd = Node(i, e=7 + LAT, ideal=7 + LAT + k * 0.5, deps=[(prev, 2 if i.op.startswith("v_permlane") else 0)] if prev else [])
        nds.append(nd); prev = nd
    z = Node(valu("v_mov_b32", lsum(b), 0), ideal=0)
    s.nodes += nds + [z] + [Node(valu("v_mov_b32", Ct(b)[i], Ct(b)[0]), ideal=n + i, deps=[(nds[7], 0)]) for i in (1, 2, 3)]
    pre = {b: [nds[8], z]}; f = {b: nm}
    u0 = s.unit(B_, B_, False, [b], lambda _: 0, lambda _: n - 1, None, 16, 20, pre=pre, fma=f)
    s.unit(X0, B_, True, [b], lambda _: 15 + LAT, lambda _: n - 1, n - 1, 20, 23, pre=pre, after=u0, fma=f)
    if b < SPLIT[nb]:
        s.unit(A_, A_, False, [b], lambda _: n - 1, lambda _: n - 1, None, 24, 27, pre=pre, fma=f)
    else:
        y = Sx(A_, b)
        s.nodes += [Node(valu("v_add_f32", y[i], y[i], Ct(b)[0]), e=n - 1, ideal=30 + i, deps=[(nds[7], 0)]) for i in range(4)]
    return s

def make_it0(nb, name, nxt_name):
    X0, X1, A_, B_ = sets_for(0)
    s = Seg(nb, name)
    iter_blocks(s, 0, True, split=(1 if nb == 3 else 0))
    n = len(s.mf); B = s.blk
    u2 = s.unit(X1, X1, False, list(range(SPLIT[nb], nb)), lambda b: 0, lambda b: B["t0"][1] + 2, None, 0, B["t0"][1] - 4)
    iter_units(s, 0, u2)
    prev = None
    for k, i in enumerate([valu("v_mbcnt_lo_u32_b32", vt1, -1, 0), valu("v_mbcnt_hi_u32_b32", vt1, -1, vt1), valu("v_lshlrev_b32", vt1, opt.tsh, vt1),
                           valu("v_mov_b32", lsum(3), 0)]):
        nd = Node(i, deps=[(prev, 0)] if prev else [], ideal=B["t6"][0] + k); s.nodes.append(nd); prev = nd
    npair = len(s.pairs)
    s.reads(first_pairs_of_iter(nb, 1, nxt_name), barrier_before={16: [vwait(units_of(0, 1), 0), barrier()], npair: [vwait(units_of(1, 0), 0), barrier()]})
    g1 = s.bar_gap[16]
    ca = s.chain(dma_V(1, 0) + dma_V(1, 1) + dma_V(1, 2), 2, B["t0"][1] + 2)
    cb = s.chain(dma_V(1, 3) + dma_K(3), B["t2"][0] + 6, g1 - 2, first_dep=ca[-1])
    s.chain(dma_K(4) + dma_K(5) + dma_K(6) + dma_V(0, 0), B["t4"][0] + 14, n - 8, e=g1 + 1, first_dep=cb[-1])
    return s, [i for p in s.pairs[:3] for i in p[2]]

def quick_start(nb, q_after):
    out = []; q = []
    def add(seq):
        nonlocal q
        o, q = lin(seq, q); out.extend(o)
    def seg(sg, nxt=()):
        nonlocal q
        o, q = flat(sg.build(), q, list(nxt)); out.extend(o)
    add([barrier()] + quick_kreads())
    q = [("q", 0, k) for k in range(8)] + q
    seg(quick_pro(0, nb))
    add([vwait([("R2",)])] + q_reads(1, s_mR2, ("R2",), vt1) + dma_K(4) + dma_K(5) + dma_K(6) + dma_V(0, 0) + [waitcnt(None, 0), barrier()])
    add(dma_V(0, 1) + dma_V(0, 2) + dma_V(0, 3) + dma_K(7))
    seg(quick_pro(1, nb))
    add(dma_K(0) + dma_K(1) + dma_K(2) + pass_begin())
    it0, hr = make_it0(nb, "z0", "i1")
    add([vwait([("OS",)])] + q_reads(2, s_mOS, ("OS",), vt0) + [vwait(units_of(0, 0), 0), barrier()] + hr)
    seg(quick_pro(2, nb))
    G = it0.build()
    print("quick it0 overflow", it0.over, file=sys.stderr)
    s1 = Seg(nb, "i1"); s1.qblock("t0", 0, 0, False, 0)
    o, q = flat(G, q, s1.mf[0].need); out.extend(o)
    assert q == q_after, (q, q_after)
    return fix_hazards(out)

def perm(op, a, b):
    i = valu(op, a, b, extra_rd=[a], extra_wr=[b]); i.cost = 8
    return i

def acc_read(d, a):
    i = Ins(f"v_accvgpr_read_b32 {d}, {a}", "acc", rd=[a], wr=[d]); return i

def make_epi(nb, final):
    r = []
    c_ = valu("v_cmp_ngt_f32", "vcc", hex(L_LIMIT), LT); c_.wr.add(('s', 'vcc')); r.append(c_)
    tag = f"{nb}{'f' if final else ''}"
    flagl = [raw(f"s_cbranch_vccz L_noflag{tag}"), sop(f"s_bitset1_b32 {s_flags}, {s_pass}"), label(f"L_noflag{tag}")]
    def fin_only(st):
        if final:
            st.text = st.text[:st.text.index("offset:")] + f"offset:{st.quarter * 128} {opt.fmod}"
            return [st]
        return [st] if st.quarter < 4 - opt.defer else []
    def cluster(ins): return [] if final else ins
    order, acct = epi_order(nb)
    slot = {t_: k for k, t_ in enumerate(acct)}
    accq = [(t_, i) for t_ in acct for i in range(4)]
    nacc = 4 * HOIST[nb][0]; done_acc = 0
    rdq = []; stq = []; oth = []; wq = []
    dq = [dma_K(4), dma_K(5), dma_K(6), dma_V(0, 0)] if opt.r3epi else []
    d0 = 6 + len(order) * opt.dq0 // 100
    dstep = (len(order) * 3 // 4) // 4
    held = None
    for j, (c, dbl, b) in enumerate(order):
        o = O(b, 4 * c + dbl)
        want = min(len(acct) * 4, -(-(j + 1) * len(acct) * 4 // (order.index(acct[-1]) - 2)))
        while nacc < len(acct) * 4 and (nacc < want or (o.k == 'a' and nacc < 4 * (slot[(c, dbl, b)] + 1))):
            if nacc // 4 >= done_acc + 12:
                assert not (o.k == 'a' and nacc < 4 * (slot[(c, dbl, b)] + 1)), "out of temps"
                break
            t_, i = accq[nacc]; nacc += 1
            r.append(acc_read(TMP(slot[t_])[i], O(t_[2], 4 * t_[0] + t_[1])[i]))
        t4 = TMP(slot[(c, dbl, b)]) if o.k == 'a' else o
        rlp = V(RL(b).n & ~1, 2); sel = RL(b).n & 1
        if j >= HOIST[nb][1]:
            for h in range(2):
                r.append(valu("v_pk_mul_f32", t4.sub(2 * h, 2), t4.sub(2 * h, 2), rlp, mods=f"op_sel:[0,{sel}] op_sel_hi:[1,{sel}]"))
            r += [valu("v_cvt_pk_bf16_f32", t4[0], t4[0], t4[1]), valu("v_cvt_pk_bf16_f32", t4[1], t4[2], t4[3])]
        if b % 2 == 0 and b + 1 < nb:
            held = (t4, o.k == 'a')
        else:
            na = int(o.k == 'a')
            if held is not None:
                w = Ins(f"ds_write2st64_b64 {WA(dbl)}, {held[0].sub(0, 2)}, {t4.sub(0, 2)} offset0:{(b - 1) * 2} offset1:{b * 2}", "ds",
                        rd=[WA(dbl), held[0].sub(0, 2), t4.sub(0, 2)], tag=("w", j))
                na += held[1]; held = None
            else:
                w = ds_write("ds_write_b64", WA(dbl), t4.sub(0, 2), b * 1024, tag=("w", j))
            w.lds_pw = ("OS",); wq.append((w, na))
        if j == 4: r += flagl
        if dq and j >= d0 and (j - d0) % dstep == 0: r += cluster(dq.pop(0))
        last = (j + 1) % (4 * nb) == 0; pos = j // (4 * nb)
        def back(c, ks):
            for k in ks:
                ra = VS1 if k & 1 else RA
                i = Ins(f"ds_read2st64_b64 {PK(c, k)}, {ra} offset0:{k} offset1:{8 + k}", "ds", rd=[ra], wr=[PK(c, k)], tag=("o", c, k))
                i.lds_rd = ("OS",); i.private = True; i.pr = k // 4
                rdq.append(i)
        if opt.pairmaj:
            if wq:
                while any(x.pr == b // 2 for x in rdq): r.append(rdq.pop(0))
                w, na = wq.pop(0); r.append(w); done_acc += na
            elif rdq: r.append(rdq.pop(0))
            if nb == 3 and b == 2 and rdq: r.append(rdq.pop(0))
            uend = j + 1 == len(order) or order[j + 1][0] != c or order[j + 1][2] // 2 != b // 2
            if stq and j % 2 == 0 and stq[0][0] <= j: r += fin_only(stq.pop(0)[1])
            elif oth and j % 4 == 1: r += cluster(oth.pop(0))
            if uend:
                ks = [k for k in range(2 * nb) if k // 4 == b // 2]
                back(c, ks)
                for n_, k in enumerate(ks):
                    st = store(c, k, nb); st.need = [("o", c, k)]; stq.append((j + 4 + 2 * n_, st))
        else:
            for _ in range(opt.epi_rd):
                if rdq: r.append(rdq.pop(0))
            if not rdq or last:
                r += rdq; rdq.clear()
                k_ = 0
                while wq and (k_ < 1 or last):
                    w, na = wq.pop(0); r.append(w); done_acc += na; k_ += 1
            if stq and j % 2 == 1 and stq[0][0] <= j: r += fin_only(stq.pop(0)[1])
            elif oth and j % 2 == 0 and not rdq:
                r += cluster(oth.pop(0))
            if last:
                back(c, range(2 * nb))
                for k in range(2 * nb):
                    st = store(c, k, nb); st.need = [("o", c, k if (k < 3 or pos == 3) else 2 * nb - 1)]; stq.append((j + 3 + k // opt.epi_rd, st))
        if last:
            def halves(l): return [l[:len(l) - 4], l[len(l) - 4:]]
            if opt.r3epi:
                if pos == 0: oth += [head_reads()]
                if pos == 1: oth += halves([vwait([("R2",)])] + q_reads(2, s_mR2, ("R2",), vt0))
                if pos == 2: oth += halves([vwait([("X",)])] + q_reads(3, s_mX, ("X",), vt1))
            else:
                if c == 0: oth += halves([vwait([("X",)])] + q_reads(3, s_mX, ("X",), vt0))
                if c == 1: oth += [head_reads()]
    assert not oth and not dq
    r += rdq
    for x in stq: r += fin_only(x[1])
    return r

def head_reads():
    s = Seg(4, "hd"); s.qblock("h0", 1, 0, True, 0)
    return [i for p in s.pairs[:3] for i in p[2]]

def store(c, k, nb=None):
    data = PK(c, k)
    mod = {3: opt.omod3, 4: opt.omod4}.get(nb) or opt.omod
    vo = vsto
    i = Ins(f"buffer_store_dwordx4 {data}, {vo}, {sO}, {s_ok[k]} offen offset:{c * 128} {mod}".rstrip(), "vmem", rd=[data, vo, sO, s_ok[k]])
    i.wide_store = True; i.data = data.set(); i.vm = True; i.quarter = c; i.k = k
    return i

def lin(seq, pre=()):
    out = []; q = list(pre)
    for i in seq:
        if i.need:
            idx = -1
            for t in i.need:
                if t in q: idx = max(idx, len(q) - 1 - q[::-1].index(t))
            if idx >= 0:
                n = min(len(q) - 1 - idx, 15)
                out.append(waitcnt(None, n)); q = q[idx + 1:]
        if getattr(i, "lgw", None) is not None: q = q[len(q) - i.lgw:] if i.lgw else []
        if getattr(i, "is_marker", False): continue
        if i.kind == "ds" and not getattr(i, "optional", False): q.append(i.tag)
        out.append(i)
    return out, q

def flat(gaps, pre, nxt_need):
    out = []; q = list(pre)
    def wf(need):
        nonlocal q
        idx = -1
        for t in need:
            if t in q: idx = max(idx, len(q) - 1 - q[::-1].index(t))
        if idx < 0: return
        n = min(len(q) - 1 - idx, 15)
        out.append(waitcnt(None, n)); q = q[idx + 1:]
    for g, (m, sc, oth) in enumerate(gaps):
        wf(m.need)
        out.append(m)
        has_l0 = any(getattr(i, "lgw", None) == 0 for i in sc)
        if not has_l0:
            wf(gaps[g + 1][0].need if g + 1 < len(gaps) else nxt_need)
        for i in sc + oth:
            if i.need: wf(i.need)
            if getattr(i, "lgw", None) == 0: q = []
            if getattr(i, "is_marker", False): continue
            if i.kind == "ds": q.append(i.tag)
            out.append(i)
    return out, q

E32 = ("v_mul_f32", "v_add_f32", "v_exp_f32", "v_mov_b32", "v_max_f32", "v_xor_b32", "v_rcp_f32")
def isize(i):
    t = i.text
    if i.kind == "label": return 0
    op = t.split()[0]
    if op.startswith("s_"):
        import re
        m = re.findall(r"[ ,](0x[0-9a-f]+|-?\d+)\s*$", t)
        if op in ("s_waitcnt", "s_barrier", "s_nop") or op.startswith("s_cbranch") or op == "s_branch": return 4
        if m and not (-16 <= int(m[0], 0) <= 64): return 8
        return 4
    if op in E32 or op in ("v_add_u32", "v_lshlrev_b32", "v_permlane16_swap_b32", "v_permlane32_swap_b32"):
        return 8 if "-v" in t else 4
    return 8

def align8(seq, start=0):
    pos = start; cand = None
    for i in seq:
        if i.kind == "mfma":
            if pos % 8 and cand is not None:
                op = cand.text.split()[0]; cand.text = cand.text.replace(op, op + "_e64", 1); pos += 4
            cand = None
        sz = isize(i)
        if sz == 4 and i.text.split()[0] in E32 and cand is None: cand = i
        pos += sz
    return pos

def strip_clusters(seq, lab="L_sk"):
    out = []; skip = False
    for i in seq:
        if i.kind == "label" and i.text.startswith(lab): skip = False
        if not skip: out.append(i)
        if i.text.startswith("s_cbranch") and i.text.split()[1].startswith(lab): skip = True
    return out

def label(n): return Ins(n + ":", "label", states=0, cost=0)

def stamp(k):
    if not opt.diag: return []
    return [raw(f"s_memrealtime {s_ts}"), raw("s_memtime s[66:67]"), raw("s_waitcnt lgkmcnt(0)", "wait0"), raw(f"s_mov_b32 m0, {s_tsp}"), raw("s_nop 1"),
            raw(f"v_writelane_b32 v0, {s_ts.sub(0)}, m0"), raw(f"s_add_u32 m0, m0, 32"), raw("s_nop 1"), raw("v_writelane_b32 v0, s66, m0"),
            raw(f"s_add_u32 {s_tsp}, {s_tsp}, 1")]

def retag(q, old, new):
    return [tuple(new if x == old else x for x in t) if len(t) > 1 else t for t in q]

def variant(nb):
    P = {}
    hd, head = make_head(nb, "hd", "i1")
    i1 = make_mid(nb, 1, "i1", "i2")
    i2 = make_mid(nb, 2, "i2", "i1")
    i6 = make_mid(nb, 6, "i2", "i1", special=True)
    i7 = make_last(nb, "i1")
    fin = make_final(nb, "i1")
    mid = make_final(nb, "i1", mid=True)
    SG = dict(hd=hd, i1=i1, i2=i2, i6=i6, i7=i7, fin=fin, mid=mid)
    G = {k: s.build() for k, s in SG.items()}
    for g, ch in fin.chunks.items(): G["fin"][g][2].extend(ch)
    for g, ch in mid.chunks.items(): G["mid"][g][2].extend(ch)
    print(f"nb={nb} overflow cycles:", {k: s.over for k, s in SG.items()}, file=sys.stderr)
    P["hd"], q0 = flat(G["hd"], [], G["i1"][0][0].need)
    P["i1"], q1 = flat(G["i1"], q0, G["i2"][0][0].need)
    P["i2"], q2 = flat(G["i2"], q1, G["i1"][0][0].need)
    assert q2 == q0, (q0, q2)
    P["q0"] = q0
    for k in ("i1", "i2"):
        if opt.abl & 1024: P[k] = [i for i in P[k] if not i.text.startswith("v_add_f32")]
        if opt.abl & 2048: P[k] = [i for i in P[k] if not (i.kind == "ds" and "b128" in i.text)]
        if opt.abl & 4096: P[k] = [i for i in P[k] if not (i.kind == "ds" and "tr_b16" in i.text)]
        if opt.abl & 16: P[k] = [i for i in P[k] if not getattr(i, "bar", False)]
        if opt.abl & 32: P[k] = [i for i in P[k] if i.kind != "vmem"]
        if opt.abl & 64: P[k] = [i for i in P[k] if i.kind not in ("valu", "trans")]
        if opt.abl & 128: P[k] = [i for i in P[k] if i.kind != "ds"]
        if opt.abl & 256: P[k] = [i for i in P[k] if not (i.kind == "salu" and "m0" in i.text)]
    P["i6"], q = flat(G["i6"], q1, G["i7"][0][0].need)
    P["fin"], _ = flat(G["fin"], q, [])
    P["mid"], _ = flat(G["mid"], q, [])
    P["i7"], q = flat(G["i7"], q, [])
    P["epf"], _ = lin(make_epi(nb, True), q)
    ep = make_epi(nb, False)
    if opt.abl & 8192: ep = [i for i in ep if not getattr(i, "dma_wr", None)]
    if opt.abl & 16384: ep = [i for i in ep if getattr(i, "vmneed", None) is None]
    if opt.abl & 1: ep = [i for i in ep if not i.text.startswith("buffer_store")]
    if opt.abl & 2: ep = [i for i in ep if getattr(i, "lds_rd", None) != ("OS",)]
    if opt.abl & 4: ep = [i for i in ep if not i.text.startswith("ds_write")]
    if opt.abl & 8: ep = [i for i in ep if i.kind != "acc"]
    P["epi"], q = lin(ep, q)
    return P

def resolve_vm(traces):
    ws = set()
    for tr in traces:
        n = 0; last = {}
        for i in tr:
            if getattr(i, "vmneed", None) is not None:
                idx = max([last.get(u, -1) for u in i.vmneed])
                if idx >= 0: i.vmauto = min(i.vmauto, n - 1 - idx)
                ws.add(i)
            if getattr(i, "vm", False):
                u = getattr(i, "dma_wr", None)
                if u: last[u] = n
                n += 1
    for i in ws:
        i.vmw = i.vmauto
        i.text = f"s_waitcnt vmcnt({i.vmw})" + (f" lgkmcnt({i.lgw})" if i.lgw is not None else "")

def check_trace(trace):
    vm = []
    lg = []
    state = {}
    epoch = 0
    ALIAS = {("R2",): [("V", 0, 1), ("V", 0, 2), ("V", 0, 3), ("K", 7)], ("OS",): [("V", 1, c) for c in range(4)],
             ("R3",): [("K", 4), ("K", 5), ("K", 6), ("V", 0, 0)]}
    def phys(u): return ALIAS.get(u, [u])
    wr_land = {}; wr_pend = {}; rd_done = {}; rd_pend = {}; owner = {}
    errs = []
    cur_m0 = None
    for k, i in enumerate(trace):
        if M0 in i.wr: cur_m0 = i
        if getattr(i, "m0ref", None) is not None and cur_m0 is not i.m0ref: errs.append((k, "stale M0", i.text))
        if getattr(i, "vmw", None) is not None:
            while len(vm) > i.vmw:
                o = vm.pop(0)
                u = getattr(o, "dma_wr", None)
                if u: wr_pend[u] -= 1; wr_land[u] = epoch
        if getattr(i, "lgw", None) is not None or i.kind == "wait0":
            n = 0 if i.kind == "wait0" else i.lgw
            while len(lg) > n:
                o = lg.pop(0)
                u = getattr(o, "lds_rd", None) or getattr(o, "lds_pw", None)
                if u: rd_pend[u] -= 1; rd_done[u] = epoch
        if getattr(i, "bar", False): epoch += 1
        u = getattr(i, "lds_rd", None)
        if u:
            if True:
                if wr_pend.get(u, 0) > 0: errs.append((k, "read of unit with pending DMA", u, i.text))
                elif not getattr(i, "private", False) and wr_land.get(u, 10**9) >= epoch: errs.append((k, "read without barrier after landing", u, i.text))
            for p in phys(u):
                if owner.get(p) != u: errs.append((k, "read of unit owned by", owner.get(p), u, i.text))
        w = getattr(i, "dma_wr", None) or getattr(i, "lds_pw", None)
        if w:
            for p in phys(w):
                o = owner.get(p)
                if o is not None:
                    priv = (o == w and w in (("X",), ("R2",), ("R3",), ("OS",)))
                    if rd_pend.get(o, 0) > 0 and not (getattr(i, "lds_pw", None) and o == w):
                        errs.append((k, "write over unit with reads in flight", o, w, i.text))
                    if not priv and rd_done.get(o, -1) >= epoch: errs.append((k, "write without barrier after reads", o, w, i.text))
                    if o != w and wr_pend.get(o, 0) > 0: errs.append((k, "write over pending dma", o, w))
                    if o != w and wr_land.get(o, -1) >= epoch: errs.append((k, "write over unit landed w/o barrier", o, w))
                owner[p] = w
        if i.kind == "ds":
            lg.append(i)
            u = getattr(i, "lds_rd", None) or getattr(i, "lds_pw", None)
            if u: rd_pend[u] = rd_pend.get(u, 0) + 1
        if getattr(i, "vm", False):
            vm.append(i)
            u = getattr(i, "dma_wr", None)
            if u: wr_pend[u] = wr_pend.get(u, 0) + 1
            assert len(vm) <= 63, "vmcnt overflow"
    return errs

def cross_check(traces):
    ALIAS = {("R2",): [("V", 0, 1), ("V", 0, 2), ("V", 0, 3), ("K", 7)], ("OS",): [("V", 1, c) for c in range(4)],
             ("R3",): [("K", 4), ("K", 5), ("K", 6), ("V", 0, 0)]}
    allg = []
    for tr in traces:
        gens = {}; epoch = 0; vm = []; lg = []
        for i in tr:
            if getattr(i, "vmw", None) is not None:
                while len(vm) > i.vmw:
                    for g in vm.pop(0): g["land"] = epoch
            if getattr(i, "lgw", None) is not None or i.kind == "wait0":
                n = 0 if i.kind == "wait0" else i.lgw
                while len(lg) > n:
                    for g in lg.pop(0): g["done"] = epoch
            if getattr(i, "bar", False): epoch += 1
            w = getattr(i, "dma_wr", None) or getattr(i, "lds_pw", None); r = getattr(i, "lds_rd", None)
            touched = []
            u = w or r
            if u and u != ("X",):
                for p in ALIAS.get(u, [u]):
                    l = gens.setdefault(p, [])
                    if w and (not l or l[-1]["own"] != u or (l[-1]["rd0"] is not None and u not in ALIAS)):
                        l.append(dict(own=u, wr0=epoch, land=10**9, rd0=None, done=-1))
                    g = l[-1]
                    if r and g["rd0"] is None: g["rd0"] = epoch
                    if r or getattr(i, "lds_pw", None): g["done"] = 10**9
                    if getattr(i, "dma_wr", None): g["land"] = 10**9
                    touched.append(g)
            if i.kind == "ds": lg.append(touched)
            if getattr(i, "vm", False): vm.append(touched)
        allg.append((gens, epoch))
    assert len(set(e for _, e in allg)) == 1, "barrier counts differ"
    for p in allg[0][0]:
        n = len(allg[0][0][p])
        assert all(len(g[p]) == n and [x["own"] for x in g[p]] == [x["own"] for x in allg[0][0][p]] for g, _ in allg), ("generations differ", p)
        for k in range(n):
            G = [g[p][k] for g, _ in allg]
            if G[0]["own"] not in ALIAS and G[0]["rd0"] is not None:
                assert max(x["land"] for x in G) < min(x["rd0"] for x in G), ("cross RAW", p, k, G)
            if k + 1 < n:
                N = [g[p][k + 1] for g, _ in allg]
                assert max(x["done"] for x in G) < min(x["wr0"] for x in N), ("cross WAR", p, k, G, N)
                if G[0]["own"] != N[0]["own"] and any(x["land"] != 10**9 or x["rd0"] is not None for x in G) and G[0]["own"] != ("OS",):
                    assert max(x["land"] for x in G) < min(x["wr0"] for x in N), ("cross WAW", p, k, G, N)

THR = {}
HELP = {}
RANK = {}
HELPN = {}
def schedule_table(mode):
    tab = {}
    if mode == "simple":
        for wg in range(256):
            x = wg & 7; idx = wg >> 3
            head = x * 16 + (idx >> 1); base = 41 * (idx & 1)
            tab[wg] = [(head, base, 12), (head, base + 12, 16), (head, base + 28, 13)]
    elif mode == "share":
        for x in range(8):
            rounds = [[], [], []]
            def add(r, h, start, sizes):
                for sz in sizes:
                    rounds[r].append((x * 16 + h, start, sz)); start += sz
                return start
            for h in range(10):
                st = add(0, h, 0, [12, 12, 12]); add(1 if h < 6 else 2, h, st, [15, 15, 16])
            st = add(0, 10, 0, [12, 12]); st = add(1, 10, st, [15, 14]); add(2, 10, st, [15, 14])
            for h in range(11, 16):
                add(1 if h < 13 else 2, h, 0, [14, 14, 14, 14, 13, 13])
            assert all(len(r) == 32 for r in rounds), [len(r) for r in rounds]
            for idx in range(32):
                tab[idx * 8 + x] = [rounds[0][idx], rounds[1][idx], rounds[2][idx]]
    elif mode.startswith("g6"):
        orders = {"A": (0, 1, 2), "B": (1, 0, 2), "C": (2, 1, 0), "D": (2, 0, 1)}
        pat = mode.split("_")[1]
        rot = pat.startswith("x"); pat = pat.lstrip("x")
        for x in range(8):
            for g in range(6):
                o = orders[pat[(g + (x if rot else 0)) % len(pat)]] if not pat.startswith("X") else orders["ABC"[x % 3]]
                if g < 5:
                    ha, hb, hc = [x * 16 + 3 * g + i for i in range(3)]
                    r0 = [(ha, 0, 12), (ha, 12, 12), (ha, 24, 12), (hb, 0, 12), (hb, 12, 12), (hb, 24, 12)]
                    r1 = [(ha, 36, 15), (ha, 51, 15), (ha, 66, 16), (hb, 36, 15), (hb, 51, 15), (hb, 66, 16)]
                    r2 = [(hc, 0, 14), (hc, 14, 14), (hc, 28, 13), (hc, 41, 14), (hc, 55, 14), (hc, 69, 13)]
                    n = 6
                else:
                    h = x * 16 + 15
                    r0 = [(h, 0, 12), (h, 12, 12)]; r1 = [(h, 24, 15), (h, 39, 15)]; r2 = [(h, 54, 14), (h, 68, 14)]
                    n = 2
                R = [r0, r1, r2]
                for i in range(n):
                    tab[(6 * g + i) * 8 + x] = [R[o[0]][i], R[o[1]][i], R[o[2]][i]]
    elif mode.startswith("t3"):
        _, lo, so, th = mode.split("_")
        th = [int(x, 16) for x in th.split(".")]
        alt = mode.startswith("t3a")
        if alt:
            LS = [i for i in range(32) if not i & 4]; SS = [i for i in range(32) if i & 4]
        else:
            LS = [6 * g + i for g in range(5) for i in range(3)] + [30]; SS = [6 * g + 3 + i for g in range(5) for i in range(3)] + [31]
        for x in range(8):
            H = [x * 16 + i for i in range(16)]
            T3 = lambda h: [(h, 0, 12), (h, 12, 12), (h, 24, 12)]
            T4 = lambda h: [(h, 36, 16), (h, 52, 16), (h, 68, 14)]
            for g in range(5):
                a, b, c = H[3 * g], H[3 * g + 1], H[3 * g + 2]
                Lt = {"3": T3(a), "4": T4(a), "5": T4(b)[::-1]}
                St = {"3": T3(c), "2": T3(b), "4": T4(c)}
                lord = lo.split(".")[(g + x) % len(lo.split("."))]; sord = so.split(".")[(g + x) % len(so.split("."))]
                for i in range(3):
                    wl = LS[3 * g + i] * 8 + x; wsn = SS[3 * g + i] * 8 + x
                    tab[wl] = [Lt[k][i] for k in lord]
                    tab[wsn] = [St[k][i] for k in sord]
                    THR[wsn] = th[(g + x) % len(th)]
                    RANK[wl] = i; RANK[wsn] = i
                    h0, st0, _n = Lt[lord[0]][i]
                    HELP[wsn] = (h0 * SQ + st0 * 16) * 512
            h = H[15]
            tab[LS[15] * 8 + x] = [(h, 0, 12), (h, 36, 16), (h, 68, 14)]
            if alt:
                tab[SS[15] * 8 + x] = [(h, 52, 16), (h, 12, 12), (h, 24, 12)]
                THR[SS[15] * 8 + x] = th[0]; HELP[SS[15] * 8 + x] = h * SQ * 512
            else:
                tab[SS[15] * 8 + x] = [(h, 12, 12), (h, 52, 16), (h, 24, 12)]
    elif mode.startswith("t6"):
        _, lo, th = mode.split("_")
        th = [int(x, 16) for x in th.split(".")]
        LS = [i for i in range(32) if not i & 4]; SS = [i for i in range(32) if i & 4]
        for x in range(8):
            T3 = lambda h: [(h, 0, 12), (h, 12, 12), (h, 24, 12)]
            T4 = lambda h, r: [[(h, 36, 16), (h, 52, 16), (h, 68, 14)][(i + r) % 3] for i in range(3)]
            for g in range(5):
                pat = lo.split(".")[(g + x) % len(lo.split("."))]
                for i in range(3):
                    wl = LS[3 * g + i] * 8 + x; wsn = SS[3 * g + i] * 8 + x
                    tab[wl] = []; tab[wsn] = []
                    for r in range(3):
                        h = x * 16 + 3 * g + r
                        a, b = T3(h)[i], T4(h, r)[i]
                        tab[wl].append(a if pat[r] == "3" else b); tab[wsn].append(b if pat[r] == "3" else a)
                    THR[wsn] = th[(g + x) % len(th)]; RANK[wl] = i; RANK[wsn] = i
                    HELP[wsn] = (tab[wl][0][0] * SQ + tab[wl][0][1] * 16) * 512; HELPN[wsn] = tab[wl][0][2]
            h = x * 16 + 15; pat = lo.split(".")[0]
            i3 = [(h, 0, 12), (h, 12, 12), (h, 24, 12)]; i4 = [(h, 36, 16), (h, 52, 16), (h, 68, 14)]
            wl = LS[15] * 8 + x; wsn = SS[15] * 8 + x
            tab[wl] = [(i3 if pat[r] == "3" else i4)[r] for r in range(3)]
            tab[wsn] = [(i4 if pat[r] == "3" else i3)[r] for r in range(3)]
            THR[wsn] = th[0]; HELP[wsn] = (h * SQ + tab[wl][0][1] * 16) * 512; HELPN[wsn] = tab[wl][0][2]
    cov = {}
    for wg, l in tab.items():
        for h, st, n in l:
            assert 12 <= n <= 16
            for b in range(st, st + n):
                assert (h, b) not in cov; cov[(h, b)] = wg
    assert len(cov) == 128 * 82
    return tab

def setup_code():
    L = []; A = L.append
    if opt.diag or opt.padto: A("s_memrealtime s[100:101]")
    A("s_cmp_ge_u32 s2, 256")
    A("s_cbranch_scc1 L_exit")
    A("s_load_dwordx4 s[72:75], s[0:1], 0")
    A("s_load_dwordx4 s[76:79], s[0:1], 16")
    if opt.diag: A("s_load_dwordx2 s[64:65], s[0:1], 40")
    A("s_getpc_b64 s[4:5]")
    A("L_pc:")
    A("s_lshl_b32 s3, s2, 6")
    A("s_add_u32 s3, s3, L_table-L_pc")
    A("s_add_u32 s46, s4, s3")
    A("s_addc_u32 s47, s5, 0")
    A("s_load_dwordx16 s[80:95], s[46:47], 0")
    A(f"s_mov_b32 {sC[0]}, s4\ns_mov_b32 {sC[1]}, s5\ns_mov_b32 {sC[2]}, L_warm_end-L_pc\ns_mov_b32 {sC[3]}, 0x20000")
    if opt.warm == 1:
        A(f"v_lshlrev_b32 v16, 5, v0\ns_lshl_b32 s3, s2, 10\ns_and_b32 s3, s3, 0xe000\nbuffer_load_dword v17, v16, {sC}, s3 offen")
    elif opt.warm:
        A("v_lshlrev_b32 v16, 7, v0")
        for k in range(opt.warm): A(f"s_mov_b32 s3, {k * 32768}\nbuffer_load_dword v{17 + k}, v16, {sC}, s3 offen")
    A(f"v_readfirstlane_b32 {s_wave}, v0")
    A("v_and_b32 v10, 63, v0")
    A(f"s_lshr_b32 {s_wave}, {s_wave}, 6")
    A("v_and_b32 v11, 15, v10")
    A("v_lshrrev_b32 v14, 4, v10")
    A("v_lshrrev_b32 v15, 2, v11\nv_lshlrev_b32 v1, 11, v15\nv_and_b32 v6, 3, v11\nv_lshl_add_u32 v1, v6, 6, v1")
    A("v_lshrrev_b32 v6, 3, v11\nv_lshlrev_b32 v6, 1, v6\nv_xor_b32 v6, v6, v14\nv_lshl_add_u32 v1, v6, 4, v1")
    A("v_lshrrev_b32 v6, 1, v14\nv_lshlrev_b32 v2, 10, v6\nv_and_b32 v7, 1, v14\nv_lshl_add_u32 v6, v7, 2, v15\nv_lshl_add_u32 v2, v6, 6, v2")
    A(f"v_and_b32 v8, 3, v10\nv_lshl_add_u32 v2, v8, 3, v2\nv_lshl_add_u32 v2, v7, 5, v2\nv_add_u32 v2, {VB}, v2\nv_xor_b32 v3, 32, v2")
    A("v_lshlrev_b32 v12, 9, v15\nv_lshl_add_u32 v12, v14, 6, v12\nv_lshl_add_u32 v12, v8, 4, v12\nv_xor_b32 v13, 32, v12\nv_add_u32 v13, 4096, v13")
    A(f"s_lshl_b32 {s_mK}, {s_wave}, 11\ns_lshr_b32 s3, {s_wave}, 1\ns_lshl_b32 s3, s3, 5")
    A(f"v_xor_b32 v4, s3, v12\nv_add_u32 v4, {s_mK}, v4")
    A("v_lshrrev_b32 v6, 2, v10\nv_and_b32 v6, 7, v6\nv_lshlrev_b32 v5, 9, v6\nv_lshrrev_b32 v6, 2, v6\nv_lshlrev_b32 v6, 1, v6\nv_xor_b32 v6, v6, v8")
    A(f"v_lshl_add_u32 v5, v6, 4, v5\nv_lshrrev_b32 v6, 5, v10\nv_lshl_add_u32 v5, v6, 6, v5\ns_lshl_b32 s3, {s_wave}, 13\nv_add_u32 v5, s3, v5")
    A(f"s_add_u32 {s_mX}, s3, {XB}")
    A(f"s_add_u32 {s_mOS}, s3, {vslot_addr(1, 0)}")
    A(f"s_add_u32 {s_mR2}, s3, {vslot_addr(0, 0)}")
    A(f"s_cmp_eq_u32 {s_wave}, 0\ns_cselect_b32 {s_mR2}, {kslot_addr(7)}, {s_mR2}")
    A(f"s_add_u32 {s_mR3}, s3, {kslot_addr(4)}")
    A(f"s_cmp_eq_u32 {s_wave}, 3\ns_cselect_b32 {s_mR3}, {vslot_addr(0, 0)}, {s_mR3}")
    A("v_lshrrev_b32 v6, 1, v14\nv_lshrrev_b32 v9, 1, v11\nv_xor_b32 v6, v6, v9\nv_lshlrev_b32 v6, 3, v6\nv_lshl_add_u32 v6, v7, 12, v6")
    A(f"v_lshl_add_u32 v6, v11, 6, v6\nv_add_u32 v15, {s_mOS}, v6")
    A("v_lshrrev_b32 v6, 3, v10\nv_and_b32 v9, 7, v10\nv_xor_b32 v9, v9, v14\nv_lshlrev_b32 v9, 4, v9\nv_lshl_add_u32 v14, v6, 9, v9")
    A(f"s_mov_b32 {s_c}, {C_SCALE:#x}\ns_mov_b32 {s_pass}, 0\ns_mov_b32 {s_flags}, 0")
    if opt.diag: A(f"s_mov_b32 {s_tsp}, 1\nv_mov_b32 v0, 0")
    for srd, n in ((sQ, QBYTES), (sK, KBYTES), (sV, KBYTES), (sO, QBYTES)):
        A(f"s_mov_b32 {srd[2]}, {n}\ns_mov_b32 {srd[3]}, 0x20000")
    A(f"s_mul_i32 s6, {s_wave}, 3")
    A("s_waitcnt lgkmcnt(0)")
    if opt.diag:
        A("v_writelane_b32 v0, s100, 0")
        A("s_getreg_b32 s100, hwreg(HW_REG_HW_ID)\ns_getreg_b32 s101, hwreg(HW_REG_XCC_ID)\ns_nop 1\nv_writelane_b32 v0, s100, 30\nv_writelane_b32 v0, s101, 31")
    for srd, p in ((sK, 74), (sQ, 72), (sV, 76)):
        A(f"s_mov_b64 {srd.sub(0, 2)}, s[{p}:{p+1}]")
    def decode(p, A):
        A(f"s_sub_u32 s3, s{80+3*p+2}, 12")
        A(f"s_min_u32 s4, s3, {s_wave}")
        A(f"s_add_u32 s4, s4, s6\ns_lshl_b32 s4, s4, 13")
        A(f"s_add_u32 {s_tab[4*p]}, s{80+3*p}, s4")
        A(f"s_mov_b32 {s_tab[4*p+1]}, s{80+3*p+1}")
        A(f"s_add_u32 {s_tab[4*p+3]}, {s_tab[4*p]}, 24576")
        A(f"s_cmp_lt_u32 {s_wave}, s3\ns_cselect_b32 {s_tab[4*p+2]}, 4, 3\ns_cselect_b32 {s_tab[4*p+3]}, {s_tab[4*p+3]}, {OOB:#x}")
    decode(0, A)
    L2 = []; A = L2.append
    A(f"s_mov_b64 {sO.sub(0, 2)}, s[78:79]")
    for k in range(8): A(f"s_mov_b32 {s_ok[k]}, {OOB:#x}")
    decode(1, A); decode(2, A)
    A(f"s_mov_b32 {s_tab[12]}, {OOB:#x}\ns_mov_b32 {s_tab[13]}, {OOB:#x}\ns_mov_b32 {s_tab[14]}, 0\ns_mov_b32 {s_tab[15]}, {OOB:#x}")
    A(f"s_lshl_b32 s3, s91, 2\ns_add_u32 s3, s3, {s_wave}\ns_lshl_b32 {s_str}, s3, {opt.tsh + 6}")
    A(f"s_cmp_eq_u32 s90, {OOB:#x}\ns_cselect_b32 {s_str}, 0x40000000, {s_str}")
    A(f"s_lshr_b32 s3, s2, 1\ns_and_b32 s3, s3, 28\ns_add_u32 s3, s3, {s_wave}\ns_lshl_b32 {s_cs}, s3, {opt.tsh + 6}\ns_and_b32 {s_cs}, {s_cs}, 0xffff\ns_add_u32 {s_cs}, {s_cs}, L_v4-L_pc")
    for p in range(3):
        for k in range(3): A(f"s_mov_b32 s{80+3*p+k}, {s_tab[4*p+k]}")
    return L, L2

def startup(late_setup):
    P = {}
    r = [sop(f"s_mov_b32 {s_kptr}, {s_tab[1]}", wr=[s_kptr]), sop(f"s_sub_u32 {s_vptr}, {s_tab[1]}, 32768", wr=[s_vptr])]
    k123 = lambda: dma_K(1) + dma_K(2) + dma_K(3)
    if not opt.kpos: r += k123()
    r += [sop(f"s_add_u32 {s_t0}, {s_tab[0]}, 8192", wr=[s_t0]), sop(f"s_add_u32 {s_t1}, {s_tab[0]}, 16384", wr=[s_t1]),
          sop(f"s_add_u32 {s_t2}, {s_tab[0]}, 24576", wr=[s_t2])]
    r += [sop(f"s_cmp_eq_u32 s90, {OOB:#x}"), raw("s_cbranch_scc1 L_nohelp")]
    P["a"] = r
    late = lambda: dma_K(4) + dma_K(5) + dma_K(6) + dma_V(0, 0)
    r = (k123() if opt.kpos else []) + late()
    r += [sop("s_sub_u32 s4, s92, 12"), sop(f"s_add_u32 s5, {s_wave}, 1"), sop("s_min_u32 s4, s4, s5"), sop("s_mul_i32 s5, s5, 3"),
          sop("s_add_u32 s4, s4, s5"), sop("s_lshl_b32 s3, s4, 13"), sop(f"s_add_u32 s3, s3, s90"), sop(f"s_sub_u32 s3, s3, {1024 * opt.help_n}"),
          valu("v_lshlrev_b32", vt1, 4, vt0)]
    hl = []
    for k in range(opt.help_n):
        if k and k % 4 == 0: hl.append(sop("s_add_u32 s3, s3, 4096"))
        i = Ins(f"buffer_load_dwordx4 {V(96 + 4 * k, 4)}, {vt1}, {sQ}, s3 offen offset:{(k % 4) * 1024} {opt.hmod}", "vmem", rd=[vt1]); i.vm = True
        hl.append(i)
    if opt.help2:
        nv, nk = opt.help2, opt.help2 * 2 // 3
        hl += [sop("s_lshl_b32 s4, s91, 2"), sop(f"s_add_u32 s4, s4, {s_wave}"), sop(f"s_lshl_b32 s4, s4, 10"), sop(f"s_add_u32 s3, s4, {s_tab[1]}"),
               sop(f"s_add_u32 s5, s3, 49152")]
        for k in range(max(nv, nk)):
            for srd, sp, cnt in ((sV, "s3", nv), (sK, "s5", nk)):
                if k < cnt:
                    i = Ins(f"buffer_load_dwordx4 {V(192 + 4 * (k % 8), 4)}, {vt1}, {srd}, {sp} offen", "vmem", rd=[vt1]); i.vm = True
                    hl += [i, sop(f"s_add_u32 {sp}, {sp}, 12288")]
    if opt.late == 2: r = r[-9:] + hl + r[:-9]
    else: r += hl
    P["h"] = r
    r = []; k = 0
    for grp in (dma_Q(s_mX, s_tab[0], ("X",)), dma_Q(s_mR2, s_t0, ("R2",)), dma_Q(s_mOS, s_t1, ("OS",))):
        for hf in (grp[:6], grp[6:]):
            r += hf
            if not opt.sched.endswith("_0"):
                r += [sop(f"s_bitcmp1_b32 s89, {k}"), raw(f"s_cbranch_scc0 L_th{k}"), raw("s_waitcnt vmcnt(0)"), label(f"L_th{k}")]
            k += 1
            if k == opt.kpos:
                P["q1"] = r + [sop(f"s_cmp_lg_u32 s90, {OOB:#x}"), raw("s_cbranch_scc1 L_nok")]
                P["k"] = k123(); r = []
    st5 = (lambda: stamp(9)) if opt.diag == 5 else (lambda: [])
    r += [raw(t, "salu") for x in late_setup for t in x.split("\n")]
    r += st5() + [vwait([("X",)])] + st5() + q_reads(0, s_mX, ("X",), vt0)
    if opt.quick: r += [sop("s_cmp_lg_u32 s93, 0"), raw("s_cbranch_scc1 L_quick")]
    r += [sop(f"s_cmp_lt_u32 {s_tab[2]}, 4"), raw("s_cbranch_scc1 L_noq3")]
    P["q"] = r
    P["r2"] = [waitcnt(None, 0)] + dma_Q(s_mX, s_t2, ("X",))
    P["r3"] = [vwait([("R2",)])] + st5() + q_reads(1, s_mR2, ("R2",), vt1) + [vwait([("K", 1), ("K", 2), ("K", 3)]), barrier()] + head_reads()
    P["lc"] = [sop(f"s_cmp_lg_u32 s90, {OOB:#x}"), raw("s_cbranch_scc1 L_nolate")] if opt.late else []
    P["l"] = (late() + [vwait([("OS",)]), raw("s_branch L_osok")]) if opt.late else []
    P["w"] = [vwait([("OS",)])]
    P["r4"] = st5() + q_reads(2, s_mOS, ("OS",), vt0) + pass_begin()
    P["r4"] += [sop(f"s_cmp_lt_u32 {s_nbn}, 4"), raw("s_cbranch_scc1 L_first")]
    P["r5"] = [vwait([("X",)])] + q_reads(3, s_mX, ("X",), vt1)
    return {k: fix_hazards(lin(v)[0]) for k, v in P.items()}

def pass_begin():
    T2 = lambda k: S(s_tab.n + k, 2)
    r = [sop(f"s_mov_b32 {s_ocur}, {s_tab[0]}"),
         sop(f"s_add_u32 {s_kend}, {s_tab[1]}, 262144"),
         sop(f"s_mov_b32 {s_nbn}, {s_tab[2]}"),
         sop(f"s_mov_b32 {s_knext}, {s_tab[5]}"),
         sop(f"s_mov_b32 {s_xq}, {s_tab[4]}"),
         sop(f"s_add_u32 {s_qn[1]}, {s_tab[4]}, 8192"), sop(f"s_add_u32 {s_qn[2]}, {s_tab[4]}, 16384"),
         sop(f"s_mov_b32 {s_qn[3]}, {s_tab[7]}")]
    for k in range(0, 12, 2): r.append(sop(f"s_mov_b64 {T2(k)}, {T2(k + 4)}"))
    r += [sop(f"s_mov_b32 {s_cnt}, 3"), sop(f"s_mov_b32 {s_tq}, {s_qn[2]}"),
          sop(f"s_add_u32 {s_tv}, {s_str}, {s_knext}"), sop(f"s_add_u32 {s_tk}, {s_tv}, {opt.tkoff}"),
          sop(f"s_mov_b32 {s_xm}, {OOB:#x}") if opt.xlate else sop(f"s_mov_b32 {s_xm}, {s_mX}")]
    return r

def repair_code():
    rQ = lambda k: V(96 + 4 * k, 4); rK = lambda k: V(128 + 4 * k, 4); rS = lambda k: V(32 + 4 * k, 4)
    rO = lambda k: V(160 + 4 * k, 4); rV = lambda k: V(224 + 4 * k, 4)
    m, l, ta, tb, al, nm = V(6), V(7), V(8), V(9), V(10), V(11)
    fa, va0, va1, vop, so = V(48), V(49), V(50), V(51), V(52)
    sp, sb, sj, sq, sk, sv = S(90), S(91), S(92), S(93), S(94), S(95)
    def gload(d, srd, soff, imm):
        return Ins(f"buffer_load_dwordx4 {d}, {fa}, {srd}, {soff} offen offset:{imm}", "vmem", rd=[fa, srd, soff], wr=[d])
    W = lambda t: raw(t, "wait")
    out = []
    pre = [W("s_waitcnt vmcnt(0) lgkmcnt(0)"),
           valu("v_mbcnt_lo_u32_b32", ta, -1, 0), valu("v_mbcnt_hi_u32_b32", ta, -1, ta),
           valu("v_and_b32", tb, 15, ta), valu("v_lshrrev_b32", ta, 4, ta),
           valu("v_lshlrev_b32", fa, 9, tb), valu("v_lshl_add_u32", so, ta, 3, fa), valu("v_lshl_add_u32", fa, ta, 4, fa),
           sop(f"s_sub_u32 {s_t0}, {s_mX}, {VB}"), valu("v_add_u32", va0, s_t0, vaddr0), valu("v_add_u32", va1, s_t0, vaddr1),
           sop(f"s_lshl_b32 {s_t0}, {s_wave}, 13"), valu("v_subrev_u32", vop, s_t0, voV),
           sop(f"s_mov_b32 {sp}, 0")]
    out += fix_hazards(pre)
    out += [label("L_rp"), sop(f"s_bitcmp1_b32 {s_flags}, {sp}"), raw("s_cbranch_scc0 L_rp_next"), sop(f"s_mov_b32 {sb}, 0"), label("L_rb")]
    blk = [sop(f"s_lshl_b32 {sq}, {sb}, 13"), sop(f"s_add_u32 {sq}, {sq}, s80")]
    blk += [gload(rQ(k), sQ, sq, k * 64) for k in range(8)]
    blk += [valu("v_mov_b32", m, "0xff800000"), valu("v_mov_b32", l, 0)]
    blk += [valu("v_mov_b32", V(160 + k), 0) for k in range(64)]
    blk += [sop(f"s_mov_b32 {sk}, s81"), sop(f"s_mov_b32 {sv}, s81"), sop(f"s_mov_b32 {sj}, 0")]
    out += fix_hazards(blk) + [label("L_rj")]
    it = []
    for kvb in range(4):
        it += [gload(rK(k), sK, sk, k * 64) for k in range(8)] + [sop(f"s_add_u32 {sk}, {sk}, 8192"), W("s_waitcnt vmcnt(0)")]
        it += [mfma(rS(kvb), rK(k), rQ(k), rS(kvb) if k else 0) for k in range(8)]
    xs = [V(32 + k) for k in range(16)]
    it += [valu("v_max3_f32", ta, m, xs[0], xs[1])]
    it += [valu("v_max3_f32", ta, ta, xs[k], xs[k + 1]) for k in range(2, 16, 2)]
    it += [valu("v_mov_b32", tb, ta), perm("v_permlane16_swap_b32", ta, tb), valu("v_max_f32", ta, ta, tb),
           valu("v_mov_b32", tb, ta), perm("v_permlane32_swap_b32", ta, tb), valu("v_max_f32", ta, ta, tb),
           valu("v_sub_f32", al, m, ta), valu("v_mul_f32", al, s_c, al), valu("v_exp_f32", al, al), valu("v_mov_b32", m, ta)]
    it += [valu("v_sub_f32", x, x, m) for x in xs] + [valu("v_mul_f32", x, s_c, x) for x in xs] + [valu("v_exp_f32", x, x) for x in xs]
    it += [valu("v_mul_f32", l, l, al)] + [valu("v_add_f32", l, l, x) for x in xs]
    it += [valu("v_mul_f32", V(160 + k), V(160 + k), al) for k in range(64)]
    Pf = lambda ks: V(16 + 4 * ks, 4)
    for ks in range(2):
        for j in range(4): it.append(valu("v_cvt_pk_bf16_f32", Pf(ks)[j], xs[8 * ks + 2 * j], xs[8 * ks + 2 * j + 1]))
    for c in range(4):
        for j in range(8):
            it += [sop(f"s_add_u32 {s_t0}, {sv}, {j * 4096 + c * 128}", wr=[s_t0]), set_m0(s_mX, j * 1024), dma(vop, sV, s_t0, 0, None, "")]
        it += [W("s_waitcnt vmcnt(0)")]
        for dbl in range(4):
            for ks in range(2):
                for j4 in range(2):
                    it.append(ds_read("ds_read_b64_tr_b16", rV(2 * dbl + ks).sub(2 * j4, 2), va1 if dbl & 1 else va0, ks * 4096 + (dbl >> 1) * 512 + j4 * 2048))
        it += [W("s_waitcnt lgkmcnt(0)")]
        for dbl in range(4):
            for ks in range(2): it.append(mfma(rO(4 * c + dbl), rV(2 * dbl + ks), Pf(ks), rO(4 * c + dbl)))
    it += [nop(9), sop(f"s_add_u32 {sv}, {sv}, 32768"), sop(f"s_add_u32 {sj}, {sj}, 1"), sop(f"s_cmp_lt_u32 {sj}, 8"), raw("s_cbranch_scc1 L_rj")]
    out += fix_hazards(it)
    fin = [valu("v_mov_b32", tb, l), perm("v_permlane16_swap_b32", l, tb), valu("v_add_f32", l, l, tb),
           valu("v_mov_b32", tb, l), perm("v_permlane32_swap_b32", l, tb), valu("v_add_f32", l, l, tb), valu("v_rcp_f32", al, l)]
    for db in range(16):
        o = rO(db)
        fin += [valu("v_mul_f32", o[i], o[i], al) for i in range(4)]
        fin += [valu("v_cvt_pk_bf16_f32", o[0], o[0], o[1]), valu("v_cvt_pk_bf16_f32", o[1], o[2], o[3])]
        fin.append(Ins(f"buffer_store_dwordx2 {o.sub(0, 2)}, {so}, {sO}, {sq} offen offset:{db * 32}", "vmem", rd=[o.sub(0, 2), so, sO, sq]))
    fin += [W("s_waitcnt vmcnt(0)"), sop(f"s_add_u32 {sb}, {sb}, 1"), sop(f"s_cmp_lt_u32 {sb}, s82"), raw("s_cbranch_scc1 L_rb")]
    out += fix_hazards(fin)
    out += [label("L_rp_next")]
    out += [sop(f"s_mov_b32 s{80 + k}, s{83 + k}") for k in range(6)]
    out += [sop(f"s_add_u32 {sp}, {sp}, 1"), sop(f"s_cmp_lt_u32 {sp}, 3"), raw("s_cbranch_scc1 L_rp")]
    return out

DOC = """
Fused attention softmax(Q K^T / 16) V, emitted by a hand-written generator / list scheduler (no compiler output).
 * 256 workgroups x 4 waves (one wave per SIMD, 512 registers).  A workgroup runs three passes; a pass covers 12..16
   blocks of 16 query rows of one head (3 or 4 blocks per wave, table L_table at the end of the code).
 * K and V stream through a 128 KB LDS ring (LDS-DMA, 8 KB units); S^T = K Q^T and O^T = V^T P^T use
   v_mfma_f32_16x16x32_bf16, the softmax VALU work is interleaved between the MFMAs.
 * Softmax reference: per row the true maximum of the first 16 scores is subtracted (it enters as the C operand of the
   QK^T MFMA chains).  It never exceeds the row maximum, so it can only overflow: every pass checks its row sums and,
   if one is not below 2^50, the rows are recomputed at L_repair with a plain online softmax (true running maximum).
 * Epilogue: normalise, round to bf16, transpose through LDS, store full 128-byte lines.
 * Plain loads whose results are unused only pull data / code towards L2 ahead of its use.
"""

def main():
    ap = argparse.ArgumentParser()
    ap.add_argument("-o", default="standalone__mha_softmax__near_ridge.s")
    ap.add_argument("--diag", type=int, default=0)
    ap.add_argument("--kvmod", default="")
    ap.add_argument("--qmod", default="nt")
    ap.add_argument("--omod", default="")
    ap.add_argument("--sched", default="t6_344_0")
    ap.add_argument("--pkmul", type=int, default=1)
    ap.add_argument("--rep", type=int, default=1)
    ap.add_argument("--kpos", type=int, default=0)
    ap.add_argument("--help2", type=int, default=0)
    ap.add_argument("--quick", type=int, default=0)
    ap.add_argument("--iw", type=int, default=1)
    ap.add_argument("--pairmaj", type=int, default=1)
    ap.add_argument("--mid", type=int, default=0)
    ap.add_argument("--midb", type=int, default=20)
    ap.add_argument("--padat", type=int, default=0)
    ap.add_argument("--fin", type=int, default=1)
    ap.add_argument("--finoff", type=int, default=12)
    ap.add_argument("--finoff2", type=int, default=4)
    ap.add_argument("--finb", type=int, default=36)
    ap.add_argument("--hca", type=int, default=4)
    ap.add_argument("--hext", type=int, default=3)
    ap.add_argument("--hw", default="10,6,4")
    ap.add_argument("--dq0", type=int, default=0)
    ap.add_argument("--q3early", type=int, default=0)
    ap.add_argument("--fmod", default="nt")
    ap.add_argument("--xlate", type=int, default=0)
    ap.add_argument("--hmod", default="")
    ap.add_argument("--tsh", type=int, default=5)
    ap.add_argument("--barsplit", type=int, default=1)
    ap.add_argument("--barblk", type=int, default=8)
    ap.add_argument("--barlag4", type=int, default=2)
    ap.add_argument("--r3epi", type=int, default=1)
    ap.add_argument("--hback", type=int, default=24)
    ap.add_argument("--hoist", default="")
    ap.add_argument("--twhen", type=int, default=2)
    ap.add_argument("--tkoff", type=int, default=24576)
    ap.add_argument("--cwarm", type=int, default=1)
    ap.add_argument("--late", type=int, default=1)
    ap.add_argument("--al8", type=int, default=0)
    ap.add_argument("--tstride", type=int, default=2048)
    ap.add_argument("--tstep", type=int, default=24576)
    ap.add_argument("--barlag", type=int, default=4)
    ap.add_argument("--epi_rd", type=int, default=1)
    ap.add_argument("--abl", type=int, default=0)
    ap.add_argument("--help_n", type=int, default=12)
    ap.add_argument("--omod3", default="")
    ap.add_argument("--omod4", default="")
    ap.add_argument("--wb", type=int, default=0)
    ap.add_argument("--nostore", type=int, default=0)
    ap.add_argument("--ca7", type=int, default=0)
    ap.add_argument("--show", type=int, default=0)
    ap.add_argument("--spread", type=int, default=1)
    ap.add_argument("--touch", type=int, default=2)
    ap.add_argument("--force", type=int, default=0)
    ap.add_argument("--padto", type=int, default=0)
    ap.add_argument("--defer", type=int, default=0)
    ap.add_argument("--warm", type=int, default=1)
    a = ap.parse_args()
    opt.__dict__.update(vars(a)); opt.nextq = 1
    opt.hwin = [int(x) for x in opt.hw.split(",")]
    if opt.hoist:
        h = [int(x) for x in opt.hoist.split(",")]; HOIST[4] = (h[0], h[1]); HOIST[3] = (h[2], h[3])
    L = []; A = L.append
    hdr = open("standalone__mha_softmax__near_ridge.s.ref").read().split("\n")
    for l in hdr:
        if l.startswith("; @launch"): break
        A(l)
    A(f"; @launch grid=(256,1,1) block=(256,1,1) lds={LDS_BYTES}")
    for l in DOC.strip("\n").split("\n"): A((";  " + l).rstrip())
    A('.amdgcn_target "amdgcn-amd-amdhsa--gfx950"')
    A(f".text\n.globl {KNAME}\n.p2align 8\n.type {KNAME},@function\n{KNAME}:")
    su1, su2 = setup_code()
    L += su1
    def emit(seq):
        for i in seq: L.append(i)
    if opt.rep > 1: A(f"s_mov_b32 s98, {opt.rep}\nL_again:")
    emit(stamp(0))
    SU = startup(su2)
    emit(SU["a"]); emit(SU["h"]); A("L_nohelp:")
    if opt.kpos: emit(SU["q1"]); emit(SU["k"]); A("L_nok:")
    emit(SU["q"]); emit(SU["r2"]); A("L_noq3:")
    if opt.iw: A("s_branch L_iw0\nL_iwa:")
    emit(SU["r3"])
    emit(SU["lc"]); emit(SU["l"])
    assert opt.late
    qpos = len(L)
    A("L_nolate:")
    if opt.iw: A("s_branch L_iw3a\nL_iwb:")
    emit(SU["w"]); A("L_osok:"); emit(SU["r4"]); emit(SU["r5"])
    A("L_first:")
    assert opt.ca7 == 0
    s4 = []
    s4 = fix_hazards(s4 + sum([dma_V(0, 1), dma_V(0, 2), dma_V(0, 3), dma_K(7)][:opt.ca7], []))
    emit(s4)
    A("L_pass:")
    pb = [waitcnt(None, 0), barrier()]
    emit(pb)
    emit(stamp(1))
    if opt.padat:
        A(f"s_cmp_lg_u32 {s_pass}, {opt.padat - 1}\ns_cbranch_scc1 L_nopad\ns_cmp_lg_u32 {s_str}, 0x40000000\ns_cbranch_scc1 L_nopad\ns_memrealtime s[100:101]\ns_waitcnt lgkmcnt(0)\nL_nopad:")
    A(f"s_cmp_eq_u32 {s_nbn}, 3\ns_cbranch_scc1 L_v3")
    VAR = {}
    for nb in (4, 3):
        P = variant(nb)
        hd = fix_hazards(P["hd"])
        b1 = fix_hazards(P["i1"], wrap=hd[-14:])
        b2 = fix_hazards(P["i2"], wrap=b1[-14:])
        b1b = fix_hazards(P["i1"], wrap=b2[-14:])
        assert [x.text for x in b1b] == [x.text for x in b1], "loop entry hazards differ"
        i6 = fix_hazards(P["i6"], wrap=b1[-14:])
        i7 = fix_hazards(P["i7"], wrap=i6[-14:])
        epi = fix_hazards(P["epi"], wrap=i7[-14:])
        epf = fix_hazards(P["epf"], wrap=i7[-14:])
        fin = fix_hazards(P["fin"], wrap=i6[-14:])
        if opt.mid: i7 = []; epi = fix_hazards(P["mid"], wrap=i6[-14:])
        VAR[nb] = dict(hd=hd, b1=b1, b2=b2, i6=i6, i7=i7, epi=epi, epf=epf, fin=fin)
        if opt.al8:
            for k in ("hd", "b1", "b2", "i6", "i7"): align8(VAR[nb][k])
        nn = sum(1 for p in VAR[nb].values() for x in p if x.kind == "nop")
        print(f"nb={nb}: sizes", {k: len(v) for k, v in VAR[nb].items()}, "nops", nn, file=sys.stderr)
        if nb == 3 and opt.quick:
            QS = quick_start(3, P["q0"])
            assert [x.text for x in fix_hazards(P["i1"], wrap=QS[-14:])] == [x.text for x in b1]
            L[qpos:qpos] = (["L_quick:\n; ---- first pass, 3 blocks per wave: every block starts as soon as its rows have arrived"] + QS
                            + stamp(1) + stamp(2) + ["s_branch L_loop3"])
        A(".p2align 6")
        if nb == 3 and opt.iw: A("L_iw0:\ns_branch L_iwa")
        A(f"L_v{nb}:")
        emit(hd)
        emit(stamp(2))
        if opt.diag == 3:
            for k in range(3):
                A(f"s_sub_u32 s66, s{92+4*k}, s{90+4*k}\ns_mul_i32 s67, {s_pass}, 3\ns_add_u32 m0, s67, {20+k}\ns_nop 1\nv_writelane_b32 v0, s66, m0")
        if opt.al8: A(f".p2align {opt.al8}")
        A(f"L_loop{nb}:")
        emit(b1); A(f"s_cbranch_scc1 L_i6_{nb}")
        if opt.al8: A(".p2align 3")
        emit(b2); A(f"s_branch L_loop{nb}")
        if opt.al8: A(f".p2align {opt.al8}")
        if opt.iw: A(f"L_iw{nb}a:\ns_branch L_iw{nb}b")
        A(f"L_i6_{nb}:")
        if opt.diag == 4: emit(stamp(9))
        if opt.al8: A(".p2align 3")
        emit(i6)
        if opt.diag == 4: emit(stamp(9))
        if opt.fin:
            A(f"s_cmp_lt_u32 {s_pass}, 2\ns_cbranch_scc1 L_i7_{nb}")
            emit(stamp(3))
            emit(fin)
            emit(stamp(4))
            A("s_branch L_done")
            if opt.iw: A(f"L_iw{nb}b:\ns_branch " + ("L_iw4a" if nb == 3 else "L_iwb"))
            A(f"L_i7_{nb}:")
            emit(i7)
            emit(stamp(3))
        else:
            emit(i7)
            emit(stamp(3))
            A(f"s_cmp_lt_u32 {s_pass}, 2\ns_cbranch_scc1 L_epi{nb}")
            emit(epf)
            emit(stamp(4))
            A(f"s_branch L_done\nL_epi{nb}:")
        emit(epi)
        emit(stamp(4))
        A(f"s_add_u32 {s_pass}, {s_pass}, 1\ns_branch L_pass")
    tail = []
    traces = []
    import itertools
    for seqnb in itertools.product((3, 4), (3, 4), (3, 4), (0, 1)):
        hp = seqnb[3]; seqnb = seqnb[:3]
        n4 = seqnb[0] == 4
        tr = SU["a"] + (SU["h"] if hp else []) + SU.get("q1", []) + ([] if hp else SU.get("k", [])) + SU["q"] + (SU["r2"] if n4 else []) + SU["r3"] + (SU["w"] if (hp or not opt.late) else SU["l"]) + SU["r4"] + (SU["r5"] if n4 else []) + s4
        for pi, nb in enumerate(seqnb):
            v = VAR[nb]
            tr = tr + pb + v["hd"] + (v["b1"] + v["b2"]) * 2 + v["b1"] + v["i6"] + (v["fin"] if (pi == 2 and opt.fin) else v["i7"] + v["epf" if pi == 2 else "epi"])
        traces.append(tr + tail)
    qtraces = []
    if opt.quick:
        for seqnb in itertools.product((3,), (3, 4), (3, 4)):
            tr = SU["a"] + SU["q"] + QS
            for pi, nb in enumerate(seqnb):
                v = VAR[nb]
                tr = tr + ((pb + v["hd"]) if pi else []) + (v["b1"] + v["b2"]) * 2 + v["b1"] + v["i6"] + (v["fin"] if (pi == 2 and opt.fin) else v["i7"] + v["epf" if pi == 2 else "epi"])
            qtraces.append(tr + tail)
    resolve_vm(traces + qtraces)
    if qtraces and not opt.abl: cross_check(qtraces)
    for tr in traces + qtraces:
        errs = check_trace(tr)
        if errs and not opt.abl:
            for e in errs[:20]: print("SYNC ERR", e, file=sys.stderr)
            raise SystemExit(1)
    if not opt.abl: cross_check(traces)
    A("L_done:")
    emit(tail)
    if opt.force: A(f"s_mov_b32 {s_flags}, {opt.force}")
    A(f"s_cmp_lg_u32 {s_flags}, 0\ns_cbranch_scc1 L_repair\nL_fin:")
    if opt.rep > 1:
        A("s_waitcnt vmcnt(0) lgkmcnt(0)\ns_barrier")
        raise SystemExit("rep unsupported now")
        A(f"s_mov_b32 {s_pass}, 0\ns_sub_u32 s98, s98, 1\ns_cmp_lg_u32 s98, 0\ns_cbranch_scc1 L_again")
    if opt.diag:
        A("s_waitcnt vmcnt(0)")
        emit(stamp(5))
        A(f"s_mov_b32 s66, 0x1000000\ns_mov_b32 s67, 0x20000")
        A(f"v_mbcnt_lo_u32_b32 v1, -1, 0\nv_mbcnt_hi_u32_b32 v1, -1, v1\nv_lshlrev_b32 v1, 2, v1")
        A(f"s_lshl_b32 s3, s2, 10\ns_lshl_b32 s4, {s_wave}, 8\ns_add_u32 s3, s3, s4")
        A("buffer_store_dword v0, v1, s[64:67], s3 offen")
        if opt.diag == 2:
            A(f"s_or_b32 s3, s2, {s_wave}\ns_cmp_lg_u32 s3, 0\ns_cbranch_scc1 L_exit")
            A("s_load_dwordx2 s[64:65], s[0:1], 32\ns_mov_b32 s66, 256\nv_readlane_b32 s4, v0, 0\nv_readlane_b32 s5, v0, 32\ns_waitcnt lgkmcnt(0)")
            idx = [2, 3, 4, 6, 8, 10, 12, 14]
            for j, k in enumerate(idx):
                A(f"v_readlane_b32 s6, v0, {k}\nv_readlane_b32 s7, v0, {k+32}\ns_sub_u32 s6, s6, s4\ns_sub_u32 s7, s7, s5\ns_nop 1\nv_writelane_b32 v2, s6, {j}\nv_writelane_b32 v2, s7, {j+8}")
            A("s_mov_b64 exec, 0xffff\nbuffer_store_dword v2, v1, s[64:67], 0 offen")
    if opt.wb == 1:
        A(f"s_cmp_lg_u32 {s_wave}, 0\ns_cbranch_scc1 L_exit\ns_waitcnt vmcnt(0)\nbuffer_wbl2 sc1\ns_waitcnt vmcnt(0)")
    if opt.wb == 2:
        A(f"s_cmp_lg_u32 {s_wave}, 0\ns_cbranch_scc1 L_exit\ns_cmp_eq_u32 s89, 0\ns_cbranch_scc1 L_exit\ns_waitcnt vmcnt(0)\nbuffer_wbl2 sc1\ns_waitcnt vmcnt(0)")
    if opt.wb == 3:
        A(f"s_waitcnt vmcnt(0)\nbuffer_wbl2 sc1")
    if opt.padto:
        A(f"s_waitcnt vmcnt(0)\nL_spin:\ns_memrealtime s[66:67]\ns_waitcnt lgkmcnt(0)\ns_sub_u32 s66, s66, s100\ns_cmp_lt_u32 s66, {opt.padto}\ns_cbranch_scc1 L_spin")
    A("L_exit:")
    A("s_endpgm")
    A("L_warm_end:")
    A("L_repair:")
    emit(repair_code())
    A("s_branch L_fin")
    A(".p2align 6\n.type L_table,@object\nL_table:")
    tab = schedule_table(opt.sched)
    for wg in range(256):
        w = []
        for h, st, n in tab[wg]:
            w += [(h * SQ + st * 16) * 512, h * SK * 512, n]
        w += [THR.get(wg, 0), HELP.get(wg, OOB), RANK.get(wg, 0), HELPN.get(wg, 12), int(wg not in HELP and tab[wg][0][2] == 12)]
        w += [0] * (16 - len(w))
        A(".long " + ", ".join(str(x) for x in w))
    A(".size L_table, 16384")
    A('.section .rodata,"a"\n.p2align 6')
    A(f".amdhsa_kernel {KNAME}")
    A("  .amdhsa_next_free_vgpr 512\n  .amdhsa_next_free_sgpr 102\n  .amdhsa_accum_offset 256\n  .amdhsa_group_segment_fixed_size 0")
    A("  .amdhsa_kernarg_size 48\n  .amdhsa_user_sgpr_count 2\n  .amdhsa_user_sgpr_kernarg_segment_ptr 1\n  .amdhsa_system_sgpr_workgroup_id_x 1")
    A(".end_amdhsa_kernel")
    open(opt.o, "w").write("\n".join((x if isinstance(x, str) else x.text) for x in L if x is not None) + "\n")

if __name__ == "__main__":
    main()
```

```python
import sys, argparse
from asmlib import *

KNAME = "standalone__mha_softmax__near_ridge_kernel"
NH, SQ, SK, D = 128, 1312, 512, 256
QBYTES = NH * SQ * D * 2
KBYTES = NH * SK * D * 2
OOB = 0x7fff0000
VB = 65536
XB = 131072
LDS_BYTES = 163840
C_SCALE = 0x3db8aa3b
L_LIMIT = 0x58800000

sQ, sK, sV, sO = S(8, 4), S(12, 4), S(16, 4), S(20, 4)
s_wave = S(24)
s_mK = S(25)
s_mX = S(26)
s_mR2 = S(27)
s_mOS = S(28)
s_kptr, s_kend, s_knext = S(29), S(30), S(31)
s_vptr, s_vptr2, s_vend = S(32), S(33), S(34)
s_c = S(35)
s_cnt = S(36)
s_pass = S(37)
s_flags = S(38)
s_qn = [S(40), S(41), S(42), S(43)]
s_ocur = S(44)
s_t0, s_t1, s_t2 = S(45), S(46), S(47)
s_tab = S(48, 16)
s_dbg = S(64, 4)
s_ts = S(68, 2)
s_nbn = S(70)
s_tsp = S(71)
s_mR3 = S(39)
s_tq, s_tk, s_tv, s_xm, s_xq = S(90), S(91), S(92), S(93), S(94)
sC = S(96, 4)
s_cs = S(95)
s_str = S(34)
s_ok = [S(72 + k) for k in range(8)]
kaddr, vaddr0, vaddr1, voK, voV = V(1), V(2), V(3), V(4), V(5)
lsum = lambda b: V(6 + b)
vt0, vt1 = V(10), V(11)
voQa, voQb = V(12), V(13)
vsto, wa0 = V(14), V(15)
Ct = lambda b: V(16 + 4 * b, 4)
SET = lambda i: V(32 + 16 * i, 16)
Sx = lambda i, b: SET(i).sub(4 * b, 4)
Q = lambda b, s: AG(b * 32 + s * 4, 4)
NF = 8
F = lambda i: AG(128 + 4 * (i % NF), 4)
def O(b, db):
    if 4 <= db < 10: return AG(160 + 4 * ((db - 4) * 4 + b), 4)
    return V(96 + 4 * ((db if db < 4 else db - 6) * 4 + b), 4)

M0 = ('m0', 0)
_last_m0 = [None]
def set_m0(base, off):
    i = salu(f"s_add_u32 m0, {base}, {off}", rd=[base]); i.wr = {M0}; _last_m0[0] = i; return i
def sop(text, rd=(), wr=()): return salu(text, rd=rd, wr=wr)

class Opt: pass
opt = Opt()

def dma(vo, srd, soff, imm, unit, mods):
    i = Ins(f"buffer_load_dwordx4 {vo}, {srd}, {soff} offen offset:{imm} {mods} lds".replace("  ", " "), "vmem", rd=[vo, srd, soff])
    i.rd.add(M0); i.dma_wr = unit; i.vm = True; i.m0ref = _last_m0[0]
    return i

def kslot_addr(slot): return slot * 8192
def vslot_addr(par, c): return VB + (par * 4 + c) * 8192

def dma_K(slot, wrap=False):
    r = []
    for dh in range(2):
        r.append(set_m0(s_mK, kslot_addr(slot) + dh * 768))
        r.append(dma(voK, sK, s_kptr, dh * 256, ("K", slot), opt.kvmod))
    r.append(sop(f"s_add_u32 {s_kptr}, {s_kptr}, 8192", rd=[s_kptr], wr=[s_kptr]))
    if wrap:
        r.append(sop(f"s_cmp_eq_u32 {s_kptr}, {s_kend}", rd=[s_kptr, s_kend]))
        r[-1].glue = True
        r.append(sop(f"s_cselect_b32 {s_kptr}, {s_knext}, {s_kptr}", rd=[s_kptr, s_knext], wr=[s_kptr]))
    return r

def dma_V(par, c, wrap=False):
    r = []
    if c == 0:
        r.append(sop(f"s_add_u32 {s_vptr}, {s_vptr}, 32768", rd=[s_vptr], wr=[s_vptr]))
        if wrap:
            r.append(sop(f"s_cmp_eq_u32 {s_vptr}, {s_vend}", rd=[s_vptr, s_vend]))
            r[-1].glue = True
            r.append(sop(f"s_cselect_b32 {s_vptr}, {s_knext}, {s_vptr}", rd=[s_vptr, s_knext], wr=[s_vptr]))
        r.append(sop(f"s_add_u32 {s_vptr2}, {s_vptr}, 4096", rd=[s_vptr], wr=[s_vptr2]))
    for e in range(2):
        r.append(set_m0(s_mK, vslot_addr(par, c) + e * 1024 - c * 128))
        r.append(dma(voV, sV, s_vptr2 if e else s_vptr, c * 128, ("V", par, c), opt.kvmod))
    return r

def dma_Q(base, soff, unit):
    r = []
    for hi in range(2):
        for dh in range(2):
            r.append(set_m0(base, hi * 4096 + dh * 768))
            for Rl in range(2):
                r.append(dma(voQb if hi else voQa, sQ, soff, Rl * 2048 + dh * 256, unit, opt.qmod))
    return r

def q_reads(b, base_sgpr, unit, tmp):
    r = [valu("v_add_u32", tmp, base_sgpr, kaddr)]
    for s in range(8):
        i = ds_read("ds_read_b128", Q(b, s), tmp, s * 256, tag=("q", b, s)); i.lds_rd = unit; i.private = True
        r.append(i)
    return r

def waitcnt(vm=None, lgkm=None):
    t = "s_waitcnt" + (f" vmcnt({vm})" if vm is not None else "") + (f" lgkmcnt({lgkm})" if lgkm is not None else "")
    i = raw(t, "wait"); i.vmw = vm; i.lgw = lgkm
    return i
def vwait(units, lgkm=None):
    i = raw("s_waitcnt ?", "wait"); i.vmneed = list(units); i.vmw = None; i.lgw = lgkm; i.vmauto = 63
    return i
def barrier():
    i = raw("s_barrier", "misc"); i.bar = True; return i

class Seg:
    def __init__(self, nb, name):
        self.nb = nb; self.name = name
        self.mf = []; self.nodes = []
        self.pairs = []
        self.blk = {}
        self.fixed = {}
        self.done = {}
        self.first = {}
        self.fixed2 = {}

    def qblock(self, name, slot, dst, czero, fbase):
        nb = self.nb; st = len(self.mf)
        for sp in range(4):
            p0 = len(self.mf)
            tags = [("f", self.name, name, 2 * sp + e) for e in range(2)]
            for b in range(nb):
                for e in range(2):
                    s = 2 * sp + e
                    d = Sx(dst, b)
                    c = d if s else (0 if czero else Ct(b))
                    self.mf.append(mfma(d, F(fbase + s), Q(b, s), c, need=tags))
                    self.done[(name, b)] = len(self.mf) - 1
            rd = []
            for e in range(2):
                s = 2 * sp + e
                i = ds_read("ds_read_b128", F(fbase + s), kaddr, kslot_addr(slot) + s * 256, tag=tags[e]); i.lds_rd = ("K", slot)
                rd.append(i)
            self.pairs.append((p0, len(self.mf) - 1, rd))
        self.blk[name] = (st, len(self.mf))

    def pblock(self, name, par, c, x0, x1, czero, fbase):
        self.pgen(name, par, [[(c, dbl, 0), (c, dbl, 1)] for dbl in range(4)], x0, x1, czero)

    def pgen(self, name, par, prs, x0, x1, czero):
        nb = self.nb; st = len(self.mf)
        for pi, pr in enumerate(prs):
            p0 = len(self.mf)
            fb = 2 * len(self.pairs)
            tags = [("f", self.name, name, 2 * pi + e) for e in range(2)]
            for b in range(nb):
                for e, (c, dbl, ks) in enumerate(pr):
                    o = O(b, 4 * c + dbl)
                    cc = 0 if (czero and ks == 0) else o
                    self.first.setdefault(("P", ks, b), len(self.mf))
                    self.first.setdefault(("O", c), len(self.mf))
                    if opt.abl & 512: self.mf.append(mfma(o, Sx(x1 if ks else x0, b), F(fb + e), cc, need=tags))
                    else: self.mf.append(mfma(o, F(fb + e), Sx(x1 if ks else x0, b), cc, need=tags))
            rd = []
            for e, (c, dbl, ks) in enumerate(pr):
                f = F(fb + e)
                va = vaddr1 if (dbl & 1) else vaddr0
                off = vslot_addr(par, c) - VB + ks * 4096 + (dbl >> 1) * 512
                for j4 in range(2):
                    i = ds_read("ds_read_b64_tr_b16", f.sub(2 * j4, 2), va, off + j4 * 2048, tag=tags[e] if j4 else ("x",))
                    i.lds_rd = ("V", par, c)
                    rd.append(i)
            self.pairs.append((p0, len(self.mf) - 1, rd))
        self.blk[name] = (st, len(self.mf))

    def unit(self, src, even_set, odd, blocks, e_of, dl_crit, dl_add, lo, hi, add_lo=None, add_hi=None, pre=None, after=None, fma=None, ext=None):
        crit = []; adds = []; res = {}
        for b in blocks:
            x = Sx(src, b); ev = Sx(even_set, b)
            ms = []
            for i in range(4):
                deps = [(n, 0) for n in pre[b]] if pre else []
                ins = valu("v_fma_f32", x[i], x[i], s_c, fma[b]) if fma else valu("v_mul_f32", x[i], s_c, x[i])
                ms.append(Node(ins, e=e_of(b), dl=dl_crit(b), deps=deps))
            y = ext(b) if ext else x
            late = odd or ext
            ex = [Node(valu("v_exp_f32", y[i], x[i]), e=e_of(b), dl=dl_crit(b), deps=[(ms[i], 0)]) for i in range(4)]
            ad = []
            for i in range(4):
                deps = [(ex[i], 1)] + ([(ad[-1], 0)] if ad else [])
                ad.append(Node(valu("v_add_f32", lsum(b), lsum(b), y[i]), e=e_of(b), dl=(dl_add if late else dl_crit(b)), deps=deps))
            aft = [(n, 0) for n in (after or {}).get(b, [])]
            if odd:
                c0 = Node(valu("v_cvt_pk_bf16_f32", ev[2], y[0], y[1]), e=e_of(b), dl=dl_crit(b), deps=[(ex[0], 1), (ex[1], 1)] + aft)
                c1 = Node(valu("v_cvt_pk_bf16_f32", ev[3], y[2], y[3]), e=e_of(b), dl=dl_crit(b), deps=[(ex[2], 1), (ex[3], 1)] + aft)
                crit += [ms[0], ms[1], ex[0], ex[1], ms[2], ms[3], ex[2], ex[3], c0, c1]
                adds += ad
            elif ext:
                c0 = Node(valu("v_cvt_pk_bf16_f32", x[0], y[0], y[1]), e=e_of(b), dl=dl_crit(b), deps=[(ex[0], 1), (ex[1], 1)])
                c1 = Node(valu("v_cvt_pk_bf16_f32", x[1], y[2], y[3]), e=e_of(b), dl=dl_crit(b), deps=[(ex[1], 0), (ex[2], 1), (ex[3], 1)])
                crit += [ms[0], ms[1], ex[0], ex[1], ms[2], ms[3], ex[2], ex[3], c0, c1]
                adds += ad
                res[b] = [c0, c1]; continue
            else:
                c0 = Node(valu("v_cvt_pk_bf16_f32", x[0], x[0], x[1]), e=e_of(b), dl=dl_crit(b), deps=[(ex[0], 1), (ex[1], 1), (ad[0], 0)])
                c1 = Node(valu("v_cvt_pk_bf16_f32", x[1], x[2], x[3]), e=e_of(b), dl=dl_crit(b), deps=[(ex[2], 1), (ex[3], 1), (ad[1], 0), (c0, 0)])
                crit += [ms[0], ms[1], ex[0], ex[1], ms[2], ms[3], ex[2], ex[3], ad[0], ad[1], ad[2], ad[3], c0, c1]
            res[b] = [c0, c1] + ad
        spread(crit, lo, hi)
        if adds: spread(adds, add_lo if add_lo is not None else lo, add_hi if add_hi is not None else hi)
        self.nodes += crit + adds
        return res

    def chain(self, instrs, lo, hi, e=None, dl=None, first_dep=None):
        prev = first_dep; out = []
        for i in instrs:
            gapd = 0
            if prev is not None:
                pk = prev.ins.kind
                gapd = 1
                if pk == "ds" and i.kind == "ds": gapd = 0
            n = Node(i, e=lo if e is None else e, dl=(10**9 if dl is None else dl), deps=[(prev, gapd)] if prev else [])
            out.append(n); prev = n
        k = len(out)
        for j, n in enumerate(out): n.ideal = lo + (hi - lo) * j / max(k, 1)
        self.nodes += out
        return out

    def reads(self, nxt_pairs, skip_first=3, barrier_before=()):
        pairs = self.pairs; ext = [p[2] for p in pairs] + list(nxt_pairs)
        prev = None
        plen = 2 * self.nb
        for k in range(skip_first, len(ext)):
            j = k - 4
            e = pairs[j][1] if j >= 0 else 0
            if k in barrier_before:
                g = e - 1 + (opt.barlag if self.nb == 3 else opt.barlag4) if j >= 0 else 0
                g = min(g, len(self.mf) - 2)
                if opt.barsplit and g > 0 and len(barrier_before[k]) == 2:
                    self.fixed[g] = barrier_before[k][1:]
                    self.fixed2[g - 1] = barrier_before[k][:1]
                else:
                    self.fixed[g] = barrier_before[k]
                self.bar_gap = getattr(self, "bar_gap", {}); self.bar_gap[k] = g
                e = g + 1
            dl = e + plen - 2
            if (k + 1) in barrier_before: dl = e + 1
            for i in ext[k]:
                n = Node(i, e=e, dl=min(dl, len(self.mf) - 1), ideal=e - 2, deps=[(prev, 0)] if prev else [])
                self.nodes.append(n); prev = n

    def build(self, nxt_first=None):
        n = len(self.mf)
        ft = set(); seen = set()
        for g, m in enumerate(self.mf):
            key = tuple(m.need)
            if key not in seen:
                seen.add(key)
                if g > 0: ft.add(g - 1)
        ft.add(n - 1)
        blocked = {}
        for g in self.fixed: ft.add(g); blocked[g] = opt.barblk
        for g in self.fixed2: ft.add(g)
        gaps, over = schedule2(self.mf, self.nodes, free_taken=ft, blocked=blocked, nomem=set(self.fixed2) | set(self.fixed))
        for g, ins in self.fixed2.items():
            gaps[g][1][0:0] = ins
        for g, ins in self.fixed.items():
            gaps[g][1][0:0] = ins
        self.over = over
        if getattr(opt, "show", 0):
            cost = lambda i: 8 if i.kind == "vmem" else i.cost
            for nme, (a, b) in self.blk.items():
                row = ""
                for g in range(a, b):
                    u = sum(cost(i) for i in gaps[g][2]) + 4 * max(0, len(gaps[g][1]) - (0 if g in ft and g not in self.fixed else 1))
                    row += "B" if g in self.fixed else (str(u // 4) if u < 40 else "#")
                print(f"  nb{self.nb} {self.name} {nme}: {row}", file=sys.stderr)
        return gaps

def sets_for(par):
    return (0, 1, 2, 3) if par == 0 else (3, 2, 1, 0)

def first_pairs_of_iter(nb, J, name):
    s = Seg(nb, name); par = J & 1
    X0, X1, A_, B_ = sets_for(par)
    s.qblock("t0", 4 * ((J + 1) & 1), A_, False, 0)
    return [p[2] for p in s.pairs[:3]]

SPLIT = {4: 3, 3: 2}

LAT = 4
def units_of(J, h):
    par = J & 1; kb = 4 * ((J + 1) & 1)
    return [("K", kb), ("K", kb + 1), ("K", kb + 2), ("V", par, 0)] if h == 0 else [("V", par, 1), ("V", par, 2), ("V", par, 3), ("K", kb + 3)]

def iter_blocks(s, J, cz, split=0):
    par = J & 1
    X0, X1, A_, B_ = sets_for(par)
    kb = 4 * ((J + 1) & 1)
    s.qblock("t0", kb + 0, A_, False, 0)
    s.qblock("t1", kb + 1, B_, False, 0)
    if split == 2:
        s.pgen("t2", par, [[(0, 0, 0), (0, 1, 0)], [(0, 2, 0), (0, 3, 0)], [(0, 0, 1), (0, 1, 1)], [(0, 2, 1), (0, 3, 1)]], X0, X1, cz)
    elif split == 1:
        s.pgen("t2", par, [[(0, 0, 0), (0, 1, 0)], [(0, 0, 1), (0, 1, 1)], [(0, 2, 0), (0, 2, 1)], [(0, 3, 0), (0, 3, 1)]], X0, X1, cz)
    else:
        s.pblock("t2", par, 0, X0, X1, cz, 0)
    s.qblock("t3", kb + 2, A_, False, 0)
    s.pblock("t4", par, 1, X0, X1, cz, 0)
    s.pblock("t5", par, 2, X0, X1, cz, 0)
    s.qblock("t6", kb + 3, A_, False, 0)
    s.pblock("t7", par, 3, X0, X1, cz, 0)

def iter_units(s, J, u2, lo3=None, x3=None, dl3=None):
    nb = s.nb; B = s.blk; n = len(s.mf)
    X0, X1, A_, B_ = sets_for(J & 1)
    p0s = s.first[("P", 1, 0)] - 1
    s.unit(A_, X1, True, range(nb), lambda b: s.done[("t0", b)] + LAT, lambda b: s.first[("P", 1, b)] - 2, dl3 or B["t3"][0] - 2,
           lo3 if lo3 is not None else B["t0"][1] - 2, p0s - 1, after=u2, **(x3 or dict(add_lo=p0s, add_hi=B["t3"][0] - 4)))
    u0 = s.unit(B_, B_, False, range(nb), lambda b: s.done[("t1", b)] + LAT, lambda b: B["t4"][0] + 4, None,
                p0s + 2, B["t4"][0] - 2)
    s.unit(A_, B_, True, range(nb), lambda b: s.done[("t3", b)] + LAT, lambda b: B["t6"][0] - 2, B["t6"][0] - 2,
           B["t4"][0], B["t6"][0] - 4, add_lo=B["t4"][0] + 4, add_hi=B["t6"][0] - 3, after=u0)
    s.unit(A_, A_, False, range(SPLIT[nb]), lambda b: s.done[("t6", b)] + LAT, lambda b: n - 1, None,
           B["t7"][0], n - 3)

def make_mid(nb, J, name, nxt_name, special=False):
    par = J & 1
    X0, X1, A_, B_ = sets_for(par)
    kb = 4 * ((J + 1) & 1)
    s = Seg(nb, name)
    iter_blocks(s, J, False, split=(1 if nb == 3 else 0))
    n = len(s.mf); B = s.blk
    u2 = s.unit(X1, X1, False, list(range(SPLIT[nb], nb)), lambda b: 0, lambda b: B["t0"][1] + 2, None, 0, B["t0"][1] - 4)
    iter_units(s, J, u2)
    npair = len(s.pairs)
    nxt = first_pairs_of_iter(nb, J + 1, nxt_name)
    need2 = units_of(J + 1, 0) + (units_of(J + 1, 1) if special else [])
    s.reads(nxt, barrier_before={16: [vwait(units_of(J, 1), 0), barrier()], npair: [vwait(need2, 0), barrier()]})
    g1 = s.bar_gap[16]; g2 = s.bar_gap[npair]
    npar = (J + 1) & 1
    if opt.spread:
        gg = [dma_V(npar, 1), dma_V(npar, 2), dma_V(npar, 3), dma_K(4 * ((J + 2) & 1) + 3)]
        k0 = 3
        c0 = s.chain(sum(gg[:k0], []), 2, B["t0"][1] + 2, dl=g1 - 1)
        c0 = s.chain(sum(gg[k0:], []), B["t2"][0] + 10, g1 - 2, dl=g1 - 1, first_dep=c0[-1])
        lo1, hi1 = (g1 + 14, g2 - 4) if nb == 4 else (B["t4"][0] + 14, g2 + 2)
    else:
        g0 = dma_V(npar, 1) + dma_V(npar, 2) + dma_V(npar, 3) + dma_K(4 * ((J + 2) & 1) + 3)
        c0 = s.chain(g0, 0, B["t0"][1] + 2, dl=g1 - 1)
        lo1, hi1 = B["t5"][0] + 8, B["t7"][0]
    if special:
        dq_ = dma_Q(s_mR3, s_qn[1], ("R3",))
        st_ = 12 << (opt.tsh + 6)
        for k in range(opt.t6n if nb == 4 else opt.t6n3):
            dq_[3 * (k + 1) + 4 * k:3 * (k + 1) + 4 * k] = touch(sK, s_tk, st_) + touch(sV, s_tv, st_)
        s.chain(dq_, g1 + 2, B["t6"][1], e=g1 + 1, dl=g2 - 1, first_dep=c0[-1])
    else:
        tq = (lambda: touch(sQ, s_tq, 2048)) if (opt.touch & 1 and J & 1) else (lambda: [])
        tk = (lambda: touch(sK, s_tk, 12 << (opt.tsh + 6))) if (opt.touch & 2 and (opt.twhen4 if nb == 4 else opt.twhen) >> (J & 1) & 1) else (lambda: [])
        tv = (lambda: touch(sV, s_tv, 12 << (opt.tsh + 6))) if (opt.touch & 2 and (opt.twhen4 if nb == 4 else opt.twhen) >> (J & 1) & 1) else (lambda: [])
        xq = [[], []]
        if not J & 1:
            for hi in range(2):
                xq[hi] = [set_m0(s_xm, hi * 4096)] + [dma(voQb if hi else voQa, sQ, s_xq, Rl * 2048, ("X",), opt.qmod) for Rl in range(2)]
            xq[1] += [sop(f"s_add_u32 {s_xm}, {s_xm}, 1024", wr=[s_xm]), sop(f"s_add_u32 {s_xq}, {s_xq}, 256", wr=[s_xq])]
            if opt.xlate:
                d = dma_Q(s_mX, s_xm, ("X",))
                xq = [d[:6], d[6:] + [sop(f"s_mov_b32 {s_xm}, {s_xq}", wr=[s_xm])]]
        tc = touch(sC, s_cs, 0)[:1] if (opt.cwarm and (J & 1 or opt.cwarm > 1)) else []
        g1l = tc + dma_K(kb + 0, wrap=(J & 1) == 1) + tq() + xq[0] + dma_K(kb + 1) + tq() + tk() + xq[1] + dma_K(kb + 2) + tq() + tv() + dma_V(par, 0)
        last = s.chain(g1l, lo1, hi1, e=g1 + 1, dl=g2 - 1, first_dep=c0[-1])[-1]
        if J & 1:
            s.chain([sop(f"s_sub_u32 {s_cnt}, {s_cnt}, 1"), sop(f"s_cmp_eq_u32 {s_cnt}, 0")], n - 6, n - 3, first_dep=last)
    return s

def touch(srd, sp, step):
    i = Ins(f"buffer_load_dword {vt0}, {vt1}, {srd}, {sp} offen", "vmem", rd=[vt1, srd, sp], wr=[vt0]); i.vm = True
    return [i, sop(f"s_add_u32 {sp}, {sp}, {step}", rd=[sp], wr=[sp])]

RL = lambda b: SET(0)[b]
WA = lambda k: wa0 if k == 0 else SET(0)[4 + k]
RA = SET(0)[8]
LT = SET(0)[9]
VS1 = SET(0)[10]
HOIST = {4: (4, 10), 3: (3, 4)}
PK = lambda c, k: O(k >> 1, 4 * c + (k & 1))

def butterfly(x, op, mid, out):
    q = []
    def add(i, deps): q.append((i, deps)); return len(q) - 1
    a = add(perm("v_permlane16_swap_b32", x[0], x[1]), [])
    b = add(perm("v_permlane16_swap_b32", x[2], x[3]), [])
    a = add(valu(op, x[0], x[0], x[1]), [a])
    b = add(valu(op, x[2], x[2], x[3]), [b])
    c = add(perm("v_permlane32_swap_b32", x[0], x[2]), [a, b])
    for i in mid(out[0], x[0], x[2]): c = add(i, [c])
    c = add(valu("v_mov_b32", out[2], out[0]), [c])
    c = add(perm("v_permlane32_swap_b32", out[0], out[2]), [c])
    a = add(valu("v_mov_b32", out[1], out[0]), [c])
    b = add(valu("v_mov_b32", out[3], out[2]), [c])
    a = add(perm("v_permlane16_swap_b32", out[0], out[1]), [a])
    b = add(perm("v_permlane16_swap_b32", out[2], out[3]), [b])
    return q

def nodes_of(q, first_deps, e, dl, ideal, step):
    nds = []
    for k, (i, deps) in enumerate(q):
        isp = i.op.startswith("v_permlane")
        d = [(nds[j], 2 if isp else (1 if nds[j].ins.kind == "trans" else 0)) for j in deps] if deps else [(x, 2 if isp else 0) for x in first_deps]
        nds.append(Node(i, e=e, dl=dl, deps=d, ideal=ideal + step * k))
    return nds

def make_last(nb, name):
    J = 7; par = 1
    X0, X1, A_, B_ = sets_for(par)
    s = Seg(nb, name)
    s.qblock("t0", 0, A_, False, 0)
    s.pgen("t2", par, [[(c, d, 0), (c, d + 1, 0)] for c in (0, 1) for d in (0, 2)], X0, X1, False)
    s.pgen("t4", par, [[(c, d, 1), (c, d + 1, 1)] for c in (0, 1) for d in (0, 2)], X0, X1, False)
    s.pblock("t5", par, 2, X0, X1, False, 0)
    s.pblock("t7", par, 3, X0, X1, False, 0)
    n = len(s.mf); B = s.blk
    u2 = s.unit(X1, X1, False, list(range(SPLIT[nb], nb)), lambda b: 0, lambda b: B["t0"][1] + 2, None, 0, B["t0"][1] - 4)
    k1 = B["t4"][0]
    u3 = s.unit(A_, X1, True, range(nb), lambda b: s.done[("t0", b)] + LAT, lambda b: s.first[("P", 1, b)] - 2, B["t5"][0] + 6,
                B["t0"][1] - 2, k1 - 1, add_lo=k1, add_hi=B["t5"][0], after=u2)
    npair = len(s.pairs)
    t0e = B["t0"][1]
    def qchain(b, base, unit, tmp, lo, hi, pre, dl=None, first_dep=None):
        ins = pre + q_reads(b, base, unit, tmp)
        nds = s.chain(ins, lo, hi, dl=dl, first_dep=first_dep)
        for k, nd in enumerate(nds[len(pre) + 1:]):
            nd.e = max(nd.e, s.pairs[k // 2][1] + 1)
        return nds
    if opt.r3epi:
        s.reads([[]], barrier_before={npair: [waitcnt(None, 0), barrier()]})
        g2 = s.bar_gap[npair]; gR = B["t4"][0] + 8
        c2 = s.chain(dma_Q(s_mR2, s_qn[2], ("R2",)), 0, B["t0"][1] + 4 if opt.q3early else B["t2"][1] - 4)
        r0 = qchain(0, s_mX, ("X",), vt1, t0e - 10, t0e + 10, [vwait([("X",)])])
        r1 = qchain(1, s_mR3, ("R3",), vt0, B["t4"][0] + 6, B["t5"][0] + 6, [vwait([("R3",)])], dl=g2 - 5, first_dep=r0[-1])
        c3 = s.chain([mark_wait_lds(("q", 0, 7))] + dma_Q(s_mX, s_qn[3], ("X",)), *((t0e + 16, B["t4"][1]) if opt.q3early else (B["t4"][0], g2)))
        c3[0].deps = [(r0[-1], 5), (c2[-1], 1)]
        c4 = s.chain([sop(f"s_sub_u32 {s_vptr}, {s_knext}, 32768", wr=[s_vptr])], 2, 4)
    else:
        kR = 12
        s.reads([[]], barrier_before={kR + 2: [waitcnt(None, 0), barrier()], npair: [waitcnt(None, 0), barrier()]})
        gR = s.bar_gap[kR + 2]; g2 = s.bar_gap[npair]
        c2 = s.chain(dma_Q(s_mR2, s_qn[2], ("R2",)), 0, B["t0"][1] - 2)
        r0 = qchain(0, s_mX, ("X",), vt0, t0e - 10, t0e + 10, [vwait([("X",)])], dl=gR - 5)
        r1 = qchain(1, s_mR3, ("R3",), vt1, t0e + 10, gR - 8, [vwait([("R3",)])], dl=gR - 5, first_dep=r0[-1])
        c3 = s.chain([mark_wait_lds(("q", 0, 7))] + dma_Q(s_mX, s_qn[3], ("X",)), t0e + 16, gR + 4)
        c3[0].deps = [(r0[-1], 5), (c2[-1], 1)]
        refill = [sop(f"s_sub_u32 {s_vptr}, {s_knext}, 32768", wr=[s_vptr])] + dma_K(4) + dma_K(5) + dma_K(6) + dma_V(0, 0)
        c4 = s.chain(refill, gR + 4, g2 - 2, e=gR + 1, first_dep=c3[-1])
        r2 = s.chain([vwait([("R2",)])] + q_reads(2, s_mR2, ("R2",), vt0), g2 - 16, g2 - 6, dl=g2 - 4, first_dep=r1[-1])
        nca = opt.ca7
        grp = [dma_V(0, 1), dma_V(0, 2), dma_V(0, 3), dma_K(7)]
        c5 = s.chain(sum(grp[:nca], []), g2 + 1, n - 2, e=g2 + 1, first_dep=c4[-1]) if nca else c4
    ok = [sop(f"s_add_u32 {s_ok[k]}, {s_ocur}, {k * 4096}", wr=[s_ok[k]]) if (k < 2 * nb and not opt.nostore) else sop(f"s_mov_b32 {s_ok[k]}, {OOB:#x}", wr=[s_ok[k]]) for k in range(8)]
    k0 = s.chain(ok, 4, t0e + 8)
    pbg = pass_begin()
    q3w = [i for i in pbg if i.text.startswith(f"s_mov_b32 {s_qn[3]},")][0]
    if opt.r3epi:
        pbg.remove(q3w); pbg.append(sop(f"s_mov_b32 {s_qn[3]}, {s_tab[3]}"))
        k1 = s.chain(pbg, gR + 6, n - 3, first_dep=k0[-1])
        k1[0].deps += [(c2[-1], 1), (c4[0], 1)]; k1[-1].deps += [(c3[-1], 1)]
    else:
        k1 = s.chain(pbg, gR + 6, n - 4, first_dep=k0[-1])
        k1[0].deps += [(c3[-1], 1), (c4[0], 1)]
    q = butterfly([lsum(b) for b in range(4)], "v_add_f32", lambda d, x, y: [valu("v_add_f32", LT, x, y), valu("v_rcp_f32", d, LT)], [RL(b) for b in range(4)])
    red = nodes_of(q, [x for b in range(nb) for x in u3[b][2:]], 0, 10**9, B["t5"][0] + 2, 1.5)
    rl_done = red[-2:]
    ad = [valu("v_xor_b32", WA(k), 16 * k, wa0) for k in (1, 2, 3)]
    ad += [valu("v_mbcnt_lo_u32_b32", RA, -1, 0), valu("v_mbcnt_hi_u32_b32", RA, -1, RA), valu("v_lshl_add_u32", RA, RA, 3, s_mOS),
           valu("v_xor_b32", VS1, 32, RA)]
    prev = None
    for k, i in enumerate(ad):
        nd = Node(i, deps=[(prev, 0)] if prev else [], ideal=B["t0"][1] - 12 + k); red.append(nd); prev = nd
    s.nodes += red
    t7s = B["t7"][0]
    order, acct = epi_order(nb)
    na, nc = HOIST[nb]
    hs = g2 - opt.hback
    for k in range(na * 4):
        t_ = acct[k // 4]; i = k % 4
        s.nodes.append(Node(acc_read(TMP(k // 4)[i], O(t_[2], 4 * t_[0] + t_[1])[i]), e=t7s + LAT + 1, ideal=g2 + 1 + k * 0.6,
                            deps=[(x, 0) for b in range(nb) for x in u3[b]]))
    for k in range(nc):
        c, dbl, b = order[k]; o = O(b, 4 * c + dbl)
        ms = [Node(valu("v_mul_f32", o[i], o[i], RL(b)), e=B["t5"][0] + LAT, ideal=hs + 1 + na * 2.4 + 3 * k + 0.5 * i, deps=[(x, 0) for x in rl_done]) for i in range(4)]
        c0 = Node(valu("v_cvt_pk_bf16_f32", o[0], o[0], o[1]), ideal=hs + 3 + na * 2.4 + 3 * k, deps=[(ms[0], 0), (ms[1], 0)])
        c1 = Node(valu("v_cvt_pk_bf16_f32", o[1], o[2], o[3]), ideal=hs + 3.5 + na * 2.4 + 3 * k, deps=[(ms[2], 0), (ms[3], 0), (c0, 0)])
        s.nodes += ms + [c0, c1]
    return s

def make_final(nb, name, mid=False):
    par = 1
    X0, X1, A_, B_ = sets_for(par)
    s = Seg(nb, name)
    s.qblock("t0", 0, A_, False, 0)
    s.pgen("t2", par, [[(0, 0, 0), (0, 1, 0)], [(0, 2, 0), (0, 3, 0)], [(0, 0, 1), (0, 1, 1)], [(0, 2, 1), (0, 3, 1)]], X0, X1, False)
    s.pblock("t4", par, 1, X0, X1, False, 0)
    s.pblock("t5", par, 2, X0, X1, False, 0)
    s.pblock("t7", par, 3, X0, X1, False, 0)
    n = len(s.mf); B = s.blk
    blk = [B["t2"], B["t4"], B["t5"], B["t7"]]
    u2 = s.unit(X1, X1, False, list(range(SPLIT[nb], nb)), lambda b: 0, lambda b: B["t0"][1] + 2, None, 0, B["t0"][1] - 8)
    k1 = s.first[("P", 1, 0)]
    u3 = s.unit(A_, X1, True, range(nb), lambda b: s.done[("t0", b)] + LAT, lambda b: s.first[("P", 1, b)] - 2, blk[0][1] - 1,
                B["t0"][1] - 2, k1 - 1, add_lo=k1, add_hi=k1 + 2 * nb, after=u2)
    s.reads([])
    k0 = s.chain([sop(f"s_add_u32 {s_ok[k]}, {s_ocur}, {k * 4096}", wr=[s_ok[k]]) for k in range(2 * nb)], 2, B["t0"][1])
    q = butterfly([lsum(b) for b in range(4)], "v_add_f32", lambda d, x, y: [valu("v_add_f32", LT, x, y), valu("v_rcp_f32", d, LT)], [RL(b) for b in range(4)])
    fo = opt.finoff
    cut = [min(blk[c][1] - 1 + (fo if c == 0 else opt.finoff2), n - 1) for c in range(4)]
    red = nodes_of(q, [x for b in range(nb) for x in u3[b][2:]], 0, cut[0], k1 + 2 * nb, 0.5)
    if mid:
        W0 = SET(0)[4]
        WAq = lambda c, k: SET(0)[4 + k]
        ad = [sop(f"s_sub_u32 {s_t0}, {s_mR3}, {s_mOS}", wr=[s_t0]), sop(f"s_sub_u32 {s_t1}, {s_mR2}, {s_mR3}", wr=[s_t1]),
              valu("v_add_u32", W0, s_t0, wa0)] + [valu("v_xor_b32", WA(k), 16 * k, W0) for k in (1, 2, 3)]
        ad += [valu("v_mbcnt_lo_u32_b32", RA, -1, 0), valu("v_mbcnt_hi_u32_b32", RA, -1, RA), valu("v_lshl_add_u32", RA, RA, 3, s_mR3),
               valu("v_xor_b32", VS1, 32, RA), valu("v_add_u32", SET(0)[11], s_t1, RA), valu("v_add_u32", SET(0)[12], s_t1, VS1)]
        RAq = lambda c, k: (SET(0)[11 + (k & 1)] if c >= 2 else (VS1 if k & 1 else RA))
        XO = 0; UN = lambda c: ("R2",) if c >= 2 else ("R3",)
    else:
        WAq = lambda c, k: WA(k)
        ad = [valu("v_xor_b32", WA(k), 16 * k, wa0) for k in (1, 2, 3)]
        ad += [valu("v_mbcnt_lo_u32_b32", RA, -1, 0), valu("v_mbcnt_hi_u32_b32", RA, -1, RA), valu("v_lshl_add_u32", RA, RA, 3, s_mOS),
               valu("v_xor_b32", VS1, 32, RA)]
        RAq = lambda c, k: VS1 if k & 1 else RA
        XO = (XB - vslot_addr(1, 0)) // 512; UN = lambda c: ("X",)
    prev = None
    for k, i in enumerate(ad):
        nd = Node(i, deps=[(prev, 1 if prev.ins.kind == "salu" else 0)] if prev else [], ideal=8 + k, dl=cut[0]); red.append(nd); prev = nd
    s.nodes += red
    pre = {c: [] for c in range(4)}; post = {c: [] for c in range(4)}
    if mid:
        t0e = B["t0"][1]
        def qchain(b, base, unit, tmp, lo, hi, dl, first_dep=None):
            nds = s.chain([vwait([unit])] + q_reads(b, base, unit, tmp), lo, hi, dl=dl, first_dep=first_dep)
            for k, nd in enumerate(nds[2:]): nd.e = max(nd.e, s.pairs[k // 2][1] + 1)
            return nds
        c2 = s.chain(dma_Q(s_mR2, s_qn[2], ("R2",)), 0, t0e - 2)
        r0 = qchain(0, s_mX, ("X",), vt0, t0e - 12, t0e + 2, t0e + 4)
        r1 = qchain(1, s_mR3, ("R3",), vt1, cut[0] - 14, cut[0] - 2, cut[0] - 1, first_dep=r0[-1])
        c3 = s.chain([mark_wait_lds(("q", 0, 7))] + dma_Q(s_mX, s_qn[3], ("X",)), t0e + 8, cut[0] - 2, dl=cut[0])
        c3[0].deps = [(r0[-1], 5), (c2[-1], 1)]
        c4 = s.chain([sop(f"s_sub_u32 {s_vptr}, {s_knext}, 32768", wr=[s_vptr])], 2, 4)
        pbg = pass_begin()
        q3w = [i for i in pbg if i.text.startswith(f"s_mov_b32 {s_qn[3]},")][0]
        pbg.remove(q3w); pbg.append(sop(f"s_mov_b32 {s_qn[3]}, {s_tab[3]}"))
        k1_ = s.chain(pbg, cut[0], n - 3, first_dep=k0[-1])
        k1_[0].deps += [(c2[-1], 1), (c4[0], 1)]; k1_[-1].deps += [(c3[-1], 1)]
        pre[2] = [vwait([("R2",)])] + q_reads(2, s_mR2, ("R2",), vt0) + [valu("v_add_u32", WAq(2, k), s_t1, WAq(2, k)) for k in range(4)]
        pre[2] += [mark_wait_lds(("o", 1, 2 * nb - 1)), barrier()]
        refill = [dma_K(4), dma_K(5), dma_K(6), dma_V(0, 0)]
        post[2] = refill[0]
        s.chain(refill[1] + refill[2], cut[2] + 2, n - 4, e=cut[2] + 1, first_dep=c3[-1])
        pre[3] = refill[3] + head_reads()
        post[3] = [vwait([("X",)])] + q_reads(3, s_mX, ("X",), vt1)
    temps = [V(48 + 4 * k, 4) for k in range(4)] + [O(b, db) for db in (2, 3) for b in range(4)] + [V(16 + 4 * k, 4) for k in range(4)]
    chunks = {}
    fst = (lambda c, k: store(c, k, nb)) if mid else (lambda c, k: fstore(c, k, nb))
    for c in range(4):
        tiles = [(dbl, b) for dbl in range(4) for b in range(nb)]
        src = {}; ti = 0
        for t_ in tiles:
            o = O(t_[1], 4 * c + t_[0])
            if o.k == 'a': src[t_] = temps[ti]; ti += 1
            else: src[t_] = o
        lo = cut[c - 1] + 1 if c else None
        early = set()
        if c:
            pn = None
            span = cut[c] - lo
            for k in range(2 * nb):
                ra = RAq(c - 1, k)
                i = Ins(f"ds_read2st64_b64 {PK(c - 1, k)}, {ra} offset0:{XO + k} offset1:{XO + 8 + k}", "ds", rd=[ra], wr=[PK(c - 1, k)], tag=("o", c - 1, k))
                i.lds_rd = UN(c - 1); i.private = True
                pn = Node(i, e=lo, dl=cut[c] - 1, ideal=lo + k, deps=[(pn, 0)] if pn else []); s.nodes.append(pn)
                st = fst(c - 1, k); st.need = [("o", c - 1, k)]
                s.nodes.append(Node(st, e=lo, dl=cut[c] - 1, ideal=lo + 6 + k * (span - 8) / (2 * nb), deps=[(pn, 5)]))
            budget = (opt.midb if mid else opt.finb) * nb // 4
            for t_ in tiles:
                o = O(t_[1], 4 * c + t_[0]); d = src[t_]
                e = max(lo, blk[c][0] + (t_[0] * nb + t_[1]) * 2 + 1 + LAT + 1)
                if o.k == 'a':
                    if budget < 4 or e > cut[c] - 3: break
                    s.nodes += [Node(acc_read(d[i], o[i]), e=e, dl=cut[c] - 1, ideal=e + i * 0.5) for i in range(4)]
                    early.add((t_, 'a')); budget -= 4
                else:
                    if budget < 6 or e > cut[c] - 4: break
                    ms = [Node(valu("v_mul_f32", o[i], o[i], RL(t_[1])), e=e, dl=cut[c] - 1, ideal=e + i * 0.5) for i in range(4)]
                    c0 = Node(valu("v_cvt_pk_bf16_f32", o[0], o[0], o[1]), dl=cut[c] - 1, ideal=e + 2, deps=[(ms[0], 0), (ms[1], 0)])
                    c1 = Node(valu("v_cvt_pk_bf16_f32", o[1], o[2], o[3]), dl=cut[c] - 1, ideal=e + 2.5, deps=[(ms[2], 0), (ms[3], 0), (c0, 0)])
                    s.nodes += ms + [c0, c1]; early.add((t_, 'c')); budget -= 6
        r = list(pre[c])
        if c == 0:
            c_ = valu("v_cmp_ngt_f32", "vcc", hex(L_LIMIT), LT); c_.wr.add(('s', 'vcc')); r.append(c_)
        held = None; wq = []
        for j, t_ in enumerate(tiles):
            dbl, b = t_; o = O(b, 4 * c + dbl); t4 = src[t_]
            if o.k == 'a' and (t_, 'a') not in early: r += [acc_read(t4[i], o[i]) for i in range(4)]
            if (t_, 'c') not in early:
                rlp = V(RL(b).n & ~1, 2); sel = RL(b).n & 1
                for h in range(2):
                    r.append(valu("v_pk_mul_f32", t4.sub(2 * h, 2), t4.sub(2 * h, 2), rlp, mods=f"op_sel:[0,{sel}] op_sel_hi:[1,{sel}]"))
                r += [valu("v_cvt_pk_bf16_f32", t4[0], t4[0], t4[1]), valu("v_cvt_pk_bf16_f32", t4[1], t4[2], t4[3])]
            if wq: r.append(wq.pop(0))
            if b % 2 == 0 and b + 1 < nb: held = t4
            else:
                if held is not None:
                    w = Ins(f"ds_write2st64_b64 {WAq(c, dbl)}, {held.sub(0, 2)}, {t4.sub(0, 2)} offset0:{XO + (b - 1) * 2} offset1:{XO + b * 2}", "ds",
                            rd=[WAq(c, dbl), held.sub(0, 2), t4.sub(0, 2)], tag=("w", c, j)); held = None
                else:
                    w = ds_write("ds_write_b64", WAq(c, dbl), t4.sub(0, 2), XO * 512 + b * 1024, tag=("w", c, j))
                w.lds_pw = UN(c); wq.append(w)
            if c == 0 and j == 2:
                r += [raw(f"s_cbranch_vccz L_noflag{nb}{'m' if mid else 'g'}"), sop(f"s_bitset1_b32 {s_flags}, {s_pass}"), label(f"L_noflag{nb}{'m' if mid else 'g'}")]
        r += wq
        if c < 3: r += post[c]
        if c == 3:
            for k in range(2 * nb):
                ra = RAq(3, k)
                i = Ins(f"ds_read2st64_b64 {PK(3, k)}, {ra} offset0:{XO + k} offset1:{XO + 8 + k}", "ds", rd=[ra], wr=[PK(3, k)], tag=("o", 3, k))
                i.lds_rd = UN(3); i.private = True; r.append(i)
            r += post[3]
            for k in range(2 * nb):
                st = fst(3, k); st.need = [("o", 3, k)]; r.append(st)
        chunks[cut[c]] = r
    s.chunks = chunks
    return s

def fstore(c, k, nb):
    st = store(c, k, nb)
    st.text = st.text[:st.text.index("offset:")] + f"offset:{c * 128} {opt.fmod}"
    return st

QORD = (0, 3, 2, 1)
TMP = lambda k: V(48 + 4 * (k % 12), 4)
def epi_order(nb):
    order = [(c, dbl, b) for c in QORD for dbl in ((2, 3, 0, 1) if c == 2 else range(4)) for b in range(nb)]
    if opt.pairmaj: order.sort(key=lambda t: (QORD.index(t[0]), t[2] // 2))
    return order, [t_ for t_ in order if O(t_[2], 4 * t_[0] + t_[1]).k == 'a']

def mark_wait_lds(tag):
    i = raw("s_nop 0", "nop"); i.need = [tag]; i.is_marker = True
    return i

def make_head(nb, name, nxt_name):
    X0, X1, A_, B_ = sets_for(1)
    s = Seg(nb, name)
    s.qblock("h0", 1, B_, True, 0)
    s.qblock("h1", 2, X0, True, 0)
    s.qblock("h2", 3, A_, False, 0)
    iter_blocks(s, 0, True, split=2)
    n = len(s.mf); B = s.blk
    tmp = SET(X1)
    pre = {}; nmc = {}
    part = []; emax = 0
    dlm = B["h2"][0] - 2
    for b in range(4):
        if b < nb:
            x = Sx(B_, b); e = s.done[("h0", b)] + LAT; emax = max(emax, e)
            n0 = Node(valu("v_max3_f32", tmp[b], x[0], x[1], x[2]), e=e, dl=dlm, ideal=e)
            n1 = Node(valu("v_max_f32", tmp[b], tmp[b], x[3]), e=e, dl=dlm, ideal=e + 0.5, deps=[(n0, 0)])
            s.nodes += [n0, n1]; part.append(n1)
        z = Node(valu("v_mov_b32", lsum(b), 0), e=0, dl=B["h0"][1], ideal=2 + b)
        s.nodes.append(z); pre[b] = [z]
    q = butterfly([tmp[b] for b in range(4)], "v_max_f32", lambda d, x, y: [valu("v_min_f32", d, Neg(x), Neg(y))], [Ct(b)[0] for b in range(4)])
    bf = nodes_of(q, part, 0, dlm, emax, 0.5)
    s.nodes += bf
    for b in range(nb):
        nmc[b] = tmp[8 + b]
        src = bf[-2] if b < 2 else bf[-1]
        n0 = Node(valu("v_mul_f32", nmc[b], s_c, Ct(b)[0]), dl=dlm, ideal=emax + 8 + b * 0.3, deps=[(src, 0)])
        s.nodes += [n0] + [Node(valu("v_mov_b32", Ct(b)[i], Ct(b)[0]), dl=dlm + 2 * b, ideal=emax + 12 + 2 * b + i * 0.5, deps=[(src, 0)]) for i in (1, 2, 3)]
        pre[b].append(n0)
    t0s = B["t0"][0]; t1s = B["t1"][0]
    assert opt.defer == 0
    t7s = B["t7"][0]; a0 = B["t6"][0] - 6; aw = (t7s - 4 - a0) / 4
    X = lambda k: (dict(ext=lambda b: O(b, 12 + k), add_lo=a0 + k * aw, add_hi=a0 + (k + 1) * aw) if k < opt.hext else {})
    dla = lambda k, d: (t7s - 3) if k < opt.hext else d
    w = opt.hwin
    u0 = s.unit(B_, B_, False, range(nb), lambda b: s.done[("h0", b)] + LAT, lambda b: t1s - 4, dla(0, None), B["h1"][0] + 10, B["h2"][0] + w[0], pre=pre, fma=nmc, **X(0))
    u1 = s.unit(X0, B_, True, range(nb), lambda b: s.done[("h1", b)] + LAT, lambda b: t1s - 2, dla(1, t1s - 2), B["h2"][0] + w[0], t0s + w[1], pre=pre, after=u0, fma=nmc, **X(1))
    for nd in s.nodes:
        if nd.ins.text.startswith("v_fma_f32"): nd.dl = min(nd.dl, t0s - 2); nd.ideal = min(nd.ideal, t0s - 6)
    u2 = s.unit(A_, A_, False, range(nb), lambda b: s.done[("h2", b)] + LAT, lambda b: s.first[("P", 1, b)] - 4, dla(2, None), t0s + w[1], t1s + w[2], **X(2))
    iter_units(s, 0, u2, lo3=t1s + w[2], x3=X(3), dl3=dla(3, None))
    prev = None
    for k, i in enumerate([valu("v_mbcnt_lo_u32_b32", vt1, -1, 0), valu("v_mbcnt_hi_u32_b32", vt1, -1, vt1), valu("v_lshlrev_b32", vt1, opt.tsh, vt1)]):
        nd = Node(i, deps=[(prev, 0)] if prev else [], ideal=8 + k); s.nodes.append(nd); prev = nd
    npair = len(s.pairs)
    nxt = first_pairs_of_iter(nb, 1, nxt_name)
    def tb(k, l):
        if opt.diag != 3: return l
        return [raw(f"s_memtime s[{90+4*k}:{91+4*k}]")] + l + [raw(f"s_memtime s[{92+4*k}:{93+4*k}]")]
    s.reads(nxt, barrier_before={12: tb(0, [vwait(units_of(0, 0), 0), barrier()]), 28: tb(1, [vwait(units_of(0, 1), 0), barrier()]),
                                 npair: tb(2, [vwait(units_of(1, 0), 0), barrier()])})
    g0 = s.bar_gap[12]; g1 = s.bar_gap[28]; g2 = s.bar_gap[npair]
    grp = [dma_V(0, 1), dma_V(0, 2), dma_V(0, 3), dma_K(7)][opt.ca7:] + [dma_K(0), dma_V(1, 0), dma_V(1, 1), dma_V(1, 2), dma_V(1, 3)]
    ca = s.chain(sum(grp[:opt.hca], []), 0, B["h0"][1] + 2 + (opt.hca - 4) * 2 * nb, dl=g1 - 30)
    rest = grp[opt.hca:]
    nearly = max(0, 6 - opt.hca)
    cb = s.chain(sum(rest[:nearly], []) + dma_K(1) + dma_K(2), B["t1"][0], B["t4"][0], e=g0 + 1, first_dep=ca[-1])
    cc = s.chain(sum(rest[nearly:], []) + dma_K(3), B["t4"][0] + 8, B["t6"][0] + 4, first_dep=cb[-1])
    cd = s.chain(dma_K(4) + dma_K(5) + dma_K(6) + dma_V(0, 0), B["t6"][0] + 6, n - 4, e=g1 + 1, first_dep=cc[-1])
    prev = None
    nd_ = opt.defer
    sts = [(c, k) for c in range(4 - nd_, 4) for k in range(8)]
    lo, hi = 4, s.first[("O", 3)] - 6
    for j, (c, k) in enumerate(sts):
        nd = Node(store(c, k), dl=s.first[("O", c)] - 3, ideal=min(lo + (hi - lo) * j / len(sts), s.first[("O", c)] - 6 - 4 * (7 - k)), deps=[(prev, 2)] if prev else [])
        s.nodes.append(nd); prev = nd
    head = [i for p in s.pairs[:3] for i in p[2]]
    return s, head

KF = lambda u, k: V(96 + 32 * u + 4 * k, 4)

def quick_kreads():
    r = []
    for u in range(3):
        for k in range(8):
            i = ds_read("ds_read_b128", KF(u, k), kaddr, kslot_addr(1 + u) + k * 256, tag=("kf", u, k)); i.lds_rd = ("K", 1 + u)
            r.append(i)
    return r

def quick_pro(b, nb):
    X0, X1, A_, B_ = sets_for(1)
    s = Seg(1, f"qp{b}")
    for u, dst in enumerate((B_, X0, A_)):
        st = len(s.mf)
        for k in range(8):
            d = Sx(dst, b)
            s.mf.append(mfma(d, KF(u, k), Q(b, k), d if k else 0, need=[("kf", u, 7), ("q", b, k | 1)]))
        s.blk[f"h{u}"] = (st, len(s.mf))
    n = len(s.mf)
    x = Sx(B_, b); ta, tb, nm = SET(X1)[0], SET(X1)[1], SET(X1)[2]
    seq = [valu("v_max3_f32", ta, x[0], x[1], x[2]), valu("v_max_f32", ta, ta, x[3]), valu("v_mov_b32", tb, ta),
           perm("v_permlane16_swap_b32", ta, tb), valu("v_max_f32", ta, ta, tb), valu("v_mov_b32", tb, ta),
           perm("v_permlane32_swap_b32", ta, tb), valu("v_min_f32", Ct(b)[0], Neg(ta), Neg(tb)), valu("v_mul_f32", nm, s_c, Ct(b)[0])]
    prev = None; nds = []
    for k, i in enumerate(seq):
        nd = Node(i, e=7 + LAT, ideal=7 + LAT + k * 0.5, deps=[(prev, 2 if i.op.startswith("v_permlane") else 0)] if prev else [])
        nds.append(nd); prev = nd
    z = Node(valu("v_mov_b32", lsum(b), 0), ideal=0)
    s.nodes += nds + [z] + [Node(valu("v_mov_b32", Ct(b)[i], Ct(b)[0]), ideal=n + i, deps=[(nds[7], 0)]) for i in (1, 2, 3)]
    pre = {b: [nds[8], z]}; f = {b: nm}
    u0 = s.unit(B_, B_, False, [b], lambda _: 0, lambda _: n - 1, None, 16, 20, pre=pre, fma=f)
    s.unit(X0, B_, True, [b], lambda _: 15 + LAT, lambda _: n - 1, n - 1, 20, 23, pre=pre, after=u0, fma=f)
    if b < SPLIT[nb]:
        s.unit(A_, A_, False, [b], lambda _: n - 1, lambda _: n - 1, None, 24, 27, pre=pre, fma=f)
    else:
        y = Sx(A_, b)
        s.nodes += [Node(valu("v_add_f32", y[i], y[i], Ct(b)[0]), e=n - 1, ideal=30 + i, deps=[(nds[7], 0)]) for i in range(4)]
    return s

def make_it0(nb, name, nxt_name):
    X0, X1, A_, B_ = sets_for(0)
    s = Seg(nb, name)
    iter_blocks(s, 0, True, split=(1 if nb == 3 else 0))
    n = len(s.mf); B = s.blk
    u2 = s.unit(X1, X1, False, list(range(SPLIT[nb], nb)), lambda b: 0, lambda b: B["t0"][1] + 2, None, 0, B["t0"][1] - 4)
    iter_units(s, 0, u2)
    prev = None
    for k, i in enumerate([valu("v_mbcnt_lo_u32_b32", vt1, -1, 0), valu("v_mbcnt_hi_u32_b32", vt1, -1, vt1), valu("v_lshlrev_b32", vt1, opt.tsh, vt1),
                           valu("v_mov_b32", lsum(3), 0)]):
        nd = Node(i, deps=[(prev, 0)] if prev else [], ideal=B["t6"][0] + k); s.nodes.append(nd); prev = nd
    npair = len(s.pairs)
    s.reads(first_pairs_of_iter(nb, 1, nxt_name), barrier_before={16: [vwait(units_of(0, 1), 0), barrier()], npair: [vwait(units_of(1, 0), 0), barrier()]})
    g1 = s.bar_gap[16]
    ca = s.chain(dma_V(1, 0) + dma_V(1, 1) + dma_V(1, 2), 2, B["t0"][1] + 2)
    cb = s.chain(dma_V(1, 3) + dma_K(3), B["t2"][0] + 6, g1 - 2, first_dep=ca[-1])
    s.chain(dma_K(4) + dma_K(5) + dma_K(6) + dma_V(0, 0), B["t4"][0] + 14, n - 8, e=g1 + 1, first_dep=cb[-1])
    return s, [i for p in s.pairs[:3] for i in p[2]]

def quick_start(nb, q_after):
    out = []; q = []
    def add(seq):
        nonlocal q
        o, q = lin(seq, q); out.extend(o)
    def seg(sg, nxt=()):
        nonlocal q
        o, q = flat(sg.build(), q, list(nxt)); out.extend(o)
    add([barrier()] + quick_kreads())
    q = [("q", 0, k) for k in range(8)] + q
    seg(quick_pro(0, nb))
    add([vwait([("R2",)])] + q_reads(1, s_mR2, ("R2",), vt1) + dma_K(4) + dma_K(5) + dma_K(6) + dma_V(0, 0) + [waitcnt(None, 0), barrier()])
    add(dma_V(0, 1) + dma_V(0, 2) + dma_V(0, 3) + dma_K(7))
    seg(quick_pro(1, nb))
    add(dma_K(0) + dma_K(1) + dma_K(2) + pass_begin())
    it0, hr = make_it0(nb, "z0", "i1")
    add([vwait([("OS",)])] + q_reads(2, s_mOS, ("OS",), vt0) + [vwait(units_of(0, 0), 0), barrier()] + hr)
    seg(quick_pro(2, nb))
    G = it0.build()
    print("quick it0 overflow", it0.over, file=sys.stderr)
    s1 = Seg(nb, "i1"); s1.qblock("t0", 0, 0, False, 0)
    o, q = flat(G, q, s1.mf[0].need); out.extend(o)
    assert q == q_after, (q, q_after)
    return fix_hazards(out)

def perm(op, a, b):
    i = valu(op, a, b, extra_rd=[a], extra_wr=[b]); i.cost = 8
    return i

def acc_read(d, a):
    i = Ins(f"v_accvgpr_read_b32 {d}, {a}", "acc", rd=[a], wr=[d]); return i

def make_epi(nb, final):
    r = []
    c_ = valu("v_cmp_ngt_f32", "vcc", hex(L_LIMIT), LT); c_.wr.add(('s', 'vcc')); r.append(c_)
    tag = f"{nb}{'f' if final else ''}"
    flagl = [raw(f"s_cbranch_vccz L_noflag{tag}"), sop(f"s_bitset1_b32 {s_flags}, {s_pass}"), label(f"L_noflag{tag}")]
    def fin_only(st):
        if final:
            st.text = st.text[:st.text.index("offset:")] + f"offset:{st.quarter * 128} {opt.fmod}"
            return [st]
        return [st] if st.quarter < 4 - opt.defer else []
    def cluster(ins): return [] if final else ins
    order, acct = epi_order(nb)
    slot = {t_: k for k, t_ in enumerate(acct)}
    accq = [(t_, i) for t_ in acct for i in range(4)]
    nacc = 4 * HOIST[nb][0]; done_acc = 0
    rdq = []; stq = []; oth = []; wq = []
    dq = [dma_K(4), dma_K(5), dma_K(6), dma_V(0, 0)] if opt.r3epi else []
    d0 = 6 + len(order) * opt.dq0 // 100
    dstep = (len(order) * 3 // 4) // 4
    held = None
    for j, (c, dbl, b) in enumerate(order):
        o = O(b, 4 * c + dbl)
        want = min(len(acct) * 4, -(-(j + 1) * len(acct) * 4 // (order.index(acct[-1]) - 2)))
        while nacc < len(acct) * 4 and (nacc < want or (o.k == 'a' and nacc < 4 * (slot[(c, dbl, b)] + 1))):
            if nacc // 4 >= done_acc + 12:
                assert not (o.k == 'a' and nacc < 4 * (slot[(c, dbl, b)] + 1)), "out of temps"
                break
            t_, i = accq[nacc]; nacc += 1
            r.append(acc_read(TMP(slot[t_])[i], O(t_[2], 4 * t_[0] + t_[1])[i]))
        t4 = TMP(slot[(c, dbl, b)]) if o.k == 'a' else o
        rlp = V(RL(b).n & ~1, 2); sel = RL(b).n & 1
        if j >= HOIST[nb][1]:
            for h in range(2):
                r.append(valu("v_pk_mul_f32", t4.sub(2 * h, 2), t4.sub(2 * h, 2), rlp, mods=f"op_sel:[0,{sel}] op_sel_hi:[1,{sel}]"))
            r += [valu("v_cvt_pk_bf16_f32", t4[0], t4[0], t4[1]), valu("v_cvt_pk_bf16_f32", t4[1], t4[2], t4[3])]
        if b % 2 == 0 and b + 1 < nb:
            held = (t4, o.k == 'a')
        else:
            na = int(o.k == 'a')
            if held is not None:
                w = Ins(f"ds_write2st64_b64 {WA(dbl)}, {held[0].sub(0, 2)}, {t4.sub(0, 2)} offset0:{(b - 1) * 2} offset1:{b * 2}", "ds",
                        rd=[WA(dbl), held[0].sub(0, 2), t4.sub(0, 2)], tag=("w", j))
                na += held[1]; held = None
            else:
                w = ds_write("ds_write_b64", WA(dbl), t4.sub(0, 2), b * 1024, tag=("w", j))
            w.lds_pw = ("OS",); wq.append((w, na))
        if j == 4: r += flagl
        if dq and j >= d0 and (j - d0) % dstep == 0: r += cluster(dq.pop(0))
        last = (j + 1) % (4 * nb) == 0; pos = j // (4 * nb)
        def back(c, ks):
            for k in ks:
                ra = VS1 if k & 1 else RA
                i = Ins(f"ds_read2st64_b64 {PK(c, k)}, {ra} offset0:{k} offset1:{8 + k}", "ds", rd=[ra], wr=[PK(c, k)], tag=("o", c, k))
                i.lds_rd = ("OS",); i.private = True; i.pr = k // 4
                rdq.append(i)
        if opt.pairmaj:
            if wq:
                while any(x.pr == b // 2 for x in rdq): r.append(rdq.pop(0))
                w, na = wq.pop(0); r.append(w); done_acc += na
            elif rdq: r.append(rdq.pop(0))
            if nb == 3 and b == 2 and rdq: r.append(rdq.pop(0))
            uend = j + 1 == len(order) or order[j + 1][0] != c or order[j + 1][2] // 2 != b // 2
            if stq and j % 2 == 0 and stq[0][0] <= j: r += fin_only(stq.pop(0)[1])
            elif oth and j % 4 == 1: r += cluster(oth.pop(0))
            if uend:
                ks = [k for k in range(2 * nb) if k // 4 == b // 2]
                back(c, ks)
                for n_, k in enumerate(ks):
                    st = store(c, k, nb); st.need = [("o", c, k)]; stq.append((j + 4 + 2 * n_, st))
        else:
            for _ in range(opt.epi_rd):
                if rdq: r.append(rdq.pop(0))
            if not rdq or last:
                r += rdq; rdq.clear()
                k_ = 0
                while wq and (k_ < 1 or last):
                    w, na = wq.pop(0); r.append(w); done_acc += na; k_ += 1
            if stq and j % 2 == 1 and stq[0][0] <= j: r += fin_only(stq.pop(0)[1])
            elif oth and j % 2 == 0 and not rdq:
                r += cluster(oth.pop(0))
            if last:
                back(c, range(2 * nb))
                for k in range(2 * nb):
                    st = store(c, k, nb); st.need = [("o", c, k if (k < 3 or pos == 3) else 2 * nb - 1)]; stq.append((j + 3 + k // opt.epi_rd, st))
        if last:
            def halves(l): return [l[:len(l) - 4], l[len(l) - 4:]]
            if opt.r3epi:
                if pos == 0: oth += [head_reads()]
                if pos == 1: oth += halves([vwait([("R2",)])] + q_reads(2, s_mR2, ("R2",), vt0))
                if pos == 2: oth += halves([vwait([("X",)])] + q_reads(3, s_mX, ("X",), vt1))
            else:
                if c == 0: oth += halves([vwait([("X",)])] + q_reads(3, s_mX, ("X",), vt0))
                if c == 1: oth += [head_reads()]
    assert not oth and not dq
    r += rdq
    for x in stq: r += fin_only(x[1])
    return r

def head_reads():
    s = Seg(4, "hd"); s.qblock("h0", 1, 0, True, 0)
    return [i for p in s.pairs[:3] for i in p[2]]

def store(c, k, nb=None):
    data = PK(c, k)
    mod = {3: opt.omod3, 4: opt.omod4}.get(nb) or opt.omod
    vo = vsto
    i = Ins(f"buffer_store_dwordx4 {data}, {vo}, {sO}, {s_ok[k]} offen offset:{c * 128} {mod}".rstrip(), "vmem", rd=[data, vo, sO, s_ok[k]])
    i.wide_store = True; i.data = data.set(); i.vm = True; i.quarter = c; i.k = k
    return i

def lin(seq, pre=()):
    out = []; q = list(pre)
    for i in seq:
        if i.need:
            idx = -1
            for t in i.need:
                if t in q: idx = max(idx, len(q) - 1 - q[::-1].index(t))
            if idx >= 0:
                n = min(len(q) - 1 - idx, 15)
                out.append(waitcnt(None, n)); q = q[idx + 1:]
        if getattr(i, "lgw", None) is not None: q = q[len(q) - i.lgw:] if i.lgw else []
        if getattr(i, "is_marker", False): continue
        if i.kind == "ds" and not getattr(i, "optional", False): q.append(i.tag)
        out.append(i)
    return out, q

def flat(gaps, pre, nxt_need):
    out = []; q = list(pre)
    def wf(need):
        nonlocal q
        idx = -1
        for t in need:
            if t in q: idx = max(idx, len(q) - 1 - q[::-1].index(t))
        if idx < 0: return
        n = min(len(q) - 1 - idx, 15)
        out.append(waitcnt(None, n)); q = q[idx + 1:]
    for g, (m, sc, oth) in enumerate(gaps):
        wf(m.need)
        out.append(m)
        has_l0 = any(getattr(i, "lgw", None) == 0 for i in sc)
        if not has_l0:
            wf(gaps[g + 1][0].need if g + 1 < len(gaps) else nxt_need)
        for i in sc + oth:
            if i.need: wf(i.need)
            if getattr(i, "lgw", None) == 0: q = []
            if getattr(i, "is_marker", False): continue
            if i.kind == "ds": q.append(i.tag)
            out.append(i)
    return out, q

E32 = ("v_mul_f32", "v_add_f32", "v_exp_f32", "v_mov_b32", "v_max_f32", "v_xor_b32", "v_rcp_f32")
def isize(i):
    t = i.text
    if i.kind == "label": return 0
    op = t.split()[0]
    if op.startswith("s_"):
        import re
        m = re.findall(r"[ ,](0x[0-9a-f]+|-?\d+)\s*$", t)
        if op in ("s_waitcnt", "s_barrier", "s_nop") or op.startswith("s_cbranch") or op == "s_branch": return 4
        if m and not (-16 <= int(m[0], 0) <= 64): return 8
        return 4
    if op in E32 or op in ("v_add_u32", "v_lshlrev_b32", "v_permlane16_swap_b32", "v_permlane32_swap_b32"):
        return 8 if "-v" in t else 4
    return 8

def align8(seq, start=0):
    pos = start; cand = None
    for i in seq:
        if i.kind == "mfma":
            if pos % 8 and cand is not None:
                op = cand.text.split()[0]; cand.text = cand.text.replace(op, op + "_e64", 1); pos += 4
            cand = None
        sz = isize(i)
        if sz == 4 and i.text.split()[0] in E32 and cand is None: cand = i
        pos += sz
    return pos

def strip_clusters(seq, lab="L_sk"):
    out = []; skip = False
    for i in seq:
        if i.kind == "label" and i.text.startswith(lab): skip = False
        if not skip: out.append(i)
        if i.text.startswith("s_cbranch") and i.text.split()[1].startswith(lab): skip = True
    return out

def label(n): return Ins(n + ":", "label", states=0, cost=0)

def stamp(k):
    if not opt.diag: return []
    return [raw(f"s_memrealtime {s_ts}"), raw("s_memtime s[66:67]"), raw("s_waitcnt lgkmcnt(0)", "wait0"), raw(f"s_mov_b32 m0, {s_tsp}"), raw("s_nop 1"),
            raw(f"v_writelane_b32 v0, {s_ts.sub(0)}, m0"), raw(f"s_add_u32 m0, m0, 32"), raw("s_nop 1"), raw("v_writelane_b32 v0, s66, m0"),
            raw(f"s_add_u32 {s_tsp}, {s_tsp}, 1")]

def retag(q, old, new):
    return [tuple(new if x == old else x for x in t) if len(t) > 1 else t for t in q]

def variant(nb):
    P = {}
    hd, head = make_head(nb, "hd", "i1")
    i1 = make_mid(nb, 1, "i1", "i2")
    i2 = make_mid(nb, 2, "i2", "i1")
    i6 = make_mid(nb, 6, "i2", "i1", special=True)
    i7 = make_last(nb, "i1")
    fin = make_final(nb, "i1")
    mid = make_final(nb, "i1", mid=True)
    SG = dict(hd=hd, i1=i1, i2=i2, i6=i6, i7=i7, fin=fin, mid=mid)
    G = {k: s.build() for k, s in SG.items()}
    for g, ch in fin.chunks.items(): G["fin"][g][2].extend(ch)
    for g, ch in mid.chunks.items(): G["mid"][g][2].extend(ch)
    print(f"nb={nb} overflow cycles:", {k: s.over for k, s in SG.items()}, file=sys.stderr)
    P["hd"], q0 = flat(G["hd"], [], G["i1"][0][0].need)
    P["i1"], q1 = flat(G["i1"], q0, G["i2"][0][0].need)
    P["i2"], q2 = flat(G["i2"], q1, G["i1"][0][0].need)
    assert q2 == q0, (q0, q2)
    P["q0"] = q0
    for k in ("i1", "i2"):
        if opt.abl & 1024: P[k] = [i for i in P[k] if not i.text.startswith("v_add_f32")]
        if opt.abl & 2048: P[k] = [i for i in P[k] if not (i.kind == "ds" and "b128" in i.text)]
        if opt.abl & 4096: P[k] = [i for i in P[k] if not (i.kind == "ds" and "tr_b16" in i.text)]
        if opt.abl & 16: P[k] = [i for i in P[k] if not getattr(i, "bar", False)]
        if opt.abl & 32: P[k] = [i for i in P[k] if i.kind != "vmem"]
        if opt.abl & 64: P[k] = [i for i in P[k] if i.kind not in ("valu", "trans")]
        if opt.abl & 128: P[k] = [i for i in P[k] if i.kind != "ds"]
        if opt.abl & 256: P[k] = [i for i in P[k] if not (i.kind == "salu" and "m0" in i.text)]
    P["i6"], q = flat(G["i6"], q1, G["i7"][0][0].need)
    P["fin"], _ = flat(G["fin"], q, [])
    P["mid"], _ = flat(G["mid"], q, [])
    P["i7"], q = flat(G["i7"], q, [])
    P["epf"], _ = lin(make_epi(nb, True), q)
    ep = make_epi(nb, False)
    if opt.abl & 8192: ep = [i for i in ep if not getattr(i, "dma_wr", None)]
    if opt.abl & 16384: ep = [i for i in ep if getattr(i, "vmneed", None) is None]
    if opt.abl & 1: ep = [i for i in ep if not i.text.startswith("buffer_store")]
    if opt.abl & 2: ep = [i for i in ep if getattr(i, "lds_rd", None) != ("OS",)]
    if opt.abl & 4: ep = [i for i in ep if not i.text.startswith("ds_write")]
    if opt.abl & 8: ep = [i for i in ep if i.kind != "acc"]
    P["epi"], q = lin(ep, q)
    return P

def resolve_vm(traces):
    ws = set()
    for tr in traces:
        n = 0; last = {}
        for i in tr:
            if getattr(i, "vmneed", None) is not None:
                idx = max([last.get(u, -1) for u in i.vmneed])
                if idx >= 0: i.vmauto = min(i.vmauto, n - 1 - idx)
                ws.add(i)
            if getattr(i, "vm", False):
                u = getattr(i, "dma_wr", None)
                if u: last[u] = n
                n += 1
    for i in ws:
        i.vmw = i.vmauto
        i.text = f"s_waitcnt vmcnt({i.vmw})" + (f" lgkmcnt({i.lgw})" if i.lgw is not None else "")

def check_trace(trace):
    vm = []
    lg = []
    state = {}
    epoch = 0
    ALIAS = {("R2",): [("V", 0, 1), ("V", 0, 2), ("V", 0, 3), ("K", 7)], ("OS",): [("V", 1, c) for c in range(4)],
             ("R3",): [("K", 4), ("K", 5), ("K", 6), ("V", 0, 0)]}
    def phys(u): return ALIAS.get(u, [u])
    wr_land = {}; wr_pend = {}; rd_done = {}; rd_pend = {}; owner = {}
    errs = []
    cur_m0 = None
    for k, i in enumerate(trace):
        if not getattr(i, "vm", False):
            for o in vm[:len(vm) - (i.vmw if getattr(i, "vmw", None) is not None else 0)] if False else vm:
                if o.wr & (i.rd | i.wr) and getattr(i, "vmw", None) is None: errs.append((k, "register of a pending load", o.text, i.text))
        if M0 in i.wr: cur_m0 = i
        if getattr(i, "m0ref", None) is not None and cur_m0 is not i.m0ref: errs.append((k, "stale M0", i.text))
        if getattr(i, "vmw", None) is not None:
            while len(vm) > i.vmw:
                o = vm.pop(0)
                u = getattr(o, "dma_wr", None)
                if u: wr_pend[u] -= 1; wr_land[u] = epoch
        if getattr(i, "lgw", None) is not None or i.kind == "wait0":
            n = 0 if i.kind == "wait0" else i.lgw
            while len(lg) > n:
                o = lg.pop(0)
                u = getattr(o, "lds_rd", None) or getattr(o, "lds_pw", None)
                if u: rd_pend[u] -= 1; rd_done[u] = epoch
        if getattr(i, "bar", False): epoch += 1
        u = getattr(i, "lds_rd", None)
        if u:
            if True:
                if wr_pend.get(u, 0) > 0: errs.append((k, "read of unit with pending DMA", u, i.text))
                elif not getattr(i, "private", False) and wr_land.get(u, 10**9) >= epoch: errs.append((k, "read without barrier after landing", u, i.text))
            for p in phys(u):
                if owner.get(p) != u: errs.append((k, "read of unit owned by", owner.get(p), u, i.text))
        w = getattr(i, "dma_wr", None) or getattr(i, "lds_pw", None)
        if w:
            for p in phys(w):
                o = owner.get(p)
                if o is not None:
                    priv = (o == w and w in (("X",), ("R2",), ("R3",), ("OS",)))
                    if rd_pend.get(o, 0) > 0 and not (getattr(i, "lds_pw", None) and o == w):
                        errs.append((k, "write over unit with reads in flight", o, w, i.text))
                    if not priv and rd_done.get(o, -1) >= epoch: errs.append((k, "write without barrier after reads", o, w, i.text))
                    if o != w and wr_pend.get(o, 0) > 0: errs.append((k, "write over pending dma", o, w))
                    if o != w and wr_land.get(o, -1) >= epoch: errs.append((k, "write over unit landed w/o barrier", o, w))
                owner[p] = w
        if i.kind == "ds":
            lg.append(i)
            u = getattr(i, "lds_rd", None) or getattr(i, "lds_pw", None)
            if u: rd_pend[u] = rd_pend.get(u, 0) + 1
        if getattr(i, "vm", False):
            vm.append(i)
            u = getattr(i, "dma_wr", None)
            if u: wr_pend[u] = wr_pend.get(u, 0) + 1
            assert len(vm) <= 63, "vmcnt overflow"
    return errs

def cross_check(traces):
    ALIAS = {("R2",): [("V", 0, 1), ("V", 0, 2), ("V", 0, 3), ("K", 7)], ("OS",): [("V", 1, c) for c in range(4)],
             ("R3",): [("K", 4), ("K", 5), ("K", 6), ("V", 0, 0)]}
    allg = []
    for tr in traces:
        gens = {}; epoch = 0; vm = []; lg = []
        for i in tr:
            if getattr(i, "vmw", None) is not None:
                while len(vm) > i.vmw:
                    for g in vm.pop(0): g["land"] = epoch
            if getattr(i, "lgw", None) is not None or i.kind == "wait0":
                n = 0 if i.kind == "wait0" else i.lgw
                while len(lg) > n:
                    for g in lg.pop(0): g["done"] = epoch
            if getattr(i, "bar", False): epoch += 1
            w = getattr(i, "dma_wr", None) or getattr(i, "lds_pw", None); r = getattr(i, "lds_rd", None)
            touched = []
            u = w or r
            if u and u != ("X",):
                for p in ALIAS.get(u, [u]):
                    l = gens.setdefault(p, [])
                    if w and (not l or l[-1]["own"] != u or (l[-1]["rd0"] is not None and u not in ALIAS)):
                        l.append(dict(own=u, wr0=epoch, land=10**9, rd0=None, done=-1))
                    g = l[-1]
                    if r and g["rd0"] is None: g["rd0"] = epoch
                    if r or getattr(i, "lds_pw", None): g["done"] = 10**9
                    if getattr(i, "dma_wr", None): g["land"] = 10**9
                    touched.append(g)
            if i.kind == "ds": lg.append(touched)
            if getattr(i, "vm", False): vm.append(touched)
        allg.append((gens, epoch))
    assert len(set(e for _, e in allg)) == 1, "barrier counts differ"
    for p in allg[0][0]:
        n = len(allg[0][0][p])
        assert all(len(g[p]) == n and [x["own"] for x in g[p]] == [x["own"] for x in allg[0][0][p]] for g, _ in allg), ("generations differ", p)
        for k in range(n):
            G = [g[p][k] for g, _ in allg]
            if G[0]["own"] not in ALIAS and G[0]["rd0"] is not None:
                assert max(x["land"] for x in G) < min(x["rd0"] for x in G), ("cross RAW", p, k, G)
            if k + 1 < n:
                N = [g[p][k + 1] for g, _ in allg]
                assert max(x["done"] for x in G) < min(x["wr0"] for x in N), ("cross WAR", p, k, G, N)
                if G[0]["own"] != N[0]["own"] and any(x["land"] != 10**9 or x["rd0"] is not None for x in G) and G[0]["own"] != ("OS",):
                    assert max(x["land"] for x in G) < min(x["wr0"] for x in N), ("cross WAW", p, k, G, N)

THR = {}
HELP = {}
RANK = {}
HELPN = {}
def schedule_table(mode):
    tab = {}
    if mode == "simple":
        for wg in range(256):
            x = wg & 7; idx = wg >> 3
            head = x * 16 + (idx >> 1); base = 41 * (idx & 1)
            tab[wg] = [(head, base, 12), (head, base + 12, 16), (head, base + 28, 13)]
    elif mode == "share":
        for x in range(8):
            rounds = [[], [], []]
            def add(r, h, start, sizes):
                for sz in sizes:
                    rounds[r].append((x * 16 + h, start, sz)); start += sz
                return start
            for h in range(10):
                st = add(0, h, 0, [12, 12, 12]); add(1 if h < 6 else 2, h, st, [15, 15, 16])
            st = add(0, 10, 0, [12, 12]); st = add(1, 10, st, [15, 14]); add(2, 10, st, [15, 14])
            for h in range(11, 16):
                add(1 if h < 13 else 2, h, 0, [14, 14, 14, 14, 13, 13])
            assert all(len(r) == 32 for r in rounds), [len(r) for r in rounds]
            for idx in range(32):
                tab[idx * 8 + x] = [rounds[0][idx], rounds[1][idx], rounds[2][idx]]
    elif mode.startswith("g6"):
        orders = {"A": (0, 1, 2), "B": (1, 0, 2), "C": (2, 1, 0), "D": (2, 0, 1)}
        pat = mode.split("_")[1]
        rot = pat.startswith("x"); pat = pat.lstrip("x")
        for x in range(8):
            for g in range(6):
                o = orders[pat[(g + (x if rot else 0)) % len(pat)]] if not pat.startswith("X") else orders["ABC"[x % 3]]
                if g < 5:
                    ha, hb, hc = [x * 16 + 3 * g + i for i in range(3)]
                    r0 = [(ha, 0, 12), (ha, 12, 12), (ha, 24, 12), (hb, 0, 12), (hb, 12, 12), (hb, 24, 12)]
                    r1 = [(ha, 36, 15), (ha, 51, 15), (ha, 66, 16), (hb, 36, 15), (hb, 51, 15), (hb, 66, 16)]
                    r2 = [(hc, 0, 14), (hc, 14, 14), (hc, 28, 13), (hc, 41, 14), (hc, 55, 14), (hc, 69, 13)]
                    n = 6
                else:
                    h = x * 16 + 15
                    r0 = [(h, 0, 12), (h, 12, 12)]; r1 = [(h, 24, 15), (h, 39, 15)]; r2 = [(h, 54, 14), (h, 68, 14)]
                    n = 2
                R = [r0, r1, r2]
                for i in range(n):
                    tab[(6 * g + i) * 8 + x] = [R[o[0]][i], R[o[1]][i], R[o[2]][i]]
    elif mode.startswith("t3"):
        _, lo, so, th = mode.split("_")
        th = [int(x, 16) for x in th.split(".")]
        alt = mode.startswith("t3a")
        if alt:
            LS = [i for i in range(32) if not i & 4]; SS = [i for i in range(32) if i & 4]
        else:
            LS = [6 * g + i for g in range(5) for i in range(3)] + [30]; SS = [6 * g + 3 + i for g in range(5) for i in range(3)] + [31]
        for x in range(8):
            H = [x * 16 + i for i in range(16)]
            T3 = lambda h: [(h, 0, 12), (h, 12, 12), (h, 24, 12)]
            T4 = lambda h: [(h, 36, 16), (h, 52, 16), (h, 68, 14)]
            for g in range(5):
                a, b, c = H[3 * g], H[3 * g + 1], H[3 * g + 2]
                Lt = {"3": T3(a), "4": T4(a), "5": T4(b)[::-1]}
                St = {"3": T3(c), "2": T3(b), "4": T4(c)}
                lord = lo.split(".")[(g + x) % len(lo.split("."))]; sord = so.split(".")[(g + x) % len(so.split("."))]
                for i in range(3):
                    wl = LS[3 * g + i] * 8 + x; wsn = SS[3 * g + i] * 8 + x
                    tab[wl] = [Lt[k][i] for k in lord]
                    tab[wsn] = [St[k][i] for k in sord]
                    THR[wsn] = th[(g + x) % len(th)]
                    RANK[wl] = i; RANK[wsn] = i
                    h0, st0, _n = Lt[lord[0]][i]
                    HELP[wsn] = (h0 * SQ + st0 * 16) * 512
            h = H[15]
            tab[LS[15] * 8 + x] = [(h, 0, 12), (h, 36, 16), (h, 68, 14)]
            if alt:
                tab[SS[15] * 8 + x] = [(h, 52, 16), (h, 12, 12), (h, 24, 12)]
                THR[SS[15] * 8 + x] = th[0]; HELP[SS[15] * 8 + x] = h * SQ * 512
            else:
                tab[SS[15] * 8 + x] = [(h, 12, 12), (h, 52, 16), (h, 24, 12)]
    elif mode.startswith("t6"):
        _, lo, th = mode.split("_")
        th = [int(x, 16) for x in th.split(".")]
        LS = [i for i in range(32) if not i & 4]; SS = [i for i in range(32) if i & 4]
        for x in range(8):
            T3 = lambda h: [(h, 0, 12), (h, 12, 12), (h, 24, 12)]
            T4 = lambda h, r: [[(h, 36, 16), (h, 52, 16), (h, 68, 14)][(i + r) % 3] for i in range(3)]
            for g in range(5):
                pat = lo.split(".")[(g + x) % len(lo.split("."))]
                for i in range(3):
                    wl = LS[3 * g + i] * 8 + x; wsn = SS[3 * g + i] * 8 + x
                    tab[wl] = []; tab[wsn] = []
                    for r in range(3):
                        h = x * 16 + 3 * g + r
                        a, b = T3(h)[i], T4(h, r)[i]
                        tab[wl].append(a if pat[r] == "3" else b); tab[wsn].append(b if pat[r] == "3" else a)
                    THR[wsn] = th[(g + x) % len(th)]; RANK[wl] = i; RANK[wsn] = i
                    HELP[wsn] = (tab[wl][0][0] * SQ + tab[wl][0][1] * 16) * 512; HELPN[wsn] = tab[wl][0][2]
            h = x * 16 + 15; pat = lo.split(".")[0]
            i3 = [(h, 0, 12), (h, 12, 12), (h, 24, 12)]; i4 = [(h, 36, 16), (h, 52, 16), (h, 68, 14)]
            wl = LS[15] * 8 + x; wsn = SS[15] * 8 + x
            tab[wl] = [(i3 if pat[r] == "3" else i4)[r] for r in range(3)]
            tab[wsn] = [(i4 if pat[r] == "3" else i3)[r] for r in range(3)]
            THR[wsn] = th[0]; HELP[wsn] = (h * SQ + tab[wl][0][1] * 16) * 512; HELPN[wsn] = tab[wl][0][2]
    cov = {}
    for wg, l in tab.items():
        for h, st, n in l:
            assert 12 <= n <= 16
            for b in range(st, st + n):
                assert (h, b) not in cov; cov[(h, b)] = wg
    assert len(cov) == 128 * 82
    return tab

def setup_code():
    L = []; A = L.append
    if opt.diag or opt.padto: A("s_memrealtime s[100:101]")
    A("s_cmp_ge_u32 s2, 256")
    A("s_cbranch_scc1 L_exit")
    A("s_load_dwordx4 s[72:75], s[0:1], 0")
    A("s_load_dwordx4 s[76:79], s[0:1], 16")
    if opt.diag: A("s_load_dwordx2 s[64:65], s[0:1], 40")
    A("s_getpc_b64 s[4:5]")
    A("L_pc:")
    A("s_lshl_b32 s3, s2, 6")
    A("s_add_u32 s3, s3, L_table-L_pc")
    A("s_add_u32 s46, s4, s3")
    A("s_addc_u32 s47, s5, 0")
    A("s_load_dwordx16 s[80:95], s[46:47], 0")
    A(f"s_mov_b32 {sC[0]}, s4\ns_mov_b32 {sC[1]}, s5\ns_mov_b32 {sC[2]}, L_warm_end-L_pc\ns_mov_b32 {sC[3]}, 0x20000")
    if opt.warm == 1:
        A(f"v_lshlrev_b32 v16, 5, v0\ns_lshl_b32 s3, s2, 10\ns_and_b32 s3, s3, 0xe000\nbuffer_load_dword v17, v16, {sC}, s3 offen")
    elif opt.warm:
        A("v_lshlrev_b32 v16, 7, v0")
        for k in range(opt.warm): A(f"s_mov_b32 s3, {k * 32768}\nbuffer_load_dword v{17 + k}, v16, {sC}, s3 offen")
    A(f"v_readfirstlane_b32 {s_wave}, v0")
    A("v_and_b32 v10, 63, v0")
    A(f"s_lshr_b32 {s_wave}, {s_wave}, 6")
    A("v_and_b32 v11, 15, v10")
    A("v_lshrrev_b32 v14, 4, v10")
    A("v_lshrrev_b32 v15, 2, v11\nv_lshlrev_b32 v1, 11, v15\nv_and_b32 v6, 3, v11\nv_lshl_add_u32 v1, v6, 6, v1")
    A("v_lshrrev_b32 v6, 3, v11\nv_lshlrev_b32 v6, 1, v6\nv_xor_b32 v6, v6, v14\nv_lshl_add_u32 v1, v6, 4, v1")
    A("v_lshrrev_b32 v6, 1, v14\nv_lshlrev_b32 v2, 10, v6\nv_and_b32 v7, 1, v14\nv_lshl_add_u32 v6, v7, 2, v15\nv_lshl_add_u32 v2, v6, 6, v2")
    A(f"v_and_b32 v8, 3, v10\nv_lshl_add_u32 v2, v8, 3, v2\nv_lshl_add_u32 v2, v7, 5, v2\nv_add_u32 v2, {VB}, v2\nv_xor_b32 v3, 32, v2")
    A("v_lshlrev_b32 v12, 9, v15\nv_lshl_add_u32 v12, v14, 6, v12\nv_lshl_add_u32 v12, v8, 4, v12\nv_xor_b32 v13, 32, v12\nv_add_u32 v13, 4096, v13")
    A(f"s_lshl_b32 {s_mK}, {s_wave}, 11\ns_lshr_b32 s3, {s_wave}, 1\ns_lshl_b32 s3, s3, 5")
    A(f"v_xor_b32 v4, s3, v12\nv_add_u32 v4, {s_mK}, v4")
    A("v_lshrrev_b32 v6, 2, v10\nv_and_b32 v6, 7, v6\nv_lshlrev_b32 v5, 9, v6\nv_lshrrev_b32 v6, 2, v6\nv_lshlrev_b32 v6, 1, v6\nv_xor_b32 v6, v6, v8")
    A(f"v_lshl_add_u32 v5, v6, 4, v5\nv_lshrrev_b32 v6, 5, v10\nv_lshl_add_u32 v5, v6, 6, v5\ns_lshl_b32 s3, {s_wave}, 13\nv_add_u32 v5, s3, v5")
    A(f"s_add_u32 {s_mX}, s3, {XB}")
    A(f"s_add_u32 {s_mOS}, s3, {vslot_addr(1, 0)}")
    A(f"s_add_u32 {s_mR2}, s3, {vslot_addr(0, 0)}")
    A(f"s_cmp_eq_u32 {s_wave}, 0\ns_cselect_b32 {s_mR2}, {kslot_addr(7)}, {s_mR2}")
    A(f"s_add_u32 {s_mR3}, s3, {kslot_addr(4)}")
    A(f"s_cmp_eq_u32 {s_wave}, 3\ns_cselect_b32 {s_mR3}, {vslot_addr(0, 0)}, {s_mR3}")
    A("v_lshrrev_b32 v6, 1, v14\nv_lshrrev_b32 v9, 1, v11\nv_xor_b32 v6, v6, v9\nv_lshlrev_b32 v6, 3, v6\nv_lshl_add_u32 v6, v7, 12, v6")
    A(f"v_lshl_add_u32 v6, v11, 6, v6\nv_add_u32 v15, {s_mOS}, v6")
    A("v_lshrrev_b32 v6, 3, v10\nv_and_b32 v9, 7, v10\nv_xor_b32 v9, v9, v14\nv_lshlrev_b32 v9, 4, v9\nv_lshl_add_u32 v14, v6, 9, v9")
    A(f"s_mov_b32 {s_c}, {C_SCALE:#x}\ns_mov_b32 {s_pass}, 0\ns_mov_b32 {s_flags}, 0")
    if opt.diag: A(f"s_mov_b32 {s_tsp}, 1\nv_mov_b32 v0, 0")
    for srd, n in ((sQ, QBYTES), (sK, KBYTES), (sV, KBYTES), (sO, QBYTES)):
        A(f"s_mov_b32 {srd[2]}, {n}\ns_mov_b32 {srd[3]}, 0x20000")
    A(f"s_mul_i32 s6, {s_wave}, 3")
    A("s_waitcnt lgkmcnt(0)")
    if opt.diag:
        A("v_writelane_b32 v0, s100, 0")
        A("s_getreg_b32 s100, hwreg(HW_REG_HW_ID)\ns_getreg_b32 s101, hwreg(HW_REG_XCC_ID)\ns_nop 1\nv_writelane_b32 v0, s100, 30\nv_writelane_b32 v0, s101, 31")
    for srd, p in ((sK, 74), (sQ, 72), (sV, 76)):
        A(f"s_mov_b64 {srd.sub(0, 2)}, s[{p}:{p+1}]")
    def decode(p, A):
        A(f"s_sub_u32 s3, s{80+3*p+2}, 12")
        A(f"s_min_u32 s4, s3, {s_wave}")
        A(f"s_add_u32 s4, s4, s6\ns_lshl_b32 s4, s4, 13")
        A(f"s_add_u32 {s_tab[4*p]}, s{80+3*p}, s4")
        A(f"s_mov_b32 {s_tab[4*p+1]}, s{80+3*p+1}")
        A(f"s_add_u32 {s_tab[4*p+3]}, {s_tab[4*p]}, 24576")
        A(f"s_cmp_lt_u32 {s_wave}, s3\ns_cselect_b32 {s_tab[4*p+2]}, 4, 3\ns_cselect_b32 {s_tab[4*p+3]}, {s_tab[4*p+3]}, {OOB:#x}")
    decode(0, A)
    L2 = []; A = L2.append
    A(f"s_mov_b64 {sO.sub(0, 2)}, s[78:79]")
    for k in range(8): A(f"s_mov_b32 {s_ok[k]}, {OOB:#x}")
    decode(1, A); decode(2, A)
    A(f"s_mov_b32 {s_tab[12]}, {OOB:#x}\ns_mov_b32 {s_tab[13]}, {OOB:#x}\ns_mov_b32 {s_tab[14]}, 0\ns_mov_b32 {s_tab[15]}, {OOB:#x}")
    A(f"s_lshl_b32 s3, s91, 2\ns_add_u32 s3, s3, {s_wave}\ns_lshl_b32 {s_str}, s3, {opt.tsh + 6}")
    A(f"s_cmp_eq_u32 s90, {OOB:#x}\ns_cselect_b32 {s_str}, 0x40000000, {s_str}")
    A(f"s_lshr_b32 s3, s2, 1\ns_and_b32 s3, s3, 28\ns_add_u32 s3, s3, {s_wave}\ns_lshl_b32 {s_cs}, s3, {opt.tsh + 6}\ns_and_b32 {s_cs}, {s_cs}, 0xffff\ns_add_u32 {s_cs}, {s_cs}, L_v4-L_pc")
    for p in range(3):
        for k in range(3): A(f"s_mov_b32 s{80+3*p+k}, {s_tab[4*p+k]}")
    return L, L2

def startup(late_setup):
    P = {}
    r = [sop(f"s_mov_b32 {s_kptr}, {s_tab[1]}", wr=[s_kptr]), sop(f"s_sub_u32 {s_vptr}, {s_tab[1]}, 32768", wr=[s_vptr])]
    k123 = lambda: dma_K(1) + dma_K(2) + dma_K(3)
    if not opt.kpos: r += k123()
    r += [sop(f"s_add_u32 {s_t0}, {s_tab[0]}, 8192", wr=[s_t0]), sop(f"s_add_u32 {s_t1}, {s_tab[0]}, 16384", wr=[s_t1]),
          sop(f"s_add_u32 {s_t2}, {s_tab[0]}, 24576", wr=[s_t2])]
    r += [sop(f"s_cmp_eq_u32 s90, {OOB:#x}"), raw("s_cbranch_scc1 L_nohelp")]
    P["a"] = r
    late = lambda: dma_K(4) + dma_K(5) + dma_K(6) + dma_V(0, 0)
    r = (k123() if opt.kpos else []) + late()
    r += [sop("s_sub_u32 s4, s92, 12"), sop(f"s_add_u32 s5, {s_wave}, 1"), sop("s_min_u32 s4, s4, s5"), sop("s_mul_i32 s5, s5, 3"),
          sop("s_add_u32 s4, s4, s5"), sop("s_lshl_b32 s3, s4, 13"), sop(f"s_add_u32 s3, s3, s90"), sop(f"s_sub_u32 s3, s3, {1024 * opt.help_n}"),
          valu("v_lshlrev_b32", vt1, 4, vt0)]
    hl = []
    for k in range(opt.help_n):
        if k and k % 4 == 0: hl.append(sop("s_add_u32 s3, s3, 4096"))
        i = Ins(f"buffer_load_dwordx4 {V(96 + 4 * k, 4)}, {vt1}, {sQ}, s3 offen offset:{(k % 4) * 1024} {opt.hmod}", "vmem", rd=[vt1]); i.vm = True
        hl.append(i)
    if opt.help2:
        nv, nk = opt.help2, opt.help2 * 2 // 3
        hl += [sop("s_lshl_b32 s4, s91, 2"), sop(f"s_add_u32 s4, s4, {s_wave}"), sop(f"s_lshl_b32 s4, s4, 10"), sop(f"s_add_u32 s3, s4, {s_tab[1]}"),
               sop(f"s_add_u32 s5, s3, 49152")]
        for k in range(max(nv, nk)):
            for srd, sp, cnt in ((sV, "s3", nv), (sK, "s5", nk)):
                if k < cnt:
                    i = Ins(f"buffer_load_dwordx4 {V(192 + 4 * (k % 8), 4)}, {vt1}, {srd}, {sp} offen", "vmem", rd=[vt1]); i.vm = True
                    hl += [i, sop(f"s_add_u32 {sp}, {sp}, 12288")]
    if opt.late == 2: r = r[-9:] + hl + r[:-9]
    else: r += hl
    P["h"] = r
    r = []; k = 0
    for grp in (dma_Q(s_mX, s_tab[0], ("X",)), dma_Q(s_mR2, s_t0, ("R2",)), dma_Q(s_mOS, s_t1, ("OS",))):
        for hf in (grp[:6], grp[6:]):
            r += hf
            if not opt.sched.endswith("_0"):
                r += [sop(f"s_bitcmp1_b32 s89, {k}"), raw(f"s_cbranch_scc0 L_th{k}"), raw("s_waitcnt vmcnt(0)"), label(f"L_th{k}")]
            k += 1
            if k == opt.kpos:
                P["q1"] = r + [sop(f"s_cmp_lg_u32 s90, {OOB:#x}"), raw("s_cbranch_scc1 L_nok")]
                P["k"] = k123(); r = []
    st5 = (lambda: stamp(9)) if opt.diag == 5 else (lambda: [])
    r += [raw(t, "salu") for x in late_setup for t in x.split("\n")]
    r += st5() + [vwait([("X",)])] + st5() + q_reads(0, s_mX, ("X",), vt0)
    if opt.quick: r += [sop("s_cmp_lg_u32 s93, 0"), raw("s_cbranch_scc1 L_quick")]
    r += [sop(f"s_cmp_lt_u32 {s_tab[2]}, 4"), raw("s_cbranch_scc1 L_noq3")]
    P["q"] = r
    P["r2"] = [waitcnt(None, 0)] + dma_Q(s_mX, s_t2, ("X",))
    P["r3"] = [vwait([("R2",)])] + st5() + q_reads(1, s_mR2, ("R2",), vt1) + [vwait([("K", 1), ("K", 2), ("K", 3)]), barrier()] + head_reads()
    P["lc"] = [sop(f"s_cmp_lg_u32 s90, {OOB:#x}"), raw("s_cbranch_scc1 L_nolate")] if opt.late else []
    P["l"] = (late() + [vwait([("OS",)]), raw("s_branch L_osok")]) if opt.late else []
    P["w"] = [vwait([("OS",)])]
    P["r4"] = st5() + q_reads(2, s_mOS, ("OS",), vt0) + pass_begin()
    P["r4"] += [sop(f"s_cmp_lt_u32 {s_nbn}, 4"), raw("s_cbranch_scc1 L_first")]
    P["r5"] = [vwait([("X",)])] + q_reads(3, s_mX, ("X",), vt1)
    return {k: fix_hazards(lin(v)[0]) for k, v in P.items()}

def pass_begin():
    T2 = lambda k: S(s_tab.n + k, 2)
    r = [sop(f"s_mov_b32 {s_ocur}, {s_tab[0]}"),
         sop(f"s_add_u32 {s_kend}, {s_tab[1]}, 262144"),
         sop(f"s_mov_b32 {s_nbn}, {s_tab[2]}"),
         sop(f"s_mov_b32 {s_knext}, {s_tab[5]}"),
         sop(f"s_mov_b32 {s_xq}, {s_tab[4]}"),
         sop(f"s_add_u32 {s_qn[1]}, {s_tab[4]}, 8192"), sop(f"s_add_u32 {s_qn[2]}, {s_tab[4]}, 16384"),
         sop(f"s_mov_b32 {s_qn[3]}, {s_tab[7]}")]
    for k in range(0, 12, 2): r.append(sop(f"s_mov_b64 {T2(k)}, {T2(k + 4)}"))
    r += [sop(f"s_mov_b32 {s_cnt}, 3"), sop(f"s_mov_b32 {s_tq}, {s_qn[2]}"),
          sop(f"s_add_u32 {s_tv}, {s_str}, {s_knext}"), sop(f"s_add_u32 {s_tk}, {s_tv}, {opt.tkoff}"),
          sop(f"s_mov_b32 {s_xm}, {OOB:#x}") if opt.xlate else sop(f"s_mov_b32 {s_xm}, {s_mX}")]
    return r

def repair_code():
    rQ = lambda k: V(96 + 4 * k, 4); rK = lambda k: V(128 + 4 * k, 4); rS = lambda k: V(32 + 4 * k, 4)
    rO = lambda k: V(160 + 4 * k, 4); rV = lambda k: V(224 + 4 * k, 4)
    m, l, ta, tb, al, nm = V(6), V(7), V(8), V(9), V(10), V(11)
    fa, va0, va1, vop, so = V(48), V(49), V(50), V(51), V(52)
    sp, sb, sj, sq, sk, sv = S(90), S(91), S(92), S(93), S(94), S(95)
    def gload(d, srd, soff, imm):
        return Ins(f"buffer_load_dwordx4 {d}, {fa}, {srd}, {soff} offen offset:{imm}", "vmem", rd=[fa, srd, soff], wr=[d])
    W = lambda t: raw(t, "wait")
    out = []
    pre = [W("s_waitcnt vmcnt(0) lgkmcnt(0)"),
           valu("v_mbcnt_lo_u32_b32", ta, -1, 0), valu("v_mbcnt_hi_u32_b32", ta, -1, ta),
           valu("v_and_b32", tb, 15, ta), valu("v_lshrrev_b32", ta, 4, ta),
           valu("v_lshlrev_b32", fa, 9, tb), valu("v_lshl_add_u32", so, ta, 3, fa), valu("v_lshl_add_u32", fa, ta, 4, fa),
           sop(f"s_sub_u32 {s_t0}, {s_mX}, {VB}"), valu("v_add_u32", va0, s_t0, vaddr0), valu("v_add_u32", va1, s_t0, vaddr1),
           sop(f"s_lshl_b32 {s_t0}, {s_wave}, 13"), valu("v_subrev_u32", vop, s_t0, voV),
           sop(f"s_mov_b32 {sp}, 0")]
    out += fix_hazards(pre)
    out += [label("L_rp"), sop(f"s_bitcmp1_b32 {s_flags}, {sp}"), raw("s_cbranch_scc0 L_rp_next"), sop(f"s_mov_b32 {sb}, 0"), label("L_rb")]
    blk = [sop(f"s_lshl_b32 {sq}, {sb}, 13"), sop(f"s_add_u32 {sq}, {sq}, s80")]
    blk += [gload(rQ(k), sQ, sq, k * 64) for k in range(8)]
    blk += [valu("v_mov_b32", m, "0xff800000"), valu("v_mov_b32", l, 0)]
    blk += [valu("v_mov_b32", V(160 + k), 0) for k in range(64)]
    blk += [sop(f"s_mov_b32 {sk}, s81"), sop(f"s_mov_b32 {sv}, s81"), sop(f"s_mov_b32 {sj}, 0")]
    out += fix_hazards(blk) + [label("L_rj")]
    it = []
    for kvb in range(4):
        it += [gload(rK(k), sK, sk, k * 64) for k in range(8)] + [sop(f"s_add_u32 {sk}, {sk}, 8192"), W("s_waitcnt vmcnt(0)")]
        it += [mfma(rS(kvb), rK(k), rQ(k), rS(kvb) if k else 0) for k in range(8)]
    xs = [V(32 + k) for k in range(16)]
    it += [valu("v_max3_f32", ta, m, xs[0], xs[1])]
    it += [valu("v_max3_f32", ta, ta, xs[k], xs[k + 1]) for k in range(2, 16, 2)]
    it += [valu("v_mov_b32", tb, ta), perm("v_permlane16_swap_b32", ta, tb), valu("v_max_f32", ta, ta, tb),
           valu("v_mov_b32", tb, ta), perm("v_permlane32_swap_b32", ta, tb), valu("v_max_f32", ta, ta, tb),
           valu("v_sub_f32", al, m, ta), valu("v_mul_f32", al, s_c, al), valu("v_exp_f32", al, al), valu("v_mov_b32", m, ta)]
    it += [valu("v_sub_f32", x, x, m) for x in xs] + [valu("v_mul_f32", x, s_c, x) for x in xs] + [valu("v_exp_f32", x, x) for x in xs]
    it += [valu("v_mul_f32", l, l, al)] + [valu("v_add_f32", l, l, x) for x in xs]
    it += [valu("v_mul_f32", V(160 + k), V(160 + k), al) for k in range(64)]
    Pf = lambda ks: V(16 + 4 * ks, 4)
    for ks in range(2):
        for j in range(4): it.append(valu("v_cvt_pk_bf16_f32", Pf(ks)[j], xs[8 * ks + 2 * j], xs[8 * ks + 2 * j + 1]))
    for c in range(4):
        for j in range(8):
            it += [sop(f"s_add_u32 {s_t0}, {sv}, {j * 4096 + c * 128}", wr=[s_t0]), set_m0(s_mX, j * 1024), dma(vop, sV, s_t0, 0, None, "")]
        it += [W("s_waitcnt vmcnt(0)")]
        for dbl in range(4):
            for ks in range(2):
                for j4 in range(2):
                    it.append(ds_read("ds_read_b64_tr_b16", rV(2 * dbl + ks).sub(2 * j4, 2), va1 if dbl & 1 else va0, ks * 4096 + (dbl >> 1) * 512 + j4 * 2048))
        it += [W("s_waitcnt lgkmcnt(0)")]
        for dbl in range(4):
            for ks in range(2): it.append(mfma(rO(4 * c + dbl), rV(2 * dbl + ks), Pf(ks), rO(4 * c + dbl)))
    it += [nop(9), sop(f"s_add_u32 {sv}, {sv}, 32768"), sop(f"s_add_u32 {sj}, {sj}, 1"), sop(f"s_cmp_lt_u32 {sj}, 8"), raw("s_cbranch_scc1 L_rj")]
    out += fix_hazards(it)
    fin = [valu("v_mov_b32", tb, l), perm("v_permlane16_swap_b32", l, tb), valu("v_add_f32", l, l, tb),
           valu("v_mov_b32", tb, l), perm("v_permlane32_swap_b32", l, tb), valu("v_add_f32", l, l, tb), valu("v_rcp_f32", al, l)]
    for db in range(16):
        o = rO(db)
        fin += [valu("v_mul_f32", o[i], o[i], al) for i in range(4)]
        fin += [valu("v_cvt_pk_bf16_f32", o[0], o[0], o[1]), valu("v_cvt_pk_bf16_f32", o[1], o[2], o[3])]
        fin.append(Ins(f"buffer_store_dwordx2 {o.sub(0, 2)}, {so}, {sO}, {sq} offen offset:{db * 32}", "vmem", rd=[o.sub(0, 2), so, sO, sq]))
    fin += [W("s_waitcnt vmcnt(0)"), sop(f"s_add_u32 {sb}, {sb}, 1"), sop(f"s_cmp_lt_u32 {sb}, s82"), raw("s_cbranch_scc1 L_rb")]
    out += fix_hazards(fin)
    out += [label("L_rp_next")]
    out += [sop(f"s_mov_b32 s{80 + k}, s{83 + k}") for k in range(6)]
    out += [sop(f"s_add_u32 {sp}, {sp}, 1"), sop(f"s_cmp_lt_u32 {sp}, 3"), raw("s_cbranch_scc1 L_rp")]
    return out

DOC = """
Fused attention softmax(Q K^T / 16) V, emitted by a hand-written generator / list scheduler (no compiler output).
 * 256 workgroups x 4 waves (one wave per SIMD, 512 registers).  A workgroup runs three passes; a pass covers 12..16
   blocks of 16 query rows of one head (3 or 4 blocks per wave, table L_table at the end of the code).
 * K and V stream through a 128 KB LDS ring (LDS-DMA, 8 KB units); S^T = K Q^T and O^T = V^T P^T use
   v_mfma_f32_16x16x32_bf16, the softmax VALU work is interleaved between the MFMAs.
 * Softmax reference: per row the true maximum of the first 16 scores is subtracted (it enters as the C operand of the
   QK^T MFMA chains).  It never exceeds the row maximum, so it can only overflow: every pass checks its row sums and,
   if one is not below 2^50, the rows are recomputed at L_repair with a plain online softmax (true running maximum).
 * Epilogue: normalise, round to bf16, transpose through LDS, store full 128-byte lines.
 * Plain loads whose results are unused only pull data / code towards L2 ahead of its use.
"""

def main():
    ap = argparse.ArgumentParser()
    ap.add_argument("-o", default="standalone__mha_softmax__near_ridge.s")
    ap.add_argument("--diag", type=int, default=0)
    ap.add_argument("--kvmod", default="")
    ap.add_argument("--qmod", default="nt")
    ap.add_argument("--omod", default="")
    ap.add_argument("--sched", default="t6_344_0")
    ap.add_argument("--pkmul", type=int, default=1)
    ap.add_argument("--rep", type=int, default=1)
    ap.add_argument("--twhen4", type=int, default=2)
    ap.add_argument("--t6n", type=int, default=0)
    ap.add_argument("--t6n3", type=int, default=0)
    ap.add_argument("--kpos", type=int, default=0)
    ap.add_argument("--help2", type=int, default=0)
    ap.add_argument("--quick", type=int, default=0)
    ap.add_argument("--iw", type=int, default=1)
    ap.add_argument("--pairmaj", type=int, default=1)
    ap.add_argument("--mid", type=int, default=0)
    ap.add_argument("--midb", type=int, default=20)
    ap.add_argument("--padat", type=int, default=0)
    ap.add_argument("--fin", type=int, default=1)
    ap.add_argument("--finoff", type=int, default=12)
    ap.add_argument("--finoff2", type=int, default=4)
    ap.add_argument("--finb", type=int, default=36)
    ap.add_argument("--hca", type=int, default=4)
    ap.add_argument("--hext", type=int, default=3)
    ap.add_argument("--hw", default="10,6,4")
    ap.add_argument("--dq0", type=int, default=0)
    ap.add_argument("--q3early", type=int, default=0)
    ap.add_argument("--fmod", default="nt")
    ap.add_argument("--xlate", type=int, default=0)
    ap.add_argument("--hmod", default="")
    ap.add_argument("--tsh", type=int, default=5)
    ap.add_argument("--barsplit", type=int, default=1)
    ap.add_argument("--barblk", type=int, default=8)
    ap.add_argument("--barlag4", type=int, default=2)
    ap.add_argument("--r3epi", type=int, default=1)
    ap.add_argument("--hback", type=int, default=24)
    ap.add_argument("--hoist", default="")
    ap.add_argument("--twhen", type=int, default=2)
    ap.add_argument("--tkoff", type=int, default=24576)
    ap.add_argument("--cwarm", type=int, default=1)
    ap.add_argument("--late", type=int, default=1)
    ap.add_argument("--al8", type=int, default=0)
    ap.add_argument("--tstride", type=int, default=2048)
    ap.add_argument("--tstep", type=int, default=24576)
    ap.add_argument("--barlag", type=int, default=4)
    ap.add_argument("--epi_rd", type=int, default=1)
    ap.add_argument("--abl", type=int, default=0)
    ap.add_argument("--help_n", type=int, default=12)
    ap.add_argument("--omod3", default="")
    ap.add_argument("--omod4", default="")
    ap.add_argument("--wb", type=int, default=0)
    ap.add_argument("--nostore", type=int, default=0)
    ap.add_argument("--ca7", type=int, default=0)
    ap.add_argument("--show", type=int, default=0)
    ap.add_argument("--spread", type=int, default=1)
    ap.add_argument("--touch", type=int, default=2)
    ap.add_argument("--force", type=int, default=0)
    ap.add_argument("--padto", type=int, default=0)
    ap.add_argument("--defer", type=int, default=0)
    ap.add_argument("--warm", type=int, default=1)
    a = ap.parse_args()
    opt.__dict__.update(vars(a)); opt.nextq = 1
    opt.hwin = [int(x) for x in opt.hw.split(",")]
    if opt.hoist:
        h = [int(x) for x in opt.hoist.split(",")]; HOIST[4] = (h[0], h[1]); HOIST[3] = (h[2], h[3])
    L = []; A = L.append
    hdr = open("standalone__mha_softmax__near_ridge.s.ref").read().split("\n")
    for l in hdr:
        if l.startswith("; @launch"): break
        A(l)
    A(f"; @launch grid=(256,1,1) block=(256,1,1) lds={LDS_BYTES}")
    for l in DOC.strip("\n").split("\n"): A((";  " + l).rstrip())
    A('.amdgcn_target "amdgcn-amd-amdhsa--gfx950"')
    A(f".text\n.globl {KNAME}\n.p2align 8\n.type {KNAME},@function\n{KNAME}:")
    su1, su2 = setup_code()
    L += su1
    def emit(seq):
        for i in seq: L.append(i)
    if opt.rep > 1: A(f"s_mov_b32 s98, {opt.rep}\nL_again:")
    emit(stamp(0))
    SU = startup(su2)
    emit(SU["a"]); emit(SU["h"]); A("L_nohelp:")
    if opt.kpos: emit(SU["q1"]); emit(SU["k"]); A("L_nok:")
    emit(SU["q"]); emit(SU["r2"]); A("L_noq3:")
    if opt.iw: A("s_branch L_iw0\nL_iwa:")
    emit(SU["r3"])
    emit(SU["lc"]); emit(SU["l"])
    assert opt.late
    qpos = len(L)
    A("L_nolate:")
    if opt.iw: A("s_branch L_iw3a\nL_iwb:")
    emit(SU["w"]); A("L_osok:"); emit(SU["r4"]); emit(SU["r5"])
    A("L_first:")
    assert opt.ca7 == 0
    s4 = []
    s4 = fix_hazards(s4 + sum([dma_V(0, 1), dma_V(0, 2), dma_V(0, 3), dma_K(7)][:opt.ca7], []))
    emit(s4)
    A("L_pass:")
    pb = [waitcnt(None, 0), barrier()]
    emit(pb)
    emit(stamp(1))
    if opt.padat:
        A(f"s_cmp_lg_u32 {s_pass}, {opt.padat - 1}\ns_cbranch_scc1 L_nopad\ns_cmp_lg_u32 {s_str}, 0x40000000\ns_cbranch_scc1 L_nopad\ns_memrealtime s[100:101]\ns_waitcnt lgkmcnt(0)\nL_nopad:")
    A(f"s_cmp_eq_u32 {s_nbn}, 3\ns_cbranch_scc1 L_v3")
    VAR = {}
    for nb in (4, 3):
        P = variant(nb)
        hd = fix_hazards(P["hd"])
        b1 = fix_hazards(P["i1"], wrap=hd[-14:])
        b2 = fix_hazards(P["i2"], wrap=b1[-14:])
        b1b = fix_hazards(P["i1"], wrap=b2[-14:])
        assert [x.text for x in b1b] == [x.text for x in b1], "loop entry hazards differ"
        i6 = fix_hazards(P["i6"], wrap=b1[-14:])
        i7 = fix_hazards(P["i7"], wrap=i6[-14:])
        epi = fix_hazards(P["epi"], wrap=i7[-14:])
        epf = fix_hazards(P["epf"], wrap=i7[-14:])
        fin = fix_hazards(P["fin"], wrap=i6[-14:])
        if opt.mid: i7 = []; epi = fix_hazards(P["mid"], wrap=i6[-14:])
        VAR[nb] = dict(hd=hd, b1=b1, b2=b2, i6=i6, i7=i7, epi=epi, epf=epf, fin=fin)
        if opt.al8:
            for k in ("hd", "b1", "b2", "i6", "i7"): align8(VAR[nb][k])
        nn = sum(1 for p in VAR[nb].values() for x in p if x.kind == "nop")
        print(f"nb={nb}: sizes", {k: len(v) for k, v in VAR[nb].items()}, "nops", nn, file=sys.stderr)
        if nb == 3 and opt.quick:
            QS = quick_start(3, P["q0"])
            assert [x.text for x in fix_hazards(P["i1"], wrap=QS[-14:])] == [x.text for x in b1]
            L[qpos:qpos] = (["L_quick:\n; ---- first pass, 3 blocks per wave: every block starts as soon as its rows have arrived"] + QS
                            + stamp(1) + stamp(2) + ["s_branch L_loop3"])
        A(".p2align 6")
        if nb == 3 and opt.iw: A("L_iw0:\ns_branch L_iwa")
        A(f"L_v{nb}:")
        emit(hd)
        emit(stamp(2))
        if opt.diag == 3:
            for k in range(3):
                A(f"s_sub_u32 s66, s{92+4*k}, s{90+4*k}\ns_mul_i32 s67, {s_pass}, 3\ns_add_u32 m0, s67, {20+k}\ns_nop 1\nv_writelane_b32 v0, s66, m0")
        if opt.al8: A(f".p2align {opt.al8}")
        A(f"L_loop{nb}:")
        emit(b1); A(f"s_cbranch_scc1 L_i6_{nb}")
        if opt.al8: A(".p2align 3")
        emit(b2); A(f"s_branch L_loop{nb}")
        if opt.al8: A(f".p2align {opt.al8}")
        if opt.iw: A(f"L_iw{nb}a:\ns_branch L_iw{nb}b")
        A(f"L_i6_{nb}:")
        if opt.diag == 4: emit(stamp(9))
        if opt.al8: A(".p2align 3")
        emit(i6)
        if opt.diag == 4: emit(stamp(9))
        if opt.fin:
            A(f"s_cmp_lt_u32 {s_pass}, 2\ns_cbranch_scc1 L_i7_{nb}")
            emit(stamp(3))
            emit(fin)
            emit(stamp(4))
            A("s_branch L_done")
            if opt.iw: A(f"L_iw{nb}b:\ns_branch " + ("L_iw4a" if nb == 3 else "L_iwb"))
            A(f"L_i7_{nb}:")
            emit(i7)
            emit(stamp(3))
        else:
            emit(i7)
            emit(stamp(3))
            A(f"s_cmp_lt_u32 {s_pass}, 2\ns_cbranch_scc1 L_epi{nb}")
            emit(epf)
            emit(stamp(4))
            A(f"s_branch L_done\nL_epi{nb}:")
        emit(epi)
        emit(stamp(4))
        A(f"s_add_u32 {s_pass}, {s_pass}, 1\ns_branch L_pass")
    tail = []
    traces = []
    import itertools
    for seqnb in itertools.product((3, 4), (3, 4), (3, 4), (0, 1)):
        hp = seqnb[3]; seqnb = seqnb[:3]
        n4 = seqnb[0] == 4
        tr = SU["a"] + (SU["h"] if hp else []) + SU.get("q1", []) + ([] if hp else SU.get("k", [])) + SU["q"] + (SU["r2"] if n4 else []) + SU["r3"] + (SU["w"] if (hp or not opt.late) else SU["l"]) + SU["r4"] + (SU["r5"] if n4 else []) + s4
        for pi, nb in enumerate(seqnb):
            v = VAR[nb]
            tr = tr + pb + v["hd"] + (v["b1"] + v["b2"]) * 2 + v["b1"] + v["i6"] + (v["fin"] if (pi == 2 and opt.fin) else v["i7"] + v["epf" if pi == 2 else "epi"])
        traces.append(tr + tail)
    qtraces = []
    if opt.quick:
        for seqnb in itertools.product((3,), (3, 4), (3, 4)):
            tr = SU["a"] + SU["q"] + QS
            for pi, nb in enumerate(seqnb):
                v = VAR[nb]
                tr = tr + ((pb + v["hd"]) if pi else []) + (v["b1"] + v["b2"]) * 2 + v["b1"] + v["i6"] + (v["fin"] if (pi == 2 and opt.fin) else v["i7"] + v["epf" if pi == 2 else "epi"])
            qtraces.append(tr + tail)
    resolve_vm(traces + qtraces)
    if qtraces and not opt.abl: cross_check(qtraces)
    for tr in traces + qtraces:
        errs = check_trace(tr)
        if errs and not opt.abl:
            for e in errs[:20]: print("SYNC ERR", e, file=sys.stderr)
            raise SystemExit(1)
    if not opt.abl: cross_check(traces)
    A("L_done:")
    emit(tail)
    if opt.force: A(f"s_mov_b32 {s_flags}, {opt.force}")
    A(f"s_cmp_lg_u32 {s_flags}, 0\ns_cbranch_scc1 L_repair\nL_fin:")
    if opt.rep > 1:
        A("s_waitcnt vmcnt(0) lgkmcnt(0)\ns_barrier")
        raise SystemExit("rep unsupported now")
        A(f"s_mov_b32 {s_pass}, 0\ns_sub_u32 s98, s98, 1\ns_cmp_lg_u32 s98, 0\ns_cbranch_scc1 L_again")
    if opt.diag:
        A("s_waitcnt vmcnt(0)")
        emit(stamp(5))
        A(f"s_mov_b32 s66, 0x1000000\ns_mov_b32 s67, 0x20000")
        A(f"v_mbcnt_lo_u32_b32 v1, -1, 0\nv_mbcnt_hi_u32_b32 v1, -1, v1\nv_lshlrev_b32 v1, 2, v1")
        A(f"s_lshl_b32 s3, s2, 10\ns_lshl_b32 s4, {s_wave}, 8\ns_add_u32 s3, s3, s4")
        A("buffer_store_dword v0, v1, s[64:67], s3 offen")
        if opt.diag == 2:
            A(f"s_or_b32 s3, s2, {s_wave}\ns_cmp_lg_u32 s3, 0\ns_cbranch_scc1 L_exit")
            A("s_load_dwordx2 s[64:65], s[0:1], 32\ns_mov_b32 s66, 256\nv_readlane_b32 s4, v0, 0\nv_readlane_b32 s5, v0, 32\ns_waitcnt lgkmcnt(0)")
            idx = [2, 3, 4, 6, 8, 10, 12, 14]
            for j, k in enumerate(idx):
                A(f"v_readlane_b32 s6, v0, {k}\nv_readlane_b32 s7, v0, {k+32}\ns_sub_u32 s6, s6, s4\ns_sub_u32 s7, s7, s5\ns_nop 1\nv_writelane_b32 v2, s6, {j}\nv_writelane_b32 v2, s7, {j+8}")
            A("s_mov_b64 exec, 0xffff\nbuffer_store_dword v2, v1, s[64:67], 0 offen")
    if opt.wb == 1:
        A(f"s_cmp_lg_u32 {s_wave}, 0\ns_cbranch_scc1 L_exit\ns_waitcnt vmcnt(0)\nbuffer_wbl2 sc1\ns_waitcnt vmcnt(0)")
    if opt.wb == 2:
        A(f"s_cmp_lg_u32 {s_wave}, 0\ns_cbranch_scc1 L_exit\ns_cmp_eq_u32 s89, 0\ns_cbranch_scc1 L_exit\ns_waitcnt vmcnt(0)\nbuffer_wbl2 sc1\ns_waitcnt vmcnt(0)")
    if opt.wb == 3:
        A(f"s_waitcnt vmcnt(0)\nbuffer_wbl2 sc1")
    if opt.padto:
        A(f"s_waitcnt vmcnt(0)\nL_spin:\ns_memrealtime s[66:67]\ns_waitcnt lgkmcnt(0)\ns_sub_u32 s66, s66, s100\ns_cmp_lt_u32 s66, {opt.padto}\ns_cbranch_scc1 L_spin")
    A("L_exit:")
    A("s_endpgm")
    A("L_warm_end:")
    A("L_repair:")
    emit(repair_code())
    A("s_branch L_fin")
    A(".p2align 6\n.type L_table,@object\nL_table:")
    tab = schedule_table(opt.sched)
    for wg in range(256):
        w = []
        for h, st, n in tab[wg]:
            w += [(h * SQ + st * 16) * 512, h * SK * 512, n]
        w += [THR.get(wg, 0), HELP.get(wg, OOB), RANK.get(wg, 0), HELPN.get(wg, 12), int(wg not in HELP and tab[wg][0][2] == 12)]
        w += [0] * (16 - len(w))
        A(".long " + ", ".join(str(x) for x in w))
    A(".size L_table, 16384")
    A('.section .rodata,"a"\n.p2align 6')
    A(f".amdhsa_kernel {KNAME}")
    A("  .amdhsa_next_free_vgpr 512\n  .amdhsa_next_free_sgpr 102\n  .amdhsa_accum_offset 256\n  .amdhsa_group_segment_fixed_size 0")
    A("  .amdhsa_kernarg_size 48\n  .amdhsa_user_sgpr_count 2\n  .amdhsa_user_sgpr_kernarg_segment_ptr 1\n  .amdhsa_system_sgpr_workgroup_id_x 1")
    A(".end_amdhsa_kernel")
    open(opt.o, "w").write("\n".join((x if isinstance(x, str) else x.text) for x in L if x is not None) + "\n")

if __name__ == "__main__":
    main()
```

```python
import sys, argparse
from asmlib import *

KNAME = "standalone__mha_softmax__near_ridge_kernel"
NH, SQ, SK, D = 128, 1312, 512, 256
QBYTES = NH * SQ * D * 2
KBYTES = NH * SK * D * 2
OOB = 0x7fff0000
VB = 65536
XB = 131072
LDS_BYTES = 163840
C_SCALE = 0x3db8aa3b
L_LIMIT = 0x58800000

sQ, sK, sV, sO = S(8, 4), S(12, 4), S(16, 4), S(20, 4)
s_wave = S(24)
s_mK = S(25)
s_mX = S(26)
s_mR2 = S(27)
s_mOS = S(28)
s_kptr, s_kend, s_knext = S(29), S(30), S(31)
s_vptr, s_vptr2, s_vend = S(32), S(33), S(34)
s_c = S(35)
s_cnt = S(36)
s_pass = S(37)
s_flags = S(38)
s_qn = [S(40), S(41), S(42), S(43)]
s_ocur = S(44)
s_t0, s_t1, s_t2 = S(45), S(46), S(47)
s_tab = S(48, 16)
s_dbg = S(64, 4)
s_ts = S(68, 2)
s_nbn = S(70)
s_tsp = S(71)
s_mR3 = S(39)
s_tq, s_tk, s_tv, s_xm, s_xq = S(90), S(91), S(92), S(93), S(94)
sC = S(96, 4)
s_cs = S(95)
s_str = S(34)
s_ok = [S(72 + k) for k in range(8)]
kaddr, vaddr0, vaddr1, voK, voV = V(1), V(2), V(3), V(4), V(5)
lsum = lambda b: V(6 + b)
vt0, vt1 = V(10), V(11)
voQa, voQb = V(12), V(13)
vsto, wa0 = V(14), V(15)
Ct = lambda b: V(16 + 4 * b, 4)
SET = lambda i: V(32 + 16 * i, 16)
Sx = lambda i, b: SET(i).sub(4 * b, 4)
Q = lambda b, s: AG(b * 32 + s * 4, 4)
NF = 8
F = lambda i: AG(128 + 4 * (i % NF), 4)
def O(b, db):
    if 4 <= db < 10: return AG(160 + 4 * ((db - 4) * 4 + b), 4)
    return V(96 + 4 * ((db if db < 4 else db - 6) * 4 + b), 4)

M0 = ('m0', 0)
_last_m0 = [None]
def set_m0(base, off):
    i = salu(f"s_add_u32 m0, {base}, {off}", rd=[base]); i.wr = {M0}; _last_m0[0] = i; return i
def sop(text, rd=(), wr=()): return salu(text, rd=rd, wr=wr)

class Opt: pass
opt = Opt()

def dma(vo, srd, soff, imm, unit, mods):
    i = Ins(f"buffer_load_dwordx4 {vo}, {srd}, {soff} offen offset:{imm} {mods} lds".replace("  ", " "), "vmem", rd=[vo, srd, soff])
    i.rd.add(M0); i.dma_wr = unit; i.vm = True; i.m0ref = _last_m0[0]
    return i

def kslot_addr(slot): return slot * 8192
def vslot_addr(par, c): return VB + (par * 4 + c) * 8192

def dma_K(slot, wrap=False):
    r = []
    for dh in range(2):
        r.append(set_m0(s_mK, kslot_addr(slot) + dh * 768))
        r.append(dma(voK, sK, s_kptr, dh * 256, ("K", slot), opt.kvmod))
    r.append(sop(f"s_add_u32 {s_kptr}, {s_kptr}, 8192", rd=[s_kptr], wr=[s_kptr]))
    if wrap:
        r.append(sop(f"s_cmp_eq_u32 {s_kptr}, {s_kend}", rd=[s_kptr, s_kend]))
        r[-1].glue = True
        r.append(sop(f"s_cselect_b32 {s_kptr}, {s_knext}, {s_kptr}", rd=[s_kptr, s_knext], wr=[s_kptr]))
    return r

def dma_V(par, c, wrap=False):
    r = []
    if c == 0:
        r.append(sop(f"s_add_u32 {s_vptr}, {s_vptr}, 32768", rd=[s_vptr], wr=[s_vptr]))
        if wrap:
            r.append(sop(f"s_cmp_eq_u32 {s_vptr}, {s_vend}", rd=[s_vptr, s_vend]))
            r[-1].glue = True
            r.append(sop(f"s_cselect_b32 {s_vptr}, {s_knext}, {s_vptr}", rd=[s_vptr, s_knext], wr=[s_vptr]))
        r.append(sop(f"s_add_u32 {s_vptr2}, {s_vptr}, 4096", rd=[s_vptr], wr=[s_vptr2]))
    for e in range(2):
        r.append(set_m0(s_mK, vslot_addr(par, c) + e * 1024 - c * 128))
        r.append(dma(voV, sV, s_vptr2 if e else s_vptr, c * 128, ("V", par, c), opt.kvmod))
    return r

def dma_Q(base, soff, unit):
    r = []
    for hi in range(2):
        for dh in range(2):
            r.append(set_m0(base, hi * 4096 + dh * 768))
            for Rl in range(2):
                r.append(dma(voQb if hi else voQa, sQ, soff, Rl * 2048 + dh * 256, unit, opt.qmod))
    return r

def q_reads(b, base_sgpr, unit, tmp):
    r = [valu("v_add_u32", tmp, base_sgpr, kaddr)]
    for s in range(8):
        i = ds_read("ds_read_b128", Q(b, s), tmp, s * 256, tag=("q", b, s)); i.lds_rd = unit; i.private = True
        r.append(i)
    return r

def waitcnt(vm=None, lgkm=None):
    t = "s_waitcnt" + (f" vmcnt({vm})" if vm is not None else "") + (f" lgkmcnt({lgkm})" if lgkm is not None else "")
    i = raw(t, "wait"); i.vmw = vm; i.lgw = lgkm
    return i
def vwait(units, lgkm=None):
    i = raw("s_waitcnt ?", "wait"); i.vmneed = list(units); i.vmw = None; i.lgw = lgkm; i.vmauto = 63
    return i
def barrier():
    i = raw("s_barrier", "misc"); i.bar = True; return i

class Seg:
    def __init__(self, nb, name):
        self.nb = nb; self.name = name
        self.mf = []; self.nodes = []
        self.pairs = []
        self.blk = {}
        self.fixed = {}
        self.done = {}
        self.first = {}
        self.fixed2 = {}

    def qblock(self, name, slot, dst, czero, fbase):
        nb = self.nb; st = len(self.mf)
        for sp in range(4):
            p0 = len(self.mf)
            tags = [("f", self.name, name, 2 * sp + e) for e in range(2)]
            for b in range(nb):
                for e in range(2):
                    s = 2 * sp + e
                    d = Sx(dst, b)
                    c = d if s else (0 if czero else Ct(b))
                    self.mf.append(mfma(d, F(fbase + s), Q(b, s), c, need=tags))
                    self.done[(name, b)] = len(self.mf) - 1
            rd = []
            for e in range(2):
                s = 2 * sp + e
                i = ds_read("ds_read_b128", F(fbase + s), kaddr, kslot_addr(slot) + s * 256, tag=tags[e]); i.lds_rd = ("K", slot)
                rd.append(i)
            self.pairs.append((p0, len(self.mf) - 1, rd))
        self.blk[name] = (st, len(self.mf))

    def pblock(self, name, par, c, x0, x1, czero, fbase):
        self.pgen(name, par, [[(c, dbl, 0), (c, dbl, 1)] for dbl in range(4)], x0, x1, czero)

    def pgen(self, name, par, prs, x0, x1, czero):
        nb = self.nb; st = len(self.mf)
        for pi, pr in enumerate(prs):
            p0 = len(self.mf)
            fb = 2 * len(self.pairs)
            tags = [("f", self.name, name, 2 * pi + e) for e in range(2)]
            for b in range(nb):
                for e, (c, dbl, ks) in enumerate(pr):
                    o = O(b, 4 * c + dbl)
                    cc = 0 if (czero and ks == 0) else o
                    self.first.setdefault(("P", ks, b), len(self.mf))
                    self.first.setdefault(("O", c), len(self.mf))
                    if opt.abl & 512: self.mf.append(mfma(o, Sx(x1 if ks else x0, b), F(fb + e), cc, need=tags))
                    else: self.mf.append(mfma(o, F(fb + e), Sx(x1 if ks else x0, b), cc, need=tags))
            rd = []
            for e, (c, dbl, ks) in enumerate(pr):
                f = F(fb + e)
                va = vaddr1 if (dbl & 1) else vaddr0
                off = vslot_addr(par, c) - VB + ks * 4096 + (dbl >> 1) * 512
                for j4 in range(2):
                    i = ds_read("ds_read_b64_tr_b16", f.sub(2 * j4, 2), va, off + j4 * 2048, tag=tags[e] if j4 else ("x",))
                    i.lds_rd = ("V", par, c)
                    rd.append(i)
            self.pairs.append((p0, len(self.mf) - 1, rd))
        self.blk[name] = (st, len(self.mf))

    def unit(self, src, even_set, odd, blocks, e_of, dl_crit, dl_add, lo, hi, add_lo=None, add_hi=None, pre=None, after=None, fma=None, ext=None):
        crit = []; adds = []; res = {}
        for b in blocks:
            x = Sx(src, b); ev = Sx(even_set, b)
            ms = []
            for i in range(4):
                deps = [(n, 0) for n in pre[b]] if pre else []
                ins = valu("v_fma_f32", x[i], x[i], s_c, fma[b]) if fma else valu("v_mul_f32", x[i], s_c, x[i])
                ms.append(Node(ins, e=e_of(b), dl=dl_crit(b), deps=deps))
            y = ext(b) if ext else x
            late = odd or ext
            ex = [Node(valu("v_exp_f32", y[i], x[i]), e=e_of(b), dl=dl_crit(b), deps=[(ms[i], 0)]) for i in range(4)]
            ad = []
            for i in range(4):
                deps = [(ex[i], 1)] + ([(ad[-1], 0)] if ad else [])
                ad.append(Node(valu("v_add_f32", lsum(b), lsum(b), y[i]), e=e_of(b), dl=(dl_add if late else dl_crit(b)), deps=deps))
            aft = [(n, 0) for n in (after or {}).get(b, [])]
            if odd:
                c0 = Node(valu("v_cvt_pk_bf16_f32", ev[2], y[0], y[1]), e=e_of(b), dl=dl_crit(b), deps=[(ex[0], 1), (ex[1], 1)] + aft)
                c1 = Node(valu("v_cvt_pk_bf16_f32", ev[3], y[2], y[3]), e=e_of(b), dl=dl_crit(b), deps=[(ex[2], 1), (ex[3], 1)] + aft)
                crit += [ms[0], ms[1], ex[0], ex[1], ms[2], ms[3], ex[2], ex[3], c0, c1]
                adds += ad
            elif ext:
                c0 = Node(valu("v_cvt_pk_bf16_f32", x[0], y[0], y[1]), e=e_of(b), dl=dl_crit(b), deps=[(ex[0], 1), (ex[1], 1)])
                c1 = Node(valu("v_cvt_pk_bf16_f32", x[1], y[2], y[3]), e=e_of(b), dl=dl_crit(b), deps=[(ex[1], 0), (ex[2], 1), (ex[3], 1)])
                crit += [ms[0], ms[1], ex[0], ex[1], ms[2], ms[3], ex[2], ex[3], c0, c1]
                adds += ad
                res[b] = [c0, c1]; continue
            else:
                c0 = Node(valu("v_cvt_pk_bf16_f32", x[0], x[0], x[1]), e=e_of(b), dl=dl_crit(b), deps=[(ex[0], 1), (ex[1], 1), (ad[0], 0)])
                c1 = Node(valu("v_cvt_pk_bf16_f32", x[1], x[2], x[3]), e=e_of(b), dl=dl_crit(b), deps=[(ex[2], 1), (ex[3], 1), (ad[1], 0), (c0, 0)])
                crit += [ms[0], ms[1], ex[0], ex[1], ms[2], ms[3], ex[2], ex[3], ad[0], ad[1], ad[2], ad[3], c0, c1]
            res[b] = [c0, c1] + ad
        spread(crit, lo, hi)
        if adds: spread(adds, add_lo if add_lo is not None else lo, add_hi if add_hi is not None else hi)
        self.nodes += crit + adds
        return res

    def chain(self, instrs, lo, hi, e=None, dl=None, first_dep=None):
        prev = first_dep; out = []
        for i in instrs:
            gapd = 0
            if prev is not None:
                pk = prev.ins.kind
                gapd = 1
                if pk == "ds" and i.kind == "ds": gapd = 0
            n = Node(i, e=lo if e is None else e, dl=(10**9 if dl is None else dl), deps=[(prev, gapd)] if prev else [])
            out.append(n); prev = n
        k = len(out)
        for j, n in enumerate(out): n.ideal = lo + (hi - lo) * j / max(k, 1)
        self.nodes += out
        return out

    def reads(self, nxt_pairs, skip_first=3, barrier_before=()):
        pairs = self.pairs; ext = [p[2] for p in pairs] + list(nxt_pairs)
        prev = None
        plen = 2 * self.nb
        for k in range(skip_first, len(ext)):
            j = k - 4
            e = pairs[j][1] if j >= 0 else 0
            if k in barrier_before:
                g = e - 1 + (opt.barlag if self.nb == 3 else opt.barlag4) if j >= 0 else 0
                g = min(g, len(self.mf) - 2)
                if opt.barsplit and g > 0 and len(barrier_before[k]) == 2:
                    self.fixed[g] = barrier_before[k][1:]
                    self.fixed2[g - 1] = barrier_before[k][:1]
                else:
                    self.fixed[g] = barrier_before[k]
                self.bar_gap = getattr(self, "bar_gap", {}); self.bar_gap[k] = g
                e = g + 1
            dl = e + plen - 2
            if (k + 1) in barrier_before: dl = e + 1
            for i in ext[k]:
                n = Node(i, e=e, dl=min(dl, len(self.mf) - 1), ideal=e - 2, deps=[(prev, 0)] if prev else [])
                self.nodes.append(n); prev = n

    def build(self, nxt_first=None):
        n = len(self.mf)
        ft = set(); seen = set()
        for g, m in enumerate(self.mf):
            key = tuple(m.need)
            if key not in seen:
                seen.add(key)
                if g > 0: ft.add(g - 1)
        ft.add(n - 1)
        blocked = {}
        for g in self.fixed: ft.add(g); blocked[g] = opt.barblk
        for g in self.fixed2: ft.add(g)
        gaps, over = schedule2(self.mf, self.nodes, free_taken=ft, blocked=blocked, nomem=set(self.fixed2) | set(self.fixed))
        for g, ins in self.fixed2.items():
            gaps[g][1][0:0] = ins
        for g, ins in self.fixed.items():
            gaps[g][1][0:0] = ins
        self.over = over
        if getattr(opt, "show", 0):
            cost = lambda i: 8 if i.kind == "vmem" else i.cost
            for nme, (a, b) in self.blk.items():
                row = ""
                for g in range(a, b):
                    u = sum(cost(i) for i in gaps[g][2]) + 4 * max(0, len(gaps[g][1]) - (0 if g in ft and g not in self.fixed else 1))
                    row += "B" if g in self.fixed else (str(u // 4) if u < 40 else "#")
                print(f"  nb{self.nb} {self.name} {nme}: {row}", file=sys.stderr)
        return gaps

def sets_for(par):
    return (0, 1, 2, 3) if par == 0 else (3, 2, 1, 0)

def first_pairs_of_iter(nb, J, name):
    s = Seg(nb, name); par = J & 1
    X0, X1, A_, B_ = sets_for(par)
    s.qblock("t0", 4 * ((J + 1) & 1), A_, False, 0)
    return [p[2] for p in s.pairs[:3]]

SPLIT = {4: 3, 3: 2}

LAT = 4
def units_of(J, h):
    par = J & 1; kb = 4 * ((J + 1) & 1)
    return [("K", kb), ("K", kb + 1), ("K", kb + 2), ("V", par, 0)] if h == 0 else [("V", par, 1), ("V", par, 2), ("V", par, 3), ("K", kb + 3)]

def iter_blocks(s, J, cz, split=0):
    par = J & 1
    X0, X1, A_, B_ = sets_for(par)
    kb = 4 * ((J + 1) & 1)
    s.qblock("t0", kb + 0, A_, False, 0)
    s.qblock("t1", kb + 1, B_, False, 0)
    if split == 2:
        s.pgen("t2", par, [[(0, 0, 0), (0, 1, 0)], [(0, 2, 0), (0, 3, 0)], [(0, 0, 1), (0, 1, 1)], [(0, 2, 1), (0, 3, 1)]], X0, X1, cz)
    elif split == 1:
        s.pgen("t2", par, [[(0, 0, 0), (0, 1, 0)], [(0, 0, 1), (0, 1, 1)], [(0, 2, 0), (0, 2, 1)], [(0, 3, 0), (0, 3, 1)]], X0, X1, cz)
    else:
        s.pblock("t2", par, 0, X0, X1, cz, 0)
    s.qblock("t3", kb + 2, A_, False, 0)
    s.pblock("t4", par, 1, X0, X1, cz, 0)
    s.pblock("t5", par, 2, X0, X1, cz, 0)
    s.qblock("t6", kb + 3, A_, False, 0)
    s.pblock("t7", par, 3, X0, X1, cz, 0)

def iter_units(s, J, u2, lo3=None, x3=None, dl3=None):
    nb = s.nb; B = s.blk; n = len(s.mf)
    X0, X1, A_, B_ = sets_for(J & 1)
    p0s = s.first[("P", 1, 0)] - 1
    s.unit(A_, X1, True, range(nb), lambda b: s.done[("t0", b)] + LAT, lambda b: s.first[("P", 1, b)] - 2, dl3 or B["t3"][0] - 2,
           lo3 if lo3 is not None else B["t0"][1] - 2, p0s - 1, after=u2, **(x3 or dict(add_lo=p0s, add_hi=B["t3"][0] - 4)))
    u0 = s.unit(B_, B_, False, range(nb), lambda b: s.done[("t1", b)] + LAT, lambda b: B["t4"][0] + 4, None,
                p0s + 2, B["t4"][0] - 2)
    s.unit(A_, B_, True, range(nb), lambda b: s.done[("t3", b)] + LAT, lambda b: B["t6"][0] - 2, B["t6"][0] - 2,
           B["t4"][0], B["t6"][0] - 4, add_lo=B["t4"][0] + 4, add_hi=B["t6"][0] - 3, after=u0)
    s.unit(A_, A_, False, range(SPLIT[nb]), lambda b: s.done[("t6", b)] + LAT, lambda b: n - 1, None,
           B["t7"][0], n - 3)

def make_mid(nb, J, name, nxt_name, special=False):
    par = J & 1
    X0, X1, A_, B_ = sets_for(par)
    kb = 4 * ((J + 1) & 1)
    s = Seg(nb, name)
    iter_blocks(s, J, False, split=(1 if nb == 3 else 0))
    n = len(s.mf); B = s.blk
    u2 = s.unit(X1, X1, False, list(range(SPLIT[nb], nb)), lambda b: 0, lambda b: B["t0"][1] + 2, None, 0, B["t0"][1] - 4)
    iter_units(s, J, u2)
    npair = len(s.pairs)
    nxt = first_pairs_of_iter(nb, J + 1, nxt_name)
    need2 = units_of(J + 1, 0) + (units_of(J + 1, 1) if special else [])
    s.reads(nxt, barrier_before={16: [vwait(units_of(J, 1), 0), barrier()], npair: [vwait(need2, 0), barrier()]})
    g1 = s.bar_gap[16]; g2 = s.bar_gap[npair]
    npar = (J + 1) & 1
    if opt.spread:
        gg = [dma_V(npar, 1), dma_V(npar, 2), dma_V(npar, 3), dma_K(4 * ((J + 2) & 1) + 3)]
        k0 = opt.k0
        c0 = s.chain(sum(gg[:k0], []), 2, B["t0"][1] + 2, dl=g1 - 1)
        if k0 < 4: c0 = s.chain(sum(gg[k0:], []), B["t2"][0] + (10 if k0 == 3 else 2), g1 - 2, dl=g1 - 1, first_dep=c0[-1])
        lo1, hi1 = (g1 + opt.g1lo, g2 - opt.g1hi) if nb == 4 else (B["t4"][0] + opt.g3lo, g2 + 2)
    else:
        g0 = dma_V(npar, 1) + dma_V(npar, 2) + dma_V(npar, 3) + dma_K(4 * ((J + 2) & 1) + 3)
        c0 = s.chain(g0, 0, B["t0"][1] + 2, dl=g1 - 1)
        lo1, hi1 = B["t5"][0] + 8, B["t7"][0]
    if special:
        dq_ = dma_Q(s_mR3, s_qn[1], ("R3",))
        st_ = 12 << (opt.tsh + 6)
        for k in range(opt.t6n if nb == 4 else opt.t6n3):
            dq_[3 * (k + 1) + 4 * k:3 * (k + 1) + 4 * k] = touch(sK, s_tk, st_) + touch(sV, s_tv, st_)
        s.chain(dq_, g1 + 2, B["t6"][1], e=g1 + 1, dl=g2 - 1, first_dep=c0[-1])
    else:
        tq = (lambda: touch(sQ, s_tq, 2048)) if (opt.touch & 4 and J & 1) else (lambda: [])
        tq0 = ([sop(f"s_cmp_eq_u32 {s_cnt}, {opt.tqskip}"), sop(f"s_cselect_b32 {s_t2}, {OOB:#x}, {s_tq}", wr=[s_t2])]) if (opt.touch & 4 and J & 1) else []
        if tq0:
            def tq(n=[0]):
                i = Ins(f"buffer_load_dword {vt0}, {vt1}, {sQ}, {s_t2} offen offset:{(n[0] % 2) * 2048}", "vmem", rd=[vt1, sQ, s_t2], wr=[vt0]); i.vm = True
                n[0] += 1
                r_ = [i]
                if n[0] == 2: r_.append(sop(f"s_add_u32 {s_t2}, {s_t2}, 4096", wr=[s_t2]))
                if n[0] == 4: r_ += [sop(f"s_cmp_eq_u32 {s_cnt}, {opt.tqskip}"), sop(f"s_cselect_b32 {s_t2}, 0, 8192", wr=[s_t2]), sop(f"s_add_u32 {s_tq}, {s_tq}, {s_t2}", wr=[s_tq])]
                return r_
        tk = (lambda: touch(sK, s_tk, 12 << (opt.tsh + 6))) if (opt.touch & 2 and (opt.twhen4 if nb == 4 else opt.twhen) >> (J & 1) & 1) else (lambda: [])
        tv = (lambda: touch(sV, s_tv, 12 << (opt.tsh + 6))) if (opt.touch & 2 and (opt.twhen4 if nb == 4 else opt.twhen) >> (J & 1) & 1) else (lambda: [])
        xq = [[], []]
        if not J & 1:
            for hi in range(2):
                xq[hi] = [set_m0(s_xm, hi * 4096)] + [dma(voQb if hi else voQa, sQ, s_xq, Rl * 2048, ("X",), opt.qmod) for Rl in range(2)]
            xq[1] += [sop(f"s_add_u32 {s_xm}, {s_xm}, 1024", wr=[s_xm]), sop(f"s_add_u32 {s_xq}, {s_xq}, 256", wr=[s_xq])]
            if opt.xlate:
                d = dma_Q(s_mX, s_xm, ("X",))
                xq = [d[:6], d[6:] + [sop(f"s_mov_b32 {s_xm}, {s_xq}", wr=[s_xm])]]
        tc = touch(sC, s_cs, 0)[:1] if (opt.cwarm and (J & 1 or opt.cwarm > 1)) else []
        g1l = tc + tq0 + tq() + dma_K(kb + 0, wrap=(J & 1) == 1) + tq() + xq[0] + dma_K(kb + 1) + tq() + tk() + xq[1] + dma_K(kb + 2) + tq() + tv() + dma_V(par, 0)
        last = s.chain(g1l, lo1, hi1, e=g1 + 1, dl=g2 - 1, first_dep=c0[-1])[-1]
        if J & 1:
            s.chain([sop(f"s_sub_u32 {s_cnt}, {s_cnt}, 1"), sop(f"s_cmp_eq_u32 {s_cnt}, 0")], n - 6, n - 3, first_dep=last)
    return s

def touch(srd, sp, step):
    i = Ins(f"buffer_load_dword {vt0}, {vt1}, {srd}, {sp} offen", "vmem", rd=[vt1, srd, sp], wr=[vt0]); i.vm = True
    return [i, sop(f"s_add_u32 {sp}, {sp}, {step}", rd=[sp], wr=[sp])]

RL = lambda b: SET(0)[b]
WA = lambda k: wa0 if k == 0 else SET(0)[4 + k]
RA = SET(0)[8]
LT = SET(0)[9]
VS1 = SET(0)[10]
HOIST = {4: (4, 10), 3: (3, 4)}
PK = lambda c, k: O(k >> 1, 4 * c + (k & 1))

def butterfly(x, op, mid, out):
    q = []
    def add(i, deps): q.append((i, deps)); return len(q) - 1
    a = add(perm("v_permlane16_swap_b32", x[0], x[1]), [])
    b = add(perm("v_permlane16_swap_b32", x[2], x[3]), [])
    a = add(valu(op, x[0], x[0], x[1]), [a])
    b = add(valu(op, x[2], x[2], x[3]), [b])
    c = add(perm("v_permlane32_swap_b32", x[0], x[2]), [a, b])
    for i in mid(out[0], x[0], x[2]): c = add(i, [c])
    c = add(valu("v_mov_b32", out[2], out[0]), [c])
    c = add(perm("v_permlane32_swap_b32", out[0], out[2]), [c])
    a = add(valu("v_mov_b32", out[1], out[0]), [c])
    b = add(valu("v_mov_b32", out[3], out[2]), [c])
    a = add(perm("v_permlane16_swap_b32", out[0], out[1]), [a])
    b = add(perm("v_permlane16_swap_b32", out[2], out[3]), [b])
    return q

def nodes_of(q, first_deps, e, dl, ideal, step):
    nds = []
    for k, (i, deps) in enumerate(q):
        isp = i.op.startswith("v_permlane")
        d = [(nds[j], 2 if isp else (1 if nds[j].ins.kind == "trans" else 0)) for j in deps] if deps else [(x, 2 if isp else 0) for x in first_deps]
        nds.append(Node(i, e=e, dl=dl, deps=d, ideal=ideal + step * k))
    return nds

def make_last(nb, name):
    J = 7; par = 1
    X0, X1, A_, B_ = sets_for(par)
    s = Seg(nb, name)
    s.qblock("t0", 0, A_, False, 0)
    s.pgen("t2", par, [[(c, d, 0), (c, d + 1, 0)] for c in (0, 1) for d in (0, 2)], X0, X1, False)
    s.pgen("t4", par, [[(c, d, 1), (c, d + 1, 1)] for c in (0, 1) for d in (0, 2)], X0, X1, False)
    s.pblock("t5", par, 2, X0, X1, False, 0)
    s.pblock("t7", par, 3, X0, X1, False, 0)
    n = len(s.mf); B = s.blk
    u2 = s.unit(X1, X1, False, list(range(SPLIT[nb], nb)), lambda b: 0, lambda b: B["t0"][1] + 2, None, 0, B["t0"][1] - 4)
    k1 = B["t4"][0]
    u3 = s.unit(A_, X1, True, range(nb), lambda b: s.done[("t0", b)] + LAT, lambda b: s.first[("P", 1, b)] - 2, B["t5"][0] + 6,
                B["t0"][1] - 2, k1 - 1, add_lo=k1, add_hi=B["t5"][0], after=u2)
    npair = len(s.pairs)
    t0e = B["t0"][1]
    def qchain(b, base, unit, tmp, lo, hi, pre, dl=None, first_dep=None):
        ins = pre + q_reads(b, base, unit, tmp)
        nds = s.chain(ins, lo, hi, dl=dl, first_dep=first_dep)
        for k, nd in enumerate(nds[len(pre) + 1:]):
            nd.e = max(nd.e, s.pairs[k // 2][1] + 1)
        return nds
    if opt.r3epi:
        s.reads([[]], barrier_before={npair: [waitcnt(None, 0), barrier()]})
        g2 = s.bar_gap[npair]; gR = B["t4"][0] + 8
        c2 = s.chain(dma_Q(s_mR2, s_qn[2], ("R2",)), 0, B["t0"][1] + 4 if opt.q3early else B["t2"][1] - 4)
        r0 = qchain(0, s_mX, ("X",), vt1, t0e - 10, t0e + 10, [vwait([("X",)])])
        r1 = qchain(1, s_mR3, ("R3",), vt0, B["t4"][0] + 6, B["t5"][0] + 6, [vwait([("R3",)])], dl=g2 - 5, first_dep=r0[-1])
        c3 = s.chain([mark_wait_lds(("q", 0, 7))] + dma_Q(s_mX, s_qn[3], ("X",)), *((t0e + 16, B["t4"][1]) if opt.q3early else (B["t4"][0], g2)))
        c3[0].deps = [(r0[-1], 5), (c2[-1], 1)]
        c4 = s.chain([sop(f"s_sub_u32 {s_vptr}, {s_knext}, 32768", wr=[s_vptr])], 2, 4)
    else:
        kR = 12
        s.reads([[]], barrier_before={kR + 2: [waitcnt(None, 0), barrier()], npair: [waitcnt(None, 0), barrier()]})
        gR = s.bar_gap[kR + 2]; g2 = s.bar_gap[npair]
        c2 = s.chain(dma_Q(s_mR2, s_qn[2], ("R2",)), 0, B["t0"][1] - 2)
        r0 = qchain(0, s_mX, ("X",), vt0, t0e - 10, t0e + 10, [vwait([("X",)])], dl=gR - 5)
        r1 = qchain(1, s_mR3, ("R3",), vt1, t0e + 10, gR - 8, [vwait([("R3",)])], dl=gR - 5, first_dep=r0[-1])
        c3 = s.chain([mark_wait_lds(("q", 0, 7))] + dma_Q(s_mX, s_qn[3], ("X",)), t0e + 16, gR + 4)
        c3[0].deps = [(r0[-1], 5), (c2[-1], 1)]
        refill = [sop(f"s_sub_u32 {s_vptr}, {s_knext}, 32768", wr=[s_vptr])] + dma_K(4) + dma_K(5) + dma_K(6) + dma_V(0, 0)
        c4 = s.chain(refill, gR + 4, g2 - 2, e=gR + 1, first_dep=c3[-1])
        r2 = s.chain([vwait([("R2",)])] + q_reads(2, s_mR2, ("R2",), vt0), g2 - 16, g2 - 6, dl=g2 - 4, first_dep=r1[-1])
        nca = opt.ca7
        grp = [dma_V(0, 1), dma_V(0, 2), dma_V(0, 3), dma_K(7)]
        c5 = s.chain(sum(grp[:nca], []), g2 + 1, n - 2, e=g2 + 1, first_dep=c4[-1]) if nca else c4
    ok = [sop(f"s_add_u32 {s_ok[k]}, {s_ocur}, {k * 4096}", wr=[s_ok[k]]) if (k < 2 * nb and not opt.nostore) else sop(f"s_mov_b32 {s_ok[k]}, {OOB:#x}", wr=[s_ok[k]]) for k in range(8)]
    k0 = s.chain(ok, 4, t0e + 8)
    pbg = pass_begin()
    q3w = [i for i in pbg if i.text.startswith(f"s_mov_b32 {s_qn[3]},")][0]
    if opt.r3epi:
        pbg.remove(q3w); pbg.append(sop(f"s_mov_b32 {s_qn[3]}, {s_tab[3]}"))
        k1 = s.chain(pbg, gR + 6, n - 3, first_dep=k0[-1])
        k1[0].deps += [(c2[-1], 1), (c4[0], 1)]; k1[-1].deps += [(c3[-1], 1)]
    else:
        k1 = s.chain(pbg, gR + 6, n - 4, first_dep=k0[-1])
        k1[0].deps += [(c3[-1], 1), (c4[0], 1)]
    q = butterfly([lsum(b) for b in range(4)], "v_add_f32", lambda d, x, y: [valu("v_add_f32", LT, x, y), valu("v_rcp_f32", d, LT)], [RL(b) for b in range(4)])
    red = nodes_of(q, [x for b in range(nb) for x in u3[b][2:]], 0, 10**9, B["t5"][0] + 2, 1.5)
    rl_done = red[-2:]
    ad = [valu("v_xor_b32", WA(k), 16 * k, wa0) for k in (1, 2, 3)]
    ad += [valu("v_mbcnt_lo_u32_b32", RA, -1, 0), valu("v_mbcnt_hi_u32_b32", RA, -1, RA), valu("v_lshl_add_u32", RA, RA, 3, s_mOS),
           valu("v_xor_b32", VS1, 32, RA)]
    prev = None
    for k, i in enumerate(ad):
        nd = Node(i, deps=[(prev, 0)] if prev else [], ideal=B["t0"][1] - 12 + k); red.append(nd); prev = nd
    s.nodes += red
    t7s = B["t7"][0]
    order, acct = epi_order(nb)
    na, nc = HOIST[nb]
    hs = g2 - opt.hback
    for k in range(na * 4):
        t_ = acct[k // 4]; i = k % 4
        s.nodes.append(Node(acc_read(TMP(k // 4)[i], O(t_[2], 4 * t_[0] + t_[1])[i]), e=t7s + LAT + 1, ideal=g2 + 1 + k * 0.6,
                            deps=[(x, 0) for b in range(nb) for x in u3[b]]))
    for k in range(nc):
        c, dbl, b = order[k]; o = O(b, 4 * c + dbl)
        ms = [Node(valu("v_mul_f32", o[i], o[i], RL(b)), e=B["t5"][0] + LAT, ideal=hs + 1 + na * 2.4 + 3 * k + 0.5 * i, deps=[(x, 0) for x in rl_done]) for i in range(4)]
        c0 = Node(valu("v_cvt_pk_bf16_f32", o[0], o[0], o[1]), ideal=hs + 3 + na * 2.4 + 3 * k, deps=[(ms[0], 0), (ms[1], 0)])
        c1 = Node(valu("v_cvt_pk_bf16_f32", o[1], o[2], o[3]), ideal=hs + 3.5 + na * 2.4 + 3 * k, deps=[(ms[2], 0), (ms[3], 0), (c0, 0)])
        s.nodes += ms + [c0, c1]
    return s

def make_final(nb, name, mid=False):
    par = 1
    X0, X1, A_, B_ = sets_for(par)
    s = Seg(nb, name)
    s.qblock("t0", 0, A_, False, 0)
    s.pgen("t2", par, [[(0, 0, 0), (0, 1, 0)], [(0, 2, 0), (0, 3, 0)], [(0, 0, 1), (0, 1, 1)], [(0, 2, 1), (0, 3, 1)]], X0, X1, False)
    s.pblock("t4", par, 1, X0, X1, False, 0)
    s.pblock("t5", par, 2, X0, X1, False, 0)
    s.pblock("t7", par, 3, X0, X1, False, 0)
    n = len(s.mf); B = s.blk
    blk = [B["t2"], B["t4"], B["t5"], B["t7"]]
    u2 = s.unit(X1, X1, False, list(range(SPLIT[nb], nb)), lambda b: 0, lambda b: B["t0"][1] + 2, None, 0, B["t0"][1] - 8)
    k1 = s.first[("P", 1, 0)]
    u3 = s.unit(A_, X1, True, range(nb), lambda b: s.done[("t0", b)] + LAT, lambda b: s.first[("P", 1, b)] - 2, blk[0][1] - 1,
                B["t0"][1] - 2, k1 - 1, add_lo=k1, add_hi=k1 + 2 * nb, after=u2)
    s.reads([])
    k0 = s.chain([sop(f"s_add_u32 {s_ok[k]}, {s_ocur}, {k * 4096}", wr=[s_ok[k]]) for k in range(2 * nb)], 2, B["t0"][1])
    q = butterfly([lsum(b) for b in range(4)], "v_add_f32", lambda d, x, y: [valu("v_add_f32", LT, x, y), valu("v_rcp_f32", d, LT)], [RL(b) for b in range(4)])
    fo = opt.finoff
    cut = [min(blk[c][1] - 1 + (fo if c == 0 else opt.finoff2), n - 1) for c in range(4)]
    red = nodes_of(q, [x for b in range(nb) for x in u3[b][2:]], 0, cut[0], k1 + 2 * nb, 0.5)
    if mid:
        W0 = SET(0)[4]
        WAq = lambda c, k: SET(0)[4 + k]
        ad = [sop(f"s_sub_u32 {s_t0}, {s_mR3}, {s_mOS}", wr=[s_t0]), sop(f"s_sub_u32 {s_t1}, {s_mR2}, {s_mR3}", wr=[s_t1]),
              valu("v_add_u32", W0, s_t0, wa0)] + [valu("v_xor_b32", WA(k), 16 * k, W0) for k in (1, 2, 3)]
        ad += [valu("v_mbcnt_lo_u32_b32", RA, -1, 0), valu("v_mbcnt_hi_u32_b32", RA, -1, RA), valu("v_lshl_add_u32", RA, RA, 3, s_mR3),
               valu("v_xor_b32", VS1, 32, RA), valu("v_add_u32", SET(0)[11], s_t1, RA), valu("v_add_u32", SET(0)[12], s_t1, VS1)]
        RAq = lambda c, k: (SET(0)[11 + (k & 1)] if c >= 2 else (VS1 if k & 1 else RA))
        XO = 0; UN = lambda c: ("R2",) if c >= 2 else ("R3",)
    else:
        WAq = lambda c, k: WA(k)
        ad = [valu("v_xor_b32", WA(k), 16 * k, wa0) for k in (1, 2, 3)]
        ad += [valu("v_mbcnt_lo_u32_b32", RA, -1, 0), valu("v_mbcnt_hi_u32_b32", RA, -1, RA), valu("v_lshl_add_u32", RA, RA, 3, s_mOS),
               valu("v_xor_b32", VS1, 32, RA)]
        RAq = lambda c, k: VS1 if k & 1 else RA
        XO = (XB - vslot_addr(1, 0)) // 512; UN = lambda c: ("X",)
    prev = None
    for k, i in enumerate(ad):
        nd = Node(i, deps=[(prev, 1 if prev.ins.kind == "salu" else 0)] if prev else [], ideal=8 + k, dl=cut[0]); red.append(nd); prev = nd
    s.nodes += red
    pre = {c: [] for c in range(4)}; post = {c: [] for c in range(4)}
    if mid:
        t0e = B["t0"][1]
        def qchain(b, base, unit, tmp, lo, hi, dl, first_dep=None):
            nds = s.chain([vwait([unit])] + q_reads(b, base, unit, tmp), lo, hi, dl=dl, first_dep=first_dep)
            for k, nd in enumerate(nds[2:]): nd.e = max(nd.e, s.pairs[k // 2][1] + 1)
            return nds
        c2 = s.chain(dma_Q(s_mR2, s_qn[2], ("R2",)), 0, t0e - 2)
        r0 = qchain(0, s_mX, ("X",), vt0, t0e - 12, t0e + 2, t0e + 4)
        r1 = qchain(1, s_mR3, ("R3",), vt1, cut[0] - 14, cut[0] - 2, cut[0] - 1, first_dep=r0[-1])
        c3 = s.chain([mark_wait_lds(("q", 0, 7))] + dma_Q(s_mX, s_qn[3], ("X",)), t0e + 8, cut[0] - 2, dl=cut[0])
        c3[0].deps = [(r0[-1], 5), (c2[-1], 1)]
        c4 = s.chain([sop(f"s_sub_u32 {s_vptr}, {s_knext}, 32768", wr=[s_vptr])], 2, 4)
        pbg = pass_begin()
        q3w = [i for i in pbg if i.text.startswith(f"s_mov_b32 {s_qn[3]},")][0]
        pbg.remove(q3w); pbg.append(sop(f"s_mov_b32 {s_qn[3]}, {s_tab[3]}"))
        k1_ = s.chain(pbg, cut[0], n - 3, first_dep=k0[-1])
        k1_[0].deps += [(c2[-1], 1), (c4[0], 1)]; k1_[-1].deps += [(c3[-1], 1)]
        pre[2] = [vwait([("R2",)])] + q_reads(2, s_mR2, ("R2",), vt0) + [valu("v_add_u32", WAq(2, k), s_t1, WAq(2, k)) for k in range(4)]
        pre[2] += [mark_wait_lds(("o", 1, 2 * nb - 1)), barrier()]
        refill = [dma_K(4), dma_K(5), dma_K(6), dma_V(0, 0)]
        post[2] = refill[0]
        s.chain(refill[1] + refill[2], cut[2] + 2, n - 4, e=cut[2] + 1, first_dep=c3[-1])
        pre[3] = refill[3] + head_reads()
        post[3] = [vwait([("X",)])] + q_reads(3, s_mX, ("X",), vt1)
    temps = [V(48 + 4 * k, 4) for k in range(4)] + [O(b, db) for db in (2, 3) for b in range(4)] + [V(16 + 4 * k, 4) for k in range(4)]
    chunks = {}
    fst = (lambda c, k: store(c, k, nb)) if mid else (lambda c, k: fstore(c, k, nb))
    for c in range(4):
        tiles = [(dbl, b) for dbl in range(4) for b in range(nb)]
        src = {}; ti = 0
        for t_ in tiles:
            o = O(t_[1], 4 * c + t_[0])
            if o.k == 'a': src[t_] = temps[ti]; ti += 1
            else: src[t_] = o
        lo = cut[c - 1] + 1 if c else None
        early = set()
        if c:
            pn = None
            span = cut[c] - lo
            for k in range(2 * nb):
                ra = RAq(c - 1, k)
                i = Ins(f"ds_read2st64_b64 {PK(c - 1, k)}, {ra} offset0:{XO + k} offset1:{XO + 8 + k}", "ds", rd=[ra], wr=[PK(c - 1, k)], tag=("o", c - 1, k))
                i.lds_rd = UN(c - 1); i.private = True
                pn = Node(i, e=lo, dl=cut[c] - 1, ideal=lo + k, deps=[(pn, 0)] if pn else []); s.nodes.append(pn)
                st = fst(c - 1, k); st.need = [("o", c - 1, k)]
                s.nodes.append(Node(st, e=lo, dl=cut[c] - 1, ideal=lo + 6 + k * (span - 8) / (2 * nb), deps=[(pn, 5)]))
            budget = (opt.midb if mid else opt.finb) * nb // 4
            for t_ in tiles:
                o = O(t_[1], 4 * c + t_[0]); d = src[t_]
                e = max(lo, blk[c][0] + (t_[0] * nb + t_[1]) * 2 + 1 + LAT + 1)
                if o.k == 'a':
                    if budget < 4 or e > cut[c] - 3: break
                    s.nodes += [Node(acc_read(d[i], o[i]), e=e, dl=cut[c] - 1, ideal=e + i * 0.5) for i in range(4)]
                    early.add((t_, 'a')); budget -= 4
                else:
                    if budget < 6 or e > cut[c] - 4: break
                    ms = [Node(valu("v_mul_f32", o[i], o[i], RL(t_[1])), e=e, dl=cut[c] - 1, ideal=e + i * 0.5) for i in range(4)]
                    c0 = Node(valu("v_cvt_pk_bf16_f32", o[0], o[0], o[1]), dl=cut[c] - 1, ideal=e + 2, deps=[(ms[0], 0), (ms[1], 0)])
                    c1 = Node(valu("v_cvt_pk_bf16_f32", o[1], o[2], o[3]), dl=cut[c] - 1, ideal=e + 2.5, deps=[(ms[2], 0), (ms[3], 0), (c0, 0)])
                    s.nodes += ms + [c0, c1]; early.add((t_, 'c')); budget -= 6
        r = list(pre[c])
        if c == 0:
            c_ = valu("v_cmp_ngt_f32", "vcc", hex(L_LIMIT), LT); c_.wr.add(('s', 'vcc')); r.append(c_)
        held = None; wq = []
        for j, t_ in enumerate(tiles):
            dbl, b = t_; o = O(b, 4 * c + dbl); t4 = src[t_]
            if o.k == 'a' and (t_, 'a') not in early: r += [acc_read(t4[i], o[i]) for i in range(4)]
            if (t_, 'c') not in early:
                rlp = V(RL(b).n & ~1, 2); sel = RL(b).n & 1
                for h in range(2):
                    r.append(valu("v_pk_mul_f32", t4.sub(2 * h, 2), t4.sub(2 * h, 2), rlp, mods=f"op_sel:[0,{sel}] op_sel_hi:[1,{sel}]"))
                r += [valu("v_cvt_pk_bf16_f32", t4[0], t4[0], t4[1]), valu("v_cvt_pk_bf16_f32", t4[1], t4[2], t4[3])]
            if wq: r.append(wq.pop(0))
            if b % 2 == 0 and b + 1 < nb: held = t4
            else:
                if held is not None:
                    w = Ins(f"ds_write2st64_b64 {WAq(c, dbl)}, {held.sub(0, 2)}, {t4.sub(0, 2)} offset0:{XO + (b - 1) * 2} offset1:{XO + b * 2}", "ds",
                            rd=[WAq(c, dbl), held.sub(0, 2), t4.sub(0, 2)], tag=("w", c, j)); held = None
                else:
                    w = ds_write("ds_write_b64", WAq(c, dbl), t4.sub(0, 2), XO * 512 + b * 1024, tag=("w", c, j))
                w.lds_pw = UN(c); wq.append(w)
            if c == 0 and j == 2:
                r += [raw(f"s_cbranch_vccz L_noflag{nb}{'m' if mid else 'g'}"), sop(f"s_bitset1_b32 {s_flags}, {s_pass}"), label(f"L_noflag{nb}{'m' if mid else 'g'}")]
        r += wq
        if c < 3: r += post[c]
        if c == 3:
            for k in range(2 * nb):
                ra = RAq(3, k)
                i = Ins(f"ds_read2st64_b64 {PK(3, k)}, {ra} offset0:{XO + k} offset1:{XO + 8 + k}", "ds", rd=[ra], wr=[PK(3, k)], tag=("o", 3, k))
                i.lds_rd = UN(3); i.private = True; r.append(i)
            r += post[3]
            for k in range(2 * nb):
                st = fst(3, k); st.need = [("o", 3, k)]; r.append(st)
        chunks[cut[c]] = r
    s.chunks = chunks
    return s

def fstore(c, k, nb):
    st = store(c, k, nb)
    st.text = st.text[:st.text.index("offset:")] + f"offset:{c * 128} {opt.fmod if (c < opt.fq or nb == 3) else opt.fmod2}"
    return st

QORD = (0, 3, 2, 1)
TMP = lambda k: V(48 + 4 * (k % 12), 4)
def epi_order(nb):
    order = [(c, dbl, b) for c in QORD for dbl in ((2, 3, 0, 1) if c == 2 else range(4)) for b in range(nb)]
    if opt.pairmaj: order.sort(key=lambda t: (QORD.index(t[0]), t[2] // 2))
    return order, [t_ for t_ in order if O(t_[2], 4 * t_[0] + t_[1]).k == 'a']

def mark_wait_lds(tag):
    i = raw("s_nop 0", "nop"); i.need = [tag]; i.is_marker = True
    return i

def make_head(nb, name, nxt_name):
    X0, X1, A_, B_ = sets_for(1)
    s = Seg(nb, name)
    s.qblock("h0", 1, B_, True, 0)
    s.qblock("h1", 2, X0, True, 0)
    s.qblock("h2", 3, A_, False, 0)
    iter_blocks(s, 0, True, split=2)
    n = len(s.mf); B = s.blk
    tmp = SET(X1)
    pre = {}; nmc = {}
    part = []; emax = 0
    dlm = B["h2"][0] - 2
    for b in range(4):
        if b < nb:
            x = Sx(B_, b); e = s.done[("h0", b)] + LAT; emax = max(emax, e)
            n0 = Node(valu("v_max3_f32", tmp[b], x[0], x[1], x[2]), e=e, dl=dlm, ideal=e)
            n1 = Node(valu("v_max_f32", tmp[b], tmp[b], x[3]), e=e, dl=dlm, ideal=e + 0.5, deps=[(n0, 0)])
            s.nodes += [n0, n1]; part.append(n1)
        z = Node(valu("v_mov_b32", lsum(b), 0), e=0, dl=B["h0"][1], ideal=2 + b)
        s.nodes.append(z); pre[b] = [z]
    q = butterfly([tmp[b] for b in range(4)], "v_max_f32", lambda d, x, y: [valu("v_min_f32", d, Neg(x), Neg(y))], [Ct(b)[0] for b in range(4)])
    bf = nodes_of(q, part, 0, dlm, emax, 0.5)
    s.nodes += bf
    for b in range(nb):
        nmc[b] = tmp[8 + b]
        src = bf[-2] if b < 2 else bf[-1]
        n0 = Node(valu("v_mul_f32", nmc[b], s_c, Ct(b)[0]), dl=dlm, ideal=emax + 8 + b * 0.3, deps=[(src, 0)])
        s.nodes += [n0] + [Node(valu("v_mov_b32", Ct(b)[i], Ct(b)[0]), dl=dlm + 2 * b, ideal=emax + 12 + 2 * b + i * 0.5, deps=[(src, 0)]) for i in (1, 2, 3)]
        pre[b].append(n0)
    t0s = B["t0"][0]; t1s = B["t1"][0]
    assert opt.defer == 0
    t7s = B["t7"][0]; a0 = B["t6"][0] - 6; aw = (t7s - 4 - a0) / 4
    X = lambda k: (dict(ext=lambda b: O(b, 12 + k), add_lo=a0 + k * aw, add_hi=a0 + (k + 1) * aw) if k < opt.hext else {})
    dla = lambda k, d: (t7s - 3) if k < opt.hext else d
    w = opt.hwin
    u0 = s.unit(B_, B_, False, range(nb), lambda b: s.done[("h0", b)] + LAT, lambda b: t1s - 4, dla(0, None), B["h1"][0] + 10, B["h2"][0] + w[0], pre=pre, fma=nmc, **X(0))
    u1 = s.unit(X0, B_, True, range(nb), lambda b: s.done[("h1", b)] + LAT, lambda b: t1s - 2, dla(1, t1s - 2), B["h2"][0] + w[0], t0s + w[1], pre=pre, after=u0, fma=nmc, **X(1))
    for nd in s.nodes:
        if nd.ins.text.startswith("v_fma_f32"): nd.dl = min(nd.dl, t0s - 2); nd.ideal = min(nd.ideal, t0s - 6)
    u2 = s.unit(A_, A_, False, range(nb), lambda b: s.done[("h2", b)] + LAT, lambda b: s.first[("P", 1, b)] - 4, dla(2, None), t0s + w[1], t1s + w[2], **X(2))
    iter_units(s, 0, u2, lo3=t1s + w[2], x3=X(3), dl3=dla(3, None))
    prev = None
    for k, i in enumerate([valu("v_mbcnt_lo_u32_b32", vt1, -1, 0), valu("v_mbcnt_hi_u32_b32", vt1, -1, vt1), valu("v_lshlrev_b32", vt1, opt.tsh, vt1)]):
        nd = Node(i, deps=[(prev, 0)] if prev else [], ideal=8 + k); s.nodes.append(nd); prev = nd
    npair = len(s.pairs)
    nxt = first_pairs_of_iter(nb, 1, nxt_name)
    def tb(k, l):
        if opt.diag != 3: return l
        return [raw(f"s_memtime s[{90+4*k}:{91+4*k}]")] + l + [raw(f"s_memtime s[{92+4*k}:{93+4*k}]")]
    s.reads(nxt, barrier_before={12: tb(0, [vwait(units_of(0, 0), 0), barrier()]), 28: tb(1, [vwait(units_of(0, 1), 0), barrier()]),
                                 npair: tb(2, [vwait(units_of(1, 0), 0), barrier()])})
    g0 = s.bar_gap[12]; g1 = s.bar_gap[28]; g2 = s.bar_gap[npair]
    grp = [dma_V(0, 1), dma_V(0, 2), dma_V(0, 3), dma_K(7)][opt.ca7:] + [dma_K(0), dma_V(1, 0), dma_V(1, 1), dma_V(1, 2), dma_V(1, 3)]
    ca = s.chain(sum(grp[:opt.hca], []), 0, B["h0"][1] + 2 + (opt.hca - 4) * 2 * nb, dl=g1 - 30)
    rest = grp[opt.hca:]
    nearly = max(0, 6 - opt.hca)
    cb = s.chain(sum(rest[:nearly], []) + dma_K(1) + dma_K(2), B["t1"][0], B["t4"][0], e=g0 + 1, first_dep=ca[-1])
    cc = s.chain(sum(rest[nearly:], []) + dma_K(3), B["t4"][0] + 8, B["t6"][0] + 4, first_dep=cb[-1])
    cd = s.chain(dma_K(4) + dma_K(5) + dma_K(6) + dma_V(0, 0), B["t6"][0] + 6, n - 4, e=g1 + 1, first_dep=cc[-1])
    prev = None
    nd_ = opt.defer
    sts = [(c, k) for c in range(4 - nd_, 4) for k in range(8)]
    lo, hi = 4, s.first[("O", 3)] - 6
    for j, (c, k) in enumerate(sts):
        nd = Node(store(c, k), dl=s.first[("O", c)] - 3, ideal=min(lo + (hi - lo) * j / len(sts), s.first[("O", c)] - 6 - 4 * (7 - k)), deps=[(prev, 2)] if prev else [])
        s.nodes.append(nd); prev = nd
    head = [i for p in s.pairs[:3] for i in p[2]]
    return s, head

KF = lambda u, k: V(96 + 32 * u + 4 * k, 4)

def quick_kreads():
    r = []
    for u in range(3):
        for k in range(8):
            i = ds_read("ds_read_b128", KF(u, k), kaddr, kslot_addr(1 + u) + k * 256, tag=("kf", u, k)); i.lds_rd = ("K", 1 + u)
            r.append(i)
    return r

def quick_pro(b, nb):
    X0, X1, A_, B_ = sets_for(1)
    s = Seg(1, f"qp{b}")
    for u, dst in enumerate((B_, X0, A_)):
        st = len(s.mf)
        for k in range(8):
            d = Sx(dst, b)
            s.mf.append(mfma(d, KF(u, k), Q(b, k), d if k else 0, need=[("kf", u, 7), ("q", b, k | 1)]))
        s.blk[f"h{u}"] = (st, len(s.mf))
    n = len(s.mf)
    x = Sx(B_, b); ta, tb, nm = SET(X1)[0], SET(X1)[1], SET(X1)[2]
    seq = [valu("v_max3_f32", ta, x[0], x[1], x[2]), valu("v_max_f32", ta, ta, x[3]), valu("v_mov_b32", tb, ta),
           perm("v_permlane16_swap_b32", ta, tb), valu("v_max_f32", ta, ta, tb), valu("v_mov_b32", tb, ta),
           perm("v_permlane32_swap_b32", ta, tb), valu("v_min_f32", Ct(b)[0], Neg(ta), Neg(tb)), valu("v_mul_f32", nm, s_c, Ct(b)[0])]
    prev = None; nds = []
    for k, i in enumerate(seq):
        nd = Node(i, e=7 + LAT, ideal=7 + LAT + k * 0.5, deps=[(prev, 2 if i.op.startswith("v_permlane") else 0)] if prev else [])
        nds.append(nd); prev = nd
    z = Node(valu("v_mov_b32", lsum(b), 0), ideal=0)
    s.nodes += nds + [z] + [Node(valu("v_mov_b32", Ct(b)[i], Ct(b)[0]), ideal=n + i, deps=[(nds[7], 0)]) for i in (1, 2, 3)]
    pre = {b: [nds[8], z]}; f = {b: nm}
    u0 = s.unit(B_, B_, False, [b], lambda _: 0, lambda _: n - 1, None, 16, 20, pre=pre, fma=f)
    s.unit(X0, B_, True, [b], lambda _: 15 + LAT, lambda _: n - 1, n - 1, 20, 23, pre=pre, after=u0, fma=f)
    if b < SPLIT[nb]:
        s.unit(A_, A_, False, [b], lambda _: n - 1, lambda _: n - 1, None, 24, 27, pre=pre, fma=f)
    else:
        y = Sx(A_, b)
        s.nodes += [Node(valu("v_add_f32", y[i], y[i], Ct(b)[0]), e=n - 1, ideal=30 + i, deps=[(nds[7], 0)]) for i in range(4)]
    return s

def make_it0(nb, name, nxt_name):
    X0, X1, A_, B_ = sets_for(0)
    s = Seg(nb, name)
    iter_blocks(s, 0, True, split=(1 if nb == 3 else 0))
    n = len(s.mf); B = s.blk
    u2 = s.unit(X1, X1, False, list(range(SPLIT[nb], nb)), lambda b: 0, lambda b: B["t0"][1] + 2, None, 0, B["t0"][1] - 4)
    iter_units(s, 0, u2)
    prev = None
    for k, i in enumerate([valu("v_mbcnt_lo_u32_b32", vt1, -1, 0), valu("v_mbcnt_hi_u32_b32", vt1, -1, vt1), valu("v_lshlrev_b32", vt1, opt.tsh, vt1),
                           valu("v_mov_b32", lsum(3), 0)]):
        nd = Node(i, deps=[(prev, 0)] if prev else [], ideal=B["t6"][0] + k); s.nodes.append(nd); prev = nd
    npair = len(s.pairs)
    s.reads(first_pairs_of_iter(nb, 1, nxt_name), barrier_before={16: [vwait(units_of(0, 1), 0), barrier()], npair: [vwait(units_of(1, 0), 0), barrier()]})
    g1 = s.bar_gap[16]
    ca = s.chain(dma_V(1, 0) + dma_V(1, 1) + dma_V(1, 2), 2, B["t0"][1] + 2)
    cb = s.chain(dma_V(1, 3) + dma_K(3), B["t2"][0] + 6, g1 - 2, first_dep=ca[-1])
    s.chain(dma_K(4) + dma_K(5) + dma_K(6) + dma_V(0, 0), B["t4"][0] + 14, n - 8, e=g1 + 1, first_dep=cb[-1])
    return s, [i for p in s.pairs[:3] for i in p[2]]

def quick_start(nb, q_after):
    out = []; q = []
    def add(seq):
        nonlocal q
        o, q = lin(seq, q); out.extend(o)
    def seg(sg, nxt=()):
        nonlocal q
        o, q = flat(sg.build(), q, list(nxt)); out.extend(o)
    add([barrier()] + quick_kreads())
    q = [("q", 0, k) for k in range(8)] + q
    seg(quick_pro(0, nb))
    add([vwait([("R2",)])] + q_reads(1, s_mR2, ("R2",), vt1) + dma_K(4) + dma_K(5) + dma_K(6) + dma_V(0, 0) + [waitcnt(None, 0), barrier()])
    add(dma_V(0, 1) + dma_V(0, 2) + dma_V(0, 3) + dma_K(7))
    seg(quick_pro(1, nb))
    add(dma_K(0) + dma_K(1) + dma_K(2) + pass_begin())
    it0, hr = make_it0(nb, "z0", "i1")
    add([vwait([("OS",)])] + q_reads(2, s_mOS, ("OS",), vt0) + [vwait(units_of(0, 0), 0), barrier()] + hr)
    seg(quick_pro(2, nb))
    G = it0.build()
    print("quick it0 overflow", it0.over, file=sys.stderr)
    s1 = Seg(nb, "i1"); s1.qblock("t0", 0, 0, False, 0)
    o, q = flat(G, q, s1.mf[0].need); out.extend(o)
    assert q == q_after, (q, q_after)
    return fix_hazards(out)

def perm(op, a, b):
    i = valu(op, a, b, extra_rd=[a], extra_wr=[b]); i.cost = 8
    return i

def acc_read(d, a):
    i = Ins(f"v_accvgpr_read_b32 {d}, {a}", "acc", rd=[a], wr=[d]); return i

def make_epi(nb, final):
    r = []
    c_ = valu("v_cmp_ngt_f32", "vcc", hex(L_LIMIT), LT); c_.wr.add(('s', 'vcc')); r.append(c_)
    tag = f"{nb}{'f' if final else ''}"
    flagl = [raw(f"s_cbranch_vccz L_noflag{tag}"), sop(f"s_bitset1_b32 {s_flags}, {s_pass}"), label(f"L_noflag{tag}")]
    def fin_only(st):
        if final:
            st.text = st.text[:st.text.index("offset:")] + f"offset:{st.quarter * 128} {opt.fmod}"
            return [st]
        return [st] if st.quarter < 4 - opt.defer else []
    def cluster(ins): return [] if final else ins
    order, acct = epi_order(nb)
    slot = {t_: k for k, t_ in enumerate(acct)}
    accq = [(t_, i) for t_ in acct for i in range(4)]
    nacc = 4 * HOIST[nb][0]; done_acc = 0
    rdq = []; stq = []; oth = []; wq = []
    dq = [dma_K(4), dma_K(5), dma_K(6), dma_V(0, 0)] if opt.r3epi else []
    d0 = 6 + len(order) * opt.dq0 // 100
    dstep = (len(order) * 3 // 4) // 4
    held = None
    for j, (c, dbl, b) in enumerate(order):
        o = O(b, 4 * c + dbl)
        want = min(len(acct) * 4, -(-(j + 1) * len(acct) * 4 // (order.index(acct[-1]) - 2)))
        while nacc < len(acct) * 4 and (nacc < want or (o.k == 'a' and nacc < 4 * (slot[(c, dbl, b)] + 1))):
            if nacc // 4 >= done_acc + 12:
                assert not (o.k == 'a' and nacc < 4 * (slot[(c, dbl, b)] + 1)), "out of temps"
                break
            t_, i = accq[nacc]; nacc += 1
            r.append(acc_read(TMP(slot[t_])[i], O(t_[2], 4 * t_[0] + t_[1])[i]))
        t4 = TMP(slot[(c, dbl, b)]) if o.k == 'a' else o
        rlp = V(RL(b).n & ~1, 2); sel = RL(b).n & 1
        if j >= HOIST[nb][1]:
            for h in range(2):
                r.append(valu("v_pk_mul_f32", t4.sub(2 * h, 2), t4.sub(2 * h, 2), rlp, mods=f"op_sel:[0,{sel}] op_sel_hi:[1,{sel}]"))
            r += [valu("v_cvt_pk_bf16_f32", t4[0], t4[0], t4[1]), valu("v_cvt_pk_bf16_f32", t4[1], t4[2], t4[3])]
        if b % 2 == 0 and b + 1 < nb:
            held = (t4, o.k == 'a')
        else:
            na = int(o.k == 'a')
            if held is not None:
                w = Ins(f"ds_write2st64_b64 {WA(dbl)}, {held[0].sub(0, 2)}, {t4.sub(0, 2)} offset0:{(b - 1) * 2} offset1:{b * 2}", "ds",
                        rd=[WA(dbl), held[0].sub(0, 2), t4.sub(0, 2)], tag=("w", j))
                na += held[1]; held = None
            else:
                w = ds_write("ds_write_b64", WA(dbl), t4.sub(0, 2), b * 1024, tag=("w", j))
            w.lds_pw = ("OS",); wq.append((w, na))
        if j == 4: r += flagl
        if dq and j >= d0 and (j - d0) % dstep == 0: r += cluster(dq.pop(0))
        last = (j + 1) % (4 * nb) == 0; pos = j // (4 * nb)
        def back(c, ks):
            for k in ks:
                ra = VS1 if k & 1 else RA
                i = Ins(f"ds_read2st64_b64 {PK(c, k)}, {ra} offset0:{k} offset1:{8 + k}", "ds", rd=[ra], wr=[PK(c, k)], tag=("o", c, k))
                i.lds_rd = ("OS",); i.private = True; i.pr = k // 4
                rdq.append(i)
        if opt.pairmaj:
            if wq:
                while any(x.pr == b // 2 for x in rdq): r.append(rdq.pop(0))
                w, na = wq.pop(0); r.append(w); done_acc += na
            elif rdq: r.append(rdq.pop(0))
            if nb == 3 and b == 2 and rdq: r.append(rdq.pop(0))
            uend = j + 1 == len(order) or order[j + 1][0] != c or order[j + 1][2] // 2 != b // 2
            if stq and j % 2 == 0 and stq[0][0] <= j: r += fin_only(stq.pop(0)[1])
            elif oth and j % 4 == 1: r += cluster(oth.pop(0))
            if uend:
                ks = [k for k in range(2 * nb) if k // 4 == b // 2]
                back(c, ks)
                for n_, k in enumerate(ks):
                    st = store(c, k, nb); st.need = [("o", c, k)]; stq.append((j + 4 + 2 * n_, st))
        else:
            for _ in range(opt.epi_rd):
                if rdq: r.append(rdq.pop(0))
            if not rdq or last:
                r += rdq; rdq.clear()
                k_ = 0
                while wq and (k_ < 1 or last):
                    w, na = wq.pop(0); r.append(w); done_acc += na; k_ += 1
            if stq and j % 2 == 1 and stq[0][0] <= j: r += fin_only(stq.pop(0)[1])
            elif oth and j % 2 == 0 and not rdq:
                r += cluster(oth.pop(0))
            if last:
                back(c, range(2 * nb))
                for k in range(2 * nb):
                    st = store(c, k, nb); st.need = [("o", c, k if (k < 3 or pos == 3) else 2 * nb - 1)]; stq.append((j + 3 + k // opt.epi_rd, st))
        if last:
            def halves(l): return [l[:len(l) - 4], l[len(l) - 4:]]
            if opt.r3epi:
                if pos == 0: oth += [head_reads()]
                if pos == 1: oth += halves([vwait([("R2",)])] + q_reads(2, s_mR2, ("R2",), vt0))
                if pos == 2: oth += halves([vwait([("X",)])] + q_reads(3, s_mX, ("X",), vt1))
            else:
                if c == 0: oth += halves([vwait([("X",)])] + q_reads(3, s_mX, ("X",), vt0))
                if c == 1: oth += [head_reads()]
    assert not oth and not dq
    r += rdq
    for x in stq: r += fin_only(x[1])
    return r

def head_reads():
    s = Seg(4, "hd"); s.qblock("h0", 1, 0, True, 0)
    return [i for p in s.pairs[:3] for i in p[2]]

def store(c, k, nb=None):
    data = PK(c, k)
    mod = {3: opt.omod3, 4: opt.omod4}.get(nb) or opt.omod
    vo = vsto
    i = Ins(f"buffer_store_dwordx4 {data}, {vo}, {sO}, {s_ok[k]} offen offset:{c * 128} {mod}".rstrip(), "vmem", rd=[data, vo, sO, s_ok[k]])
    i.wide_store = True; i.data = data.set(); i.vm = True; i.quarter = c; i.k = k
    return i

def lin(seq, pre=()):
    out = []; q = list(pre)
    for i in seq:
        if i.need:
            idx = -1
            for t in i.need:
                if t in q: idx = max(idx, len(q) - 1 - q[::-1].index(t))
            if idx >= 0:
                n = min(len(q) - 1 - idx, 15)
                out.append(waitcnt(None, n)); q = q[idx + 1:]
        if getattr(i, "lgw", None) is not None: q = q[len(q) - i.lgw:] if i.lgw else []
        if getattr(i, "is_marker", False): continue
        if i.kind == "ds" and not getattr(i, "optional", False): q.append(i.tag)
        out.append(i)
    return out, q

def flat(gaps, pre, nxt_need):
    out = []; q = list(pre)
    def wf(need):
        nonlocal q
        idx = -1
        for t in need:
            if t in q: idx = max(idx, len(q) - 1 - q[::-1].index(t))
        if idx < 0: return
        n = min(len(q) - 1 - idx, 15)
        out.append(waitcnt(None, n)); q = q[idx + 1:]
    for g, (m, sc, oth) in enumerate(gaps):
        wf(m.need)
        out.append(m)
        has_l0 = any(getattr(i, "lgw", None) == 0 for i in sc)
        if not has_l0:
            wf(gaps[g + 1][0].need if g + 1 < len(gaps) else nxt_need)
        for i in sc + oth:
            if i.need: wf(i.need)
            if getattr(i, "lgw", None) == 0: q = []
            if getattr(i, "is_marker", False): continue
            if i.kind == "ds": q.append(i.tag)
            out.append(i)
    return out, q

E32 = ("v_mul_f32", "v_add_f32", "v_exp_f32", "v_mov_b32", "v_max_f32", "v_xor_b32", "v_rcp_f32")
def isize(i):
    t = i.text
    if i.kind == "label": return 0
    op = t.split()[0]
    if op.startswith("s_"):
        import re
        m = re.findall(r"[ ,](0x[0-9a-f]+|-?\d+)\s*$", t)
        if op in ("s_waitcnt", "s_barrier", "s_nop") or op.startswith("s_cbranch") or op == "s_branch": return 4
        if m and not (-16 <= int(m[0], 0) <= 64): return 8
        return 4
    if op in E32 or op in ("v_add_u32", "v_lshlrev_b32", "v_permlane16_swap_b32", "v_permlane32_swap_b32"):
        return 8 if "-v" in t else 4
    return 8

def align8(seq, start=0):
    pos = start; cand = None
    for i in seq:
        if i.kind == "mfma":
            if pos % 8 and cand is not None:
                op = cand.text.split()[0]; cand.text = cand.text.replace(op, op + "_e64", 1); pos += 4
            cand = None
        sz = isize(i)
        if sz == 4 and i.text.split()[0] in E32 and cand is None: cand = i
        pos += sz
    return pos

def strip_clusters(seq, lab="L_sk"):
    out = []; skip = False
    for i in seq:
        if i.kind == "label" and i.text.startswith(lab): skip = False
        if not skip: out.append(i)
        if i.text.startswith("s_cbranch") and i.text.split()[1].startswith(lab): skip = True
    return out

def label(n): return Ins(n + ":", "label", states=0, cost=0)

def stamp(k):
    if not opt.diag: return []
    return [raw(f"s_memrealtime {s_ts}"), raw("s_memtime s[66:67]"), raw("s_waitcnt lgkmcnt(0)", "wait0"), raw(f"s_mov_b32 m0, {s_tsp}"), raw("s_nop 1"),
            raw(f"v_writelane_b32 v0, {s_ts.sub(0)}, m0"), raw(f"s_add_u32 m0, m0, 32"), raw("s_nop 1"), raw("v_writelane_b32 v0, s66, m0"),
            raw(f"s_add_u32 {s_tsp}, {s_tsp}, 1")]

def retag(q, old, new):
    return [tuple(new if x == old else x for x in t) if len(t) > 1 else t for t in q]

def variant(nb):
    P = {}
    hd, head = make_head(nb, "hd", "i1")
    i1 = make_mid(nb, 1, "i1", "i2")
    i2 = make_mid(nb, 2, "i2", "i1")
    i6 = make_mid(nb, 6, "i2", "i1", special=True)
    i7 = make_last(nb, "i1")
    fin = make_final(nb, "i1")
    mid = make_final(nb, "i1", mid=True)
    SG = dict(hd=hd, i1=i1, i2=i2, i6=i6, i7=i7, fin=fin, mid=mid)
    G = {k: s.build() for k, s in SG.items()}
    for g, ch in fin.chunks.items(): G["fin"][g][2].extend(ch)
    for g, ch in mid.chunks.items(): G["mid"][g][2].extend(ch)
    print(f"nb={nb} overflow cycles:", {k: s.over for k, s in SG.items()}, file=sys.stderr)
    P["hd"], q0 = flat(G["hd"], [], G["i1"][0][0].need)
    P["i1"], q1 = flat(G["i1"], q0, G["i2"][0][0].need)
    P["i2"], q2 = flat(G["i2"], q1, G["i1"][0][0].need)
    assert q2 == q0, (q0, q2)
    P["q0"] = q0
    for k in ("i1", "i2"):
        if opt.abl & 1024: P[k] = [i for i in P[k] if not i.text.startswith("v_add_f32")]
        if opt.abl & 2048: P[k] = [i for i in P[k] if not (i.kind == "ds" and "b128" in i.text)]
        if opt.abl & 4096: P[k] = [i for i in P[k] if not (i.kind == "ds" and "tr_b16" in i.text)]
        if opt.abl & 16: P[k] = [i for i in P[k] if not getattr(i, "bar", False)]
        if opt.abl & 32: P[k] = [i for i in P[k] if i.kind != "vmem"]
        if opt.abl & 64: P[k] = [i for i in P[k] if i.kind not in ("valu", "trans")]
        if opt.abl & 128: P[k] = [i for i in P[k] if i.kind != "ds"]
        if opt.abl & 256: P[k] = [i for i in P[k] if not (i.kind == "salu" and "m0" in i.text)]
    P["i6"], q = flat(G["i6"], q1, G["i7"][0][0].need)
    P["fin"], _ = flat(G["fin"], q, [])
    P["mid"], _ = flat(G["mid"], q, [])
    P["i7"], q = flat(G["i7"], q, [])
    P["epf"], _ = lin(make_epi(nb, True), q)
    ep = make_epi(nb, False)
    if opt.abl & 8192: ep = [i for i in ep if not getattr(i, "dma_wr", None)]
    if opt.abl & 16384: ep = [i for i in ep if getattr(i, "vmneed", None) is None]
    if opt.abl & 1: ep = [i for i in ep if not i.text.startswith("buffer_store")]
    if opt.abl & 2: ep = [i for i in ep if getattr(i, "lds_rd", None) != ("OS",)]
    if opt.abl & 4: ep = [i for i in ep if not i.text.startswith("ds_write")]
    if opt.abl & 8: ep = [i for i in ep if i.kind != "acc"]
    P["epi"], q = lin(ep, q)
    return P

def resolve_vm(traces):
    ws = set()
    for tr in traces:
        n = 0; last = {}
        for i in tr:
            if getattr(i, "vmneed", None) is not None:
                idx = max([last.get(u, -1) for u in i.vmneed])
                if idx >= 0: i.vmauto = min(i.vmauto, n - 1 - idx)
                ws.add(i)
            if getattr(i, "vm", False):
                u = getattr(i, "dma_wr", None)
                if u: last[u] = n
                n += 1
    for i in ws:
        i.vmw = i.vmauto
        i.text = f"s_waitcnt vmcnt({i.vmw})" + (f" lgkmcnt({i.lgw})" if i.lgw is not None else "")

def check_trace(trace):
    vm = []
    lg = []
    state = {}
    epoch = 0
    ALIAS = {("R2",): [("V", 0, 1), ("V", 0, 2), ("V", 0, 3), ("K", 7)], ("OS",): [("V", 1, c) for c in range(4)],
             ("R3",): [("K", 4), ("K", 5), ("K", 6), ("V", 0, 0)]}
    def phys(u): return ALIAS.get(u, [u])
    wr_land = {}; wr_pend = {}; rd_done = {}; rd_pend = {}; owner = {}
    errs = []
    cur_m0 = None
    for k, i in enumerate(trace):
        if not getattr(i, "vm", False):
            for o in vm[:len(vm) - (i.vmw if getattr(i, "vmw", None) is not None else 0)] if False else vm:
                if o.wr & (i.rd | i.wr) and getattr(i, "vmw", None) is None: errs.append((k, "register of a pending load", o.text, i.text))
        if M0 in i.wr: cur_m0 = i
        if getattr(i, "m0ref", None) is not None and cur_m0 is not i.m0ref: errs.append((k, "stale M0", i.text))
        if getattr(i, "vmw", None) is not None:
            while len(vm) > i.vmw:
                o = vm.pop(0)
                u = getattr(o, "dma_wr", None)
                if u: wr_pend[u] -= 1; wr_land[u] = epoch
        if getattr(i, "lgw", None) is not None or i.kind == "wait0":
            n = 0 if i.kind == "wait0" else i.lgw
            while len(lg) > n:
                o = lg.pop(0)
                u = getattr(o, "lds_rd", None) or getattr(o, "lds_pw", None)
                if u: rd_pend[u] -= 1; rd_done[u] = epoch
        if getattr(i, "bar", False): epoch += 1
        u = getattr(i, "lds_rd", None)
        if u:
            if True:
                if wr_pend.get(u, 0) > 0: errs.append((k, "read of unit with pending DMA", u, i.text))
                elif not getattr(i, "private", False) and wr_land.get(u, 10**9) >= epoch: errs.append((k, "read without barrier after landing", u, i.text))
            for p in phys(u):
                if owner.get(p) != u: errs.append((k, "read of unit owned by", owner.get(p), u, i.text))
        w = getattr(i, "dma_wr", None) or getattr(i, "lds_pw", None)
        if w:
            for p in phys(w):
                o = owner.get(p)
                if o is not None:
                    priv = (o == w and w in (("X",), ("R2",), ("R3",), ("OS",)))
                    if rd_pend.get(o, 0) > 0 and not (getattr(i, "lds_pw", None) and o == w):
                        errs.append((k, "write over unit with reads in flight", o, w, i.text))
                    if not priv and rd_done.get(o, -1) >= epoch: errs.append((k, "write without barrier after reads", o, w, i.text))
                    if o != w and wr_pend.get(o, 0) > 0: errs.append((k, "write over pending dma", o, w))
                    if o != w and wr_land.get(o, -1) >= epoch: errs.append((k, "write over unit landed w/o barrier", o, w))
                owner[p] = w
        if i.kind == "ds":
            lg.append(i)
            u = getattr(i, "lds_rd", None) or getattr(i, "lds_pw", None)
            if u: rd_pend[u] = rd_pend.get(u, 0) + 1
        if getattr(i, "vm", False):
            vm.append(i)
            u = getattr(i, "dma_wr", None)
            if u: wr_pend[u] = wr_pend.get(u, 0) + 1
            assert len(vm) <= 63, "vmcnt overflow"
    return errs

def cross_check(traces):
    ALIAS = {("R2",): [("V", 0, 1), ("V", 0, 2), ("V", 0, 3), ("K", 7)], ("OS",): [("V", 1, c) for c in range(4)],
             ("R3",): [("K", 4), ("K", 5), ("K", 6), ("V", 0, 0)]}
    allg = []
    for tr in traces:
        gens = {}; epoch = 0; vm = []; lg = []
        for i in tr:
            if getattr(i, "vmw", None) is not None:
                while len(vm) > i.vmw:
                    for g in vm.pop(0): g["land"] = epoch
            if getattr(i, "lgw", None) is not None or i.kind == "wait0":
                n = 0 if i.kind == "wait0" else i.lgw
                while len(lg) > n:
                    for g in lg.pop(0): g["done"] = epoch
            if getattr(i, "bar", False): epoch += 1
            w = getattr(i, "dma_wr", None) or getattr(i, "lds_pw", None); r = getattr(i, "lds_rd", None)
            touched = []
            u = w or r
            if u and u != ("X",):
                for p in ALIAS.get(u, [u]):
                    l = gens.setdefault(p, [])
                    if w and (not l or l[-1]["own"] != u or (l[-1]["rd0"] is not None and u not in ALIAS)):
                        l.append(dict(own=u, wr0=epoch, land=10**9, rd0=None, done=-1))
                    g = l[-1]
                    if r and g["rd0"] is None: g["rd0"] = epoch
                    if r or getattr(i, "lds_pw", None): g["done"] = 10**9
                    if getattr(i, "dma_wr", None): g["land"] = 10**9
                    touched.append(g)
            if i.kind == "ds": lg.append(touched)
            if getattr(i, "vm", False): vm.append(touched)
        allg.append((gens, epoch))
    assert len(set(e for _, e in allg)) == 1, "barrier counts differ"
    for p in allg[0][0]:
        n = len(allg[0][0][p])
        assert all(len(g[p]) == n and [x["own"] for x in g[p]] == [x["own"] for x in allg[0][0][p]] for g, _ in allg), ("generations differ", p)
        for k in range(n):
            G = [g[p][k] for g, _ in allg]
            if G[0]["own"] not in ALIAS and G[0]["rd0"] is not None:
                assert max(x["land"] for x in G) < min(x["rd0"] for x in G), ("cross RAW", p, k, G)
            if k + 1 < n:
                N = [g[p][k + 1] for g, _ in allg]
                assert max(x["done"] for x in G) < min(x["wr0"] for x in N), ("cross WAR", p, k, G, N)
                if G[0]["own"] != N[0]["own"] and any(x["land"] != 10**9 or x["rd0"] is not None for x in G) and G[0]["own"] != ("OS",):
                    assert max(x["land"] for x in G) < min(x["wr0"] for x in N), ("cross WAW", p, k, G, N)

THR = {}
HELP = {}
RANK = {}
HELPN = {}
PART = {}
def schedule_table(mode):
    tab = {}
    if mode == "simple":
        for wg in range(256):
            x = wg & 7; idx = wg >> 3
            head = x * 16 + (idx >> 1); base = 41 * (idx & 1)
            tab[wg] = [(head, base, 12), (head, base + 12, 16), (head, base + 28, 13)]
    elif mode == "share":
        for x in range(8):
            rounds = [[], [], []]
            def add(r, h, start, sizes):
                for sz in sizes:
                    rounds[r].append((x * 16 + h, start, sz)); start += sz
                return start
            for h in range(10):
                st = add(0, h, 0, [12, 12, 12]); add(1 if h < 6 else 2, h, st, [15, 15, 16])
            st = add(0, 10, 0, [12, 12]); st = add(1, 10, st, [15, 14]); add(2, 10, st, [15, 14])
            for h in range(11, 16):
                add(1 if h < 13 else 2, h, 0, [14, 14, 14, 14, 13, 13])
            assert all(len(r) == 32 for r in rounds), [len(r) for r in rounds]
            for idx in range(32):
                tab[idx * 8 + x] = [rounds[0][idx], rounds[1][idx], rounds[2][idx]]
    elif mode.startswith("g6"):
        orders = {"A": (0, 1, 2), "B": (1, 0, 2), "C": (2, 1, 0), "D": (2, 0, 1)}
        pat = mode.split("_")[1]
        rot = pat.startswith("x"); pat = pat.lstrip("x")
        for x in range(8):
            for g in range(6):
                o = orders[pat[(g + (x if rot else 0)) % len(pat)]] if not pat.startswith("X") else orders["ABC"[x % 3]]
                if g < 5:
                    ha, hb, hc = [x * 16 + 3 * g + i for i in range(3)]
                    r0 = [(ha, 0, 12), (ha, 12, 12), (ha, 24, 12), (hb, 0, 12), (hb, 12, 12), (hb, 24, 12)]
                    r1 = [(ha, 36, 15), (ha, 51, 15), (ha, 66, 16), (hb, 36, 15), (hb, 51, 15), (hb, 66, 16)]
                    r2 = [(hc, 0, 14), (hc, 14, 14), (hc, 28, 13), (hc, 41, 14), (hc, 55, 14), (hc, 69, 13)]
                    n = 6
                else:
                    h = x * 16 + 15
                    r0 = [(h, 0, 12), (h, 12, 12)]; r1 = [(h, 24, 15), (h, 39, 15)]; r2 = [(h, 54, 14), (h, 68, 14)]
                    n = 2
                R = [r0, r1, r2]
                for i in range(n):
                    tab[(6 * g + i) * 8 + x] = [R[o[0]][i], R[o[1]][i], R[o[2]][i]]
    elif mode.startswith("t3"):
        _, lo, so, th = mode.split("_")
        th = [int(x, 16) for x in th.split(".")]
        alt = mode.startswith("t3a")
        if alt:
            LS = [i for i in range(32) if not i & 4]; SS = [i for i in range(32) if i & 4]
        else:
            LS = [6 * g + i for g in range(5) for i in range(3)] + [30]; SS = [6 * g + 3 + i for g in range(5) for i in range(3)] + [31]
        for x in range(8):
            H = [x * 16 + i for i in range(16)]
            T3 = lambda h: [(h, 0, 12), (h, 12, 12), (h, 24, 12)]
            T4 = lambda h: [(h, 36, 16), (h, 52, 16), (h, 68, 14)]
            for g in range(5):
                a, b, c = H[3 * g], H[3 * g + 1], H[3 * g + 2]
                Lt = {"3": T3(a), "4": T4(a), "5": T4(b)[::-1]}
                St = {"3": T3(c), "2": T3(b), "4": T4(c)}
                lord = lo.split(".")[(g + x) % len(lo.split("."))]; sord = so.split(".")[(g + x) % len(so.split("."))]
                for i in range(3):
                    wl = LS[3 * g + i] * 8 + x; wsn = SS[3 * g + i] * 8 + x
                    tab[wl] = [Lt[k][i] for k in lord]
                    tab[wsn] = [St[k][i] for k in sord]
                    THR[wsn] = th[(g + x) % len(th)]
                    RANK[wl] = i; RANK[wsn] = i
                    h0, st0, _n = Lt[lord[0]][i]
                    HELP[wsn] = (h0 * SQ + st0 * 16) * 512
            h = H[15]
            tab[LS[15] * 8 + x] = [(h, 0, 12), (h, 36, 16), (h, 68, 14)]
            if alt:
                tab[SS[15] * 8 + x] = [(h, 52, 16), (h, 12, 12), (h, 24, 12)]
                THR[SS[15] * 8 + x] = th[0]; HELP[SS[15] * 8 + x] = h * SQ * 512
            else:
                tab[SS[15] * 8 + x] = [(h, 12, 12), (h, 52, 16), (h, 24, 12)]
    elif mode.startswith("t6"):
        _, lo, th = mode.split("_")
        th = [int(x, 16) for x in th.split(".")]
        LS = [i for i in range(32) if not i & 4]; SS = [i for i in range(32) if i & 4]
        for x in range(8):
            T3 = lambda h: [(h, 0, 12), (h, 12, 12), (h, 24, 12)]
            T4 = lambda h, r: [[(h, 36, 16), (h, 52, 16), (h, 68, 14)][(i + r) % 3] for i in range(3)]
            for g in range(5):
                pat = lo.split(".")[(g + x) % len(lo.split("."))]
                for i in range(3):
                    wl = LS[3 * g + i] * 8 + x; wsn = SS[3 * g + i] * 8 + x
                    tab[wl] = []; tab[wsn] = []
                    for r in range(3):
                        h = x * 16 + 3 * g + r
                        a, b = T3(h)[i], T4(h, r)[i]
                        tab[wl].append(a if pat[r] == "3" else b); tab[wsn].append(b if pat[r] == "3" else a)
                    THR[wsn] = th[(g + x) % len(th)]; RANK[wl] = i; RANK[wsn] = i
                    HELP[wsn] = (tab[wl][0][0] * SQ + tab[wl][0][1] * 16) * 512; HELPN[wsn] = tab[wl][0][2]; PART[wsn] = wl
            h = x * 16 + 15; pat = lo.split(".")[0]
            i3 = [(h, 0, 12), (h, 12, 12), (h, 24, 12)]; i4 = [(h, 36, 16), (h, 52, 16), (h, 68, 14)]
            wl = LS[15] * 8 + x; wsn = SS[15] * 8 + x
            tab[wl] = [(i3 if pat[r] == "3" else i4)[r] for r in range(3)]
            tab[wsn] = [(i4 if pat[r] == "3" else i3)[r] for r in range(3)]
            THR[wsn] = th[0]; HELP[wsn] = (h * SQ + tab[wl][0][1] * 16) * 512; HELPN[wsn] = tab[wl][0][2]; PART[wsn] = wl
    cov = {}
    for wg, l in tab.items():
        for h, st, n in l:
            assert 12 <= n <= 16
            for b in range(st, st + n):
                assert (h, b) not in cov; cov[(h, b)] = wg
    assert len(cov) == 128 * 82
    return tab

def setup_code():
    L = []; A = L.append
    if opt.diag or opt.padto: A("s_memrealtime s[100:101]")
    A("s_cmp_ge_u32 s2, 256")
    A("s_cbranch_scc1 L_exit")
    A("s_load_dwordx4 s[72:75], s[0:1], 0")
    A("s_load_dwordx4 s[76:79], s[0:1], 16")
    if opt.diag: A("s_load_dwordx2 s[64:65], s[0:1], 40")
    A("s_getpc_b64 s[4:5]")
    A("L_pc:")
    A("s_lshl_b32 s3, s2, 6")
    A("s_add_u32 s3, s3, L_table-L_pc")
    A("s_add_u32 s46, s4, s3")
    A("s_addc_u32 s47, s5, 0")
    A("s_load_dwordx16 s[80:95], s[46:47], 0")
    A(f"s_mov_b32 {sC[0]}, s4\ns_mov_b32 {sC[1]}, s5\ns_mov_b32 {sC[2]}, L_warm_end-L_pc\ns_mov_b32 {sC[3]}, 0x20000")
    if opt.warm == 1:
        A(f"v_lshlrev_b32 v16, 5, v0\ns_lshl_b32 s3, s2, 10\ns_and_b32 s3, s3, 0xe000\nbuffer_load_dword v17, v16, {sC}, s3 offen")
    elif opt.warm:
        A("v_lshlrev_b32 v16, 7, v0")
        for k in range(opt.warm): A(f"s_mov_b32 s3, {k * 32768}\nbuffer_load_dword v{17 + k}, v16, {sC}, s3 offen")
    A(f"v_readfirstlane_b32 {s_wave}, v0")
    A("v_and_b32 v10, 63, v0")
    A(f"s_lshr_b32 {s_wave}, {s_wave}, 6")
    A("v_and_b32 v11, 15, v10")
    A("v_lshrrev_b32 v14, 4, v10")
    A("v_lshrrev_b32 v15, 2, v11\nv_lshlrev_b32 v1, 11, v15\nv_and_b32 v6, 3, v11\nv_lshl_add_u32 v1, v6, 6, v1")
    A("v_lshrrev_b32 v6, 3, v11\nv_lshlrev_b32 v6, 1, v6\nv_xor_b32 v6, v6, v14\nv_lshl_add_u32 v1, v6, 4, v1")
    A("v_lshrrev_b32 v6, 1, v14\nv_lshlrev_b32 v2, 10, v6\nv_and_b32 v7, 1, v14\nv_lshl_add_u32 v6, v7, 2, v15\nv_lshl_add_u32 v2, v6, 6, v2")
    A(f"v_and_b32 v8, 3, v10\nv_lshl_add_u32 v2, v8, 3, v2\nv_lshl_add_u32 v2, v7, 5, v2\nv_add_u32 v2, {VB}, v2\nv_xor_b32 v3, 32, v2")
    A("v_lshlrev_b32 v12, 9, v15\nv_lshl_add_u32 v12, v14, 6, v12\nv_lshl_add_u32 v12, v8, 4, v12\nv_xor_b32 v13, 32, v12\nv_add_u32 v13, 4096, v13")
    A(f"s_lshl_b32 {s_mK}, {s_wave}, 11\ns_lshr_b32 s3, {s_wave}, 1\ns_lshl_b32 s3, s3, 5")
    A(f"v_xor_b32 v4, s3, v12\nv_add_u32 v4, {s_mK}, v4")
    A("v_lshrrev_b32 v6, 2, v10\nv_and_b32 v6, 7, v6\nv_lshlrev_b32 v5, 9, v6\nv_lshrrev_b32 v6, 2, v6\nv_lshlrev_b32 v6, 1, v6\nv_xor_b32 v6, v6, v8")
    A(f"v_lshl_add_u32 v5, v6, 4, v5\nv_lshrrev_b32 v6, 5, v10\nv_lshl_add_u32 v5, v6, 6, v5\ns_lshl_b32 s3, {s_wave}, 13\nv_add_u32 v5, s3, v5")
    A(f"s_add_u32 {s_mX}, s3, {XB}")
    A(f"s_add_u32 {s_mOS}, s3, {vslot_addr(1, 0)}")
    A(f"s_add_u32 {s_mR2}, s3, {vslot_addr(0, 0)}")
    A(f"s_cmp_eq_u32 {s_wave}, 0\ns_cselect_b32 {s_mR2}, {kslot_addr(7)}, {s_mR2}")
    A(f"s_add_u32 {s_mR3}, s3, {kslot_addr(4)}")
    A(f"s_cmp_eq_u32 {s_wave}, 3\ns_cselect_b32 {s_mR3}, {vslot_addr(0, 0)}, {s_mR3}")
    A("v_lshrrev_b32 v6, 1, v14\nv_lshrrev_b32 v9, 1, v11\nv_xor_b32 v6, v6, v9\nv_lshlrev_b32 v6, 3, v6\nv_lshl_add_u32 v6, v7, 12, v6")
    A(f"v_lshl_add_u32 v6, v11, 6, v6\nv_add_u32 v15, {s_mOS}, v6")
    A("v_lshrrev_b32 v6, 3, v10\nv_and_b32 v9, 7, v10\nv_xor_b32 v9, v9, v14\nv_lshlrev_b32 v9, 4, v9\nv_lshl_add_u32 v14, v6, 9, v9")
    A(f"s_mov_b32 {s_c}, {C_SCALE:#x}\ns_mov_b32 {s_pass}, 0\ns_mov_b32 {s_flags}, 0")
    if opt.diag: A(f"s_mov_b32 {s_tsp}, 1\nv_mov_b32 v0, 0")
    for srd, n in ((sQ, QBYTES), (sK, KBYTES), (sV, KBYTES), (sO, QBYTES)):
        A(f"s_mov_b32 {srd[2]}, {n}\ns_mov_b32 {srd[3]}, 0x20000")
    A(f"s_mul_i32 s6, {s_wave}, 3")
    A("s_waitcnt lgkmcnt(0)")
    if opt.diag:
        A("v_writelane_b32 v0, s100, 0")
        A("s_getreg_b32 s100, hwreg(HW_REG_HW_ID)\ns_getreg_b32 s101, hwreg(HW_REG_XCC_ID)\ns_nop 1\nv_writelane_b32 v0, s100, 30\nv_writelane_b32 v0, s101, 31")
    for srd, p in ((sK, 74), (sQ, 72), (sV, 76)):
        A(f"s_mov_b64 {srd.sub(0, 2)}, s[{p}:{p+1}]")
    def decode(p, A):
        A(f"s_sub_u32 s3, s{80+3*p+2}, 12")
        A(f"s_min_u32 s4, s3, {s_wave}")
        A(f"s_add_u32 s4, s4, s6\ns_lshl_b32 s4, s4, 13")
        A(f"s_add_u32 {s_tab[4*p]}, s{80+3*p}, s4")
        A(f"s_mov_b32 {s_tab[4*p+1]}, s{80+3*p+1}")
        A(f"s_add_u32 {s_tab[4*p+3]}, {s_tab[4*p]}, 24576")
        A(f"s_cmp_lt_u32 {s_wave}, s3\ns_cselect_b32 {s_tab[4*p+2]}, 4, 3\ns_cselect_b32 {s_tab[4*p+3]}, {s_tab[4*p+3]}, {OOB:#x}")
    decode(0, A)
    L2 = []; A = L2.append
    A(f"s_mov_b64 {sO.sub(0, 2)}, s[78:79]")
    for k in range(8): A(f"s_mov_b32 {s_ok[k]}, {OOB:#x}")
    decode(1, A); decode(2, A)
    A(f"s_mov_b32 {s_tab[12]}, {OOB:#x}\ns_mov_b32 {s_tab[13]}, {OOB:#x}\ns_mov_b32 {s_tab[14]}, 0\ns_mov_b32 {s_tab[15]}, {OOB:#x}")
    A(f"s_lshl_b32 s3, s91, 2\ns_add_u32 s3, s3, {s_wave}\ns_lshl_b32 {s_str}, s3, {opt.tsh + 6}\ns_add_u32 {s_str}, {s_str}, {opt.tvoff}")
    A(f"s_cmp_eq_u32 s90, {OOB:#x}\ns_cselect_b32 {s_str}, 0x40000000, {s_str}")
    if opt.touch & 4:
        for src, dst in (("s94", "s40"), ("s95", "s89")):
            A(f"s_and_b32 s3, {src}, 7\ns_min_u32 s3, s3, {s_wave}\ns_add_u32 s3, s3, s6\ns_add_u32 s3, s3, 2\ns_lshl_b32 s3, s3, 13\ns_andn2_b32 {dst}, {src}, 7\ns_add_u32 {dst}, {dst}, s3")
    A(f"s_lshr_b32 s3, s2, 1\ns_and_b32 s3, s3, 28\ns_add_u32 s3, s3, {s_wave}\ns_lshl_b32 {s_cs}, s3, {opt.tsh + 6}\ns_and_b32 {s_cs}, {s_cs}, 0xffff\ns_add_u32 {s_cs}, {s_cs}, L_v4-L_pc")
    for p in range(3):
        for k in range(3): A(f"s_mov_b32 s{80+3*p+k}, {s_tab[4*p+k]}")
    return L, L2

def startup(late_setup):
    P = {}
    r = [sop(f"s_mov_b32 {s_kptr}, {s_tab[1]}", wr=[s_kptr]), sop(f"s_sub_u32 {s_vptr}, {s_tab[1]}, 32768", wr=[s_vptr])]
    k123 = lambda: dma_K(1) + dma_K(2) + dma_K(3)
    if not opt.kpos: r += k123()
    r += [sop(f"s_add_u32 {s_t0}, {s_tab[0]}, 8192", wr=[s_t0]), sop(f"s_add_u32 {s_t1}, {s_tab[0]}, 16384", wr=[s_t1]),
          sop(f"s_add_u32 {s_t2}, {s_tab[0]}, 24576", wr=[s_t2])]
    r += [sop(f"s_cmp_eq_u32 s90, {OOB:#x}"), raw("s_cbranch_scc1 L_nohelp")]
    P["a"] = r
    late = lambda: dma_K(4) + dma_K(5) + dma_K(6) + dma_V(0, 0)
    r = (k123() if opt.kpos else []) + late()
    r += [sop("s_sub_u32 s4, s92, 12"), sop(f"s_add_u32 s5, {s_wave}, 1"), sop("s_min_u32 s4, s4, s5"), sop("s_mul_i32 s5, s5, 3"),
          sop("s_add_u32 s4, s4, s5"), sop("s_lshl_b32 s3, s4, 13"), sop(f"s_add_u32 s3, s3, s90"), sop(f"s_sub_u32 s3, s3, {1024 * opt.help_n}"),
          valu("v_lshlrev_b32", vt1, 4, vt0)]
    hl = []
    for k in range(opt.help_n):
        if k and k % 4 == 0: hl.append(sop("s_add_u32 s3, s3, 4096"))
        i = Ins(f"buffer_load_dwordx4 {V(96 + 4 * k, 4)}, {vt1}, {sQ}, s3 offen offset:{(k % 4) * 1024} {opt.hmod}", "vmem", rd=[vt1]); i.vm = True
        hl.append(i)
    if opt.help2:
        nv, nk = opt.help2, opt.help2 * 2 // 3
        hl += [sop("s_lshl_b32 s4, s91, 2"), sop(f"s_add_u32 s4, s4, {s_wave}"), sop(f"s_lshl_b32 s4, s4, 10"), sop(f"s_add_u32 s3, s4, {s_tab[1]}"),
               sop(f"s_add_u32 s5, s3, 49152")]
        for k in range(max(nv, nk)):
            for srd, sp, cnt in ((sV, "s3", nv), (sK, "s5", nk)):
                if k < cnt:
                    i = Ins(f"buffer_load_dwordx4 {V(192 + 4 * (k % 8), 4)}, {vt1}, {srd}, {sp} offen", "vmem", rd=[vt1]); i.vm = True
                    hl += [i, sop(f"s_add_u32 {sp}, {sp}, 12288")]
    if opt.late == 2: r = r[-9:] + hl + r[:-9]
    else: r += hl
    P["h"] = r
    r = []; k = 0
    for grp in (dma_Q(s_mX, s_tab[0], ("X",)), dma_Q(s_mR2, s_t0, ("R2",)), dma_Q(s_mOS, s_t1, ("OS",))):
        for hf in (grp[:6], grp[6:]):
            r += hf
            if not opt.sched.endswith("_0"):
                r += [sop(f"s_bitcmp1_b32 s89, {k}"), raw(f"s_cbranch_scc0 L_th{k}"), raw("s_waitcnt vmcnt(0)"), label(f"L_th{k}")]
            k += 1
            if k == opt.kpos:
                P["q1"] = r + [sop(f"s_cmp_lg_u32 s90, {OOB:#x}"), raw("s_cbranch_scc1 L_nok")]
                P["k"] = k123(); r = []
    st5 = (lambda: stamp(9)) if opt.diag == 5 else (lambda: [])
    r += [raw(t, "salu") for x in late_setup for t in x.split("\n")]
    r += st5() + [vwait([("X",)])] + st5() + q_reads(0, s_mX, ("X",), vt0)
    if opt.quick: r += [sop("s_cmp_lg_u32 s93, 0"), raw("s_cbranch_scc1 L_quick")]
    r += [sop(f"s_cmp_lt_u32 {s_tab[2]}, 4"), raw("s_cbranch_scc1 L_noq3")]
    P["q"] = r
    P["r2"] = [waitcnt(None, 0)] + dma_Q(s_mX, s_t2, ("X",))
    P["r3"] = [vwait([("R2",)])] + st5() + q_reads(1, s_mR2, ("R2",), vt1) + [vwait([("K", 1), ("K", 2), ("K", 3)]), barrier()] + head_reads()
    P["lc"] = [sop(f"s_cmp_lg_u32 s90, {OOB:#x}"), raw("s_cbranch_scc1 L_nolate")] if opt.late else []
    P["l"] = (late() + [vwait([("OS",)]), raw("s_branch L_osok")]) if opt.late else []
    P["w"] = [vwait([("OS",)])]
    P["r4"] = st5() + q_reads(2, s_mOS, ("OS",), vt0) + pass_begin()
    P["r4"] += [sop(f"s_cmp_lt_u32 {s_nbn}, 4"), raw("s_cbranch_scc1 L_first")]
    P["r5"] = [vwait([("X",)])] + q_reads(3, s_mX, ("X",), vt1)
    return {k: fix_hazards(lin(v)[0]) for k, v in P.items()}

def pass_begin():
    T2 = lambda k: S(s_tab.n + k, 2)
    r = [sop(f"s_mov_b32 {s_ocur}, {s_tab[0]}"),
         sop(f"s_add_u32 {s_kend}, {s_tab[1]}, 262144"),
         sop(f"s_mov_b32 {s_nbn}, {s_tab[2]}"),
         sop(f"s_mov_b32 {s_knext}, {s_tab[5]}"),
         sop(f"s_mov_b32 {s_xq}, {s_tab[4]}"),
         sop(f"s_add_u32 {s_qn[1]}, {s_tab[4]}, 8192"), sop(f"s_add_u32 {s_qn[2]}, {s_tab[4]}, 16384"),
         sop(f"s_mov_b32 {s_qn[3]}, {s_tab[7]}")]
    for k in range(0, 12, 2): r.append(sop(f"s_mov_b64 {T2(k)}, {T2(k + 4)}"))
    r += [sop(f"s_mov_b32 {s_cnt}, 3"), *([sop(f"s_mov_b32 {s_tq}, s40"), sop("s_mov_b32 s40, s89"), sop(f"s_mov_b32 s89, {OOB:#x}")] if opt.touch & 4 else []),
          sop(f"s_add_u32 {s_tv}, {s_str}, {s_knext}"), sop(f"s_add_u32 {s_tk}, {s_tv}, {opt.tkoff}"),
          sop(f"s_mov_b32 {s_xm}, {OOB:#x}") if opt.xlate else sop(f"s_mov_b32 {s_xm}, {s_mX}")]
    return r

def repair_code():
    rQ = lambda k: V(96 + 4 * k, 4); rK = lambda k: V(128 + 4 * k, 4); rS = lambda k: V(32 + 4 * k, 4)
    rO = lambda k: V(160 + 4 * k, 4); rV = lambda k: V(224 + 4 * k, 4)
    m, l, ta, tb, al, nm = V(6), V(7), V(8), V(9), V(10), V(11)
    fa, va0, va1, vop, so = V(48), V(49), V(50), V(51), V(52)
    sp, sb, sj, sq, sk, sv = S(90), S(91), S(92), S(93), S(94), S(95)
    def gload(d, srd, soff, imm):
        return Ins(f"buffer_load_dwordx4 {d}, {fa}, {srd}, {soff} offen offset:{imm}", "vmem", rd=[fa, srd, soff], wr=[d])
    W = lambda t: raw(t, "wait")
    out = []
    pre = [W("s_waitcnt vmcnt(0) lgkmcnt(0)"),
           valu("v_mbcnt_lo_u32_b32", ta, -1, 0), valu("v_mbcnt_hi_u32_b32", ta, -1, ta),
           valu("v_and_b32", tb, 15, ta), valu("v_lshrrev_b32", ta, 4, ta),
           valu("v_lshlrev_b32", fa, 9, tb), valu("v_lshl_add_u32", so, ta, 3, fa), valu("v_lshl_add_u32", fa, ta, 4, fa),
           sop(f"s_sub_u32 {s_t0}, {s_mX}, {VB}"), valu("v_add_u32", va0, s_t0, vaddr0), valu("v_add_u32", va1, s_t0, vaddr1),
           sop(f"s_lshl_b32 {s_t0}, {s_wave}, 13"), valu("v_subrev_u32", vop, s_t0, voV),
           sop(f"s_mov_b32 {sp}, 0")]
    out += fix_hazards(pre)
    out += [label("L_rp"), sop(f"s_bitcmp1_b32 {s_flags}, {sp}"), raw("s_cbranch_scc0 L_rp_next"), sop(f"s_mov_b32 {sb}, 0"), label("L_rb")]
    blk = [sop(f"s_lshl_b32 {sq}, {sb}, 13"), sop(f"s_add_u32 {sq}, {sq}, s80")]
    blk += [gload(rQ(k), sQ, sq, k * 64) for k in range(8)]
    blk += [valu("v_mov_b32", m, "0xff800000"), valu("v_mov_b32", l, 0)]
    blk += [valu("v_mov_b32", V(160 + k), 0) for k in range(64)]
    blk += [sop(f"s_mov_b32 {sk}, s81"), sop(f"s_mov_b32 {sv}, s81"), sop(f"s_mov_b32 {sj}, 0")]
    out += fix_hazards(blk) + [label("L_rj")]
    it = []
    for kvb in range(4):
        it += [gload(rK(k), sK, sk, k * 64) for k in range(8)] + [sop(f"s_add_u32 {sk}, {sk}, 8192"), W("s_waitcnt vmcnt(0)")]
        it += [mfma(rS(kvb), rK(k), rQ(k), rS(kvb) if k else 0) for k in range(8)]
    xs = [V(32 + k) for k in range(16)]
    it += [valu("v_max3_f32", ta, m, xs[0], xs[1])]
    it += [valu("v_max3_f32", ta, ta, xs[k], xs[k + 1]) for k in range(2, 16, 2)]
    it += [valu("v_mov_b32", tb, ta), perm("v_permlane16_swap_b32", ta, tb), valu("v_max_f32", ta, ta, tb),
           valu("v_mov_b32", tb, ta), perm("v_permlane32_swap_b32", ta, tb), valu("v_max_f32", ta, ta, tb),
           valu("v_sub_f32", al, m, ta), valu("v_mul_f32", al, s_c, al), valu("v_exp_f32", al, al), valu("v_mov_b32", m, ta)]
    it += [valu("v_sub_f32", x, x, m) for x in xs] + [valu("v_mul_f32", x, s_c, x) for x in xs] + [valu("v_exp_f32", x, x) for x in xs]
    it += [valu("v_mul_f32", l, l, al)] + [valu("v_add_f32", l, l, x) for x in xs]
    it += [valu("v_mul_f32", V(160 + k), V(160 + k), al) for k in range(64)]
    Pf = lambda ks: V(16 + 4 * ks, 4)
    for ks in range(2):
        for j in range(4): it.append(valu("v_cvt_pk_bf16_f32", Pf(ks)[j], xs[8 * ks + 2 * j], xs[8 * ks + 2 * j + 1]))
    for c in range(4):
        for j in range(8):
            it += [sop(f"s_add_u32 {s_t0}, {sv}, {j * 4096 + c * 128}", wr=[s_t0]), set_m0(s_mX, j * 1024), dma(vop, sV, s_t0, 0, None, "")]
        it += [W("s_waitcnt vmcnt(0)")]
        for dbl in range(4):
            for ks in range(2):
                for j4 in range(2):
                    it.append(ds_read("ds_read_b64_tr_b16", rV(2 * dbl + ks).sub(2 * j4, 2), va1 if dbl & 1 else va0, ks * 4096 + (dbl >> 1) * 512 + j4 * 2048))
        it += [W("s_waitcnt lgkmcnt(0)")]
        for dbl in range(4):
            for ks in range(2): it.append(mfma(rO(4 * c + dbl), rV(2 * dbl + ks), Pf(ks), rO(4 * c + dbl)))
    it += [nop(9), sop(f"s_add_u32 {sv}, {sv}, 32768"), sop(f"s_add_u32 {sj}, {sj}, 1"), sop(f"s_cmp_lt_u32 {sj}, 8"), raw("s_cbranch_scc1 L_rj")]
    out += fix_hazards(it)
    fin = [valu("v_mov_b32", tb, l), perm("v_permlane16_swap_b32", l, tb), valu("v_add_f32", l, l, tb),
           valu("v_mov_b32", tb, l), perm("v_permlane32_swap_b32", l, tb), valu("v_add_f32", l, l, tb), valu("v_rcp_f32", al, l)]
    for db in range(16):
        o = rO(db)
        fin += [valu("v_mul_f32", o[i], o[i], al) for i in range(4)]
        fin += [valu("v_cvt_pk_bf16_f32", o[0], o[0], o[1]), valu("v_cvt_pk_bf16_f32", o[1], o[2], o[3])]
        fin.append(Ins(f"buffer_store_dwordx2 {o.sub(0, 2)}, {so}, {sO}, {sq} offen offset:{db * 32}", "vmem", rd=[o.sub(0, 2), so, sO, sq]))
    fin += [W("s_waitcnt vmcnt(0)"), sop(f"s_add_u32 {sb}, {sb}, 1"), sop(f"s_cmp_lt_u32 {sb}, s82"), raw("s_cbranch_scc1 L_rb")]
    out += fix_hazards(fin)
    out += [label("L_rp_next")]
    out += [sop(f"s_mov_b32 s{80 + k}, s{83 + k}") for k in range(6)]
    out += [sop(f"s_add_u32 {sp}, {sp}, 1"), sop(f"s_cmp_lt_u32 {sp}, 3"), raw("s_cbranch_scc1 L_rp")]
    return out

DOC = """
Fused attention softmax(Q K^T / 16) V, emitted by a hand-written generator / list scheduler (no compiler output).
 * 256 workgroups x 4 waves (one wave per SIMD, 512 registers).  A workgroup runs three passes; a pass covers 12..16
   blocks of 16 query rows of one head (3 or 4 blocks per wave, table L_table at the end of the code).
 * K and V stream through a 128 KB LDS ring (LDS-DMA, 8 KB units); S^T = K Q^T and O^T = V^T P^T use
   v_mfma_f32_16x16x32_bf16, the softmax VALU work is interleaved between the MFMAs.
 * Softmax reference: per row the true maximum of the first 16 scores is subtracted (it enters as the C operand of the
   QK^T MFMA chains).  It never exceeds the row maximum, so it can only overflow: every pass checks its row sums and,
   if one is not below 2^50, the rows are recomputed at L_repair with a plain online softmax (true running maximum).
 * Epilogue: normalise, round to bf16, transpose through LDS, store full 128-byte lines.
 * Plain loads whose results are unused only pull data / code towards L2 ahead of its use.
"""

def main():
    ap = argparse.ArgumentParser()
    ap.add_argument("-o", default="standalone__mha_softmax__near_ridge.s")
    ap.add_argument("--diag", type=int, default=0)
    ap.add_argument("--kvmod", default="")
    ap.add_argument("--qmod", default="nt")
    ap.add_argument("--omod", default="")
    ap.add_argument("--sched", default="t6_344_0")
    ap.add_argument("--pkmul", type=int, default=1)
    ap.add_argument("--rep", type=int, default=1)
    ap.add_argument("--k0", type=int, default=3)
    ap.add_argument("--g1lo", type=int, default=14)
    ap.add_argument("--g1hi", type=int, default=4)
    ap.add_argument("--g3lo", type=int, default=14)
    ap.add_argument("--fq", type=int, default=4)
    ap.add_argument("--fmod2", default="")
    ap.add_argument("--tqskip", type=int, default=1)
    ap.add_argument("--tvoff", type=int, default=0)
    ap.add_argument("--twhen4", type=int, default=2)
    ap.add_argument("--t6n", type=int, default=0)
    ap.add_argument("--t6n3", type=int, default=0)
    ap.add_argument("--kpos", type=int, default=0)
    ap.add_argument("--help2", type=int, default=0)
    ap.add_argument("--quick", type=int, default=0)
    ap.add_argument("--iw", type=int, default=1)
    ap.add_argument("--pairmaj", type=int, default=1)
    ap.add_argument("--mid", type=int, default=0)
    ap.add_argument("--midb", type=int, default=20)
    ap.add_argument("--padat", type=int, default=0)
    ap.add_argument("--fin", type=int, default=1)
    ap.add_argument("--finoff", type=int, default=12)
    ap.add_argument("--finoff2", type=int, default=4)
    ap.add_argument("--finb", type=int, default=36)
    ap.add_argument("--hca", type=int, default=4)
    ap.add_argument("--hext", type=int, default=3)
    ap.add_argument("--hw", default="10,6,4")
    ap.add_argument("--dq0", type=int, default=0)
    ap.add_argument("--q3early", type=int, default=0)
    ap.add_argument("--fmod", default="nt")
    ap.add_argument("--xlate", type=int, default=0)
    ap.add_argument("--hmod", default="")
    ap.add_argument("--tsh", type=int, default=5)
    ap.add_argument("--barsplit", type=int, default=1)
    ap.add_argument("--barblk", type=int, default=8)
    ap.add_argument("--barlag4", type=int, default=2)
    ap.add_argument("--r3epi", type=int, default=1)
    ap.add_argument("--hback", type=int, default=24)
    ap.add_argument("--hoist", default="")
    ap.add_argument("--twhen", type=int, default=2)
    ap.add_argument("--tkoff", type=int, default=24576)
    ap.add_argument("--cwarm", type=int, default=1)
    ap.add_argument("--late", type=int, default=1)
    ap.add_argument("--al8", type=int, default=0)
    ap.add_argument("--tstride", type=int, default=2048)
    ap.add_argument("--tstep", type=int, default=24576)
    ap.add_argument("--barlag", type=int, default=4)
    ap.add_argument("--epi_rd", type=int, default=1)
    ap.add_argument("--abl", type=int, default=0)
    ap.add_argument("--help_n", type=int, default=12)
    ap.add_argument("--omod3", default="")
    ap.add_argument("--omod4", default="")
    ap.add_argument("--wb", type=int, default=0)
    ap.add_argument("--nostore", type=int, default=0)
    ap.add_argument("--ca7", type=int, default=0)
    ap.add_argument("--show", type=int, default=0)
    ap.add_argument("--spread", type=int, default=1)
    ap.add_argument("--touch", type=int, default=2)
    ap.add_argument("--force", type=int, default=0)
    ap.add_argument("--padto", type=int, default=0)
    ap.add_argument("--defer", type=int, default=0)
    ap.add_argument("--warm", type=int, default=1)
    a = ap.parse_args()
    opt.__dict__.update(vars(a)); opt.nextq = 1
    opt.hwin = [int(x) for x in opt.hw.split(",")]
    if opt.hoist:
        h = [int(x) for x in opt.hoist.split(",")]; HOIST[4] = (h[0], h[1]); HOIST[3] = (h[2], h[3])
    L = []; A = L.append
    hdr = open("standalone__mha_softmax__near_ridge.s.ref").read().split("\n")
    for l in hdr:
        if l.startswith("; @launch"): break
        A(l)
    A(f"; @launch grid=(256,1,1) block=(256,1,1) lds={LDS_BYTES}")
    for l in DOC.strip("\n").split("\n"): A((";  " + l).rstrip())
    A('.amdgcn_target "amdgcn-amd-amdhsa--gfx950"')
    A(f".text\n.globl {KNAME}\n.p2align 8\n.type {KNAME},@function\n{KNAME}:")
    su1, su2 = setup_code()
    L += su1
    def emit(seq):
        for i in seq: L.append(i)
    if opt.rep > 1: A(f"s_mov_b32 s98, {opt.rep}\nL_again:")
    emit(stamp(0))
    SU = startup(su2)
    emit(SU["a"]); emit(SU["h"]); A("L_nohelp:")
    if opt.kpos: emit(SU["q1"]); emit(SU["k"]); A("L_nok:")
    emit(SU["q"]); emit(SU["r2"]); A("L_noq3:")
    if opt.iw: A("s_branch L_iw0\nL_iwa:")
    emit(SU["r3"])
    emit(SU["lc"]); emit(SU["l"])
    assert opt.late
    qpos = len(L)
    A("L_nolate:")
    if opt.iw: A("s_branch L_iw3a\nL_iwb:")
    emit(SU["w"]); A("L_osok:"); emit(SU["r4"]); emit(SU["r5"])
    A("L_first:")
    assert opt.ca7 == 0
    s4 = []
    s4 = fix_hazards(s4 + sum([dma_V(0, 1), dma_V(0, 2), dma_V(0, 3), dma_K(7)][:opt.ca7], []))
    emit(s4)
    A("L_pass:")
    pb = [waitcnt(None, 0), barrier()]
    emit(pb)
    emit(stamp(1))
    if opt.padat:
        A(f"s_cmp_lg_u32 {s_pass}, {opt.padat - 1}\ns_cbranch_scc1 L_nopad\ns_cmp_lg_u32 {s_str}, 0x40000000\ns_cbranch_scc1 L_nopad\ns_memrealtime s[100:101]\ns_waitcnt lgkmcnt(0)\nL_nopad:")
    A(f"s_cmp_eq_u32 {s_nbn}, 3\ns_cbranch_scc1 L_v3")
    VAR = {}
    for nb in (4, 3):
        P = variant(nb)
        hd = fix_hazards(P["hd"])
        b1 = fix_hazards(P["i1"], wrap=hd[-14:])
        b2 = fix_hazards(P["i2"], wrap=b1[-14:])
        b1b = fix_hazards(P["i1"], wrap=b2[-14:])
        assert [x.text for x in b1b] == [x.text for x in b1], "loop entry hazards differ"
        i6 = fix_hazards(P["i6"], wrap=b1[-14:])
        i7 = fix_hazards(P["i7"], wrap=i6[-14:])
        epi = fix_hazards(P["epi"], wrap=i7[-14:])
        epf = fix_hazards(P["epf"], wrap=i7[-14:])
        fin = fix_hazards(P["fin"], wrap=i6[-14:])
        if opt.mid: i7 = []; epi = fix_hazards(P["mid"], wrap=i6[-14:])
        VAR[nb] = dict(hd=hd, b1=b1, b2=b2, i6=i6, i7=i7, epi=epi, epf=epf, fin=fin)
        if opt.al8:
            for k in ("hd", "b1", "b2", "i6", "i7"): align8(VAR[nb][k])
        nn = sum(1 for p in VAR[nb].values() for x in p if x.kind == "nop")
        print(f"nb={nb}: sizes", {k: len(v) for k, v in VAR[nb].items()}, "nops", nn, file=sys.stderr)
        if nb == 3 and opt.quick:
            QS = quick_start(3, P["q0"])
            assert [x.text for x in fix_hazards(P["i1"], wrap=QS[-14:])] == [x.text for x in b1]
            L[qpos:qpos] = (["L_quick:\n; ---- first pass, 3 blocks per wave: every block starts as soon as its rows have arrived"] + QS
                            + stamp(1) + stamp(2) + ["s_branch L_loop3"])
        A(".p2align 6")
        if nb == 3 and opt.iw: A("L_iw0:\ns_branch L_iwa")
        A(f"L_v{nb}:")
        emit(hd)
        emit(stamp(2))
        if opt.diag == 3:
            for k in range(3):
                A(f"s_sub_u32 s66, s{92+4*k}, s{90+4*k}\ns_mul_i32 s67, {s_pass}, 3\ns_add_u32 m0, s67, {20+k}\ns_nop 1\nv_writelane_b32 v0, s66, m0")
        if opt.al8: A(f".p2align {opt.al8}")
        A(f"L_loop{nb}:")
        emit(b1); A(f"s_cbranch_scc1 L_i6_{nb}")
        if opt.al8: A(".p2align 3")
        emit(b2); A(f"s_branch L_loop{nb}")
        if opt.al8: A(f".p2align {opt.al8}")
        if opt.iw: A(f"L_iw{nb}a:\ns_branch L_iw{nb}b")
        A(f"L_i6_{nb}:")
        if opt.diag == 4: emit(stamp(9))
        if opt.al8: A(".p2align 3")
        emit(i6)
        if opt.diag == 4: emit(stamp(9))
        if opt.fin:
            A(f"s_cmp_lt_u32 {s_pass}, 2\ns_cbranch_scc1 L_i7_{nb}")
            emit(stamp(3))
            emit(fin)
            emit(stamp(4))
            A("s_branch L_done")
            if opt.iw: A(f"L_iw{nb}b:\ns_branch " + ("L_iw4a" if nb == 3 else "L_iwb"))
            A(f"L_i7_{nb}:")
            emit(i7)
            emit(stamp(3))
        else:
            emit(i7)
            emit(stamp(3))
            A(f"s_cmp_lt_u32 {s_pass}, 2\ns_cbranch_scc1 L_epi{nb}")
            emit(epf)
            emit(stamp(4))
            A(f"s_branch L_done\nL_epi{nb}:")
        emit(epi)
        emit(stamp(4))
        A(f"s_add_u32 {s_pass}, {s_pass}, 1\ns_branch L_pass")
    tail = []
    traces = []
    import itertools
    for seqnb in itertools.product((3, 4), (3, 4), (3, 4), (0, 1)):
        hp = seqnb[3]; seqnb = seqnb[:3]
        n4 = seqnb[0] == 4
        tr = SU["a"] + (SU["h"] if hp else []) + SU.get("q1", []) + ([] if hp else SU.get("k", [])) + SU["q"] + (SU["r2"] if n4 else []) + SU["r3"] + (SU["w"] if (hp or not opt.late) else SU["l"]) + SU["r4"] + (SU["r5"] if n4 else []) + s4
        for pi, nb in enumerate(seqnb):
            v = VAR[nb]
            tr = tr + pb + v["hd"] + (v["b1"] + v["b2"]) * 2 + v["b1"] + v["i6"] + (v["fin"] if (pi == 2 and opt.fin) else v["i7"] + v["epf" if pi == 2 else "epi"])
        traces.append(tr + tail)
    qtraces = []
    if opt.quick:
        for seqnb in itertools.product((3,), (3, 4), (3, 4)):
            tr = SU["a"] + SU["q"] + QS
            for pi, nb in enumerate(seqnb):
                v = VAR[nb]
                tr = tr + ((pb + v["hd"]) if pi else []) + (v["b1"] + v["b2"]) * 2 + v["b1"] + v["i6"] + (v["fin"] if (pi == 2 and opt.fin) else v["i7"] + v["epf" if pi == 2 else "epi"])
            qtraces.append(tr + tail)
    resolve_vm(traces + qtraces)
    if qtraces and not opt.abl: cross_check(qtraces)
    for tr in traces + qtraces:
        errs = check_trace(tr)
        if errs and not opt.abl:
            for e in errs[:20]: print("SYNC ERR", e, file=sys.stderr)
            raise SystemExit(1)
    if not opt.abl: cross_check(traces)
    A("L_done:")
    emit(tail)
    if opt.force: A(f"s_mov_b32 {s_flags}, {opt.force}")
    A(f"s_cmp_lg_u32 {s_flags}, 0\ns_cbranch_scc1 L_repair\nL_fin:")
    if opt.rep > 1:
        A("s_waitcnt vmcnt(0) lgkmcnt(0)\ns_barrier")
        raise SystemExit("rep unsupported now")
        A(f"s_mov_b32 {s_pass}, 0\ns_sub_u32 s98, s98, 1\ns_cmp_lg_u32 s98, 0\ns_cbranch_scc1 L_again")
    if opt.diag:
        A("s_waitcnt vmcnt(0)")
        emit(stamp(5))
        A(f"s_mov_b32 s66, 0x1000000\ns_mov_b32 s67, 0x20000")
        A(f"v_mbcnt_lo_u32_b32 v1, -1, 0\nv_mbcnt_hi_u32_b32 v1, -1, v1\nv_lshlrev_b32 v1, 2, v1")
        A(f"s_lshl_b32 s3, s2, 10\ns_lshl_b32 s4, {s_wave}, 8\ns_add_u32 s3, s3, s4")
        A("buffer_store_dword v0, v1, s[64:67], s3 offen")
        if opt.diag == 2:
            A(f"s_or_b32 s3, s2, {s_wave}\ns_cmp_lg_u32 s3, 0\ns_cbranch_scc1 L_exit")
            A("s_load_dwordx2 s[64:65], s[0:1], 32\ns_mov_b32 s66, 256\nv_readlane_b32 s4, v0, 0\nv_readlane_b32 s5, v0, 32\ns_waitcnt lgkmcnt(0)")
            idx = [2, 3, 4, 6, 8, 10, 12, 14]
            for j, k in enumerate(idx):
                A(f"v_readlane_b32 s6, v0, {k}\nv_readlane_b32 s7, v0, {k+32}\ns_sub_u32 s6, s6, s4\ns_sub_u32 s7, s7, s5\ns_nop 1\nv_writelane_b32 v2, s6, {j}\nv_writelane_b32 v2, s7, {j+8}")
            A("s_mov_b64 exec, 0xffff\nbuffer_store_dword v2, v1, s[64:67], 0 offen")
    if opt.wb == 1:
        A(f"s_cmp_lg_u32 {s_wave}, 0\ns_cbranch_scc1 L_exit\ns_waitcnt vmcnt(0)\nbuffer_wbl2 sc1\ns_waitcnt vmcnt(0)")
    if opt.wb == 2:
        A(f"s_cmp_lg_u32 {s_wave}, 0\ns_cbranch_scc1 L_exit\ns_cmp_eq_u32 s89, 0\ns_cbranch_scc1 L_exit\ns_waitcnt vmcnt(0)\nbuffer_wbl2 sc1\ns_waitcnt vmcnt(0)")
    if opt.wb == 3:
        A(f"s_waitcnt vmcnt(0)\nbuffer_wbl2 sc1")
    if opt.padto:
        A(f"s_waitcnt vmcnt(0)\nL_spin:\ns_memrealtime s[66:67]\ns_waitcnt lgkmcnt(0)\ns_sub_u32 s66, s66, s100\ns_cmp_lt_u32 s66, {opt.padto}\ns_cbranch_scc1 L_spin")
    A("L_exit:")
    A("s_endpgm")
    A("L_warm_end:")
    A("L_repair:")
    emit(repair_code())
    A("s_branch L_fin")
    A(".p2align 6\n.type L_table,@object\nL_table:")
    tab = schedule_table(opt.sched)
    for wg in range(256):
        w = []
        for h, st, n in tab[wg]:
            w += [(h * SQ + st * 16) * 512, h * SK * 512, n]
        w += [THR.get(wg, 0), HELP.get(wg, OOB), RANK.get(wg, 0), HELPN.get(wg, 12), int(wg not in HELP and tab[wg][0][2] == 12)]
        for p in (1, 2):
            if wg in PART: h, st, n = tab[PART[wg]][p]; w.append((h * SQ + st * 16) * 512 + n - 12)
            else: w.append(OOB)
        w += [0] * (16 - len(w))
        A(".long " + ", ".join(str(x) for x in w))
    A(".size L_table, 16384")
    A('.section .rodata,"a"\n.p2align 6')
    A(f".amdhsa_kernel {KNAME}")
    A("  .amdhsa_next_free_vgpr 512\n  .amdhsa_next_free_sgpr 102\n  .amdhsa_accum_offset 256\n  .amdhsa_group_segment_fixed_size 0")
    A("  .amdhsa_kernarg_size 48\n  .amdhsa_user_sgpr_count 2\n  .amdhsa_user_sgpr_kernarg_segment_ptr 1\n  .amdhsa_system_sgpr_workgroup_id_x 1")
    A(".end_amdhsa_kernel")
    open(opt.o, "w").write("\n".join((x if isinstance(x, str) else x.text) for x in L if x is not None) + "\n")

if __name__ == "__main__":
    main()
```
